```python
import torch

def _softmax(x, axis=-1):
    return torch.softmax(x, dim=axis)

def _gelu(x):
    return torch.nn.functional.gelu(x, approximate='tanh')

def _silu(x):
    return torch.nn.functional.silu(x)

def _sigmoid(x):
    return torch.sigmoid(x)

def _layernorm(x, axis=-1, eps=1e-05):
    m = x.mean(dim=axis, keepdim=True)
    v = x.var(dim=axis, keepdim=True, unbiased=False)
    return (x - m) / torch.sqrt(v + eps)

def _scatter_add(tgt, idx, src, axis=0):
    return tgt.clone().index_add_(axis, idx, src)

def _segment_sum(src, seg, n):
    out = torch.zeros((n,) + src.shape[1:], dtype=src.dtype)
    return out.index_add_(0, seg, src)

def _pad(x, pw):
    flat = tuple((v for pair in reversed(pw) for v in pair))
    return torch.nn.functional.pad(x, flat)
kernel_name = 'adaLN_cond__mha_block__geglu_ffn__prompt'

def setup_inputs():

    _w = lambda a: (lambda t: t.to(torch.bfloat16) if t.is_floating_point() else t)(torch.as_tensor(a))

    def _A_setup():
        B, S, D, H = (1, 2048, 1024, 32)
        return {'x': _w((lambda *s: torch.randn(*s, dtype=torch.bfloat16) * 0.05)(B, S, D)), 'wqkv': _w((lambda *s: torch.randn(*s, dtype=torch.bfloat16) * 0.05)(D, 3 * D)), 'wo': _w((lambda *s: torch.randn(*s, dtype=torch.bfloat16) * 0.05)(D, D))}
    _A_in = _A_setup()

    def _B_setup():
        B, S, D, F = (1, 2048, 1024, 3584)
        return {'x': _w((lambda *s: torch.randn(*s, dtype=torch.bfloat16) * 0.05)(B, S, D)), 'w_gate': _w((lambda *s: torch.randn(*s, dtype=torch.bfloat16) * 0.05)(D, F)), 'w_up': _w((lambda *s: torch.randn(*s, dtype=torch.bfloat16) * 0.05)(D, F)), 'w_down': _w((lambda *s: torch.randn(*s, dtype=torch.bfloat16) * 0.05)(F, D))}
    _B_in = _B_setup()
    return {'A_x': _A_in['x'], 'A_wqkv': _A_in['wqkv'], 'A_wo': _A_in['wo'], 'B_x': _B_in['x'], 'B_w_gate': _B_in['w_gate'], 'B_w_up': _B_in['w_up'], 'B_w_down': _B_in['w_down'], 'c': _w((lambda *s: torch.randn(*s, dtype=torch.bfloat16) * 0.1)(1, 1024) * 8.0), 'w_mod': _w((lambda *s: torch.randn(*s, dtype=torch.bfloat16) * 0.1)(1024, 6 * 1024) * 1024 ** (-0.5) * 8.0)}

def reference(A_x, A_wqkv, A_wo, B_x, B_w_gate, B_w_up, B_w_down, c, w_mod):

    def _A_ref(x, wqkv, wo):
        B, S, D = x.shape
        H = 32
        Dh = D // H
        qkv = (lambda x, *d: x.permute(*d))((x @ wqkv).reshape(B, S, 3, H, Dh), 2, 0, 3, 1, 4)
        q, k, v = (qkv[0], qkv[1], qkv[2])
        scores = torch.einsum('bhqd,bhkd->bhqk', q, k) * Dh ** (-0.5)
        p = _softmax(scores, axis=-1)
        o = torch.einsum('bhqk,bhkd->bhqd', p, v)
        return (lambda x, *d: x.permute(*d))(o, 0, 2, 1, 3).reshape(B, S, D) @ wo

    def _B_ref(x, w_gate, w_up, w_down):
        return _gelu(x @ w_gate) * (x @ w_up) @ w_down
    x = A_x
    mod = (_silu(c) @ w_mod).reshape(c.shape[0], 6, 1, -1)
    sa, ca, ga, sb, cb, gb = (mod[:, 0].clone(), mod[:, 1].clone(), mod[:, 2].clone(), mod[:, 3].clone(), mod[:, 4].clone(), mod[:, 5].clone())
    h = _layernorm(x, axis=-1) * (1 + ca) + sa
    x = x + ga * _A_ref(h, A_wqkv, A_wo)
    h = _layernorm(x, axis=-1) * (1 + cb) + sb
    x = x + gb * _B_ref(h, B_w_gate, B_w_up, B_w_down)
    return x
```

```python
import re

TRANS = ("v_exp_", "v_log_", "v_rcp_", "v_rsq_", "v_sqrt_", "v_sin_", "v_cos_")

def regs_of(tok):
    tok = tok.strip()
    tok = tok.lstrip("-").strip("|")
    if tok.startswith("abs(") : tok = tok[4:-1]
    m = re.fullmatch(r"([vas])(\d+)", tok)
    if m: return {(m.group(1), int(m.group(2)))}
    m = re.fullmatch(r"([vas])\[(\d+):(\d+)\]", tok)
    if m: return {(m.group(1), i) for i in range(int(m.group(2)), int(m.group(3)) + 1)}
    if tok in ("vcc", "vcc_lo", "vcc_hi"): return {("vcc", 0)}
    if tok in ("exec", "exec_lo", "exec_hi"): return {("exec", 0)}
    if tok == "m0": return {("m0", 0)}
    return set()

class Ins:
    def __init__(self, text):
        self.text = text
        t = text.split(";")[0].strip()
        self.label = None
        self.kind = "none"
        self.w = set(); self.r = set()
        self.op = ""
        if not t or t.startswith("."):
            if t.endswith(":"): self.label = t[:-1]
            return
        if t.endswith(":"):
            self.label = t[:-1]; return
        parts = t.split(None, 1)
        op = self.op = parts[0]
        rest = parts[1] if len(parts) > 1 else ""
        ops = []; cur = ""; depth = 0
        for ch in rest:
            if ch == "[": depth += 1
            if ch == "]": depth -= 1
            if ch == "," and depth == 0: ops.append(cur.strip()); cur = ""
            else: cur += ch
        if cur.strip(): ops.append(cur.strip())
        mods = ""
        if ops:
            last = ops[-1].split(None, 1)
            ops[-1] = last[0]
            mods = last[1] if len(last) > 1 else ""
        self.ops = ops; self.mods = mods
        R = [regs_of(o) for o in ops]
        self.states = 1
        if op == "s_nop":
            self.kind = "nop"; self.states = int(ops[0], 0) + 1; return
        if op.startswith("v_mfma") or op.startswith("v_smfmac"):
            self.kind = "mfma"
            self.passes = 8 if "32x32" in op else 4
            if "4x4x4" in op: self.passes = 2
            self.w = R[0]; self.ra = R[1] | R[2]
            if op.startswith("v_smfmac"):
                self.rc = R[0]; self.ra |= R[3]
            else: self.rc = R[3]
            self.r = self.ra | self.rc
            return
        if op.startswith("v_"):
            self.kind = "valu"
            self.trans = op.startswith(TRANS)
            self.dpp = "_dpp" in op or "row_" in mods or "quad_perm" in mods
            self.perm = op.startswith("v_permlane")
            self.rdlane = op.startswith("v_readlane") or op.startswith("v_readfirstlane")
            self.dot = op.startswith("v_dot")
            if op == "v_nop": return
            self.w = set(R[0])
            srcs = R[1:]
            if re.match(r"v_(add|sub|subrev|addc|subb|subbrev)_co", op) or op.startswith("v_div_scale") or op.startswith("v_mad_u64"):
                self.w |= R[1]; srcs = R[2:]
            for s in srcs: self.r |= s
            if op.startswith(("v_fmac", "v_dot2c", "v_pk_fmac", "v_writelane")) or self.dpp or "UNUSED_PRESERVE" in mods or op.startswith(("v_fma_mixlo", "v_fma_mixhi")): self.r |= R[0]
            if self.perm and "swap" in op:
                self.w |= R[1]; self.r |= R[0]
            if op.startswith("v_cmpx"): self.w.add(("exec", 0))
            return
        if op.startswith(("buffer_", "global_", "flat_", "scratch_")):
            self.kind = "vmem"
            self.lds = " lds" in (" " + mods) or "load_lds" in op
            self.store = "store" in op or "atomic" in op
            self.wide = op.endswith(("x3", "x4")) and "store" in op
            if op.startswith(("buffer_wbl2", "buffer_inv")): return
            if self.lds:
                for s in R: self.r |= s
                self.r.add(("m0", 0))
            elif self.store:
                for s in R: self.r |= s
                self.data = R[0] if op.startswith("buffer_") else R[1]
                if "atomic" in op and "sc0" in mods: self.w = set(R[0])
            else:
                self.w = set(R[0])
                for s in R[1:]: self.r |= s
                if "d16" in op: self.r |= R[0]
            return
        if op.startswith("ds_"):
            self.kind = "ds"
            if op.startswith(("ds_read", "ds_bpermute", "ds_permute", "ds_swizzle")) or "rtn" in op:
                self.w = set(R[0])
                for s in R[1:]: self.r |= s
            else:
                for s in R: self.r |= s
            return
        if op.startswith("s_"):
            self.kind = "salu"
            if op in ("s_branch",) or op.startswith("s_cbranch"):
                self.kind = "branch"; self.target = ops[0]; return
            if op == "s_endpgm": self.kind = "end"; return
            if op.startswith(("s_waitcnt", "s_barrier", "s_setprio", "s_sleep")): return
            if op.startswith("s_cmp") or op.startswith("s_bitcmp"):
                for s in R: self.r |= s
                return
            self.w = set(R[0]) if R else set()
            for s in R[1:]: self.r |= s
            if "saveexec" in op: self.w.add(("exec", 0))
            return
        raise ValueError("cannot parse: " + text)

def isvec(x): return x[0] in ("v", "a")
def issc(x): return x[0] in ("s", "vcc")

def need(P, C):
    n = 0
    if P.kind == "valu":
        wv = {x for x in P.w if isvec(x)}; ws = {x for x in P.w if issc(x)}
        if C.kind == "mfma" and wv & C.r: n = max(n, 3 if P.dot else 2)
        if C.kind == "mfma" and ("exec", 0) in P.w: n = max(n, 4)
        if C.kind == "valu":
            if P.trans and not C.trans and wv & C.r: n = max(n, 1)
            if (C.perm or C.dpp) and wv & C.r: n = max(n, 2)
            if C.rdlane and wv & C.r: n = max(n, 1)
            if ws & C.r: n = max(n, 4 if (C.rdlane or C.op.startswith(("v_writelane", "v_div_fmas"))) else 2)
            if ("vcc", 0) in ws and C.op.startswith(("v_cndmask", "v_addc", "v_subb", "v_div_fmas")): n = max(n, 2)
            if P.dot and wv & (C.r | C.w):
                same_c = C.op == P.op and len(C.ops) >= 3 and not (wv & (regs_of(C.ops[1]) | regs_of(C.ops[2])))
                if not same_c: n = max(n, 3)
            if ("exec", 0) in P.w: n = max(n, 5)
            if ("sdwa" in P.op and "dst_sel" in P.mods or "op_sel:" in P.mods and not P.op.startswith("v_pk") or P.op.startswith(("v_fma_mixlo", "v_fma_mixhi"))) and wv & (C.r | C.w): n = max(n, 1)
        if C.kind == "vmem" and ws & C.r: n = max(n, 5)
        if C.kind in ("vmem", "ds") and P.dot and wv & C.r: n = max(n, 3)
    if P.kind == "mfma":
        big = {2: 5, 4: 8, 8: 12, 16: 20}[P.passes]
        if C.kind == "mfma":
            if P.w & C.ra: n = max(n, big)
            if P.w & C.rc:
                if P.w == C.rc and P.passes == C.passes: n = max(n, 2 if P.passes == 2 else 0)
                else: n = max(n, P.passes + 2)
            elif P.w & C.w and P.passes != C.passes: n = max(n, big)
        if C.kind == "valu" and P.w & (C.r | C.w): n = max(n, big)
        if C.kind in ("vmem", "ds") and P.w & (C.r | C.w): n = max(n, big)
        if C.kind == "valu" and P.rc & C.w: n = max(n, P.passes - 1)
        if C.kind in ("vmem", "ds") and P.rc & C.w: n = max(n, P.passes - 1)
    if P.kind == "salu" and ("m0", 0) in P.w and C.kind == "vmem" and C.lds: n = max(n, 1)
    if P.kind == "vmem" and getattr(P, "wide", False):
        if C.kind in ("valu", "mfma") and P.data & C.w: n = max(n, 2)
        elif P.data & C.w: n = max(n, 1)
    return n

def fix_hazards(lines, report=None):
    ins = [Ins(l) for l in lines]
    def cfg():
        labels = {x.label: i for i, x in enumerate(ins) if x.label}
        jumps = {}
        for i, x in enumerate(ins):
            if x.kind == "branch" and x.target in labels: jumps.setdefault(labels[x.target], []).append(i)
        return jumps
    jumps = cfg()
    i = 0
    while i < len(ins):
        C = ins[i]
        if C.kind in ("mfma", "valu", "vmem", "ds"):
            worst = 0
            stack = [(i, 0)]; seen = {}
            while stack:
                j, d = stack.pop()
                preds = []
                if j > 0 and not (ins[j-1].kind == "end" or ins[j-1].op == "s_branch"): preds.append(j - 1)
                preds += jumps.get(j, [])
                for p in preds:
                    P = ins[p]
                    if P.kind == "none": nd = d
                    else:
                        k = need(P, C)
                        if k - d > worst: worst = k - d; why = P
                        nd = d + P.states
                    if nd < 20 and seen.get(p, 99) > nd:
                        seen[p] = nd; stack.append((p, nd))
            if worst > 0:
                if report is not None: report.append((worst, why.text.strip(), C.text.strip()))
                new = []
                w = worst
                while w > 0:
                    k = min(w, 16); new.append(Ins(f"    s_nop {k-1}")); w -= k
                ins[i:i] = new
                i += len(new)
                jumps = cfg()
        i += 1
    return [x.text for x in ins]

class Asm:
    def __init__(self): self.l = []
    def __call__(self, s):
        for line in s.split("\n"):
            t = line.strip()
            if not t: continue
            self.l.append(t if t.endswith(":") or t.startswith(".") else "    " + t)
    def label(self, s): self.l.append(s + ":")

def rr(kind, i, n=1):
    return f"{kind}{i}" if n == 1 else f"{kind}[{i}:{i+n-1}]"
def v(i, n=1): return rr("v", i, n)
def a_(i, n=1): return rr("a", i, n)
def s(i, n=1): return rr("s", i, n)

class Cnt:
    def __init__(self):
        self.q = {"vm": [], "lg": []}
        self.sites = {}
    def issue(self, c, tag): self.q[c].append(tag)
    def wait(self, c, site, tags):
        q = self.q[c]
        last = -1
        for i, t in enumerate(q):
            if t in tags: last = i
        n = len(q) - 1 - last if last >= 0 else None
        if n is not None:
            self.sites[site] = min(self.sites.get(site, 99), n)
    def get(self, c, site):
        mx = 63 if c == "vm" else 15
        return min(self.sites.get(site, mx), mx)
```

```python
import sys, math
from asmlib import *

WS_MODP = 0
WS_H1 = 1 << 20
WS_Q = 5 << 20
WS_KV = 9 << 20
WS_O = 17 << 20
WS_X2 = 21 << 20
WS_H2 = 25 << 20
WS_ACT = 29 << 20
KS = 2
CHECK = {"x2": "row"}
P_X, P_WQKV, P_WO, P_BX, P_WG, P_WU, P_WD, P_C, P_WMOD, P_OUT, P_DBG, P_WS = [8 * i for i in range(12)]
LOG2E = 1.4426950408889634

import struct
def f2u(x): return struct.unpack("<I", struct.pack("<f", x))[0]

class Kernel:
    def __init__(self, name, grid, block, lds, nv, na=0):
        self.name, self.grid, self.block, self.lds, self.nv, self.na = name, grid, block, lds, nv, na
        self.a = Asm()
    def text(self, report=None):
        body = fix_hazards(self.a.l, report)
        return (f".text\n.globl {self.name}\n.p2align 8\n.type {self.name},@function\n{self.name}:\n" + "\n".join(body) + "\n")
    def desc(self):
        acc = (self.nv + 3) // 4 * 4
        nfv = acc + self.na if self.na else self.nv
        return f""".p2align 6
.amdhsa_kernel {self.name}
  .amdhsa_next_free_vgpr {nfv}
  .amdhsa_next_free_sgpr 96
  .amdhsa_accum_offset {acc}
  .amdhsa_group_segment_fixed_size 0
  .amdhsa_kernarg_size 96
  .amdhsa_user_sgpr_count 2
  .amdhsa_user_sgpr_kernarg_segment_ptr 1
  .amdhsa_system_sgpr_workgroup_id_x 1
  .amdhsa_float_denorm_mode_32 3
  .amdhsa_float_denorm_mode_16_64 3
.end_amdhsa_kernel
"""

def load_ptrs(a, pairs):
    for sreg, off in pairs: a(f"s_load_dwordx2 {s(sreg,2)}, s[0:1], {off}")
def srd(a, d, p, off, size):
    if off:
        a(f"s_add_u32 s{d}, s{p}, {off}\ns_addc_u32 s{d+1}, s{p+1}, 0")
    else:
        a(f"s_mov_b32 s{d}, s{p}\ns_mov_b32 s{d+1}, s{p+1}")
    a(f"s_mov_b32 s{d+2}, {size}\ns_mov_b32 s{d+3}, 0x20000")
def guard(k):
    k.a(f"s_cmp_ge_u32 s2, {k.grid}\ns_cbranch_scc1 {k.name}_end")
def finish(k):
    k.a(f"{k.name}_end:\ns_endpgm")
def unpack(a, dst, src, n):
    for i in range(n):
        a(f"v_lshlrev_b32 v{dst+2*i}, 16, v{src+i}\nv_and_b32 v{dst+2*i+1}, 0xffff0000, v{src+i}")

def k_mod():
    k = Kernel("mod_kernel", 96 * KS, 256, 8192, 128); a = k.a
    rows = 1024 // KS; nl = rows // 32
    assert nl == 16
    guard(k)
    load_ptrs(a, [(40, P_C), (42, P_WMOD), (44, P_WS)])
    a(f"""
    s_and_b32 s24, s2, {KS-1}
    s_lshr_b32 s25, s2, {KS.bit_length()-1}
    v_lshrrev_b32 v1, 3, v0
    v_and_b32 v2, 7, v0
    s_mul_i32 s26, s24, {rows}
    v_lshl_add_u32 v3, v1, 4, s26
    v_lshlrev_b32 v4, 1, v3
    s_mov_b32 s27, 12288
    v_mul_lo_u32 v5, v3, s27
    v_lshl_add_u32 v5, v2, 4, v5
    s_lshl_b32 s28, s25, 7
    s_waitcnt lgkmcnt(0)""")
    srd(a, 4, 40, 0, 2048); srd(a, 8, 42, 0, 1024 * 12288); srd(a, 12, 44, WS_MODP, KS * 6144 * 4)
    a("buffer_load_dwordx4 v[8:11], v4, s[4:7], 0 offen\nbuffer_load_dwordx4 v[12:15], v4, s[4:7], 0 offen offset:16")
    for i in range(nl):
        a(f"buffer_load_dwordx4 {v(64+4*i,4)}, v5, s[8:11], s28 offen nt\ns_add_u32 s28, s28, 12288")
    a(f"s_waitcnt vmcnt({nl})")
    unpack(a, 16, 8, 8)
    for i in range(16): a(f"v_mul_f32 v{32+i}, {hex(f2u(-LOG2E))}, v{16+i}")
    for i in range(16): a(f"v_exp_f32 v{32+i}, v{32+i}")
    for i in range(16): a(f"v_add_f32 v{32+i}, 1.0, v{32+i}")
    for i in range(16): a(f"v_rcp_f32 v{32+i}, v{32+i}")
    for i in range(16): a(f"v_mul_f32 v{16+i}, v{16+i}, v{32+i}")
    for i in range(8): a(f"v_cvt_pk_bf16_f32 v{8+i}, v{16+2*i}, v{17+2*i}")
    unpack(a, 16, 8, 8)
    for i in range(8): a(f"v_mov_b32 v{32+i}, 0")
    for i in range(nl):
        a(f"s_waitcnt vmcnt({nl-1-i})")
        unpack(a, 40, 64 + 4 * i, 4)
        for j in range(8): a(f"v_fmac_f32 v{32+j}, v{16+i}, v{40+j}")
    a("""
    v_lshlrev_b32 v6, 5, v0
    ds_write_b128 v6, v[32:35]
    ds_write_b128 v6, v[36:39] offset:16
    s_waitcnt lgkmcnt(0)
    s_barrier
    v_cmp_gt_u32 vcc, 64, v0
    s_and_saveexec_b64 s[30:31], vcc
    s_cbranch_execz mod_kernel_end
    v_lshlrev_b32 v6, 2, v0""")
    for i in range(32): a(f"ds_read_b32 v{64+i}, v6 offset:{256*i}")
    a("s_waitcnt lgkmcnt(0)")
    for w in (16, 8, 4, 2, 1):
        for i in range(w): a(f"v_add_f32 v{64+i}, v{64+i}, v{64+w+i}")
    a(f"""
    s_mul_i32 s26, s24, {6144*4}
    s_lshl_b32 s27, s25, 8
    s_add_u32 s26, s26, s27
    buffer_store_dword v64, v6, s[12:15], s26 offen""")
    finish(k)
    return k

def red32(a, x, t):
    for m in ("quad_perm:[1,0,3,2]", "quad_perm:[2,3,0,1]", "row_half_mirror", "row_mirror"):
        a(f"v_add_f32_dpp v{x}, v{x}, v{x} {m} row_mask:0xf bank_mask:0xf")
    a(f"v_mov_b32 v{t}, v{x}\nv_permlane16_swap_b32 v{x}, v{t}\nv_add_f32 v{x}, v{x}, v{t}")

def k_ln(name, src_ptr, src_off, dst_off, shift_idx, scale_idx):
    k = Kernel(name, 256, 256, 8192, 128); a = k.a
    guard(k)
    load_ptrs(a, [(40, src_ptr), (44, P_WS)])
    a(f"""
    v_lshrrev_b32 v1, 5, v0
    v_and_b32 v2, 31, v0               ; chunk
    s_lshl_b32 s24, s2, 3
    v_add_u32 v3, s24, v1              ; row
    v_lshlrev_b32 v4, 11, v3
    v_lshl_add_u32 v4, v2, 4, v4
    v_lshlrev_b32 v5, 4, v0            ; tid*16
    s_waitcnt lgkmcnt(0)""")
    srd(a, 4, 40, src_off, 2048 * 2048); srd(a, 8, 44, WS_MODP, KS * 6144 * 4); srd(a, 12, 44, dst_off, 2048 * 2048)
    for p in range(KS):
        a(f"s_mov_b32 s25, {p*6144*4 + scale_idx*4096}\nbuffer_load_dwordx4 {v(96+8*p,4)}, v5, s[8:11], s25 offen")
        a(f"s_mov_b32 s25, {p*6144*4 + shift_idx*4096}\nbuffer_load_dwordx4 {v(100+8*p,4)}, v5, s[8:11], s25 offen")
    for i in range(4): a(f"buffer_load_dwordx4 {v(8+4*i,4)}, v4, s[4:7], 0 offen offset:{512*i}")
    a("s_waitcnt vmcnt(4)")
    for p in range(1, KS):
        for j in range(8): a(f"v_add_f32 v{96+j}, v{96+j}, v{96+8*p+j}")
    for j in range(4): a(f"v_cvt_pk_bf16_f32 v{112+j}, v{96+2*j}, v{97+2*j}")
    unpack(a, 96, 112, 4)
    for j in range(4): a(f"v_add_f32 v{96+j}, 1.0, v{96+j}")
    for j in range(2): a(f"v_cvt_pk_bf16_f32 v{112+j}, v{96+2*j}, v{97+2*j}")
    unpack(a, 96, 112, 2)
    a("ds_write_b128 v5, v[96:99]\nds_write_b128 v5, v[100:103] offset:4096")
    a("s_waitcnt vmcnt(0)")
    unpack(a, 32, 8, 16)
    a("v_add_f32 v6, v32, v33")
    for i in range(2, 32): a(f"v_add_f32 v6, v6, v{32+i}")
    red32(a, 6, 7)
    a(f"v_mul_f32 v6, {hex(f2u(1/1024))}, v6")
    for i in range(32): a(f"v_sub_f32 v{32+i}, v{32+i}, v6")
    a("v_mul_f32 v6, v32, v32")
    for i in range(1, 32): a(f"v_fmac_f32 v6, v{32+i}, v{32+i}")
    red32(a, 6, 7)
    a(f"""
    v_mov_b32 v7, {hex(f2u(1e-5))}
    v_fmac_f32 v7, {hex(f2u(1/1024))}, v6
    v_rsq_f32 v6, v7
    v_lshlrev_b32 v24, 5, v2
    s_waitcnt lgkmcnt(0)
    s_barrier""")
    a(f"""
    v_lshrrev_b32 v25, 1, v2
    v_lshlrev_b32 v25, 16, v25
    v_lshrrev_b32 v26, 5, v3
    v_lshl_add_u32 v25, v26, 10, v25
    v_and_b32 v26, 31, v3
    v_lshl_add_u32 v25, v26, 4, v25
    v_and_b32 v26, 1, v2
    v_lshl_add_u32 v25, v26, 9, v25""")
    for i in range(32): a(f"v_mul_f32 v{32+i}, v{32+i}, v6")
    for i in range(4):
        a(f"ds_read_b128 v[64:67], v24 offset:{1024*i}\nds_read_b128 v[68:71], v24 offset:{1024*i+16}")
        a(f"ds_read_b128 v[72:75], v24 offset:{4096+1024*i}\nds_read_b128 v[76:79], v24 offset:{4096+1024*i+16}")
        a("s_waitcnt lgkmcnt(0)")
        for j in range(8): a(f"v_fma_f32 v{32+8*i+j}, v{32+8*i+j}, v{64+j}, v{72+j}")
        for j in range(4): a(f"v_cvt_pk_bf16_f32 v{8+4*i+j}, v{32+8*i+2*j}, v{33+8*i+2*j}")
        a(f"s_mov_b32 s25, {16*65536*i}\nbuffer_store_dwordx4 {v(8+4*i,4)}, v25, s[12:15], s25 offen")
    finish(k)
    return k

def tile_map(a, TM, TN, xm, xn):
    tm_per, tn_per = TM // xm, TN // xn
    assert tm_per & (tm_per - 1) == 0
    a(f"""
    s_and_b32 s32, s2, 7
    s_lshr_b32 s33, s2, 3
    s_lshr_b32 s34, s32, {xn.bit_length()-1}
    s_and_b32 s35, s32, {xn-1}
    s_and_b32 s24, s33, {tm_per-1}
    s_lshr_b32 s25, s33, {tm_per.bit_length()-1}
    s_mul_i32 s34, s34, {tm_per}
    s_add_u32 s24, s24, s34
    s_mul_i32 s35, s35, {tn_per}
    s_add_u32 s25, s25, s35
    v_lshrrev_b32 v2, 6, v0
    v_and_b32 v1, 63, v0
    v_readfirstlane_b32 s26, v2""")

def k_gemm(name, K, MB, NB, DA, R, U, btype, a_off, korder, colperm, orient, TM, TN, xm, xn,
           ptrs, bsetup, pre_epi, epilogue, big=False, ldb=None, ntemp=24):
    S = K // 16; NST = K // 64
    assert NST % U == 0 and (4 * U) % DA == 0
    if btype == "panel":
        NP = NB // 2; STAGE = NP * 8192; ND = 2 * NP
    else:
        UPOFF = 16 * (64 * 14 + 8); STAGE = 2 * UPOFF; ND = 7
    VA, VRE0, VRO0, VRE, VRO, VB = 3, 4, 5, 6, 7, 8
    nfix = VB + ND
    if big:
        ACC = 256 - 16 * NB * MB; fk = "a"; BF = 0; AR = 4 * NB; na = AR + 4 * MB * DA; nv = 256
        TMP = nfix; assert TMP + 12 <= ACC
    else:
        TMP = (nfix + 3) // 4 * 4
        ACC = TMP + ntemp; ACC = (ACC + 3) // 4 * 4
        fk = "v"; BF = ACC + 16 * NB * MB; AR = BF + 4 * NB; nv = AR + 4 * MB * DA; na = 0
    k = Kernel(name, TM * TN, 256, STAGE * R, nv, na); a = k.a
    k.ACC, k.TMP, k.MB, k.NB, k.BF, k.AR = ACC, TMP, MB, NB, BF, AR
    acc = lambda j, tb: ACC + 16 * (j * MB + tb)
    k.acc = acc
    guard(k)
    load_ptrs(a, ptrs)
    tile_map(a, TM, TN, xm, xn)
    T = TMP
    a(f"""
    v_lshlrev_b32 v{VA}, 4, v1
    v_lshrrev_b32 v{T}, 5, v1
    v_bfe_u32 v{T+1}, v1, 4, 1
    v_bfe_u32 v{T+2}, v1, 2, 2
    v_and_b32 v{T+3}, 3, v1""")
    if colperm:
        a(f"v_lshrrev_b32 v{T+4}, 1, v{T+3}\nv_and_b32 v{T+3}, 1, v{T+3}\nv_lshl_add_u32 v{T+3}, v{T+3}, 1, v{T+4}")
    a(f"v_lshl_add_u32 v{T+4}, v{T}, {2 if korder=='split' else 3}, v{T+2}")
    rd_rows = 8 if korder == "split" else 4
    if btype == "panel":
        a(f"""
        v_lshlrev_b32 v{T+4}, 7, v{T+4}
        v_lshl_add_u32 v{T+4}, v{T+1}, 5, v{T+4}
        v_lshl_add_u32 v{T+4}, v{T+3}, 3, v{T+4}
        v_lshrrev_b32 v{T+5}, 1, v{T+2}
        v_lshlrev_b32 v{T+5}, 6, v{T+5}
        v_add_u32 v{VRE0}, v{T+4}, v{T+5}
        v_sub_u32 v{VRO0}, v{T+4}, v{T+5}
        v_add_u32 v{VRO0}, 64, v{VRO0}""")
        def rd(j, sub, r_): return (VRE if j % 2 == 0 else VRO), (j // 2) * 8192 + 128 * (16 * sub + rd_rows * r_)
        a(f"""
        v_lshrrev_b32 v{T}, 3, v1
        v_and_b32 v{T+1}, 7, v1
        v_bfe_u32 v{T+2}, v1, 4, 1
        v_lshlrev_b32 v{T+2}, 2, v{T+2}
        v_xor_b32 v{T+1}, v{T+1}, v{T+2}
        s_lshl_b32 s32, s26, 4
        v_add_u32 v{T}, s32, v{T}
        s_mov_b32 s33, {ldb}
        v_mul_lo_u32 v{T}, v{T}, s33
        v_lshl_add_u32 v{T}, v{T+1}, 4, v{T}
        s_lshl_b32 s32, s25, 7
        v_add_u32 v{T}, s32, v{T}""")
        dma_lds = []
        for p in range(NP):
            for g in range(2):
                a(f"v_add_u32 v{VB+2*p+g}, {p*2048 + g*8*ldb}, v{T}")
                dma_lds.append(p * 8192 + g * 1024)
        a("s_lshl_b32 s36, s26, 11")
    else:
        a(f"""
        v_mul_u32_u24 v{T+4}, 224, v{T+4}
        v_lshl_add_u32 v{T+4}, v{T+3}, 3, v{T+4}
        v_mul_u32_u24 v{T+5}, {UPOFF}, v{T+1}
        v_add_u32 v{VRE0}, v{T+4}, v{T+5}""")
        def rd(j, sub, r_): return VRE, 32 * j + 224 * (16 * sub + rd_rows * r_)
        a(f"""
        s_and_b32 s32, s26, 1
        s_mul_i32 s33, s32, {32*ldb}
        s_mul_i32 s34, s25, 224
        s_add_u32 s33, s33, s34
        s_mov_b32 s34, {(1<<32)//14 + 1}
        s_mov_b32 s35, {ldb}""")
        dma_lds = []
        for i in range(7):
            a(f"""
            v_add_u32 v{T}, {64*i}, v1
            v_mul_hi_u32 v{T+1}, v{T}, s34
            v_mul_u32_u24 v{T+2}, 14, v{T+1}
            v_sub_u32 v{T+2}, v{T}, v{T+2}
            v_mul_lo_u32 v{T+1}, v{T+1}, s35
            v_lshl_add_u32 v{T+1}, v{T+2}, 4, v{T+1}
            v_add_u32 v{VB+i}, s33, v{T+1}""")
            dma_lds.append(1024 * i)
        a(f"""
        s_mul_i32 s36, s32, 7168
        s_lshr_b32 s33, s26, 1
        s_mul_i32 s33, s33, {UPOFF}
        s_add_u32 s36, s36, s33""")
    a(f"""
    s_lshl_b32 s27, s24, 2
    s_add_u32 s27, s27, s26
    s_mul_i32 s37, s27, {MB}
    s_lshl_b32 s27, s37, 10
    s_mov_b32 s28, 0
    s_mov_b32 s29, s36
    s_add_u32 s38, s36, {R*STAGE}
    s_mov_b32 s31, {(R-1)*STAGE}
    s_waitcnt lgkmcnt(0)""")
    srd(a, 4, 44, a_off, S * 65536)
    bsetup(k)

    cnt = Cnt()
    def substep(t, emit, site):
        def E(x):
            if emit: emit(x)
        def W(c, nm, tags):
            cnt.wait(c, (site, nm), tags)
            if emit:
                n = cnt.get(c, (site, nm))
                E(f"s_waitcnt {'vmcnt' if c=='vm' else 'lgkmcnt'}({n})")
        sub = t % 4
        fill = []
        ta = t - 1 + DA
        if ta >= 0:
            for tb in range(MB):
                fill.append((f"buffer_load_dwordx4 {rr(fk, AR+4*(MB*(ta%DA)+tb), 4)}, v{VA}, s[4:7], s27 offen" + (f" offset:{1024*tb}" if tb else ""), ("A", ta)))
            fill.append(("s_add_u32 s27, s27, 0x10000", None))
        wpos = (sub + 1) % 4; tgt = (t + 1) // 4 - 2 + R
        dfill = []
        if tgt >= 0:
            for i in range(ND):
                if i * 4 // ND == wpos:
                    dfill.append((f"s_add_u32 m0, s29, {dma_lds[i]}", None))
                    dfill.append((f"buffer_load_dwordx4 v{VB+i}, s[8:11], s28 offen lds", ("B", tgt)))
            if wpos == 3:
                dfill.append((f"s_add_u32 s28, s28, {64*ldb}", None))
                dfill.append((f"s_add_u32 s29, s29, {STAGE}", None))
                dfill.append((f"s_cmp_eq_u32 s29, s38\ns_cselect_b32 s29, s36, s29", None))
        fill += dfill
        def F(n):
            for _ in range(n):
                if not fill: return
                x, tag = fill.pop(0)
                E(x)
                if tag: cnt.issue("vm", tag)
        def barrier():
            W("vm", "bar", {("B", (t + 1) // 4)})
            E("s_barrier")
            E(f"s_add_u32 s31, s31, {STAGE}\ns_cmp_eq_u32 s31, {R*STAGE}\ns_cselect_b32 s31, 0, s31\nv_add_u32 v{VRE}, s31, v{VRE0}")
            if btype == "panel": E(f"v_add_u32 v{VRO}, s31, v{VRO0}")
        def reads(j):
            for r_ in range(2):
                base, off = rd(j, (sub + 1) % 4, r_)
                E(f"ds_read_b64_tr_b16 {rr(fk, BF+4*j+2*r_, 2)}, v{base} offset:{off}")
                cnt.issue("lg", ("F", t + 1, j))
        if t < -1:
            F(99); return
        if t == -1:
            F(MB + 1)
            barrier()
            for j in range(NB): reads(j)
            F(99); return
        nslots = NB * MB
        n0 = len(fill)
        W("vm", "A", {("A", t)})
        slot = 0
        for j in range(NB):
            W("lg", f"F{j}", {("F", t, j)})
            for tb in range(MB):
                af = rr(fk, AR + 4 * (MB * (t % DA) + tb), 4); bf = rr(fk, BF + 4 * j, 4); c = v(acc(j, tb), 16)
                x, y = (bf, af) if orient[j] == "tok" else (af, bf)
                E(f"v_mfma_f32_32x32x16_bf16 {c}, {x}, {y}, {c}")
                slot += 1
                if tb == MB - 1:
                    if j == 0 and sub == 3: barrier()
                    reads(j)
                if not (sub == 3 and j == 0 and tb < MB - 1):
                    want = (n0 * slot + nslots - 1) // nslots - (n0 - len(fill))
                    F(max(0, want))
        F(99)

    t0 = min(1 - DA, 4 * (2 - R) - 1)
    npre = pre_epi(k, None)
    for i in range(npre): cnt.issue("vm", ("P", i))
    for t in range(t0, 0): substep(t, None, ("pro", t))
    for t in range(S): substep(t, None, t % (4 * U))
    cnt.q = {"vm": [], "lg": []}
    pre_epi(k, a)
    for t in range(t0, -1): substep(t, a, ("pro", t))
    for i in range(16 * NB * MB): a(f"v_mov_b32 v{ACC+i}, 0")
    substep(-1, a, ("pro", -1))
    a(f"s_mov_b32 s30, {NST//U}")
    a(f".p2align 6\n{name}_loop:")
    for t in range(4 * U): substep(t, a, t)
    a(f"s_sub_u32 s30, s30, 1\ns_cmp_lg_u32 s30, 0\ns_cbranch_scc1 {name}_loop")
    epilogue(k)
    finish(k)
    return k

def no_pre(k, a): return 0

def k_qkv():
    def bsetup(k):
        srd(k.a, 8, 40, 0, 1024 * 6144)
        srd(k.a, 12, 44, WS_Q, 4 << 20); srd(k.a, 16, 44, WS_KV, 8 << 20)
    def epi(k):
        a = k.a; T = k.TMP
        qs = LOG2E / math.sqrt(32)
        a(f"""
        s_lshl_b32 s32, s25, 7
        s_add_u32 s32, s32, s37
        s_lshl_b32 s33, s32, 11          ; Q offset
        s_lshl_b32 s34, s32, 12
        s_add_u32 s35, s33, {64*2048}
        s_add_u32 s39, s34, {64*4096}""")
        for j in range(6):
            c = k.acc(j, 0)
            if j < 2:
                for i in range(16): a(f"v_mul_f32 v{c+i}, {hex(f2u(qs))}, v{c+i}")
            for i in range(8): a(f"v_cvt_pk_bf16_f32 v{c+i}, v{c+2*i}, v{c+2*i+1}")
            for g in range(2):
                if j < 2: a(f"buffer_store_dwordx4 {v(c+4*g,4)}, v3, s[12:15], s{33 if j==0 else 35} offen offset:{1024*g}")
                else: a(f"buffer_store_dwordx4 {v(c+4*g,4)}, v3, s[16:19], s{34 if j%2==0 else 39} offen offset:{(2048 if j>=4 else 0)+1024*g}")
    return k_gemm("qkv_kernel", 1024, 1, 6, 8, 5, 2, "panel", WS_H1, "contig", False, ["tok"]*4 + ["feat"]*2, 16, 16, 2, 4,
                  [(40, P_WQKV), (44, P_WS)], bsetup, no_pre, epi, ldb=6144)

def k_proj(name, K, a_off, korder, wptr, res_ptr, res_off, out_ptr, out_off, gidx, DA=16, R=6, U=4):
    def bsetup(k):
        srd(k.a, 8, 40, 0, K * 2048)
        srd(k.a, 12, 42, res_off, 4 << 20); srd(k.a, 16, 46, out_off, 4 << 20); srd(k.a, 20, 44, WS_MODP, KS * 6144 * 4)
    def pre(k, a):
        T = k.TMP
        if a:
            a(f"""
            v_and_b32 v{T}, 31, v1
            s_lshl_b32 s32, s37, 5
            v_add_u32 v{T}, s32, v{T}
            v_lshlrev_b32 v{T}, 11, v{T}
            v_lshrrev_b32 v{T+1}, 5, v1
            v_lshl_add_u32 v{T}, v{T+1}, 4, v{T}
            s_lshl_b32 s32, s25, 7
            v_add_u32 v{T}, s32, v{T}
            v_lshlrev_b32 v{T+1}, 5, v{T+1}
            s_lshl_b32 s32, s25, 8
            v_add_u32 v{T+1}, s32, v{T+1}""")
            for q in range(4): a(f"buffer_load_dwordx4 {v(T+4+4*q,4)}, v{T}, s[12:15], 0 offen offset:{32*q}")
            for p in range(KS):
                a(f"s_mov_b32 s32, {p*6144*4 + gidx*4096}")
                for q in range(4):
                    for hh in range(2):
                        a(f"buffer_load_dwordx4 {v(T+20+32*p+8*q+4*hh,4)}, v{T+1}, s[20:23], s32 offen offset:{64*q+16*hh}")
        return 4 + 8 * KS
    def epi(k):
        a = k.a; T = k.TMP; G = T + 20; X = T + 20 + 32
        a("s_waitcnt vmcnt(0)")
        for p in range(1, KS):
            for i in range(32): a(f"v_add_f32 v{G+i}, v{G+i}, v{G+32*p+i}")
        for i in range(16): a(f"v_cvt_pk_bf16_f32 v{X+i}, v{G+2*i}, v{G+2*i+1}")
        unpack(a, G, X, 16)
        unpack(a, X, T + 4, 16)
        for q in range(4):
            c = k.acc(q // 2, 0) + 8 * (q % 2)
            for i in range(8): a(f"v_fmac_f32 v{X+8*q+i}, v{G+8*q+i}, v{c+i}")
            for i in range(4): a(f"v_cvt_pk_bf16_f32 v{T+4+4*q+i}, v{X+8*q+2*i}, v{X+8*q+2*i+1}")
            a(f"buffer_store_dwordx4 {v(T+4+4*q,4)}, v{T}, s[16:19], 0 offen offset:{32*q}")
    return k_gemm(name, K, 1, 2, DA, R, U, "panel", a_off, korder, True, ["tok"]*2, 16, 16, 4, 2,
                  [(40, wptr), (42, res_ptr), (44, P_WS), (46, out_ptr)], bsetup, pre, epi, ldb=2048, ntemp=20 + 32 * max(KS, 2))

def k_gu():
    def bsetup(k):
        k.a("s_cmp_ge_u32 s26, 2\ns_cselect_b32 s40, s42, s40\ns_cselect_b32 s41, s43, s41")
        srd(k.a, 8, 40, 0, 1024 * 7168)
        srd(k.a, 12, 44, WS_ACT, 224 * 65536)
    def epi(k):
        a = k.a; T = k.TMP
        c0 = -2 * math.sqrt(2 / math.pi) * LOG2E; c1 = c0 * 0.044715
        a(f"""
        s_mul_i32 s32, s25, {7*65536}
        s_lshl_b32 s33, s37, 10
        s_add_u32 s32, s32, s33
        v_mov_b32 v{T+8}, {hex(f2u(c0))}""")
        for j in range(7):
            for tb in range(2):
                c = k.acc(j, tb)
                for i in range(8): a(f"v_mul_f32 v{T+i}, v{c+i}, v{c+i}")
                for i in range(8): a(f"v_fmamk_f32 v{T+i}, v{T+i}, {hex(f2u(c1))}, v{T+8}")
                for i in range(8): a(f"v_mul_f32 v{T+i}, v{T+i}, v{c+i}")
                for i in range(8): a(f"v_exp_f32 v{T+i}, v{T+i}")
                for i in range(8): a(f"v_mul_f32 v{c+i}, v{c+i}, v{c+8+i}")
                for i in range(8): a(f"v_add_f32 v{T+i}, 1.0, v{T+i}")
                for i in range(8): a(f"v_rcp_f32 v{T+i}, v{T+i}")
                for i in range(8): a(f"v_mul_f32 v{c+i}, v{c+i}, v{T+i}")
                for i in range(4): a(f"v_cvt_pk_bf16_f32 v{c+8+i}, v{c+2*i}, v{c+2*i+1}")
                a(f"buffer_store_dwordx4 {v(c+8,4)}, v3, s[12:15], s32 offen offset:{1024*tb}")
            a("s_add_u32 s32, s32, 0x10000")
    return k_gemm("gu_kernel", 1024, 2, 7, 8, 4, 2, "gu", WS_H2, "contig", False, ["tok"]*7, 8, 32, 2, 4,
                  [(40, P_WG), (42, P_WU), (44, P_WS)], bsetup, no_pre, epi, big=True, ldb=7168)

def k_attn():
    R = 4; ST = 16384
    k = Kernel("attn_kernel", 256, 512, R * ST, 128); a = k.a
    Q0, Q1, ONES, NEG, SA, SB, O, L, P0, P1, K0, K1, V0, V1, T = 4, 8, 12, 16, 32, 48, 64, 80, 84, 88, 92, 96, 100, 104, 108
    guard(k)
    load_ptrs(a, [(44, P_WS)])
    a(f"""
    s_and_b32 s32, s2, 7
    s_lshr_b32 s33, s2, 3
    s_and_b32 s34, s32, 3
    s_lshl_b32 s34, s34, 3
    s_and_b32 s35, s33, 7
    s_add_u32 s24, s34, s35            ; head
    s_lshr_b32 s34, s32, 2
    s_lshl_b32 s34, s34, 2
    s_lshr_b32 s35, s33, 3
    s_add_u32 s25, s34, s35
    v_lshrrev_b32 v3, 6, v0
    v_and_b32 v1, 63, v0
    v_readfirstlane_b32 s26, v3
    v_lshlrev_b32 v2, 4, v1
    s_lshl_b32 s27, s25, 3
    s_add_u32 s27, s27, s26
    s_lshl_b32 s28, s24, 18
    s_lshl_b32 s29, s26, 11            ; wave * 2048
    s_lshl_b32 s32, s24, 6
    s_add_u32 s32, s32, s27
    s_lshl_b32 s32, s32, 11            ; Q offset
    s_waitcnt lgkmcnt(0)""")
    srd(a, 4, 44, WS_Q, 4 << 20)
    a(f"s_add_u32 s8, s44, s28\ns_addc_u32 s9, s45, 0\ns_add_u32 s8, s8, {WS_KV}\ns_addc_u32 s9, s9, 0\ns_mov_b32 s10, 0x40000\ns_mov_b32 s11, 0x20000")
    srd(a, 12, 44, WS_O, 4 << 20)
    a("s_mov_b32 s30, s29")
    def dma(slot):
        return [f"s_add_u32 m0, s29, {slot*ST}", "buffer_load_dwordx4 v2, s[8:11], s30 offen lds",
                "buffer_load_dwordx4 v2, s[8:11], s30 offen offset:1024 lds", f"s_add_u32 s30, s30, {ST}"]
    for x in dma(0): a(x)
    a(f"buffer_load_dwordx4 {v(Q0,4)}, v2, s[4:7], s32 offen\nbuffer_load_dwordx4 {v(Q1,4)}, v2, s[4:7], s32 offen offset:1024")
    for st in range(1, R - 1):
        for x in dma(st): a(x)
    a(f"""
    v_lshrrev_b32 v{T}, 4, v1
    v_lshrrev_b32 v{T+1}, 2, v1
    v_xor_b32 v{T}, v{T}, v{T+1}
    v_and_b32 v{T}, 1, v{T}
    v_cmp_eq_u32 vcc, 0, v{T}
    v_mov_b32 v{T+1}, 0x3f803f80
    v_cndmask_b32 v{ONES}, 0, v{T+1}, vcc""")
    for i in range(1, 4): a(f"v_mov_b32 v{ONES+i}, v{ONES}")
    for i in range(16): a(f"v_mov_b32 v{O+i}, 0")
    for i in range(4): a(f"v_mov_b32 v{L+i}, 0\nv_mov_b32 v{P1+i}, 0\nv_mov_b32 v{V1+i}, 0")
    a(f"""
    s_waitcnt vmcnt({2*(R-2)})
    s_barrier
    ds_read_b128 {v(K0,4)}, v2
    ds_read_b128 {v(K1,4)}, v2 offset:1024
    ds_read_b128 {v(V0,4)}, v2 offset:2048
    s_waitcnt lgkmcnt(1)
    v_mfma_f32_32x32x16_bf16 {v(SA,16)}, {v(K0,4)}, {v(Q0,4)}, 0
    v_mfma_f32_32x32x16_bf16 {v(SA,16)}, {v(K1,4)}, {v(Q1,4)}, {v(SA,16)}
    ds_read_b128 {v(K0,4)}, v2 offset:4096
    ds_read_b128 {v(K1,4)}, v2 offset:5120""")
    def rowmax(S, m):
        a(f"v_max3_f32 v{m}, v{S}, v{S+1}, v{m}")
        for i in range(2, 16, 2): a(f"v_max3_f32 v{m}, v{S+i}, v{S+i+1}, v{m}")
    def negbcast(m):
        a(f"v_mov_b32 v{m+1}, v{m}\nv_permlane32_swap_b32 v{m}, v{m+1}\nv_max_f32 v{m}, v{m}, v{m+1}")
        for i in range(16): a(f"v_sub_f32 v{NEG+i}, 0, v{m}")
    a(f"v_mov_b32 v{T}, v{SA}")
    rowmax(SA, T); negbcast(T)
    for i in range(16): a(f"v_sub_f32 v{SA+i}, v{SA+i}, v{T}")
    cnt = Cnt()
    def it(j, E, site):
        def W(c, nm, tags):
            cnt.wait(c, (site, nm), tags)
            if E: E(f"s_waitcnt {'vmcnt' if c=='vm' else 'lgkmcnt'}({cnt.get(c,(site,nm))})")
        def X(x):
            if E: E(x)
        def RD(reg, blk, piece):
            X(f"ds_read_b128 {v(reg,4)}, v2 offset:{(blk % (4*R))*4096 + piece*1024}")
            cnt.issue("lg", (piece, blk))
        S, Sn = (SA, SB) if j % 2 == 0 else (SB, SA)
        e = lambda i: X(f"v_exp_f32 v{S+i}, v{S+i}")
        c = lambda i: X(f"v_cvt_pk_bf16_f32 v{P0+i}, v{S+2*i}, v{S+2*i+1}")
        W("lg", "k0", {(0, j + 1)})
        X(f"v_mfma_f32_32x32x16_bf16 {v(Sn,16)}, {v(K0,4)}, {v(Q0,4)}, {v(NEG,16)}")
        e(0); e(1); e(2)
        W("lg", "v1", {(3, j - 1), (1, j + 1)})
        X(f"v_mfma_f32_32x32x16_bf16 {v(O,16)}, {v(V1,4)}, {v(P1,4)}, {v(O,16)}")
        RD(V1, j, 3)
        e(3); c(0); e(4); c(1)
        X(f"v_mfma_f32_32x32x16_bf16 {v(Sn,16)}, {v(K1,4)}, {v(Q1,4)}, {v(Sn,16)}")
        if j % 4 == 2:
            W("vm", "bar", {("B", j // 4 + 1)})
            X("s_barrier")
        RD(K0, j + 2, 0); RD(K1, j + 2, 1)
        e(5); e(6); e(7)
        X(f"v_mfma_f32_16x16x32_bf16 {v(L,4)}, {v(ONES,4)}, {v(P1,4)}, {v(L,4)}")
        if j % 4 == 2:
            d = dma((j // 4 - 1) % R)
            X(d[0])
        c(2); c(3); e(8); e(9)
        W("lg", "v0", {(2, j)})
        X(f"v_mfma_f32_32x32x16_bf16 {v(O,16)}, {v(V0,4)}, {v(P0,4)}, {v(O,16)}")
        RD(V0, j + 1, 2)
        if j % 4 == 2:
            X(d[1]); X(d[2]); X(d[3])
            cnt.issue("vm", ("B", j // 4 - 1 + R)); cnt.issue("vm", ("B", j // 4 - 1 + R))
        e(10); e(11); c(4); e(12)
        X(f"v_mfma_f32_16x16x32_bf16 {v(L,4)}, {v(ONES,4)}, {v(P0,4)}, {v(L,4)}")
        c(5); e(13); e(14); e(15); c(6); c(7)
    def preload():
        cnt.q = {"vm": [], "lg": []}
        for st in range(R - 1):
            cnt.issue("vm", ("B", st)); cnt.issue("vm", ("B", st))
        for tg in [(2, 0), (0, 1), (1, 1)]: cnt.issue("lg", tg)
    preload()
    for j in range(64): it(j, None, j % 16)
    preload()
    a("s_mov_b32 s31, 4\n.p2align 6\nattn_loop:")
    for j in range(16): it(j, a, j)
    a(f"""
    s_sub_u32 s31, s31, 1
    s_cmp_lg_u32 s31, 0
    s_cbranch_scc1 attn_loop
    s_waitcnt lgkmcnt(0)
    v_mfma_f32_32x32x16_bf16 {v(O,16)}, {v(V1,4)}, {v(P1,4)}, {v(O,16)}
    v_mfma_f32_16x16x32_bf16 {v(L,4)}, {v(ONES,4)}, {v(P1,4)}, {v(L,4)}
    v_mov_b32 v{T}, 0""")
    for i in range(16): a(f"v_fmac_f32 v{T}, 0, v{O+i}")
    a(f"""
    v_add_f32 v{T}, v{T}, v{L}
    v_cmp_ngt_f32 vcc, {hex(f2u(2.0**40))}, v{T}
    s_cbranch_vccnz attn_slow
attn_fin:
    v_rcp_f32 v{T}, v{L}
    s_lshl_b32 s32, s24, 17
    s_lshl_b32 s33, s27, 10
    s_add_u32 s32, s32, s33
    s_add_u32 s33, s32, 0x10000""")
    for i in range(16): a(f"v_mul_f32 v{O+i}, v{O+i}, v{T}")
    for i in range(8): a(f"v_cvt_pk_bf16_f32 v{O+i}, v{O+2*i}, v{O+2*i+1}")
    a(f"buffer_store_dwordx4 {v(O,4)}, v2, s[12:15], s32 offen\nbuffer_store_dwordx4 {v(O+4,4)}, v2, s[12:15], s33 offen")
    a("s_endpgm")
    a(f"""
attn_slow:
    v_mov_b32 v{T}, 0xff800000
    s_mov_b32 s30, 0
attn_slow1:
    buffer_load_dwordx4 {v(K0,4)}, v2, s[8:11], s30 offen
    buffer_load_dwordx4 {v(K1,4)}, v2, s[8:11], s30 offen offset:1024
    s_waitcnt vmcnt(0)
    v_mfma_f32_32x32x16_bf16 {v(SA,16)}, {v(K0,4)}, {v(Q0,4)}, 0
    v_mfma_f32_32x32x16_bf16 {v(SA,16)}, {v(K1,4)}, {v(Q1,4)}, {v(SA,16)}""")
    rowmax(SA, T)
    a("s_add_u32 s30, s30, 4096\ns_cmp_lt_u32 s30, 0x40000\ns_cbranch_scc1 attn_slow1")
    negbcast(T)
    for i in range(16): a(f"v_mov_b32 v{O+i}, 0")
    for i in range(4): a(f"v_mov_b32 v{L+i}, 0")
    a(f"""
    s_mov_b32 s30, 0
attn_slow2:
    buffer_load_dwordx4 {v(K0,4)}, v2, s[8:11], s30 offen
    buffer_load_dwordx4 {v(K1,4)}, v2, s[8:11], s30 offen offset:1024
    buffer_load_dwordx4 {v(V0,4)}, v2, s[8:11], s30 offen offset:2048
    buffer_load_dwordx4 {v(V1,4)}, v2, s[8:11], s30 offen offset:3072
    s_waitcnt vmcnt(0)
    v_mfma_f32_32x32x16_bf16 {v(SA,16)}, {v(K0,4)}, {v(Q0,4)}, {v(NEG,16)}
    v_mfma_f32_32x32x16_bf16 {v(SA,16)}, {v(K1,4)}, {v(Q1,4)}, {v(SA,16)}""")
    for i in range(16): a(f"v_exp_f32 v{SA+i}, v{SA+i}")
    for i in range(8): a(f"v_cvt_pk_bf16_f32 v{P0+i}, v{SA+2*i}, v{SA+2*i+1}")
    a(f"""
    v_mfma_f32_32x32x16_bf16 {v(O,16)}, {v(V0,4)}, {v(P0,4)}, {v(O,16)}
    v_mfma_f32_32x32x16_bf16 {v(O,16)}, {v(V1,4)}, {v(P1,4)}, {v(O,16)}
    v_mfma_f32_16x16x32_bf16 {v(L,4)}, {v(ONES,4)}, {v(P0,4)}, {v(L,4)}
    v_mfma_f32_16x16x32_bf16 {v(L,4)}, {v(ONES,4)}, {v(P1,4)}, {v(L,4)}
    s_add_u32 s30, s30, 4096
    s_cmp_lt_u32 s30, 0x40000
    s_cbranch_scc1 attn_slow2
    s_branch attn_fin""")
    finish(k)
    return k

def build(kernels, path, verbose=False):
    hdr = open("adaLN_cond__mha_block__geglu_ffn__prompt.s.ref").read().split("; Override launch")[0]
    out = hdr
    for k in kernels:
        out += f"; @launch kernel={k.name} grid=({k.grid},1,1) block=({k.block},1,1) lds={k.lds}\n"
    out += '.amdgcn_target "amdgcn-amd-amdhsa--gfx950"\n'
    for k in kernels:
        rep = []
        out += k.text(rep)
        if verbose:
            print(k.name, "vgpr", k.nv, "agpr", k.na, "lds", k.lds, "nops inserted:", len(rep))
            for r in rep: print("   ", r)
    out += '.section .rodata,"a"\n'
    for k in kernels: out += k.desc()
    open(path, "w").write(out)

def all_kernels():
    return [k_mod(),
            k_ln("ln1_kernel", P_X, 0, WS_H1, 0, 1),
            k_qkv(), k_attn(),
            k_proj("out_kernel", 1024, WS_O, "split", P_WO, P_X, 0, P_WS, WS_X2, 2),
            k_ln("ln2_kernel", P_WS, WS_X2, WS_H2, 3, 4),
            k_gu(),
            k_proj("down_kernel", 3584, WS_ACT, "split", P_WD, P_WS, WS_X2, P_OUT, 0, 5)]

if __name__ == "__main__":
    build(all_kernels(), sys.argv[1] if len(sys.argv) > 1 else "adaLN_cond__mha_block__geglu_ffn__prompt.s", verbose=True)
```

```python
import sys, math, struct
from asmlib import *

SLAB = 75776
WS_MODP = 0
WS_UV = 64 << 10
WS_STAT = 256 << 10
WS_WQ3 = 1 << 20
WS_WO3 = 5 << 19
WS_WD3 = 3 << 20
WS_H1 = 5 << 20
WS_Q = 10 << 20
WS_KV = 14 << 20
WS_O = 22 << 20
WS_X2 = 27 << 20
WS_Y2 = 32 << 20
WS_ACT = 37 << 20
WS_PROF = 56 << 20
KS = 2
P_X, P_WQKV, P_WO, P_BX, P_WG, P_WU, P_WD, P_C, P_WMOD, P_OUT, P_DBG, P_WS = [8 * i for i in range(12)]
LOG2E = 1.4426950408889634
PROF = False
EXP = {}
KID = {"qkv_kernel": 0, "out_kernel": 1, "gu_kernel": 2, "down_kernel": 3, "attn_kernel": 4}
def f2u(x): return struct.unpack("<I", struct.pack("<f", x))[0]
def fx(x): return hex(f2u(x))

class Kernel:
    def __init__(self, name, grid, block, lds, nv, na=0):
        self.name, self.grid, self.block, self.lds, self.nv, self.na = name, grid, block, lds, nv, na
        self.a = Asm()
    def text(self, report=None):
        body = fix_hazards(self.a.l, report)
        return (f".text\n.globl {self.name}\n.p2align 8\n.type {self.name},@function\n{self.name}:\n" + "\n".join(body) + "\n")
    def desc(self):
        acc = (self.nv + 3) // 4 * 4
        nfv = acc + self.na if self.na else self.nv
        return f""".p2align 6
.amdhsa_kernel {self.name}
  .amdhsa_next_free_vgpr {nfv}
  .amdhsa_next_free_sgpr 96
  .amdhsa_accum_offset {acc}
  .amdhsa_group_segment_fixed_size 0
  .amdhsa_kernarg_size 96
  .amdhsa_user_sgpr_count 2
  .amdhsa_user_sgpr_kernarg_segment_ptr 1
  .amdhsa_system_sgpr_workgroup_id_x 1
  .amdhsa_float_denorm_mode_32 3
  .amdhsa_float_denorm_mode_16_64 3
.end_amdhsa_kernel
"""

def stamp(k, i):
    if PROF: k.a(f"s_memtime {s(64+2*i,2)}\ns_memrealtime {s(74+2*i,2)}\ns_waitcnt lgkmcnt(0)")
def prof_out(k, n, kid, wave_s):
    if not PROF: return
    a = k.a
    a(f"s_waitcnt vmcnt(0)\ns_memtime {s(64+2*n,2)}\ns_memrealtime {s(74+2*n,2)}\ns_load_dwordx2 s[84:85], s[0:1], {P_WS}\ns_waitcnt lgkmcnt(0)")
    a(f"s_add_u32 s84, s84, {WS_PROF + kid*(1<<18)}\ns_addc_u32 s85, s85, 0\ns_mov_b32 s86, {1<<18}\ns_mov_b32 s87, 0x20000")
    a(f"s_lshl_b32 s88, s2, 3\ns_add_u32 s88, s88, s{wave_s}\ns_lshl_b32 s88, s88, 6\nv_mov_b32 v1, 0")
    for i in range(10):
        a(f"v_mov_b32 v0, s{64+2*i}\nbuffer_store_dword v0, v1, s[84:87], s88 offen offset:{4*i}")
def load_ptrs(a, pairs):
    for sreg, off in pairs: a(f"s_load_dwordx2 {s(sreg,2)}, s[0:1], {off}")
def srd(a, d, p, off, size):
    if off: a(f"s_add_u32 s{d}, s{p}, {off}\ns_addc_u32 s{d+1}, s{p+1}, 0")
    else: a(f"s_mov_b32 s{d}, s{p}\ns_mov_b32 s{d+1}, s{p+1}")
    a(f"s_mov_b32 s{d+2}, {size}\ns_mov_b32 s{d+3}, 0x20000")
def guard(k): k.a(f"s_cmp_ge_u32 s2, {k.grid}\ns_cbranch_scc1 {k.name}_end")
def finish(k): k.a(f"{k.name}_end:\ns_endpgm")
def unpack(a, dst, src, n):
    for i in range(n):
        a(f"v_lshlrev_b32 v{dst+2*i}, 16, v{src+i}\nv_and_b32 v{dst+2*i+1}, 0xffff0000, v{src+i}")
def rbf(a, x):
    a(f"v_cvt_pk_bf16_f32 v{x}, v{x}, v{x}\nv_and_b32 v{x}, 0xffff0000, v{x}")
def phys_line(a, dst, i, t):
    a(f"""
    v_mul_u32_u24 v{t}, 9363, v{i}
    v_lshrrev_b32 v{t}, 16, v{t}
    v_add_u32 v{dst}, v{i}, v{t}
    v_mul_u32_u24 v{t}, 7, v{t}
    v_sub_u32 v{t}, v{i}, v{t}
    v_add_u32 v{t}, 5, v{t}
    v_lshrrev_b32 v{t}, 3, v{t}
    v_add_lshl_u32 v{dst}, v{dst}, v{t}, 7""")
def frag_off(a, dst, srb, lane, t):
    a(f"v_lshrrev_b32 v{t}, 3, v{lane}\nv_lshl_add_u32 v{t}, s{srb}, 3, v{t}")
    phys_line(a, dst, t, t + 1)
    a(f"v_and_b32 v{t}, 7, v{lane}\nv_lshl_add_u32 v{dst}, v{t}, 4, v{dst}")
def tr_lane(a, T, lane, korder, colperm):
    a(f"""
    v_lshrrev_b32 v{T}, 5, v{lane}
    v_bfe_u32 v{T+1}, v{lane}, 4, 1
    v_bfe_u32 v{T+2}, v{lane}, 2, 2
    v_and_b32 v{T+3}, 3, v{lane}""")
    if colperm:
        a(f"v_lshrrev_b32 v{T+4}, 1, v{T+3}\nv_and_b32 v{T+3}, 1, v{T+3}\nv_lshl_add_u32 v{T+3}, v{T+3}, 1, v{T+4}")
    a(f"v_lshl_add_u32 v{T+4}, v{T}, {2 if korder=='split' else 3}, v{T+2}")
def panel_rd(a, T, e, o):
    a(f"""
    v_lshlrev_b32 v{T+4}, 7, v{T+4}
    v_lshl_add_u32 v{T+4}, v{T+1}, 5, v{T+4}
    v_lshl_add_u32 v{T+4}, v{T+3}, 3, v{T+4}
    v_lshrrev_b32 v{T+5}, 1, v{T+2}
    v_lshlrev_b32 v{T+5}, 6, v{T+5}
    v_add_u32 v{e}, v{T+4}, v{T+5}
    v_sub_u32 v{o}, v{T+4}, v{T+5}
    v_add_u32 v{o}, 64, v{o}""")
def panel_src(a, T, lane):
    a(f"""
    v_lshrrev_b32 v{T}, 3, v{lane}
    v_and_b32 v{T+1}, 7, v{lane}
    v_bfe_u32 v{T+2}, v{lane}, 4, 1
    v_lshlrev_b32 v{T+2}, 2, v{T+2}
    v_xor_b32 v{T+1}, v{T+1}, v{T+2}""")

SK_LDS = 65536 + 2048
def skinny(k, tag, mode, nt):
    a = k.a; NV = 1 if mode == "silu" else 2
    a(f"""
    s_lshl_b32 s55, s26, 6
    s_add_u32 s56, s52, s55""")
    if mode == "silu":
        a("v_add_lshl_u32 v4, v1, s56, 1\nbuffer_load_ushort v8, v4, s[12:15], 0 offen")
    else:
        a("v_add_lshl_u32 v4, v1, s56, 2")
        for i, (p, idx) in enumerate([(0, 4), (1, 4), (0, 3), (1, 3)]):
            a(f"s_mov_b32 s57, {p*6144*4 + idx*4096}\nbuffer_load_dword v{8+i}, v4, s[12:15], s57 offen")
    panel_src(a, 5, 1)
    a(f"""
    v_add_u32 v5, s55, v5
    v_mul_lo_u32 v5, v5, s51
    v_lshl_add_u32 v5, v6, 4, v5
    s_lshl_b32 s57, s26, 13
    s_lshl_b32 s58, s51, 3""")
    for g in range(8):
        a(f"s_add_u32 m0, s57, {1024*g}\ns_nop 0\nbuffer_load_dwordx4 v5, s[8:11], s50 offen{nt} lds\ns_add_u32 s50, s50, s58")
    tr_lane(a, 12, 1, "contig", False)
    panel_rd(a, 12, 18, 19)
    a(f"""
    v_add_u32 v18, s57, v18
    v_add_u32 v19, s57, v19
    s_lshl_b32 s58, s26, 8
    s_add_u32 s58, s58, 0x10000
    v_lshl_add_u32 v6, v1, 1, s58
    v_and_b32 v7, 31, v1
    v_lshrrev_b32 v12, 5, v1
    v_lshlrev_b32 v12, 4, v12
    v_lshl_add_u32 v12, v7, 7, v12
    v_add_u32 v12, s58, v12
    s_waitcnt vmcnt(8)""")
    if mode == "silu":
        a(f"""
        v_lshlrev_b32 v8, 16, v8
        v_mul_f32 v9, {fx(-LOG2E)}, v8
        v_exp_f32 v9, v9
        v_add_f32 v9, 1.0, v9
        v_rcp_f32 v9, v9
        v_mul_f32 v8, v8, v9
        v_cvt_pk_bf16_f32 v8, v8, v8
        ds_write_b16 v6, v8""")
    else:
        a("v_add_f32 v8, v8, v9\nv_add_f32 v10, v10, v11")
        rbf(a, 8)
        a("v_add_f32 v8, 1.0, v8\nv_cvt_pk_bf16_f32 v8, v8, v8\nv_cvt_pk_bf16_f32 v10, v10, v10\nds_write_b16 v6, v8\nds_write_b16 v6, v10 offset:128")
    for i in range(16): a(f"v_mov_b32 v{20+i}, 0")
    a(f"""
    v_cmp_gt_u32 vcc, {NV}, v7
    s_waitcnt lgkmcnt(0)
    s_and_saveexec_b64 s[60:61], vcc""")
    for sub in range(4): a(f"ds_read_b128 {v(20+4*sub,4)}, v12 offset:{32*sub}")
    a("s_mov_b64 exec, s[60:61]\ns_waitcnt vmcnt(0)")
    for sub in range(4):
        for j in range(2):
            for r_ in range(2):
                a(f"ds_read_b64_tr_b16 {v(36+8*sub+4*j+2*r_,2)}, v{18+j} offset:{128*(16*sub+4*r_)}")
    for sub in range(4):
        a(f"s_waitcnt lgkmcnt({12-4*sub})")
        for j in range(2):
            c = v(68 + 16 * j, 16)
            a(f"v_mfma_f32_32x32x16_bf16 {c}, {v(20+4*sub,4)}, {v(36+8*sub+4*j,4)}, {c if sub else 0}")
    a(f"""
    v_lshl_add_u32 v6, v1, 2, s57
    v_cmp_gt_u32 vcc, 32, v1
    s_and_saveexec_b64 s[60:61], vcc""")
    for j in range(2):
        for q in range(NV): a(f"ds_write_b32 v6, v{68+16*j+q} offset:{256*q+128*j}")
    a(f"""
    s_mov_b64 exec, s[60:61]
    s_waitcnt lgkmcnt(0)
    s_barrier
    s_cmp_ge_u32 s26, {NV}
    s_cbranch_scc1 {k.name}_end
    s_lshl_b32 s57, s26, 8
    v_lshl_add_u32 v6, v1, 2, s57""")
    for w in range(8): a(f"ds_read_b32 v{8+w}, v6 offset:{8192*w}")
    a(f"s_mul_i32 s57, s26, s54\ns_add_u32 s53, s53, s57\nv_lshlrev_b32 v6, 2, v1\ns_waitcnt lgkmcnt(0)")
    for w in (4, 2, 1):
        for i in range(w): a(f"v_add_f32 v{8+i}, v{8+i}, v{8+w+i}")
    a("buffer_store_dword v8, v6, s[16:19], s53 offen\ns_endpgm")

def prefetch(a, gid, ps, nbytes, start, vt, srd_s=20):
    srd(a, srd_s, ps, 0, nbytes)
    a(f"""
    v_subrev_u32 v{vt}, {start}, v{gid}
    v_cmp_gt_u32 vcc, {nbytes//128}, v{vt}
    v_lshlrev_b32 v{vt}, 7, v{vt}
    v_mov_b32 v{vt+1}, 0x80000000
    v_cndmask_b32 v{vt}, v{vt+1}, v{vt}, vcc
    buffer_load_dword v{vt+1}, v{vt}, {s(srd_s,4)}, 0 offen""")

def strip_copy_issue(a, gid, ps, K, ldb, npan, start, vt, srd_s=20):
    srd(a, srd_s, ps, 0, K * ldb)
    n = 2 * npan
    a(f"""
    v_subrev_u32 v{vt}, {start}, v{gid}
    v_cmp_gt_u32 vcc, {K*n*8}, v{vt}
    v_and_b32 v{vt+1}, 7, v{vt}
    v_lshrrev_b32 v{vt}, 3, v{vt}""")
    if npan == 1:
        a(f"v_lshrrev_b32 v{vt+2}, 1, v{vt}\nv_and_b32 v{vt+3}, 1, v{vt}\nv_lshlrev_b32 v{vt+3}, 10, v{vt+3}")
    else:
        a(f"""
        v_mul_u32_u24 v{vt+2}, 10923, v{vt}
        v_lshrrev_b32 v{vt+2}, 16, v{vt+2}
        v_mul_u32_u24 v{vt+3}, 6, v{vt+2}
        v_sub_u32 v{vt+3}, v{vt}, v{vt+3}
        v_lshlrev_b32 v{vt+4}, 11, v{vt+3}
        v_add_u32 v{vt+3}, 5, v{vt+3}
        v_lshrrev_b32 v{vt+3}, 3, v{vt+3}
        v_mul_u32_u24 v{vt+3}, {6144-1024}, v{vt+3}
        v_sub_u32 v{vt+3}, v{vt+4}, v{vt+3}""")
    a(f"""
    v_mul_u32_u24 v{vt+2}, {ldb}, v{vt+2}
    v_add3_u32 v{vt+2}, v{vt+2}, v{vt+3}, 0
    v_lshl_add_u32 v{vt+2}, v{vt+1}, 4, v{vt+2}
    v_add_u32 v{vt+2}, 384, v{vt+2}
    v_mov_b32 v{vt+3}, 0x80000000
    v_cndmask_b32 v{vt+2}, v{vt+3}, v{vt+2}, vcc
    v_lshlrev_b32 v{vt}, 8, v{vt}
    v_lshl_add_u32 v{vt}, v{vt+1}, 4, v{vt}
    v_cndmask_b32 v{vt}, v{vt+3}, v{vt}, vcc
    buffer_load_dwordx4 {v(vt+4,4)}, v{vt+2}, {s(srd_s,4)}, 0 offen""")
def strip_copy_store(a, ws_s, off, size, vt, srd_s=20):
    srd(a, srd_s, ws_s, off, size)
    a(f"buffer_store_dwordx4 {v(vt+4,4)}, v{vt}, {s(srd_s,4)}, 0 offen sc1")

def wave_lane(a):
    a("v_lshrrev_b32 v2, 6, v0\nv_and_b32 v1, 63, v0\nv_readfirstlane_b32 s26, v2")

def red32(a, x, t):
    for m in ("quad_perm:[1,0,3,2]", "quad_perm:[2,3,0,1]", "row_half_mirror", "row_mirror"):
        a(f"v_add_f32_dpp v{x}, v{x}, v{x} {m} row_mask:0xf bank_mask:0xf")
    a(f"v_mov_b32 v{t}, v{x}\nv_permlane16_swap_b32 v{x}, v{t}\nv_add_f32 v{x}, v{x}, v{t}")

def k_pre():
    k = Kernel("pre_kernel", 256, 512, SK_LDS, 104); a = k.a
    guard(k)
    load_ptrs(a, [(40, P_C), (42, P_WMOD), (44, P_WS), (46, P_WQKV), (48, P_X)])
    wave_lane(a)
    a(f"""
    s_cmp_ge_u32 s2, 128
    s_cbranch_scc1 pre_side
    s_and_b32 s32, s2, 1
    s_lshr_b32 s33, s2, 1
    s_cmp_ge_u32 s33, 32
    s_cselect_b32 s34, 16, 0
    s_add_u32 s33, s33, s34
    s_lshl_b32 s52, s32, 9
    s_mov_b32 s51, 12288
    s_mul_i32 s50, s52, s51
    s_lshl_b32 s34, s33, 7
    s_add_u32 s50, s50, s34
    s_mul_i32 s53, s32, {6144*4}
    s_lshl_b32 s34, s33, 8
    s_add_u32 s53, s53, s34
    s_mov_b32 s54, 0
    s_waitcnt lgkmcnt(0)""")
    srd(a, 8, 42, 0, 1024 * 12288); srd(a, 12, 40, 0, 2048); srd(a, 16, 44, WS_MODP, KS * 6144 * 4)
    skinny(k, "m", "silu", " nt")
    a("""
pre_side:
    s_sub_u32 s32, s2, 128
    s_lshl_b32 s32, s32, 9
    v_add_u32 v3, s32, v0
    s_waitcnt lgkmcnt(0)""")
    strip_copy_issue(a, 3, 46, 1024, 6144, 3, 0, 8)
    prefetch(a, 3, 46, 1024 * 6144, 65536 - 49152, 20)
    prefetch(a, 3, 48, 2048 * 2048, 0, 24)
    a("s_waitcnt vmcnt(2)")
    strip_copy_store(a, 44, WS_WQ3, 1024 * 1536, 8)
    finish(k)
    return k

def k_ln(name, src_ptr, dst_off, shift_idx, scale_idx):
    k = Kernel(name, 256, 256, 8192 + 128 * 144, 128); a = k.a
    guard(k)
    load_ptrs(a, [(40, src_ptr), (44, P_WS)])
    a(f"""
    v_lshrrev_b32 v1, 5, v0
    v_and_b32 v2, 31, v0               ; chunk
    s_lshl_b32 s24, s2, 3
    v_add_u32 v3, s24, v1              ; row
    v_lshlrev_b32 v4, 11, v3
    v_lshl_add_u32 v4, v2, 4, v4
    v_lshlrev_b32 v5, 4, v0            ; tid*16
    s_waitcnt lgkmcnt(0)""")
    srd(a, 4, 40, 0, 2048 * 2048); srd(a, 8, 44, WS_MODP, KS * 6144 * 4); srd(a, 12, 44, dst_off, 64 * SLAB)
    for p in range(KS):
        a(f"s_mov_b32 s25, {p*6144*4 + scale_idx*4096}\nbuffer_load_dwordx4 {v(96+8*p,4)}, v5, s[8:11], s25 offen")
        a(f"s_mov_b32 s25, {p*6144*4 + shift_idx*4096}\nbuffer_load_dwordx4 {v(100+8*p,4)}, v5, s[8:11], s25 offen")
    for i in range(4): a(f"buffer_load_dwordx4 {v(8+4*i,4)}, v4, s[4:7], 0 offen offset:{512*i}")
    a(f"""
    s_lshr_b32 s25, s2, 2
    s_lshl_b32 s25, s25, 3
    s_and_b32 s26, s2, 3
    s_add_u32 s25, s25, s26
    v_bfe_u32 v26, v0, 3, 1
    v_lshl_add_u32 v26, v26, 2, s25""")
    phys_line(a, 25, 26, 27)
    a(f"""
    v_and_b32 v26, 7, v0
    v_lshl_add_u32 v25, v26, 4, v25
    v_lshrrev_b32 v27, 4, v0
    s_mov_b32 s25, {SLAB}
    v_mul_lo_u32 v27, v27, s25
    v_add_u32 v25, v25, v27
    v_lshrrev_b32 v27, 3, v0
    v_mul_u32_u24 v27, 144, v27
    v_lshl_add_u32 v27, v26, 4, v27
    v_mul_u32_u24 v28, 144, v2
    v_lshl_add_u32 v28, v1, 4, v28
    s_waitcnt vmcnt(4)""")
    for p in range(1, KS):
        for j in range(8): a(f"v_add_f32 v{96+j}, v{96+j}, v{96+8*p+j}")
    for j in range(4): a(f"v_cvt_pk_bf16_f32 v{112+j}, v{96+2*j}, v{97+2*j}")
    unpack(a, 96, 112, 4)
    for j in range(4): a(f"v_add_f32 v{96+j}, 1.0, v{96+j}")
    for j in range(2): a(f"v_cvt_pk_bf16_f32 v{112+j}, v{96+2*j}, v{97+2*j}")
    unpack(a, 96, 112, 2)
    a("ds_write_b128 v5, v[96:99]\nds_write_b128 v5, v[100:103] offset:4096")
    a("s_waitcnt vmcnt(0)")
    unpack(a, 32, 8, 16)
    a("v_add_f32 v6, v32, v33\nv_add_f32 v7, v34, v35")
    for i in range(4, 32): a(f"v_add_f32 v{6+i%2}, v{6+i%2}, v{32+i}")
    a("v_add_f32 v6, v6, v7")
    red32(a, 6, 7)
    a(f"v_mul_f32 v6, {fx(1/1024)}, v6")
    for i in range(32): a(f"v_sub_f32 v{32+i}, v{32+i}, v6")
    a("v_mul_f32 v6, v32, v32\nv_mul_f32 v7, v33, v33")
    for i in range(2, 32): a(f"v_fmac_f32 v{6+i%2}, v{32+i}, v{32+i}")
    a("v_add_f32 v6, v6, v7")
    red32(a, 6, 7)
    a(f"""
    v_mov_b32 v7, {fx(1e-5)}
    v_fmac_f32 v7, {fx(1/1024)}, v6
    v_rsq_f32 v6, v7
    v_lshlrev_b32 v24, 5, v2
    s_waitcnt lgkmcnt(0)
    s_barrier""")
    for i in range(4):
        a(f"ds_read_b128 {v(64+16*i,4)}, v24 offset:{1024*i}\nds_read_b128 {v(68+16*i,4)}, v24 offset:{1024*i+16}")
        a(f"ds_read_b128 {v(72+16*i,4)}, v24 offset:{4096+1024*i}\nds_read_b128 {v(76+16*i,4)}, v24 offset:{4096+1024*i+16}")
    for i in range(32): a(f"v_mul_f32 v{32+i}, v{32+i}, v6")
    for i in range(4):
        a(f"s_waitcnt lgkmcnt({12-4*i+i})")
        for j in range(8): a(f"v_fma_f32 v{32+8*i+j}, v{32+8*i+j}, v{64+16*i+j}, v{72+16*i+j}")
        for j in range(4): a(f"v_cvt_pk_bf16_f32 v{8+4*i+j}, v{32+8*i+2*j}, v{33+8*i+2*j}")
        a(f"ds_write_b128 v28, {v(8+4*i,4)} offset:{8192+32*144*i}")
    a("s_waitcnt lgkmcnt(0)\ns_barrier")
    for i in range(4): a(f"ds_read_b128 {v(32+4*i,4)}, v27 offset:{8192+32*144*i}")
    for i in range(4):
        a(f"s_mov_b32 s25, {16*SLAB*i}\ns_waitcnt lgkmcnt({3-i})\nbuffer_store_dwordx4 {v(32+4*i,4)}, v25, s[12:15], s25 offen sc1")
    finish(k)
    return k

def tile_map(a, TM, TN, xm, xn):
    tm_per, tn_per = TM // xm, TN // xn
    assert tm_per & (tm_per - 1) == 0
    a(f"""
    s_and_b32 s32, s2, 7
    s_lshr_b32 s33, s2, 3
    s_lshr_b32 s34, s32, {xn.bit_length()-1}
    s_and_b32 s35, s32, {xn-1}
    s_and_b32 s24, s33, {tm_per-1}
    s_lshr_b32 s25, s33, {tm_per.bit_length()-1}
    s_mul_i32 s34, s34, {tm_per}
    s_add_u32 s24, s24, s34
    s_mul_i32 s35, s35, {tn_per}
    s_add_u32 s25, s25, s35""")
    wave_lane(a)

def k_gemm(name, K, MB, NB, DA, R, U, PEEL, CAP, INIT, btype, a_off, korder, colperm, orient, TM, TN, xm, xn,
           ptrs, setup, epilogue, ldb, alt=None, big=False, ntemp=24, xlds=0, nxa=0, FB=1):
    S = K // 16; NST = K // 64
    assert (NST - PEEL) % U == 0 and (4 * U) % DA == 0 and (4 * PEEL) % DA == 0 and (4 * U) % FB == 0 and (4 * PEEL) % FB == 0
    if btype == "panel":
        NP = NB // 2; STAGE = NP * 8192; ND = 2 * NP
    else:
        UPOFF = 16 * (64 * 14 + 8); STAGE = 2 * UPOFF; ND = 7
    VRE0, VRO0, VRE, VRO, VA = 3, 4, 5, 6, 7
    VB = VA + MB
    nfix = VB + ND
    if big:
        ACC = 256 - 16 * NB * MB; fk = "a"; BF = 0; AR = 4 * NB * FB; XA = AR + 4 * MB * DA; na = XA + nxa; nv = 256
        TMP = (nfix + 1) // 2 * 2; assert TMP + 14 <= ACC
    else:
        TMP = (nfix + 3) // 4 * 4
        ACC = (TMP + ntemp + 3) // 4 * 4
        fk = "v"; BF = ACC + 16 * NB * MB; AR = BF + 4 * NB * FB; nv = AR + 4 * MB * DA; na = 0; XA = None
    k = Kernel(name, TM * TN, 256, STAGE * R + xlds, nv, na); a = k.a
    k.ACC, k.TMP, k.MB, k.NB, k.BF, k.AR, k.VA, k.XL, k.XA = ACC, TMP, MB, NB, BF, AR, VA, STAGE * R, XA
    acc = lambda j, tb: ACC + 16 * (j * MB + tb)
    k.acc = acc
    guard(k)
    stamp(k, 0)
    load_ptrs(a, ptrs)
    tile_map(a, TM, TN, xm, xn)
    T = TMP
    a(f"s_lshl_b32 s37, s24, 2\ns_add_u32 s37, s37, s26\ns_mul_i32 s37, s37, {MB}")
    rd_rows = 8 if korder == "split" else 4
    if btype == "panel":
        off_alt, ldb_alt, pst_alt, sst_alt = alt
        a(f"""
        s_and_b32 s32, s25, 7
        s_lshr_b32 s33, s25, 3
        s_mul_i32 s33, s33, {sst_alt}
        s_lshl_b32 s34, s25, 7
        s_mov_b32 s51, {ldb}
        s_mov_b32 s52, 2048
        s_cmp_eq_u32 s32, {3 if not EXP.get('noalt') else 99}
        s_cselect_b32 s50, s33, s34
        s_cselect_b32 s51, {ldb_alt}, s51
        s_cselect_b32 s52, {pst_alt}, s52
        s_cselect_b32 s53, 1, 0
        s_lshl_b32 s39, s51, 6
        s_lshl_b32 s54, s51, 3""")
        panel_src(a, T, 1)
        a(f"""
        s_lshl_b32 s32, s26, 4
        v_add_u32 v{T}, s32, v{T}
        v_mul_lo_u32 v{T}, v{T}, s51
        v_lshl_add_u32 v{T}, v{T+1}, 4, v{T}
        v_add_u32 v{VB}, s50, v{T}
        v_add_u32 v{VB+1}, s54, v{VB}""")
        for p in range(1, NP):
            a(f"v_add_u32 v{VB+2*p}, s52, v{VB+2*p-2}\nv_add_u32 v{VB+2*p+1}, s52, v{VB+2*p-1}")
        dma_lds = [p * 8192 + g * 1024 for p in range(NP) for g in range(2)]
        a("s_lshl_b32 s36, s26, 11")
    else:
        a(f"""
        s_and_b32 s32, s26, 1
        s_mul_i32 s33, s32, {32*ldb}
        s_mul_i32 s34, s25, 224
        s_add_u32 s33, s33, s34
        s_mov_b32 s39, {64*ldb}""")
        for i in range(7):
            a(f"""
            v_add_u32 v{T}, {64*i}, v1
            v_mul_u32_u24 v{T+1}, 4682, v{T}
            v_lshrrev_b32 v{T+1}, 16, v{T+1}
            v_lshl_add_u32 v{T}, v{T}, 4, s33
            v_mul_u32_u24 v{T+1}, {ldb-224}, v{T+1}
            v_add_u32 v{VB+i}, v{T}, v{T+1}""")
        dma_lds = [1024 * i for i in range(7)]
        a(f"""
        s_mul_i32 s36, s32, 7168
        s_lshr_b32 s33, s26, 1
        s_mul_i32 s33, s33, {UPOFF}
        s_add_u32 s36, s36, s33""")
    for tb in range(MB):
        if tb: a(f"s_add_u32 s32, s37, {tb}")
        frag_off(a, VA + tb, 32 if tb else 37, 1, T)
    a(f"""
    s_mov_b32 s27, 0
    s_mov_b32 s28, 0
    s_mov_b32 s29, s36
    s_add_u32 s38, s36, {R*STAGE}
    s_mov_b32 s31, {(R-1)*STAGE}
    s_waitcnt lgkmcnt(0)""")
    srd(a, 4, 44, a_off, S * SLAB)
    if btype == "panel":
        a(f"""
        s_add_u32 s32, s44, {off_alt}
        s_addc_u32 s33, s45, 0
        s_cmp_eq_u32 s53, 1
        s_cselect_b32 s8, s32, s40
        s_cselect_b32 s9, s33, s41
        s_mul_i32 s10, s51, {K}
        s_mov_b32 s11, 0x20000""")
    else:
        a("s_cmp_ge_u32 s26, 2\ns_cselect_b32 s8, s42, s40\ns_cselect_b32 s9, s43, s41")
        a(f"s_mov_b32 s10, {K*ldb}\ns_mov_b32 s11, 0x20000")

    def late_setup():
        tr_lane(a, T, 1, korder, colperm)
        if btype == "panel": panel_rd(a, T, VRE0, VRO0)
        else:
            a(f"""
            v_mul_u32_u24 v{T+4}, 224, v{T+4}
            v_lshl_add_u32 v{T+4}, v{T+3}, 3, v{T+4}
            v_mul_u32_u24 v{T+5}, {UPOFF}, v{T+1}
            v_add_u32 v{VRE0}, v{T+4}, v{T+5}""")
    if btype == "panel":
        def rd(j, sub, r_): return (VRE if j % 2 == 0 else VRO), (j // 2) * 8192 + 128 * (16 * sub + rd_rows * r_)
    else:
        def rd(j, sub, r_): return VRE, 32 * j + 224 * (16 * sub + rd_rows * r_)

    BOFF = 4 - FB
    def make_ops(extra):
        ops = []
        for ta in range(S + DA + 8):
            for tb in range(MB):
                ins = [f"buffer_load_dwordx4 {rr(fk, AR+4*(MB*(ta%DA)+tb), 4)}, v{VA+tb}, s[4:7], s27 offen"]
                if tb == MB - 1: ins.append(f"s_add_u32 s27, s27, {SLAB}")
                ops.append([ta, ta + 1 - DA, len(ops), ins, ("A", ta)])
        for st in range(NST + R + 2):
            for i in range(ND):
                ins = [f"s_add_u32 m0, s29, {dma_lds[i]}", f"buffer_load_dwordx4 v{VB+i}, s[8:11], s28 offen lds"]
                if i == ND - 1:
                    ins += ["s_add_u32 s28, s28, s39", f"s_add_u32 s29, s29, {STAGE}", "s_cmp_eq_u32 s29, s38\ns_cselect_b32 s29, s36, s29"]
                ops.append([4 * st - FB - 0.5, 4 * (st + 2 - R) - FB + i * 4 // ND, len(ops), ins, ("B", st)])
        for need, ins in extra: ops.append([need, -999, len(ops), ins, ("X",)])
        ops.sort(key=lambda o: (o[0], o[2]))
        return ops

    cnt = Cnt()
    def run(emit):
        def E(x):
            if emit: emit(x)
        extra = setup(k, emit)
        ops = make_ops(extra)
        def take(t, cap):
            got = []
            for o in ops:
                if len(got) >= cap: break
                if o[1] <= t: got.append(o)
            for o in got: ops.remove(o)
            fl = []
            for o in got:
                for x in o[3]: fl.append((x, o[4] if x.startswith("buffer_") else None))
            return fl
        def W(site, c, nm, tags):
            cnt.wait(c, (site, nm), tags)
            E(f"s_waitcnt {'vmcnt' if c=='vm' else 'lgkmcnt'}({cnt.get(c, (site, nm))})")
        def flush(fill, n):
            for _ in range(n):
                if not fill: return
                x, tag = fill.pop(0)
                E(x)
                if tag: cnt.issue("vm", tag)
        def barrier(site, st):
            W(site, "vm", "bar", {("B", st)})
            E("s_barrier")
            E(f"s_add_u32 s31, s31, {STAGE}\ns_cmp_eq_u32 s31, {R*STAGE}\ns_cselect_b32 s31, 0, s31\nv_add_u32 v{VRE}, s31, v{VRE0}")
            if btype == "panel": E(f"v_add_u32 v{VRO}, s31, v{VRO0}")
        def reads(tt, j):
            for r_ in range(2):
                base, off = rd(j, tt % 4, r_)
                E(f"ds_read_b64_tr_b16 {rr(fk, BF+4*(NB*(tt%FB)+j)+2*r_, 2)}, v{base} offset:{off}")
                cnt.issue("lg", ("F", tt, j))
        flush(take(-FB - 1, INIT), 999)
        if emit:
            late_setup()
            if PEEL == 0:
                for i in range(16 * NB * MB): a(f"v_mov_b32 v{ACC+i}, 0")
        barrier("pro", 0)
        for tt in range(FB):
            for j in range(NB): reads(tt, j)
        if PEEL == 0: flush(take(-1, 999), 999)
        if emit: stamp(k, 1)
        for t in range(S):
            peeled = t < 4 * PEEL
            site = ("p", t) if peeled else (t - 4 * PEEL) % (4 * U)
            if t == 4 * PEEL:
                assert not [o for o in ops if o[1] < t], f"{name}: backlog not drained"
                E(f"s_mov_b32 s30, {(NST-PEEL)//U}\n.p2align 6\n{name}_loop:")
            if t == 4 * PEEL + 4 * U:
                E(f"s_sub_u32 s30, s30, 1\ns_cmp_lg_u32 s30, 0\ns_cbranch_scc1 {name}_loop")
                if emit: return
            sub = t % 4
            fill = take(t, CAP if peeled else 999)
            n0 = len(fill); nslots = NB * MB; slot = 0
            W(site, "vm", "A", {("A", t)})
            for j in range(NB):
                W(site, "lg", f"F{j}", {("F", t, j)})
                for tb in range(MB):
                    af = rr(fk, AR + 4 * (MB * (t % DA) + tb), 4); bf = rr(fk, BF + 4 * (NB * (t % FB) + j), 4); c = v(acc(j, tb), 16)
                    x, y = (bf, af) if orient[j] == "tok" else (af, bf)
                    E(f"v_mfma_f32_32x32x16_bf16 {c}, {x}, {y}, {c if (t or PEEL == 0) else 0}")
                    slot += 1
                    if tb == MB - 1:
                        if j == 0 and sub == BOFF: barrier(site, (t + FB) // 4)
                        reads(t + FB, j)
                    if not (sub == BOFF and j == 0 and tb < MB - 1):
                        flush(fill, max(0, (n0 * slot + nslots - 1) // nslots - (n0 - len(fill))))
            flush(fill, 999)
        if (NST - PEEL) == U: E(f"s_sub_u32 s30, s30, 1\ns_cmp_lg_u32 s30, 0\ns_cbranch_scc1 {name}_loop")
    run(None)
    cnt.q = {"vm": [], "lg": []}
    run(a)
    stamp(k, 2)
    epilogue(k)
    stamp(k, 3)
    prof_out(k, 4, KID[name], 26)
    finish(k)
    return k

def k_qkv():
    def setup(k, a): return []
    def epi(k):
        a = k.a; T = k.TMP
        qs = LOG2E / math.sqrt(32)
        srd(a, 12, 44, WS_Q, 4 << 20); srd(a, 16, 44, WS_KV, 8 << 20)
        a(f"""
        v_lshlrev_b32 v{T}, 4, v1
        s_lshl_b32 s32, s25, 7
        s_add_u32 s32, s32, s37
        s_lshl_b32 s33, s32, 11          ; Q offset
        s_lshl_b32 s34, s32, 12
        s_add_u32 s35, s33, {64*2048}
        s_add_u32 s39, s34, {64*4096}""")
        for j in range(6):
            c = k.acc(j, 0)
            if j < 2:
                for i in range(16): a(f"v_mul_f32 v{c+i}, {fx(qs)}, v{c+i}")
            for g in range(2):
                for i in range(4 * g, 4 * g + 4): a(f"v_cvt_pk_bf16_f32 v{c+i}, v{c+2*i}, v{c+2*i+1}")
            for g in range(2):
                if j < 2: a(f"buffer_store_dwordx4 {v(c+4*g,4)}, v{T}, s[12:15], s{33 if j==0 else 35} offen offset:{1024*g} sc1")
                else: a(f"buffer_store_dwordx4 {v(c+4*g,4)}, v{T}, s[16:19], s{34 if j%2==0 else 39} offen offset:{(2048 if j>=4 else 0)+1024*g} sc1")
    return k_gemm("qkv_kernel", 1024, 1, 6, EXP.get("qDA", 8), EXP.get("qR", 4), 2, EXP.get("qPEEL", 4), EXP.get("qCAP", 4), EXP.get("qINIT", 9),
                  "panel", WS_H1, "contig", False, ["tok"]*4 + ["feat"]*2, 16, 16, 2, 4,
                  [(40, P_WQKV), (44, P_WS)], setup, epi, 6144, alt=(WS_WQ3, 1536, 256, 768))

def colvec_ops(k, need, dst, idxs, va):
    ops = []
    first = [f"s_lshl_b32 s32, s25, 8\nv_lshl_add_u32 v{va}, v1, 2, s32"]
    for n, idx in enumerate(idxs):
        for p in range(KS):
            ops.append((need, first + [f"s_mov_b32 s32, {p*6144*4 + idx*4096}", f"buffer_load_dword v{dst+2*n+p}, v{va}, s[20:23], s32 offen"]))
            first = []
    return ops

def k_out():
    def setup(k, a):
        T = k.TMP
        if a:
            srd(a, 12, 42, 0, 4 << 20); srd(a, 20, 44, WS_MODP, KS * 6144 * 4)
        ops = colvec_ops(k, 30, T + 8, [2, 4], T + 6)
        first = [f"""v_lshrrev_b32 v{T+12}, 3, v1
        v_and_b32 v{T+7}, 7, v1
        v_xor_b32 v{T+7}, v{T+7}, v{T+12}
        v_lshlrev_b32 v{T+7}, 4, v{T+7}
        v_lshl_add_u32 v{T+7}, v{T+12}, 11, v{T+7}
        s_lshl_b32 s55, s37, 16
        s_lshl_b32 s32, s25, 7
        s_add_u32 s55, s55, s32
        s_lshl_b32 s56, s26, 12
        s_add_u32 s56, s56, {k.XL}"""]
        for i in range(4):
            ops.append((31, first + [f"s_add_u32 m0, s56, {1024*i}", "s_nop 0", f"buffer_load_dwordx4 v{T+7}, s[12:15], s55 offen lds", "s_add_u32 s55, s55, 0x4000"]))
            first = []
        return ops
    def epi(k):
        a = k.a; T = k.TMP; G = T + 16; C = G + 32; X = C + 32; P = X + 32
        srd(a, 12, 44, WS_X2, 64 * SLAB); srd(a, 16, 44, WS_Y2, 64 * SLAB); srd(a, 20, 44, WS_STAT, 16 * 2048 * 8)
        a(f"""
        v_add_f32 v{T+8}, v{T+8}, v{T+9}
        v_add_f32 v{T+10}, v{T+10}, v{T+11}""")
        rbf(a, T + 8); rbf(a, T + 10)
        a(f"v_add_f32 v{T+10}, 1.0, v{T+10}")
        rbf(a, T + 10)
        a(f"""
        s_lshl_b32 s32, s26, 9
        s_add_u32 s32, s32, {k.XL + 16384}
        v_lshl_add_u32 v{T}, v1, 2, s32
        ds_write_b32 v{T}, v{T+8}
        ds_write_b32 v{T}, v{T+10} offset:256
        v_lshrrev_b32 v{T+1}, 5, v1
        v_lshl_add_u32 v{T}, v{T+1}, 5, s32
        v_and_b32 v{T+2}, 31, v1
        v_and_b32 v{T+3}, 7, v1
        v_xor_b32 v{T+3}, v{T+3}, v{T+1}
        v_lshlrev_b32 v{T+3}, 4, v{T+3}
        v_lshl_add_u32 v{T+3}, v{T+2}, 7, v{T+3}
        v_add_u32 v{T+3}, s56, v{T+3}
        s_waitcnt lgkmcnt(0)""")
        for q in range(4):
            a(f"v_xor_b32 v{T+4}, {32*q}, v{T+3}\nds_read_b128 {v(P+4*q,4)}, v{T+4}")
        for q in range(4):
            for hh in range(2): a(f"ds_read_b128 {v(G+8*q+4*hh,4)}, v{T} offset:{64*q+16*hh}")
        a("s_waitcnt lgkmcnt(8)")
        unpack(a, X, P, 16)
        for q in range(4):
            for hh in range(2): a(f"ds_read_b128 {v(C+8*q+4*hh,4)}, v{T} offset:{256+64*q+16*hh}")
        a(f"s_mul_i32 s33, s25, {4*SLAB}\ns_waitcnt lgkmcnt(8)")
        for q in range(4):
            c = k.acc(q // 2, 0) + 8 * (q % 2)
            for i in range(8): a(f"v_fmac_f32 v{X+8*q+i}, v{G+8*q+i}, v{c+i}")
            for i in range(4): a(f"v_cvt_pk_bf16_f32 v{P+4*q+i}, v{X+8*q+2*i}, v{X+8*q+2*i+1}")
            a(f"s_add_u32 s34, s33, {q*SLAB}\nbuffer_store_dwordx4 {v(P+4*q,4)}, v{k.VA}, s[12:15], s34 offen sc1")
        unpack(a, X, P, 16)
        a("s_waitcnt lgkmcnt(0)")
        for q in range(4):
            for i in range(8): a(f"v_mul_f32 v{C+8*q+i}, v{C+8*q+i}, v{X+8*q+i}")
            for i in range(4): a(f"v_cvt_pk_bf16_f32 v{G+4*q+i}, v{C+8*q+2*i}, v{C+8*q+2*i+1}")
            a(f"s_add_u32 s34, s33, {q*SLAB}\nbuffer_store_dwordx4 {v(G+4*q,4)}, v{k.VA}, s[16:19], s34 offen sc1")
        a(f"v_add_f32 v{T+8}, v{X}, v{X+1}\nv_add_f32 v{T+9}, v{X+2}, v{X+3}")
        for i in range(4, 32): a(f"v_add_f32 v{T+8+i%2}, v{T+8+i%2}, v{X+i}")
        a(f"""
        v_add_f32 v{T+8}, v{T+8}, v{T+9}
        v_mov_b32 v{T+9}, v{T+8}
        v_permlane32_swap_b32 v{T+8}, v{T+9}
        v_add_f32 v{T+8}, v{T+8}, v{T+9}
        v_mul_f32 v{T+10}, {fx(1/64)}, v{T+8}""")
        for i in range(32): a(f"v_sub_f32 v{X+i}, v{X+i}, v{T+10}")
        a(f"v_mul_f32 v{T+9}, v{X}, v{X}\nv_mul_f32 v{T+10}, v{X+1}, v{X+1}")
        for i in range(2, 32): a(f"v_fmac_f32 v{T+9+i%2}, v{X+i}, v{X+i}")
        a(f"""
        v_add_f32 v{T+9}, v{T+9}, v{T+10}
        v_mov_b32 v{T+10}, v{T+9}
        v_permlane32_swap_b32 v{T+9}, v{T+10}
        v_add_f32 v{T+9}, v{T+9}, v{T+10}
        v_lshlrev_b32 v{T+2}, 3, v{T+2}
        s_lshl_b32 s32, s25, 14
        s_lshl_b32 s33, s37, 8
        s_add_u32 s32, s32, s33
        s_mov_b32 exec_hi, 0
        buffer_store_dwordx2 {v(T+8,2)}, v{T+2}, s[20:23], s32 offen sc1
        s_mov_b32 exec_hi, -1""")
    return k_gemm("out_kernel", 1024, 1, 2, 16, 6, 4, 0, 99, 999, "panel", WS_O, "split", True, ["tok"]*2, 16, 16, 4, 2,
                  [(40, P_WO), (42, P_X), (44, P_WS)], setup, epi, 2048, alt=(WS_WO3, 512, 0, 256), ntemp=16 + 96 + 16, xlds=16384 + 2048,
                  FB=EXP.get("pFB", 2))

def k_down():
    def setup(k, a):
        T = k.TMP
        if a:
            srd(a, 12, 44, WS_X2, 64 * SLAB); srd(a, 20, 44, WS_MODP, KS * 6144 * 4)
        ops = colvec_ops(k, 30, T + 8, [5], T + 6)
        first = [f"s_mul_i32 s55, s25, {4*SLAB}"]
        for q in range(4):
            ops.append((31, first + [f"buffer_load_dwordx4 {v(T+16+4*q,4)}, v{k.VA}, s[12:15], s55 offen", f"s_add_u32 s55, s55, {SLAB}"]))
            first = []
        return ops
    def epi(k):
        a = k.a; T = k.TMP; P = T + 16; G = P + 16; X = G + 32
        srd(a, 16, 46, 0, 4 << 20)
        a(f"v_add_f32 v{T+8}, v{T+8}, v{T+9}")
        rbf(a, T + 8)
        a(f"""
        s_lshl_b32 s32, s26, 8
        s_add_u32 s32, s32, {k.XL + 16384}
        v_lshl_add_u32 v{T}, v1, 2, s32
        ds_write_b32 v{T}, v{T+8}
        v_lshrrev_b32 v{T+1}, 5, v1
        v_lshl_add_u32 v{T}, v{T+1}, 5, s32
        s_lshl_b32 s56, s26, 12
        s_add_u32 s56, s56, {k.XL}
        v_and_b32 v{T+2}, 31, v1
        v_and_b32 v{T+3}, 7, v1
        v_xor_b32 v{T+3}, v{T+3}, v{T+1}
        v_lshlrev_b32 v{T+3}, 4, v{T+3}
        v_lshl_add_u32 v{T+3}, v{T+2}, 7, v{T+3}
        v_add_u32 v{T+3}, s56, v{T+3}
        s_waitcnt lgkmcnt(0)""")
        for q in range(4):
            for hh in range(2): a(f"ds_read_b128 {v(G+8*q+4*hh,4)}, v{T} offset:{64*q+16*hh}")
        unpack(a, X, P, 16)
        a(f"""
        v_lshl_add_u32 v{T+5}, v1, 4, s56
        v_lshrrev_b32 v{T+6}, 3, v1
        v_and_b32 v{T+7}, 7, v1
        v_xor_b32 v{T+7}, v{T+7}, v{T+6}
        v_lshlrev_b32 v{T+7}, 4, v{T+7}
        v_lshl_add_u32 v{T+7}, v{T+6}, 11, v{T+7}
        s_lshl_b32 s33, s37, 16
        s_lshl_b32 s32, s25, 7
        s_add_u32 s33, s33, s32
        s_waitcnt lgkmcnt(0)""")
        for q in range(4):
            c = k.acc(q // 2, 0) + 8 * (q % 2)
            for i in range(8): a(f"v_fmac_f32 v{X+8*q+i}, v{G+8*q+i}, v{c+i}")
            for i in range(4): a(f"v_cvt_pk_bf16_f32 v{P+4*q+i}, v{X+8*q+2*i}, v{X+8*q+2*i+1}")
            a(f"v_xor_b32 v{T+4}, {32*q}, v{T+3}\nds_write_b128 v{T+4}, {v(P+4*q,4)}")
        a("s_waitcnt lgkmcnt(0)")
        for i in range(4): a(f"ds_read_b128 {v(G+4*i,4)}, v{T+5} offset:{1024*i}")
        for i in range(4):
            a(f"s_waitcnt lgkmcnt({3-i})\nbuffer_store_dwordx4 {v(G+4*i,4)}, v{T+7}, s[16:19], s33 offen sc1\ns_add_u32 s33, s33, 0x4000")
    return k_gemm("down_kernel", 3584, 1, 2, 16, 6, 4, 0, 99, 999, "panel", WS_ACT, "split", True, ["tok"]*2, 16, 16, 4, 2,
                  [(40, P_WD), (44, P_WS), (46, P_OUT)], setup, epi, 2048, alt=(WS_WD3, 512, 0, 256), ntemp=16 + 16 + 64, xlds=16384 + 1024,
                  FB=EXP.get("pFB", 2))

def k_gu():
    def setup(k, a):
        T = k.TMP; XA = k.XA
        if a:
            srd(a, 16, 44, WS_STAT, 16 * 2048 * 8); srd(a, 20, 44, WS_UV, KS * 2 * 7168 * 4)
        ops = []
        first = [f"""v_and_b32 v{T+6}, 31, v1
        v_lshlrev_b32 v{T+6}, 3, v{T+6}
        v_lshrrev_b32 v{T+7}, 5, v1
        v_lshl_add_u32 v{T+6}, v{T+7}, 17, v{T+6}
        s_lshl_b32 s55, s37, 8"""]
        for i in range(8):
            for tb in range(2):
                ops.append((40, first + [f"buffer_load_dwordx2 {a_(XA+16*tb+2*i,2)}, v{T+6}, s[16:19], s55 offen offset:{256*tb}"] + (["s_add_u32 s55, s55, 0x4000"] if tb else [])))
                first = []
        first = [f"""v_cmp_lt_u32 vcc, 111, v0
        v_mov_b32 v{T+7}, {(3584-112)*4}
        v_cndmask_b32 v{T+7}, 0, v{T+7}, vcc
        v_lshl_add_u32 v{T+7}, v0, 2, v{T+7}
        s_mul_i32 s56, s25, 448"""]
        for i in range(4):
            ops.append((41, first + [f"buffer_load_dword a{XA+32+i}, v{T+7}, s[20:23], s56 offen", f"s_add_u32 s56, s56, {7168*4}"]))
            first = []
        return ops
    def epi(k):
        a = k.a; T = k.TMP; XA = k.XA
        c0 = -2 * math.sqrt(2 / math.pi) * LOG2E; c1 = c0 * 0.044715
        srd(a, 12, 44, WS_ACT, 224 * SLAB)
        for i in range(4): a(f"v_accvgpr_read_b32 v{10+i}, a{XA+32+i}")
        a(f"""
        v_add_f32 v10, v10, v12
        v_add_f32 v11, v11, v13
        v_lshlrev_b32 v2, 2, v0
        ds_write_b32 v2, v10 offset:{k.XL % 65536}
        ds_write_b32 v2, v11 offset:{k.XL % 65536 + 1024}""".replace("v_lshlrev_b32 v2, 2, v0", f"v_lshlrev_b32 v2, 2, v0\nv_add_u32 v2, {k.XL // 65536 * 65536}, v2"))
        for tb, D in ((0, 4), (1, 30)):
            for i in range(16): a(f"v_accvgpr_read_b32 v{10+i}, a{XA+16*tb+i}")
            a("v_add_f32 v26, v10, v12\nv_add_f32 v27, v11, v13")
            for i in range(2, 8): a(f"v_add_f32 v26, v26, v{10+2*i}\nv_add_f32 v27, v27, v{11+2*i}")
            a(f"""
            v_mov_b32 v28, v26
            v_permlane32_swap_b32 v26, v28
            v_add_f32 v26, v26, v28
            v_mul_f32 v28, {fx(1/16)}, v26""")
            for i in range(8): a(f"v_sub_f32 v{10+2*i}, v{10+2*i}, v28")
            a("v_mul_f32 v29, v10, v10")
            for i in range(1, 8): a(f"v_fmac_f32 v29, v{10+2*i}, v{10+2*i}")
            a(f"""
            v_fmac_f32 v27, {fx(1/64)}, v29
            v_mov_b32 v28, v27
            v_permlane32_swap_b32 v27, v28
            v_add_f32 v27, v27, v28
            v_mov_b32 v28, {fx(1e-5)}
            v_fmac_f32 v28, {fx(1/1024)}, v27
            v_rsq_f32 v{D}, v28
            v_mul_f32 v26, {fx(-1/1024)}, v26
            v_mul_f32 v{D+1}, v26, v{D}""")
        a(f"""
        v_lshrrev_b32 v9, 5, v1
        v_lshlrev_b32 v9, 4, v9
        v_add_u32 v9, {k.XL}, v9
        s_mul_i32 s32, s25, {7*SLAB}
        s_mov_b32 s34, {fx(c1)}
        s_mov_b32 s35, {fx(c1)}
        v_mov_b32 v26, {fx(c0)}
        v_mov_b32 v27, {fx(c0)}
        v_mov_b32 v28, 1.0
        v_mov_b32 v29, 1.0
        s_waitcnt lgkmcnt(0)
        s_barrier""")
        def rdq(j, q, B):
            o = 64 * j + 32 * q
            for n, oo in enumerate((o, o + 1024, o + 448, o + 448 + 1024)): a(f"ds_read_b128 {v(B+4*n,4)}, v9 offset:{oo}")
        pk = lambda r: v(r, 2)
        def fold(j, q, B):
            for tb, D in ((0, 4), (1, 30)):
                c = k.acc(j, tb) + 4 * q
                for i in (0, 2):
                    a(f"v_pk_fma_f32 {pk(c+i)}, {pk(c+i)}, {pk(D)}, {pk(B+4+i)} op_sel_hi:[1,0,1]")
                    a(f"v_pk_fma_f32 {pk(c+8+i)}, {pk(c+8+i)}, {pk(D)}, {pk(B+12+i)} op_sel_hi:[1,0,1]")
                for i in (0, 2):
                    a(f"v_pk_fma_f32 {pk(c+i)}, {pk(B+i)}, {pk(D)}, {pk(c+i)} op_sel:[0,1,0]")
                    a(f"v_pk_fma_f32 {pk(c+8+i)}, {pk(B+8+i)}, {pk(D)}, {pk(c+8+i)} op_sel:[0,1,0]")
        for j in range(7):
            if j == 0:
                rdq(0, 0, 10); a("s_waitcnt lgkmcnt(0)"); fold(0, 0, 10)
                rdq(0, 1, 10); a("s_waitcnt lgkmcnt(0)"); fold(0, 1, 10)
            else:
                a("s_waitcnt lgkmcnt(0)"); fold(j, 0, 10); fold(j, 1, k.acc(j - 1, 0))
            if j < 6: rdq(j + 1, 0, 10)
            for tb in range(2):
                c = k.acc(j, tb)
                for i in range(0, 8, 2): a(f"v_pk_mul_f32 {pk(c+8+i)}, {pk(c+8+i)}, {pk(c+i)}")
                for i in (0, 4):
                    a(f"v_pk_mul_f32 v[0:1], {pk(c+i)}, {pk(c+i)}\nv_pk_mul_f32 v[2:3], {pk(c+i+2)}, {pk(c+i+2)}")
                    a(f"v_pk_fma_f32 v[0:1], v[0:1], s[34:35], v[26:27]\nv_pk_fma_f32 v[2:3], v[2:3], s[34:35], v[26:27]")
                    a(f"v_pk_mul_f32 {pk(c+i)}, v[0:1], {pk(c+i)}\nv_pk_mul_f32 {pk(c+i+2)}, v[2:3], {pk(c+i+2)}")
                for i in range(8): a(f"v_exp_f32 v{c+i}, v{c+i}")
                for i in range(0, 8, 2): a(f"v_pk_add_f32 {pk(c+i)}, {pk(c+i)}, v[28:29]")
                for i in range(8): a(f"v_rcp_f32 v{c+i}, v{c+i}")
                for i in range(0, 8, 2): a(f"v_pk_mul_f32 {pk(c+i)}, {pk(c+i)}, {pk(c+8+i)}")
                for i in range(4): a(f"v_cvt_pk_bf16_f32 v{c+8+i}, v{c+2*i}, v{c+2*i+1}")
                a(f"buffer_store_dwordx4 {v(c+8,4)}, v{k.VA+tb}, s[12:15], s32 offen sc1")
                if tb == 0 and j < 6: rdq(j + 1, 1, c)
            a(f"s_add_u32 s32, s32, {SLAB}")
    return k_gemm("gu_kernel", 1024, 2, 7, EXP.get("gDA", 4), EXP.get("gR", 4), 2, EXP.get("gPEEL", 4), EXP.get("gCAP", 6), EXP.get("gINIT", 11),
                  "gu", WS_Y2, "contig", False, ["tok"]*7, 8, 32, 2, 4,
                  [(40, P_WG), (42, P_WU), (44, P_WS)], setup, epi, 7168, big=True, xlds=2048, nxa=36)

NSIDE = 288
def k_attn():
    R = 4; ST = 16384
    k = Kernel("attn_kernel", 256 + NSIDE, 512, SK_LDS, 128); a = k.a
    Q0, Q1, ONES, NEG, SA, SB, O, L, P0, P1, K0, K1, V0, V1, T = 4, 8, 12, 16, 32, 48, 64, 80, 84, 88, 92, 96, 100, 104, 108
    guard(k)
    a("s_cmp_ge_u32 s2, 256\ns_cbranch_scc1 attn_side")
    stamp(k, 0)
    load_ptrs(a, [(44, P_WS)])
    a(f"""
    s_and_b32 s32, s2, 7
    s_lshr_b32 s33, s2, 3
    s_and_b32 s34, s32, 3
    s_lshl_b32 s34, s34, 3
    s_and_b32 s35, s33, 7
    s_add_u32 s24, s34, s35            ; head
    s_lshr_b32 s34, s32, 2
    s_lshl_b32 s34, s34, 2
    s_lshr_b32 s35, s33, 3
    s_add_u32 s25, s34, s35
    v_lshrrev_b32 v3, 6, v0
    v_and_b32 v1, 63, v0
    v_readfirstlane_b32 s26, v3
    v_lshlrev_b32 v2, 4, v1
    s_lshl_b32 s27, s25, 3
    s_add_u32 s27, s27, s26
    s_lshl_b32 s28, s24, 18
    s_lshl_b32 s29, s26, 11            ; wave * 2048
    s_lshl_b32 s32, s24, 6
    s_add_u32 s32, s32, s27
    s_lshl_b32 s32, s32, 11            ; Q offset
    s_waitcnt lgkmcnt(0)""")
    srd(a, 4, 44, WS_Q, 4 << 20)
    a(f"s_add_u32 s8, s44, s28\ns_addc_u32 s9, s45, 0\ns_add_u32 s8, s8, {WS_KV}\ns_addc_u32 s9, s9, 0\ns_mov_b32 s10, 0x40000\ns_mov_b32 s11, 0x20000")
    a("s_mov_b32 s30, s29")
    def dma(slot):
        return [f"s_add_u32 m0, s29, {slot*ST}", "buffer_load_dwordx4 v2, s[8:11], s30 offen lds",
                "buffer_load_dwordx4 v2, s[8:11], s30 offen offset:1024 lds", f"s_add_u32 s30, s30, {ST}"]
    a(f"buffer_load_dwordx4 {v(Q0,4)}, v2, s[4:7], s32 offen\nbuffer_load_dwordx4 {v(Q1,4)}, v2, s[4:7], s32 offen offset:1024")
    a(f"buffer_load_dwordx4 {v(K0,4)}, v2, s[8:11], 0 offen\nbuffer_load_dwordx4 {v(K1,4)}, v2, s[8:11], 0 offen offset:1024")
    for st in range(R - 1):
        for x in dma(st): a(x)
    srd(a, 12, 44, WS_O, 64 * SLAB)
    frag_off(a, 3, 27, 1, T)
    a(f"""
    v_lshrrev_b32 v{T}, 4, v1
    v_lshrrev_b32 v{T+1}, 2, v1
    v_xor_b32 v{T}, v{T}, v{T+1}
    v_and_b32 v{T}, 1, v{T}
    v_cmp_eq_u32 vcc, 0, v{T}
    v_mov_b32 v{T+1}, 0x3f803f80
    v_cndmask_b32 v{ONES}, 0, v{T+1}, vcc""")
    for i in range(1, 4): a(f"v_mov_b32 v{ONES+i}, v{ONES}")
    for i in range(16): a(f"v_mov_b32 v{O+i}, 0")
    for i in range(4): a(f"v_mov_b32 v{L+i}, 0\nv_mov_b32 v{P1+i}, 0\nv_mov_b32 v{V1+i}, 0")
    a(f"""
    s_waitcnt vmcnt({2*(R-1)})
    v_mfma_f32_32x32x16_bf16 {v(SA,16)}, {v(K0,4)}, {v(Q0,4)}, 0
    v_mfma_f32_32x32x16_bf16 {v(SA,16)}, {v(K1,4)}, {v(Q1,4)}, {v(SA,16)}""")
    def rowmax(S, m):
        for i in range(0, 16, 2): a(f"v_max3_f32 v{m}, v{S+i}, v{S+i+1}, v{m}")
    def negbcast(m):
        a(f"v_mov_b32 v{m+1}, v{m}\nv_permlane32_swap_b32 v{m}, v{m+1}\nv_max_f32 v{m}, v{m}, v{m+1}")
        for i in range(16): a(f"v_sub_f32 v{NEG+i}, 0, v{m}")
    a(f"v_mov_b32 v{T}, v{SA}")
    rowmax(SA, T); negbcast(T)
    for i in range(16): a(f"v_sub_f32 v{SA+i}, v{SA+i}, v{T}")
    a(f"""
    s_waitcnt vmcnt({2*(R-2)})
    s_barrier
    ds_read_b128 {v(K0,4)}, v2 offset:4096
    ds_read_b128 {v(K1,4)}, v2 offset:5120
    ds_read_b128 {v(V0,4)}, v2 offset:2048""")
    cnt = Cnt()
    def it(j, E, site):
        def W(c, nm, tags):
            cnt.wait(c, (site, nm), tags)
            if E: E(f"s_waitcnt {'vmcnt' if c=='vm' else 'lgkmcnt'}({cnt.get(c,(site,nm))})")
        def X(x):
            if E: E(x)
        def RD(reg, blk, piece):
            X(f"ds_read_b128 {v(reg,4)}, v2 offset:{(blk % (4*R))*4096 + piece*1024}")
            cnt.issue("lg", (piece, blk))
        S, Sn = (SA, SB) if j % 2 == 0 else (SB, SA)
        e = lambda i: X(f"v_exp_f32 v{S+i}, v{S+i}")
        c = lambda i: X(f"v_cvt_pk_bf16_f32 v{P0+i}, v{S+2*i}, v{S+2*i+1}")
        W("lg", "k", {(0, j + 1), (3, j - 1), (1, j + 1)})
        X(f"v_mfma_f32_32x32x16_bf16 {v(Sn,16)}, {v(K0,4)}, {v(Q0,4)}, {v(NEG,16)}")
        e(0); e(1); e(2)
        X(f"v_mfma_f32_32x32x16_bf16 {v(O,16)}, {v(V1,4)}, {v(P1,4)}, {v(O,16)}")
        RD(V1, j, 3)
        e(3); c(0); e(4); c(1)
        X(f"v_mfma_f32_32x32x16_bf16 {v(Sn,16)}, {v(K1,4)}, {v(Q1,4)}, {v(Sn,16)}")
        if j % 4 == 2:
            W("vm", "bar", {("B", j // 4 + 1)})
            X("s_barrier")
        RD(K0, j + 2, 0); RD(K1, j + 2, 1)
        e(5); e(6); e(7)
        X(f"v_mfma_f32_16x16x32_bf16 {v(L,4)}, {v(ONES,4)}, {v(P1,4)}, {v(L,4)}")
        if j % 4 == 2:
            d = dma((j // 4 - 1) % R)
            X(d[0])
        c(2); c(3); e(8); e(9)
        W("lg", "v0", {(2, j)})
        X(f"v_mfma_f32_32x32x16_bf16 {v(O,16)}, {v(V0,4)}, {v(P0,4)}, {v(O,16)}")
        RD(V0, j + 1, 2)
        if j % 4 == 2:
            X(d[1]); X(d[2]); X(d[3])
            cnt.issue("vm", ("B", j // 4 - 1 + R)); cnt.issue("vm", ("B", j // 4 - 1 + R))
        e(10); e(11); c(4); e(12)
        X(f"v_mfma_f32_16x16x32_bf16 {v(L,4)}, {v(ONES,4)}, {v(P0,4)}, {v(L,4)}")
        c(5); e(13); e(14); e(15); c(6); c(7)
    def preload():
        cnt.q = {"vm": [], "lg": []}
        for st in range(R - 1):
            cnt.issue("vm", ("B", st)); cnt.issue("vm", ("B", st))
        for tg in [(0, 1), (1, 1), (2, 0)]: cnt.issue("lg", tg)
    preload()
    for j in range(64): it(j, None, j % 16)
    preload()
    stamp(k, 1)
    a("s_mov_b32 s31, 4\n.p2align 6\nattn_loop:")
    for j in range(16): it(j, a, j)
    a("s_sub_u32 s31, s31, 1\ns_cmp_lg_u32 s31, 0\ns_cbranch_scc1 attn_loop")
    stamp(k, 2)
    a(f"""
    s_waitcnt lgkmcnt(0)
    v_mfma_f32_32x32x16_bf16 {v(O,16)}, {v(V1,4)}, {v(P1,4)}, {v(O,16)}
    v_mfma_f32_16x16x32_bf16 {v(L,4)}, {v(ONES,4)}, {v(P1,4)}, {v(L,4)}
    v_mov_b32 v{T}, 0""")
    for i in range(16): a(f"v_fmac_f32 v{T}, 0, v{O+i}")
    a(f"""
    v_add_f32 v{T}, v{T}, v{L}
    v_cmp_ngt_f32 vcc, {fx(2.0**40)}, v{T}
    s_cbranch_vccnz attn_slow
attn_fin:
    v_rcp_f32 v{T}, v{L}
    s_mul_i32 s32, s24, {2*SLAB}
    s_add_u32 s33, s32, {SLAB}""")
    for i in range(16): a(f"v_mul_f32 v{O+i}, v{O+i}, v{T}")
    for i in range(8): a(f"v_cvt_pk_bf16_f32 v{O+i}, v{O+2*i}, v{O+2*i+1}")
    a(f"buffer_store_dwordx4 {v(O,4)}, v3, s[12:15], s32 offen sc1\nbuffer_store_dwordx4 {v(O+4,4)}, v3, s[12:15], s33 offen sc1")
    stamp(k, 3)
    prof_out(k, 4, 4, 26)
    a("s_endpgm")
    a(f"""
attn_slow:
    v_mov_b32 v{T}, 0xff800000
    s_mov_b32 s30, 0
attn_slow1:
    buffer_load_dwordx4 {v(K0,4)}, v2, s[8:11], s30 offen
    buffer_load_dwordx4 {v(K1,4)}, v2, s[8:11], s30 offen offset:1024
    s_waitcnt vmcnt(0)
    v_mfma_f32_32x32x16_bf16 {v(SA,16)}, {v(K0,4)}, {v(Q0,4)}, 0
    v_mfma_f32_32x32x16_bf16 {v(SA,16)}, {v(K1,4)}, {v(Q1,4)}, {v(SA,16)}""")
    rowmax(SA, T)
    a("s_add_u32 s30, s30, 4096\ns_cmp_lt_u32 s30, 0x40000\ns_cbranch_scc1 attn_slow1")
    negbcast(T)
    for i in range(16): a(f"v_mov_b32 v{O+i}, 0")
    for i in range(4): a(f"v_mov_b32 v{L+i}, 0")
    a(f"""
    s_mov_b32 s30, 0
attn_slow2:
    buffer_load_dwordx4 {v(K0,4)}, v2, s[8:11], s30 offen
    buffer_load_dwordx4 {v(K1,4)}, v2, s[8:11], s30 offen offset:1024
    buffer_load_dwordx4 {v(V0,4)}, v2, s[8:11], s30 offen offset:2048
    buffer_load_dwordx4 {v(V1,4)}, v2, s[8:11], s30 offen offset:3072
    s_waitcnt vmcnt(0)
    v_mfma_f32_32x32x16_bf16 {v(SA,16)}, {v(K0,4)}, {v(Q0,4)}, {v(NEG,16)}
    v_mfma_f32_32x32x16_bf16 {v(SA,16)}, {v(K1,4)}, {v(Q1,4)}, {v(SA,16)}""")
    for i in range(16): a(f"v_exp_f32 v{SA+i}, v{SA+i}")
    for i in range(8): a(f"v_cvt_pk_bf16_f32 v{P0+i}, v{SA+2*i}, v{SA+2*i+1}")
    a(f"""
    v_mfma_f32_32x32x16_bf16 {v(O,16)}, {v(V0,4)}, {v(P0,4)}, {v(O,16)}
    v_mfma_f32_32x32x16_bf16 {v(O,16)}, {v(V1,4)}, {v(P1,4)}, {v(O,16)}
    v_mfma_f32_16x16x32_bf16 {v(L,4)}, {v(ONES,4)}, {v(P0,4)}, {v(L,4)}
    v_mfma_f32_16x16x32_bf16 {v(L,4)}, {v(ONES,4)}, {v(P1,4)}, {v(L,4)}
    s_add_u32 s30, s30, 4096
    s_cmp_lt_u32 s30, 0x40000
    s_cbranch_scc1 attn_slow2
    s_branch attn_fin""")
    a("attn_side:")
    load_ptrs(a, [(40, P_C), (42, P_WMOD), (44, P_WS), (46, P_WG), (48, P_WU), (62, P_WO), (64, P_WD)])
    wave_lane(a)
    a("""
    s_sub_u32 s27, s2, 256
    s_lshl_b32 s32, s27, 9
    v_add_u32 v3, s32, v0
    s_waitcnt lgkmcnt(0)""")
    strip_copy_issue(a, 3, 62, 1024, 2048, 1, 0, 100)
    strip_copy_issue(a, 3, 64, 3584, 2048, 1, 16384, 108)
    prefetch(a, 3, 62, 1024 * 2048, 73728, 116)
    prefetch(a, 3, 64, 3584 * 2048, 73728 + 16384, 118)
    a("s_waitcnt vmcnt(2)")
    strip_copy_store(a, 44, WS_WO3, 1024 * 512, 100)
    strip_copy_store(a, 44, WS_WD3, 3584 * 512, 108)
    a(f"""
    s_and_b32 s32, s27, 1
    s_lshr_b32 s33, s27, 1
    s_lshl_b32 s52, s32, 9
    s_cmp_ge_u32 s33, 112
    s_cbranch_scc1 attn_side_g
    s_mov_b32 s51, 7168
    s_mul_i32 s53, s32, {2*7168*4}
    s_lshl_b32 s34, s33, 8
    s_add_u32 s53, s53, s34
    s_mov_b32 s54, {7168*4}
    s_cmp_ge_u32 s33, 56
    s_cselect_b32 s46, s48, s46
    s_cselect_b32 s47, s49, s47
    s_cselect_b32 s34, 56, 0
    s_sub_u32 s33, s33, s34
    s_mul_i32 s50, s52, s51
    s_lshl_b32 s34, s33, 7
    s_add_u32 s50, s50, s34""")
    srd(a, 8, 46, 0, 1024 * 7168); srd(a, 12, 44, WS_MODP, KS * 6144 * 4); srd(a, 16, 44, WS_UV, KS * 2 * 7168 * 4)
    skinny(k, "u", "pair", "")
    a(f"""
attn_side_g:
    s_sub_u32 s33, s33, {112-32}
    s_cmp_ge_u32 s33, 48
    s_cselect_b32 s34, 32, 0
    s_add_u32 s33, s33, s34
    s_mov_b32 s51, 12288
    s_mul_i32 s50, s52, s51
    s_lshl_b32 s34, s33, 7
    s_add_u32 s50, s50, s34
    s_mul_i32 s53, s32, {6144*4}
    s_lshl_b32 s34, s33, 8
    s_add_u32 s53, s53, s34
    s_mov_b32 s54, 0""")
    srd(a, 8, 42, 0, 1024 * 12288); srd(a, 12, 40, 0, 2048); srd(a, 16, 44, WS_MODP, KS * 6144 * 4)
    skinny(k, "g", "silu", " nt")
    finish(k)
    return k

def build(kernels, path, verbose=False):
    hdr = open("adaLN_cond__mha_block__geglu_ffn__prompt.s.ref").read().split("; Override launch")[0]
    out = hdr
    for k in kernels:
        out += f"; @launch kernel={k.name} grid=({k.grid},1,1) block=({k.block},1,1) lds={k.lds}\n"
    out += '.amdgcn_target "amdgcn-amd-amdhsa--gfx950"\n'
    for k in kernels:
        rep = []
        out += k.text(rep)
        if verbose:
            print(k.name, "vgpr", k.nv, "agpr", k.na, "lds", k.lds, "nops inserted:", len(rep))
            for r in rep:
                if "m0" not in r[1]: print("   ", r)
    out += '.section .rodata,"a"\n'
    for k in kernels: out += k.desc()
    open(path, "w").write(out)

CHECK = {"x2": "frag", "h2": False, "slab": SLAB}
def all_kernels():
    return [k_pre(), k_ln("ln1_kernel", P_X, WS_H1, 0, 1), k_qkv(), k_attn(), k_out(), k_gu(), k_down()]

if __name__ == "__main__":
    vb = False
    for x in sys.argv[2:]:
        if x == "prof": PROF = True
        elif x == "verbose": vb = True
        else:
            kk, _, vv = x.partition("="); EXP[kk] = int(vv) if vv else 1
    build(all_kernels(), sys.argv[1] if len(sys.argv) > 1 else "adaLN_cond__mha_block__geglu_ffn__prompt.s", verbose=vb)
```

```python
import sys, math, struct
from asmlib import *

SLAB = 75776
WS_MODP = 0
WS_UV = 64 << 10
WS_STAT = 256 << 10
WS_WQ3 = 1 << 20
WS_WO3 = 5 << 19
WS_WD3 = 3 << 20
WS_H1 = 5 << 20
WS_Q = 10 << 20
WS_KV = 14 << 20
WS_O = 22 << 20
WS_X2 = 27 << 20
WS_Y2 = 32 << 20
WS_ACT = 37 << 20
WS_PROF = 56 << 20
KS = 2
P_X, P_WQKV, P_WO, P_BX, P_WG, P_WU, P_WD, P_C, P_WMOD, P_OUT, P_DBG, P_WS = [8 * i for i in range(12)]
LOG2E = 1.4426950408889634
PROF = False
EXP = {}
KID = {"qkv_kernel": 0, "out_kernel": 1, "gu_kernel": 2, "down_kernel": 3, "attn_kernel": 4}
def f2u(x): return struct.unpack("<I", struct.pack("<f", x))[0]
def fx(x): return hex(f2u(x))

class Kernel:
    def __init__(self, name, grid, block, lds, nv, na=0):
        self.name, self.grid, self.block, self.lds, self.nv, self.na = name, grid, block, lds, nv, na
        self.a = Asm()
    def text(self, report=None):
        body = fix_hazards(self.a.l, report)
        return (f".text\n.globl {self.name}\n.p2align 8\n.type {self.name},@function\n{self.name}:\n" + "\n".join(body) + "\n")
    def desc(self):
        acc = (self.nv + 3) // 4 * 4
        nfv = acc + self.na if self.na else self.nv
        return f""".p2align 6
.amdhsa_kernel {self.name}
  .amdhsa_next_free_vgpr {nfv}
  .amdhsa_next_free_sgpr 96
  .amdhsa_accum_offset {acc}
  .amdhsa_group_segment_fixed_size 0
  .amdhsa_kernarg_size 96
  .amdhsa_user_sgpr_count 2
  .amdhsa_user_sgpr_kernarg_segment_ptr 1
  .amdhsa_system_sgpr_workgroup_id_x 1
  .amdhsa_float_denorm_mode_32 3
  .amdhsa_float_denorm_mode_16_64 3
.end_amdhsa_kernel
"""

def stamp(k, i):
    if PROF: k.a(f"s_memtime {s(64+2*i,2)}\ns_memrealtime {s(74+2*i,2)}\ns_waitcnt lgkmcnt(0)")
def prof_out(k, n, kid, wave_s):
    if not PROF: return
    a = k.a
    a(f"s_waitcnt vmcnt(0)\ns_memtime {s(64+2*n,2)}\ns_memrealtime {s(74+2*n,2)}\ns_load_dwordx2 s[84:85], s[0:1], {P_WS}\ns_waitcnt lgkmcnt(0)")
    a(f"s_add_u32 s84, s84, {WS_PROF + kid*(1<<18)}\ns_addc_u32 s85, s85, 0\ns_mov_b32 s86, {1<<18}\ns_mov_b32 s87, 0x20000")
    a(f"s_lshl_b32 s88, s2, 3\ns_add_u32 s88, s88, s{wave_s}\ns_lshl_b32 s88, s88, 6\nv_mov_b32 v1, 0")
    for i in range(10):
        a(f"v_mov_b32 v0, s{64+2*i}\nbuffer_store_dword v0, v1, s[84:87], s88 offen offset:{4*i}")
def load_ptrs(a, pairs):
    for sreg, off in pairs: a(f"s_load_dwordx2 {s(sreg,2)}, s[0:1], {off}")
def srd(a, d, p, off, size):
    if off: a(f"s_add_u32 s{d}, s{p}, {off}\ns_addc_u32 s{d+1}, s{p+1}, 0")
    else: a(f"s_mov_b32 s{d}, s{p}\ns_mov_b32 s{d+1}, s{p+1}")
    a(f"s_mov_b32 s{d+2}, {size}\ns_mov_b32 s{d+3}, 0x20000")
def guard(k): k.a(f"s_cmp_ge_u32 s2, {k.grid}\ns_cbranch_scc1 {k.name}_end")
def finish(k): k.a(f"{k.name}_end:\ns_endpgm")
def unpack(a, dst, src, n):
    for i in range(n):
        a(f"v_lshlrev_b32 v{dst+2*i}, 16, v{src+i}\nv_and_b32 v{dst+2*i+1}, 0xffff0000, v{src+i}")
def rbf(a, x):
    a(f"v_cvt_pk_bf16_f32 v{x}, v{x}, v{x}\nv_and_b32 v{x}, 0xffff0000, v{x}")
def phys_line(a, dst, i, t):
    a(f"""
    v_mul_u32_u24 v{t}, 9363, v{i}
    v_lshrrev_b32 v{t}, 16, v{t}
    v_add_u32 v{dst}, v{i}, v{t}
    v_mul_u32_u24 v{t}, 7, v{t}
    v_sub_u32 v{t}, v{i}, v{t}
    v_add_u32 v{t}, 5, v{t}
    v_lshrrev_b32 v{t}, 3, v{t}
    v_add_lshl_u32 v{dst}, v{dst}, v{t}, 7""")
def frag_off(a, dst, srb, lane, t):
    a(f"v_lshrrev_b32 v{t}, 3, v{lane}\nv_lshl_add_u32 v{t}, s{srb}, 3, v{t}")
    phys_line(a, dst, t, t + 1)
    a(f"v_and_b32 v{t}, 7, v{lane}\nv_lshl_add_u32 v{dst}, v{t}, 4, v{dst}")
def tr_lane(a, T, lane, korder, colperm):
    a(f"""
    v_lshrrev_b32 v{T}, 5, v{lane}
    v_bfe_u32 v{T+1}, v{lane}, 4, 1
    v_bfe_u32 v{T+2}, v{lane}, 2, 2
    v_and_b32 v{T+3}, 3, v{lane}""")
    if colperm:
        a(f"v_lshrrev_b32 v{T+4}, 1, v{T+3}\nv_and_b32 v{T+3}, 1, v{T+3}\nv_lshl_add_u32 v{T+3}, v{T+3}, 1, v{T+4}")
    a(f"v_lshl_add_u32 v{T+4}, v{T}, {2 if korder=='split' else 3}, v{T+2}")
def panel_rd(a, T, e, o):
    a(f"""
    v_lshlrev_b32 v{T+4}, 7, v{T+4}
    v_lshl_add_u32 v{T+4}, v{T+1}, 5, v{T+4}
    v_lshl_add_u32 v{T+4}, v{T+3}, 3, v{T+4}
    v_lshrrev_b32 v{T+5}, 1, v{T+2}
    v_lshlrev_b32 v{T+5}, 6, v{T+5}
    v_add_u32 v{e}, v{T+4}, v{T+5}
    v_sub_u32 v{o}, v{T+4}, v{T+5}
    v_add_u32 v{o}, 64, v{o}""")
def panel_src(a, T, lane):
    a(f"""
    v_lshrrev_b32 v{T}, 3, v{lane}
    v_and_b32 v{T+1}, 7, v{lane}
    v_bfe_u32 v{T+2}, v{lane}, 4, 1
    v_lshlrev_b32 v{T+2}, 2, v{T+2}
    v_xor_b32 v{T+1}, v{T+1}, v{T+2}""")

SK_LDS = 65536 + 2048
def skinny(k, tag, mode, nt):
    a = k.a; NV = 1 if mode == "silu" else 2
    a(f"""
    s_lshl_b32 s55, s26, 6
    s_add_u32 s56, s52, s55""")
    if mode == "silu":
        a("v_add_lshl_u32 v4, v1, s56, 1\nbuffer_load_ushort v8, v4, s[12:15], 0 offen")
    else:
        a("v_add_lshl_u32 v4, v1, s56, 2")
        for i, (p, idx) in enumerate([(0, 4), (1, 4), (0, 3), (1, 3)]):
            a(f"s_mov_b32 s57, {p*6144*4 + idx*4096}\nbuffer_load_dword v{8+i}, v4, s[12:15], s57 offen")
    panel_src(a, 5, 1)
    a(f"""
    v_add_u32 v5, s55, v5
    v_mul_lo_u32 v5, v5, s51
    v_lshl_add_u32 v5, v6, 4, v5
    s_lshl_b32 s57, s26, 13
    s_lshl_b32 s58, s51, 3""")
    for g in range(8):
        a(f"s_add_u32 m0, s57, {1024*g}\ns_nop 0\nbuffer_load_dwordx4 v5, s[8:11], s50 offen{nt} lds\ns_add_u32 s50, s50, s58")
    tr_lane(a, 12, 1, "contig", False)
    panel_rd(a, 12, 18, 19)
    a(f"""
    v_add_u32 v18, s57, v18
    v_add_u32 v19, s57, v19
    s_lshl_b32 s58, s26, 8
    s_add_u32 s58, s58, 0x10000
    v_lshl_add_u32 v6, v1, 1, s58
    v_and_b32 v7, 31, v1
    v_lshrrev_b32 v12, 5, v1
    v_lshlrev_b32 v12, 4, v12
    v_lshl_add_u32 v12, v7, 7, v12
    v_add_u32 v12, s58, v12
    s_waitcnt vmcnt(8)""")
    if mode == "silu":
        a(f"""
        v_lshlrev_b32 v8, 16, v8
        v_mul_f32 v9, {fx(-LOG2E)}, v8
        v_exp_f32 v9, v9
        v_add_f32 v9, 1.0, v9
        v_rcp_f32 v9, v9
        v_mul_f32 v8, v8, v9
        v_cvt_pk_bf16_f32 v8, v8, v8
        ds_write_b16 v6, v8""")
    else:
        a("v_add_f32 v8, v8, v9\nv_add_f32 v10, v10, v11")
        rbf(a, 8)
        a("v_add_f32 v8, 1.0, v8\nv_cvt_pk_bf16_f32 v8, v8, v8\nv_cvt_pk_bf16_f32 v10, v10, v10\nds_write_b16 v6, v8\nds_write_b16 v6, v10 offset:128")
    for i in range(16): a(f"v_mov_b32 v{20+i}, 0")
    a(f"""
    v_cmp_gt_u32 vcc, {NV}, v7
    s_waitcnt lgkmcnt(0)
    s_and_saveexec_b64 s[60:61], vcc""")
    for sub in range(4): a(f"ds_read_b128 {v(20+4*sub,4)}, v12 offset:{32*sub}")
    a("s_mov_b64 exec, s[60:61]\ns_waitcnt vmcnt(0)")
    for sub in range(4):
        for j in range(2):
            for r_ in range(2):
                a(f"ds_read_b64_tr_b16 {v(36+8*sub+4*j+2*r_,2)}, v{18+j} offset:{128*(16*sub+4*r_)}")
    for sub in range(4):
        a(f"s_waitcnt lgkmcnt({12-4*sub})")
        for j in range(2):
            c = v(68 + 16 * j, 16)
            a(f"v_mfma_f32_32x32x16_bf16 {c}, {v(20+4*sub,4)}, {v(36+8*sub+4*j,4)}, {c if sub else 0}")
    a(f"""
    v_lshl_add_u32 v6, v1, 2, s57
    v_cmp_gt_u32 vcc, 32, v1
    s_and_saveexec_b64 s[60:61], vcc""")
    for j in range(2):
        for q in range(NV): a(f"ds_write_b32 v6, v{68+16*j+q} offset:{256*q+128*j}")
    a(f"""
    s_mov_b64 exec, s[60:61]
    s_waitcnt lgkmcnt(0)
    s_barrier
    s_cmp_ge_u32 s26, {NV}
    s_cbranch_scc1 {k.name}_end
    s_lshl_b32 s57, s26, 8
    v_lshl_add_u32 v6, v1, 2, s57""")
    for w in range(8): a(f"ds_read_b32 v{8+w}, v6 offset:{8192*w}")
    a(f"s_mul_i32 s57, s26, s54\ns_add_u32 s53, s53, s57\nv_lshlrev_b32 v6, 2, v1\ns_waitcnt lgkmcnt(0)")
    for w in (4, 2, 1):
        for i in range(w): a(f"v_add_f32 v{8+i}, v{8+i}, v{8+w+i}")
    a("buffer_store_dword v8, v6, s[16:19], s53 offen\ns_endpgm")

def prefetch(a, gid, ps, nbytes, start, vt, srd_s=20):
    srd(a, srd_s, ps, 0, nbytes)
    a(f"""
    v_subrev_u32 v{vt}, {start}, v{gid}
    v_cmp_gt_u32 vcc, {nbytes//128}, v{vt}
    v_lshlrev_b32 v{vt}, 7, v{vt}
    v_mov_b32 v{vt+1}, 0x80000000
    v_cndmask_b32 v{vt}, v{vt+1}, v{vt}, vcc
    buffer_load_dword v{vt+1}, v{vt}, {s(srd_s,4)}, 0 offen""")

def strip_copy_issue(a, gid, ps, K, ldb, npan, start, vt, srd_s=20):
    srd(a, srd_s, ps, 0, K * ldb)
    n = 2 * npan
    a(f"""
    v_subrev_u32 v{vt}, {start}, v{gid}
    v_cmp_gt_u32 vcc, {K*n*8}, v{vt}
    v_and_b32 v{vt+1}, 7, v{vt}
    v_lshrrev_b32 v{vt}, 3, v{vt}""")
    if npan == 1:
        a(f"v_lshrrev_b32 v{vt+2}, 1, v{vt}\nv_and_b32 v{vt+3}, 1, v{vt}\nv_lshlrev_b32 v{vt+3}, 10, v{vt+3}")
    else:
        a(f"""
        v_mul_u32_u24 v{vt+2}, 10923, v{vt}
        v_lshrrev_b32 v{vt+2}, 16, v{vt+2}
        v_mul_u32_u24 v{vt+3}, 6, v{vt+2}
        v_sub_u32 v{vt+3}, v{vt}, v{vt+3}
        v_lshlrev_b32 v{vt+4}, 11, v{vt+3}
        v_add_u32 v{vt+3}, 5, v{vt+3}
        v_lshrrev_b32 v{vt+3}, 3, v{vt+3}
        v_mul_u32_u24 v{vt+3}, {6144-1024}, v{vt+3}
        v_sub_u32 v{vt+3}, v{vt+4}, v{vt+3}""")
    a(f"""
    v_mul_u32_u24 v{vt+2}, {ldb}, v{vt+2}
    v_add3_u32 v{vt+2}, v{vt+2}, v{vt+3}, 0
    v_lshl_add_u32 v{vt+2}, v{vt+1}, 4, v{vt+2}
    v_add_u32 v{vt+2}, 384, v{vt+2}
    v_mov_b32 v{vt+3}, 0x80000000
    v_cndmask_b32 v{vt+2}, v{vt+3}, v{vt+2}, vcc
    v_lshlrev_b32 v{vt}, 8, v{vt}
    v_lshl_add_u32 v{vt}, v{vt+1}, 4, v{vt}
    v_cndmask_b32 v{vt}, v{vt+3}, v{vt}, vcc
    buffer_load_dwordx4 {v(vt+4,4)}, v{vt+2}, {s(srd_s,4)}, 0 offen""")
def strip_copy_store(a, ws_s, off, size, vt, srd_s=20):
    srd(a, srd_s, ws_s, off, size)
    a(f"buffer_store_dwordx4 {v(vt+4,4)}, v{vt}, {s(srd_s,4)}, 0 offen sc1")

ORDER = []
def code_srd(k, d, start, upto=None, nwg=8):
    if EXP.get("nocpf"): nwg = 0
    i = ORDER.index(k.name)
    end = upto or (ORDER[min(i + 1, len(ORDER) - 1)] + "_end")
    lab = f"{k.name}_pc{d}"
    k.a(f"""
    s_getpc_b64 {s(d,2)}
{lab}:
    s_add_u32 s{d}, s{d}, {start}-{lab}
    s_addc_u32 s{d+1}, s{d+1}, 0
    s_mov_b32 s{d+2}, {end}-{start}+4
    s_cmp_lt_u32 s2, {nwg}
    s_cselect_b32 s{d+2}, s{d+2}, 0
    s_mov_b32 s{d+3}, 0x20000""")
def wave_lane(a):
    a("v_lshrrev_b32 v2, 6, v0\nv_and_b32 v1, 63, v0\nv_readfirstlane_b32 s26, v2")

def red32(a, x, t):
    for m in ("quad_perm:[1,0,3,2]", "quad_perm:[2,3,0,1]", "row_half_mirror", "row_mirror"):
        a(f"v_add_f32_dpp v{x}, v{x}, v{x} {m} row_mask:0xf bank_mask:0xf")
    a(f"v_mov_b32 v{t}, v{x}\nv_permlane16_swap_b32 v{x}, v{t}\nv_add_f32 v{x}, v{x}, v{t}")

def k_pre():
    k = Kernel("pre_kernel", 256, 512, SK_LDS, 104); a = k.a
    guard(k)
    code_srd(k, 88, "pre_kernel_top", ORDER[-1] + "_end")
    a("v_lshlrev_b32 v100, 7, v0\nbuffer_load_dword v101, v100, s[88:91], 0 offen\npre_kernel_top:")
    load_ptrs(a, [(40, P_C), (42, P_WMOD), (44, P_WS), (46, P_WQKV), (48, P_X)])
    wave_lane(a)
    a(f"""
    s_cmp_ge_u32 s2, 128
    s_cbranch_scc1 pre_side
    s_and_b32 s32, s2, 1
    s_lshr_b32 s33, s2, 1
    s_cmp_ge_u32 s33, 32
    s_cselect_b32 s34, 16, 0
    s_add_u32 s33, s33, s34
    s_lshl_b32 s52, s32, 9
    s_mov_b32 s51, 12288
    s_mul_i32 s50, s52, s51
    s_lshl_b32 s34, s33, 7
    s_add_u32 s50, s50, s34
    s_mul_i32 s53, s32, {6144*4}
    s_lshl_b32 s34, s33, 8
    s_add_u32 s53, s53, s34
    s_mov_b32 s54, 0
    s_waitcnt lgkmcnt(0)""")
    srd(a, 8, 42, 0, 1024 * 12288); srd(a, 12, 40, 0, 2048); srd(a, 16, 44, WS_MODP, KS * 6144 * 4)
    skinny(k, "m", "silu", " nt")
    a("""
pre_side:
    s_sub_u32 s32, s2, 128
    s_lshl_b32 s32, s32, 9
    v_add_u32 v3, s32, v0
    s_waitcnt lgkmcnt(0)""")
    strip_copy_issue(a, 3, 46, 1024, 6144, 3, 0, 8)
    prefetch(a, 3, 46, 1024 * 6144, 65536 - 49152, 20)
    prefetch(a, 3, 48, 2048 * 2048, 0, 24)
    a("s_waitcnt vmcnt(2)")
    strip_copy_store(a, 44, WS_WQ3, 1024 * 1536, 8)
    finish(k)
    return k

def k_ln(name, src_ptr, dst_off, shift_idx, scale_idx):
    k = Kernel(name, 256, 256, 8192 + 128 * 144, 128); a = k.a
    guard(k)
    load_ptrs(a, [(40, src_ptr), (44, P_WS)])
    code_srd(k, 88, name + "_end")
    a("v_lshlrev_b32 v30, 7, v0\nbuffer_load_dword v31, v30, s[88:91], 0 offen")
    a(f"""
    v_lshrrev_b32 v1, 5, v0
    v_and_b32 v2, 31, v0               ; chunk
    s_lshl_b32 s24, s2, 3
    v_add_u32 v3, s24, v1              ; row
    v_lshlrev_b32 v4, 11, v3
    v_lshl_add_u32 v4, v2, 4, v4
    v_lshlrev_b32 v5, 4, v0            ; tid*16
    s_waitcnt lgkmcnt(0)""")
    srd(a, 4, 40, 0, 2048 * 2048); srd(a, 8, 44, WS_MODP, KS * 6144 * 4); srd(a, 12, 44, dst_off, 64 * SLAB)
    for p in range(KS):
        a(f"s_mov_b32 s25, {p*6144*4 + scale_idx*4096}\nbuffer_load_dwordx4 {v(96+8*p,4)}, v5, s[8:11], s25 offen")
        a(f"s_mov_b32 s25, {p*6144*4 + shift_idx*4096}\nbuffer_load_dwordx4 {v(100+8*p,4)}, v5, s[8:11], s25 offen")
    for i in range(4): a(f"buffer_load_dwordx4 {v(8+4*i,4)}, v4, s[4:7], 0 offen offset:{512*i}")
    a(f"""
    s_lshr_b32 s25, s2, 2
    s_lshl_b32 s25, s25, 3
    s_and_b32 s26, s2, 3
    s_add_u32 s25, s25, s26
    v_bfe_u32 v26, v0, 3, 1
    v_lshl_add_u32 v26, v26, 2, s25""")
    phys_line(a, 25, 26, 27)
    a(f"""
    v_and_b32 v26, 7, v0
    v_lshl_add_u32 v25, v26, 4, v25
    v_lshrrev_b32 v27, 4, v0
    s_mov_b32 s25, {SLAB}
    v_mul_lo_u32 v27, v27, s25
    v_add_u32 v25, v25, v27
    v_lshrrev_b32 v27, 3, v0
    v_mul_u32_u24 v27, 144, v27
    v_lshl_add_u32 v27, v26, 4, v27
    v_mul_u32_u24 v28, 144, v2
    v_lshl_add_u32 v28, v1, 4, v28
    s_waitcnt vmcnt(4)""")
    for p in range(1, KS):
        for j in range(8): a(f"v_add_f32 v{96+j}, v{96+j}, v{96+8*p+j}")
    for j in range(4): a(f"v_cvt_pk_bf16_f32 v{112+j}, v{96+2*j}, v{97+2*j}")
    unpack(a, 96, 112, 4)
    for j in range(4): a(f"v_add_f32 v{96+j}, 1.0, v{96+j}")
    for j in range(2): a(f"v_cvt_pk_bf16_f32 v{112+j}, v{96+2*j}, v{97+2*j}")
    unpack(a, 96, 112, 2)
    a("ds_write_b128 v5, v[96:99]\nds_write_b128 v5, v[100:103] offset:4096")
    a("s_waitcnt vmcnt(0)")
    unpack(a, 32, 8, 16)
    a("v_add_f32 v6, v32, v33\nv_add_f32 v7, v34, v35")
    for i in range(4, 32): a(f"v_add_f32 v{6+i%2}, v{6+i%2}, v{32+i}")
    a("v_add_f32 v6, v6, v7")
    red32(a, 6, 7)
    a(f"v_mul_f32 v6, {fx(1/1024)}, v6")
    for i in range(32): a(f"v_sub_f32 v{32+i}, v{32+i}, v6")
    a("v_mul_f32 v6, v32, v32\nv_mul_f32 v7, v33, v33")
    for i in range(2, 32): a(f"v_fmac_f32 v{6+i%2}, v{32+i}, v{32+i}")
    a("v_add_f32 v6, v6, v7")
    red32(a, 6, 7)
    a(f"""
    v_mov_b32 v7, {fx(1e-5)}
    v_fmac_f32 v7, {fx(1/1024)}, v6
    v_rsq_f32 v6, v7
    v_lshlrev_b32 v24, 5, v2
    s_waitcnt lgkmcnt(0)
    s_barrier""")
    for i in range(4):
        a(f"ds_read_b128 {v(64+16*i,4)}, v24 offset:{1024*i}\nds_read_b128 {v(68+16*i,4)}, v24 offset:{1024*i+16}")
        a(f"ds_read_b128 {v(72+16*i,4)}, v24 offset:{4096+1024*i}\nds_read_b128 {v(76+16*i,4)}, v24 offset:{4096+1024*i+16}")
    for i in range(32): a(f"v_mul_f32 v{32+i}, v{32+i}, v6")
    for i in range(4):
        a(f"s_waitcnt lgkmcnt({12-4*i+i})")
        for j in range(8): a(f"v_fma_f32 v{32+8*i+j}, v{32+8*i+j}, v{64+16*i+j}, v{72+16*i+j}")
        for j in range(4): a(f"v_cvt_pk_bf16_f32 v{8+4*i+j}, v{32+8*i+2*j}, v{33+8*i+2*j}")
        a(f"ds_write_b128 v28, {v(8+4*i,4)} offset:{8192+32*144*i}")
    a("s_waitcnt lgkmcnt(0)\ns_barrier")
    for i in range(4): a(f"ds_read_b128 {v(32+4*i,4)}, v27 offset:{8192+32*144*i}")
    for i in range(4):
        a(f"s_mov_b32 s25, {16*SLAB*i}\ns_waitcnt lgkmcnt({3-i})\nbuffer_store_dwordx4 {v(32+4*i,4)}, v25, s[12:15], s25 offen sc1")
    finish(k)
    return k

def tile_map(a, TM, TN, xm, xn):
    tm_per, tn_per = TM // xm, TN // xn
    assert tm_per & (tm_per - 1) == 0
    a(f"""
    s_and_b32 s32, s2, 7
    s_lshr_b32 s33, s2, 3
    s_lshr_b32 s34, s32, {xn.bit_length()-1}
    s_and_b32 s35, s32, {xn-1}
    s_and_b32 s24, s33, {tm_per-1}
    s_lshr_b32 s25, s33, {tm_per.bit_length()-1}
    s_mul_i32 s34, s34, {tm_per}
    s_add_u32 s24, s24, s34
    s_mul_i32 s35, s35, {tn_per}
    s_add_u32 s25, s25, s35""")
    wave_lane(a)

def k_gemm(name, K, MB, NB, DA, R, U, PEEL, CAP, INIT, btype, a_off, korder, colperm, orient, TM, TN, xm, xn,
           ptrs, setup, epilogue, ldb, alt=None, big=False, ntemp=24, xlds=0, nxa=0, FB=1):
    S = K // 16; NST = K // 64
    assert (NST - PEEL) % U == 0 and (4 * U) % DA == 0 and (4 * PEEL) % DA == 0 and (4 * U) % FB == 0 and (4 * PEEL) % FB == 0
    if btype == "panel":
        NP = NB // 2; STAGE = NP * 8192; ND = 2 * NP
    else:
        UPOFF = 16 * (64 * 14 + 8); STAGE = 2 * UPOFF; ND = 7
    VRE0, VRO0, VRE, VRO, VA = 3, 4, 5, 6, 7
    VB = VA + MB
    nfix = VB + ND
    if big:
        ACC = 256 - 16 * NB * MB; fk = "a"; BF = 0; AR = 4 * NB * FB; XA = AR + 4 * MB * DA; na = XA + nxa; nv = 256
        TMP = (nfix + 1) // 2 * 2; assert TMP + 14 <= ACC
    else:
        TMP = (nfix + 3) // 4 * 4
        ACC = (TMP + ntemp + 3) // 4 * 4
        fk = "v"; BF = ACC + 16 * NB * MB; AR = BF + 4 * NB * FB; nv = AR + 4 * MB * DA; na = 0; XA = None
    k = Kernel(name, TM * TN, 256, STAGE * R + xlds, nv, na); a = k.a
    k.ACC, k.TMP, k.MB, k.NB, k.BF, k.AR, k.VA, k.XL, k.XA = ACC, TMP, MB, NB, BF, AR, VA, STAGE * R, XA
    acc = lambda j, tb: ACC + 16 * (j * MB + tb)
    k.acc = acc
    guard(k)
    stamp(k, 0)
    load_ptrs(a, ptrs)
    tile_map(a, TM, TN, xm, xn)
    T = TMP
    a(f"s_lshl_b32 s37, s24, 2\ns_add_u32 s37, s37, s26\ns_mul_i32 s37, s37, {MB}")
    rd_rows = 8 if korder == "split" else 4
    if btype == "panel":
        off_alt, ldb_alt, pst_alt, sst_alt = alt
        a(f"""
        s_and_b32 s32, s25, 7
        s_lshr_b32 s33, s25, 3
        s_mul_i32 s33, s33, {sst_alt}
        s_lshl_b32 s34, s25, 7
        s_mov_b32 s51, {ldb}
        s_mov_b32 s52, 2048
        s_cmp_eq_u32 s32, {3 if not EXP.get('noalt') else 99}
        s_cselect_b32 s50, s33, s34
        s_cselect_b32 s51, {ldb_alt}, s51
        s_cselect_b32 s52, {pst_alt}, s52
        s_cselect_b32 s53, 1, 0
        s_lshl_b32 s39, s51, 6
        s_lshl_b32 s54, s51, 3""")
        panel_src(a, T, 1)
        a(f"""
        s_lshl_b32 s32, s26, 4
        v_add_u32 v{T}, s32, v{T}
        v_mul_lo_u32 v{T}, v{T}, s51
        v_lshl_add_u32 v{T}, v{T+1}, 4, v{T}
        v_add_u32 v{VB}, s50, v{T}
        v_add_u32 v{VB+1}, s54, v{VB}""")
        for p in range(1, NP):
            a(f"v_add_u32 v{VB+2*p}, s52, v{VB+2*p-2}\nv_add_u32 v{VB+2*p+1}, s52, v{VB+2*p-1}")
        dma_lds = [p * 8192 + g * 1024 for p in range(NP) for g in range(2)]
        a("s_lshl_b32 s36, s26, 11")
    else:
        a(f"""
        s_and_b32 s32, s26, 1
        s_mul_i32 s33, s32, {32*ldb}
        s_mul_i32 s34, s25, 224
        s_add_u32 s33, s33, s34
        s_mov_b32 s39, {64*ldb}""")
        for i in range(7):
            a(f"""
            v_add_u32 v{T}, {64*i}, v1
            v_mul_u32_u24 v{T+1}, 4682, v{T}
            v_lshrrev_b32 v{T+1}, 16, v{T+1}
            v_lshl_add_u32 v{T}, v{T}, 4, s33
            v_mul_u32_u24 v{T+1}, {ldb-224}, v{T+1}
            v_add_u32 v{VB+i}, v{T}, v{T+1}""")
        dma_lds = [1024 * i for i in range(7)]
        a(f"""
        s_mul_i32 s36, s32, 7168
        s_lshr_b32 s33, s26, 1
        s_mul_i32 s33, s33, {UPOFF}
        s_add_u32 s36, s36, s33""")
    for tb in range(MB):
        if tb: a(f"s_add_u32 s32, s37, {tb}")
        frag_off(a, VA + tb, 32 if tb else 37, 1, T)
    a(f"""
    s_mov_b32 s27, 0
    s_mov_b32 s28, 0
    s_mov_b32 s29, s36
    s_add_u32 s38, s36, {R*STAGE}
    s_mov_b32 s31, {(R-1)*STAGE}
    s_waitcnt lgkmcnt(0)""")
    srd(a, 4, 44, a_off, S * SLAB)
    if btype == "panel":
        a(f"""
        s_add_u32 s32, s44, {off_alt}
        s_addc_u32 s33, s45, 0
        s_cmp_eq_u32 s53, 1
        s_cselect_b32 s8, s32, s40
        s_cselect_b32 s9, s33, s41
        s_mul_i32 s10, s51, {K}
        s_mov_b32 s11, 0x20000""")
    else:
        a("s_cmp_ge_u32 s26, 2\ns_cselect_b32 s8, s42, s40\ns_cselect_b32 s9, s43, s41")
        a(f"s_mov_b32 s10, {K*ldb}\ns_mov_b32 s11, 0x20000")

    def late_setup():
        code_srd(k, 92, name + "_epi")
        a("v_lshlrev_b32 v2, 7, v0")
        tr_lane(a, T, 1, korder, colperm)
        if btype == "panel": panel_rd(a, T, VRE0, VRO0)
        else:
            a(f"""
            v_mul_u32_u24 v{T+4}, 224, v{T+4}
            v_lshl_add_u32 v{T+4}, v{T+3}, 3, v{T+4}
            v_mul_u32_u24 v{T+5}, {UPOFF}, v{T+1}
            v_add_u32 v{VRE0}, v{T+4}, v{T+5}""")
    if btype == "panel":
        def rd(j, sub, r_): return (VRE if j % 2 == 0 else VRO), (j // 2) * 8192 + 128 * (16 * sub + rd_rows * r_)
    else:
        def rd(j, sub, r_): return VRE, 32 * j + 224 * (16 * sub + rd_rows * r_)

    BOFF = 4 - FB
    def make_ops(extra):
        ops = []
        for ta in range(S + DA + 8):
            for tb in range(MB):
                ins = [f"buffer_load_dwordx4 {rr(fk, AR+4*(MB*(ta%DA)+tb), 4)}, v{VA+tb}, s[4:7], s27 offen"]
                if tb == MB - 1: ins.append(f"s_add_u32 s27, s27, {SLAB}")
                ops.append([ta, ta + 1 - DA, len(ops), ins, ("A", ta)])
        for st in range(NST + R + 2):
            for i in range(ND):
                ins = [f"s_add_u32 m0, s29, {dma_lds[i]}", f"buffer_load_dwordx4 v{VB+i}, s[8:11], s28 offen lds"]
                if i == ND - 1:
                    ins += ["s_add_u32 s28, s28, s39", f"s_add_u32 s29, s29, {STAGE}", "s_cmp_eq_u32 s29, s38\ns_cselect_b32 s29, s36, s29"]
                ops.append([4 * st - FB - 0.5, 4 * (st + 2 - R) - FB + i * 4 // ND, len(ops), ins, ("B", st)])
        for need, ins in extra: ops.append([need, -999, len(ops), ins, ("X",)])
        ops.sort(key=lambda o: (o[0], o[2]))
        return ops

    cnt = Cnt()
    def run(emit):
        def E(x):
            if emit: emit(x)
        extra = setup(k, emit)
        ops = make_ops(extra)
        def take(t, cap):
            got = []
            for o in ops:
                if len(got) >= cap: break
                if o[1] <= t: got.append(o)
            for o in got: ops.remove(o)
            fl = []
            for o in got:
                for x in o[3]: fl.append((x, o[4] if x.startswith("buffer_") else None))
            return fl
        def W(site, c, nm, tags):
            cnt.wait(c, (site, nm), tags)
            E(f"s_waitcnt {'vmcnt' if c=='vm' else 'lgkmcnt'}({cnt.get(c, (site, nm))})")
        def flush(fill, n):
            for _ in range(n):
                if not fill: return
                x, tag = fill.pop(0)
                E(x)
                if tag: cnt.issue("vm", tag)
        def barrier(site, st):
            W(site, "vm", "bar", {("B", st)})
            E("s_barrier")
            E(f"s_add_u32 s31, s31, {STAGE}\ns_cmp_eq_u32 s31, {R*STAGE}\ns_cselect_b32 s31, 0, s31\nv_add_u32 v{VRE}, s31, v{VRE0}")
            if btype == "panel": E(f"v_add_u32 v{VRO}, s31, v{VRO0}")
        def reads(tt, j):
            for r_ in range(2):
                base, off = rd(j, tt % 4, r_)
                E(f"ds_read_b64_tr_b16 {rr(fk, BF+4*(NB*(tt%FB)+j)+2*r_, 2)}, v{base} offset:{off}")
                cnt.issue("lg", ("F", tt, j))
        flush(take(-FB - 1, INIT), 999)
        if emit:
            late_setup()
            if PEEL == 0:
                for i in range(16 * NB * MB): a(f"v_mov_b32 v{ACC+i}, 0")
        barrier("pro", 0)
        for tt in range(FB):
            for j in range(NB): reads(tt, j)
        if PEEL == 0: flush(take(-1, 999), 999)
        if emit: stamp(k, 1)
        for t in range(S):
            peeled = t < 4 * PEEL
            site = ("p", t) if peeled else (t - 4 * PEEL) % (4 * U)
            if t == 4 * PEEL:
                assert not [o for o in ops if o[1] < t], f"{name}: backlog not drained"
                E(f"s_mov_b32 s30, {(NST-PEEL)//U}\n.p2align 6\n{name}_loop:")
            if t == 4 * PEEL + 4 * U:
                E(f"s_sub_u32 s30, s30, 1\ns_cmp_lg_u32 s30, 0\ns_cbranch_scc1 {name}_loop")
                if emit: return
            sub = t % 4
            fill = take(t, CAP if peeled else 999)
            if not peeled and site == 1: fill.append((f"buffer_load_dword {'v0' if not big else 'a%d' % (na - 1)}, v2, s[92:95], 0 offen", ("C",)))
            n0 = len(fill); nslots = NB * MB; slot = 0
            W(site, "vm", "A", {("A", t)})
            for j in range(NB):
                W(site, "lg", f"F{j}", {("F", t, j)})
                for tb in range(MB):
                    af = rr(fk, AR + 4 * (MB * (t % DA) + tb), 4); bf = rr(fk, BF + 4 * (NB * (t % FB) + j), 4); c = v(acc(j, tb), 16)
                    x, y = (bf, af) if orient[j] == "tok" else (af, bf)
                    E(f"v_mfma_f32_32x32x16_bf16 {c}, {x}, {y}, {c if (t or PEEL == 0) else 0}")
                    slot += 1
                    if tb == MB - 1:
                        if j == 0 and sub == BOFF: barrier(site, (t + FB) // 4)
                        reads(t + FB, j)
                    if not (sub == BOFF and j == 0 and tb < MB - 1):
                        flush(fill, max(0, (n0 * slot + nslots - 1) // nslots - (n0 - len(fill))))
            flush(fill, 999)
        if (NST - PEEL) == U: E(f"s_sub_u32 s30, s30, 1\ns_cmp_lg_u32 s30, 0\ns_cbranch_scc1 {name}_loop")
    run(None)
    cnt.q = {"vm": [], "lg": []}
    run(a)
    a(f"{name}_epi:")
    stamp(k, 2)
    epilogue(k)
    stamp(k, 3)
    prof_out(k, 4, KID[name], 26)
    finish(k)
    return k

def k_qkv():
    def setup(k, a): return []
    def epi(k):
        a = k.a; T = k.TMP
        qs = LOG2E / math.sqrt(32)
        srd(a, 12, 44, WS_Q, 4 << 20); srd(a, 16, 44, WS_KV, 8 << 20)
        a(f"""
        v_lshlrev_b32 v{T}, 4, v1
        s_lshl_b32 s32, s25, 7
        s_add_u32 s32, s32, s37
        s_lshl_b32 s33, s32, 11          ; Q offset
        s_lshl_b32 s34, s32, 12
        s_add_u32 s35, s33, {64*2048}
        s_add_u32 s39, s34, {64*4096}""")
        for j in range(6):
            c = k.acc(j, 0)
            if j < 2:
                for i in range(16): a(f"v_mul_f32 v{c+i}, {fx(qs)}, v{c+i}")
            for g in range(2):
                for i in range(4 * g, 4 * g + 4): a(f"v_cvt_pk_bf16_f32 v{c+i}, v{c+2*i}, v{c+2*i+1}")
            for g in range(2):
                if j < 2: a(f"buffer_store_dwordx4 {v(c+4*g,4)}, v{T}, s[12:15], s{33 if j==0 else 35} offen offset:{1024*g} sc1")
                else: a(f"buffer_store_dwordx4 {v(c+4*g,4)}, v{T}, s[16:19], s{34 if j%2==0 else 39} offen offset:{(2048 if j>=4 else 0)+1024*g} sc1")
    return k_gemm("qkv_kernel", 1024, 1, 6, EXP.get("qDA", 8), EXP.get("qR", 4), 2, EXP.get("qPEEL", 4), EXP.get("qCAP", 4), EXP.get("qINIT", 9),
                  "panel", WS_H1, "contig", False, ["tok"]*4 + ["feat"]*2, 16, 16, 2, 4,
                  [(40, P_WQKV), (44, P_WS)], setup, epi, 6144, alt=(WS_WQ3, 1536, 256, 768))

def colvec_ops(k, need, dst, idxs, va):
    ops = []
    first = [f"s_lshl_b32 s32, s25, 8\nv_lshl_add_u32 v{va}, v1, 2, s32"]
    for n, idx in enumerate(idxs):
        for p in range(KS):
            ops.append((need, first + [f"s_mov_b32 s32, {p*6144*4 + idx*4096}", f"buffer_load_dword v{dst+2*n+p}, v{va}, s[20:23], s32 offen"]))
            first = []
    return ops

def k_out():
    def setup(k, a):
        T = k.TMP
        if a:
            srd(a, 12, 42, 0, 4 << 20); srd(a, 20, 44, WS_MODP, KS * 6144 * 4)
        ops = colvec_ops(k, 30, T + 8, [2, 4], T + 6)
        first = [f"""v_lshrrev_b32 v{T+12}, 3, v1
        v_and_b32 v{T+7}, 7, v1
        v_xor_b32 v{T+7}, v{T+7}, v{T+12}
        v_lshlrev_b32 v{T+7}, 4, v{T+7}
        v_lshl_add_u32 v{T+7}, v{T+12}, 11, v{T+7}
        s_lshl_b32 s55, s37, 16
        s_lshl_b32 s32, s25, 7
        s_add_u32 s55, s55, s32
        s_lshl_b32 s56, s26, 12
        s_add_u32 s56, s56, {k.XL}"""]
        for i in range(4):
            ops.append((31, first + [f"s_add_u32 m0, s56, {1024*i}", "s_nop 0", f"buffer_load_dwordx4 v{T+7}, s[12:15], s55 offen lds", "s_add_u32 s55, s55, 0x4000"]))
            first = []
        return ops
    def epi(k):
        a = k.a; T = k.TMP; G = T + 16; C = G + 32; X = C + 32; P = X + 32
        srd(a, 12, 44, WS_X2, 64 * SLAB); srd(a, 16, 44, WS_Y2, 64 * SLAB); srd(a, 20, 44, WS_STAT, 16 * 2048 * 8)
        a(f"""
        v_add_f32 v{T+8}, v{T+8}, v{T+9}
        v_add_f32 v{T+10}, v{T+10}, v{T+11}""")
        rbf(a, T + 8); rbf(a, T + 10)
        a(f"v_add_f32 v{T+10}, 1.0, v{T+10}")
        rbf(a, T + 10)
        a(f"""
        s_lshl_b32 s32, s26, 9
        s_add_u32 s32, s32, {k.XL + 16384}
        v_lshl_add_u32 v{T}, v1, 2, s32
        ds_write_b32 v{T}, v{T+8}
        ds_write_b32 v{T}, v{T+10} offset:256
        v_lshrrev_b32 v{T+1}, 5, v1
        v_lshl_add_u32 v{T}, v{T+1}, 5, s32
        v_and_b32 v{T+2}, 31, v1
        v_and_b32 v{T+3}, 7, v1
        v_xor_b32 v{T+3}, v{T+3}, v{T+1}
        v_lshlrev_b32 v{T+3}, 4, v{T+3}
        v_lshl_add_u32 v{T+3}, v{T+2}, 7, v{T+3}
        v_add_u32 v{T+3}, s56, v{T+3}
        s_waitcnt lgkmcnt(0)""")
        for q in range(4):
            a(f"v_xor_b32 v{T+4}, {32*q}, v{T+3}\nds_read_b128 {v(P+4*q,4)}, v{T+4}")
        for q in range(4):
            for hh in range(2): a(f"ds_read_b128 {v(G+8*q+4*hh,4)}, v{T} offset:{64*q+16*hh}")
        a("s_waitcnt lgkmcnt(8)")
        unpack(a, X, P, 16)
        for q in range(4):
            for hh in range(2): a(f"ds_read_b128 {v(C+8*q+4*hh,4)}, v{T} offset:{256+64*q+16*hh}")
        a(f"s_mul_i32 s33, s25, {4*SLAB}\ns_waitcnt lgkmcnt(8)")
        for q in range(4):
            c = k.acc(q // 2, 0) + 8 * (q % 2)
            for i in range(8): a(f"v_fmac_f32 v{X+8*q+i}, v{G+8*q+i}, v{c+i}")
            for i in range(4): a(f"v_cvt_pk_bf16_f32 v{P+4*q+i}, v{X+8*q+2*i}, v{X+8*q+2*i+1}")
            a(f"s_add_u32 s34, s33, {q*SLAB}\nbuffer_store_dwordx4 {v(P+4*q,4)}, v{k.VA}, s[12:15], s34 offen sc1")
        unpack(a, X, P, 16)
        a("s_waitcnt lgkmcnt(0)")
        for q in range(4):
            for i in range(8): a(f"v_mul_f32 v{C+8*q+i}, v{C+8*q+i}, v{X+8*q+i}")
            for i in range(4): a(f"v_cvt_pk_bf16_f32 v{G+4*q+i}, v{C+8*q+2*i}, v{C+8*q+2*i+1}")
            a(f"s_add_u32 s34, s33, {q*SLAB}\nbuffer_store_dwordx4 {v(G+4*q,4)}, v{k.VA}, s[16:19], s34 offen sc1")
        a(f"v_add_f32 v{T+8}, v{X}, v{X+1}\nv_add_f32 v{T+9}, v{X+2}, v{X+3}")
        for i in range(4, 32): a(f"v_add_f32 v{T+8+i%2}, v{T+8+i%2}, v{X+i}")
        a(f"""
        v_add_f32 v{T+8}, v{T+8}, v{T+9}
        v_mov_b32 v{T+9}, v{T+8}
        v_permlane32_swap_b32 v{T+8}, v{T+9}
        v_add_f32 v{T+8}, v{T+8}, v{T+9}
        v_mul_f32 v{T+10}, {fx(1/64)}, v{T+8}""")
        for i in range(32): a(f"v_sub_f32 v{X+i}, v{X+i}, v{T+10}")
        a(f"v_mul_f32 v{T+9}, v{X}, v{X}\nv_mul_f32 v{T+10}, v{X+1}, v{X+1}")
        for i in range(2, 32): a(f"v_fmac_f32 v{T+9+i%2}, v{X+i}, v{X+i}")
        a(f"""
        v_add_f32 v{T+9}, v{T+9}, v{T+10}
        v_mov_b32 v{T+10}, v{T+9}
        v_permlane32_swap_b32 v{T+9}, v{T+10}
        v_add_f32 v{T+9}, v{T+9}, v{T+10}
        v_lshlrev_b32 v{T+2}, 3, v{T+2}
        s_lshl_b32 s32, s25, 14
        s_lshl_b32 s33, s37, 8
        s_add_u32 s32, s32, s33
        s_mov_b32 exec_hi, 0
        buffer_store_dwordx2 {v(T+8,2)}, v{T+2}, s[20:23], s32 offen sc1
        s_mov_b32 exec_hi, -1""")
    return k_gemm("out_kernel", 1024, 1, 2, 16, 6, 4, 0, 99, 999, "panel", WS_O, "split", True, ["tok"]*2, 16, 16, 4, 2,
                  [(40, P_WO), (42, P_X), (44, P_WS)], setup, epi, 2048, alt=(WS_WO3, 512, 0, 256), ntemp=16 + 96 + 16, xlds=16384 + 2048,
                  FB=EXP.get("pFB", 2))

def k_down():
    def setup(k, a):
        T = k.TMP
        if a:
            srd(a, 12, 44, WS_X2, 64 * SLAB); srd(a, 20, 44, WS_MODP, KS * 6144 * 4)
        ops = colvec_ops(k, 30, T + 8, [5], T + 6)
        first = [f"s_mul_i32 s55, s25, {4*SLAB}"]
        for q in range(4):
            ops.append((31, first + [f"buffer_load_dwordx4 {v(T+16+4*q,4)}, v{k.VA}, s[12:15], s55 offen", f"s_add_u32 s55, s55, {SLAB}"]))
            first = []
        return ops
    def epi(k):
        a = k.a; T = k.TMP; P = T + 16; G = P + 16; X = G + 32
        srd(a, 16, 46, 0, 4 << 20)
        a(f"v_add_f32 v{T+8}, v{T+8}, v{T+9}")
        rbf(a, T + 8)
        a(f"""
        s_lshl_b32 s32, s26, 8
        s_add_u32 s32, s32, {k.XL + 16384}
        v_lshl_add_u32 v{T}, v1, 2, s32
        ds_write_b32 v{T}, v{T+8}
        v_lshrrev_b32 v{T+1}, 5, v1
        v_lshl_add_u32 v{T}, v{T+1}, 5, s32
        s_lshl_b32 s56, s26, 12
        s_add_u32 s56, s56, {k.XL}
        v_and_b32 v{T+2}, 31, v1
        v_and_b32 v{T+3}, 7, v1
        v_xor_b32 v{T+3}, v{T+3}, v{T+1}
        v_lshlrev_b32 v{T+3}, 4, v{T+3}
        v_lshl_add_u32 v{T+3}, v{T+2}, 7, v{T+3}
        v_add_u32 v{T+3}, s56, v{T+3}
        s_waitcnt lgkmcnt(0)""")
        for q in range(4):
            for hh in range(2): a(f"ds_read_b128 {v(G+8*q+4*hh,4)}, v{T} offset:{64*q+16*hh}")
        unpack(a, X, P, 16)
        a(f"""
        v_lshl_add_u32 v{T+5}, v1, 4, s56
        v_lshrrev_b32 v{T+6}, 3, v1
        v_and_b32 v{T+7}, 7, v1
        v_xor_b32 v{T+7}, v{T+7}, v{T+6}
        v_lshlrev_b32 v{T+7}, 4, v{T+7}
        v_lshl_add_u32 v{T+7}, v{T+6}, 11, v{T+7}
        s_lshl_b32 s33, s37, 16
        s_lshl_b32 s32, s25, 7
        s_add_u32 s33, s33, s32
        s_waitcnt lgkmcnt(0)""")
        for q in range(4):
            c = k.acc(q // 2, 0) + 8 * (q % 2)
            for i in range(8): a(f"v_fmac_f32 v{X+8*q+i}, v{G+8*q+i}, v{c+i}")
            for i in range(4): a(f"v_cvt_pk_bf16_f32 v{P+4*q+i}, v{X+8*q+2*i}, v{X+8*q+2*i+1}")
            a(f"v_xor_b32 v{T+4}, {32*q}, v{T+3}\nds_write_b128 v{T+4}, {v(P+4*q,4)}")
        a("s_waitcnt lgkmcnt(0)")
        for i in range(4): a(f"ds_read_b128 {v(G+4*i,4)}, v{T+5} offset:{1024*i}")
        for i in range(4):
            a(f"s_waitcnt lgkmcnt({3-i})\nbuffer_store_dwordx4 {v(G+4*i,4)}, v{T+7}, s[16:19], s33 offen sc1\ns_add_u32 s33, s33, 0x4000")
    return k_gemm("down_kernel", 3584, 1, 2, 16, 6, 4, 0, 99, 999, "panel", WS_ACT, "split", True, ["tok"]*2, 16, 16, 4, 2,
                  [(40, P_WD), (44, P_WS), (46, P_OUT)], setup, epi, 2048, alt=(WS_WD3, 512, 0, 256), ntemp=16 + 16 + 64, xlds=16384 + 1024,
                  FB=EXP.get("pFB", 2))

def k_gu():
    def setup(k, a):
        T = k.TMP; XA = k.XA
        if a:
            srd(a, 16, 44, WS_STAT, 16 * 2048 * 8); srd(a, 20, 44, WS_UV, KS * 2 * 7168 * 4)
        ops = []
        first = [f"""v_and_b32 v{T+6}, 31, v1
        v_lshlrev_b32 v{T+6}, 3, v{T+6}
        v_lshrrev_b32 v{T+7}, 5, v1
        v_lshl_add_u32 v{T+6}, v{T+7}, 17, v{T+6}
        s_lshl_b32 s55, s37, 8"""]
        for i in range(8):
            for tb in range(2):
                ops.append((40, first + [f"buffer_load_dwordx2 {a_(XA+16*tb+2*i,2)}, v{T+6}, s[16:19], s55 offen offset:{256*tb}"] + (["s_add_u32 s55, s55, 0x4000"] if tb else [])))
                first = []
        first = [f"""v_cmp_lt_u32 vcc, 111, v0
        v_mov_b32 v{T+7}, {(3584-112)*4}
        v_cndmask_b32 v{T+7}, 0, v{T+7}, vcc
        v_lshl_add_u32 v{T+7}, v0, 2, v{T+7}
        s_mul_i32 s56, s25, 448"""]
        for i in range(4):
            ops.append((41, first + [f"buffer_load_dword a{XA+32+i}, v{T+7}, s[20:23], s56 offen", f"s_add_u32 s56, s56, {7168*4}"]))
            first = []
        return ops
    def epi(k):
        a = k.a; T = k.TMP; XA = k.XA
        c0 = -2 * math.sqrt(2 / math.pi) * LOG2E; c1 = c0 * 0.044715
        srd(a, 12, 44, WS_ACT, 224 * SLAB)
        for i in range(4): a(f"v_accvgpr_read_b32 v{10+i}, a{XA+32+i}")
        a(f"""
        v_add_f32 v10, v10, v12
        v_add_f32 v11, v11, v13
        v_lshlrev_b32 v2, 2, v0
        ds_write_b32 v2, v10 offset:{k.XL % 65536}
        ds_write_b32 v2, v11 offset:{k.XL % 65536 + 1024}""".replace("v_lshlrev_b32 v2, 2, v0", f"v_lshlrev_b32 v2, 2, v0\nv_add_u32 v2, {k.XL // 65536 * 65536}, v2"))
        for tb, D in ((0, 4), (1, 30)):
            for i in range(16): a(f"v_accvgpr_read_b32 v{10+i}, a{XA+16*tb+i}")
            a("v_add_f32 v26, v10, v12\nv_add_f32 v27, v11, v13")
            for i in range(2, 8): a(f"v_add_f32 v26, v26, v{10+2*i}\nv_add_f32 v27, v27, v{11+2*i}")
            a(f"""
            v_mov_b32 v28, v26
            v_permlane32_swap_b32 v26, v28
            v_add_f32 v26, v26, v28
            v_mul_f32 v28, {fx(1/16)}, v26""")
            for i in range(8): a(f"v_sub_f32 v{10+2*i}, v{10+2*i}, v28")
            a("v_mul_f32 v29, v10, v10")
            for i in range(1, 8): a(f"v_fmac_f32 v29, v{10+2*i}, v{10+2*i}")
            a(f"""
            v_fmac_f32 v27, {fx(1/64)}, v29
            v_mov_b32 v28, v27
            v_permlane32_swap_b32 v27, v28
            v_add_f32 v27, v27, v28
            v_mov_b32 v28, {fx(1e-5)}
            v_fmac_f32 v28, {fx(1/1024)}, v27
            v_rsq_f32 v{D}, v28
            v_mul_f32 v26, {fx(-1/1024)}, v26
            v_mul_f32 v{D+1}, v26, v{D}""")
        a(f"""
        v_lshrrev_b32 v9, 5, v1
        v_lshlrev_b32 v9, 4, v9
        v_add_u32 v9, {k.XL}, v9
        s_mul_i32 s32, s25, {7*SLAB}
        s_mov_b32 s34, {fx(c1)}
        s_mov_b32 s35, {fx(c1)}
        v_mov_b32 v26, {fx(c0)}
        v_mov_b32 v27, {fx(c0)}
        v_mov_b32 v28, 1.0
        v_mov_b32 v29, 1.0
        s_waitcnt lgkmcnt(0)
        s_barrier""")
        def rdq(j, q, B):
            o = 64 * j + 32 * q
            for n, oo in enumerate((o, o + 1024, o + 448, o + 448 + 1024)): a(f"ds_read_b128 {v(B+4*n,4)}, v9 offset:{oo}")
        pk = lambda r: v(r, 2)
        def fold(j, q, B):
            for tb, D in ((0, 4), (1, 30)):
                c = k.acc(j, tb) + 4 * q
                for i in (0, 2):
                    a(f"v_pk_fma_f32 {pk(c+i)}, {pk(c+i)}, {pk(D)}, {pk(B+4+i)} op_sel_hi:[1,0,1]")
                    a(f"v_pk_fma_f32 {pk(c+8+i)}, {pk(c+8+i)}, {pk(D)}, {pk(B+12+i)} op_sel_hi:[1,0,1]")
                for i in (0, 2):
                    a(f"v_pk_fma_f32 {pk(c+i)}, {pk(B+i)}, {pk(D)}, {pk(c+i)} op_sel:[0,1,0]")
                    a(f"v_pk_fma_f32 {pk(c+8+i)}, {pk(B+8+i)}, {pk(D)}, {pk(c+8+i)} op_sel:[0,1,0]")
        for j in range(7):
            if j == 0:
                rdq(0, 0, 10); a("s_waitcnt lgkmcnt(0)"); fold(0, 0, 10)
                rdq(0, 1, 10); a("s_waitcnt lgkmcnt(0)"); fold(0, 1, 10)
            else:
                a("s_waitcnt lgkmcnt(0)"); fold(j, 0, 10); fold(j, 1, k.acc(j - 1, 0))
            if j < 6: rdq(j + 1, 0, 10)
            for tb in range(2):
                c = k.acc(j, tb)
                for i in range(0, 8, 2): a(f"v_pk_mul_f32 {pk(c+8+i)}, {pk(c+8+i)}, {pk(c+i)}")
                for i in (0, 4):
                    a(f"v_pk_mul_f32 v[0:1], {pk(c+i)}, {pk(c+i)}\nv_pk_mul_f32 v[2:3], {pk(c+i+2)}, {pk(c+i+2)}")
                    a(f"v_pk_fma_f32 v[0:1], v[0:1], s[34:35], v[26:27]\nv_pk_fma_f32 v[2:3], v[2:3], s[34:35], v[26:27]")
                    a(f"v_pk_mul_f32 {pk(c+i)}, v[0:1], {pk(c+i)}\nv_pk_mul_f32 {pk(c+i+2)}, v[2:3], {pk(c+i+2)}")
                for i in range(8): a(f"v_exp_f32 v{c+i}, v{c+i}")
                for i in range(0, 8, 2): a(f"v_pk_add_f32 {pk(c+i)}, {pk(c+i)}, v[28:29]")
                for i in range(8): a(f"v_rcp_f32 v{c+i}, v{c+i}")
                for i in range(0, 8, 2): a(f"v_pk_mul_f32 {pk(c+i)}, {pk(c+i)}, {pk(c+8+i)}")
                for i in range(4): a(f"v_cvt_pk_bf16_f32 v{c+8+i}, v{c+2*i}, v{c+2*i+1}")
                a(f"buffer_store_dwordx4 {v(c+8,4)}, v{k.VA+tb}, s[12:15], s32 offen sc1")
                if tb == 0 and j < 6: rdq(j + 1, 1, c)
            a(f"s_add_u32 s32, s32, {SLAB}")
    return k_gemm("gu_kernel", 1024, 2, 7, EXP.get("gDA", 4), EXP.get("gR", 4), 2, EXP.get("gPEEL", 4), EXP.get("gCAP", 6), EXP.get("gINIT", 11),
                  "gu", WS_Y2, "contig", False, ["tok"]*7, 8, 32, 2, 4,
                  [(40, P_WG), (42, P_WU), (44, P_WS)], setup, epi, 7168, big=True, xlds=2048, nxa=37)

NSIDE = 288
def k_attn():
    R = 4; ST = 16384
    k = Kernel("attn_kernel", 256 + NSIDE, 512, SK_LDS, 128); a = k.a
    Q0, Q1, ONES, NEG, SA, SB, O, L, P0, P1, K0, K1, V0, V1, T = 4, 8, 12, 16, 32, 48, 64, 80, 84, 88, 92, 96, 100, 104, 108
    guard(k)
    a("s_cmp_ge_u32 s2, 256\ns_cbranch_scc1 attn_side")
    stamp(k, 0)
    load_ptrs(a, [(44, P_WS)])
    a(f"""
    s_and_b32 s32, s2, 7
    s_lshr_b32 s33, s2, 3
    s_and_b32 s34, s32, 3
    s_lshl_b32 s34, s34, 3
    s_and_b32 s35, s33, 7
    s_add_u32 s24, s34, s35            ; head
    s_lshr_b32 s34, s32, 2
    s_lshl_b32 s34, s34, 2
    s_lshr_b32 s35, s33, 3
    s_add_u32 s25, s34, s35
    v_lshrrev_b32 v3, 6, v0
    v_and_b32 v1, 63, v0
    v_readfirstlane_b32 s26, v3
    v_lshlrev_b32 v2, 4, v1
    s_lshl_b32 s27, s25, 3
    s_add_u32 s27, s27, s26
    s_lshl_b32 s28, s24, 18
    s_lshl_b32 s29, s26, 11            ; wave * 2048
    s_lshl_b32 s32, s24, 6
    s_add_u32 s32, s32, s27
    s_lshl_b32 s32, s32, 11            ; Q offset
    s_waitcnt lgkmcnt(0)""")
    srd(a, 4, 44, WS_Q, 4 << 20)
    a(f"s_add_u32 s8, s44, s28\ns_addc_u32 s9, s45, 0\ns_add_u32 s8, s8, {WS_KV}\ns_addc_u32 s9, s9, 0\ns_mov_b32 s10, 0x40000\ns_mov_b32 s11, 0x20000")
    a("s_mov_b32 s30, s29")
    def dma(slot):
        return [f"s_add_u32 m0, s29, {slot*ST}", "buffer_load_dwordx4 v2, s[8:11], s30 offen lds",
                "buffer_load_dwordx4 v2, s[8:11], s30 offen offset:1024 lds", f"s_add_u32 s30, s30, {ST}"]
    a(f"buffer_load_dwordx4 {v(Q0,4)}, v2, s[4:7], s32 offen\nbuffer_load_dwordx4 {v(Q1,4)}, v2, s[4:7], s32 offen offset:1024")
    a(f"buffer_load_dwordx4 {v(K0,4)}, v2, s[8:11], 0 offen\nbuffer_load_dwordx4 {v(K1,4)}, v2, s[8:11], 0 offen offset:1024")
    for st in range(R - 1):
        for x in dma(st): a(x)
    srd(a, 12, 44, WS_O, 64 * SLAB)
    frag_off(a, 3, 27, 1, T)
    code_srd(k, 92, "attn_epi")
    a(f"v_lshlrev_b32 v{T+4}, 7, v0")
    a(f"""
    v_lshrrev_b32 v{T}, 4, v1
    v_lshrrev_b32 v{T+1}, 2, v1
    v_xor_b32 v{T}, v{T}, v{T+1}
    v_and_b32 v{T}, 1, v{T}
    v_cmp_eq_u32 vcc, 0, v{T}
    v_mov_b32 v{T+1}, 0x3f803f80
    v_cndmask_b32 v{ONES}, 0, v{T+1}, vcc""")
    for i in range(1, 4): a(f"v_mov_b32 v{ONES+i}, v{ONES}")
    for i in range(16): a(f"v_mov_b32 v{O+i}, 0")
    for i in range(4): a(f"v_mov_b32 v{L+i}, 0\nv_mov_b32 v{P1+i}, 0\nv_mov_b32 v{V1+i}, 0")
    a(f"""
    s_waitcnt vmcnt({2*(R-1)})
    v_mfma_f32_32x32x16_bf16 {v(SA,16)}, {v(K0,4)}, {v(Q0,4)}, 0
    v_mfma_f32_32x32x16_bf16 {v(SA,16)}, {v(K1,4)}, {v(Q1,4)}, {v(SA,16)}""")
    def rowmax(S, m):
        for i in range(0, 16, 2): a(f"v_max3_f32 v{m}, v{S+i}, v{S+i+1}, v{m}")
    def negbcast(m):
        a(f"v_mov_b32 v{m+1}, v{m}\nv_permlane32_swap_b32 v{m}, v{m+1}\nv_max_f32 v{m}, v{m}, v{m+1}")
        for i in range(16): a(f"v_sub_f32 v{NEG+i}, 0, v{m}")
    a(f"v_mov_b32 v{T}, v{SA}")
    rowmax(SA, T); negbcast(T)
    for i in range(16): a(f"v_sub_f32 v{SA+i}, v{SA+i}, v{T}")
    a(f"""
    s_waitcnt vmcnt({2*(R-2)})
    s_barrier
    ds_read_b128 {v(K0,4)}, v2 offset:4096
    ds_read_b128 {v(K1,4)}, v2 offset:5120
    ds_read_b128 {v(V0,4)}, v2 offset:2048""")
    cnt = Cnt()
    def it(j, E, site):
        def W(c, nm, tags):
            cnt.wait(c, (site, nm), tags)
            if E: E(f"s_waitcnt {'vmcnt' if c=='vm' else 'lgkmcnt'}({cnt.get(c,(site,nm))})")
        def X(x):
            if E: E(x)
        def RD(reg, blk, piece):
            X(f"ds_read_b128 {v(reg,4)}, v2 offset:{(blk % (4*R))*4096 + piece*1024}")
            cnt.issue("lg", (piece, blk))
        S, Sn = (SA, SB) if j % 2 == 0 else (SB, SA)
        e = lambda i: X(f"v_exp_f32 v{S+i}, v{S+i}")
        c = lambda i: X(f"v_cvt_pk_bf16_f32 v{P0+i}, v{S+2*i}, v{S+2*i+1}")
        W("lg", "k", {(0, j + 1), (3, j - 1), (1, j + 1)})
        X(f"v_mfma_f32_32x32x16_bf16 {v(Sn,16)}, {v(K0,4)}, {v(Q0,4)}, {v(NEG,16)}")
        e(0); e(1); e(2)
        X(f"v_mfma_f32_32x32x16_bf16 {v(O,16)}, {v(V1,4)}, {v(P1,4)}, {v(O,16)}")
        RD(V1, j, 3)
        e(3); c(0); e(4); c(1)
        X(f"v_mfma_f32_32x32x16_bf16 {v(Sn,16)}, {v(K1,4)}, {v(Q1,4)}, {v(Sn,16)}")
        if j % 4 == 2:
            W("vm", "bar", {("B", j // 4 + 1)})
            X("s_barrier")
        RD(K0, j + 2, 0); RD(K1, j + 2, 1)
        e(5); e(6); e(7)
        X(f"v_mfma_f32_16x16x32_bf16 {v(L,4)}, {v(ONES,4)}, {v(P1,4)}, {v(L,4)}")
        if j % 4 == 2:
            d = dma((j // 4 - 1) % R)
            X(d[0])
        c(2); c(3); e(8); e(9)
        W("lg", "v0", {(2, j)})
        X(f"v_mfma_f32_32x32x16_bf16 {v(O,16)}, {v(V0,4)}, {v(P0,4)}, {v(O,16)}")
        RD(V0, j + 1, 2)
        if j % 4 == 2:
            X(d[1]); X(d[2]); X(d[3])
            cnt.issue("vm", ("B", j // 4 - 1 + R)); cnt.issue("vm", ("B", j // 4 - 1 + R))
        if j % 16 == 3:
            X(f"buffer_load_dword v{T+5}, v{T+4}, s[92:95], 0 offen"); cnt.issue("vm", ("C",))
        e(10); e(11); c(4); e(12)
        X(f"v_mfma_f32_16x16x32_bf16 {v(L,4)}, {v(ONES,4)}, {v(P0,4)}, {v(L,4)}")
        c(5); e(13); e(14); e(15); c(6); c(7)
    def preload():
        cnt.q = {"vm": [], "lg": []}
        for st in range(R - 1):
            cnt.issue("vm", ("B", st)); cnt.issue("vm", ("B", st))
        for tg in [(0, 1), (1, 1), (2, 0)]: cnt.issue("lg", tg)
    preload()
    for j in range(64): it(j, None, j % 16)
    preload()
    stamp(k, 1)
    a("s_mov_b32 s31, 4\n.p2align 6\nattn_loop:")
    for j in range(16): it(j, a, j)
    a("s_sub_u32 s31, s31, 1\ns_cmp_lg_u32 s31, 0\ns_cbranch_scc1 attn_loop\nattn_epi:")
    stamp(k, 2)
    a(f"""
    s_waitcnt lgkmcnt(0)
    v_mfma_f32_32x32x16_bf16 {v(O,16)}, {v(V1,4)}, {v(P1,4)}, {v(O,16)}
    v_mfma_f32_16x16x32_bf16 {v(L,4)}, {v(ONES,4)}, {v(P1,4)}, {v(L,4)}
    v_mov_b32 v{T}, 0""")
    for i in range(16): a(f"v_fmac_f32 v{T}, 0, v{O+i}")
    a(f"""
    v_add_f32 v{T}, v{T}, v{L}
    v_cmp_ngt_f32 vcc, {fx(2.0**40)}, v{T}
    s_cbranch_vccnz attn_slow
attn_fin:
    v_rcp_f32 v{T}, v{L}
    s_mul_i32 s32, s24, {2*SLAB}
    s_add_u32 s33, s32, {SLAB}""")
    for i in range(16): a(f"v_mul_f32 v{O+i}, v{O+i}, v{T}")
    for i in range(8): a(f"v_cvt_pk_bf16_f32 v{O+i}, v{O+2*i}, v{O+2*i+1}")
    a(f"buffer_store_dwordx4 {v(O,4)}, v3, s[12:15], s32 offen sc1\nbuffer_store_dwordx4 {v(O+4,4)}, v3, s[12:15], s33 offen sc1")
    stamp(k, 3)
    prof_out(k, 4, 4, 26)
    a("s_endpgm")
    a(f"""
attn_slow:
    v_mov_b32 v{T}, 0xff800000
    s_mov_b32 s30, 0
attn_slow1:
    buffer_load_dwordx4 {v(K0,4)}, v2, s[8:11], s30 offen
    buffer_load_dwordx4 {v(K1,4)}, v2, s[8:11], s30 offen offset:1024
    s_waitcnt vmcnt(0)
    v_mfma_f32_32x32x16_bf16 {v(SA,16)}, {v(K0,4)}, {v(Q0,4)}, 0
    v_mfma_f32_32x32x16_bf16 {v(SA,16)}, {v(K1,4)}, {v(Q1,4)}, {v(SA,16)}""")
    rowmax(SA, T)
    a("s_add_u32 s30, s30, 4096\ns_cmp_lt_u32 s30, 0x40000\ns_cbranch_scc1 attn_slow1")
    negbcast(T)
    for i in range(16): a(f"v_mov_b32 v{O+i}, 0")
    for i in range(4): a(f"v_mov_b32 v{L+i}, 0")
    a(f"""
    s_mov_b32 s30, 0
attn_slow2:
    buffer_load_dwordx4 {v(K0,4)}, v2, s[8:11], s30 offen
    buffer_load_dwordx4 {v(K1,4)}, v2, s[8:11], s30 offen offset:1024
    buffer_load_dwordx4 {v(V0,4)}, v2, s[8:11], s30 offen offset:2048
    buffer_load_dwordx4 {v(V1,4)}, v2, s[8:11], s30 offen offset:3072
    s_waitcnt vmcnt(0)
    v_mfma_f32_32x32x16_bf16 {v(SA,16)}, {v(K0,4)}, {v(Q0,4)}, {v(NEG,16)}
    v_mfma_f32_32x32x16_bf16 {v(SA,16)}, {v(K1,4)}, {v(Q1,4)}, {v(SA,16)}""")
    for i in range(16): a(f"v_exp_f32 v{SA+i}, v{SA+i}")
    for i in range(8): a(f"v_cvt_pk_bf16_f32 v{P0+i}, v{SA+2*i}, v{SA+2*i+1}")
    a(f"""
    v_mfma_f32_32x32x16_bf16 {v(O,16)}, {v(V0,4)}, {v(P0,4)}, {v(O,16)}
    v_mfma_f32_32x32x16_bf16 {v(O,16)}, {v(V1,4)}, {v(P1,4)}, {v(O,16)}
    v_mfma_f32_16x16x32_bf16 {v(L,4)}, {v(ONES,4)}, {v(P0,4)}, {v(L,4)}
    v_mfma_f32_16x16x32_bf16 {v(L,4)}, {v(ONES,4)}, {v(P1,4)}, {v(L,4)}
    s_add_u32 s30, s30, 4096
    s_cmp_lt_u32 s30, 0x40000
    s_cbranch_scc1 attn_slow2
    s_branch attn_fin""")
    a("attn_side:")
    load_ptrs(a, [(40, P_C), (42, P_WMOD), (44, P_WS), (46, P_WG), (48, P_WU), (62, P_WO), (64, P_WD)])
    wave_lane(a)
    a("""
    s_sub_u32 s27, s2, 256
    s_lshl_b32 s32, s27, 9
    v_add_u32 v3, s32, v0
    s_waitcnt lgkmcnt(0)""")
    strip_copy_issue(a, 3, 62, 1024, 2048, 1, 0, 100)
    strip_copy_issue(a, 3, 64, 3584, 2048, 1, 16384, 108)
    prefetch(a, 3, 62, 1024 * 2048, 73728, 116)
    prefetch(a, 3, 64, 3584 * 2048, 73728 + 16384, 118)
    a("s_waitcnt vmcnt(2)")
    strip_copy_store(a, 44, WS_WO3, 1024 * 512, 100)
    strip_copy_store(a, 44, WS_WD3, 3584 * 512, 108)
    a(f"""
    s_and_b32 s32, s27, 1
    s_lshr_b32 s33, s27, 1
    s_lshl_b32 s52, s32, 9
    s_cmp_ge_u32 s33, 112
    s_cbranch_scc1 attn_side_g
    s_mov_b32 s51, 7168
    s_mul_i32 s53, s32, {2*7168*4}
    s_lshl_b32 s34, s33, 8
    s_add_u32 s53, s53, s34
    s_mov_b32 s54, {7168*4}
    s_cmp_ge_u32 s33, 56
    s_cselect_b32 s46, s48, s46
    s_cselect_b32 s47, s49, s47
    s_cselect_b32 s34, 56, 0
    s_sub_u32 s33, s33, s34
    s_mul_i32 s50, s52, s51
    s_lshl_b32 s34, s33, 7
    s_add_u32 s50, s50, s34""")
    srd(a, 8, 46, 0, 1024 * 7168); srd(a, 12, 44, WS_MODP, KS * 6144 * 4); srd(a, 16, 44, WS_UV, KS * 2 * 7168 * 4)
    skinny(k, "u", "pair", "")
    a(f"""
attn_side_g:
    s_sub_u32 s33, s33, {112-32}
    s_cmp_ge_u32 s33, 48
    s_cselect_b32 s34, 32, 0
    s_add_u32 s33, s33, s34
    s_mov_b32 s51, 12288
    s_mul_i32 s50, s52, s51
    s_lshl_b32 s34, s33, 7
    s_add_u32 s50, s50, s34
    s_mul_i32 s53, s32, {6144*4}
    s_lshl_b32 s34, s33, 8
    s_add_u32 s53, s53, s34
    s_mov_b32 s54, 0""")
    srd(a, 8, 42, 0, 1024 * 12288); srd(a, 12, 40, 0, 2048); srd(a, 16, 44, WS_MODP, KS * 6144 * 4)
    skinny(k, "g", "silu", " nt")
    finish(k)
    return k

def build(kernels, path, verbose=False):
    hdr = open("adaLN_cond__mha_block__geglu_ffn__prompt.s.ref").read().split("; Override launch")[0]
    out = hdr
    for k in kernels:
        out += f"; @launch kernel={k.name} grid=({k.grid},1,1) block=({k.block},1,1) lds={k.lds}\n"
    out += '.amdgcn_target "amdgcn-amd-amdhsa--gfx950"\n'
    for k in kernels:
        rep = []
        out += k.text(rep)
        if verbose:
            print(k.name, "vgpr", k.nv, "agpr", k.na, "lds", k.lds, "nops inserted:", len(rep))
            for r in rep:
                if "m0" not in r[1]: print("   ", r)
    out += '.section .rodata,"a"\n'
    for k in kernels: out += k.desc()
    open(path, "w").write(out)

CHECK = {"x2": "frag", "h2": False, "slab": SLAB}
def all_kernels():
    ORDER[:] = ["pre_kernel", "ln1_kernel", "qkv_kernel", "attn_kernel", "out_kernel", "gu_kernel", "down_kernel"]
    return [k_pre(), k_ln("ln1_kernel", P_X, WS_H1, 0, 1), k_qkv(), k_attn(), k_out(), k_gu(), k_down()]

if __name__ == "__main__":
    vb = False
    for x in sys.argv[2:]:
        if x == "prof": PROF = True
        elif x == "verbose": vb = True
        else:
            kk, _, vv = x.partition("="); EXP[kk] = int(vv) if vv else 1
    build(all_kernels(), sys.argv[1] if len(sys.argv) > 1 else "adaLN_cond__mha_block__geglu_ffn__prompt.s", verbose=vb)
```

```python
import re

TRANS = ("v_exp_", "v_log_", "v_rcp_", "v_rsq_", "v_sqrt_", "v_sin_", "v_cos_")

def regs_of(tok):
    tok = tok.strip()
    tok = tok.lstrip("-").strip("|")
    if tok.startswith("abs(") : tok = tok[4:-1]
    m = re.fullmatch(r"([vas])(\d+)", tok)
    if m: return {(m.group(1), int(m.group(2)))}
    m = re.fullmatch(r"([vas])\[(\d+):(\d+)\]", tok)
    if m: return {(m.group(1), i) for i in range(int(m.group(2)), int(m.group(3)) + 1)}
    if tok in ("vcc", "vcc_lo", "vcc_hi"): return {("vcc", 0)}
    if tok in ("exec", "exec_lo", "exec_hi"): return {("exec", 0)}
    if tok == "m0": return {("m0", 0)}
    return set()

class Ins:
    def __init__(self, text):
        self.text = text
        t = text.split(";")[0].strip()
        self.label = None
        self.kind = "none"
        self.w = set(); self.r = set()
        self.op = ""
        if not t or t.startswith("."):
            if t.endswith(":"): self.label = t[:-1]
            return
        if t.endswith(":"):
            self.label = t[:-1]; return
        parts = t.split(None, 1)
        op = self.op = parts[0]
        rest = parts[1] if len(parts) > 1 else ""
        ops = []; cur = ""; depth = 0
        for ch in rest:
            if ch == "[": depth += 1
            if ch == "]": depth -= 1
            if ch == "," and depth == 0: ops.append(cur.strip()); cur = ""
            else: cur += ch
        if cur.strip(): ops.append(cur.strip())
        mods = ""
        if ops:
            last = ops[-1].split(None, 1)
            ops[-1] = last[0]
            mods = last[1] if len(last) > 1 else ""
        self.ops = ops; self.mods = mods
        R = [regs_of(o) for o in ops]
        self.states = 1
        if op == "s_nop":
            self.kind = "nop"; self.states = int(ops[0], 0) + 1; return
        if op.startswith("v_mfma") or op.startswith("v_smfmac"):
            self.kind = "mfma"
            self.passes = 8 if "32x32" in op else 4
            if "4x4x4" in op: self.passes = 2
            self.w = R[0]; self.ra = R[1] | R[2]
            if op.startswith("v_smfmac"):
                self.rc = R[0]; self.ra |= R[3]
            else: self.rc = R[3]
            self.r = self.ra | self.rc
            return
        if op.startswith("v_"):
            self.kind = "valu"
            self.trans = op.startswith(TRANS)
            self.dpp = "_dpp" in op or "row_" in mods or "quad_perm" in mods
            self.perm = op.startswith("v_permlane")
            self.rdlane = op.startswith("v_readlane") or op.startswith("v_readfirstlane")
            self.dot = op.startswith("v_dot")
            if op == "v_nop": return
            self.w = set(R[0])
            srcs = R[1:]
            if re.match(r"v_(add|sub|subrev|addc|subb|subbrev)_co", op) or op.startswith("v_div_scale") or op.startswith("v_mad_u64"):
                self.w |= R[1]; srcs = R[2:]
            for s in srcs: self.r |= s
            if op.startswith(("v_fmac", "v_dot2c", "v_pk_fmac", "v_writelane")) or self.dpp or "UNUSED_PRESERVE" in mods or op.startswith(("v_fma_mixlo", "v_fma_mixhi")): self.r |= R[0]
            if self.perm and "swap" in op:
                self.w |= R[1]; self.r |= R[0]
            if op.startswith("v_cmpx"): self.w.add(("exec", 0))
            return
        if op.startswith(("buffer_", "global_", "flat_", "scratch_")):
            self.kind = "vmem"
            self.lds = " lds" in (" " + mods) or "load_lds" in op
            self.store = "store" in op or "atomic" in op
            self.wide = op.endswith(("x3", "x4")) and "store" in op
            if op.startswith(("buffer_wbl2", "buffer_inv")): return
            if self.lds:
                for s in R: self.r |= s
                self.r.add(("m0", 0))
            elif self.store:
                for s in R: self.r |= s
                self.data = R[0] if op.startswith("buffer_") else R[1]
                if "atomic" in op and "sc0" in mods: self.w = set(R[0])
            else:
                self.w = set(R[0])
                for s in R[1:]: self.r |= s
                if "d16" in op: self.r |= R[0]
            return
        if op.startswith("ds_"):
            self.kind = "ds"
            if op.startswith(("ds_read", "ds_bpermute", "ds_permute", "ds_swizzle")) or "rtn" in op:
                self.w = set(R[0])
                for s in R[1:]: self.r |= s
            else:
                for s in R: self.r |= s
            return
        if op.startswith("s_"):
            self.kind = "salu"
            if op in ("s_branch",) or op.startswith("s_cbranch"):
                self.kind = "branch"; self.target = ops[0]; return
            if op == "s_endpgm": self.kind = "end"; return
            if op.startswith(("s_waitcnt", "s_barrier", "s_setprio", "s_sleep")): return
            if op.startswith("s_cmp") or op.startswith("s_bitcmp"):
                for s in R: self.r |= s
                return
            self.w = set(R[0]) if R else set()
            for s in R[1:]: self.r |= s
            if "saveexec" in op: self.w.add(("exec", 0))
            return
        raise ValueError("cannot parse: " + text)

def isvec(x): return x[0] in ("v", "a")
def issc(x): return x[0] in ("s", "vcc")

def need(P, C):
    n = 0
    if P.kind == "valu":
        wv = {x for x in P.w if isvec(x)}; ws = {x for x in P.w if issc(x)}
        if C.kind == "mfma" and wv & C.r: n = max(n, 3 if P.dot else 2)
        if C.kind == "mfma" and ("exec", 0) in P.w: n = max(n, 4)
        if C.kind == "valu":
            if P.trans and not C.trans and wv & C.r: n = max(n, 1)
            if (C.perm or C.dpp) and wv & C.r: n = max(n, 2)
            if C.rdlane and wv & C.r: n = max(n, 1)
            if ws & C.r: n = max(n, 4 if (C.rdlane or C.op.startswith(("v_writelane", "v_div_fmas"))) else 2)
            if ("vcc", 0) in ws and C.op.startswith(("v_cndmask", "v_addc", "v_subb", "v_div_fmas")): n = max(n, 2)
            if P.dot and wv & (C.r | C.w):
                same_c = C.op == P.op and len(C.ops) >= 3 and not (wv & (regs_of(C.ops[1]) | regs_of(C.ops[2])))
                if not same_c: n = max(n, 3)
            if ("exec", 0) in P.w: n = max(n, 5)
            if ("sdwa" in P.op and "dst_sel" in P.mods or "op_sel:" in P.mods and not P.op.startswith(("v_pk", "v_fma_mix_f32")) or P.op.startswith(("v_fma_mixlo", "v_fma_mixhi"))) and wv & (C.r | C.w): n = max(n, 1)
        if C.kind == "vmem" and ws & C.r: n = max(n, 5)
        if C.kind in ("vmem", "ds") and P.dot and wv & C.r: n = max(n, 3)
    if P.kind == "mfma":
        big = {2: 5, 4: 8, 8: 12, 16: 20}[P.passes]
        if C.kind == "mfma":
            if P.w & C.ra: n = max(n, big)
            if P.w & C.rc:
                if P.w == C.rc and P.passes == C.passes: n = max(n, 2 if P.passes == 2 else 0)
                else: n = max(n, P.passes + 2)
            elif P.w & C.w and P.passes != C.passes: n = max(n, big)
        if C.kind == "valu" and P.w & (C.r | C.w): n = max(n, big)
        if C.kind in ("vmem", "ds") and P.w & (C.r | C.w): n = max(n, big)
        if C.kind == "valu" and P.rc & C.w: n = max(n, P.passes - 1)
        if C.kind in ("vmem", "ds") and P.rc & C.w: n = max(n, P.passes - 1)
    if P.kind == "salu" and ("m0", 0) in P.w and C.kind == "vmem" and C.lds: n = max(n, 1)
    if P.kind == "vmem" and getattr(P, "wide", False):
        if C.kind in ("valu", "mfma") and P.data & C.w: n = max(n, 2)
        elif P.data & C.w: n = max(n, 1)
    return n

def fix_hazards(lines, report=None):
    ins = [Ins(l) for l in lines]
    def cfg():
        labels = {x.label: i for i, x in enumerate(ins) if x.label}
        jumps = {}
        for i, x in enumerate(ins):
            if x.kind == "branch" and x.target in labels: jumps.setdefault(labels[x.target], []).append(i)
        return jumps
    jumps = cfg()
    i = 0
    while i < len(ins):
        C = ins[i]
        if C.kind in ("mfma", "valu", "vmem", "ds"):
            worst = 0
            stack = [(i, 0)]; seen = {}
            while stack:
                j, d = stack.pop()
                preds = []
                if j > 0 and not (ins[j-1].kind == "end" or ins[j-1].op == "s_branch"): preds.append(j - 1)
                preds += jumps.get(j, [])
                for p in preds:
                    P = ins[p]
                    if P.kind == "none": nd = d
                    else:
                        k = need(P, C)
                        if k - d > worst: worst = k - d; why = P
                        nd = d + P.states
                    if nd < 20 and seen.get(p, 99) > nd:
                        seen[p] = nd; stack.append((p, nd))
            if worst > 0:
                if report is not None: report.append((worst, why.text.strip(), C.text.strip()))
                new = []
                w = worst
                while w > 0:
                    k = min(w, 16); new.append(Ins(f"    s_nop {k-1}")); w -= k
                ins[i:i] = new
                i += len(new)
                jumps = cfg()
        i += 1
    return [x.text for x in ins]

class Asm:
    def __init__(self): self.l = []
    def __call__(self, s):
        for line in s.split("\n"):
            t = line.strip()
            if not t: continue
            self.l.append(t if t.endswith(":") or t.startswith(".") else "    " + t)
    def label(self, s): self.l.append(s + ":")

def rr(kind, i, n=1):
    return f"{kind}{i}" if n == 1 else f"{kind}[{i}:{i+n-1}]"
def v(i, n=1): return rr("v", i, n)
def a_(i, n=1): return rr("a", i, n)
def s(i, n=1): return rr("s", i, n)

class Cnt:
    def __init__(self):
        self.sites = {}
        self.needed = set()
        self.reset()
    def reset(self):
        self.q = {"vm": [], "lg": []}
        self.done = {"vm": -1, "lg": -1}
    def issue(self, c, tag): self.q[c].append(tag)
    def drain(self, c): self.done[c] = len(self.q[c]) - 1
    def wait(self, c, site, tags):
        q = self.q[c]
        last = -1
        for i in range(len(q) - 1, -1, -1):
            if q[i] in tags: last = i; break
        if last > self.done[c]:
            self.needed.add(site)
            self.sites[site] = min(self.sites.get(site, 99), len(q) - 1 - last)
            self.done[c] = last
    def get(self, c, site):
        if site not in self.needed: return None
        return min(self.sites[site], 62 if c == "vm" else 14)
    def text(self, c, site):
        n = self.get(c, site)
        return "" if n is None else f"s_waitcnt {'vmcnt' if c=='vm' else 'lgkmcnt'}({n})"

def merge_waits(lines):
    out = []
    for l in lines:
        t = l.strip()
        if out and t.startswith("s_waitcnt") and out[-1].strip().startswith("s_waitcnt"):
            d = {}
            for x in (out[-1], t):
                for nm, n in re.findall(r"(vmcnt|lgkmcnt)\((\d+)\)", x): d[nm] = min(d.get(nm, 99), int(n))
            out[-1] = "    s_waitcnt " + " ".join(f"{k}({n})" for k, n in d.items())
        else: out.append(l)
    return out
```

```python
import sys, math, struct
from asmlib import *

SLAB = 75776
WS_MODP = 0
WS_UV = 64 << 10
WS_STAT = 256 << 10
WS_WQ3 = 1 << 20
WS_WO3 = 5 << 19
WS_WD3 = 3 << 20
WS_H1 = 5 << 20
WS_Q = 10 << 20
WS_KV = 14 << 20
WS_O = 22 << 20
WS_X2 = 27 << 20
WS_Y2 = 32 << 20
WS_ACT = 37 << 20
WS_PROF = 56 << 20
KS = 2
P_X, P_WQKV, P_WO, P_BX, P_WG, P_WU, P_WD, P_C, P_WMOD, P_OUT, P_DBG, P_WS = [8 * i for i in range(12)]
LOG2E = 1.4426950408889634
PROF = False
EXP = {}
KID = {"qkv_kernel": 0, "out_kernel": 1, "gu_kernel": 2, "down_kernel": 3, "attn_kernel": 4}
def f2u(x): return struct.unpack("<I", struct.pack("<f", x))[0]
def fx(x): return hex(f2u(x))

class Kernel:
    def __init__(self, name, grid, block, lds, nv, na=0):
        self.name, self.grid, self.block, self.lds, self.nv, self.na = name, grid, block, lds, nv, na
        self.a = Asm()
    def text(self, report=None):
        body = fix_hazards(merge_waits(self.a.l), report)
        return (f".text\n.globl {self.name}\n.p2align 8\n.type {self.name},@function\n{self.name}:\n" + "\n".join(body) + "\n")
    def desc(self):
        acc = (self.nv + 3) // 4 * 4
        nfv = acc + self.na if self.na else self.nv
        return f""".p2align 6
.amdhsa_kernel {self.name}
  .amdhsa_next_free_vgpr {nfv}
  .amdhsa_next_free_sgpr 96
  .amdhsa_accum_offset {acc}
  .amdhsa_group_segment_fixed_size 0
  .amdhsa_kernarg_size 96
  .amdhsa_user_sgpr_count 2
  .amdhsa_user_sgpr_kernarg_segment_ptr 1
  .amdhsa_system_sgpr_workgroup_id_x 1
  .amdhsa_float_denorm_mode_32 3
  .amdhsa_float_denorm_mode_16_64 3
.end_amdhsa_kernel
"""

def stamp(k, i):
    if PROF: k.a(f"s_memtime {s(64+2*i,2)}\ns_memrealtime {s(74+2*i,2)}\ns_waitcnt lgkmcnt(0)")
def prof_out(k, n, kid, wave_s):
    if not PROF: return
    a = k.a
    a(f"s_waitcnt vmcnt(0)\ns_memtime {s(64+2*n,2)}\ns_memrealtime {s(74+2*n,2)}\ns_load_dwordx2 s[84:85], s[0:1], {P_WS}\ns_waitcnt lgkmcnt(0)")
    a(f"s_add_u32 s84, s84, {WS_PROF + kid*(1<<18)}\ns_addc_u32 s85, s85, 0\ns_mov_b32 s86, {1<<18}\ns_mov_b32 s87, 0x20000")
    a(f"s_lshl_b32 s88, s2, 3\ns_add_u32 s88, s88, s{wave_s}\ns_lshl_b32 s88, s88, 6\nv_mov_b32 v1, 0")
    for i in range(10):
        a(f"v_mov_b32 v0, s{64+2*i}\nbuffer_store_dword v0, v1, s[84:87], s88 offen offset:{4*i}")
def load_ptrs(a, pairs):
    for sreg, off in pairs: a(f"s_load_dwordx2 {s(sreg,2)}, s[0:1], {off}")
def srd(a, d, p, off, size):
    if off: a(f"s_add_u32 s{d}, s{p}, {off}\ns_addc_u32 s{d+1}, s{p+1}, 0")
    else: a(f"s_mov_b32 s{d}, s{p}\ns_mov_b32 s{d+1}, s{p+1}")
    a(f"s_mov_b32 s{d+2}, {size}\ns_mov_b32 s{d+3}, 0x20000")
def guard(k): k.a(f"s_cmp_ge_u32 s2, {k.grid}\ns_cbranch_scc1 {k.name}_end")
def finish(k): k.a(f"{k.name}_end:\ns_endpgm")
def unpack(a, dst, src, n):
    for i in range(n):
        a(f"v_lshlrev_b32 v{dst+2*i}, 16, v{src+i}\nv_and_b32 v{dst+2*i+1}, 0xffff0000, v{src+i}")
def rbf(a, x):
    a(f"v_cvt_pk_bf16_f32 v{x}, v{x}, v{x}\nv_and_b32 v{x}, 0xffff0000, v{x}")
def phys_line(a, dst, i, t):
    a(f"""
    v_mul_u32_u24 v{t}, 9363, v{i}
    v_lshrrev_b32 v{t}, 16, v{t}
    v_add_u32 v{dst}, v{i}, v{t}
    v_mul_u32_u24 v{t}, 7, v{t}
    v_sub_u32 v{t}, v{i}, v{t}
    v_add_u32 v{t}, 5, v{t}
    v_lshrrev_b32 v{t}, 3, v{t}
    v_add_lshl_u32 v{dst}, v{dst}, v{t}, 7""")
def frag_off(a, dst, srb, lane, t):
    a(f"v_lshrrev_b32 v{t}, 3, v{lane}\nv_lshl_add_u32 v{t}, s{srb}, 3, v{t}")
    phys_line(a, dst, t, t + 1)
    a(f"v_and_b32 v{t}, 7, v{lane}\nv_lshl_add_u32 v{dst}, v{t}, 4, v{dst}")
def tr_lane(a, T, lane, korder, colperm):
    a(f"""
    v_lshrrev_b32 v{T}, 5, v{lane}
    v_bfe_u32 v{T+1}, v{lane}, 4, 1
    v_bfe_u32 v{T+2}, v{lane}, 2, 2
    v_and_b32 v{T+3}, 3, v{lane}""")
    if colperm:
        a(f"v_lshrrev_b32 v{T+4}, 1, v{T+3}\nv_and_b32 v{T+3}, 1, v{T+3}\nv_lshl_add_u32 v{T+3}, v{T+3}, 1, v{T+4}")
    a(f"v_lshl_add_u32 v{T+4}, v{T}, {2 if korder=='split' else 3}, v{T+2}")
def panel_rd(a, T, e, o):
    a(f"""
    v_lshlrev_b32 v{T+4}, 7, v{T+4}
    v_lshl_add_u32 v{T+4}, v{T+1}, 5, v{T+4}
    v_lshl_add_u32 v{T+4}, v{T+3}, 3, v{T+4}
    v_lshrrev_b32 v{T+5}, 1, v{T+2}
    v_lshlrev_b32 v{T+5}, 6, v{T+5}
    v_add_u32 v{e}, v{T+4}, v{T+5}
    v_sub_u32 v{o}, v{T+4}, v{T+5}
    v_add_u32 v{o}, 64, v{o}""")
def panel_src(a, T, lane):
    a(f"""
    v_lshrrev_b32 v{T}, 3, v{lane}
    v_and_b32 v{T+1}, 7, v{lane}
    v_bfe_u32 v{T+2}, v{lane}, 4, 1
    v_lshlrev_b32 v{T+2}, 2, v{T+2}
    v_xor_b32 v{T+1}, v{T+1}, v{T+2}""")

SK_LDS = 65536 + 2048
def skinny(k, tag, mode, nt, pace=0):
    a = k.a; NV = 1 if mode == "silu" else 2
    a(f"""
    s_lshl_b32 s55, s26, 6
    s_add_u32 s56, s52, s55""")
    if mode == "silu":
        a("v_add_lshl_u32 v4, v1, s56, 1\nbuffer_load_ushort v8, v4, s[12:15], 0 offen")
    else:
        a("v_add_lshl_u32 v4, v1, s56, 2")
        for i, (p, idx) in enumerate([(0, 4), (1, 4), (0, 3), (1, 3)]):
            a(f"s_mov_b32 s57, {p*6144*4 + idx*4096}\nbuffer_load_dword v{8+i}, v4, s[12:15], s57 offen")
    panel_src(a, 5, 1)
    a(f"""
    v_add_u32 v5, s55, v5
    v_mul_lo_u32 v5, v5, s51
    v_lshl_add_u32 v5, v6, 4, v5
    s_lshl_b32 s57, s26, 13
    s_lshl_b32 s58, s51, 3""")
    for g in range(8):
        a(f"s_add_u32 m0, s57, {1024*g}\ns_nop 0\nbuffer_load_dwordx4 v5, s[8:11], s50 offen{nt} lds\ns_add_u32 s50, s50, s58")
        if pace and g < 7: a(f"s_waitcnt vmcnt({pace-1})")
    tr_lane(a, 12, 1, "contig", False)
    panel_rd(a, 12, 18, 19)
    a(f"""
    v_add_u32 v18, s57, v18
    v_add_u32 v19, s57, v19
    s_lshl_b32 s58, s26, 8
    s_add_u32 s58, s58, 0x10000
    v_lshl_add_u32 v6, v1, 1, s58
    v_and_b32 v7, 31, v1
    v_lshrrev_b32 v12, 5, v1
    v_lshlrev_b32 v12, 4, v12
    v_lshl_add_u32 v12, v7, 7, v12
    v_add_u32 v12, s58, v12
    s_waitcnt vmcnt(8)""")
    if mode == "silu":
        a(f"""
        v_lshlrev_b32 v8, 16, v8
        v_mul_f32 v9, {fx(-LOG2E)}, v8
        v_exp_f32 v9, v9
        v_add_f32 v9, 1.0, v9
        v_rcp_f32 v9, v9
        v_mul_f32 v8, v8, v9
        v_cvt_pk_bf16_f32 v8, v8, v8
        ds_write_b16 v6, v8""")
    else:
        a("v_add_f32 v8, v8, v9\nv_add_f32 v10, v10, v11")
        rbf(a, 8)
        a("v_add_f32 v8, 1.0, v8\nv_cvt_pk_bf16_f32 v8, v8, v8\nv_cvt_pk_bf16_f32 v10, v10, v10\nds_write_b16 v6, v8\nds_write_b16 v6, v10 offset:128")
    for i in range(16): a(f"v_mov_b32 v{20+i}, 0")
    a(f"""
    v_cmp_gt_u32 vcc, {NV}, v7
    s_waitcnt lgkmcnt(0)
    s_and_saveexec_b64 s[60:61], vcc""")
    for sub in range(4): a(f"ds_read_b128 {v(20+4*sub,4)}, v12 offset:{32*sub}")
    a("s_mov_b64 exec, s[60:61]\ns_waitcnt vmcnt(0)")
    for sub in range(4):
        for j in range(2):
            for r_ in range(2):
                a(f"ds_read_b64_tr_b16 {v(36+8*sub+4*j+2*r_,2)}, v{18+j} offset:{128*(16*sub+4*r_)}")
    for sub in range(4):
        a(f"s_waitcnt lgkmcnt({12-4*sub})")
        for j in range(2):
            c = v(68 + 16 * j, 16)
            a(f"v_mfma_f32_32x32x16_bf16 {c}, {v(20+4*sub,4)}, {v(36+8*sub+4*j,4)}, {c if sub else 0}")
    a(f"""
    v_lshl_add_u32 v6, v1, 2, s57
    v_cmp_gt_u32 vcc, 32, v1
    s_and_saveexec_b64 s[60:61], vcc""")
    for j in range(2):
        for q in range(NV): a(f"ds_write_b32 v6, v{68+16*j+q} offset:{256*q+128*j}")
    a(f"""
    s_mov_b64 exec, s[60:61]
    s_waitcnt lgkmcnt(0)
    s_barrier
    s_cmp_ge_u32 s26, {NV}
    s_cbranch_scc1 {k.name}_end
    s_lshl_b32 s57, s26, 8
    v_lshl_add_u32 v6, v1, 2, s57""")
    for w in range(8): a(f"ds_read_b32 v{8+w}, v6 offset:{8192*w}")
    a(f"s_mul_i32 s57, s26, s54\ns_add_u32 s53, s53, s57\nv_lshlrev_b32 v6, 2, v1\ns_waitcnt lgkmcnt(0)")
    for w in (4, 2, 1):
        for i in range(w): a(f"v_add_f32 v{8+i}, v{8+i}, v{8+w+i}")
    a("buffer_store_dword v8, v6, s[16:19], s53 offen\ns_endpgm")

def prefetch(a, gid, ps, nbytes, start, vt, srd_s=20):
    srd(a, srd_s, ps, 0, nbytes)
    a(f"""
    v_subrev_u32 v{vt}, {start}, v{gid}
    v_cmp_gt_u32 vcc, {nbytes//128}, v{vt}
    v_lshlrev_b32 v{vt}, 7, v{vt}
    v_mov_b32 v{vt+1}, 0x80000000
    v_cndmask_b32 v{vt}, v{vt+1}, v{vt}, vcc
    buffer_load_dword v{vt+1}, v{vt}, {s(srd_s,4)}, 0 offen""")

def strip_copy_issue(a, gid, ps, K, ldb, npan, start, vt, srd_s=20):
    srd(a, srd_s, ps, 0, K * ldb)
    n = 2 * npan
    a(f"""
    v_subrev_u32 v{vt}, {start}, v{gid}
    v_cmp_gt_u32 vcc, {K*n*8}, v{vt}
    v_and_b32 v{vt+1}, 7, v{vt}
    v_lshrrev_b32 v{vt}, 3, v{vt}""")
    if npan == 1:
        a(f"v_lshrrev_b32 v{vt+2}, 1, v{vt}\nv_and_b32 v{vt+3}, 1, v{vt}\nv_lshlrev_b32 v{vt+3}, 10, v{vt+3}")
    else:
        a(f"""
        v_mul_u32_u24 v{vt+2}, 10923, v{vt}
        v_lshrrev_b32 v{vt+2}, 16, v{vt+2}
        v_mul_u32_u24 v{vt+3}, 6, v{vt+2}
        v_sub_u32 v{vt+3}, v{vt}, v{vt+3}
        v_lshlrev_b32 v{vt+4}, 11, v{vt+3}
        v_add_u32 v{vt+3}, 5, v{vt+3}
        v_lshrrev_b32 v{vt+3}, 3, v{vt+3}
        v_mul_u32_u24 v{vt+3}, {6144-1024}, v{vt+3}
        v_sub_u32 v{vt+3}, v{vt+4}, v{vt+3}""")
    a(f"""
    v_mul_u32_u24 v{vt+2}, {ldb}, v{vt+2}
    v_add3_u32 v{vt+2}, v{vt+2}, v{vt+3}, 0
    v_lshl_add_u32 v{vt+2}, v{vt+1}, 4, v{vt+2}
    v_add_u32 v{vt+2}, 384, v{vt+2}
    v_mov_b32 v{vt+3}, 0x80000000
    v_cndmask_b32 v{vt+2}, v{vt+3}, v{vt+2}, vcc
    v_lshlrev_b32 v{vt}, 8, v{vt}
    v_lshl_add_u32 v{vt}, v{vt+1}, 4, v{vt}
    v_cndmask_b32 v{vt}, v{vt+3}, v{vt}, vcc
    buffer_load_dwordx4 {v(vt+4,4)}, v{vt+2}, {s(srd_s,4)}, 0 offen""")
def strip_copy_store(a, ws_s, off, size, vt, srd_s=20):
    srd(a, srd_s, ws_s, off, size)
    a(f"buffer_store_dwordx4 {v(vt+4,4)}, v{vt}, {s(srd_s,4)}, 0 offen sc1")

ORDER = []
def code_srd(k, d, start, upto=None, nwg=8):
    if EXP.get("nocpf"): nwg = 0
    i = ORDER.index(k.name)
    end = upto or (ORDER[min(i + 1, len(ORDER) - 1)] + "_end")
    lab = f"{k.name}_pc{d}"
    k.a(f"""
    s_getpc_b64 {s(d,2)}
{lab}:
    s_add_u32 s{d}, s{d}, {start}-{lab}
    s_addc_u32 s{d+1}, s{d+1}, 0
    s_mov_b32 s{d+2}, {end}-{start}+4
    s_cmp_lt_u32 s2, {nwg}
    s_cselect_b32 s{d+2}, s{d+2}, 0
    s_mov_b32 s{d+3}, 0x20000""")
def wave_lane(a):
    a("v_lshrrev_b32 v2, 6, v0\nv_and_b32 v1, 63, v0\nv_readfirstlane_b32 s26, v2")

def red32(a, x, t):
    for m in ("quad_perm:[1,0,3,2]", "quad_perm:[2,3,0,1]", "row_half_mirror", "row_mirror"):
        a(f"v_add_f32_dpp v{x}, v{x}, v{x} {m} row_mask:0xf bank_mask:0xf")
    a(f"v_mov_b32 v{t}, v{x}\nv_permlane16_swap_b32 v{x}, v{t}\nv_add_f32 v{x}, v{x}, v{t}")

QPRE = 256
def k_pre():
    k = Kernel("pre_kernel", 256, 512, SK_LDS, 104); a = k.a
    guard(k)
    code_srd(k, 88, "pre_kernel_top", ORDER[-1] + "_end")
    a("v_lshlrev_b32 v100, 7, v0\nbuffer_load_dword v101, v100, s[88:91], 0 offen\npre_kernel_top:")
    load_ptrs(a, [(40, P_C), (42, P_WMOD), (44, P_WS), (46, P_WQKV), (48, P_X)])
    wave_lane(a)
    a(f"""
    s_cmp_ge_u32 s2, 128
    s_cbranch_scc1 pre_side
    s_and_b32 s32, s2, 1
    s_lshr_b32 s33, s2, 1
    s_cmp_ge_u32 s33, 32
    s_cselect_b32 s34, 16, 0
    s_add_u32 s33, s33, s34
    s_lshl_b32 s52, s32, 9
    s_mov_b32 s51, 12288
    s_mul_i32 s50, s52, s51
    s_lshl_b32 s34, s33, 7
    s_add_u32 s50, s50, s34
    s_mul_i32 s53, s32, {6144*4}
    s_lshl_b32 s34, s33, 8
    s_add_u32 s53, s53, s34
    s_mov_b32 s54, 0
    s_waitcnt lgkmcnt(0)""")
    srd(a, 8, 42, 0, 1024 * 12288); srd(a, 12, 40, 0, 2048); srd(a, 16, 44, WS_MODP, KS * 6144 * 4)
    skinny(k, "m", "silu", " nt")
    a("""
pre_side:
    s_sub_u32 s27, s2, 128
    s_lshl_b32 s32, s27, 9
    v_add_u32 v3, s32, v0""")
    if not EXP.get("fuse1", 1):
        a("s_waitcnt lgkmcnt(0)")
        strip_copy_issue(a, 3, 46, 1024, 6144, 3, 0, 8)
        prefetch(a, 3, 46, 1024 * 6144, 65536 - 49152, 20)
        prefetch(a, 3, 48, 2048 * 2048, 0, 24)
        a("s_waitcnt vmcnt(2)")
        strip_copy_store(a, 44, WS_WQ3, 1024 * 1536, 8)
        finish(k)
        return k
    a(f"""
    v_lshrrev_b32 v1, 5, v0
    v_and_b32 v2, 31, v0               ; chunk
    s_lshl_b32 s24, s27, 4
    v_add_u32 v4, s24, v1
    v_lshlrev_b32 v4, 11, v4
    v_lshl_add_u32 v4, v2, 4, v4
    s_waitcnt lgkmcnt(0)""")
    srd(a, 4, 48, 0, 2048 * 2048); srd(a, 12, 44, WS_H1, 64 * SLAB)
    for i in range(4): a(f"buffer_load_dwordx4 {v(8+4*i,4)}, v4, s[4:7], 0 offen offset:{512*i} nt")
    strip_copy_issue(a, 3, 46, 1024, 6144, 3, 0, 64)
    prefetch(a, 3, 46, QPRE * 6144, 65536 - QPRE * 48, 72)
    a(f"""
    s_lshr_b32 s25, s27, 1
    s_lshl_b32 s25, s25, 3
    s_and_b32 s26, s27, 1
    s_lshl_b32 s26, s26, 1
    s_add_u32 s25, s25, s26
    v_bfe_u32 v26, v0, 4, 1
    v_lshl_add_u32 v26, v26, 2, s25
    v_bfe_u32 v27, v0, 3, 1
    v_add_u32 v26, v26, v27""")
    phys_line(a, 25, 26, 27)
    a(f"""
    v_and_b32 v26, 7, v0
    v_lshl_add_u32 v25, v26, 4, v25
    s_mov_b32 s25, {SLAB}
    v_mul_lo_u32 v27, v1, s25
    v_add_u32 v25, v25, v27
    v_lshrrev_b32 v27, 4, v0
    v_mul_u32_u24 v27, 272, v27
    v_and_b32 v26, 15, v0
    v_lshl_add_u32 v27, v26, 4, v27
    v_mul_u32_u24 v28, 272, v2
    v_lshl_add_u32 v28, v1, 4, v28
    s_waitcnt vmcnt(2)""")
    unpack(a, 32, 8, 16)
    a("v_add_f32 v6, v32, v33\nv_add_f32 v7, v34, v35")
    for i in range(4, 32): a(f"v_add_f32 v{6+i%2}, v{6+i%2}, v{32+i}")
    a("v_add_f32 v6, v6, v7")
    red32(a, 6, 7)
    a(f"v_mul_f32 v6, {fx(1/1024)}, v6")
    for i in range(32): a(f"v_sub_f32 v{32+i}, v{32+i}, v6")
    a("v_mul_f32 v6, v32, v32\nv_mul_f32 v7, v33, v33")
    for i in range(2, 32): a(f"v_fmac_f32 v{6+i%2}, v{32+i}, v{32+i}")
    a("v_add_f32 v6, v6, v7")
    red32(a, 6, 7)
    a(f"""
    v_mov_b32 v7, {fx(1e-5)}
    v_fmac_f32 v7, {fx(1/1024)}, v6
    v_rsq_f32 v6, v7""")
    for i in range(4):
        for j in range(8): a(f"v_mul_f32 v{32+8*i+j}, v{32+8*i+j}, v6")
        for j in range(4): a(f"v_cvt_pk_f16_f32 v{8+4*i+j}, v{32+8*i+2*j}, v{33+8*i+2*j}")
        a(f"ds_write_b128 v28, {v(8+4*i,4)} offset:{32*272*i}")
    a("s_waitcnt lgkmcnt(0)\ns_barrier")
    for i in range(4): a(f"ds_read_b128 {v(32+4*i,4)}, v27 offset:{32*272*i}")
    for i in range(4):
        a(f"s_mov_b32 s25, {16*SLAB*i}\ns_waitcnt lgkmcnt({3-i})\nbuffer_store_dwordx4 {v(32+4*i,4)}, v25, s[12:15], s25 offen sc1")
    a("s_waitcnt vmcnt(5)")
    strip_copy_store(a, 44, WS_WQ3, 1024 * 1536, 64)
    finish(k)
    return k

def k_ln(name, src_ptr, dst_off, shift_idx, scale_idx):
    k = Kernel(name, 256, 256, 8192 + 128 * 144, 128); a = k.a
    guard(k)
    load_ptrs(a, [(40, src_ptr), (44, P_WS)])
    code_srd(k, 88, name + "_end")
    a("v_lshlrev_b32 v30, 7, v0\nbuffer_load_dword v31, v30, s[88:91], 0 offen")
    a(f"""
    v_lshrrev_b32 v1, 5, v0
    v_and_b32 v2, 31, v0               ; chunk
    s_lshl_b32 s24, s2, 3
    v_add_u32 v3, s24, v1              ; row
    v_lshlrev_b32 v4, 11, v3
    v_lshl_add_u32 v4, v2, 4, v4
    v_lshlrev_b32 v5, 4, v0            ; tid*16
    s_waitcnt lgkmcnt(0)""")
    srd(a, 4, 40, 0, 2048 * 2048); srd(a, 8, 44, WS_MODP, KS * 6144 * 4); srd(a, 12, 44, dst_off, 64 * SLAB)
    for p in range(KS):
        a(f"s_mov_b32 s25, {p*6144*4 + scale_idx*4096}\nbuffer_load_dwordx4 {v(96+8*p,4)}, v5, s[8:11], s25 offen")
        a(f"s_mov_b32 s25, {p*6144*4 + shift_idx*4096}\nbuffer_load_dwordx4 {v(100+8*p,4)}, v5, s[8:11], s25 offen")
    for i in range(4): a(f"buffer_load_dwordx4 {v(8+4*i,4)}, v4, s[4:7], 0 offen offset:{512*i}")
    a(f"""
    s_lshr_b32 s25, s2, 2
    s_lshl_b32 s25, s25, 3
    s_and_b32 s26, s2, 3
    s_add_u32 s25, s25, s26
    v_bfe_u32 v26, v0, 3, 1
    v_lshl_add_u32 v26, v26, 2, s25""")
    phys_line(a, 25, 26, 27)
    a(f"""
    v_and_b32 v26, 7, v0
    v_lshl_add_u32 v25, v26, 4, v25
    v_lshrrev_b32 v27, 4, v0
    s_mov_b32 s25, {SLAB}
    v_mul_lo_u32 v27, v27, s25
    v_add_u32 v25, v25, v27
    v_lshrrev_b32 v27, 3, v0
    v_mul_u32_u24 v27, 144, v27
    v_lshl_add_u32 v27, v26, 4, v27
    v_mul_u32_u24 v28, 144, v2
    v_lshl_add_u32 v28, v1, 4, v28
    s_waitcnt vmcnt(4)""")
    for p in range(1, KS):
        for j in range(8): a(f"v_add_f32 v{96+j}, v{96+j}, v{96+8*p+j}")
    for j in range(4): a(f"v_cvt_pk_bf16_f32 v{112+j}, v{96+2*j}, v{97+2*j}")
    unpack(a, 96, 112, 4)
    for j in range(4): a(f"v_add_f32 v{96+j}, 1.0, v{96+j}")
    for j in range(2): a(f"v_cvt_pk_bf16_f32 v{112+j}, v{96+2*j}, v{97+2*j}")
    unpack(a, 96, 112, 2)
    a("ds_write_b128 v5, v[96:99]\nds_write_b128 v5, v[100:103] offset:4096")
    a("s_waitcnt vmcnt(0)")
    unpack(a, 32, 8, 16)
    a("v_add_f32 v6, v32, v33\nv_add_f32 v7, v34, v35")
    for i in range(4, 32): a(f"v_add_f32 v{6+i%2}, v{6+i%2}, v{32+i}")
    a("v_add_f32 v6, v6, v7")
    red32(a, 6, 7)
    a(f"v_mul_f32 v6, {fx(1/1024)}, v6")
    for i in range(32): a(f"v_sub_f32 v{32+i}, v{32+i}, v6")
    a("v_mul_f32 v6, v32, v32\nv_mul_f32 v7, v33, v33")
    for i in range(2, 32): a(f"v_fmac_f32 v{6+i%2}, v{32+i}, v{32+i}")
    a("v_add_f32 v6, v6, v7")
    red32(a, 6, 7)
    a(f"""
    v_mov_b32 v7, {fx(1e-5)}
    v_fmac_f32 v7, {fx(1/1024)}, v6
    v_rsq_f32 v6, v7
    v_lshlrev_b32 v24, 5, v2
    s_waitcnt lgkmcnt(0)
    s_barrier""")
    for i in range(4):
        a(f"ds_read_b128 {v(64+16*i,4)}, v24 offset:{1024*i}\nds_read_b128 {v(68+16*i,4)}, v24 offset:{1024*i+16}")
        a(f"ds_read_b128 {v(72+16*i,4)}, v24 offset:{4096+1024*i}\nds_read_b128 {v(76+16*i,4)}, v24 offset:{4096+1024*i+16}")
    for i in range(32): a(f"v_mul_f32 v{32+i}, v{32+i}, v6")
    for i in range(4):
        a(f"s_waitcnt lgkmcnt({12-4*i+i})")
        for j in range(8): a(f"v_fma_f32 v{32+8*i+j}, v{32+8*i+j}, v{64+16*i+j}, v{72+16*i+j}")
        for j in range(4): a(f"v_cvt_pk_bf16_f32 v{8+4*i+j}, v{32+8*i+2*j}, v{33+8*i+2*j}")
        a(f"ds_write_b128 v28, {v(8+4*i,4)} offset:{8192+32*144*i}")
    a("s_waitcnt lgkmcnt(0)\ns_barrier")
    for i in range(4): a(f"ds_read_b128 {v(32+4*i,4)}, v27 offset:{8192+32*144*i}")
    for i in range(4):
        a(f"s_mov_b32 s25, {16*SLAB*i}\ns_waitcnt lgkmcnt({3-i})\nbuffer_store_dwordx4 {v(32+4*i,4)}, v25, s[12:15], s25 offen sc1")
    finish(k)
    return k

def tile_map(a, TM, TN, xm, xn):
    tm_per, tn_per = TM // xm, TN // xn
    assert tm_per & (tm_per - 1) == 0
    a(f"""
    s_and_b32 s32, s2, 7
    s_lshr_b32 s33, s2, 3
    s_lshr_b32 s34, s32, {xn.bit_length()-1}
    s_and_b32 s35, s32, {xn-1}
    s_and_b32 s24, s33, {tm_per-1}
    s_lshr_b32 s25, s33, {tm_per.bit_length()-1}
    s_mul_i32 s34, s34, {tm_per}
    s_add_u32 s24, s24, s34
    s_mul_i32 s35, s35, {tn_per}
    s_add_u32 s25, s25, s35""")
    wave_lane(a)

def k_gemm(name, K, MB, NB, DA, R, U, PEEL, CAP, INIT, btype, a_off, korder, colperm, orient, TM, TN, xm, xn,
           ptrs, setup, epilogue, ldb, alt=None, big=False, ntemp=24, xlds=0, nxa=0, FB=1, mod=False):
    S = K // 16; NST = K // 64; WG = EXP.get(name[0] + 'WG', 2 if mod else 1)
    assert (NST - PEEL) % U == 0 and (4 * U) % DA == 0 and (4 * PEEL) % DA == 0 and (4 * U) % FB == 0 and (4 * PEEL) % FB == 0
    if btype == "panel":
        NP = NB // 2; STAGE = NP * 8192; ND = 2 * NP
    else:
        UPOFF = 16 * (64 * 14 + 8); STAGE = 2 * UPOFF; ND = 7
    VRE0, VRO0, VRE, VRO, VA = 3, 4, 5, 6, 7
    VB = VA + MB
    nfix = VB + ND
    if big:
        ACC = 256 - 16 * NB * MB; fk = "a"; BF = 0; AR = 4 * NB * FB; XA = AR + 4 * MB * DA; na = XA + nxa; nv = 256
        TMP = (nfix + 1) // 2 * 2; assert TMP + 14 <= ACC
    else:
        TMP = (nfix + 3) // 4 * 4
        ACC = (TMP + ntemp + 3) // 4 * 4
        fk = "v"; BF = ACC + 16 * NB * MB; AR = BF + 4 * NB * FB; nv = AR + 4 * MB * DA; na = 0; XA = None
        if mod: CM0 = nv; HF = CM0 + 32; VC = HF + 8; nv = VC + 1
    k = Kernel(name, TM * TN, 256, STAGE * R + xlds, nv, na); a = k.a
    k.ACC, k.TMP, k.MB, k.NB, k.BF, k.AR, k.VA, k.XL, k.XA = ACC, TMP, MB, NB, BF, AR, VA, STAGE * R, XA
    acc = lambda j, tb: ACC + 16 * (j * MB + tb)
    k.acc = acc
    guard(k)
    stamp(k, 0)
    load_ptrs(a, ptrs)
    tile_map(a, TM, TN, xm, xn)
    T = TMP
    a(f"s_lshl_b32 s37, s24, 2\ns_add_u32 s37, s37, s26\ns_mul_i32 s37, s37, {MB}")
    rd_rows = 8 if korder == "split" else 4
    if btype == "panel":
        off_alt, ldb_alt, pst_alt, sst_alt = alt
        a(f"""
        s_and_b32 s32, s25, 7
        s_lshr_b32 s33, s25, 3
        s_mul_i32 s33, s33, {sst_alt}
        s_lshl_b32 s34, s25, 7
        s_mov_b32 s51, {ldb}
        s_mov_b32 s52, 2048
        s_cmp_eq_u32 s32, {3 if not EXP.get('noalt') else 99}
        s_cselect_b32 s50, s33, s34
        s_cselect_b32 s51, {ldb_alt}, s51
        s_cselect_b32 s52, {pst_alt}, s52
        s_cselect_b32 s53, 1, 0
        s_lshl_b32 s39, s51, 6
        s_lshl_b32 s54, s51, 3""")
        panel_src(a, T, 1)
        a(f"""
        s_lshl_b32 s32, s26, 4
        v_add_u32 v{T}, s32, v{T}
        v_mul_lo_u32 v{T}, v{T}, s51
        v_lshl_add_u32 v{T}, v{T+1}, 4, v{T}
        v_add_u32 v{VB}, s50, v{T}
        v_add_u32 v{VB+1}, s54, v{VB}""")
        for p in range(1, NP):
            a(f"v_add_u32 v{VB+2*p}, s52, v{VB+2*p-2}\nv_add_u32 v{VB+2*p+1}, s52, v{VB+2*p-1}")
        dma_lds = [p * 8192 + g * 1024 for p in range(NP) for g in range(2)]
        a("s_lshl_b32 s36, s26, 11")
    else:
        a(f"""
        s_and_b32 s32, s26, 1
        s_mul_i32 s33, s32, {32*ldb}
        s_mul_i32 s34, s25, 224
        s_add_u32 s33, s33, s34
        s_mov_b32 s39, {64*ldb}""")
        for i in range(7):
            a(f"""
            v_add_u32 v{T}, {64*i}, v1
            v_mul_u32_u24 v{T+1}, 4682, v{T}
            v_lshrrev_b32 v{T+1}, 16, v{T+1}
            v_lshl_add_u32 v{T}, v{T}, 4, s33
            v_mul_u32_u24 v{T+1}, {ldb-224}, v{T+1}
            v_add_u32 v{VB+i}, v{T}, v{T+1}""")
        dma_lds = [1024 * i for i in range(7)]
        a(f"""
        s_mul_i32 s36, s32, 7168
        s_lshr_b32 s33, s26, 1
        s_mul_i32 s33, s33, {UPOFF}
        s_add_u32 s36, s36, s33""")
    for tb in range(MB):
        if tb: a(f"s_add_u32 s32, s37, {tb}")
        frag_off(a, VA + tb, 32 if tb else 37, 1, T)
    a(f"""
    s_mov_b32 s27, 0
    s_mov_b32 s28, 0
    s_mov_b32 s29, s36
    s_add_u32 s38, s36, {R*STAGE}
    s_mov_b32 s31, {(R-1)*STAGE}
    s_waitcnt lgkmcnt(0)""")
    srd(a, 4, 44, a_off, S * SLAB)
    if btype == "panel":
        a(f"""
        s_add_u32 s32, s44, {off_alt}
        s_addc_u32 s33, s45, 0
        s_cmp_eq_u32 s53, 1
        s_cselect_b32 s8, s32, s40
        s_cselect_b32 s9, s33, s41
        s_mul_i32 s10, s51, {K}
        s_mov_b32 s11, 0x20000""")
    else:
        a("s_cmp_ge_u32 s26, 2\ns_cselect_b32 s8, s42, s40\ns_cselect_b32 s9, s43, s41")
        a(f"s_mov_b32 s10, {K*ldb}\ns_mov_b32 s11, 0x20000")

    def late_setup():
        code_srd(k, 92, name + "_epi")
        a("v_lshlrev_b32 v2, 7, v0")
        tr_lane(a, T, 1, korder, colperm)
        if btype == "panel": panel_rd(a, T, VRE0, VRO0)
        else:
            a(f"""
            v_mul_u32_u24 v{T+4}, 224, v{T+4}
            v_lshl_add_u32 v{T+4}, v{T+3}, 3, v{T+4}
            v_mul_u32_u24 v{T+5}, {UPOFF}, v{T+1}
            v_add_u32 v{VRE0}, v{T+4}, v{T+5}""")
    if btype == "panel":
        def rd(j, sub, r_): return (VRE if j % 2 == 0 else VRO), (j // 2) * 8192 + 128 * (16 * sub + rd_rows * r_)
    else:
        def rd(j, sub, r_): return VRE, 32 * j + 224 * (16 * sub + rd_rows * r_)

    BOFF = 4 - FB
    def make_ops(extra):
        ops = []
        for ta in range(S + DA + 8):
            for tb in range(MB):
                ins = [f"buffer_load_dwordx4 {rr(fk, AR+4*(MB*(ta%DA)+tb), 4)}, v{VA+tb}, s[4:7], s27 offen"]
                if tb == MB - 1: ins.append(f"s_add_u32 s27, s27, {SLAB}")
                ops.append([ta - (1 if mod else 0), ta + (0 if mod else 1) - DA, len(ops), ins, ("A", ta)])
        for st in range(NST + R + 2):
            for i in range(ND):
                ins = [f"s_add_u32 m0, s29, {dma_lds[i]}", f"buffer_load_dwordx4 v{VB+i}, s[8:11], s28 offen lds"]
                if i == ND - 1:
                    ins += ["s_add_u32 s28, s28, s39", f"s_add_u32 s29, s29, {STAGE}", "s_cmp_eq_u32 s29, s38\ns_cselect_b32 s29, s36, s29"]
                ops.append([4 * st - FB - 0.5, 4 * (st + 2 - R) - FB + i * 4 // ND, len(ops), ins, ("B", st)])
        for need, ins in extra: ops.append([need, -999, len(ops), ins, ("X",)])
        ops.sort(key=lambda o: (o[0], o[2]))
        return ops

    cnt = Cnt()
    def run(emit):
        def E(x):
            if emit: emit(x)
        extra = setup(k, emit)
        ops = make_ops(extra)
        def take(t, cap):
            got = []
            for o in ops:
                if len(got) >= cap: break
                if o[1] <= t: got.append(o)
            for o in got: ops.remove(o)
            fl = []
            for o in got:
                for x in o[3]: fl.append((x, o[4] if x.startswith("buffer_") else None))
            return fl
        def W(site, c, nm, tags):
            cnt.wait(c, (site, nm), tags)
            E(cnt.text(c, (site, nm)))
        def flush(fill, n):
            for _ in range(n):
                if not fill: return
                x, tag = fill.pop(0)
                if x == "W": W(*tag); continue
                E(x)
                if tag and tag[0] == "L": cnt.issue("lg", tag[1])
                elif tag: cnt.issue("vm", tag)
        def barrier(site, st):
            W(site, "vm", "bar", {("B", st)})
            E("s_barrier")
            E(f"s_add_u32 s31, s31, {STAGE}\ns_cmp_eq_u32 s31, {R*STAGE}\ns_cselect_b32 s31, 0, s31\nv_add_u32 v{VRE}, s31, v{VRE0}")
            if btype == "panel": E(f"v_add_u32 v{VRO}, s31, v{VRO0}")
        def reads(tt, j):
            for r_ in range(2):
                base, off = rd(j, tt % 4, r_)
                E(f"ds_read_b64_tr_b16 {rr(fk, BF+4*(NB*(tt%FB)+j)+2*r_, 2)}, v{base} offset:{off}")
                cnt.issue("lg", ("F", tt, j))
        def cread(tt):
            base = (tt if tt < 4 * PEEL + 2 else 4 * PEEL + (tt - 4 * PEEL - 2) % (4 * U) + 2) * 128
            out = []; CM = CM0 + 16 * (tt % 2)
            for n in range(4): out.append((f"ds_read_b128 {v(CM+4*n,4)}, v{VC} offset:{base+16*n}", ("L", ("C", tt))))
            return out
        def xform(tt):
            r = AR + 4 * (tt % DA); out = []; CM = CM0 + 16 * (tt % 2)
            for i in range(8):
                out.append((f"v_fma_mix_f32 v{CM+8+i}, v{r+i//2}, v{CM+i}, v{CM+8+i} " + ("op_sel:[1,0,0] " if i % 2 else "") + "op_sel_hi:[1,0,0]", None))
            for i in range(4): out.append((f"v_cvt_pk_bf16_f32 v{HF+4*(tt%2)+i}, v{CM+8+2*i}, v{CM+9+2*i}", None))
            return out
        if mod:
            if emit:
                srd(a, 20, 44, WS_MODP, KS * 6144 * 4)
                a(f"v_lshlrev_b32 v{VC}, 4, v0")
            for p in range(KS):
                for n, idx in enumerate((1, 0)):
                    E(f"s_mov_b32 s32, {p*6144*4 + idx*4096}\nbuffer_load_dwordx4 {v(ACC+8*p+4*n,4)}, v{VC}, s[20:23], s32 offen")
                    cnt.issue("vm", ("M",))
        flush(take(-FB - 1, INIT), 999)
        if mod:
            if emit:
                a(f"""
                v_lshrrev_b32 v{ACC+24}, 1, v0
                v_lshlrev_b32 v{ACC+24}, 6, v{ACC+24}
                v_and_b32 v{ACC+25}, 1, v0
                v_lshl_add_u32 v{ACC+24}, v{ACC+25}, 4, v{ACC+24}
                v_add_u32 v{ACC+24}, {STAGE*R}, v{ACC+24}
                v_lshrrev_b32 v{VC}, 5, v1
                v_lshlrev_b32 v{VC}, 6, v{VC}
                v_add_u32 v{VC}, {STAGE*R}, v{VC}""")
        if emit:
            late_setup()
        if mod:
            W("pro", "vm", "M", {("M",)})
            if emit:
                for j in range(8): a(f"v_add_f32 v{ACC+j}, v{ACC+j}, v{ACC+8+j}")
                for j in range(4): a(f"v_cvt_pk_bf16_f32 v{ACC+16+j}, v{ACC+2*j}, v{ACC+2*j+1}")
                unpack(a, ACC, ACC + 16, 4)
                for j in range(4): a(f"v_add_f32 v{ACC+j}, 1.0, v{ACC+j}")
                for j in range(2): a(f"v_cvt_pk_bf16_f32 v{ACC+16+j}, v{ACC+2*j}, v{ACC+2*j+1}")
                unpack(a, ACC, ACC + 16, 2)
                a(f"ds_write_b128 v{ACC+24}, {v(ACC,4)}\nds_write_b128 v{ACC+24}, {v(ACC+4,4)} offset:32\ns_waitcnt lgkmcnt(0)")
        if emit:
            if PEEL == 0:
                for i in range(16 * NB * MB): a(f"v_mov_b32 v{ACC+i}, 0")
        barrier("pro", 0)
        if mod: flush(cread(0) + cread(1), 99)
        for tt in range(FB):
            for j in range(NB): reads(tt, j)
        if mod:
            assert PEEL > 0
            W("pro", "vm", "A", {("A", 0)}); W("pro", "lg", "C", {("C", 0)})
            flush(xform(0), 99)
        if PEEL == 0: flush(take(-1, 999), 999)
        if emit: stamp(k, 1)
        for t in range(S):
            peeled = t < 4 * PEEL
            site = ("p", t) if peeled else (t - 4 * PEEL) % (4 * U)
            if t == 4 * PEEL:
                assert not [o for o in ops if o[1] < t], f"{name}: backlog not drained"
                E(f"s_mov_b32 s30, {(NST-PEEL)//U}\n.p2align 6\n{name}_loop:")
            if t == 4 * PEEL + 4 * U:
                E(f"s_sub_u32 s30, s30, 1\ns_cmp_lg_u32 s30, 0\ns_cbranch_scc1 {name}_loop")
                if emit: return
            sub = t % 4
            fill = take(t, CAP if peeled else 999)
            if not peeled and site == 1: fill.append((f"buffer_load_dword {'v0' if not big else 'a%d' % (na - 1)}, v2, s[92:95], 0 offen", ("C",)))
            if mod:
                xf = cread(t + 2)
                if not peeled and site == 4 * U - 1: xf.append((f"v_add_u32 v{VC}, {4*U*128}, v{VC}", None))
                xf += [("W", (site, "vm", "A", {("A", t + 1)})), ("W", (site, "lg", "C", {("C", t + 1)}))]
                xv = xform(t + 1)
                mix = []
                while xv or fill:
                    mix += xv[:2]; xv = xv[2:]
                    mix += fill[:1]; fill = fill[1:]
                fill = xf + mix
            n0 = len(fill); nslots = NB * MB; slot = 0
            if not mod: W(site, "vm", "A", {("A", t)})
            for j in range(NB):
                W(site, "lg", f"F{j}", {("F", t, min(NB - 1, j + (WG - 1 - j % WG)))})
                for tb in range(MB):
                    af = rr(fk, AR + 4 * (MB * (t % DA) + tb), 4) if not mod else v(HF + 4 * (t % 2), 4); bf = rr(fk, BF + 4 * (NB * (t % FB) + j), 4); c = v(acc(j, tb), 16)
                    x, y = (bf, af) if orient[j] == "tok" else (af, bf)
                    E(f"v_mfma_f32_32x32x16_bf16 {c}, {x}, {y}, {c if (t or PEEL == 0) else 0}")
                    slot += 1
                    if tb == MB - 1:
                        if j == 0 and sub == BOFF: barrier(site, (t + FB) // 4)
                        reads(t + FB, j)
                    if not (sub == BOFF and j == 0 and tb < MB - 1):
                        flush(fill, max(0, (n0 * slot + nslots - 1) // nslots - (n0 - len(fill))))
            flush(fill, 999)
        if (NST - PEEL) == U: E(f"s_sub_u32 s30, s30, 1\ns_cmp_lg_u32 s30, 0\ns_cbranch_scc1 {name}_loop")
    run(None)
    cnt.reset()
    run(a)
    a(f"{name}_epi:")
    stamp(k, 2)
    epilogue(k)
    stamp(k, 3)
    prof_out(k, 4, KID[name], 26)
    finish(k)
    return k

def k_qkv():
    def setup(k, a):
        if not EXP.get("fuse1", 1) or QPRE >= 1024: return []
        T = k.TMP; per = (1024 - QPRE) * 48 // 1024
        if a: srd(a, 16, 40, QPRE * 6144, (1024 - QPRE) * 6144)
        first = f"""s_lshl_b32 s32, s2, 2
        s_add_u32 s32, s32, s26
        s_lshl_b32 s55, s32, 7
        v_lshlrev_b32 v{T+6}, 17, v1"""
        return [(EXP.get("qpfat", 12), [first, f"buffer_load_dword v{T+7}, v{T+6}, s[16:19], s55 offen"])]
    def epi(k):
        a = k.a; T = k.TMP
        qs = LOG2E / math.sqrt(32)
        srd(a, 12, 44, WS_Q, 4 << 20); srd(a, 16, 44, WS_KV, 8 << 20)
        a(f"""
        v_lshlrev_b32 v{T}, 4, v1
        s_lshl_b32 s32, s25, 7
        s_add_u32 s32, s32, s37
        s_lshl_b32 s33, s32, 11          ; Q offset
        s_lshl_b32 s34, s32, 12
        s_add_u32 s35, s33, {64*2048}
        s_add_u32 s39, s34, {64*4096}""")
        for j in range(6):
            c = k.acc(j, 0)
            if j < 2:
                for i in range(16): a(f"v_mul_f32 v{c+i}, {fx(qs)}, v{c+i}")
            for g in range(2):
                for i in range(4 * g, 4 * g + 4): a(f"v_cvt_pk_bf16_f32 v{c+i}, v{c+2*i}, v{c+2*i+1}")
            for g in range(2):
                if j < 2: a(f"buffer_store_dwordx4 {v(c+4*g,4)}, v{T}, s[12:15], s{33 if j==0 else 35} offen offset:{1024*g} sc1")
                else: a(f"buffer_store_dwordx4 {v(c+4*g,4)}, v{T}, s[16:19], s{34 if j%2==0 else 39} offen offset:{(2048 if j>=4 else 0)+1024*g} sc1")
    return k_gemm("qkv_kernel", 1024, 1, 6, EXP.get("qDA", 8), EXP.get("qR", 4), 2, EXP.get("qPEEL", 4), EXP.get("qCAP", 4), EXP.get("qINIT", 9),
                  "panel", WS_H1, "contig", False, ["tok"]*4 + ["feat"]*2, 16, 16, 2, 4,
                  [(40, P_WQKV), (44, P_WS)], setup, epi, 6144, alt=(WS_WQ3, 1536, 256, 768),
                  mod=bool(EXP.get('fuse1', 1)), xlds=(8192 + 256 if EXP.get('fuse1', 1) else 0))

def colvec_ops(k, need, dst, idxs, va):
    ops = []
    first = [f"s_lshl_b32 s32, s25, 8\nv_lshl_add_u32 v{va}, v1, 2, s32"]
    for n, idx in enumerate(idxs):
        for p in range(KS):
            ops.append((need, first + [f"s_mov_b32 s32, {p*6144*4 + idx*4096}", f"buffer_load_dword v{dst+2*n+p}, v{va}, s[20:23], s32 offen"]))
            first = []
    return ops

def k_out():
    def setup(k, a):
        T = k.TMP
        if a:
            srd(a, 12, 42, 0, 4 << 20); srd(a, 20, 44, WS_MODP, KS * 6144 * 4)
        ops = colvec_ops(k, 30, T + 8, [2, 4], T + 6)
        first = [f"""v_lshrrev_b32 v{T+12}, 3, v1
        v_and_b32 v{T+7}, 7, v1
        v_xor_b32 v{T+7}, v{T+7}, v{T+12}
        v_lshlrev_b32 v{T+7}, 4, v{T+7}
        v_lshl_add_u32 v{T+7}, v{T+12}, 11, v{T+7}
        s_lshl_b32 s55, s37, 16
        s_lshl_b32 s32, s25, 7
        s_add_u32 s55, s55, s32
        s_lshl_b32 s56, s26, 12
        s_add_u32 s56, s56, {k.XL}"""]
        for i in range(4):
            ops.append((31, first + [f"s_add_u32 m0, s56, {1024*i}", "s_nop 0", f"buffer_load_dwordx4 v{T+7}, s[12:15], s55 offen lds", "s_add_u32 s55, s55, 0x4000"]))
            first = []
        return ops
    def epi(k):
        a = k.a; T = k.TMP; G = T + 16; C = G + 32; X = C + 32; P = X + 32
        srd(a, 12, 44, WS_X2, 64 * SLAB); srd(a, 16, 44, WS_Y2, 64 * SLAB); srd(a, 20, 44, WS_STAT, 16 * 2048 * 8)
        a(f"""
        v_add_f32 v{T+8}, v{T+8}, v{T+9}
        v_add_f32 v{T+10}, v{T+10}, v{T+11}""")
        rbf(a, T + 8); rbf(a, T + 10)
        a(f"v_add_f32 v{T+10}, 1.0, v{T+10}")
        rbf(a, T + 10)
        a(f"""
        s_lshl_b32 s32, s26, 9
        s_add_u32 s32, s32, {k.XL + 16384}
        v_lshl_add_u32 v{T}, v1, 2, s32
        ds_write_b32 v{T}, v{T+8}
        ds_write_b32 v{T}, v{T+10} offset:256
        v_lshrrev_b32 v{T+1}, 5, v1
        v_lshl_add_u32 v{T}, v{T+1}, 5, s32
        v_and_b32 v{T+2}, 31, v1
        v_and_b32 v{T+3}, 7, v1
        v_xor_b32 v{T+3}, v{T+3}, v{T+1}
        v_lshlrev_b32 v{T+3}, 4, v{T+3}
        v_lshl_add_u32 v{T+3}, v{T+2}, 7, v{T+3}
        v_add_u32 v{T+3}, s56, v{T+3}
        s_waitcnt lgkmcnt(0)""")
        for q in range(4):
            a(f"v_xor_b32 v{T+4}, {32*q}, v{T+3}\nds_read_b128 {v(P+4*q,4)}, v{T+4}")
        for q in range(4):
            for hh in range(2): a(f"ds_read_b128 {v(G+8*q+4*hh,4)}, v{T} offset:{64*q+16*hh}")
        a("s_waitcnt lgkmcnt(8)")
        unpack(a, X, P, 16)
        for q in range(4):
            for hh in range(2): a(f"ds_read_b128 {v(C+8*q+4*hh,4)}, v{T} offset:{256+64*q+16*hh}")
        a(f"s_mul_i32 s33, s25, {4*SLAB}\ns_waitcnt lgkmcnt(8)")
        for q in range(4):
            c = k.acc(q // 2, 0) + 8 * (q % 2)
            for i in range(8): a(f"v_fmac_f32 v{X+8*q+i}, v{G+8*q+i}, v{c+i}")
            for i in range(4): a(f"v_cvt_pk_bf16_f32 v{P+4*q+i}, v{X+8*q+2*i}, v{X+8*q+2*i+1}")
            a(f"s_add_u32 s34, s33, {q*SLAB}\nbuffer_store_dwordx4 {v(P+4*q,4)}, v{k.VA}, s[12:15], s34 offen sc1")
        unpack(a, X, P, 16)
        a("s_waitcnt lgkmcnt(0)")
        for q in range(4):
            for i in range(8): a(f"v_mul_f32 v{C+8*q+i}, v{C+8*q+i}, v{X+8*q+i}")
            for i in range(4): a(f"v_cvt_pk_bf16_f32 v{G+4*q+i}, v{C+8*q+2*i}, v{C+8*q+2*i+1}")
            a(f"s_add_u32 s34, s33, {q*SLAB}\nbuffer_store_dwordx4 {v(G+4*q,4)}, v{k.VA}, s[16:19], s34 offen sc1")
        a(f"v_add_f32 v{T+8}, v{X}, v{X+1}\nv_add_f32 v{T+9}, v{X+2}, v{X+3}")
        for i in range(4, 32): a(f"v_add_f32 v{T+8+i%2}, v{T+8+i%2}, v{X+i}")
        a(f"""
        v_add_f32 v{T+8}, v{T+8}, v{T+9}
        v_mov_b32 v{T+9}, v{T+8}
        v_permlane32_swap_b32 v{T+8}, v{T+9}
        v_add_f32 v{T+8}, v{T+8}, v{T+9}
        v_mul_f32 v{T+10}, {fx(1/64)}, v{T+8}""")
        for i in range(32): a(f"v_sub_f32 v{X+i}, v{X+i}, v{T+10}")
        a(f"v_mul_f32 v{T+9}, v{X}, v{X}\nv_mul_f32 v{T+10}, v{X+1}, v{X+1}")
        for i in range(2, 32): a(f"v_fmac_f32 v{T+9+i%2}, v{X+i}, v{X+i}")
        a(f"""
        v_add_f32 v{T+9}, v{T+9}, v{T+10}
        v_mov_b32 v{T+10}, v{T+9}
        v_permlane32_swap_b32 v{T+9}, v{T+10}
        v_add_f32 v{T+9}, v{T+9}, v{T+10}
        v_lshlrev_b32 v{T+2}, 3, v{T+2}
        s_lshl_b32 s32, s25, 14
        s_lshl_b32 s33, s37, 8
        s_add_u32 s32, s32, s33
        s_mov_b32 exec_hi, 0
        buffer_store_dwordx2 {v(T+8,2)}, v{T+2}, s[20:23], s32 offen sc1
        s_mov_b32 exec_hi, -1""")
    return k_gemm("out_kernel", 1024, 1, 2, 16, 6, 4, 0, 99, 999, "panel", WS_O, "split", True, ["tok"]*2, 16, 16, 4, 2,
                  [(40, P_WO), (42, P_X), (44, P_WS)], setup, epi, 2048, alt=(WS_WO3, 512, 0, 256), ntemp=16 + 96 + 16, xlds=16384 + 2048,
                  FB=EXP.get("pFB", 2))

def k_down():
    def setup(k, a):
        T = k.TMP
        if a:
            srd(a, 12, 44, WS_X2, 64 * SLAB); srd(a, 20, 44, WS_MODP, KS * 6144 * 4)
        ops = colvec_ops(k, 30, T + 8, [5], T + 6)
        first = [f"s_mul_i32 s55, s25, {4*SLAB}"]
        for q in range(4):
            ops.append((31, first + [f"buffer_load_dwordx4 {v(T+16+4*q,4)}, v{k.VA}, s[12:15], s55 offen", f"s_add_u32 s55, s55, {SLAB}"]))
            first = []
        return ops
    def epi(k):
        a = k.a; T = k.TMP; P = T + 16; G = P + 16; X = G + 32
        srd(a, 16, 46, 0, 4 << 20)
        a(f"v_add_f32 v{T+8}, v{T+8}, v{T+9}")
        rbf(a, T + 8)
        a(f"""
        s_lshl_b32 s32, s26, 8
        s_add_u32 s32, s32, {k.XL + 16384}
        v_lshl_add_u32 v{T}, v1, 2, s32
        ds_write_b32 v{T}, v{T+8}
        v_lshrrev_b32 v{T+1}, 5, v1
        v_lshl_add_u32 v{T}, v{T+1}, 5, s32
        s_lshl_b32 s56, s26, 12
        s_add_u32 s56, s56, {k.XL}
        v_and_b32 v{T+2}, 31, v1
        v_and_b32 v{T+3}, 7, v1
        v_xor_b32 v{T+3}, v{T+3}, v{T+1}
        v_lshlrev_b32 v{T+3}, 4, v{T+3}
        v_lshl_add_u32 v{T+3}, v{T+2}, 7, v{T+3}
        v_add_u32 v{T+3}, s56, v{T+3}
        s_waitcnt lgkmcnt(0)""")
        for q in range(4):
            for hh in range(2): a(f"ds_read_b128 {v(G+8*q+4*hh,4)}, v{T} offset:{64*q+16*hh}")
        unpack(a, X, P, 16)
        a(f"""
        v_lshl_add_u32 v{T+5}, v1, 4, s56
        v_lshrrev_b32 v{T+6}, 3, v1
        v_and_b32 v{T+7}, 7, v1
        v_xor_b32 v{T+7}, v{T+7}, v{T+6}
        v_lshlrev_b32 v{T+7}, 4, v{T+7}
        v_lshl_add_u32 v{T+7}, v{T+6}, 11, v{T+7}
        s_lshl_b32 s33, s37, 16
        s_lshl_b32 s32, s25, 7
        s_add_u32 s33, s33, s32
        s_waitcnt lgkmcnt(0)""")
        for q in range(4):
            c = k.acc(q // 2, 0) + 8 * (q % 2)
            for i in range(8): a(f"v_fmac_f32 v{X+8*q+i}, v{G+8*q+i}, v{c+i}")
            for i in range(4): a(f"v_cvt_pk_bf16_f32 v{P+4*q+i}, v{X+8*q+2*i}, v{X+8*q+2*i+1}")
            a(f"v_xor_b32 v{T+4}, {32*q}, v{T+3}\nds_write_b128 v{T+4}, {v(P+4*q,4)}")
        a("s_waitcnt lgkmcnt(0)")
        for i in range(4): a(f"ds_read_b128 {v(G+4*i,4)}, v{T+5} offset:{1024*i}")
        for i in range(4):
            a(f"s_waitcnt lgkmcnt({3-i})\nbuffer_store_dwordx4 {v(G+4*i,4)}, v{T+7}, s[16:19], s33 offen sc1\ns_add_u32 s33, s33, 0x4000")
    return k_gemm("down_kernel", 3584, 1, 2, 16, 6, 4, 0, 99, 999, "panel", WS_ACT, "split", True, ["tok"]*2, 16, 16, 4, 2,
                  [(40, P_WD), (44, P_WS), (46, P_OUT)], setup, epi, 2048, alt=(WS_WD3, 512, 0, 256), ntemp=16 + 16 + 64, xlds=16384 + 1024,
                  FB=EXP.get("pFB", 2))

def k_gu():
    def setup(k, a):
        T = k.TMP; XA = k.XA
        if a:
            srd(a, 16, 44, WS_STAT, 16 * 2048 * 8); srd(a, 20, 44, WS_UV, KS * 2 * 7168 * 4)
        ops = []
        first = [f"""v_and_b32 v{T+6}, 31, v1
        v_lshlrev_b32 v{T+6}, 3, v{T+6}
        v_lshrrev_b32 v{T+7}, 5, v1
        v_lshl_add_u32 v{T+6}, v{T+7}, 17, v{T+6}
        s_lshl_b32 s55, s37, 8"""]
        for i in range(8):
            for tb in range(2):
                ops.append((40, first + [f"buffer_load_dwordx2 {a_(XA+16*tb+2*i,2)}, v{T+6}, s[16:19], s55 offen offset:{256*tb}"] + (["s_add_u32 s55, s55, 0x4000"] if tb else [])))
                first = []
        first = [f"""v_cmp_lt_u32 vcc, 111, v0
        v_mov_b32 v{T+7}, {(3584-112)*4}
        v_cndmask_b32 v{T+7}, 0, v{T+7}, vcc
        v_lshl_add_u32 v{T+7}, v0, 2, v{T+7}
        s_mul_i32 s56, s25, 448"""]
        for i in range(4):
            ops.append((41, first + [f"buffer_load_dword a{XA+32+i}, v{T+7}, s[20:23], s56 offen", f"s_add_u32 s56, s56, {7168*4}"]))
            first = []
        return ops
    def epi(k):
        a = k.a; T = k.TMP; XA = k.XA
        c0 = -2 * math.sqrt(2 / math.pi) * LOG2E; c1 = c0 * 0.044715
        srd(a, 12, 44, WS_ACT, 224 * SLAB)
        for i in range(4): a(f"v_accvgpr_read_b32 v{10+i}, a{XA+32+i}")
        a(f"""
        v_add_f32 v10, v10, v12
        v_add_f32 v11, v11, v13
        v_lshlrev_b32 v2, 2, v0
        ds_write_b32 v2, v10 offset:{k.XL % 65536}
        ds_write_b32 v2, v11 offset:{k.XL % 65536 + 1024}""".replace("v_lshlrev_b32 v2, 2, v0", f"v_lshlrev_b32 v2, 2, v0\nv_add_u32 v2, {k.XL // 65536 * 65536}, v2"))
        for tb, D in ((0, 4), (1, 30)):
            for i in range(16): a(f"v_accvgpr_read_b32 v{10+i}, a{XA+16*tb+i}")
            a("v_add_f32 v26, v10, v12\nv_add_f32 v27, v11, v13")
            for i in range(2, 8): a(f"v_add_f32 v26, v26, v{10+2*i}\nv_add_f32 v27, v27, v{11+2*i}")
            a(f"""
            v_mov_b32 v28, v26
            v_permlane32_swap_b32 v26, v28
            v_add_f32 v26, v26, v28
            v_mul_f32 v28, {fx(1/16)}, v26""")
            for i in range(8): a(f"v_sub_f32 v{10+2*i}, v{10+2*i}, v28")
            a("v_mul_f32 v29, v10, v10")
            for i in range(1, 8): a(f"v_fmac_f32 v29, v{10+2*i}, v{10+2*i}")
            a(f"""
            v_fmac_f32 v27, {fx(1/64)}, v29
            v_mov_b32 v28, v27
            v_permlane32_swap_b32 v27, v28
            v_add_f32 v27, v27, v28
            v_mov_b32 v28, {fx(1e-5)}
            v_fmac_f32 v28, {fx(1/1024)}, v27
            v_rsq_f32 v{D}, v28
            v_mul_f32 v26, {fx(-1/1024)}, v26
            v_mul_f32 v{D+1}, v26, v{D}""")
        a(f"""
        v_lshrrev_b32 v9, 5, v1
        v_lshlrev_b32 v9, 4, v9
        v_add_u32 v9, {k.XL}, v9
        s_mul_i32 s32, s25, {7*SLAB}
        s_mov_b32 s34, {fx(c1)}
        s_mov_b32 s35, {fx(c1)}
        v_mov_b32 v26, {fx(c0)}
        v_mov_b32 v27, {fx(c0)}
        v_mov_b32 v28, 1.0
        v_mov_b32 v29, 1.0
        s_waitcnt lgkmcnt(0)
        s_barrier""")
        def rdq(j, q, B):
            o = 64 * j + 32 * q
            for n, oo in enumerate((o, o + 1024, o + 448, o + 448 + 1024)): a(f"ds_read_b128 {v(B+4*n,4)}, v9 offset:{oo}")
        pk = lambda r: v(r, 2)
        def fold(j, q, B):
            for tb, D in ((0, 4), (1, 30)):
                c = k.acc(j, tb) + 4 * q
                for i in (0, 2):
                    a(f"v_pk_fma_f32 {pk(c+i)}, {pk(c+i)}, {pk(D)}, {pk(B+4+i)} op_sel_hi:[1,0,1]")
                    a(f"v_pk_fma_f32 {pk(c+8+i)}, {pk(c+8+i)}, {pk(D)}, {pk(B+12+i)} op_sel_hi:[1,0,1]")
                for i in (0, 2):
                    a(f"v_pk_fma_f32 {pk(c+i)}, {pk(B+i)}, {pk(D)}, {pk(c+i)} op_sel:[0,1,0]")
                    a(f"v_pk_fma_f32 {pk(c+8+i)}, {pk(B+8+i)}, {pk(D)}, {pk(c+8+i)} op_sel:[0,1,0]")
        for j in range(7):
            if j == 0:
                rdq(0, 0, 10); a("s_waitcnt lgkmcnt(0)"); fold(0, 0, 10)
                rdq(0, 1, 10); a("s_waitcnt lgkmcnt(0)"); fold(0, 1, 10)
            else:
                a("s_waitcnt lgkmcnt(0)"); fold(j, 0, 10); fold(j, 1, k.acc(j - 1, 0))
            if j < 6: rdq(j + 1, 0, 10)
            for tb in range(2):
                c = k.acc(j, tb)
                for i in range(0, 8, 2): a(f"v_pk_mul_f32 {pk(c+8+i)}, {pk(c+8+i)}, {pk(c+i)}")
                for i in (0, 4):
                    a(f"v_pk_mul_f32 v[0:1], {pk(c+i)}, {pk(c+i)}\nv_pk_mul_f32 v[2:3], {pk(c+i+2)}, {pk(c+i+2)}")
                    a(f"v_pk_fma_f32 v[0:1], v[0:1], s[34:35], v[26:27]\nv_pk_fma_f32 v[2:3], v[2:3], s[34:35], v[26:27]")
                    a(f"v_pk_mul_f32 {pk(c+i)}, v[0:1], {pk(c+i)}\nv_pk_mul_f32 {pk(c+i+2)}, v[2:3], {pk(c+i+2)}")
                for i in range(8): a(f"v_exp_f32 v{c+i}, v{c+i}")
                for i in range(0, 8, 2): a(f"v_pk_add_f32 {pk(c+i)}, {pk(c+i)}, v[28:29]")
                for i in range(8): a(f"v_rcp_f32 v{c+i}, v{c+i}")
                for i in range(0, 8, 2): a(f"v_pk_mul_f32 {pk(c+i)}, {pk(c+i)}, {pk(c+8+i)}")
                for i in range(4): a(f"v_cvt_pk_bf16_f32 v{c+8+i}, v{c+2*i}, v{c+2*i+1}")
                a(f"buffer_store_dwordx4 {v(c+8,4)}, v{k.VA+tb}, s[12:15], s32 offen sc1")
                if tb == 0 and j < 6: rdq(j + 1, 1, c)
            a(f"s_add_u32 s32, s32, {SLAB}")
    return k_gemm("gu_kernel", 1024, 2, 7, EXP.get("gDA", 4), EXP.get("gR", 4), 2, EXP.get("gPEEL", 4), EXP.get("gCAP", 6), EXP.get("gINIT", 11),
                  "gu", WS_Y2, "contig", False, ["tok"]*7, 8, 32, 2, 4,
                  [(40, P_WG), (42, P_WU), (44, P_WS)], setup, epi, 7168, big=True, xlds=2048, nxa=37)

NSIDE = 288
def k_attn():
    R = 4; ST = 16384
    k = Kernel("attn_kernel", 256 + NSIDE, 512, SK_LDS, 128); a = k.a
    Q0, Q1, ONES, NEG, SA, SB, O, L, P0, P1, K0, K1, V0, V1, T = 4, 8, 12, 16, 32, 48, 64, 80, 84, 88, 92, 96, 100, 104, 108
    guard(k)
    a("s_cmp_ge_u32 s2, 256\ns_cbranch_scc1 attn_side")
    stamp(k, 0)
    load_ptrs(a, [(44, P_WS), (46, P_WO), (48, P_WD), (52, P_X)])
    if EXP.get("aprio", 1): a("s_setprio 2")
    a(f"""
    s_and_b32 s32, s2, 7
    s_lshr_b32 s33, s2, 3
    s_and_b32 s34, s32, 3
    s_lshl_b32 s34, s34, 3
    s_and_b32 s35, s33, 7
    s_add_u32 s24, s34, s35            ; head
    s_lshr_b32 s34, s32, 2
    s_lshl_b32 s34, s34, 2
    s_lshr_b32 s35, s33, 3
    s_add_u32 s25, s34, s35
    v_lshrrev_b32 v3, 6, v0
    v_and_b32 v1, 63, v0
    v_readfirstlane_b32 s26, v3
    v_lshlrev_b32 v2, 4, v1
    s_lshl_b32 s27, s25, 3
    s_add_u32 s27, s27, s26
    s_lshl_b32 s28, s24, 18
    s_lshl_b32 s29, s26, 11            ; wave * 2048
    s_lshl_b32 s32, s24, 6
    s_add_u32 s32, s32, s27
    s_lshl_b32 s32, s32, 11            ; Q offset
    s_waitcnt lgkmcnt(0)""")
    srd(a, 4, 44, WS_Q, 4 << 20)
    a(f"s_add_u32 s8, s44, s28\ns_addc_u32 s9, s45, 0\ns_add_u32 s8, s8, {WS_KV}\ns_addc_u32 s9, s9, 0\ns_mov_b32 s10, 0x40000\ns_mov_b32 s11, 0x20000")
    a("s_mov_b32 s30, s29")
    def dma(slot):
        return [f"s_add_u32 m0, s29, {slot*ST}", "buffer_load_dwordx4 v2, s[8:11], s30 offen lds",
                "buffer_load_dwordx4 v2, s[8:11], s30 offen offset:1024 lds", f"s_add_u32 s30, s30, {ST}"]
    a(f"buffer_load_dwordx4 {v(Q0,4)}, v2, s[4:7], s32 offen\nbuffer_load_dwordx4 {v(Q1,4)}, v2, s[4:7], s32 offen offset:1024")
    a(f"buffer_load_dwordx4 {v(K0,4)}, v2, s[8:11], 0 offen\nbuffer_load_dwordx4 {v(K1,4)}, v2, s[8:11], 0 offen offset:1024")
    for st in range(R - 1):
        for x in dma(st): a(x)
    srd(a, 12, 44, WS_O, 64 * SLAB)
    frag_off(a, 3, 27, 1, T)
    code_srd(k, 92, "attn_epi")
    a(f"v_lshlrev_b32 v{T+4}, 7, v0")
    if EXP.get("apf", 1):
        srd(a, 16, 46, 0, 1024 * 2048); srd(a, 20, 48, 0, 3584 * 2048)
        a(f"""
        s_lshl_b32 s32, s2, 3
        s_add_u32 s32, s32, s26
        s_mul_i32 s50, s32, {7*128}
        s_lshl_b32 s51, s32, 8
        v_lshlrev_b32 v{T+6}, 7, v1
        v_mov_b32 v{T+8}, 0x80000000
        v_cmp_gt_u32 vcc, 2, v1
        v_cndmask_b32 v{T+7}, v{T+8}, v{T+6}, vcc
        v_cmp_gt_u32 vcc, 4, v1
        v_cndmask_b32 v{T+9}, v{T+8}, v{T+6}, vcc
        s_lshl_b32 s54, s32, 9
        v_cmp_gt_u32 vcc, 7, v1
        v_cndmask_b32 v{T+6}, v{T+8}, v{T+6}, vcc""")
        srd(a, 56, 52, 0, 2048 * 2048)
    a(f"""
    v_lshrrev_b32 v{T}, 4, v1
    v_lshrrev_b32 v{T+1}, 2, v1
    v_xor_b32 v{T}, v{T}, v{T+1}
    v_and_b32 v{T}, 1, v{T}
    v_cmp_eq_u32 vcc, 0, v{T}
    v_mov_b32 v{T+1}, 0x3f803f80
    v_cndmask_b32 v{ONES}, 0, v{T+1}, vcc""")
    for i in range(1, 4): a(f"v_mov_b32 v{ONES+i}, v{ONES}")
    for i in range(16): a(f"v_mov_b32 v{O+i}, 0")
    for i in range(4): a(f"v_mov_b32 v{L+i}, 0\nv_mov_b32 v{P1+i}, 0\nv_mov_b32 v{V1+i}, 0")
    a(f"""
    s_waitcnt vmcnt({2*(R-1)})
    v_mfma_f32_32x32x16_bf16 {v(SA,16)}, {v(K0,4)}, {v(Q0,4)}, 0
    v_mfma_f32_32x32x16_bf16 {v(SA,16)}, {v(K1,4)}, {v(Q1,4)}, {v(SA,16)}""")
    def rowmax(S, m):
        for i in range(0, 16, 2): a(f"v_max3_f32 v{m}, v{S+i}, v{S+i+1}, v{m}")
    def negbcast(m):
        a(f"v_mov_b32 v{m+1}, v{m}\nv_permlane32_swap_b32 v{m}, v{m+1}\nv_max_f32 v{m}, v{m}, v{m+1}")
        for i in range(16): a(f"v_sub_f32 v{NEG+i}, 0, v{m}")
    a(f"v_mov_b32 v{T}, v{SA}")
    rowmax(SA, T); negbcast(T)
    for i in range(16): a(f"v_sub_f32 v{SA+i}, v{SA+i}, v{T}")
    a(f"""
    s_waitcnt vmcnt({2*(R-2)})
    s_barrier
    ds_read_b128 {v(K0,4)}, v2 offset:4096
    ds_read_b128 {v(K1,4)}, v2 offset:5120
    ds_read_b128 {v(V0,4)}, v2 offset:2048""")
    cnt = Cnt()
    def it(j, E, site):
        def W(c, nm, tags):
            cnt.wait(c, (site, nm), tags)
            if E: E(cnt.text(c, (site, nm)))
        def X(x):
            if E: E(x)
        def RD(reg, blk, piece):
            X(f"ds_read_b128 {v(reg,4)}, v2 offset:{(blk % (4*R))*4096 + piece*1024}")
            cnt.issue("lg", (piece, blk))
        S, Sn = (SA, SB) if j % 2 == 0 else (SB, SA)
        e = lambda i: X(f"v_exp_f32 v{S+i}, v{S+i}")
        c = lambda i: X(f"v_cvt_pk_bf16_f32 v{P0+i}, v{S+2*i}, v{S+2*i+1}")
        W("lg", "k", {(0, j + 1), (3, j - 1), (1, j + 1)})
        X(f"v_mfma_f32_32x32x16_bf16 {v(Sn,16)}, {v(K0,4)}, {v(Q0,4)}, {v(NEG,16)}")
        e(0); e(1); e(2)
        X(f"v_mfma_f32_32x32x16_bf16 {v(O,16)}, {v(V1,4)}, {v(P1,4)}, {v(O,16)}")
        RD(V1, j, 3)
        e(3); c(0); e(4); c(1)
        X(f"v_mfma_f32_32x32x16_bf16 {v(Sn,16)}, {v(K1,4)}, {v(Q1,4)}, {v(Sn,16)}")
        if j % 4 == 2:
            W("vm", "bar", {("B", j // 4 + 1)})
            X("s_barrier")
        RD(K0, j + 2, 0); RD(K1, j + 2, 1)
        e(5); e(6); e(7)
        X(f"v_mfma_f32_16x16x32_bf16 {v(L,4)}, {v(ONES,4)}, {v(P1,4)}, {v(L,4)}")
        if j % 4 == 2:
            d = dma((j // 4 - 1) % R)
            X(d[0])
        c(2); c(3); e(8); e(9)
        W("lg", "v0", {(2, j)})
        X(f"v_mfma_f32_32x32x16_bf16 {v(O,16)}, {v(V0,4)}, {v(P0,4)}, {v(O,16)}")
        RD(V0, j + 1, 2)
        if j % 4 == 2:
            X(d[1]); X(d[2]); X(d[3])
            cnt.issue("vm", ("B", j // 4 - 1 + R)); cnt.issue("vm", ("B", j // 4 - 1 + R))
        if j % 16 == 3:
            X(f"buffer_load_dword v{T+5}, v{T+4}, s[92:95], 0 offen"); cnt.issue("vm", ("C",))
        if EXP.get("apf", 1) and j % 16 == 7:
            X(f"buffer_load_dword v{T+5}, v{T+6}, s[20:23], s50 offen\ns_add_u32 s50, s50, {2048*7*128}"); cnt.issue("vm", ("C",))
        if EXP.get("apf", 1) and j % 16 == 15:
            X(f"buffer_load_dword v{T+5}, v{T+9}, s[56:59], s54 offen\ns_add_u32 s54, s54, {2048*512}"); cnt.issue("vm", ("C",))
        if EXP.get("apf", 1) and j % 16 == 11:
            X(f"buffer_load_dword v{T+5}, v{T+7}, s[16:19], s51 offen\ns_add_u32 s51, s51, {2048*256}"); cnt.issue("vm", ("C",))
        e(10); e(11); c(4); e(12)
        X(f"v_mfma_f32_16x16x32_bf16 {v(L,4)}, {v(ONES,4)}, {v(P0,4)}, {v(L,4)}")
        c(5); e(13); e(14); e(15); c(6); c(7)
    def preload():
        cnt.reset()
        for st in range(R - 1):
            cnt.issue("vm", ("B", st)); cnt.issue("vm", ("B", st))
        for tg in [(0, 1), (1, 1), (2, 0)]: cnt.issue("lg", tg)
    preload()
    for j in range(64): it(j, None, j % 16)
    preload()
    stamp(k, 1)
    a("s_mov_b32 s31, 4\n.p2align 6\nattn_loop:")
    for j in range(16): it(j, a, j)
    a("s_sub_u32 s31, s31, 1\ns_cmp_lg_u32 s31, 0\ns_cbranch_scc1 attn_loop\nattn_epi:")
    stamp(k, 2)
    a(f"""
    s_waitcnt lgkmcnt(0)
    v_mfma_f32_32x32x16_bf16 {v(O,16)}, {v(V1,4)}, {v(P1,4)}, {v(O,16)}
    v_mfma_f32_16x16x32_bf16 {v(L,4)}, {v(ONES,4)}, {v(P1,4)}, {v(L,4)}
    v_mov_b32 v{T}, 0""")
    for i in range(16): a(f"v_fmac_f32 v{T}, 0, v{O+i}")
    a(f"""
    v_add_f32 v{T}, v{T}, v{L}
    v_cmp_ngt_f32 vcc, {fx(2.0**40)}, v{T}
    s_cbranch_vccnz attn_slow
attn_fin:
    v_rcp_f32 v{T}, v{L}
    s_mul_i32 s32, s24, {2*SLAB}
    s_add_u32 s33, s32, {SLAB}""")
    for i in range(16): a(f"v_mul_f32 v{O+i}, v{O+i}, v{T}")
    for i in range(8): a(f"v_cvt_pk_bf16_f32 v{O+i}, v{O+2*i}, v{O+2*i+1}")
    a(f"buffer_store_dwordx4 {v(O,4)}, v3, s[12:15], s32 offen sc1\nbuffer_store_dwordx4 {v(O+4,4)}, v3, s[12:15], s33 offen sc1")
    stamp(k, 3)
    prof_out(k, 4, 4, 26)
    a("s_endpgm")
    a(f"""
attn_slow:
    v_mov_b32 v{T}, 0xff800000
    s_mov_b32 s30, 0
attn_slow1:
    buffer_load_dwordx4 {v(K0,4)}, v2, s[8:11], s30 offen
    buffer_load_dwordx4 {v(K1,4)}, v2, s[8:11], s30 offen offset:1024
    s_waitcnt vmcnt(0)
    v_mfma_f32_32x32x16_bf16 {v(SA,16)}, {v(K0,4)}, {v(Q0,4)}, 0
    v_mfma_f32_32x32x16_bf16 {v(SA,16)}, {v(K1,4)}, {v(Q1,4)}, {v(SA,16)}""")
    rowmax(SA, T)
    a("s_add_u32 s30, s30, 4096\ns_cmp_lt_u32 s30, 0x40000\ns_cbranch_scc1 attn_slow1")
    negbcast(T)
    for i in range(16): a(f"v_mov_b32 v{O+i}, 0")
    for i in range(4): a(f"v_mov_b32 v{L+i}, 0")
    a(f"""
    s_mov_b32 s30, 0
attn_slow2:
    buffer_load_dwordx4 {v(K0,4)}, v2, s[8:11], s30 offen
    buffer_load_dwordx4 {v(K1,4)}, v2, s[8:11], s30 offen offset:1024
    buffer_load_dwordx4 {v(V0,4)}, v2, s[8:11], s30 offen offset:2048
    buffer_load_dwordx4 {v(V1,4)}, v2, s[8:11], s30 offen offset:3072
    s_waitcnt vmcnt(0)
    v_mfma_f32_32x32x16_bf16 {v(SA,16)}, {v(K0,4)}, {v(Q0,4)}, {v(NEG,16)}
    v_mfma_f32_32x32x16_bf16 {v(SA,16)}, {v(K1,4)}, {v(Q1,4)}, {v(SA,16)}""")
    for i in range(16): a(f"v_exp_f32 v{SA+i}, v{SA+i}")
    for i in range(8): a(f"v_cvt_pk_bf16_f32 v{P0+i}, v{SA+2*i}, v{SA+2*i+1}")
    a(f"""
    v_mfma_f32_32x32x16_bf16 {v(O,16)}, {v(V0,4)}, {v(P0,4)}, {v(O,16)}
    v_mfma_f32_32x32x16_bf16 {v(O,16)}, {v(V1,4)}, {v(P1,4)}, {v(O,16)}
    v_mfma_f32_16x16x32_bf16 {v(L,4)}, {v(ONES,4)}, {v(P0,4)}, {v(L,4)}
    v_mfma_f32_16x16x32_bf16 {v(L,4)}, {v(ONES,4)}, {v(P1,4)}, {v(L,4)}
    s_add_u32 s30, s30, 4096
    s_cmp_lt_u32 s30, 0x40000
    s_cbranch_scc1 attn_slow2
    s_branch attn_fin""")
    a("attn_side:")
    load_ptrs(a, [(40, P_C), (42, P_WMOD), (44, P_WS), (46, P_WG), (48, P_WU), (62, P_WO), (64, P_WD)])
    wave_lane(a)
    a("""
    s_sub_u32 s27, s2, 256
    s_lshl_b32 s32, s27, 9
    v_add_u32 v3, s32, v0
    s_waitcnt lgkmcnt(0)""")
    strip_copy_issue(a, 3, 62, 1024, 2048, 1, 0, 100)
    strip_copy_issue(a, 3, 64, 3584, 2048, 1, 16384, 108)
    if not EXP.get("apf", 1):
        prefetch(a, 3, 62, 1024 * 2048, 73728, 116)
        prefetch(a, 3, 64, 3584 * 2048, 73728 + 16384, 118)
        a("s_waitcnt vmcnt(2)")
    else: a("s_waitcnt vmcnt(0)")
    strip_copy_store(a, 44, WS_WO3, 1024 * 512, 100)
    strip_copy_store(a, 44, WS_WD3, 3584 * 512, 108)
    a(f"""
    s_and_b32 s32, s27, 1
    s_lshr_b32 s33, s27, 1
    s_lshl_b32 s52, s32, 9
    s_cmp_ge_u32 s33, 112
    s_cbranch_scc1 attn_side_g
    s_mov_b32 s51, 7168
    s_mul_i32 s53, s32, {2*7168*4}
    s_lshl_b32 s34, s33, 8
    s_add_u32 s53, s53, s34
    s_mov_b32 s54, {7168*4}
    s_cmp_ge_u32 s33, 56
    s_cselect_b32 s46, s48, s46
    s_cselect_b32 s47, s49, s47
    s_cselect_b32 s34, 56, 0
    s_sub_u32 s33, s33, s34
    s_mul_i32 s50, s52, s51
    s_lshl_b32 s34, s33, 7
    s_add_u32 s50, s50, s34""")
    srd(a, 8, 46, 0, 1024 * 7168); srd(a, 12, 44, WS_MODP, KS * 6144 * 4); srd(a, 16, 44, WS_UV, KS * 2 * 7168 * 4)
    skinny(k, "u", "pair", "", EXP.get("pace", 1))
    a(f"""
attn_side_g:
    s_sub_u32 s33, s33, {112-32}
    s_cmp_ge_u32 s33, 48
    s_cselect_b32 s34, 32, 0
    s_add_u32 s33, s33, s34
    s_mov_b32 s51, 12288
    s_mul_i32 s50, s52, s51
    s_lshl_b32 s34, s33, 7
    s_add_u32 s50, s50, s34
    s_mul_i32 s53, s32, {6144*4}
    s_lshl_b32 s34, s33, 8
    s_add_u32 s53, s53, s34
    s_mov_b32 s54, 0""")
    srd(a, 8, 42, 0, 1024 * 12288); srd(a, 12, 40, 0, 2048); srd(a, 16, 44, WS_MODP, KS * 6144 * 4)
    skinny(k, "g", "silu", " nt", EXP.get("pace", 1))
    finish(k)
    return k

def build(kernels, path, verbose=False):
    hdr = open("adaLN_cond__mha_block__geglu_ffn__prompt.s.ref").read().split("; Override launch")[0]
    out = hdr
    for k in kernels:
        out += f"; @launch kernel={k.name} grid=({k.grid},1,1) block=({k.block},1,1) lds={k.lds}\n"
    out += '.amdgcn_target "amdgcn-amd-amdhsa--gfx950"\n'
    for k in kernels:
        rep = []
        out += k.text(rep)
        if verbose:
            print(k.name, "vgpr", k.nv, "agpr", k.na, "lds", k.lds, "nops inserted:", len(rep))
            for r in rep:
                if "m0" not in r[1]: print("   ", r)
    out += '.section .rodata,"a"\n'
    for k in kernels: out += k.desc()
    open(path, "w").write(out)

CHECK = {"x2": "frag", "h2": False, "h1": False, "slab": SLAB}
def all_kernels():
    global QPRE
    QPRE = EXP.get("qpre", 256)
    if EXP.get("fuse1", 1):
        ORDER[:] = ["pre_kernel", "qkv_kernel", "attn_kernel", "out_kernel", "gu_kernel", "down_kernel"]
        return [k_pre(), k_qkv(), k_attn(), k_out(), k_gu(), k_down()]
    ORDER[:] = ["pre_kernel", "ln1_kernel", "qkv_kernel", "attn_kernel", "out_kernel", "gu_kernel", "down_kernel"]
    return [k_pre(), k_ln("ln1_kernel", P_X, WS_H1, 0, 1), k_qkv(), k_attn(), k_out(), k_gu(), k_down()]

if __name__ == "__main__":
    vb = False
    for x in sys.argv[2:]:
        if x == "prof": PROF = True
        elif x == "verbose": vb = True
        else:
            kk, _, vv = x.partition("="); EXP[kk] = int(vv) if vv else 1
    build(all_kernels(), sys.argv[1] if len(sys.argv) > 1 else "adaLN_cond__mha_block__geglu_ffn__prompt.s", verbose=vb)
```

```python
import sys, math, struct
from asmlib import *

SLAB = 75776
WS_MODP = 0
WS_UV = 64 << 10
WS_STAT = 256 << 10
WS_WQ3 = 1 << 20
WS_WO3 = 5 << 19
WS_WD3 = 3 << 20
WS_H1 = 5 << 20
WS_Q = 10 << 20
WS_KV = 14 << 20
WS_O = 22 << 20
WS_X2 = 27 << 20
WS_Y2 = 32 << 20
WS_ACT = 37 << 20
WS_PROF = 56 << 20
KS = 2
P_X, P_WQKV, P_WO, P_BX, P_WG, P_WU, P_WD, P_C, P_WMOD, P_OUT, P_DBG, P_WS = [8 * i for i in range(12)]
LOG2E = 1.4426950408889634
PROF = False
EXP = {}
KID = {"qkv_kernel": 0, "out_kernel": 1, "gu_kernel": 2, "down_kernel": 3, "attn_kernel": 4}
def f2u(x): return struct.unpack("<I", struct.pack("<f", x))[0]
def fx(x): return hex(f2u(x))

class Kernel:
    def __init__(self, name, grid, block, lds, nv, na=0):
        self.name, self.grid, self.block, self.lds, self.nv, self.na = name, grid, block, lds, nv, na
        self.a = Asm()
    def text(self, report=None):
        body = fix_hazards(merge_waits(self.a.l), report)
        return (f".text\n.globl {self.name}\n.p2align 8\n.type {self.name},@function\n{self.name}:\n" + "\n".join(body) + "\n")
    def desc(self):
        acc = (self.nv + 3) // 4 * 4
        nfv = acc + self.na if self.na else self.nv
        return f""".p2align 6
.amdhsa_kernel {self.name}
  .amdhsa_next_free_vgpr {nfv}
  .amdhsa_next_free_sgpr 96
  .amdhsa_accum_offset {acc}
  .amdhsa_group_segment_fixed_size 0
  .amdhsa_kernarg_size 96
  .amdhsa_user_sgpr_count 2
  .amdhsa_user_sgpr_kernarg_segment_ptr 1
  .amdhsa_system_sgpr_workgroup_id_x 1
  .amdhsa_float_denorm_mode_32 3
  .amdhsa_float_denorm_mode_16_64 3
.end_amdhsa_kernel
"""

def stamp(k, i):
    if PROF: k.a(f"s_memtime {s(64+2*i,2)}\ns_memrealtime {s(74+2*i,2)}\ns_waitcnt lgkmcnt(0)")
def prof_out(k, n, kid, wave_s):
    if not PROF: return
    a = k.a
    a(f"s_waitcnt vmcnt(0)\ns_memtime {s(64+2*n,2)}\ns_memrealtime {s(74+2*n,2)}\ns_load_dwordx2 s[84:85], s[0:1], {P_WS}\ns_waitcnt lgkmcnt(0)")
    a(f"s_add_u32 s84, s84, {WS_PROF + kid*(1<<18)}\ns_addc_u32 s85, s85, 0\ns_mov_b32 s86, {1<<18}\ns_mov_b32 s87, 0x20000")
    a(f"s_lshl_b32 s88, s2, 3\ns_add_u32 s88, s88, s{wave_s}\ns_lshl_b32 s88, s88, 6\nv_mov_b32 v1, 0")
    for i in range(10):
        a(f"v_mov_b32 v0, s{64+2*i}\nbuffer_store_dword v0, v1, s[84:87], s88 offen offset:{4*i}")
def load_ptrs(a, pairs):
    for sreg, off in pairs: a(f"s_load_dwordx2 {s(sreg,2)}, s[0:1], {off}")
def srd(a, d, p, off, size):
    if off: a(f"s_add_u32 s{d}, s{p}, {off}\ns_addc_u32 s{d+1}, s{p+1}, 0")
    else: a(f"s_mov_b32 s{d}, s{p}\ns_mov_b32 s{d+1}, s{p+1}")
    a(f"s_mov_b32 s{d+2}, {size}\ns_mov_b32 s{d+3}, 0x20000")
def guard(k): k.a(f"s_cmp_ge_u32 s2, {k.grid}\ns_cbranch_scc1 {k.name}_end")
def finish(k): k.a(f"{k.name}_end:\ns_endpgm")
def unpack(a, dst, src, n):
    for i in range(n):
        a(f"v_lshlrev_b32 v{dst+2*i}, 16, v{src+i}\nv_and_b32 v{dst+2*i+1}, 0xffff0000, v{src+i}")
def rbf(a, x):
    a(f"v_cvt_pk_bf16_f32 v{x}, v{x}, v{x}\nv_and_b32 v{x}, 0xffff0000, v{x}")
def phys_line(a, dst, i, t):
    a(f"""
    v_mul_u32_u24 v{t}, 9363, v{i}
    v_lshrrev_b32 v{t}, 16, v{t}
    v_add_u32 v{dst}, v{i}, v{t}
    v_mul_u32_u24 v{t}, 7, v{t}
    v_sub_u32 v{t}, v{i}, v{t}
    v_add_u32 v{t}, 5, v{t}
    v_lshrrev_b32 v{t}, 3, v{t}
    v_add_lshl_u32 v{dst}, v{dst}, v{t}, 7""")
def frag_off(a, dst, srb, lane, t):
    a(f"v_lshrrev_b32 v{t}, 3, v{lane}\nv_lshl_add_u32 v{t}, s{srb}, 3, v{t}")
    phys_line(a, dst, t, t + 1)
    a(f"v_and_b32 v{t}, 7, v{lane}\nv_lshl_add_u32 v{dst}, v{t}, 4, v{dst}")
def tr_lane(a, T, lane, korder, colperm):
    a(f"""
    v_lshrrev_b32 v{T}, 5, v{lane}
    v_bfe_u32 v{T+1}, v{lane}, 4, 1
    v_bfe_u32 v{T+2}, v{lane}, 2, 2
    v_and_b32 v{T+3}, 3, v{lane}""")
    if colperm:
        a(f"v_lshrrev_b32 v{T+4}, 1, v{T+3}\nv_and_b32 v{T+3}, 1, v{T+3}\nv_lshl_add_u32 v{T+3}, v{T+3}, 1, v{T+4}")
    a(f"v_lshl_add_u32 v{T+4}, v{T}, {2 if korder=='split' else 3}, v{T+2}")
def panel_rd(a, T, e, o):
    a(f"""
    v_lshlrev_b32 v{T+4}, 7, v{T+4}
    v_lshl_add_u32 v{T+4}, v{T+1}, 5, v{T+4}
    v_lshl_add_u32 v{T+4}, v{T+3}, 3, v{T+4}
    v_lshrrev_b32 v{T+5}, 1, v{T+2}
    v_lshlrev_b32 v{T+5}, 6, v{T+5}
    v_add_u32 v{e}, v{T+4}, v{T+5}
    v_sub_u32 v{o}, v{T+4}, v{T+5}
    v_add_u32 v{o}, 64, v{o}""")
def panel_src(a, T, lane):
    a(f"""
    v_lshrrev_b32 v{T}, 3, v{lane}
    v_and_b32 v{T+1}, 7, v{lane}
    v_bfe_u32 v{T+2}, v{lane}, 4, 1
    v_lshlrev_b32 v{T+2}, 2, v{T+2}
    v_xor_b32 v{T+1}, v{T+1}, v{T+2}""")

SK_LDS = 65536 + 2048
def skinny(k, tag, mode, nt, pace=0, flag=False, nw=8, mid=None):
    a = k.a; NV = 1 if mode == "silu" else 2
    NC = 8 // nw; lg = (NC - 1).bit_length() if NC > 1 else 0
    VX = 100
    a(f"""
    s_lshl_b32 s55, s26, {6+lg}
    s_add_u32 s56, s52, s55""")
    if mode == "silu":
        a("v_add_lshl_u32 v4, v1, s56, 1")
        for c in range(NC): a(f"buffer_load_ushort v{VX+4*c}, v4, s[12:15], 0 offen offset:{128*c}")
    else:
        a("v_add_lshl_u32 v4, v1, s56, 2")
        for i, (p, idx) in enumerate([(0, 4), (1, 4), (0, 3), (1, 3)]):
            a(f"s_mov_b32 s57, {p*6144*4 + idx*4096}")
            for c in range(NC): a(f"buffer_load_dword v{VX+4*c+i}, v4, s[12:15], s57 offen offset:{256*c}")
    panel_src(a, 5, 1)
    a(f"""
    v_add_u32 v5, s55, v5
    v_mul_lo_u32 v5, v5, s51
    v_lshl_add_u32 v5, v6, 4, v5
    s_lshl_b32 s57, s26, {13+lg}
    s_lshl_b32 s59, s51, 3""")
    def dmas():
        for g in range(8 * NC):
            a(f"s_add_u32 m0, s57, {1024*g}\ns_nop 0\nbuffer_load_dwordx4 v5, s[8:11], s50 offen{nt} lds\ns_add_u32 s50, s50, s59")
            if pace and g < 8 * NC - 1: a(f"s_waitcnt vmcnt({pace-1})")
    if not mid: dmas()
    tr_lane(a, 12, 1, "contig", False)
    panel_rd(a, 12, 18, 19)
    a(f"""
    v_add_u32 v18, s57, v18
    v_add_u32 v19, s57, v19
    s_lshl_b32 s58, s26, {8+lg}
    s_add_u32 s58, s58, 0x10000
    v_lshl_add_u32 v6, v1, 1, s58
    v_and_b32 v7, 31, v1
    v_lshrrev_b32 v12, 5, v1
    v_lshlrev_b32 v12, 4, v12
    v_lshl_add_u32 v12, v7, 7, v12
    v_add_u32 v12, s58, v12
    s_waitcnt vmcnt({0 if mid else 8*NC})""")
    for c in range(NC):
        x = VX + 4 * c
        if mode == "silu":
            a(f"""
            v_lshlrev_b32 v{x}, 16, v{x}
            v_mul_f32 v{x+1}, {fx(-LOG2E)}, v{x}
            v_exp_f32 v{x+1}, v{x+1}
            v_add_f32 v{x+1}, 1.0, v{x+1}
            v_rcp_f32 v{x+1}, v{x+1}
            v_mul_f32 v{x}, v{x}, v{x+1}
            v_cvt_pk_bf16_f32 v{x}, v{x}, v{x}
            ds_write_b16 v6, v{x} offset:{256*c}""")
        else:
            a(f"v_add_f32 v{x}, v{x}, v{x+1}\nv_add_f32 v{x+2}, v{x+2}, v{x+3}")
            rbf(a, x)
            a(f"v_add_f32 v{x}, 1.0, v{x}\nv_cvt_pk_bf16_f32 v{x}, v{x}, v{x}\nv_cvt_pk_bf16_f32 v{x+2}, v{x+2}, v{x+2}")
            a(f"ds_write_b16 v6, v{x} offset:{256*c}\nds_write_b16 v6, v{x+2} offset:{256*c+128}")
    for i in range(16): a(f"v_mov_b32 v{20+i}, 0")
    if mid:
        dmas(); mid()
    a(f"v_cmp_gt_u32 vcc, {NV}, v7\ns_waitcnt vmcnt(0) lgkmcnt(0)")
    for c in range(NC):
        a("s_and_saveexec_b64 s[60:61], vcc")
        for sub in range(4): a(f"ds_read_b128 {v(20+4*sub,4)}, v12 offset:{32*sub+256*c}")
        a("s_mov_b64 exec, s[60:61]")
        for sub in range(4):
            for j in range(2):
                for r_ in range(2):
                    a(f"ds_read_b64_tr_b16 {v(36+8*sub+4*j+2*r_,2)}, v{18+j} offset:{128*(16*sub+4*r_)+8192*c}")
        for sub in range(4):
            a(f"s_waitcnt lgkmcnt({12-4*sub})")
            for j in range(2):
                d = v(68 + 16 * j, 16)
                a(f"v_mfma_f32_32x32x16_bf16 {d}, {v(20+4*sub,4)}, {v(36+8*sub+4*j,4)}, {d if (sub or c) else 0}")
    a(f"""
    v_lshl_add_u32 v6, v1, 2, s57
    v_cmp_gt_u32 vcc, 32, v1
    s_and_saveexec_b64 s[60:61], vcc""")
    for j in range(2):
        for q in range(NV): a(f"ds_write_b32 v6, v{68+16*j+q} offset:{256*q+128*j}")
    a(f"""
    s_mov_b64 exec, s[60:61]
    s_waitcnt lgkmcnt(0)
    s_barrier
    s_cmp_ge_u32 s26, {NV}
    s_cbranch_scc1 {k.name}_end
    s_lshl_b32 s57, s26, 8
    v_lshl_add_u32 v6, v1, 2, s57""")
    for w in range(nw): a(f"ds_read_b32 v{8+w}, v6 offset:{8192*NC*w}")
    a(f"s_mul_i32 s57, s26, s54\ns_add_u32 s53, s53, s57\nv_lshlrev_b32 v6, 2, v1\ns_waitcnt lgkmcnt(0)")
    for w in (4, 2, 1):
        if w < nw:
            for i in range(w): a(f"v_add_f32 v{8+i}, v{8+i}, v{8+w+i}")
    if not flag:
        a("buffer_store_dword v8, v6, s[16:19], s53 offen\ns_endpgm")
        return
    a("""
    buffer_store_dword v8, v6, s[16:19], s53 offen sc1
    s_lshl_b32 s57, s2, 2
    v_mov_b32 v9, 1
    v_mov_b32 v6, s57
    s_mov_b64 exec, 1
    s_waitcnt vmcnt(0)
    buffer_store_dword v9, v6, s[20:23], 0 offen sc1
    s_endpgm""")

def prefetch(a, gid, ps, nbytes, start, vt, srd_s=20):
    srd(a, srd_s, ps, 0, nbytes)
    a(f"""
    v_subrev_u32 v{vt}, {start}, v{gid}
    v_cmp_gt_u32 vcc, {nbytes//128}, v{vt}
    v_lshlrev_b32 v{vt}, 7, v{vt}
    v_mov_b32 v{vt+1}, 0x80000000
    v_cndmask_b32 v{vt}, v{vt+1}, v{vt}, vcc
    buffer_load_dword v{vt+1}, v{vt}, {s(srd_s,4)}, 0 offen""")

def strip_copy_issue(a, gid, ps, K, ldb, npan, start, vt, srd_s=20):
    srd(a, srd_s, ps, 0, K * ldb)
    n = 2 * npan
    a(f"""
    v_subrev_u32 v{vt}, {start}, v{gid}
    v_cmp_gt_u32 vcc, {K*n*8}, v{vt}
    v_and_b32 v{vt+1}, 7, v{vt}
    v_lshrrev_b32 v{vt}, 3, v{vt}""")
    if npan == 1:
        a(f"v_lshrrev_b32 v{vt+2}, 1, v{vt}\nv_and_b32 v{vt+3}, 1, v{vt}\nv_lshlrev_b32 v{vt+3}, 10, v{vt+3}")
    else:
        a(f"""
        v_mul_u32_u24 v{vt+2}, 10923, v{vt}
        v_lshrrev_b32 v{vt+2}, 16, v{vt+2}
        v_mul_u32_u24 v{vt+3}, 6, v{vt+2}
        v_sub_u32 v{vt+3}, v{vt}, v{vt+3}
        v_lshlrev_b32 v{vt+4}, 11, v{vt+3}
        v_add_u32 v{vt+3}, 5, v{vt+3}
        v_lshrrev_b32 v{vt+3}, 3, v{vt+3}
        v_mul_u32_u24 v{vt+3}, {6144-1024}, v{vt+3}
        v_sub_u32 v{vt+3}, v{vt+4}, v{vt+3}""")
    a(f"""
    v_mul_u32_u24 v{vt+2}, {ldb}, v{vt+2}
    v_add3_u32 v{vt+2}, v{vt+2}, v{vt+3}, 0
    v_lshl_add_u32 v{vt+2}, v{vt+1}, 4, v{vt+2}
    v_add_u32 v{vt+2}, 384, v{vt+2}
    v_mov_b32 v{vt+3}, 0x80000000
    v_cndmask_b32 v{vt+2}, v{vt+3}, v{vt+2}, vcc
    v_lshlrev_b32 v{vt}, 8, v{vt}
    v_lshl_add_u32 v{vt}, v{vt+1}, 4, v{vt}
    v_cndmask_b32 v{vt}, v{vt+3}, v{vt}, vcc
    buffer_load_dwordx4 {v(vt+4,4)}, v{vt+2}, {s(srd_s,4)}, 0 offen""")
def strip_copy_store(a, ws_s, off, size, vt, srd_s=20):
    srd(a, srd_s, ws_s, off, size)
    a(f"buffer_store_dwordx4 {v(vt+4,4)}, v{vt}, {s(srd_s,4)}, 0 offen sc1")

ORDER = []
def code_srd(k, d, start, upto=None, nwg=8):
    if EXP.get("nocpf"): nwg = 0
    i = ORDER.index(k.name)
    end = upto or (ORDER[min(i + 1, len(ORDER) - 1)] + "_end")
    lab = f"{k.name}_pc{d}"
    k.a(f"""
    s_getpc_b64 {s(d,2)}
{lab}:
    s_add_u32 s{d}, s{d}, {start}-{lab}
    s_addc_u32 s{d+1}, s{d+1}, 0
    s_mov_b32 s{d+2}, {end}-{start}+4
    s_cmp_lt_u32 s2, {nwg}
    s_cselect_b32 s{d+2}, s{d+2}, 0
    s_mov_b32 s{d+3}, 0x20000""")
def wave_lane(a):
    a("v_lshrrev_b32 v2, 6, v0\nv_and_b32 v1, 63, v0\nv_readfirstlane_b32 s26, v2")

def red32(a, x, t):
    for m in ("quad_perm:[1,0,3,2]", "quad_perm:[2,3,0,1]", "row_half_mirror", "row_mirror"):
        a(f"v_add_f32_dpp v{x}, v{x}, v{x} {m} row_mask:0xf bank_mask:0xf")
    a(f"v_mov_b32 v{t}, v{x}\nv_permlane16_swap_b32 v{x}, v{t}\nv_add_f32 v{x}, v{x}, v{t}")

QPRE = 256
def k_pre():
    k = Kernel("pre_kernel", 256, 512, SK_LDS, 112); a = k.a
    guard(k)
    code_srd(k, 88, "pre_kernel_top", ORDER[-1] + "_end")
    a("v_lshlrev_b32 v108, 7, v0\nbuffer_load_dword v109, v108, s[88:91], 0 offen\npre_kernel_top:")
    load_ptrs(a, [(40, P_C), (42, P_WMOD), (44, P_WS), (46, P_WQKV), (48, P_X), (62, P_DBG)])
    wave_lane(a)
    a(f"""
    s_cmp_ge_u32 s2, 128
    s_cbranch_scc1 pre_side
    s_and_b32 s32, s2, 1
    s_lshr_b32 s33, s2, 1
    s_cmp_ge_u32 s33, 32
    s_cselect_b32 s34, 16, 0
    s_add_u32 s33, s33, s34
    s_lshl_b32 s52, s32, 9
    s_mov_b32 s51, 12288
    s_mul_i32 s50, s52, s51
    s_lshl_b32 s34, s33, 7
    s_add_u32 s50, s50, s34
    s_mul_i32 s53, s32, {6144*4}
    s_lshl_b32 s34, s33, 8
    s_add_u32 s53, s53, s34
    s_mov_b32 s54, 0
    s_waitcnt lgkmcnt(0)""")
    srd(a, 8, 42, 0, 1024 * 12288); srd(a, 12, 40, 0, 2048); srd(a, 16, 44, WS_MODP, KS * 6144 * 4)
    F2 = EXP.get("fuse1", 1) == 2
    if F2: srd(a, 20, 62, 0, 256)
    skinny(k, "m", "silu", " nt" if EXP.get("mnt", 1) else "", flag=F2)
    a("""
pre_side:
    s_sub_u32 s27, s2, 128
    s_lshl_b32 s32, s27, 9
    v_add_u32 v3, s32, v0""")
    if not EXP.get("fuse1", 1):
        a("s_waitcnt lgkmcnt(0)")
        strip_copy_issue(a, 3, 46, 1024, 6144, 3, 0, 8)
        prefetch(a, 3, 46, 1024 * 6144, 65536 - 49152, 20)
        prefetch(a, 3, 48, 2048 * 2048, 0, 24)
        a("s_waitcnt vmcnt(2)")
        strip_copy_store(a, 44, WS_WQ3, 1024 * 1536, 8)
        finish(k)
        return k
    a(f"""
    v_lshrrev_b32 v1, 5, v0
    v_and_b32 v2, 31, v0               ; chunk
    s_lshl_b32 s24, s27, 4
    v_add_u32 v4, s24, v1
    v_lshlrev_b32 v4, 11, v4
    v_lshl_add_u32 v4, v2, 4, v4
    s_waitcnt lgkmcnt(0)""")
    srd(a, 4, 48, 0, 2048 * 2048); srd(a, 12, 44, WS_H1, 64 * SLAB)
    for i in range(4): a(f"buffer_load_dwordx4 {v(8+4*i,4)}, v4, s[4:7], 0 offen offset:{512*i} nt")
    EARLY = (not F2) or EXP.get("pfearly", 1)
    if EARLY:
        strip_copy_issue(a, 3, 46, 1024, 6144, 3, 0, 64)
        prefetch(a, 3, 46, QPRE * 6144, 65536 - QPRE * 48, 72)
    a(f"""
    s_lshr_b32 s25, s27, 1
    s_lshl_b32 s25, s25, 3
    s_and_b32 s26, s27, 1
    s_lshl_b32 s26, s26, 1
    s_add_u32 s25, s25, s26
    v_bfe_u32 v26, v0, 4, 1
    v_lshl_add_u32 v26, v26, 2, s25
    v_bfe_u32 v27, v0, 3, 1
    v_add_u32 v26, v26, v27""")
    phys_line(a, 25, 26, 27)
    a(f"""
    v_and_b32 v26, 7, v0
    v_lshl_add_u32 v25, v26, 4, v25
    s_mov_b32 s25, {SLAB}
    v_mul_lo_u32 v27, v1, s25
    v_add_u32 v25, v25, v27
    v_lshrrev_b32 v27, 4, v0
    v_mul_u32_u24 v27, 272, v27
    v_and_b32 v26, 15, v0
    v_lshl_add_u32 v27, v26, 4, v27
    v_mul_u32_u24 v28, 272, v2
    v_lshl_add_u32 v28, v1, 4, v28
    s_waitcnt vmcnt({2 if EARLY else 0})""")
    if not EARLY:
        a("""
        v_subrev_u32 v5, 64, v0
        s_mul_i32 s32, s27, 448
        v_add_u32 v5, s32, v5
        v_mov_b32 v29, 0x40000000
        v_cmp_gt_u32 vcc, 64, v0
        v_cndmask_b32 v3, v5, v29, vcc""")
        strip_copy_issue(a, 3, 46, 1024, 6144, 3, 0, 64)
        prefetch(a, 3, 46, QPRE * 6144, 57344 - QPRE * 48, 72)
    unpack(a, 32, 8, 16)
    a("v_add_f32 v6, v32, v33\nv_add_f32 v7, v34, v35")
    for i in range(4, 32): a(f"v_add_f32 v{6+i%2}, v{6+i%2}, v{32+i}")
    a("v_add_f32 v6, v6, v7")
    red32(a, 6, 7)
    a(f"v_mul_f32 v6, {fx(1/1024)}, v6")
    for i in range(32): a(f"v_sub_f32 v{32+i}, v{32+i}, v6")
    a("v_mul_f32 v6, v32, v32\nv_mul_f32 v7, v33, v33")
    for i in range(2, 32): a(f"v_fmac_f32 v{6+i%2}, v{32+i}, v{32+i}")
    a("v_add_f32 v6, v6, v7")
    red32(a, 6, 7)
    a(f"""
    v_mov_b32 v7, {fx(1e-5)}
    v_fmac_f32 v7, {fx(1/1024)}, v6
    v_rsq_f32 v6, v7""")
    if not F2:
        for i in range(4):
            for j in range(8): a(f"v_mul_f32 v{32+8*i+j}, v{32+8*i+j}, v6")
            for j in range(4): a(f"v_cvt_pk_f16_f32 v{8+4*i+j}, v{32+8*i+2*j}, v{33+8*i+2*j}")
            a(f"ds_write_b128 v28, {v(8+4*i,4)} offset:{32*272*i}")
    else:
        CL = 36864
        for i in range(32): a(f"v_mul_f32 v{32+i}, v{32+i}, v6")
        srd(a, 16, 62, 0, 256); srd(a, 8, 44, WS_MODP, KS * 6144 * 4)
        a(f"""
        v_lshlrev_b32 v5, 4, v0
        v_lshlrev_b32 v24, 5, v2
        v_lshrrev_b32 v7, 6, v0
        v_lshlrev_b32 v6, 2, v0
        v_readfirstlane_b32 s26, v7
        s_cmp_lg_u32 s26, 0
        s_cbranch_scc1 pre_go
pre_poll:
        buffer_load_dword v7, v6, s[16:19], 0 offen sc1
        s_waitcnt vmcnt(0)
        v_cmp_eq_u32 vcc, 1, v7
        s_cmp_eq_u64 vcc, -1
        s_cbranch_scc1 pre_go
        s_sleep 1
        s_branch pre_poll
pre_go:
        s_barrier
        s_mov_b32 s32, {6144*4}
        buffer_load_dwordx4 v[8:11], v5, s[8:11], 0 offen sc1
        buffer_load_dwordx4 v[12:15], v5, s[8:11], s32 offen sc1
        s_cmp_ge_u32 s26, 4
        s_cselect_b32 s33, 1.0, 0
        s_waitcnt vmcnt(0)""")
        for j in range(4): a(f"v_add_f32 v{8+j}, v{8+j}, v{12+j}")
        for j in range(2): a(f"v_cvt_pk_bf16_f32 v{12+j}, v{8+2*j}, v{9+2*j}")
        unpack(a, 8, 12, 2)
        for j in range(4): a(f"v_add_f32 v{8+j}, s33, v{8+j}")
        for j in range(2): a(f"v_cvt_pk_bf16_f32 v{12+j}, v{8+2*j}, v{9+2*j}")
        unpack(a, 8, 12, 2)
        a(f"ds_write_b128 v5, v[8:11] offset:{CL}\ns_waitcnt lgkmcnt(0)\ns_barrier")
        B0, B1 = 8, 76
        def crd(i):
            B = B0 if i % 2 == 0 else B1
            for n, o in enumerate((4096, 4096 + 16, 0, 16)): a(f"ds_read_b128 {v(B+4*n,4)}, v24 offset:{CL+o+1024*i}")
        crd(0); crd(1)
        for i in range(4):
            B = B0 if i % 2 == 0 else B1
            a(f"s_waitcnt lgkmcnt({[4,5,5,1][i]})")
            for j in range(8): a(f"v_fma_f32 v{32+8*i+j}, v{32+8*i+j}, v{B+j}, v{B+8+j}")
            for j in range(4): a(f"v_cvt_pk_bf16_f32 v{92+j}, v{32+8*i+2*j}, v{33+8*i+2*j}")
            a(f"ds_write_b128 v28, v[92:95] offset:{32*272*i}")
            if i < 2: crd(i + 2)
    a("s_waitcnt lgkmcnt(0)\ns_barrier")
    for i in range(4): a(f"ds_read_b128 {v(32+4*i,4)}, v27 offset:{32*272*i}")
    for i in range(4):
        a(f"s_mov_b32 s25, {16*SLAB*i}\ns_waitcnt lgkmcnt({3-i})\nbuffer_store_dwordx4 {v(32+4*i,4)}, v25, s[12:15], s25 offen sc1")
    if not F2: a("s_waitcnt vmcnt(5)")
    strip_copy_store(a, 44, WS_WQ3, 1024 * 1536, 64)
    finish(k)
    return k

def k_ln(name, src_ptr, dst_off, shift_idx, scale_idx):
    k = Kernel(name, 256, 256, 8192 + 128 * 144, 128); a = k.a
    guard(k)
    load_ptrs(a, [(40, src_ptr), (44, P_WS)])
    code_srd(k, 88, name + "_end")
    a("v_lshlrev_b32 v30, 7, v0\nbuffer_load_dword v31, v30, s[88:91], 0 offen")
    a(f"""
    v_lshrrev_b32 v1, 5, v0
    v_and_b32 v2, 31, v0               ; chunk
    s_lshl_b32 s24, s2, 3
    v_add_u32 v3, s24, v1              ; row
    v_lshlrev_b32 v4, 11, v3
    v_lshl_add_u32 v4, v2, 4, v4
    v_lshlrev_b32 v5, 4, v0            ; tid*16
    s_waitcnt lgkmcnt(0)""")
    srd(a, 4, 40, 0, 2048 * 2048); srd(a, 8, 44, WS_MODP, KS * 6144 * 4); srd(a, 12, 44, dst_off, 64 * SLAB)
    for p in range(KS):
        a(f"s_mov_b32 s25, {p*6144*4 + scale_idx*4096}\nbuffer_load_dwordx4 {v(96+8*p,4)}, v5, s[8:11], s25 offen")
        a(f"s_mov_b32 s25, {p*6144*4 + shift_idx*4096}\nbuffer_load_dwordx4 {v(100+8*p,4)}, v5, s[8:11], s25 offen")
    for i in range(4): a(f"buffer_load_dwordx4 {v(8+4*i,4)}, v4, s[4:7], 0 offen offset:{512*i}")
    a(f"""
    s_lshr_b32 s25, s2, 2
    s_lshl_b32 s25, s25, 3
    s_and_b32 s26, s2, 3
    s_add_u32 s25, s25, s26
    v_bfe_u32 v26, v0, 3, 1
    v_lshl_add_u32 v26, v26, 2, s25""")
    phys_line(a, 25, 26, 27)
    a(f"""
    v_and_b32 v26, 7, v0
    v_lshl_add_u32 v25, v26, 4, v25
    v_lshrrev_b32 v27, 4, v0
    s_mov_b32 s25, {SLAB}
    v_mul_lo_u32 v27, v27, s25
    v_add_u32 v25, v25, v27
    v_lshrrev_b32 v27, 3, v0
    v_mul_u32_u24 v27, 144, v27
    v_lshl_add_u32 v27, v26, 4, v27
    v_mul_u32_u24 v28, 144, v2
    v_lshl_add_u32 v28, v1, 4, v28
    s_waitcnt vmcnt(4)""")
    for p in range(1, KS):
        for j in range(8): a(f"v_add_f32 v{96+j}, v{96+j}, v{96+8*p+j}")
    for j in range(4): a(f"v_cvt_pk_bf16_f32 v{112+j}, v{96+2*j}, v{97+2*j}")
    unpack(a, 96, 112, 4)
    for j in range(4): a(f"v_add_f32 v{96+j}, 1.0, v{96+j}")
    for j in range(2): a(f"v_cvt_pk_bf16_f32 v{112+j}, v{96+2*j}, v{97+2*j}")
    unpack(a, 96, 112, 2)
    a("ds_write_b128 v5, v[96:99]\nds_write_b128 v5, v[100:103] offset:4096")
    a("s_waitcnt vmcnt(0)")
    unpack(a, 32, 8, 16)
    a("v_add_f32 v6, v32, v33\nv_add_f32 v7, v34, v35")
    for i in range(4, 32): a(f"v_add_f32 v{6+i%2}, v{6+i%2}, v{32+i}")
    a("v_add_f32 v6, v6, v7")
    red32(a, 6, 7)
    a(f"v_mul_f32 v6, {fx(1/1024)}, v6")
    for i in range(32): a(f"v_sub_f32 v{32+i}, v{32+i}, v6")
    a("v_mul_f32 v6, v32, v32\nv_mul_f32 v7, v33, v33")
    for i in range(2, 32): a(f"v_fmac_f32 v{6+i%2}, v{32+i}, v{32+i}")
    a("v_add_f32 v6, v6, v7")
    red32(a, 6, 7)
    a(f"""
    v_mov_b32 v7, {fx(1e-5)}
    v_fmac_f32 v7, {fx(1/1024)}, v6
    v_rsq_f32 v6, v7
    v_lshlrev_b32 v24, 5, v2
    s_waitcnt lgkmcnt(0)
    s_barrier""")
    for i in range(4):
        a(f"ds_read_b128 {v(64+16*i,4)}, v24 offset:{1024*i}\nds_read_b128 {v(68+16*i,4)}, v24 offset:{1024*i+16}")
        a(f"ds_read_b128 {v(72+16*i,4)}, v24 offset:{4096+1024*i}\nds_read_b128 {v(76+16*i,4)}, v24 offset:{4096+1024*i+16}")
    for i in range(32): a(f"v_mul_f32 v{32+i}, v{32+i}, v6")
    for i in range(4):
        a(f"s_waitcnt lgkmcnt({12-4*i+i})")
        for j in range(8): a(f"v_fma_f32 v{32+8*i+j}, v{32+8*i+j}, v{64+16*i+j}, v{72+16*i+j}")
        for j in range(4): a(f"v_cvt_pk_bf16_f32 v{8+4*i+j}, v{32+8*i+2*j}, v{33+8*i+2*j}")
        a(f"ds_write_b128 v28, {v(8+4*i,4)} offset:{8192+32*144*i}")
    a("s_waitcnt lgkmcnt(0)\ns_barrier")
    for i in range(4): a(f"ds_read_b128 {v(32+4*i,4)}, v27 offset:{8192+32*144*i}")
    for i in range(4):
        a(f"s_mov_b32 s25, {16*SLAB*i}\ns_waitcnt lgkmcnt({3-i})\nbuffer_store_dwordx4 {v(32+4*i,4)}, v25, s[12:15], s25 offen sc1")
    finish(k)
    return k

def tile_map(a, TM, TN, xm, xn):
    tm_per, tn_per = TM // xm, TN // xn
    assert tm_per & (tm_per - 1) == 0
    a(f"""
    s_and_b32 s32, s2, 7
    s_lshr_b32 s33, s2, 3
    s_lshr_b32 s34, s32, {xn.bit_length()-1}
    s_and_b32 s35, s32, {xn-1}
    s_and_b32 s24, s33, {tm_per-1}
    s_lshr_b32 s25, s33, {tm_per.bit_length()-1}
    s_mul_i32 s34, s34, {tm_per}
    s_add_u32 s24, s24, s34
    s_mul_i32 s35, s35, {tn_per}
    s_add_u32 s25, s25, s35""")
    wave_lane(a)

def k_gemm(name, K, MB, NB, DA, R, U, PEEL, CAP, INIT, btype, a_off, korder, colperm, orient, TM, TN, xm, xn,
           ptrs, setup, epilogue, ldb, alt=None, big=False, ntemp=24, xlds=0, nxa=0, FB=1, mod=False):
    S = K // 16; NST = K // 64; WG = EXP.get(name[0] + 'WG', 2 if mod else 1)
    assert (NST - PEEL) % U == 0 and (4 * U) % DA == 0 and (4 * PEEL) % DA == 0 and (4 * U) % FB == 0 and (4 * PEEL) % FB == 0
    if btype == "panel":
        NP = NB // 2; STAGE = NP * 8192; ND = 2 * NP
    else:
        UPOFF = 16 * (64 * 14 + 8); STAGE = 2 * UPOFF; ND = 7
    VRE0, VRO0, VRE, VRO, VA = 3, 4, 5, 6, 7
    VB = VA + MB
    nfix = VB + ND
    if big:
        ACC = 256 - 16 * NB * MB; fk = "a"; BF = 0; AR = 4 * NB * FB; XA = AR + 4 * MB * DA; na = XA + nxa; nv = 256
        TMP = (nfix + 1) // 2 * 2; assert TMP + 14 <= ACC
    else:
        TMP = (nfix + 3) // 4 * 4
        ACC = (TMP + ntemp + 3) // 4 * 4
        fk = "v"; BF = ACC + 16 * NB * MB; AR = BF + 4 * NB * FB; nv = AR + 4 * MB * DA; na = 0; XA = None
        if mod: CM0 = nv; HF = CM0 + 32; VC = HF + 8; nv = VC + 1
    k = Kernel(name, TM * TN, 256, STAGE * R + xlds, nv, na); a = k.a
    k.ACC, k.TMP, k.MB, k.NB, k.BF, k.AR, k.VA, k.XL, k.XA = ACC, TMP, MB, NB, BF, AR, VA, STAGE * R, XA
    acc = lambda j, tb: ACC + 16 * (j * MB + tb)
    k.acc = acc
    guard(k)
    stamp(k, 0)
    load_ptrs(a, ptrs)
    tile_map(a, TM, TN, xm, xn)
    T = TMP
    a(f"s_lshl_b32 s37, s24, 2\ns_add_u32 s37, s37, s26\ns_mul_i32 s37, s37, {MB}")
    rd_rows = 8 if korder == "split" else 4
    if btype == "panel":
        off_alt, ldb_alt, pst_alt, sst_alt = alt
        a(f"""
        s_and_b32 s32, s25, 7
        s_lshr_b32 s33, s25, 3
        s_mul_i32 s33, s33, {sst_alt}
        s_lshl_b32 s34, s25, 7
        s_mov_b32 s51, {ldb}
        s_mov_b32 s52, 2048
        s_cmp_eq_u32 s32, {3 if not EXP.get('noalt') else 99}
        s_cselect_b32 s50, s33, s34
        s_cselect_b32 s51, {ldb_alt}, s51
        s_cselect_b32 s52, {pst_alt}, s52
        s_cselect_b32 s53, 1, 0
        s_lshl_b32 s39, s51, 6
        s_lshl_b32 s54, s51, 3""")
        panel_src(a, T, 1)
        a(f"""
        s_lshl_b32 s32, s26, 4
        v_add_u32 v{T}, s32, v{T}
        v_mul_lo_u32 v{T}, v{T}, s51
        v_lshl_add_u32 v{T}, v{T+1}, 4, v{T}
        v_add_u32 v{VB}, s50, v{T}
        v_add_u32 v{VB+1}, s54, v{VB}""")
        for p in range(1, NP):
            a(f"v_add_u32 v{VB+2*p}, s52, v{VB+2*p-2}\nv_add_u32 v{VB+2*p+1}, s52, v{VB+2*p-1}")
        dma_lds = [p * 8192 + g * 1024 for p in range(NP) for g in range(2)]
        a("s_lshl_b32 s36, s26, 11")
    else:
        a(f"""
        s_and_b32 s32, s26, 1
        s_mul_i32 s33, s32, {32*ldb}
        s_mul_i32 s34, s25, 224
        s_add_u32 s33, s33, s34
        s_mov_b32 s39, {64*ldb}""")
        for i in range(7):
            a(f"""
            v_add_u32 v{T}, {64*i}, v1
            v_mul_u32_u24 v{T+1}, 4682, v{T}
            v_lshrrev_b32 v{T+1}, 16, v{T+1}
            v_lshl_add_u32 v{T}, v{T}, 4, s33
            v_mul_u32_u24 v{T+1}, {ldb-224}, v{T+1}
            v_add_u32 v{VB+i}, v{T}, v{T+1}""")
        dma_lds = [1024 * i for i in range(7)]
        a(f"""
        s_mul_i32 s36, s32, 7168
        s_lshr_b32 s33, s26, 1
        s_mul_i32 s33, s33, {UPOFF}
        s_add_u32 s36, s36, s33""")
    for tb in range(MB):
        if tb: a(f"s_add_u32 s32, s37, {tb}")
        frag_off(a, VA + tb, 32 if tb else 37, 1, T)
    a(f"""
    s_mov_b32 s27, 0
    s_mov_b32 s28, 0
    s_mov_b32 s29, s36
    s_add_u32 s38, s36, {R*STAGE}
    s_mov_b32 s31, {(R-1)*STAGE}
    s_waitcnt lgkmcnt(0)""")
    srd(a, 4, 44, a_off, S * SLAB)
    if btype == "panel":
        a(f"""
        s_add_u32 s32, s44, {off_alt}
        s_addc_u32 s33, s45, 0
        s_cmp_eq_u32 s53, 1
        s_cselect_b32 s8, s32, s40
        s_cselect_b32 s9, s33, s41
        s_mul_i32 s10, s51, {K}
        s_mov_b32 s11, 0x20000""")
    else:
        a("s_cmp_ge_u32 s26, 2\ns_cselect_b32 s8, s42, s40\ns_cselect_b32 s9, s43, s41")
        a(f"s_mov_b32 s10, {K*ldb}\ns_mov_b32 s11, 0x20000")

    def late_setup():
        code_srd(k, 92, name + "_epi")
        a("v_lshlrev_b32 v2, 7, v0")
        tr_lane(a, T, 1, korder, colperm)
        if btype == "panel": panel_rd(a, T, VRE0, VRO0)
        else:
            a(f"""
            v_mul_u32_u24 v{T+4}, 224, v{T+4}
            v_lshl_add_u32 v{T+4}, v{T+3}, 3, v{T+4}
            v_mul_u32_u24 v{T+5}, {UPOFF}, v{T+1}
            v_add_u32 v{VRE0}, v{T+4}, v{T+5}""")
    if btype == "panel":
        def rd(j, sub, r_): return (VRE if j % 2 == 0 else VRO), (j // 2) * 8192 + 128 * (16 * sub + rd_rows * r_)
    else:
        def rd(j, sub, r_): return VRE, 32 * j + 224 * (16 * sub + rd_rows * r_)

    BOFF = 4 - FB
    def make_ops(extra):
        ops = []
        for ta in range(S + DA + 8):
            for tb in range(MB):
                ins = [f"buffer_load_dwordx4 {rr(fk, AR+4*(MB*(ta%DA)+tb), 4)}, v{VA+tb}, s[4:7], s27 offen"]
                if tb == MB - 1: ins.append(f"s_add_u32 s27, s27, {SLAB}")
                ops.append([ta - (1 if mod else 0), ta + (0 if mod else 1) - DA, len(ops), ins, ("A", ta)])
        for st in range(NST + R + 2):
            for i in range(ND):
                ins = [f"s_add_u32 m0, s29, {dma_lds[i]}", f"buffer_load_dwordx4 v{VB+i}, s[8:11], s28 offen lds"]
                if i == ND - 1:
                    ins += ["s_add_u32 s28, s28, s39", f"s_add_u32 s29, s29, {STAGE}", "s_cmp_eq_u32 s29, s38\ns_cselect_b32 s29, s36, s29"]
                ops.append([4 * st - FB - 0.5, 4 * (st + 2 - R) - FB + i * 4 // ND, len(ops), ins, ("B", st)])
        for need, ins in extra: ops.append([need, -999, len(ops), ins, ("X",)])
        ops.sort(key=lambda o: (o[0], o[2]))
        return ops

    cnt = Cnt()
    def run(emit):
        def E(x):
            if emit: emit(x)
        extra = setup(k, emit)
        ops = make_ops(extra)
        def take(t, cap):
            got = []
            for o in ops:
                if len(got) >= cap: break
                if o[1] <= t: got.append(o)
            for o in got: ops.remove(o)
            fl = []
            for o in got:
                for x in o[3]: fl.append((x, o[4] if x.startswith("buffer_") else None))
            return fl
        def W(site, c, nm, tags):
            cnt.wait(c, (site, nm), tags)
            E(cnt.text(c, (site, nm)))
        def flush(fill, n):
            for _ in range(n):
                if not fill: return
                x, tag = fill.pop(0)
                if x == "W": W(*tag); continue
                E(x)
                if tag and tag[0] == "L": cnt.issue("lg", tag[1])
                elif tag: cnt.issue("vm", tag)
        def barrier(site, st):
            W(site, "vm", "bar", {("B", st)})
            E("s_barrier")
            E(f"s_add_u32 s31, s31, {STAGE}\ns_cmp_eq_u32 s31, {R*STAGE}\ns_cselect_b32 s31, 0, s31\nv_add_u32 v{VRE}, s31, v{VRE0}")
            if btype == "panel": E(f"v_add_u32 v{VRO}, s31, v{VRO0}")
        def reads(tt, j):
            for r_ in range(2):
                base, off = rd(j, tt % 4, r_)
                E(f"ds_read_b64_tr_b16 {rr(fk, BF+4*(NB*(tt%FB)+j)+2*r_, 2)}, v{base} offset:{off}")
                cnt.issue("lg", ("F", tt, j))
        def cread(tt):
            base = (tt if tt < 4 * PEEL + 2 else 4 * PEEL + (tt - 4 * PEEL - 2) % (4 * U) + 2) * 128
            out = []; CM = CM0 + 16 * (tt % 2)
            for n in range(4): out.append((f"ds_read_b128 {v(CM+4*n,4)}, v{VC} offset:{base+16*n}", ("L", ("C", tt))))
            return out
        def xform(tt):
            r = AR + 4 * (tt % DA); out = []; CM = CM0 + 16 * (tt % 2)
            for i in range(8):
                out.append((f"v_fma_mix_f32 v{CM+8+i}, v{r+i//2}, v{CM+i}, v{CM+8+i} " + ("op_sel:[1,0,0] " if i % 2 else "") + "op_sel_hi:[1,0,0]", None))
            for i in range(4): out.append((f"v_cvt_pk_bf16_f32 v{HF+4*(tt%2)+i}, v{CM+8+2*i}, v{CM+9+2*i}", None))
            return out
        if mod:
            if emit:
                srd(a, 20, 44, WS_MODP, KS * 6144 * 4)
                a(f"v_lshlrev_b32 v{VC}, 4, v0")
            for p in range(KS):
                for n, idx in enumerate((1, 0)):
                    E(f"s_mov_b32 s32, {p*6144*4 + idx*4096}\nbuffer_load_dwordx4 {v(ACC+8*p+4*n,4)}, v{VC}, s[20:23], s32 offen")
                    cnt.issue("vm", ("M",))
        flush(take(-FB - 1, INIT), 999)
        if mod:
            if emit:
                a(f"""
                v_lshrrev_b32 v{ACC+24}, 1, v0
                v_lshlrev_b32 v{ACC+24}, 6, v{ACC+24}
                v_and_b32 v{ACC+25}, 1, v0
                v_lshl_add_u32 v{ACC+24}, v{ACC+25}, 4, v{ACC+24}
                v_add_u32 v{ACC+24}, {STAGE*R}, v{ACC+24}
                v_lshrrev_b32 v{VC}, 5, v1
                v_lshlrev_b32 v{VC}, 6, v{VC}
                v_add_u32 v{VC}, {STAGE*R}, v{VC}""")
        if emit:
            late_setup()
        if mod:
            W("pro", "vm", "M", {("M",)})
            if emit:
                for j in range(8): a(f"v_add_f32 v{ACC+j}, v{ACC+j}, v{ACC+8+j}")
                for j in range(4): a(f"v_cvt_pk_bf16_f32 v{ACC+16+j}, v{ACC+2*j}, v{ACC+2*j+1}")
                unpack(a, ACC, ACC + 16, 4)
                for j in range(4): a(f"v_add_f32 v{ACC+j}, 1.0, v{ACC+j}")
                for j in range(2): a(f"v_cvt_pk_bf16_f32 v{ACC+16+j}, v{ACC+2*j}, v{ACC+2*j+1}")
                unpack(a, ACC, ACC + 16, 2)
                a(f"ds_write_b128 v{ACC+24}, {v(ACC,4)}\nds_write_b128 v{ACC+24}, {v(ACC+4,4)} offset:32\ns_waitcnt lgkmcnt(0)")
        if emit:
            if PEEL == 0:
                for i in range(16 * NB * MB): a(f"v_mov_b32 v{ACC+i}, 0")
        barrier("pro", 0)
        if mod: flush(cread(0) + cread(1), 99)
        for tt in range(FB):
            for j in range(NB): reads(tt, j)
        if mod:
            assert PEEL > 0
            W("pro", "vm", "A", {("A", 0)}); W("pro", "lg", "C", {("C", 0)})
            flush(xform(0), 99)
        if PEEL == 0: flush(take(-1, 999), 999)
        if emit: stamp(k, 1)
        for t in range(S):
            peeled = t < 4 * PEEL
            site = ("p", t) if peeled else (t - 4 * PEEL) % (4 * U)
            if t == 4 * PEEL:
                assert not [o for o in ops if o[1] < t], f"{name}: backlog not drained"
                E(f"s_mov_b32 s30, {(NST-PEEL)//U}\n.p2align 6\n{name}_loop:")
            if t == 4 * PEEL + 4 * U:
                E(f"s_sub_u32 s30, s30, 1\ns_cmp_lg_u32 s30, 0\ns_cbranch_scc1 {name}_loop")
                if emit: return
            sub = t % 4
            fill = take(t, CAP if peeled else 999)
            if not peeled and site == 1: fill.append((f"buffer_load_dword {'v0' if not big else 'a%d' % (na - 1)}, v2, s[92:95], 0 offen", ("C",)))
            vfill = []
            if mod:
                xf = [("W", (site, "vm", "A", {("A", t + 1)})), ("W", (site, "lg", "C", {("C", t + 1)}))]
                cr = cread(t + 2)
                if not peeled and site == 4 * U - 1: vfillx = [(f"v_add_u32 v{VC}, {4*U*128}, v{VC}", None)]
                else: vfillx = []
                vfill = xform(t + 1) + vfillx
                fill = cr + fill
            n0 = len(fill); nv0 = len(vfill); nslots = NB * MB; slot = 0
            if not mod: W(site, "vm", "A", {("A", t)})
            for j in range(NB):
                if not mod or (t == 0 and j == 0): W(site, "lg", f"F{j}", {("F", t, min(NB - 1, j + (WG - 1 - j % WG)))})
                for tb in range(MB):
                    af = rr(fk, AR + 4 * (MB * (t % DA) + tb), 4) if not mod else v(HF + 4 * (t % 2), 4); bf = rr(fk, BF + 4 * (NB * (t % FB) + j), 4); c = v(acc(j, tb), 16)
                    x, y = (bf, af) if orient[j] == "tok" else (af, bf)
                    E(f"v_mfma_f32_32x32x16_bf16 {c}, {x}, {y}, {c if (t or PEEL == 0) else 0}")
                    slot += 1
                    if mod:
                        if j == 0: flush(xf, 9)
                        jn, tn_ = (j + 1, t) if j + 1 < NB else (0, t + 1)
                        W(site, "lg", f"N{j}", {("F", tn_, min(NB - 1, jn + (WG - 1 - jn % WG)))})
                    if tb == MB - 1:
                        if j == 0 and sub == BOFF: barrier(site, (t + FB) // 4)
                        reads(t + FB, j)
                    if not (sub == BOFF and j == 0 and tb < MB - 1):
                        flush(fill, max(0, (n0 * slot + nslots - 1) // nslots - (n0 - len(fill))))
                    vs = nslots - EXP.get("qvs", 1)
                    flush(vfill, max(0, (nv0 * min(slot, vs) + vs - 1) // vs - (nv0 - len(vfill))))
            flush(fill, 999)
        if (NST - PEEL) == U: E(f"s_sub_u32 s30, s30, 1\ns_cmp_lg_u32 s30, 0\ns_cbranch_scc1 {name}_loop")
    run(None)
    cnt.reset()
    run(a)
    a(f"{name}_epi:")
    stamp(k, 2)
    epilogue(k)
    stamp(k, 3)
    prof_out(k, 4, KID[name], 26)
    finish(k)
    return k

def k_qkv():
    def setup(k, a):
        if not EXP.get("fuse1", 1) or QPRE >= 1024: return []
        T = k.TMP; per = (1024 - QPRE) * 48 // 1024
        if a: srd(a, 16, 40, QPRE * 6144, (1024 - QPRE) * 6144)
        first = f"""s_lshl_b32 s32, s2, 2
        s_add_u32 s32, s32, s26
        s_lshl_b32 s55, s32, 7
        v_lshlrev_b32 v{T+6}, 17, v1"""
        return [(EXP.get("qpfat", 12), [first, f"buffer_load_dword v{T+7}, v{T+6}, s[16:19], s55 offen"])]
    def epi(k):
        a = k.a; T = k.TMP
        qs = LOG2E / math.sqrt(32)
        srd(a, 12, 44, WS_Q, 4 << 20); srd(a, 16, 44, WS_KV, 8 << 20)
        a(f"""
        v_lshlrev_b32 v{T}, 4, v1
        s_lshl_b32 s32, s25, 7
        s_add_u32 s32, s32, s37
        s_lshl_b32 s33, s32, 11          ; Q offset
        s_lshl_b32 s34, s32, 12
        s_add_u32 s35, s33, {64*2048}
        s_add_u32 s39, s34, {64*4096}""")
        for j in range(6):
            c = k.acc(j, 0)
            if j < 2:
                for i in range(16): a(f"v_mul_f32 v{c+i}, {fx(qs)}, v{c+i}")
            for g in range(2):
                for i in range(4 * g, 4 * g + 4): a(f"v_cvt_pk_bf16_f32 v{c+i}, v{c+2*i}, v{c+2*i+1}")
            for g in range(2):
                if j < 2: a(f"buffer_store_dwordx4 {v(c+4*g,4)}, v{T}, s[12:15], s{33 if j==0 else 35} offen offset:{1024*g} sc1")
                else: a(f"buffer_store_dwordx4 {v(c+4*g,4)}, v{T}, s[16:19], s{34 if j%2==0 else 39} offen offset:{(2048 if j>=4 else 0)+1024*g} sc1")
    return k_gemm("qkv_kernel", 1024, 1, 6, EXP.get("qDA", 8), EXP.get("qR", 4), 2, EXP.get("qPEEL", 4), EXP.get("qCAP", 4), EXP.get("qINIT", 9),
                  "panel", WS_H1, "contig", False, ["tok"]*4 + ["feat"]*2, 16, 16, 2, 4,
                  [(40, P_WQKV), (44, P_WS)], setup, epi, 6144, alt=(WS_WQ3, 1536, 256, 768),
                  mod=EXP.get('fuse1', 1) == 1, xlds=(8192 + 256 if EXP.get('fuse1', 1) == 1 else 0))

def colvec_ops(k, need, dst, idxs, va):
    ops = []
    first = [f"s_lshl_b32 s32, s25, 8\nv_lshl_add_u32 v{va}, v1, 2, s32"]
    for n, idx in enumerate(idxs):
        for p in range(KS):
            ops.append((need, first + [f"s_mov_b32 s32, {p*6144*4 + idx*4096}", f"buffer_load_dword v{dst+2*n+p}, v{va}, s[20:23], s32 offen"]))
            first = []
    return ops

def k_out():
    def setup(k, a):
        T = k.TMP
        if a:
            srd(a, 12, 42, 0, 4 << 20); srd(a, 20, 44, WS_MODP, KS * 6144 * 4)
        ops = colvec_ops(k, 30, T + 8, [2, 4], T + 6)
        first = [f"""v_lshrrev_b32 v{T+12}, 3, v1
        v_and_b32 v{T+7}, 7, v1
        v_xor_b32 v{T+7}, v{T+7}, v{T+12}
        v_lshlrev_b32 v{T+7}, 4, v{T+7}
        v_lshl_add_u32 v{T+7}, v{T+12}, 11, v{T+7}
        s_lshl_b32 s55, s37, 16
        s_lshl_b32 s32, s25, 7
        s_add_u32 s55, s55, s32
        s_lshl_b32 s56, s26, 12
        s_add_u32 s56, s56, {k.XL}"""]
        for i in range(4):
            ops.append((31, first + [f"s_add_u32 m0, s56, {1024*i}", "s_nop 0", f"buffer_load_dwordx4 v{T+7}, s[12:15], s55 offen lds", "s_add_u32 s55, s55, 0x4000"]))
            first = []
        return ops
    def epi(k):
        a = k.a; T = k.TMP; G = T + 16; C = G + 32; X = C + 32; P = X + 32
        srd(a, 12, 44, WS_X2, 64 * SLAB); srd(a, 16, 44, WS_Y2, 64 * SLAB); srd(a, 20, 44, WS_STAT, 16 * 2048 * 8)
        a(f"""
        v_add_f32 v{T+8}, v{T+8}, v{T+9}
        v_add_f32 v{T+10}, v{T+10}, v{T+11}""")
        rbf(a, T + 8); rbf(a, T + 10)
        a(f"v_add_f32 v{T+10}, 1.0, v{T+10}")
        rbf(a, T + 10)
        a(f"""
        s_lshl_b32 s32, s26, 9
        s_add_u32 s32, s32, {k.XL + 16384}
        v_lshl_add_u32 v{T}, v1, 2, s32
        ds_write_b32 v{T}, v{T+8}
        ds_write_b32 v{T}, v{T+10} offset:256
        v_lshrrev_b32 v{T+1}, 5, v1
        v_lshl_add_u32 v{T}, v{T+1}, 5, s32
        v_and_b32 v{T+2}, 31, v1
        v_and_b32 v{T+3}, 7, v1
        v_xor_b32 v{T+3}, v{T+3}, v{T+1}
        v_lshlrev_b32 v{T+3}, 4, v{T+3}
        v_lshl_add_u32 v{T+3}, v{T+2}, 7, v{T+3}
        v_add_u32 v{T+3}, s56, v{T+3}
        s_waitcnt lgkmcnt(0)""")
        for q in range(4):
            a(f"v_xor_b32 v{T+4}, {32*q}, v{T+3}\nds_read_b128 {v(P+4*q,4)}, v{T+4}")
        for q in range(4):
            for hh in range(2): a(f"ds_read_b128 {v(G+8*q+4*hh,4)}, v{T} offset:{64*q+16*hh}")
        a("s_waitcnt lgkmcnt(8)")
        unpack(a, X, P, 16)
        for q in range(4):
            for hh in range(2): a(f"ds_read_b128 {v(C+8*q+4*hh,4)}, v{T} offset:{256+64*q+16*hh}")
        a(f"s_mul_i32 s33, s25, {4*SLAB}\ns_waitcnt lgkmcnt(8)")
        for q in range(4):
            c = k.acc(q // 2, 0) + 8 * (q % 2)
            for i in range(8): a(f"v_fmac_f32 v{X+8*q+i}, v{G+8*q+i}, v{c+i}")
            for i in range(4): a(f"v_cvt_pk_bf16_f32 v{P+4*q+i}, v{X+8*q+2*i}, v{X+8*q+2*i+1}")
            a(f"s_add_u32 s34, s33, {q*SLAB}\nbuffer_store_dwordx4 {v(P+4*q,4)}, v{k.VA}, s[12:15], s34 offen sc1")
        unpack(a, X, P, 16)
        a("s_waitcnt lgkmcnt(0)")
        for q in range(4):
            for i in range(8): a(f"v_mul_f32 v{C+8*q+i}, v{C+8*q+i}, v{X+8*q+i}")
            for i in range(4): a(f"v_cvt_pk_bf16_f32 v{G+4*q+i}, v{C+8*q+2*i}, v{C+8*q+2*i+1}")
            a(f"s_add_u32 s34, s33, {q*SLAB}\nbuffer_store_dwordx4 {v(G+4*q,4)}, v{k.VA}, s[16:19], s34 offen sc1")
        a(f"v_add_f32 v{T+8}, v{X}, v{X+1}\nv_add_f32 v{T+9}, v{X+2}, v{X+3}")
        for i in range(4, 32): a(f"v_add_f32 v{T+8+i%2}, v{T+8+i%2}, v{X+i}")
        a(f"""
        v_add_f32 v{T+8}, v{T+8}, v{T+9}
        v_mov_b32 v{T+9}, v{T+8}
        v_permlane32_swap_b32 v{T+8}, v{T+9}
        v_add_f32 v{T+8}, v{T+8}, v{T+9}
        v_mul_f32 v{T+10}, {fx(1/64)}, v{T+8}""")
        for i in range(32): a(f"v_sub_f32 v{X+i}, v{X+i}, v{T+10}")
        a(f"v_mul_f32 v{T+9}, v{X}, v{X}\nv_mul_f32 v{T+10}, v{X+1}, v{X+1}")
        for i in range(2, 32): a(f"v_fmac_f32 v{T+9+i%2}, v{X+i}, v{X+i}")
        a(f"""
        v_add_f32 v{T+9}, v{T+9}, v{T+10}
        v_mov_b32 v{T+10}, v{T+9}
        v_permlane32_swap_b32 v{T+9}, v{T+10}
        v_add_f32 v{T+9}, v{T+9}, v{T+10}
        v_lshlrev_b32 v{T+2}, 3, v{T+2}
        s_lshl_b32 s32, s25, 14
        s_lshl_b32 s33, s37, 8
        s_add_u32 s32, s32, s33
        s_mov_b32 exec_hi, 0
        buffer_store_dwordx2 {v(T+8,2)}, v{T+2}, s[20:23], s32 offen sc1
        s_mov_b32 exec_hi, -1""")
    return k_gemm("out_kernel", 1024, 1, 2, 16, 6, 4, 0, 99, 999, "panel", WS_O, "split", True, ["tok"]*2, 16, 16, 4, 2,
                  [(40, P_WO), (42, P_X), (44, P_WS)], setup, epi, 2048, alt=(WS_WO3, 512, 0, 256), ntemp=16 + 96 + 16, xlds=16384 + 2048,
                  FB=EXP.get("pFB", 2))

def k_down():
    def setup(k, a):
        T = k.TMP
        if a:
            srd(a, 12, 44, WS_X2, 64 * SLAB); srd(a, 20, 44, WS_MODP, KS * 6144 * 4)
        ops = colvec_ops(k, 30, T + 8, [5], T + 6)
        first = [f"s_mul_i32 s55, s25, {4*SLAB}"]
        for q in range(4):
            ops.append((31, first + [f"buffer_load_dwordx4 {v(T+16+4*q,4)}, v{k.VA}, s[12:15], s55 offen", f"s_add_u32 s55, s55, {SLAB}"]))
            first = []
        return ops
    def epi(k):
        a = k.a; T = k.TMP; P = T + 16; G = P + 16; X = G + 32
        srd(a, 16, 46, 0, 4 << 20)
        a(f"v_add_f32 v{T+8}, v{T+8}, v{T+9}")
        rbf(a, T + 8)
        a(f"""
        s_lshl_b32 s32, s26, 8
        s_add_u32 s32, s32, {k.XL + 16384}
        v_lshl_add_u32 v{T}, v1, 2, s32
        ds_write_b32 v{T}, v{T+8}
        v_lshrrev_b32 v{T+1}, 5, v1
        v_lshl_add_u32 v{T}, v{T+1}, 5, s32
        s_lshl_b32 s56, s26, 12
        s_add_u32 s56, s56, {k.XL}
        v_and_b32 v{T+2}, 31, v1
        v_and_b32 v{T+3}, 7, v1
        v_xor_b32 v{T+3}, v{T+3}, v{T+1}
        v_lshlrev_b32 v{T+3}, 4, v{T+3}
        v_lshl_add_u32 v{T+3}, v{T+2}, 7, v{T+3}
        v_add_u32 v{T+3}, s56, v{T+3}
        s_waitcnt lgkmcnt(0)""")
        for q in range(4):
            for hh in range(2): a(f"ds_read_b128 {v(G+8*q+4*hh,4)}, v{T} offset:{64*q+16*hh}")
        unpack(a, X, P, 16)
        a(f"""
        v_lshl_add_u32 v{T+5}, v1, 4, s56
        v_lshrrev_b32 v{T+6}, 3, v1
        v_and_b32 v{T+7}, 7, v1
        v_xor_b32 v{T+7}, v{T+7}, v{T+6}
        v_lshlrev_b32 v{T+7}, 4, v{T+7}
        v_lshl_add_u32 v{T+7}, v{T+6}, 11, v{T+7}
        s_lshl_b32 s33, s37, 16
        s_lshl_b32 s32, s25, 7
        s_add_u32 s33, s33, s32
        s_waitcnt lgkmcnt(0)""")
        for q in range(4):
            c = k.acc(q // 2, 0) + 8 * (q % 2)
            for i in range(8): a(f"v_fmac_f32 v{X+8*q+i}, v{G+8*q+i}, v{c+i}")
            for i in range(4): a(f"v_cvt_pk_bf16_f32 v{P+4*q+i}, v{X+8*q+2*i}, v{X+8*q+2*i+1}")
            a(f"v_xor_b32 v{T+4}, {32*q}, v{T+3}\nds_write_b128 v{T+4}, {v(P+4*q,4)}")
        a("s_waitcnt lgkmcnt(0)")
        for i in range(4): a(f"ds_read_b128 {v(G+4*i,4)}, v{T+5} offset:{1024*i}")
        for i in range(4):
            a(f"s_waitcnt lgkmcnt({3-i})\nbuffer_store_dwordx4 {v(G+4*i,4)}, v{T+7}, s[16:19], s33 offen sc1\ns_add_u32 s33, s33, 0x4000")
    return k_gemm("down_kernel", 3584, 1, 2, 16, 6, 4, 0, 99, 999, "panel", WS_ACT, "split", True, ["tok"]*2, 16, 16, 4, 2,
                  [(40, P_WD), (44, P_WS), (46, P_OUT)], setup, epi, 2048, alt=(WS_WD3, 512, 0, 256), ntemp=16 + 16 + 64, xlds=16384 + 1024,
                  FB=EXP.get("pFB", 2))

def k_gu():
    def setup(k, a):
        T = k.TMP; XA = k.XA
        if a:
            srd(a, 16, 44, WS_STAT, 16 * 2048 * 8); srd(a, 20, 44, WS_UV, KS * 2 * 7168 * 4)
        ops = []
        first = [f"""v_and_b32 v{T+6}, 31, v1
        v_lshlrev_b32 v{T+6}, 3, v{T+6}
        v_lshrrev_b32 v{T+7}, 5, v1
        v_lshl_add_u32 v{T+6}, v{T+7}, 17, v{T+6}
        s_lshl_b32 s55, s37, 8"""]
        for i in range(8):
            for tb in range(2):
                ops.append((40, first + [f"buffer_load_dwordx2 {a_(XA+16*tb+2*i,2)}, v{T+6}, s[16:19], s55 offen offset:{256*tb}"] + (["s_add_u32 s55, s55, 0x4000"] if tb else [])))
                first = []
        first = [f"""v_cmp_lt_u32 vcc, 111, v0
        v_mov_b32 v{T+7}, {(3584-112)*4}
        v_cndmask_b32 v{T+7}, 0, v{T+7}, vcc
        v_lshl_add_u32 v{T+7}, v0, 2, v{T+7}
        s_mul_i32 s56, s25, 448"""]
        for i in range(4):
            ops.append((41, first + [f"buffer_load_dword a{XA+32+i}, v{T+7}, s[20:23], s56 offen", f"s_add_u32 s56, s56, {7168*4}"]))
            first = []
        return ops
    def epi(k):
        a = k.a; T = k.TMP; XA = k.XA
        c0 = -2 * math.sqrt(2 / math.pi) * LOG2E; c1 = c0 * 0.044715
        srd(a, 12, 44, WS_ACT, 224 * SLAB)
        for i in range(4): a(f"v_accvgpr_read_b32 v{10+i}, a{XA+32+i}")
        a(f"""
        v_add_f32 v10, v10, v12
        v_add_f32 v11, v11, v13
        v_lshlrev_b32 v2, 2, v0
        ds_write_b32 v2, v10 offset:{k.XL % 65536}
        ds_write_b32 v2, v11 offset:{k.XL % 65536 + 1024}""".replace("v_lshlrev_b32 v2, 2, v0", f"v_lshlrev_b32 v2, 2, v0\nv_add_u32 v2, {k.XL // 65536 * 65536}, v2"))
        for tb, D in ((0, 4), (1, 30)):
            for i in range(16): a(f"v_accvgpr_read_b32 v{10+i}, a{XA+16*tb+i}")
            a("v_add_f32 v26, v10, v12\nv_add_f32 v27, v11, v13")
            for i in range(2, 8): a(f"v_add_f32 v26, v26, v{10+2*i}\nv_add_f32 v27, v27, v{11+2*i}")
            a(f"""
            v_mov_b32 v28, v26
            v_permlane32_swap_b32 v26, v28
            v_add_f32 v26, v26, v28
            v_mul_f32 v28, {fx(1/16)}, v26""")
            for i in range(8): a(f"v_sub_f32 v{10+2*i}, v{10+2*i}, v28")
            a("v_mul_f32 v29, v10, v10")
            for i in range(1, 8): a(f"v_fmac_f32 v29, v{10+2*i}, v{10+2*i}")
            a(f"""
            v_fmac_f32 v27, {fx(1/64)}, v29
            v_mov_b32 v28, v27
            v_permlane32_swap_b32 v27, v28
            v_add_f32 v27, v27, v28
            v_mov_b32 v28, {fx(1e-5)}
            v_fmac_f32 v28, {fx(1/1024)}, v27
            v_rsq_f32 v{D}, v28
            v_mul_f32 v26, {fx(-1/1024)}, v26
            v_mul_f32 v{D+1}, v26, v{D}""")
        a(f"""
        v_lshrrev_b32 v9, 5, v1
        v_lshlrev_b32 v9, 4, v9
        v_add_u32 v9, {k.XL}, v9
        s_mul_i32 s32, s25, {7*SLAB}
        s_mov_b32 s34, {fx(c1)}
        s_mov_b32 s35, {fx(c1)}
        v_mov_b32 v26, {fx(c0)}
        v_mov_b32 v27, {fx(c0)}
        v_mov_b32 v28, 1.0
        v_mov_b32 v29, 1.0
        s_waitcnt lgkmcnt(0)
        s_barrier""")
        def rdq(j, q, B):
            o = 64 * j + 32 * q
            for n, oo in enumerate((o, o + 1024, o + 448, o + 448 + 1024)): a(f"ds_read_b128 {v(B+4*n,4)}, v9 offset:{oo}")
        pk = lambda r: v(r, 2)
        def fold(j, q, B):
            for tb, D in ((0, 4), (1, 30)):
                c = k.acc(j, tb) + 4 * q
                for i in (0, 2):
                    a(f"v_pk_fma_f32 {pk(c+i)}, {pk(c+i)}, {pk(D)}, {pk(B+4+i)} op_sel_hi:[1,0,1]")
                    a(f"v_pk_fma_f32 {pk(c+8+i)}, {pk(c+8+i)}, {pk(D)}, {pk(B+12+i)} op_sel_hi:[1,0,1]")
                for i in (0, 2):
                    a(f"v_pk_fma_f32 {pk(c+i)}, {pk(B+i)}, {pk(D)}, {pk(c+i)} op_sel:[0,1,0]")
                    a(f"v_pk_fma_f32 {pk(c+8+i)}, {pk(B+8+i)}, {pk(D)}, {pk(c+8+i)} op_sel:[0,1,0]")
        for j in range(7):
            if j == 0:
                rdq(0, 0, 10); a("s_waitcnt lgkmcnt(0)"); fold(0, 0, 10)
                rdq(0, 1, 10); a("s_waitcnt lgkmcnt(0)"); fold(0, 1, 10)
            else:
                a("s_waitcnt lgkmcnt(0)"); fold(j, 0, 10); fold(j, 1, k.acc(j - 1, 0))
            if j < 6: rdq(j + 1, 0, 10)
            for tb in range(2):
                c = k.acc(j, tb)
                for i in range(0, 8, 2): a(f"v_pk_mul_f32 {pk(c+8+i)}, {pk(c+8+i)}, {pk(c+i)}")
                for i in (0, 4):
                    a(f"v_pk_mul_f32 v[0:1], {pk(c+i)}, {pk(c+i)}\nv_pk_mul_f32 v[2:3], {pk(c+i+2)}, {pk(c+i+2)}")
                    a(f"v_pk_fma_f32 v[0:1], v[0:1], s[34:35], v[26:27]\nv_pk_fma_f32 v[2:3], v[2:3], s[34:35], v[26:27]")
                    a(f"v_pk_mul_f32 {pk(c+i)}, v[0:1], {pk(c+i)}\nv_pk_mul_f32 {pk(c+i+2)}, v[2:3], {pk(c+i+2)}")
                for i in range(8): a(f"v_exp_f32 v{c+i}, v{c+i}")
                for i in range(0, 8, 2): a(f"v_pk_add_f32 {pk(c+i)}, {pk(c+i)}, v[28:29]")
                for i in range(8): a(f"v_rcp_f32 v{c+i}, v{c+i}")
                for i in range(0, 8, 2): a(f"v_pk_mul_f32 {pk(c+i)}, {pk(c+i)}, {pk(c+8+i)}")
                for i in range(4): a(f"v_cvt_pk_bf16_f32 v{c+8+i}, v{c+2*i}, v{c+2*i+1}")
                a(f"buffer_store_dwordx4 {v(c+8,4)}, v{k.VA+tb}, s[12:15], s32 offen sc1")
                if tb == 0 and j < 6: rdq(j + 1, 1, c)
            a(f"s_add_u32 s32, s32, {SLAB}")
    return k_gemm("gu_kernel", 1024, 2, 7, EXP.get("gDA", 4), EXP.get("gR", 4), 2, EXP.get("gPEEL", 4), EXP.get("gCAP", 6), EXP.get("gINIT", 11),
                  "gu", WS_Y2, "contig", False, ["tok"]*7, 8, 32, 2, 4,
                  [(40, P_WG), (42, P_WU), (44, P_WS)], setup, epi, 7168, big=True, xlds=2048, nxa=37)

NSIDE = 288
def attn_side(k, nw):
    a = k.a
    a("attn_side:")
    if nw == 4 and EXP.get("sprio", 1): a("s_setprio 3")
    load_ptrs(a, [(40, P_C), (42, P_WMOD), (44, P_WS), (46, P_WG), (48, P_WU), (62, P_WO), (64, P_WD)])
    wave_lane(a)
    a(f"""
    s_sub_u32 s27, s2, 256
    s_lshl_b32 s32, s27, {(nw*64).bit_length()-1}
    v_add_u32 v3, s32, v0
    s_waitcnt lgkmcnt(0)""")
    def mid():
        strip_copy_issue(a, 3, 62, 1024, 2048, 1, 0, 108)
        strip_copy_issue(a, 3, 64, 3584, 2048, 1, 16384, 116)
        a("s_waitcnt vmcnt(0)")
        strip_copy_store(a, 44, WS_WO3, 1024 * 512, 108)
        strip_copy_store(a, 44, WS_WD3, 3584 * 512, 116)
    a(f"""
    s_and_b32 s32, s27, 1
    s_lshr_b32 s33, s27, 1
    s_lshl_b32 s52, s32, 9
    s_cmp_ge_u32 s33, 112
    s_cbranch_scc1 attn_side_g
    s_mov_b32 s51, 7168
    s_mul_i32 s53, s32, {2*7168*4}
    s_lshl_b32 s34, s33, 8
    s_add_u32 s53, s53, s34
    s_mov_b32 s54, {7168*4}
    s_cmp_ge_u32 s33, 56
    s_cselect_b32 s46, s48, s46
    s_cselect_b32 s47, s49, s47
    s_cselect_b32 s34, 56, 0
    s_sub_u32 s33, s33, s34
    s_mul_i32 s50, s52, s51
    s_lshl_b32 s34, s33, 7
    s_add_u32 s50, s50, s34""")
    srd(a, 8, 46, 0, 1024 * 7168); srd(a, 12, 44, WS_MODP, KS * 6144 * 4); srd(a, 16, 44, WS_UV, KS * 2 * 7168 * 4)
    skinny(k, "u", "pair", "", EXP.get("pace", 8 // nw), nw=nw, mid=mid)
    a(f"""
attn_side_g:
    s_sub_u32 s33, s33, {112-32}
    s_cmp_ge_u32 s33, 48
    s_cselect_b32 s34, 32, 0
    s_add_u32 s33, s33, s34
    s_mov_b32 s51, 12288
    s_mul_i32 s50, s52, s51
    s_lshl_b32 s34, s33, 7
    s_add_u32 s50, s50, s34
    s_mul_i32 s53, s32, {6144*4}
    s_lshl_b32 s34, s33, 8
    s_add_u32 s53, s53, s34
    s_mov_b32 s54, 0""")
    srd(a, 8, 42, 0, 1024 * 12288); srd(a, 12, 40, 0, 2048); srd(a, 16, 44, WS_MODP, KS * 6144 * 4)
    skinny(k, "g", "silu", " nt", EXP.get("pace", 8 // nw), nw=nw, mid=mid)


def k_attn():
    R = 4; ST = 16384
    k = Kernel("attn_kernel", 256 + (0 if EXP.get("noside") else NSIDE), 512, SK_LDS, 128); a = k.a
    Q0, Q1, ONES, NEG, SA, SB, O, L, P0, P1, K0, K1, V0, V1, T = 4, 8, 12, 16, 32, 48, 64, 80, 84, 88, 92, 96, 100, 104, 108
    guard(k)
    a("s_cmp_ge_u32 s2, 256\ns_cbranch_scc1 attn_side")
    stamp(k, 0)
    load_ptrs(a, [(44, P_WS), (46, P_WO), (48, P_WD), (52, P_X)])
    if EXP.get("aprio", 1): a("s_setprio 2")
    a(f"""
    s_and_b32 s32, s2, 7
    s_lshr_b32 s33, s2, 3
    s_and_b32 s34, s32, 3
    s_lshl_b32 s34, s34, 3
    s_and_b32 s35, s33, 7
    s_add_u32 s24, s34, s35            ; head
    s_lshr_b32 s34, s32, 2
    s_lshl_b32 s34, s34, 2
    s_lshr_b32 s35, s33, 3
    s_add_u32 s25, s34, s35
    v_lshrrev_b32 v3, 6, v0
    v_and_b32 v1, 63, v0
    v_readfirstlane_b32 s26, v3
    v_lshlrev_b32 v2, 4, v1
    s_lshl_b32 s27, s25, 3
    s_add_u32 s27, s27, s26
    s_lshl_b32 s28, s24, 18
    s_lshl_b32 s29, s26, 11            ; wave * 2048
    s_lshl_b32 s32, s24, 6
    s_add_u32 s32, s32, s27
    s_lshl_b32 s32, s32, 11            ; Q offset
    s_waitcnt lgkmcnt(0)""")
    srd(a, 4, 44, WS_Q, 4 << 20)
    a(f"s_add_u32 s8, s44, s28\ns_addc_u32 s9, s45, 0\ns_add_u32 s8, s8, {WS_KV}\ns_addc_u32 s9, s9, 0\ns_mov_b32 s10, 0x40000\ns_mov_b32 s11, 0x20000")
    a("s_mov_b32 s30, s29")
    def dma(slot):
        return [f"s_add_u32 m0, s29, {slot*ST}", "buffer_load_dwordx4 v2, s[8:11], s30 offen lds",
                "buffer_load_dwordx4 v2, s[8:11], s30 offen offset:1024 lds", f"s_add_u32 s30, s30, {ST}"]
    a(f"buffer_load_dwordx4 {v(Q0,4)}, v2, s[4:7], s32 offen\nbuffer_load_dwordx4 {v(Q1,4)}, v2, s[4:7], s32 offen offset:1024")
    a(f"buffer_load_dwordx4 {v(K0,4)}, v2, s[8:11], 0 offen\nbuffer_load_dwordx4 {v(K1,4)}, v2, s[8:11], 0 offen offset:1024")
    for st in range(R - 1):
        for x in dma(st): a(x)
    srd(a, 12, 44, WS_O, 64 * SLAB)
    frag_off(a, 3, 27, 1, T)
    code_srd(k, 92, "attn_epi")
    a(f"v_lshlrev_b32 v{T+4}, 7, v0")
    if EXP.get("apf", 1):
        srd(a, 16, 46, 0, 1024 * 2048); srd(a, 20, 48, 0, 3584 * 2048)
        a(f"""
        s_lshl_b32 s32, s2, 3
        s_add_u32 s32, s32, s26
        s_mul_i32 s50, s32, {7*128}
        s_lshl_b32 s51, s32, 8
        v_lshlrev_b32 v{T+6}, 7, v1
        v_mov_b32 v{T+8}, 0x80000000
        v_cmp_gt_u32 vcc, 2, v1
        v_cndmask_b32 v{T+7}, v{T+8}, v{T+6}, vcc
        v_cmp_gt_u32 vcc, 4, v1
        v_cndmask_b32 v{T+9}, v{T+8}, v{T+6}, vcc
        s_lshl_b32 s54, s32, 9
        v_cmp_gt_u32 vcc, 7, v1
        v_cndmask_b32 v{T+6}, v{T+8}, v{T+6}, vcc""")
        srd(a, 56, 52, 0, 2048 * 2048)
    a(f"""
    v_lshrrev_b32 v{T}, 4, v1
    v_lshrrev_b32 v{T+1}, 2, v1
    v_xor_b32 v{T}, v{T}, v{T+1}
    v_and_b32 v{T}, 1, v{T}
    v_cmp_eq_u32 vcc, 0, v{T}
    v_mov_b32 v{T+1}, 0x3f803f80
    v_cndmask_b32 v{ONES}, 0, v{T+1}, vcc""")
    for i in range(1, 4): a(f"v_mov_b32 v{ONES+i}, v{ONES}")
    for i in range(16): a(f"v_mov_b32 v{O+i}, 0")
    for i in range(4): a(f"v_mov_b32 v{L+i}, 0\nv_mov_b32 v{P1+i}, 0\nv_mov_b32 v{V1+i}, 0")
    a(f"""
    s_waitcnt vmcnt({2*(R-1)})
    v_mfma_f32_32x32x16_bf16 {v(SA,16)}, {v(K0,4)}, {v(Q0,4)}, 0
    v_mfma_f32_32x32x16_bf16 {v(SA,16)}, {v(K1,4)}, {v(Q1,4)}, {v(SA,16)}""")
    def rowmax(S, m):
        for i in range(0, 16, 2): a(f"v_max3_f32 v{m}, v{S+i}, v{S+i+1}, v{m}")
    def negbcast(m):
        a(f"v_mov_b32 v{m+1}, v{m}\nv_permlane32_swap_b32 v{m}, v{m+1}\nv_max_f32 v{m}, v{m}, v{m+1}")
        for i in range(16): a(f"v_sub_f32 v{NEG+i}, 0, v{m}")
    a(f"v_mov_b32 v{T}, v{SA}")
    rowmax(SA, T); negbcast(T)
    for i in range(16): a(f"v_sub_f32 v{SA+i}, v{SA+i}, v{T}")
    a(f"""
    s_waitcnt vmcnt({2*(R-2)})
    s_barrier
    ds_read_b128 {v(K0,4)}, v2 offset:4096
    ds_read_b128 {v(K1,4)}, v2 offset:5120
    ds_read_b128 {v(V0,4)}, v2 offset:2048""")
    cnt = Cnt()
    def it(j, E, site):
        def W(c, nm, tags):
            cnt.wait(c, (site, nm), tags)
            if E: E(cnt.text(c, (site, nm)))
        def X(x):
            if E: E(x)
        def RD(reg, blk, piece):
            X(f"ds_read_b128 {v(reg,4)}, v2 offset:{(blk % (4*R))*4096 + piece*1024}")
            cnt.issue("lg", (piece, blk))
        S, Sn = (SA, SB) if j % 2 == 0 else (SB, SA)
        e = lambda i: X(f"v_exp_f32 v{S+i}, v{S+i}")
        c = lambda i: X(f"v_cvt_pk_bf16_f32 v{P0+i}, v{S+2*i}, v{S+2*i+1}")
        W("lg", "k", {(0, j + 1), (3, j - 1), (1, j + 1)})
        X(f"v_mfma_f32_32x32x16_bf16 {v(Sn,16)}, {v(K0,4)}, {v(Q0,4)}, {v(NEG,16)}")
        e(0); e(1); e(2)
        X(f"v_mfma_f32_32x32x16_bf16 {v(O,16)}, {v(V1,4)}, {v(P1,4)}, {v(O,16)}")
        RD(V1, j, 3)
        e(3); c(0); e(4); c(1)
        X(f"v_mfma_f32_32x32x16_bf16 {v(Sn,16)}, {v(K1,4)}, {v(Q1,4)}, {v(Sn,16)}")
        if j % 4 == 2:
            W("vm", "bar", {("B", j // 4 + 1)})
            X("s_barrier")
        RD(K0, j + 2, 0); RD(K1, j + 2, 1)
        e(5); e(6); e(7)
        X(f"v_mfma_f32_16x16x32_bf16 {v(L,4)}, {v(ONES,4)}, {v(P1,4)}, {v(L,4)}")
        if j % 4 == 2:
            d = dma((j // 4 - 1) % R)
            X(d[0])
        c(2); c(3); e(8); e(9)
        W("lg", "v0", {(2, j)})
        X(f"v_mfma_f32_32x32x16_bf16 {v(O,16)}, {v(V0,4)}, {v(P0,4)}, {v(O,16)}")
        RD(V0, j + 1, 2)
        if j % 4 == 2:
            X(d[1]); X(d[2]); X(d[3])
            cnt.issue("vm", ("B", j // 4 - 1 + R)); cnt.issue("vm", ("B", j // 4 - 1 + R))
        if j % 16 == 3:
            X(f"buffer_load_dword v{T+5}, v{T+4}, s[92:95], 0 offen"); cnt.issue("vm", ("C",))
        if EXP.get("apf", 1) and j % 16 == 7:
            X(f"buffer_load_dword v{T+5}, v{T+6}, s[20:23], s50 offen\ns_add_u32 s50, s50, {2048*7*128}"); cnt.issue("vm", ("C",))
        if EXP.get("apf", 1) and j % 16 == 15:
            X(f"buffer_load_dword v{T+5}, v{T+9}, s[56:59], s54 offen\ns_add_u32 s54, s54, {2048*512}"); cnt.issue("vm", ("C",))
        if EXP.get("apf", 1) and j % 16 == 11:
            X(f"buffer_load_dword v{T+5}, v{T+7}, s[16:19], s51 offen\ns_add_u32 s51, s51, {2048*256}"); cnt.issue("vm", ("C",))
        e(10); e(11); c(4); e(12)
        X(f"v_mfma_f32_16x16x32_bf16 {v(L,4)}, {v(ONES,4)}, {v(P0,4)}, {v(L,4)}")
        c(5); e(13); e(14); e(15); c(6); c(7)
    def preload():
        cnt.reset()
        for st in range(R - 1):
            cnt.issue("vm", ("B", st)); cnt.issue("vm", ("B", st))
        for tg in [(0, 1), (1, 1), (2, 0)]: cnt.issue("lg", tg)
    preload()
    for j in range(64): it(j, None, j % 16)
    preload()
    stamp(k, 1)
    a("s_mov_b32 s31, 4\n.p2align 6\nattn_loop:")
    for j in range(16): it(j, a, j)
    a("s_sub_u32 s31, s31, 1\ns_cmp_lg_u32 s31, 0\ns_cbranch_scc1 attn_loop\nattn_epi:")
    stamp(k, 2)
    a(f"""
    s_waitcnt lgkmcnt(0)
    v_mfma_f32_32x32x16_bf16 {v(O,16)}, {v(V1,4)}, {v(P1,4)}, {v(O,16)}
    v_mfma_f32_16x16x32_bf16 {v(L,4)}, {v(ONES,4)}, {v(P1,4)}, {v(L,4)}
    v_mov_b32 v{T}, 0""")
    for i in range(16): a(f"v_fmac_f32 v{T}, 0, v{O+i}")
    a(f"""
    v_add_f32 v{T}, v{T}, v{L}
    v_cmp_ngt_f32 vcc, {fx(2.0**40)}, v{T}
    s_cbranch_vccnz attn_slow
attn_fin:
    v_rcp_f32 v{T}, v{L}
    s_mul_i32 s32, s24, {2*SLAB}
    s_add_u32 s33, s32, {SLAB}""")
    for i in range(16): a(f"v_mul_f32 v{O+i}, v{O+i}, v{T}")
    for i in range(8): a(f"v_cvt_pk_bf16_f32 v{O+i}, v{O+2*i}, v{O+2*i+1}")
    a(f"buffer_store_dwordx4 {v(O,4)}, v3, s[12:15], s32 offen sc1\nbuffer_store_dwordx4 {v(O+4,4)}, v3, s[12:15], s33 offen sc1")
    stamp(k, 3)
    prof_out(k, 4, 4, 26)
    a("s_endpgm")
    a(f"""
attn_slow:
    v_mov_b32 v{T}, 0xff800000
    s_mov_b32 s30, 0
attn_slow1:
    buffer_load_dwordx4 {v(K0,4)}, v2, s[8:11], s30 offen
    buffer_load_dwordx4 {v(K1,4)}, v2, s[8:11], s30 offen offset:1024
    s_waitcnt vmcnt(0)
    v_mfma_f32_32x32x16_bf16 {v(SA,16)}, {v(K0,4)}, {v(Q0,4)}, 0
    v_mfma_f32_32x32x16_bf16 {v(SA,16)}, {v(K1,4)}, {v(Q1,4)}, {v(SA,16)}""")
    rowmax(SA, T)
    a("s_add_u32 s30, s30, 4096\ns_cmp_lt_u32 s30, 0x40000\ns_cbranch_scc1 attn_slow1")
    negbcast(T)
    for i in range(16): a(f"v_mov_b32 v{O+i}, 0")
    for i in range(4): a(f"v_mov_b32 v{L+i}, 0")
    a(f"""
    s_mov_b32 s30, 0
attn_slow2:
    buffer_load_dwordx4 {v(K0,4)}, v2, s[8:11], s30 offen
    buffer_load_dwordx4 {v(K1,4)}, v2, s[8:11], s30 offen offset:1024
    buffer_load_dwordx4 {v(V0,4)}, v2, s[8:11], s30 offen offset:2048
    buffer_load_dwordx4 {v(V1,4)}, v2, s[8:11], s30 offen offset:3072
    s_waitcnt vmcnt(0)
    v_mfma_f32_32x32x16_bf16 {v(SA,16)}, {v(K0,4)}, {v(Q0,4)}, {v(NEG,16)}
    v_mfma_f32_32x32x16_bf16 {v(SA,16)}, {v(K1,4)}, {v(Q1,4)}, {v(SA,16)}""")
    for i in range(16): a(f"v_exp_f32 v{SA+i}, v{SA+i}")
    for i in range(8): a(f"v_cvt_pk_bf16_f32 v{P0+i}, v{SA+2*i}, v{SA+2*i+1}")
    a(f"""
    v_mfma_f32_32x32x16_bf16 {v(O,16)}, {v(V0,4)}, {v(P0,4)}, {v(O,16)}
    v_mfma_f32_32x32x16_bf16 {v(O,16)}, {v(V1,4)}, {v(P1,4)}, {v(O,16)}
    v_mfma_f32_16x16x32_bf16 {v(L,4)}, {v(ONES,4)}, {v(P0,4)}, {v(L,4)}
    v_mfma_f32_16x16x32_bf16 {v(L,4)}, {v(ONES,4)}, {v(P1,4)}, {v(L,4)}
    s_add_u32 s30, s30, 4096
    s_cmp_lt_u32 s30, 0x40000
    s_cbranch_scc1 attn_slow2
    s_branch attn_fin""")
    attn_side(k, 8)
    finish(k)
    return k


def k_attn4():
    R = 4; ST = 16384; SM = EXP.get("smf", 1)
    k = Kernel("attn_kernel", 256 + (0 if EXP.get("noside") else NSIDE), 256, SK_LDS, 192); a = k.a
    Q, ONES, NEG, S, O, L, P, K0, K1, V0, V1, T = 8, 24, 32, 64, 96, 128, 136, 152, 156, 160, 164, 176
    IDX = 28
    guard(k)
    a("s_cmp_ge_u32 s2, 256\ns_cbranch_scc1 attn_side")
    stamp(k, 0)
    load_ptrs(a, [(44, P_WS), (46, P_WO), (48, P_WD), (52, P_X)])
    a(f"""
    s_and_b32 s32, s2, 7
    s_lshr_b32 s33, s2, 3
    s_and_b32 s34, s32, 3
    s_lshl_b32 s34, s34, 3
    s_and_b32 s35, s33, 7
    s_add_u32 s24, s34, s35            ; head
    s_lshr_b32 s34, s32, 2
    s_lshl_b32 s34, s34, 2
    s_lshr_b32 s35, s33, 3
    s_add_u32 s25, s34, s35
    v_lshrrev_b32 v3, 6, v0
    v_and_b32 v1, 63, v0
    v_readfirstlane_b32 s26, v3
    v_lshlrev_b32 v2, 4, v1
    s_lshl_b32 s27, s25, 2
    s_add_u32 s27, s27, s26
    s_lshl_b32 s27, s27, 1
    s_lshl_b32 s28, s24, 18
    s_lshl_b32 s29, s26, 12            ; wave * 4096
    s_lshl_b32 s32, s24, 6
    s_add_u32 s32, s32, s27
    s_lshl_b32 s32, s32, 11            ; Q offset
    s_waitcnt lgkmcnt(0)""")
    srd(a, 4, 44, WS_Q, 4 << 20)
    a(f"s_add_u32 s8, s44, s28\ns_addc_u32 s9, s45, 0\ns_add_u32 s8, s8, {WS_KV}\ns_addc_u32 s9, s9, 0\ns_mov_b32 s10, 0x40000\ns_mov_b32 s11, 0x20000")
    a("s_mov_b32 s30, s29")
    def dma(slot):
        return [f"s_add_u32 m0, s29, {slot*ST}"] + [f"buffer_load_dwordx4 v2, s[8:11], s30 offen offset:{1024*i} lds" for i in range(4)] + [f"s_add_u32 s30, s30, {ST}"]
    a(f"buffer_load_dwordx4 {v(K0,4)}, v2, s[8:11], 0 offen\nbuffer_load_dwordx4 {v(K1,4)}, v2, s[8:11], 0 offen offset:1024")
    for i in range(4): a(f"buffer_load_dwordx4 {v(Q+4*i,4)}, v2, s[4:7], s32 offen offset:{1024*i}")
    for x in dma(0): a(x)
    srd(a, 12, 44, WS_O, 64 * SLAB)
    frag_off(a, 3, 27, 1, T)
    a("s_add_u32 s33, s27, 1")
    frag_off(a, 4, 33, 1, T)
    code_srd(k, 92, "attn_epi")
    a(f"v_lshlrev_b32 v{T+4}, 7, v0")
    srd(a, 16, 46, 0, 1024 * 2048); srd(a, 20, 48, 0, 3584 * 2048); srd(a, 56, 52, 0, 2048 * 2048)
    a(f"""
    s_lshl_b32 s32, s2, 2
    s_add_u32 s32, s32, s26
    s_mul_i32 s50, s32, {14*128}
    s_lshl_b32 s51, s32, 9
    s_lshl_b32 s54, s32, 10
    v_lshlrev_b32 v{T+6}, 7, v1
    v_mov_b32 v{T+8}, 0x80000000
    v_cmp_gt_u32 vcc, 4, v1
    v_cndmask_b32 v{T+7}, v{T+8}, v{T+6}, vcc
    v_cmp_gt_u32 vcc, 8, v1
    v_cndmask_b32 v{T+9}, v{T+8}, v{T+6}, vcc
    v_cmp_gt_u32 vcc, 14, v1
    v_cndmask_b32 v{T+6}, v{T+8}, v{T+6}, vcc""")
    if SM:
        a(f"""
        v_bfe_u32 v{T}, v1, 2, 1
        v_cmp_eq_u32 vcc, 0, v{T}
        v_mov_b32 v{T+1}, 0x3f803f80
        v_cndmask_b32 v{ONES}, 0, v{T+1}, vcc
        v_mov_b32 v{ONES+1}, v{ONES}
        v_xor_b32 v{ONES+2}, v{T+1}, v{ONES}
        v_mov_b32 v{ONES+3}, v{ONES+2}
        v_and_b32 v{T}, 1, v1
        v_mul_u32_u24 v{T}, 0xaaaa, v{T}
        v_add_u32 v{IDX}, 0x4444, v{T}""")
    else:
        a(f"""
        v_lshrrev_b32 v{T}, 4, v1
        v_lshrrev_b32 v{T+1}, 2, v1
        v_xor_b32 v{T}, v{T}, v{T+1}
        v_and_b32 v{T}, 1, v{T}
        v_cmp_eq_u32 vcc, 0, v{T}
        v_mov_b32 v{T+1}, 0x3f803f80
        v_cndmask_b32 v{ONES}, 0, v{T+1}, vcc""")
        for i in range(1, 4): a(f"v_mov_b32 v{ONES+i}, v{ONES}")
    for i in range(32): a(f"v_mov_b32 v{O+i}, 0")
    for i in range(8): a(f"v_mov_b32 v{L+i}, 0\nv_mov_b32 v{P+8+i}, 0\nv_mov_b32 v{V0+8+i}, 0")
    def lsum(w, p):
        if SM: return [f"v_smfmac_f32_16x16x64_bf16 {v(L+4*w,4)}, {v(ONES,4)}, {v(p,8)}, v{IDX}"]
        return [f"v_mfma_f32_16x16x32_bf16 {v(L+4*w,4)}, {v(ONES,4)}, {v(p+4*g,4)}, {v(L+4*w,4)}" for g in range(2)]
    a("s_waitcnt vmcnt(4)")
    for w in range(2):
        a(f"v_mfma_f32_32x32x16_bf16 {v(S+16*w,16)}, {v(K0,4)}, {v(Q+8*w,4)}, 0")
        a(f"v_mfma_f32_32x32x16_bf16 {v(S+16*w,16)}, {v(K1,4)}, {v(Q+8*w+4,4)}, {v(S+16*w,16)}")
    for st in range(1, R - 1):
        for x in dma(st): a(x)
    def rowmax(Sx, m):
        for i in range(0, 16, 2): a(f"v_max3_f32 v{m}, v{Sx+i}, v{Sx+i+1}, v{m}")
    def negbcast(m, w):
        a(f"v_mov_b32 v{m+1}, v{m}\nv_permlane32_swap_b32 v{m}, v{m+1}\nv_max_f32 v{m}, v{m}, v{m+1}")
        for i in range(16): a(f"v_sub_f32 v{NEG+16*w+i}, 0, v{m}")
    for w in range(2):
        a(f"v_mov_b32 v{T}, v{S+16*w}")
        rowmax(S + 16 * w, T); negbcast(T, w)
        if w == 0:
            for i in range(16): a(f"v_sub_f32 v{S+i}, v{S+i}, v{T}")
    a(f"""
    s_sub_u32 s30, s30, {ST}
    s_waitcnt vmcnt({4*(R-2)})
    s_barrier
    ds_read_b128 {v(V0,4)}, v2 offset:2048
    ds_read_b128 {v(V1,4)}, v2 offset:3072""")
    cnt = Cnt()
    def ph(n, E, site):
        def W(c, nm, tags):
            cnt.wait(c, (site, nm), tags)
            if E: E(cnt.text(c, (site, nm)))
        def X(x):
            if E: E(x)
        def RD(reg, blk, piece):
            X(f"ds_read_b128 {v(reg,4)}, v2 offset:{(blk % (4*R))*4096 + piece*1024}")
            cnt.issue("lg", (piece, blk))
        def VM(x, tag):
            X(x); cnt.issue("vm", tag)
        j = n >> 1; w = n & 1; o = 1 - w
        Sc, Sn, Pc, Pp = S + 16 * w, S + 16 * o, P + 8 * w, P + 8 * o
        vb = (n - 1) >> 1
        Vr = V0 + 8 * (vb % 2); Vw = V0 + 8 * ((j + 1) % 2)
        e = lambda *l: [X(f"v_exp_f32 v{Sc+i}, v{Sc+i}") for i in l]
        c = lambda *l: [X(f"v_cvt_pk_bf16_f32 v{Pc+i}, v{Sc+2*i}, v{Sc+2*i+1}") for i in l]
        d = dma((n // 8 - 1) % R) if n % 8 in (5, 6, 7) else None
        dd = n % 8 == 7
        tg = ("B", n // 8 - 1 + R)
        X(f"v_mfma_f32_32x32x16_bf16 {v(Sn,16)}, {v(K0,4)}, {v(Q+8*o,4)}, {v(NEG+16*o,16)}")
        if w == 0: RD(K0, j + 1, 0)
        else: W("lg", "k1", {(1, j + 1)})
        e(0, 1, 2, 3); c(0)
        X(f"v_mfma_f32_32x32x16_bf16 {v(Sn,16)}, {v(K1,4)}, {v(Q+8*o+4,4)}, {v(Sn,16)}")
        if w == 0: RD(K1, j + 1, 1)
        if dd: VM(d[1], tg); VM(d[2], tg)
        if n % 8 == 1: X(f"s_add_u32 s30, s30, {ST}")
        e(4, 5, 6); c(1, 2)
        X(f"v_mfma_f32_32x32x16_bf16 {v(O+16*o,16)}, {v(Vr,4)}, {v(Pp,4)}, {v(O+16*o,16)}")
        if n % 8 == 5: W("vm", "bar", {("B", n // 8 + 1)})
        if n % 8 == 6: X(d[0])
        if dd: VM(d[3], tg); VM(d[4], tg)
        e(7, 8, 9); c(3, 4)
        X(f"v_mfma_f32_32x32x16_bf16 {v(O+16*o,16)}, {v(Vr+4,4)}, {v(Pp+4,4)}, {v(O+16*o,16)}")
        if w == 0: W("lg", "k0", {(0, j + 1), (2, j), (3, j)})
        if n % 8 == 5: X("s_barrier")
        if n % 32 == 23: VM(f"buffer_load_dword v{T+5}, v{T+4}, s[92:95], 0 offen", ("C",))
        if n % 32 == 7: VM(f"buffer_load_dword v{T+5}, v{T+6}, s[20:23], s50 offen", ("C",))
        if n % 32 == 15:
            VM(f"buffer_load_dword v{T+5}, v{T+7}, s[16:19], s51 offen", ("C",))
            VM(f"buffer_load_dword v{T+5}, v{T+9}, s[56:59], s54 offen", ("C",))
        if n % 32 == 17: X(f"s_add_u32 s50, s50, {1024*14*128}")
        if n % 32 == 25: X(f"s_add_u32 s51, s51, {1024*512}")
        if n % 32 == 27: X(f"s_add_u32 s54, s54, {1024*1024}")
        e(10, 11, 12); c(5)
        ls = lsum(o, Pp)
        X(ls[0])
        RD(Vw + 4 * w, j + 1, 2 + w)
        e(13)
        if len(ls) > 1: X(ls[1])
        e(14, 15); c(6, 7)
    def preload():
        cnt.reset()
        for st in range(R - 1):
            for i in range(4): cnt.issue("vm", ("B", st))
        cnt.issue("lg", (2, 0)); cnt.issue("lg", (3, 0))
    preload()
    for n in range(128): ph(n, None, n % 32)
    preload()
    stamp(k, 1)
    a("s_mov_b32 s31, 4\n.p2align 6\nattn_loop:")
    for n in range(32): ph(n, a, n)
    a("s_sub_u32 s31, s31, 1\ns_cmp_lg_u32 s31, 0\ns_cbranch_scc1 attn_loop\nattn_epi:")
    stamp(k, 2)
    a(f"""
    v_mfma_f32_32x32x16_bf16 {v(O+16,16)}, {v(V0+8,4)}, {v(P+8,4)}, {v(O+16,16)}
    v_mfma_f32_32x32x16_bf16 {v(O+16,16)}, {v(V1+8,4)}, {v(P+12,4)}, {v(O+16,16)}""")
    for x in lsum(1, P + 8): a(x)
    a(f"v_mov_b32 v{T}, 0\nv_mov_b32 v{T+1}, 0")
    for i in range(32): a(f"v_fmac_f32 v{T+i%2}, 0, v{O+i}")
    def ltot():
        if SM: a(f"v_add_f32 v{L}, v{L}, v{L+1}\nv_add_f32 v{L+4}, v{L+4}, v{L+5}")
    ltot()
    a(f"""
    v_add_f32 v{T}, v{T}, v{T+1}
    v_add_f32 v{T}, v{T}, v{L}
    v_add_f32 v{T}, v{T}, v{L+4}
    v_cmp_ngt_f32 vcc, {fx(2.0**40)}, v{T}
    s_cbranch_vccnz attn_slow
attn_fin:
    v_rcp_f32 v{T}, v{L}
    v_rcp_f32 v{T+1}, v{L+4}
    s_mul_i32 s32, s24, {2*SLAB}
    s_add_u32 s33, s32, {SLAB}""")
    for w in range(2):
        Ow = O + 16 * w
        for i in range(16): a(f"v_mul_f32 v{Ow+i}, v{Ow+i}, v{T+w}")
        for i in range(8): a(f"v_cvt_pk_bf16_f32 v{Ow+i}, v{Ow+2*i}, v{Ow+2*i+1}")
        a(f"buffer_store_dwordx4 {v(Ow,4)}, v{3+w}, s[12:15], s32 offen sc1\nbuffer_store_dwordx4 {v(Ow+4,4)}, v{3+w}, s[12:15], s33 offen sc1")
    stamp(k, 3)
    prof_out(k, 4, 4, 26)
    a("s_endpgm")
    a(f"""
attn_slow:
    v_mov_b32 v{T}, 0xff800000
    v_mov_b32 v{T+2}, 0xff800000
    s_mov_b32 s30, 0
    s_waitcnt lgkmcnt(0)
attn_slow1:
    buffer_load_dwordx4 {v(K0,4)}, v2, s[8:11], s30 offen
    buffer_load_dwordx4 {v(K1,4)}, v2, s[8:11], s30 offen offset:1024
    s_waitcnt vmcnt(0)""")
    for w in range(2):
        a(f"v_mfma_f32_32x32x16_bf16 {v(S+16*w,16)}, {v(K0,4)}, {v(Q+8*w,4)}, 0")
        a(f"v_mfma_f32_32x32x16_bf16 {v(S+16*w,16)}, {v(K1,4)}, {v(Q+8*w+4,4)}, {v(S+16*w,16)}")
    for w in range(2): rowmax(S + 16 * w, T + 2 * w)
    a("s_add_u32 s30, s30, 4096\ns_cmp_lt_u32 s30, 0x40000\ns_cbranch_scc1 attn_slow1")
    for w in range(2): negbcast(T + 2 * w, w)
    for i in range(32): a(f"v_mov_b32 v{O+i}, 0")
    for i in range(8): a(f"v_mov_b32 v{L+i}, 0")
    a(f"""
    s_mov_b32 s30, 0
attn_slow2:
    buffer_load_dwordx4 {v(K0,4)}, v2, s[8:11], s30 offen
    buffer_load_dwordx4 {v(K1,4)}, v2, s[8:11], s30 offen offset:1024
    buffer_load_dwordx4 {v(V0,4)}, v2, s[8:11], s30 offen offset:2048
    buffer_load_dwordx4 {v(V1,4)}, v2, s[8:11], s30 offen offset:3072
    s_waitcnt vmcnt(0)""")
    for w in range(2):
        a(f"v_mfma_f32_32x32x16_bf16 {v(S+16*w,16)}, {v(K0,4)}, {v(Q+8*w,4)}, {v(NEG+16*w,16)}")
        a(f"v_mfma_f32_32x32x16_bf16 {v(S+16*w,16)}, {v(K1,4)}, {v(Q+8*w+4,4)}, {v(S+16*w,16)}")
    for i in range(32): a(f"v_exp_f32 v{S+i}, v{S+i}")
    for i in range(16): a(f"v_cvt_pk_bf16_f32 v{P+i}, v{S+2*i}, v{S+2*i+1}")
    for w in range(2):
        a(f"v_mfma_f32_32x32x16_bf16 {v(O+16*w,16)}, {v(V0,4)}, {v(P+8*w,4)}, {v(O+16*w,16)}")
        a(f"v_mfma_f32_32x32x16_bf16 {v(O+16*w,16)}, {v(V1,4)}, {v(P+8*w+4,4)}, {v(O+16*w,16)}")
        for x in lsum(w, P + 8 * w): a(x)
    a("s_add_u32 s30, s30, 4096\ns_cmp_lt_u32 s30, 0x40000\ns_cbranch_scc1 attn_slow2")
    ltot()
    a("s_branch attn_fin")
    attn_side(k, 4)
    finish(k)
    return k

def build(kernels, path, verbose=False):
    hdr = open("adaLN_cond__mha_block__geglu_ffn__prompt.s.ref").read().split("; Override launch")[0]
    out = hdr
    for k in kernels:
        out += f"; @launch kernel={k.name} grid=({k.grid},1,1) block=({k.block},1,1) lds={k.lds}\n"
    out += '.amdgcn_target "amdgcn-amd-amdhsa--gfx950"\n'
    for k in kernels:
        rep = []
        out += k.text(rep)
        if verbose:
            print(k.name, "vgpr", k.nv, "agpr", k.na, "lds", k.lds, "nops inserted:", len(rep))
            for r in rep:
                if "m0" not in r[1]: print("   ", r)
    out += '.section .rodata,"a"\n'
    for k in kernels: out += k.desc()
    open(path, "w").write(out)

CHECK = {"x2": "frag", "h2": False, "h1": False, "slab": SLAB}
def all_kernels():
    global QPRE
    QPRE = EXP.get("qpre", 1024)
    if EXP.get("fuse1", 1):
        ORDER[:] = ["pre_kernel", "qkv_kernel", "attn_kernel", "out_kernel", "gu_kernel", "down_kernel"]
        return [k_pre(), k_qkv(), k_attn4() if EXP.get('a4', 1) else k_attn(), k_out(), k_gu(), k_down()]
    ORDER[:] = ["pre_kernel", "ln1_kernel", "qkv_kernel", "attn_kernel", "out_kernel", "gu_kernel", "down_kernel"]
    return [k_pre(), k_ln("ln1_kernel", P_X, WS_H1, 0, 1), k_qkv(), k_attn(), k_out(), k_gu(), k_down()]

if __name__ == "__main__":
    vb = False
    for x in sys.argv[2:]:
        if x == "prof": PROF = True
        elif x == "verbose": vb = True
        else:
            kk, _, vv = x.partition("="); EXP[kk] = int(vv) if vv else 1
    build(all_kernels(), sys.argv[1] if len(sys.argv) > 1 else "adaLN_cond__mha_block__geglu_ffn__prompt.s", verbose=vb)
```

```python
import sys, math, struct
from asmlib import *

SLAB = 75776
WS_MODP = 0
WS_UV = 64 << 10
WS_STAT = 256 << 10
WS_WQ3 = 1 << 20
WS_WO3 = 5 << 19
WS_WD3 = 3 << 20
WS_H1 = 5 << 20
WS_Q = 10 << 20
WS_KV = 14 << 20
WS_O = 22 << 20
WS_X2 = 27 << 20
WS_Y2 = 32 << 20
WS_ACT = 37 << 20
WS_PROF = 56 << 20
KS = 2
P_X, P_WQKV, P_WO, P_BX, P_WG, P_WU, P_WD, P_C, P_WMOD, P_OUT, P_DBG, P_WS = [8 * i for i in range(12)]
LOG2E = 1.4426950408889634
PROF = False
EXP = {}
KID = {"qkv_kernel": 0, "out_kernel": 1, "gu_kernel": 2, "down_kernel": 3, "attn_kernel": 4}
def f2u(x): return struct.unpack("<I", struct.pack("<f", x))[0]
def fx(x): return hex(f2u(x))

class Kernel:
    def __init__(self, name, grid, block, lds, nv, na=0):
        self.name, self.grid, self.block, self.lds, self.nv, self.na = name, grid, block, lds, nv, na
        self.a = Asm()
    def text(self, report=None):
        body = fix_hazards(merge_waits(self.a.l), report)
        return (f".text\n.globl {self.name}\n.p2align 8\n.type {self.name},@function\n{self.name}:\n" + "\n".join(body) + "\n")
    def desc(self):
        acc = (self.nv + 3) // 4 * 4
        nfv = acc + self.na if self.na else self.nv
        return f""".p2align 6
.amdhsa_kernel {self.name}
  .amdhsa_next_free_vgpr {nfv}
  .amdhsa_next_free_sgpr 96
  .amdhsa_accum_offset {acc}
  .amdhsa_group_segment_fixed_size 0
  .amdhsa_kernarg_size 96
  .amdhsa_user_sgpr_count 2
  .amdhsa_user_sgpr_kernarg_segment_ptr 1
  .amdhsa_system_sgpr_workgroup_id_x 1
  .amdhsa_float_denorm_mode_32 3
  .amdhsa_float_denorm_mode_16_64 3
.end_amdhsa_kernel
"""

def stamp(k, i):
    if PROF: k.a(f"s_memtime {s(64+2*i,2)}\ns_memrealtime {s(74+2*i,2)}\ns_waitcnt lgkmcnt(0)")
def prof_out(k, n, kid, wave_s):
    if not PROF: return
    a = k.a
    a(f"s_waitcnt vmcnt(0)\ns_memtime {s(64+2*n,2)}\ns_memrealtime {s(74+2*n,2)}\ns_load_dwordx2 s[84:85], s[0:1], {P_WS}\ns_waitcnt lgkmcnt(0)")
    a(f"s_add_u32 s84, s84, {WS_PROF + kid*(1<<18)}\ns_addc_u32 s85, s85, 0\ns_mov_b32 s86, {1<<18}\ns_mov_b32 s87, 0x20000")
    a(f"s_lshl_b32 s88, s2, 3\ns_add_u32 s88, s88, s{wave_s}\ns_lshl_b32 s88, s88, 6\nv_mov_b32 v1, 0")
    for i in range(10):
        a(f"v_mov_b32 v0, s{64+2*i}\nbuffer_store_dword v0, v1, s[84:87], s88 offen offset:{4*i}")
def load_ptrs(a, pairs):
    for sreg, off in pairs: a(f"s_load_dwordx2 {s(sreg,2)}, s[0:1], {off}")
def srd(a, d, p, off, size):
    if off: a(f"s_add_u32 s{d}, s{p}, {off}\ns_addc_u32 s{d+1}, s{p+1}, 0")
    else: a(f"s_mov_b32 s{d}, s{p}\ns_mov_b32 s{d+1}, s{p+1}")
    a(f"s_mov_b32 s{d+2}, {size}\ns_mov_b32 s{d+3}, 0x20000")
def guard(k): k.a(f"s_cmp_ge_u32 s2, {k.grid}\ns_cbranch_scc1 {k.name}_end")
def finish(k): k.a(f"{k.name}_end:\ns_endpgm")
def unpack(a, dst, src, n):
    for i in range(n):
        a(f"v_lshlrev_b32 v{dst+2*i}, 16, v{src+i}\nv_and_b32 v{dst+2*i+1}, 0xffff0000, v{src+i}")
def rbf(a, x):
    a(f"v_cvt_pk_bf16_f32 v{x}, v{x}, v{x}\nv_and_b32 v{x}, 0xffff0000, v{x}")
def phys_line(a, dst, i, t):
    a(f"""
    v_mul_u32_u24 v{t}, 9363, v{i}
    v_lshrrev_b32 v{t}, 16, v{t}
    v_add_u32 v{dst}, v{i}, v{t}
    v_mul_u32_u24 v{t}, 7, v{t}
    v_sub_u32 v{t}, v{i}, v{t}
    v_add_u32 v{t}, 5, v{t}
    v_lshrrev_b32 v{t}, 3, v{t}
    v_add_lshl_u32 v{dst}, v{dst}, v{t}, 7""")
def frag_off(a, dst, srb, lane, t):
    a(f"v_lshrrev_b32 v{t}, 3, v{lane}\nv_lshl_add_u32 v{t}, s{srb}, 3, v{t}")
    phys_line(a, dst, t, t + 1)
    a(f"v_and_b32 v{t}, 7, v{lane}\nv_lshl_add_u32 v{dst}, v{t}, 4, v{dst}")
def tr_lane(a, T, lane, korder, colperm):
    a(f"""
    v_lshrrev_b32 v{T}, 5, v{lane}
    v_bfe_u32 v{T+1}, v{lane}, 4, 1
    v_bfe_u32 v{T+2}, v{lane}, 2, 2
    v_and_b32 v{T+3}, 3, v{lane}""")
    if colperm:
        a(f"v_lshrrev_b32 v{T+4}, 1, v{T+3}\nv_and_b32 v{T+3}, 1, v{T+3}\nv_lshl_add_u32 v{T+3}, v{T+3}, 1, v{T+4}")
    a(f"v_lshl_add_u32 v{T+4}, v{T}, {2 if korder=='split' else 3}, v{T+2}")
def panel_rd(a, T, e, o):
    a(f"""
    v_lshlrev_b32 v{T+4}, 7, v{T+4}
    v_lshl_add_u32 v{T+4}, v{T+1}, 5, v{T+4}
    v_lshl_add_u32 v{T+4}, v{T+3}, 3, v{T+4}
    v_lshrrev_b32 v{T+5}, 1, v{T+2}
    v_lshlrev_b32 v{T+5}, 6, v{T+5}
    v_add_u32 v{e}, v{T+4}, v{T+5}
    v_sub_u32 v{o}, v{T+4}, v{T+5}
    v_add_u32 v{o}, 64, v{o}""")
def panel_src(a, T, lane):
    a(f"""
    v_lshrrev_b32 v{T}, 3, v{lane}
    v_and_b32 v{T+1}, 7, v{lane}
    v_bfe_u32 v{T+2}, v{lane}, 4, 1
    v_lshlrev_b32 v{T+2}, 2, v{T+2}
    v_xor_b32 v{T+1}, v{T+1}, v{T+2}""")

SK_LDS = 65536 + 2048
def skinny(k, tag, mode, nt, pace=0, flag=False, nw=8, mid=None):
    a = k.a; NV = 1 if mode == "silu" else 2
    NC = 8 // nw; lg = (NC - 1).bit_length() if NC > 1 else 0
    VX = 100
    a(f"""
    s_lshl_b32 s55, s26, {6+lg}
    s_add_u32 s56, s52, s55""")
    if mode == "silu":
        a("v_add_lshl_u32 v4, v1, s56, 1")
        for c in range(NC): a(f"buffer_load_ushort v{VX+4*c}, v4, s[12:15], 0 offen offset:{128*c}")
    else:
        a("v_add_lshl_u32 v4, v1, s56, 2")
        for i, (p, idx) in enumerate([(0, 4), (1, 4), (0, 3), (1, 3)]):
            a(f"s_mov_b32 s57, {p*6144*4 + idx*4096}")
            for c in range(NC): a(f"buffer_load_dword v{VX+4*c+i}, v4, s[12:15], s57 offen offset:{256*c}")
    panel_src(a, 5, 1)
    a(f"""
    v_add_u32 v5, s55, v5
    v_mul_lo_u32 v5, v5, s51
    v_lshl_add_u32 v5, v6, 4, v5
    s_lshl_b32 s57, s26, {13+lg}
    s_lshl_b32 s59, s51, 3""")
    def dmas():
        for g in range(8 * NC):
            a(f"s_add_u32 m0, s57, {1024*g}\ns_nop 0\nbuffer_load_dwordx4 v5, s[8:11], s50 offen{nt} lds\ns_add_u32 s50, s50, s59")
            if pace and g < 8 * NC - 1: a(f"s_waitcnt vmcnt({pace-1})")
    if not mid: dmas()
    tr_lane(a, 12, 1, "contig", False)
    panel_rd(a, 12, 18, 19)
    a(f"""
    v_add_u32 v18, s57, v18
    v_add_u32 v19, s57, v19
    s_lshl_b32 s58, s26, {8+lg}
    s_add_u32 s58, s58, 0x10000
    v_lshl_add_u32 v6, v1, 1, s58
    v_and_b32 v7, 31, v1
    v_lshrrev_b32 v12, 5, v1
    v_lshlrev_b32 v12, 4, v12
    v_lshl_add_u32 v12, v7, 7, v12
    v_add_u32 v12, s58, v12
    s_waitcnt vmcnt({0 if mid else 8*NC})""")
    for c in range(NC):
        x = VX + 4 * c
        if mode == "silu":
            a(f"""
            v_lshlrev_b32 v{x}, 16, v{x}
            v_mul_f32 v{x+1}, {fx(-LOG2E)}, v{x}
            v_exp_f32 v{x+1}, v{x+1}
            v_add_f32 v{x+1}, 1.0, v{x+1}
            v_rcp_f32 v{x+1}, v{x+1}
            v_mul_f32 v{x}, v{x}, v{x+1}
            v_cvt_pk_bf16_f32 v{x}, v{x}, v{x}
            ds_write_b16 v6, v{x} offset:{256*c}""")
        else:
            a(f"v_add_f32 v{x}, v{x}, v{x+1}\nv_add_f32 v{x+2}, v{x+2}, v{x+3}")
            rbf(a, x)
            a(f"v_add_f32 v{x}, 1.0, v{x}\nv_cvt_pk_bf16_f32 v{x}, v{x}, v{x}\nv_cvt_pk_bf16_f32 v{x+2}, v{x+2}, v{x+2}")
            a(f"ds_write_b16 v6, v{x} offset:{256*c}\nds_write_b16 v6, v{x+2} offset:{256*c+128}")
    for i in range(16): a(f"v_mov_b32 v{20+i}, 0")
    if mid:
        dmas(); mid()
    a(f"v_cmp_gt_u32 vcc, {NV}, v7\ns_waitcnt vmcnt(0) lgkmcnt(0)")
    for c in range(NC):
        a("s_and_saveexec_b64 s[60:61], vcc")
        for sub in range(4): a(f"ds_read_b128 {v(20+4*sub,4)}, v12 offset:{32*sub+256*c}")
        a("s_mov_b64 exec, s[60:61]")
        for sub in range(4):
            for j in range(2):
                for r_ in range(2):
                    a(f"ds_read_b64_tr_b16 {v(36+8*sub+4*j+2*r_,2)}, v{18+j} offset:{128*(16*sub+4*r_)+8192*c}")
        for sub in range(4):
            a(f"s_waitcnt lgkmcnt({12-4*sub})")
            for j in range(2):
                d = v(68 + 16 * j, 16)
                a(f"v_mfma_f32_32x32x16_bf16 {d}, {v(20+4*sub,4)}, {v(36+8*sub+4*j,4)}, {d if (sub or c) else 0}")
    a(f"""
    v_lshl_add_u32 v6, v1, 2, s57
    v_cmp_gt_u32 vcc, 32, v1
    s_and_saveexec_b64 s[60:61], vcc""")
    for j in range(2):
        for q in range(NV): a(f"ds_write_b32 v6, v{68+16*j+q} offset:{256*q+128*j}")
    a(f"""
    s_mov_b64 exec, s[60:61]
    s_waitcnt lgkmcnt(0)
    s_barrier
    s_cmp_ge_u32 s26, {NV}
    s_cbranch_scc1 {k.name}_end
    s_lshl_b32 s57, s26, 8
    v_lshl_add_u32 v6, v1, 2, s57""")
    for w in range(nw): a(f"ds_read_b32 v{8+w}, v6 offset:{8192*NC*w}")
    a(f"s_mul_i32 s57, s26, s54\ns_add_u32 s53, s53, s57\nv_lshlrev_b32 v6, 2, v1\ns_waitcnt lgkmcnt(0)")
    for w in (4, 2, 1):
        if w < nw:
            for i in range(w): a(f"v_add_f32 v{8+i}, v{8+i}, v{8+w+i}")
    if not flag:
        a("buffer_store_dword v8, v6, s[16:19], s53 offen\ns_endpgm")
        return
    a("""
    buffer_store_dword v8, v6, s[16:19], s53 offen sc1
    s_lshl_b32 s57, s2, 2
    v_mov_b32 v9, 1
    v_mov_b32 v6, s57
    s_mov_b64 exec, 1
    s_waitcnt vmcnt(0)
    buffer_store_dword v9, v6, s[20:23], 0 offen sc1
    s_endpgm""")

def prefetch(a, gid, ps, nbytes, start, vt, srd_s=20):
    srd(a, srd_s, ps, 0, nbytes)
    a(f"""
    v_subrev_u32 v{vt}, {start}, v{gid}
    v_cmp_gt_u32 vcc, {nbytes//128}, v{vt}
    v_lshlrev_b32 v{vt}, 7, v{vt}
    v_mov_b32 v{vt+1}, 0x80000000
    v_cndmask_b32 v{vt}, v{vt+1}, v{vt}, vcc
    buffer_load_dword v{vt+1}, v{vt}, {s(srd_s,4)}, 0 offen""")

def strip_copy_issue(a, gid, ps, K, ldb, npan, start, vt, srd_s=20):
    srd(a, srd_s, ps, 0, K * ldb)
    n = 2 * npan
    a(f"""
    v_subrev_u32 v{vt}, {start}, v{gid}
    v_cmp_gt_u32 vcc, {K*n*8}, v{vt}
    v_and_b32 v{vt+1}, 7, v{vt}
    v_lshrrev_b32 v{vt}, 3, v{vt}""")
    if npan == 1:
        a(f"v_lshrrev_b32 v{vt+2}, 1, v{vt}\nv_and_b32 v{vt+3}, 1, v{vt}\nv_lshlrev_b32 v{vt+3}, 10, v{vt+3}")
    else:
        a(f"""
        v_mul_u32_u24 v{vt+2}, 10923, v{vt}
        v_lshrrev_b32 v{vt+2}, 16, v{vt+2}
        v_mul_u32_u24 v{vt+3}, 6, v{vt+2}
        v_sub_u32 v{vt+3}, v{vt}, v{vt+3}
        v_lshlrev_b32 v{vt+4}, 11, v{vt+3}
        v_add_u32 v{vt+3}, 5, v{vt+3}
        v_lshrrev_b32 v{vt+3}, 3, v{vt+3}
        v_mul_u32_u24 v{vt+3}, {6144-1024}, v{vt+3}
        v_sub_u32 v{vt+3}, v{vt+4}, v{vt+3}""")
    a(f"""
    v_mul_u32_u24 v{vt+2}, {ldb}, v{vt+2}
    v_add3_u32 v{vt+2}, v{vt+2}, v{vt+3}, 0
    v_lshl_add_u32 v{vt+2}, v{vt+1}, 4, v{vt+2}
    v_add_u32 v{vt+2}, 384, v{vt+2}
    v_mov_b32 v{vt+3}, 0x80000000
    v_cndmask_b32 v{vt+2}, v{vt+3}, v{vt+2}, vcc
    v_lshlrev_b32 v{vt}, 8, v{vt}
    v_lshl_add_u32 v{vt}, v{vt+1}, 4, v{vt}
    v_cndmask_b32 v{vt}, v{vt+3}, v{vt}, vcc
    buffer_load_dwordx4 {v(vt+4,4)}, v{vt+2}, {s(srd_s,4)}, 0 offen""")
def strip_copy_store(a, ws_s, off, size, vt, srd_s=20):
    srd(a, srd_s, ws_s, off, size)
    a(f"buffer_store_dwordx4 {v(vt+4,4)}, v{vt}, {s(srd_s,4)}, 0 offen sc1")

ORDER = []
def code_srd(k, d, start, upto=None, nwg=8):
    if EXP.get("nocpf"): nwg = 0
    i = ORDER.index(k.name)
    end = upto or (ORDER[min(i + 1, len(ORDER) - 1)] + "_end")
    lab = f"{k.name}_pc{d}"
    k.a(f"""
    s_getpc_b64 {s(d,2)}
{lab}:
    s_add_u32 s{d}, s{d}, {start}-{lab}
    s_addc_u32 s{d+1}, s{d+1}, 0
    s_mov_b32 s{d+2}, {end}-{start}+4
    s_cmp_lt_u32 s2, {nwg}
    s_cselect_b32 s{d+2}, s{d+2}, 0
    s_mov_b32 s{d+3}, 0x20000""")
def wave_lane(a):
    a("v_lshrrev_b32 v2, 6, v0\nv_and_b32 v1, 63, v0\nv_readfirstlane_b32 s26, v2")

def red32(a, x, t):
    for m in ("quad_perm:[1,0,3,2]", "quad_perm:[2,3,0,1]", "row_half_mirror", "row_mirror"):
        a(f"v_add_f32_dpp v{x}, v{x}, v{x} {m} row_mask:0xf bank_mask:0xf")
    a(f"v_mov_b32 v{t}, v{x}\nv_permlane16_swap_b32 v{x}, v{t}\nv_add_f32 v{x}, v{x}, v{t}")

QPRE = 256
def k_pre():
    GP = EXP.get("gpre", 1)
    k = Kernel("pre_kernel", 320 if GP else 256, 512, SK_LDS, 112); a = k.a
    guard(k)
    code_srd(k, 88, "pre_kernel_top", ORDER[-1] + "_end")
    a("v_lshlrev_b32 v108, 7, v0\nbuffer_load_dword v109, v108, s[88:91], 0 offen\npre_kernel_top:")
    load_ptrs(a, [(40, P_C), (42, P_WMOD), (44, P_WS), (46, P_WQKV), (48, P_X), (62, P_DBG)])
    wave_lane(a)
    a(f"""
    s_sub_u32 s27, s2, 128
    s_cmp_lt_u32 s27, 128
    s_cbranch_scc1 pre_side
    s_and_b32 s32, s2, 1
    s_lshr_b32 s33, s2, 1
    s_cmp_ge_u32 s33, 32
    s_cselect_b32 s34, 16, 0
    s_add_u32 s33, s33, s34
    s_cmp_ge_u32 s33, 160
    s_mov_b32 s34, 112
    s_cselect_b32 s34, 80, s34
    s_cmp_ge_u32 s33, 144
    s_cselect_b32 s34, s34, 0
    s_sub_u32 s33, s33, s34
    s_lshl_b32 s52, s32, 9
    s_mov_b32 s51, 12288
    s_mul_i32 s50, s52, s51
    s_lshl_b32 s34, s33, 7
    s_add_u32 s50, s50, s34
    s_mul_i32 s53, s32, {6144*4}
    s_lshl_b32 s34, s33, 8
    s_add_u32 s53, s53, s34
    s_mov_b32 s54, 0
    s_waitcnt lgkmcnt(0)""")
    srd(a, 8, 42, 0, 1024 * 12288); srd(a, 12, 40, 0, 2048); srd(a, 16, 44, WS_MODP, KS * 6144 * 4)
    F2 = EXP.get("fuse1", 1) == 2
    if F2: srd(a, 20, 62, 0, 256)
    skinny(k, "m", "silu", " nt" if EXP.get("mnt", 1) else "", flag=F2)
    a("""
pre_side:
    s_lshl_b32 s32, s27, 9
    v_add_u32 v3, s32, v0""")
    if not EXP.get("fuse1", 1):
        a("s_waitcnt lgkmcnt(0)")
        strip_copy_issue(a, 3, 46, 1024, 6144, 3, 0, 8)
        prefetch(a, 3, 46, 1024 * 6144, 65536 - 49152, 20)
        prefetch(a, 3, 48, 2048 * 2048, 0, 24)
        a("s_waitcnt vmcnt(2)")
        strip_copy_store(a, 44, WS_WQ3, 1024 * 1536, 8)
        finish(k)
        return k
    a(f"""
    v_lshrrev_b32 v1, 5, v0
    v_and_b32 v2, 31, v0               ; chunk
    s_lshl_b32 s24, s27, 4
    v_add_u32 v4, s24, v1
    v_lshlrev_b32 v4, 11, v4
    v_lshl_add_u32 v4, v2, 4, v4
    s_waitcnt lgkmcnt(0)""")
    srd(a, 4, 48, 0, 2048 * 2048); srd(a, 12, 44, WS_H1, 64 * SLAB)
    for i in range(4): a(f"buffer_load_dwordx4 {v(8+4*i,4)}, v4, s[4:7], 0 offen offset:{512*i} nt")
    EARLY = (not F2) or EXP.get("pfearly", 1)
    if EARLY:
        strip_copy_issue(a, 3, 46, 1024, 6144, 3, 0, 64)
        prefetch(a, 3, 46, QPRE * 6144, 65536 - QPRE * 48, 72)
    a(f"""
    s_lshr_b32 s25, s27, 1
    s_lshl_b32 s25, s25, 3
    s_and_b32 s26, s27, 1
    s_lshl_b32 s26, s26, 1
    s_add_u32 s25, s25, s26
    v_bfe_u32 v26, v0, 4, 1
    v_lshl_add_u32 v26, v26, 2, s25
    v_bfe_u32 v27, v0, 3, 1
    v_add_u32 v26, v26, v27""")
    phys_line(a, 25, 26, 27)
    a(f"""
    v_and_b32 v26, 7, v0
    v_lshl_add_u32 v25, v26, 4, v25
    s_mov_b32 s25, {SLAB}
    v_mul_lo_u32 v27, v1, s25
    v_add_u32 v25, v25, v27
    v_lshrrev_b32 v27, 4, v0
    v_mul_u32_u24 v27, 272, v27
    v_and_b32 v26, 15, v0
    v_lshl_add_u32 v27, v26, 4, v27
    v_mul_u32_u24 v28, 272, v2
    v_lshl_add_u32 v28, v1, 4, v28
    s_waitcnt vmcnt({2 if EARLY else 0})""")
    if not EARLY:
        a("""
        v_subrev_u32 v5, 64, v0
        s_mul_i32 s32, s27, 448
        v_add_u32 v5, s32, v5
        v_mov_b32 v29, 0x40000000
        v_cmp_gt_u32 vcc, 64, v0
        v_cndmask_b32 v3, v5, v29, vcc""")
        strip_copy_issue(a, 3, 46, 1024, 6144, 3, 0, 64)
        prefetch(a, 3, 46, QPRE * 6144, 57344 - QPRE * 48, 72)
    unpack(a, 32, 8, 16)
    a("v_add_f32 v6, v32, v33\nv_add_f32 v7, v34, v35")
    for i in range(4, 32): a(f"v_add_f32 v{6+i%2}, v{6+i%2}, v{32+i}")
    a("v_add_f32 v6, v6, v7")
    red32(a, 6, 7)
    a(f"v_mul_f32 v6, {fx(1/1024)}, v6")
    for i in range(32): a(f"v_sub_f32 v{32+i}, v{32+i}, v6")
    a("v_mul_f32 v6, v32, v32\nv_mul_f32 v7, v33, v33")
    for i in range(2, 32): a(f"v_fmac_f32 v{6+i%2}, v{32+i}, v{32+i}")
    a("v_add_f32 v6, v6, v7")
    red32(a, 6, 7)
    a(f"""
    v_mov_b32 v7, {fx(1e-5)}
    v_fmac_f32 v7, {fx(1/1024)}, v6
    v_rsq_f32 v6, v7""")
    if not F2:
        for i in range(4):
            for j in range(8): a(f"v_mul_f32 v{32+8*i+j}, v{32+8*i+j}, v6")
            for j in range(4): a(f"v_cvt_pk_f16_f32 v{8+4*i+j}, v{32+8*i+2*j}, v{33+8*i+2*j}")
            a(f"ds_write_b128 v28, {v(8+4*i,4)} offset:{32*272*i}")
    else:
        CL = 36864
        for i in range(32): a(f"v_mul_f32 v{32+i}, v{32+i}, v6")
        srd(a, 16, 62, 0, 256); srd(a, 8, 44, WS_MODP, KS * 6144 * 4)
        a(f"""
        v_lshlrev_b32 v5, 4, v0
        v_lshlrev_b32 v24, 5, v2
        v_lshrrev_b32 v7, 6, v0
        v_lshlrev_b32 v6, 2, v0
        v_readfirstlane_b32 s26, v7
        s_cmp_lg_u32 s26, 0
        s_cbranch_scc1 pre_go
pre_poll:
        buffer_load_dword v7, v6, s[16:19], 0 offen sc1
        s_waitcnt vmcnt(0)
        v_cmp_eq_u32 vcc, 1, v7
        s_cmp_eq_u64 vcc, -1
        s_cbranch_scc1 pre_go
        s_sleep 1
        s_branch pre_poll
pre_go:
        s_barrier
        s_mov_b32 s32, {6144*4}
        buffer_load_dwordx4 v[8:11], v5, s[8:11], 0 offen sc1
        buffer_load_dwordx4 v[12:15], v5, s[8:11], s32 offen sc1
        s_cmp_ge_u32 s26, 4
        s_cselect_b32 s33, 1.0, 0
        s_waitcnt vmcnt(0)""")
        for j in range(4): a(f"v_add_f32 v{8+j}, v{8+j}, v{12+j}")
        for j in range(2): a(f"v_cvt_pk_bf16_f32 v{12+j}, v{8+2*j}, v{9+2*j}")
        unpack(a, 8, 12, 2)
        for j in range(4): a(f"v_add_f32 v{8+j}, s33, v{8+j}")
        for j in range(2): a(f"v_cvt_pk_bf16_f32 v{12+j}, v{8+2*j}, v{9+2*j}")
        unpack(a, 8, 12, 2)
        a(f"ds_write_b128 v5, v[8:11] offset:{CL}\ns_waitcnt lgkmcnt(0)\ns_barrier")
        B0, B1 = 8, 76
        def crd(i):
            B = B0 if i % 2 == 0 else B1
            for n, o in enumerate((4096, 4096 + 16, 0, 16)): a(f"ds_read_b128 {v(B+4*n,4)}, v24 offset:{CL+o+1024*i}")
        crd(0); crd(1)
        for i in range(4):
            B = B0 if i % 2 == 0 else B1
            a(f"s_waitcnt lgkmcnt({[4,5,5,1][i]})")
            for j in range(8): a(f"v_fma_f32 v{32+8*i+j}, v{32+8*i+j}, v{B+j}, v{B+8+j}")
            for j in range(4): a(f"v_cvt_pk_bf16_f32 v{92+j}, v{32+8*i+2*j}, v{33+8*i+2*j}")
            a(f"ds_write_b128 v28, v[92:95] offset:{32*272*i}")
            if i < 2: crd(i + 2)
    a("s_waitcnt lgkmcnt(0)\ns_barrier")
    for i in range(4): a(f"ds_read_b128 {v(32+4*i,4)}, v27 offset:{32*272*i}")
    for i in range(4):
        a(f"s_mov_b32 s25, {16*SLAB*i}\ns_waitcnt lgkmcnt({3-i})\nbuffer_store_dwordx4 {v(32+4*i,4)}, v25, s[12:15], s25 offen sc1")
    if not F2: a("s_waitcnt vmcnt(5)")
    strip_copy_store(a, 44, WS_WQ3, 1024 * 1536, 64)
    finish(k)
    return k

def k_ln(name, src_ptr, dst_off, shift_idx, scale_idx):
    k = Kernel(name, 256, 256, 8192 + 128 * 144, 128); a = k.a
    guard(k)
    load_ptrs(a, [(40, src_ptr), (44, P_WS)])
    code_srd(k, 88, name + "_end")
    a("v_lshlrev_b32 v30, 7, v0\nbuffer_load_dword v31, v30, s[88:91], 0 offen")
    a(f"""
    v_lshrrev_b32 v1, 5, v0
    v_and_b32 v2, 31, v0               ; chunk
    s_lshl_b32 s24, s2, 3
    v_add_u32 v3, s24, v1              ; row
    v_lshlrev_b32 v4, 11, v3
    v_lshl_add_u32 v4, v2, 4, v4
    v_lshlrev_b32 v5, 4, v0            ; tid*16
    s_waitcnt lgkmcnt(0)""")
    srd(a, 4, 40, 0, 2048 * 2048); srd(a, 8, 44, WS_MODP, KS * 6144 * 4); srd(a, 12, 44, dst_off, 64 * SLAB)
    for p in range(KS):
        a(f"s_mov_b32 s25, {p*6144*4 + scale_idx*4096}\nbuffer_load_dwordx4 {v(96+8*p,4)}, v5, s[8:11], s25 offen")
        a(f"s_mov_b32 s25, {p*6144*4 + shift_idx*4096}\nbuffer_load_dwordx4 {v(100+8*p,4)}, v5, s[8:11], s25 offen")
    for i in range(4): a(f"buffer_load_dwordx4 {v(8+4*i,4)}, v4, s[4:7], 0 offen offset:{512*i}")
    a(f"""
    s_lshr_b32 s25, s2, 2
    s_lshl_b32 s25, s25, 3
    s_and_b32 s26, s2, 3
    s_add_u32 s25, s25, s26
    v_bfe_u32 v26, v0, 3, 1
    v_lshl_add_u32 v26, v26, 2, s25""")
    phys_line(a, 25, 26, 27)
    a(f"""
    v_and_b32 v26, 7, v0
    v_lshl_add_u32 v25, v26, 4, v25
    v_lshrrev_b32 v27, 4, v0
    s_mov_b32 s25, {SLAB}
    v_mul_lo_u32 v27, v27, s25
    v_add_u32 v25, v25, v27
    v_lshrrev_b32 v27, 3, v0
    v_mul_u32_u24 v27, 144, v27
    v_lshl_add_u32 v27, v26, 4, v27
    v_mul_u32_u24 v28, 144, v2
    v_lshl_add_u32 v28, v1, 4, v28
    s_waitcnt vmcnt(4)""")
    for p in range(1, KS):
        for j in range(8): a(f"v_add_f32 v{96+j}, v{96+j}, v{96+8*p+j}")
    for j in range(4): a(f"v_cvt_pk_bf16_f32 v{112+j}, v{96+2*j}, v{97+2*j}")
    unpack(a, 96, 112, 4)
    for j in range(4): a(f"v_add_f32 v{96+j}, 1.0, v{96+j}")
    for j in range(2): a(f"v_cvt_pk_bf16_f32 v{112+j}, v{96+2*j}, v{97+2*j}")
    unpack(a, 96, 112, 2)
    a("ds_write_b128 v5, v[96:99]\nds_write_b128 v5, v[100:103] offset:4096")
    a("s_waitcnt vmcnt(0)")
    unpack(a, 32, 8, 16)
    a("v_add_f32 v6, v32, v33\nv_add_f32 v7, v34, v35")
    for i in range(4, 32): a(f"v_add_f32 v{6+i%2}, v{6+i%2}, v{32+i}")
    a("v_add_f32 v6, v6, v7")
    red32(a, 6, 7)
    a(f"v_mul_f32 v6, {fx(1/1024)}, v6")
    for i in range(32): a(f"v_sub_f32 v{32+i}, v{32+i}, v6")
    a("v_mul_f32 v6, v32, v32\nv_mul_f32 v7, v33, v33")
    for i in range(2, 32): a(f"v_fmac_f32 v{6+i%2}, v{32+i}, v{32+i}")
    a("v_add_f32 v6, v6, v7")
    red32(a, 6, 7)
    a(f"""
    v_mov_b32 v7, {fx(1e-5)}
    v_fmac_f32 v7, {fx(1/1024)}, v6
    v_rsq_f32 v6, v7
    v_lshlrev_b32 v24, 5, v2
    s_waitcnt lgkmcnt(0)
    s_barrier""")
    for i in range(4):
        a(f"ds_read_b128 {v(64+16*i,4)}, v24 offset:{1024*i}\nds_read_b128 {v(68+16*i,4)}, v24 offset:{1024*i+16}")
        a(f"ds_read_b128 {v(72+16*i,4)}, v24 offset:{4096+1024*i}\nds_read_b128 {v(76+16*i,4)}, v24 offset:{4096+1024*i+16}")
    for i in range(32): a(f"v_mul_f32 v{32+i}, v{32+i}, v6")
    for i in range(4):
        a(f"s_waitcnt lgkmcnt({12-4*i+i})")
        for j in range(8): a(f"v_fma_f32 v{32+8*i+j}, v{32+8*i+j}, v{64+16*i+j}, v{72+16*i+j}")
        for j in range(4): a(f"v_cvt_pk_bf16_f32 v{8+4*i+j}, v{32+8*i+2*j}, v{33+8*i+2*j}")
        a(f"ds_write_b128 v28, {v(8+4*i,4)} offset:{8192+32*144*i}")
    a("s_waitcnt lgkmcnt(0)\ns_barrier")
    for i in range(4): a(f"ds_read_b128 {v(32+4*i,4)}, v27 offset:{8192+32*144*i}")
    for i in range(4):
        a(f"s_mov_b32 s25, {16*SLAB*i}\ns_waitcnt lgkmcnt({3-i})\nbuffer_store_dwordx4 {v(32+4*i,4)}, v25, s[12:15], s25 offen sc1")
    finish(k)
    return k

def tile_map(a, TM, TN, xm, xn):
    tm_per, tn_per = TM // xm, TN // xn
    assert tm_per & (tm_per - 1) == 0
    a(f"""
    s_and_b32 s32, s2, 7
    s_lshr_b32 s33, s2, 3
    s_lshr_b32 s34, s32, {xn.bit_length()-1}
    s_and_b32 s35, s32, {xn-1}
    s_and_b32 s24, s33, {tm_per-1}
    s_lshr_b32 s25, s33, {tm_per.bit_length()-1}
    s_mul_i32 s34, s34, {tm_per}
    s_add_u32 s24, s24, s34
    s_mul_i32 s35, s35, {tn_per}
    s_add_u32 s25, s25, s35""")
    wave_lane(a)

def k_gemm(name, K, MB, NB, DA, R, U, PEEL, CAP, INIT, btype, a_off, korder, colperm, orient, TM, TN, xm, xn,
           ptrs, setup, epilogue, ldb, alt=None, big=False, ntemp=24, xlds=0, nxa=0, FB=1, mod=False):
    S = K // 16; NST = K // 64; WG = EXP.get(name[0] + 'WG', 2 if mod else 1)
    assert (NST - PEEL) % U == 0 and (4 * U) % DA == 0 and (4 * PEEL) % DA == 0 and (4 * U) % FB == 0 and (4 * PEEL) % FB == 0
    if btype == "panel":
        NP = NB // 2; STAGE = NP * 8192; ND = 2 * NP
    else:
        UPOFF = 16 * (64 * 14 + 8); STAGE = 2 * UPOFF; ND = 7
    VRE0, VRO0, VRE, VRO, VA = 3, 4, 5, 6, 7
    VB = VA + MB
    nfix = VB + ND
    if big:
        ACC = 256 - 16 * NB * MB; fk = "a"; BF = 0; AR = 4 * NB * FB; XA = AR + 4 * MB * DA; na = XA + nxa; nv = 256
        TMP = (nfix + 1) // 2 * 2; assert TMP + 14 <= ACC
    else:
        TMP = (nfix + 3) // 4 * 4
        ACC = (TMP + ntemp + 3) // 4 * 4
        fk = "v"; BF = ACC + 16 * NB * MB; AR = BF + 4 * NB * FB; nv = AR + 4 * MB * DA; na = 0; XA = None
        if mod: CM0 = nv; HF = CM0 + 32; VC = HF + 8; nv = VC + 1
    k = Kernel(name, TM * TN, 256, STAGE * R + xlds, nv, na); a = k.a
    k.ACC, k.TMP, k.MB, k.NB, k.BF, k.AR, k.VA, k.XL, k.XA = ACC, TMP, MB, NB, BF, AR, VA, STAGE * R, XA
    acc = lambda j, tb: ACC + 16 * (j * MB + tb)
    k.acc = acc
    guard(k)
    stamp(k, 0)
    load_ptrs(a, ptrs)
    tile_map(a, TM, TN, xm, xn)
    T = TMP
    a(f"s_lshl_b32 s37, s24, 2\ns_add_u32 s37, s37, s26\ns_mul_i32 s37, s37, {MB}")
    rd_rows = 8 if korder == "split" else 4
    if btype == "panel":
        off_alt, ldb_alt, pst_alt, sst_alt = alt
        a(f"""
        s_and_b32 s32, s25, 7
        s_lshr_b32 s33, s25, 3
        s_mul_i32 s33, s33, {sst_alt}
        s_lshl_b32 s34, s25, 7
        s_mov_b32 s51, {ldb}
        s_mov_b32 s52, 2048
        s_cmp_eq_u32 s32, {3 if not EXP.get('noalt') else 99}
        s_cselect_b32 s50, s33, s34
        s_cselect_b32 s51, {ldb_alt}, s51
        s_cselect_b32 s52, {pst_alt}, s52
        s_cselect_b32 s53, 1, 0
        s_lshl_b32 s39, s51, 6
        s_lshl_b32 s54, s51, 3""")
        panel_src(a, T, 1)
        a(f"""
        s_lshl_b32 s32, s26, 4
        v_add_u32 v{T}, s32, v{T}
        v_mul_lo_u32 v{T}, v{T}, s51
        v_lshl_add_u32 v{T}, v{T+1}, 4, v{T}
        v_add_u32 v{VB}, s50, v{T}
        v_add_u32 v{VB+1}, s54, v{VB}""")
        for p in range(1, NP):
            a(f"v_add_u32 v{VB+2*p}, s52, v{VB+2*p-2}\nv_add_u32 v{VB+2*p+1}, s52, v{VB+2*p-1}")
        dma_lds = [p * 8192 + g * 1024 for p in range(NP) for g in range(2)]
        a("s_lshl_b32 s36, s26, 11")
    else:
        a(f"""
        s_and_b32 s32, s26, 1
        s_mul_i32 s33, s32, {32*ldb}
        s_mul_i32 s34, s25, 224
        s_add_u32 s33, s33, s34
        s_mov_b32 s39, {64*ldb}""")
        for i in range(7):
            a(f"""
            v_add_u32 v{T}, {64*i}, v1
            v_mul_u32_u24 v{T+1}, 4682, v{T}
            v_lshrrev_b32 v{T+1}, 16, v{T+1}
            v_lshl_add_u32 v{T}, v{T}, 4, s33
            v_mul_u32_u24 v{T+1}, {ldb-224}, v{T+1}
            v_add_u32 v{VB+i}, v{T}, v{T+1}""")
        dma_lds = [1024 * i for i in range(7)]
        a(f"""
        s_mul_i32 s36, s32, 7168
        s_lshr_b32 s33, s26, 1
        s_mul_i32 s33, s33, {UPOFF}
        s_add_u32 s36, s36, s33""")
    for tb in range(MB):
        if tb: a(f"s_add_u32 s32, s37, {tb}")
        frag_off(a, VA + tb, 32 if tb else 37, 1, T)
    a(f"""
    s_mov_b32 s27, 0
    s_mov_b32 s28, 0
    s_mov_b32 s29, s36
    s_add_u32 s38, s36, {R*STAGE}
    s_mov_b32 s31, {(R-1)*STAGE}
    s_waitcnt lgkmcnt(0)""")
    srd(a, 4, 44, a_off, S * SLAB)
    if btype == "panel":
        a(f"""
        s_add_u32 s32, s44, {off_alt}
        s_addc_u32 s33, s45, 0
        s_cmp_eq_u32 s53, 1
        s_cselect_b32 s8, s32, s40
        s_cselect_b32 s9, s33, s41
        s_mul_i32 s10, s51, {K}
        s_mov_b32 s11, 0x20000""")
    else:
        a("s_cmp_ge_u32 s26, 2\ns_cselect_b32 s8, s42, s40\ns_cselect_b32 s9, s43, s41")
        a(f"s_mov_b32 s10, {K*ldb}\ns_mov_b32 s11, 0x20000")

    def late_setup():
        code_srd(k, 92, name + "_epi")
        a("v_lshlrev_b32 v2, 7, v0")
        tr_lane(a, T, 1, korder, colperm)
        if btype == "panel": panel_rd(a, T, VRE0, VRO0)
        else:
            a(f"""
            v_mul_u32_u24 v{T+4}, 224, v{T+4}
            v_lshl_add_u32 v{T+4}, v{T+3}, 3, v{T+4}
            v_mul_u32_u24 v{T+5}, {UPOFF}, v{T+1}
            v_add_u32 v{VRE0}, v{T+4}, v{T+5}""")
    if btype == "panel":
        def rd(j, sub, r_): return (VRE if j % 2 == 0 else VRO), (j // 2) * 8192 + 128 * (16 * sub + rd_rows * r_)
    else:
        def rd(j, sub, r_): return VRE, 32 * j + 224 * (16 * sub + rd_rows * r_)

    BOFF = 4 - FB
    def make_ops(extra):
        ops = []
        for ta in range(S + DA + 8):
            for tb in range(MB):
                ins = [f"buffer_load_dwordx4 {rr(fk, AR+4*(MB*(ta%DA)+tb), 4)}, v{VA+tb}, s[4:7], s27 offen"]
                if tb == MB - 1: ins.append(f"s_add_u32 s27, s27, {SLAB}")
                ops.append([ta - (1 if mod else 0), ta + (0 if mod else 1) - DA, len(ops), ins, ("A", ta)])
        for st in range(NST + R + 2):
            for i in range(ND):
                ins = [f"s_add_u32 m0, s29, {dma_lds[i]}", f"buffer_load_dwordx4 v{VB+i}, s[8:11], s28 offen lds"]
                if i == ND - 1:
                    ins += ["s_add_u32 s28, s28, s39", f"s_add_u32 s29, s29, {STAGE}", "s_cmp_eq_u32 s29, s38\ns_cselect_b32 s29, s36, s29"]
                ops.append([4 * st - FB - 0.5, 4 * (st + 2 - R) - FB + i * 4 // ND, len(ops), ins, ("B", st)])
        for need, ins in extra: ops.append([need, -999, len(ops), ins, ("X",)])
        ops.sort(key=lambda o: (o[0], o[2]))
        return ops

    cnt = Cnt()
    def run(emit):
        def E(x):
            if emit: emit(x)
        extra = setup(k, emit)
        ops = make_ops(extra)
        def take(t, cap):
            got = []
            for o in ops:
                if len(got) >= cap: break
                if o[1] <= t: got.append(o)
            for o in got: ops.remove(o)
            fl = []
            for o in got:
                for x in o[3]: fl.append((x, o[4] if x.startswith("buffer_") else None))
            return fl
        def W(site, c, nm, tags):
            cnt.wait(c, (site, nm), tags)
            E(cnt.text(c, (site, nm)))
        def flush(fill, n):
            for _ in range(n):
                if not fill: return
                x, tag = fill.pop(0)
                if x == "W": W(*tag); continue
                E(x)
                if tag and tag[0] == "L": cnt.issue("lg", tag[1])
                elif tag: cnt.issue("vm", tag)
        def barrier(site, st):
            W(site, "vm", "bar", {("B", st)})
            E("s_barrier")
            E(f"s_add_u32 s31, s31, {STAGE}\ns_cmp_eq_u32 s31, {R*STAGE}\ns_cselect_b32 s31, 0, s31\nv_add_u32 v{VRE}, s31, v{VRE0}")
            if btype == "panel": E(f"v_add_u32 v{VRO}, s31, v{VRO0}")
        def reads(tt, j):
            for r_ in range(2):
                base, off = rd(j, tt % 4, r_)
                E(f"ds_read_b64_tr_b16 {rr(fk, BF+4*(NB*(tt%FB)+j)+2*r_, 2)}, v{base} offset:{off}")
                cnt.issue("lg", ("F", tt, j))
        def cread(tt):
            base = (tt if tt < 4 * PEEL + 2 else 4 * PEEL + (tt - 4 * PEEL - 2) % (4 * U) + 2) * 128
            out = []; CM = CM0 + 16 * (tt % 2)
            for n in range(4): out.append((f"ds_read_b128 {v(CM+4*n,4)}, v{VC} offset:{base+16*n}", ("L", ("C", tt))))
            return out
        def xform(tt):
            r = AR + 4 * (tt % DA); out = []; CM = CM0 + 16 * (tt % 2)
            for i in range(8):
                out.append((f"v_fma_mix_f32 v{CM+8+i}, v{r+i//2}, v{CM+i}, v{CM+8+i} " + ("op_sel:[1,0,0] " if i % 2 else "") + "op_sel_hi:[1,0,0]", None))
            for i in range(4): out.append((f"v_cvt_pk_bf16_f32 v{HF+4*(tt%2)+i}, v{CM+8+2*i}, v{CM+9+2*i}", None))
            return out
        if mod:
            if emit:
                srd(a, 20, 44, WS_MODP, KS * 6144 * 4)
                a(f"v_lshlrev_b32 v{VC}, 4, v0")
            for p in range(KS):
                for n, idx in enumerate((1, 0)):
                    E(f"s_mov_b32 s32, {p*6144*4 + idx*4096}\nbuffer_load_dwordx4 {v(ACC+8*p+4*n,4)}, v{VC}, s[20:23], s32 offen")
                    cnt.issue("vm", ("M",))
        flush(take(-FB - 1, INIT), 999)
        if mod:
            if emit:
                a(f"""
                v_lshrrev_b32 v{ACC+24}, 1, v0
                v_lshlrev_b32 v{ACC+24}, 6, v{ACC+24}
                v_and_b32 v{ACC+25}, 1, v0
                v_lshl_add_u32 v{ACC+24}, v{ACC+25}, 4, v{ACC+24}
                v_add_u32 v{ACC+24}, {STAGE*R}, v{ACC+24}
                v_lshrrev_b32 v{VC}, 5, v1
                v_lshlrev_b32 v{VC}, 6, v{VC}
                v_add_u32 v{VC}, {STAGE*R}, v{VC}""")
        if emit:
            late_setup()
        if mod:
            W("pro", "vm", "M", {("M",)})
            if emit:
                for j in range(8): a(f"v_add_f32 v{ACC+j}, v{ACC+j}, v{ACC+8+j}")
                for j in range(4): a(f"v_cvt_pk_bf16_f32 v{ACC+16+j}, v{ACC+2*j}, v{ACC+2*j+1}")
                unpack(a, ACC, ACC + 16, 4)
                for j in range(4): a(f"v_add_f32 v{ACC+j}, 1.0, v{ACC+j}")
                for j in range(2): a(f"v_cvt_pk_bf16_f32 v{ACC+16+j}, v{ACC+2*j}, v{ACC+2*j+1}")
                unpack(a, ACC, ACC + 16, 2)
                a(f"ds_write_b128 v{ACC+24}, {v(ACC,4)}\nds_write_b128 v{ACC+24}, {v(ACC+4,4)} offset:32\ns_waitcnt lgkmcnt(0)")
        if emit:
            if PEEL == 0:
                for i in range(16 * NB * MB): a(f"v_mov_b32 v{ACC+i}, 0")
        barrier("pro", 0)
        if mod: flush(cread(0) + cread(1), 99)
        for tt in range(FB):
            for j in range(NB): reads(tt, j)
        if mod:
            assert PEEL > 0
            W("pro", "vm", "A", {("A", 0)}); W("pro", "lg", "C", {("C", 0)})
            flush(xform(0), 99)
        if PEEL == 0: flush(take(-1, 999), 999)
        if emit: stamp(k, 1)
        for t in range(S):
            peeled = t < 4 * PEEL
            site = ("p", t) if peeled else (t - 4 * PEEL) % (4 * U)
            if t == 4 * PEEL:
                assert not [o for o in ops if o[1] < t], f"{name}: backlog not drained"
                E(f"s_mov_b32 s30, {(NST-PEEL)//U}\n.p2align 6\n{name}_loop:")
            if t == 4 * PEEL + 4 * U:
                E(f"s_sub_u32 s30, s30, 1\ns_cmp_lg_u32 s30, 0\ns_cbranch_scc1 {name}_loop")
                if emit: return
            sub = t % 4
            fill = take(t, CAP if peeled else 999)
            if not peeled and site == 1: fill.append((f"buffer_load_dword {'v0' if not big else 'a%d' % (na - 1)}, v2, s[92:95], 0 offen", ("C",)))
            vfill = []
            if mod:
                xf = [("W", (site, "vm", "A", {("A", t + 1)})), ("W", (site, "lg", "C", {("C", t + 1)}))]
                cr = cread(t + 2)
                if not peeled and site == 4 * U - 1: vfillx = [(f"v_add_u32 v{VC}, {4*U*128}, v{VC}", None)]
                else: vfillx = []
                vfill = xform(t + 1) + vfillx
                fill = cr + fill
            n0 = len(fill); nv0 = len(vfill); nslots = NB * MB; slot = 0
            if not mod: W(site, "vm", "A", {("A", t)})
            for j in range(NB):
                if not mod or (t == 0 and j == 0): W(site, "lg", f"F{j}", {("F", t, min(NB - 1, j + (WG - 1 - j % WG)))})
                for tb in range(MB):
                    af = rr(fk, AR + 4 * (MB * (t % DA) + tb), 4) if not mod else v(HF + 4 * (t % 2), 4); bf = rr(fk, BF + 4 * (NB * (t % FB) + j), 4); c = v(acc(j, tb), 16)
                    x, y = (bf, af) if orient[j] == "tok" else (af, bf)
                    E(f"v_mfma_f32_32x32x16_bf16 {c}, {x}, {y}, {c if (t or PEEL == 0) else 0}")
                    slot += 1
                    if mod:
                        if j == 0: flush(xf, 9)
                        jn, tn_ = (j + 1, t) if j + 1 < NB else (0, t + 1)
                        W(site, "lg", f"N{j}", {("F", tn_, min(NB - 1, jn + (WG - 1 - jn % WG)))})
                    if tb == MB - 1:
                        if j == 0 and sub == BOFF: barrier(site, (t + FB) // 4)
                        reads(t + FB, j)
                    if not (sub == BOFF and j == 0 and tb < MB - 1):
                        flush(fill, max(0, (n0 * slot + nslots - 1) // nslots - (n0 - len(fill))))
                    vs = nslots - EXP.get("qvs", 1)
                    flush(vfill, max(0, (nv0 * min(slot, vs) + vs - 1) // vs - (nv0 - len(vfill))))
            flush(fill, 999)
        if (NST - PEEL) == U: E(f"s_sub_u32 s30, s30, 1\ns_cmp_lg_u32 s30, 0\ns_cbranch_scc1 {name}_loop")
    run(None)
    cnt.reset()
    run(a)
    a(f"{name}_epi:")
    stamp(k, 2)
    epilogue(k)
    stamp(k, 3)
    prof_out(k, 4, KID[name], 26)
    finish(k)
    return k

def k_qkv():
    def setup(k, a):
        if not EXP.get("fuse1", 1) or QPRE >= 1024: return []
        T = k.TMP; per = (1024 - QPRE) * 48 // 1024
        if a: srd(a, 16, 40, QPRE * 6144, (1024 - QPRE) * 6144)
        first = f"""s_lshl_b32 s32, s2, 2
        s_add_u32 s32, s32, s26
        s_lshl_b32 s55, s32, 7
        v_lshlrev_b32 v{T+6}, 17, v1"""
        return [(EXP.get("qpfat", 12), [first, f"buffer_load_dword v{T+7}, v{T+6}, s[16:19], s55 offen"])]
    def epi(k):
        a = k.a; T = k.TMP
        qs = LOG2E / math.sqrt(32)
        srd(a, 12, 44, WS_Q, 4 << 20); srd(a, 16, 44, WS_KV, 8 << 20)
        a(f"""
        v_lshlrev_b32 v{T}, 4, v1
        s_lshl_b32 s32, s25, 7
        s_add_u32 s32, s32, s37
        s_lshl_b32 s33, s32, 11          ; Q offset
        s_lshl_b32 s34, s32, 12
        s_add_u32 s35, s33, {64*2048}
        s_add_u32 s39, s34, {64*4096}""")
        for j in range(6):
            c = k.acc(j, 0)
            if j < 2:
                for i in range(16): a(f"v_mul_f32 v{c+i}, {fx(qs)}, v{c+i}")
            for g in range(2):
                for i in range(4 * g, 4 * g + 4): a(f"v_cvt_pk_bf16_f32 v{c+i}, v{c+2*i}, v{c+2*i+1}")
            for g in range(2):
                if j < 2: a(f"buffer_store_dwordx4 {v(c+4*g,4)}, v{T}, s[12:15], s{33 if j==0 else 35} offen offset:{1024*g} sc1")
                else: a(f"buffer_store_dwordx4 {v(c+4*g,4)}, v{T}, s[16:19], s{34 if j%2==0 else 39} offen offset:{(2048 if j>=4 else 0)+1024*g} sc1")
    return k_gemm("qkv_kernel", 1024, 1, 6, EXP.get("qDA", 8), EXP.get("qR", 4), 2, EXP.get("qPEEL", 4), EXP.get("qCAP", 4), EXP.get("qINIT", 9),
                  "panel", WS_H1, "contig", False, ["tok"]*4 + ["feat"]*2, 16, 16, 2, 4,
                  [(40, P_WQKV), (44, P_WS)], setup, epi, 6144, alt=(WS_WQ3, 1536, 256, 768),
                  mod=EXP.get('fuse1', 1) == 1, xlds=(8192 + 256 if EXP.get('fuse1', 1) == 1 else 0))

def colvec_ops(k, need, dst, idxs, va):
    ops = []
    first = [f"s_lshl_b32 s32, s25, 8\nv_lshl_add_u32 v{va}, v1, 2, s32"]
    for n, idx in enumerate(idxs):
        for p in range(KS):
            ops.append((need, first + [f"s_mov_b32 s32, {p*6144*4 + idx*4096}", f"buffer_load_dword v{dst+2*n+p}, v{va}, s[20:23], s32 offen"]))
            first = []
    return ops

def k_out():
    def setup(k, a):
        T = k.TMP
        if a:
            srd(a, 12, 42, 0, 4 << 20); srd(a, 20, 44, WS_MODP, KS * 6144 * 4)
        ops = colvec_ops(k, 30, T + 8, [2, 4], T + 6)
        first = [f"""v_lshrrev_b32 v{T+12}, 3, v1
        v_and_b32 v{T+7}, 7, v1
        v_xor_b32 v{T+7}, v{T+7}, v{T+12}
        v_lshlrev_b32 v{T+7}, 4, v{T+7}
        v_lshl_add_u32 v{T+7}, v{T+12}, 11, v{T+7}
        s_lshl_b32 s55, s37, 16
        s_lshl_b32 s32, s25, 7
        s_add_u32 s55, s55, s32
        s_lshl_b32 s56, s26, 12
        s_add_u32 s56, s56, {k.XL}"""]
        for i in range(4):
            ops.append((31, first + [f"s_add_u32 m0, s56, {1024*i}", "s_nop 0", f"buffer_load_dwordx4 v{T+7}, s[12:15], s55 offen lds", "s_add_u32 s55, s55, 0x4000"]))
            first = []
        return ops
    def epi(k):
        a = k.a; T = k.TMP; G = T + 16; C = G + 32; X = C + 32; P = X + 32
        srd(a, 12, 44, WS_X2, 64 * SLAB); srd(a, 16, 44, WS_Y2, 64 * SLAB); srd(a, 20, 44, WS_STAT, 16 * 2048 * 8)
        a(f"""
        v_add_f32 v{T+8}, v{T+8}, v{T+9}
        v_add_f32 v{T+10}, v{T+10}, v{T+11}""")
        rbf(a, T + 8); rbf(a, T + 10)
        a(f"v_add_f32 v{T+10}, 1.0, v{T+10}")
        rbf(a, T + 10)
        a(f"""
        s_lshl_b32 s32, s26, 9
        s_add_u32 s32, s32, {k.XL + 16384}
        v_lshl_add_u32 v{T}, v1, 2, s32
        ds_write_b32 v{T}, v{T+8}
        ds_write_b32 v{T}, v{T+10} offset:256
        v_lshrrev_b32 v{T+1}, 5, v1
        v_lshl_add_u32 v{T}, v{T+1}, 5, s32
        v_and_b32 v{T+2}, 31, v1
        v_and_b32 v{T+3}, 7, v1
        v_xor_b32 v{T+3}, v{T+3}, v{T+1}
        v_lshlrev_b32 v{T+3}, 4, v{T+3}
        v_lshl_add_u32 v{T+3}, v{T+2}, 7, v{T+3}
        v_add_u32 v{T+3}, s56, v{T+3}
        s_waitcnt lgkmcnt(0)""")
        for q in range(4):
            a(f"v_xor_b32 v{T+4}, {32*q}, v{T+3}\nds_read_b128 {v(P+4*q,4)}, v{T+4}")
        for q in range(4):
            for hh in range(2): a(f"ds_read_b128 {v(G+8*q+4*hh,4)}, v{T} offset:{64*q+16*hh}")
        a("s_waitcnt lgkmcnt(8)")
        unpack(a, X, P, 16)
        for q in range(4):
            for hh in range(2): a(f"ds_read_b128 {v(C+8*q+4*hh,4)}, v{T} offset:{256+64*q+16*hh}")
        a(f"s_mul_i32 s33, s25, {4*SLAB}\ns_waitcnt lgkmcnt(8)")
        for q in range(4):
            c = k.acc(q // 2, 0) + 8 * (q % 2)
            for i in range(8): a(f"v_fmac_f32 v{X+8*q+i}, v{G+8*q+i}, v{c+i}")
            for i in range(4): a(f"v_cvt_pk_bf16_f32 v{P+4*q+i}, v{X+8*q+2*i}, v{X+8*q+2*i+1}")
            a(f"s_add_u32 s34, s33, {q*SLAB}\nbuffer_store_dwordx4 {v(P+4*q,4)}, v{k.VA}, s[12:15], s34 offen sc1")
        unpack(a, X, P, 16)
        a("s_waitcnt lgkmcnt(0)")
        for q in range(4):
            for i in range(8): a(f"v_mul_f32 v{C+8*q+i}, v{C+8*q+i}, v{X+8*q+i}")
            for i in range(4): a(f"v_cvt_pk_bf16_f32 v{G+4*q+i}, v{C+8*q+2*i}, v{C+8*q+2*i+1}")
            a(f"s_add_u32 s34, s33, {q*SLAB}\nbuffer_store_dwordx4 {v(G+4*q,4)}, v{k.VA}, s[16:19], s34 offen sc1")
        a(f"v_add_f32 v{T+8}, v{X}, v{X+1}\nv_add_f32 v{T+9}, v{X+2}, v{X+3}")
        for i in range(4, 32): a(f"v_add_f32 v{T+8+i%2}, v{T+8+i%2}, v{X+i}")
        a(f"""
        v_add_f32 v{T+8}, v{T+8}, v{T+9}
        v_mov_b32 v{T+9}, v{T+8}
        v_permlane32_swap_b32 v{T+8}, v{T+9}
        v_add_f32 v{T+8}, v{T+8}, v{T+9}
        v_mul_f32 v{T+10}, {fx(1/64)}, v{T+8}""")
        for i in range(32): a(f"v_sub_f32 v{X+i}, v{X+i}, v{T+10}")
        a(f"v_mul_f32 v{T+9}, v{X}, v{X}\nv_mul_f32 v{T+10}, v{X+1}, v{X+1}")
        for i in range(2, 32): a(f"v_fmac_f32 v{T+9+i%2}, v{X+i}, v{X+i}")
        a(f"""
        v_add_f32 v{T+9}, v{T+9}, v{T+10}
        v_mov_b32 v{T+10}, v{T+9}
        v_permlane32_swap_b32 v{T+9}, v{T+10}
        v_add_f32 v{T+9}, v{T+9}, v{T+10}
        v_lshlrev_b32 v{T+2}, 3, v{T+2}
        s_lshl_b32 s32, s25, 14
        s_lshl_b32 s33, s37, 8
        s_add_u32 s32, s32, s33
        s_mov_b32 exec_hi, 0
        buffer_store_dwordx2 {v(T+8,2)}, v{T+2}, s[20:23], s32 offen sc1
        s_mov_b32 exec_hi, -1""")
    return k_gemm("out_kernel", 1024, 1, 2, 16, 6, 4, 0, 99, 999, "panel", WS_O, "split", True, ["tok"]*2, 16, 16, 4, 2,
                  [(40, P_WO), (42, P_X), (44, P_WS)], setup, epi, 2048, alt=(WS_WO3, 512, 0, 256), ntemp=16 + 96 + 16, xlds=16384 + 2048,
                  FB=EXP.get("pFB", 2))

def k_down():
    def setup(k, a):
        T = k.TMP
        if a:
            srd(a, 12, 44, WS_X2, 64 * SLAB); srd(a, 20, 44, WS_MODP, KS * 6144 * 4)
        ops = colvec_ops(k, 30, T + 8, [5], T + 6)
        first = [f"s_mul_i32 s55, s25, {4*SLAB}"]
        for q in range(4):
            ops.append((31, first + [f"buffer_load_dwordx4 {v(T+16+4*q,4)}, v{k.VA}, s[12:15], s55 offen", f"s_add_u32 s55, s55, {SLAB}"]))
            first = []
        return ops
    def epi(k):
        a = k.a; T = k.TMP; P = T + 16; G = P + 16; X = G + 32
        srd(a, 16, 46, 0, 4 << 20)
        a(f"v_add_f32 v{T+8}, v{T+8}, v{T+9}")
        rbf(a, T + 8)
        a(f"""
        s_lshl_b32 s32, s26, 8
        s_add_u32 s32, s32, {k.XL + 16384}
        v_lshl_add_u32 v{T}, v1, 2, s32
        ds_write_b32 v{T}, v{T+8}
        v_lshrrev_b32 v{T+1}, 5, v1
        v_lshl_add_u32 v{T}, v{T+1}, 5, s32
        s_lshl_b32 s56, s26, 12
        s_add_u32 s56, s56, {k.XL}
        v_and_b32 v{T+2}, 31, v1
        v_and_b32 v{T+3}, 7, v1
        v_xor_b32 v{T+3}, v{T+3}, v{T+1}
        v_lshlrev_b32 v{T+3}, 4, v{T+3}
        v_lshl_add_u32 v{T+3}, v{T+2}, 7, v{T+3}
        v_add_u32 v{T+3}, s56, v{T+3}
        s_waitcnt lgkmcnt(0)""")
        for q in range(4):
            for hh in range(2): a(f"ds_read_b128 {v(G+8*q+4*hh,4)}, v{T} offset:{64*q+16*hh}")
        unpack(a, X, P, 16)
        a(f"""
        v_lshl_add_u32 v{T+5}, v1, 4, s56
        v_lshrrev_b32 v{T+6}, 3, v1
        v_and_b32 v{T+7}, 7, v1
        v_xor_b32 v{T+7}, v{T+7}, v{T+6}
        v_lshlrev_b32 v{T+7}, 4, v{T+7}
        v_lshl_add_u32 v{T+7}, v{T+6}, 11, v{T+7}
        s_lshl_b32 s33, s37, 16
        s_lshl_b32 s32, s25, 7
        s_add_u32 s33, s33, s32
        s_waitcnt lgkmcnt(0)""")
        for q in range(4):
            c = k.acc(q // 2, 0) + 8 * (q % 2)
            for i in range(8): a(f"v_fmac_f32 v{X+8*q+i}, v{G+8*q+i}, v{c+i}")
            for i in range(4): a(f"v_cvt_pk_bf16_f32 v{P+4*q+i}, v{X+8*q+2*i}, v{X+8*q+2*i+1}")
            a(f"v_xor_b32 v{T+4}, {32*q}, v{T+3}\nds_write_b128 v{T+4}, {v(P+4*q,4)}")
        a("s_waitcnt lgkmcnt(0)")
        for i in range(4): a(f"ds_read_b128 {v(G+4*i,4)}, v{T+5} offset:{1024*i}")
        for i in range(4):
            a(f"s_waitcnt lgkmcnt({3-i})\nbuffer_store_dwordx4 {v(G+4*i,4)}, v{T+7}, s[16:19], s33 offen sc1\ns_add_u32 s33, s33, 0x4000")
    return k_gemm("down_kernel", 3584, 1, 2, 16, 6, 4, 0, 99, 999, "panel", WS_ACT, "split", True, ["tok"]*2, 16, 16, 4, 2,
                  [(40, P_WD), (44, P_WS), (46, P_OUT)], setup, epi, 2048, alt=(WS_WD3, 512, 0, 256), ntemp=16 + 16 + 64, xlds=16384 + 1024,
                  FB=EXP.get("pFB", 2))

def k_gu():
    def setup(k, a):
        T = k.TMP; XA = k.XA
        if a:
            srd(a, 16, 44, WS_STAT, 16 * 2048 * 8); srd(a, 20, 44, WS_UV, KS * 2 * 7168 * 4)
        ops = []
        first = [f"""v_and_b32 v{T+6}, 31, v1
        v_lshlrev_b32 v{T+6}, 3, v{T+6}
        v_lshrrev_b32 v{T+7}, 5, v1
        v_lshl_add_u32 v{T+6}, v{T+7}, 17, v{T+6}
        s_lshl_b32 s55, s37, 8"""]
        for i in range(8):
            for tb in range(2):
                ops.append((40, first + [f"buffer_load_dwordx2 {a_(XA+16*tb+2*i,2)}, v{T+6}, s[16:19], s55 offen offset:{256*tb}"] + (["s_add_u32 s55, s55, 0x4000"] if tb else [])))
                first = []
        first = [f"""v_cmp_lt_u32 vcc, 111, v0
        v_mov_b32 v{T+7}, {(3584-112)*4}
        v_cndmask_b32 v{T+7}, 0, v{T+7}, vcc
        v_lshl_add_u32 v{T+7}, v0, 2, v{T+7}
        s_mul_i32 s56, s25, 448"""]
        for i in range(4):
            ops.append((41, first + [f"buffer_load_dword a{XA+32+i}, v{T+7}, s[20:23], s56 offen", f"s_add_u32 s56, s56, {7168*4}"]))
            first = []
        return ops
    def epi(k):
        a = k.a; T = k.TMP; XA = k.XA
        c0 = -2 * math.sqrt(2 / math.pi) * LOG2E; c1 = c0 * 0.044715
        srd(a, 12, 44, WS_ACT, 224 * SLAB)
        for i in range(4): a(f"v_accvgpr_read_b32 v{10+i}, a{XA+32+i}")
        a(f"""
        v_add_f32 v10, v10, v12
        v_add_f32 v11, v11, v13
        v_lshlrev_b32 v2, 2, v0
        ds_write_b32 v2, v10 offset:{k.XL % 65536}
        ds_write_b32 v2, v11 offset:{k.XL % 65536 + 1024}""".replace("v_lshlrev_b32 v2, 2, v0", f"v_lshlrev_b32 v2, 2, v0\nv_add_u32 v2, {k.XL // 65536 * 65536}, v2"))
        for tb, D in ((0, 4), (1, 30)):
            for i in range(16): a(f"v_accvgpr_read_b32 v{10+i}, a{XA+16*tb+i}")
            a("v_add_f32 v26, v10, v12\nv_add_f32 v27, v11, v13")
            for i in range(2, 8): a(f"v_add_f32 v26, v26, v{10+2*i}\nv_add_f32 v27, v27, v{11+2*i}")
            a(f"""
            v_mov_b32 v28, v26
            v_permlane32_swap_b32 v26, v28
            v_add_f32 v26, v26, v28
            v_mul_f32 v28, {fx(1/16)}, v26""")
            for i in range(8): a(f"v_sub_f32 v{10+2*i}, v{10+2*i}, v28")
            a("v_mul_f32 v29, v10, v10")
            for i in range(1, 8): a(f"v_fmac_f32 v29, v{10+2*i}, v{10+2*i}")
            a(f"""
            v_fmac_f32 v27, {fx(1/64)}, v29
            v_mov_b32 v28, v27
            v_permlane32_swap_b32 v27, v28
            v_add_f32 v27, v27, v28
            v_mov_b32 v28, {fx(1e-5)}
            v_fmac_f32 v28, {fx(1/1024)}, v27
            v_rsq_f32 v{D}, v28
            v_mul_f32 v26, {fx(-1/1024)}, v26
            v_mul_f32 v{D+1}, v26, v{D}""")
        a(f"""
        v_lshrrev_b32 v9, 5, v1
        v_lshlrev_b32 v9, 4, v9
        v_add_u32 v9, {k.XL}, v9
        s_mul_i32 s32, s25, {7*SLAB}
        s_mov_b32 s34, {fx(c1)}
        s_mov_b32 s35, {fx(c1)}
        v_mov_b32 v26, {fx(c0)}
        v_mov_b32 v27, {fx(c0)}
        v_mov_b32 v28, 1.0
        v_mov_b32 v29, 1.0
        s_waitcnt lgkmcnt(0)
        s_barrier""")
        def rdq(j, q, B):
            o = 64 * j + 32 * q
            for n, oo in enumerate((o, o + 1024, o + 448, o + 448 + 1024)): a(f"ds_read_b128 {v(B+4*n,4)}, v9 offset:{oo}")
        pk = lambda r: v(r, 2)
        def fold(j, q, B):
            for tb, D in ((0, 4), (1, 30)):
                c = k.acc(j, tb) + 4 * q
                for i in (0, 2):
                    a(f"v_pk_fma_f32 {pk(c+i)}, {pk(c+i)}, {pk(D)}, {pk(B+4+i)} op_sel_hi:[1,0,1]")
                    a(f"v_pk_fma_f32 {pk(c+8+i)}, {pk(c+8+i)}, {pk(D)}, {pk(B+12+i)} op_sel_hi:[1,0,1]")
                for i in (0, 2):
                    a(f"v_pk_fma_f32 {pk(c+i)}, {pk(B+i)}, {pk(D)}, {pk(c+i)} op_sel:[0,1,0]")
                    a(f"v_pk_fma_f32 {pk(c+8+i)}, {pk(B+8+i)}, {pk(D)}, {pk(c+8+i)} op_sel:[0,1,0]")
        for j in range(7):
            if j == 0:
                rdq(0, 0, 10); a("s_waitcnt lgkmcnt(0)"); fold(0, 0, 10)
                rdq(0, 1, 10); a("s_waitcnt lgkmcnt(0)"); fold(0, 1, 10)
            else:
                a("s_waitcnt lgkmcnt(0)"); fold(j, 0, 10); fold(j, 1, k.acc(j - 1, 0))
            if j < 6: rdq(j + 1, 0, 10)
            for tb in range(2):
                c = k.acc(j, tb)
                for i in range(0, 8, 2): a(f"v_pk_mul_f32 {pk(c+8+i)}, {pk(c+8+i)}, {pk(c+i)}")
                for i in (0, 4):
                    a(f"v_pk_mul_f32 v[0:1], {pk(c+i)}, {pk(c+i)}\nv_pk_mul_f32 v[2:3], {pk(c+i+2)}, {pk(c+i+2)}")
                    a(f"v_pk_fma_f32 v[0:1], v[0:1], s[34:35], v[26:27]\nv_pk_fma_f32 v[2:3], v[2:3], s[34:35], v[26:27]")
                    a(f"v_pk_mul_f32 {pk(c+i)}, v[0:1], {pk(c+i)}\nv_pk_mul_f32 {pk(c+i+2)}, v[2:3], {pk(c+i+2)}")
                for i in range(8): a(f"v_exp_f32 v{c+i}, v{c+i}")
                for i in range(0, 8, 2): a(f"v_pk_add_f32 {pk(c+i)}, {pk(c+i)}, v[28:29]")
                for i in range(8): a(f"v_rcp_f32 v{c+i}, v{c+i}")
                for i in range(0, 8, 2): a(f"v_pk_mul_f32 {pk(c+i)}, {pk(c+i)}, {pk(c+8+i)}")
                for i in range(4): a(f"v_cvt_pk_bf16_f32 v{c+8+i}, v{c+2*i}, v{c+2*i+1}")
                a(f"buffer_store_dwordx4 {v(c+8,4)}, v{k.VA+tb}, s[12:15], s32 offen sc1")
                if tb == 0 and j < 6: rdq(j + 1, 1, c)
            a(f"s_add_u32 s32, s32, {SLAB}")
    return k_gemm("gu_kernel", 1024, 2, 7, EXP.get("gDA", 4), EXP.get("gR", 4), 2, EXP.get("gPEEL", 4), EXP.get("gCAP", 6), EXP.get("gINIT", 11),
                  "gu", WS_Y2, "contig", False, ["tok"]*7, 8, 32, 2, 4,
                  [(40, P_WG), (42, P_WU), (44, P_WS)], setup, epi, 7168, big=True, xlds=2048, nxa=37)

NSIDE = 288
def nside(): return 0 if EXP.get('noside') else (224 if EXP.get('gpre', 1) else 288)
def attn_side(k, nw):
    a = k.a
    a("attn_side:")
    if nw == 4 and EXP.get("sprio", 1): a("s_setprio 3")
    load_ptrs(a, [(40, P_C), (42, P_WMOD), (44, P_WS), (46, P_WG), (48, P_WU), (62, P_WO), (64, P_WD)])
    wave_lane(a)
    a(f"""
    s_sub_u32 s27, s2, 256
    s_lshl_b32 s32, s27, {(nw*64).bit_length()-1}
    v_add_u32 v3, s32, v0
    s_waitcnt lgkmcnt(0)""")
    def mid():
        strip_copy_issue(a, 3, 62, 1024, 2048, 1, 0, 108)
        strip_copy_issue(a, 3, 64, 3584, 2048, 1, 0 if EXP.get('gpre', 1) else 16384, 116)
        a("s_waitcnt vmcnt(0)")
        strip_copy_store(a, 44, WS_WO3, 1024 * 512, 108)
        strip_copy_store(a, 44, WS_WD3, 3584 * 512, 116)
    a(f"""
    s_and_b32 s32, s27, 1
    s_lshr_b32 s33, s27, 1
    s_lshl_b32 s52, s32, 9
    s_cmp_ge_u32 s33, 112
    s_cbranch_scc1 attn_side_g
    s_mov_b32 s51, 7168
    s_mul_i32 s53, s32, {2*7168*4}
    s_lshl_b32 s34, s33, 8
    s_add_u32 s53, s53, s34
    s_mov_b32 s54, {7168*4}
    s_cmp_ge_u32 s33, 56
    s_cselect_b32 s46, s48, s46
    s_cselect_b32 s47, s49, s47
    s_cselect_b32 s34, 56, 0
    s_sub_u32 s33, s33, s34
    s_mul_i32 s50, s52, s51
    s_lshl_b32 s34, s33, 7
    s_add_u32 s50, s50, s34""")
    srd(a, 8, 46, 0, 1024 * 7168); srd(a, 12, 44, WS_MODP, KS * 6144 * 4); srd(a, 16, 44, WS_UV, KS * 2 * 7168 * 4)
    skinny(k, "u", "pair", "", EXP.get("pace", 8 // nw), nw=nw, mid=mid)
    if EXP.get("gpre", 1):
        a("attn_side_g:")
        return
    a(f"""
attn_side_g:
    s_sub_u32 s33, s33, {112-32}
    s_cmp_ge_u32 s33, 48
    s_cselect_b32 s34, 32, 0
    s_add_u32 s33, s33, s34
    s_mov_b32 s51, 12288
    s_mul_i32 s50, s52, s51
    s_lshl_b32 s34, s33, 7
    s_add_u32 s50, s50, s34
    s_mul_i32 s53, s32, {6144*4}
    s_lshl_b32 s34, s33, 8
    s_add_u32 s53, s53, s34
    s_mov_b32 s54, 0""")
    srd(a, 8, 42, 0, 1024 * 12288); srd(a, 12, 40, 0, 2048); srd(a, 16, 44, WS_MODP, KS * 6144 * 4)
    skinny(k, "g", "silu", " nt", EXP.get("pace", 8 // nw), nw=nw, mid=mid)


def k_attn():
    R = 4; ST = 16384
    k = Kernel("attn_kernel", 256 + nside(), 512, SK_LDS, 128); a = k.a
    Q0, Q1, ONES, NEG, SA, SB, O, L, P0, P1, K0, K1, V0, V1, T = 4, 8, 12, 16, 32, 48, 64, 80, 84, 88, 92, 96, 100, 104, 108
    guard(k)
    a("s_cmp_ge_u32 s2, 256\ns_cbranch_scc1 attn_side")
    stamp(k, 0)
    load_ptrs(a, [(44, P_WS), (46, P_WO), (48, P_WD), (52, P_X)])
    if EXP.get("aprio", 1): a("s_setprio 2")
    a(f"""
    s_and_b32 s32, s2, 7
    s_lshr_b32 s33, s2, 3
    s_and_b32 s34, s32, 3
    s_lshl_b32 s34, s34, 3
    s_and_b32 s35, s33, 7
    s_add_u32 s24, s34, s35            ; head
    s_lshr_b32 s34, s32, 2
    s_lshl_b32 s34, s34, 2
    s_lshr_b32 s35, s33, 3
    s_add_u32 s25, s34, s35
    v_lshrrev_b32 v3, 6, v0
    v_and_b32 v1, 63, v0
    v_readfirstlane_b32 s26, v3
    v_lshlrev_b32 v2, 4, v1
    s_lshl_b32 s27, s25, 3
    s_add_u32 s27, s27, s26
    s_lshl_b32 s28, s24, 18
    s_lshl_b32 s29, s26, 11            ; wave * 2048
    s_lshl_b32 s32, s24, 6
    s_add_u32 s32, s32, s27
    s_lshl_b32 s32, s32, 11            ; Q offset
    s_waitcnt lgkmcnt(0)""")
    srd(a, 4, 44, WS_Q, 4 << 20)
    a(f"s_add_u32 s8, s44, s28\ns_addc_u32 s9, s45, 0\ns_add_u32 s8, s8, {WS_KV}\ns_addc_u32 s9, s9, 0\ns_mov_b32 s10, 0x40000\ns_mov_b32 s11, 0x20000")
    a("s_mov_b32 s30, s29")
    def dma(slot):
        return [f"s_add_u32 m0, s29, {slot*ST}", "buffer_load_dwordx4 v2, s[8:11], s30 offen lds",
                "buffer_load_dwordx4 v2, s[8:11], s30 offen offset:1024 lds", f"s_add_u32 s30, s30, {ST}"]
    a(f"buffer_load_dwordx4 {v(Q0,4)}, v2, s[4:7], s32 offen\nbuffer_load_dwordx4 {v(Q1,4)}, v2, s[4:7], s32 offen offset:1024")
    a(f"buffer_load_dwordx4 {v(K0,4)}, v2, s[8:11], 0 offen\nbuffer_load_dwordx4 {v(K1,4)}, v2, s[8:11], 0 offen offset:1024")
    for st in range(R - 1):
        for x in dma(st): a(x)
    srd(a, 12, 44, WS_O, 64 * SLAB)
    frag_off(a, 3, 27, 1, T)
    code_srd(k, 92, "attn_epi")
    a(f"v_lshlrev_b32 v{T+4}, 7, v0")
    if EXP.get("apf", 1):
        srd(a, 16, 46, 0, 1024 * 2048); srd(a, 20, 48, 0, 3584 * 2048)
        a(f"""
        s_lshl_b32 s32, s2, 3
        s_add_u32 s32, s32, s26
        s_mul_i32 s50, s32, {7*128}
        s_lshl_b32 s51, s32, 8
        v_lshlrev_b32 v{T+6}, 7, v1
        v_mov_b32 v{T+8}, 0x80000000
        v_cmp_gt_u32 vcc, 2, v1
        v_cndmask_b32 v{T+7}, v{T+8}, v{T+6}, vcc
        v_cmp_gt_u32 vcc, 4, v1
        v_cndmask_b32 v{T+9}, v{T+8}, v{T+6}, vcc
        s_lshl_b32 s54, s32, 9
        v_cmp_gt_u32 vcc, 7, v1
        v_cndmask_b32 v{T+6}, v{T+8}, v{T+6}, vcc""")
        srd(a, 56, 52, 0, 2048 * 2048)
    a(f"""
    v_lshrrev_b32 v{T}, 4, v1
    v_lshrrev_b32 v{T+1}, 2, v1
    v_xor_b32 v{T}, v{T}, v{T+1}
    v_and_b32 v{T}, 1, v{T}
    v_cmp_eq_u32 vcc, 0, v{T}
    v_mov_b32 v{T+1}, 0x3f803f80
    v_cndmask_b32 v{ONES}, 0, v{T+1}, vcc""")
    for i in range(1, 4): a(f"v_mov_b32 v{ONES+i}, v{ONES}")
    for i in range(16): a(f"v_mov_b32 v{O+i}, 0")
    for i in range(4): a(f"v_mov_b32 v{L+i}, 0\nv_mov_b32 v{P1+i}, 0\nv_mov_b32 v{V1+i}, 0")
    a(f"""
    s_waitcnt vmcnt({2*(R-1)})
    v_mfma_f32_32x32x16_bf16 {v(SA,16)}, {v(K0,4)}, {v(Q0,4)}, 0
    v_mfma_f32_32x32x16_bf16 {v(SA,16)}, {v(K1,4)}, {v(Q1,4)}, {v(SA,16)}""")
    def rowmax(S, m):
        for i in range(0, 16, 2): a(f"v_max3_f32 v{m}, v{S+i}, v{S+i+1}, v{m}")
    def negbcast(m):
        a(f"v_mov_b32 v{m+1}, v{m}\nv_permlane32_swap_b32 v{m}, v{m+1}\nv_max_f32 v{m}, v{m}, v{m+1}")
        for i in range(16): a(f"v_sub_f32 v{NEG+i}, 0, v{m}")
    a(f"v_mov_b32 v{T}, v{SA}")
    rowmax(SA, T); negbcast(T)
    for i in range(16): a(f"v_sub_f32 v{SA+i}, v{SA+i}, v{T}")
    a(f"""
    s_waitcnt vmcnt({2*(R-2)})
    s_barrier
    ds_read_b128 {v(K0,4)}, v2 offset:4096
    ds_read_b128 {v(K1,4)}, v2 offset:5120
    ds_read_b128 {v(V0,4)}, v2 offset:2048""")
    cnt = Cnt()
    def it(j, E, site):
        def W(c, nm, tags):
            cnt.wait(c, (site, nm), tags)
            if E: E(cnt.text(c, (site, nm)))
        def X(x):
            if E: E(x)
        def RD(reg, blk, piece):
            X(f"ds_read_b128 {v(reg,4)}, v2 offset:{(blk % (4*R))*4096 + piece*1024}")
            cnt.issue("lg", (piece, blk))
        S, Sn = (SA, SB) if j % 2 == 0 else (SB, SA)
        e = lambda i: X(f"v_exp_f32 v{S+i}, v{S+i}")
        c = lambda i: X(f"v_cvt_pk_bf16_f32 v{P0+i}, v{S+2*i}, v{S+2*i+1}")
        W("lg", "k", {(0, j + 1), (3, j - 1), (1, j + 1)})
        X(f"v_mfma_f32_32x32x16_bf16 {v(Sn,16)}, {v(K0,4)}, {v(Q0,4)}, {v(NEG,16)}")
        e(0); e(1); e(2)
        X(f"v_mfma_f32_32x32x16_bf16 {v(O,16)}, {v(V1,4)}, {v(P1,4)}, {v(O,16)}")
        RD(V1, j, 3)
        e(3); c(0); e(4); c(1)
        X(f"v_mfma_f32_32x32x16_bf16 {v(Sn,16)}, {v(K1,4)}, {v(Q1,4)}, {v(Sn,16)}")
        if j % 4 == 2:
            W("vm", "bar", {("B", j // 4 + 1)})
            X("s_barrier")
        RD(K0, j + 2, 0); RD(K1, j + 2, 1)
        e(5); e(6); e(7)
        X(f"v_mfma_f32_16x16x32_bf16 {v(L,4)}, {v(ONES,4)}, {v(P1,4)}, {v(L,4)}")
        if j % 4 == 2:
            d = dma((j // 4 - 1) % R)
            X(d[0])
        c(2); c(3); e(8); e(9)
        W("lg", "v0", {(2, j)})
        X(f"v_mfma_f32_32x32x16_bf16 {v(O,16)}, {v(V0,4)}, {v(P0,4)}, {v(O,16)}")
        RD(V0, j + 1, 2)
        if j % 4 == 2:
            X(d[1]); X(d[2]); X(d[3])
            cnt.issue("vm", ("B", j // 4 - 1 + R)); cnt.issue("vm", ("B", j // 4 - 1 + R))
        if j % 16 == 3:
            X(f"buffer_load_dword v{T+5}, v{T+4}, s[92:95], 0 offen"); cnt.issue("vm", ("C",))
        if EXP.get("apf", 1) and j % 16 == 7:
            X(f"buffer_load_dword v{T+5}, v{T+6}, s[20:23], s50 offen\ns_add_u32 s50, s50, {2048*7*128}"); cnt.issue("vm", ("C",))
        if EXP.get("apf", 1) and j % 16 == 15:
            X(f"buffer_load_dword v{T+5}, v{T+9}, s[56:59], s54 offen\ns_add_u32 s54, s54, {2048*512}"); cnt.issue("vm", ("C",))
        if EXP.get("apf", 1) and j % 16 == 11:
            X(f"buffer_load_dword v{T+5}, v{T+7}, s[16:19], s51 offen\ns_add_u32 s51, s51, {2048*256}"); cnt.issue("vm", ("C",))
        e(10); e(11); c(4); e(12)
        X(f"v_mfma_f32_16x16x32_bf16 {v(L,4)}, {v(ONES,4)}, {v(P0,4)}, {v(L,4)}")
        c(5); e(13); e(14); e(15); c(6); c(7)
    def preload():
        cnt.reset()
        for st in range(R - 1):
            cnt.issue("vm", ("B", st)); cnt.issue("vm", ("B", st))
        for tg in [(0, 1), (1, 1), (2, 0)]: cnt.issue("lg", tg)
    preload()
    for j in range(64): it(j, None, j % 16)
    preload()
    stamp(k, 1)
    a("s_mov_b32 s31, 4\n.p2align 6\nattn_loop:")
    for j in range(16): it(j, a, j)
    a("s_sub_u32 s31, s31, 1\ns_cmp_lg_u32 s31, 0\ns_cbranch_scc1 attn_loop\nattn_epi:")
    stamp(k, 2)
    a(f"""
    s_waitcnt lgkmcnt(0)
    v_mfma_f32_32x32x16_bf16 {v(O,16)}, {v(V1,4)}, {v(P1,4)}, {v(O,16)}
    v_mfma_f32_16x16x32_bf16 {v(L,4)}, {v(ONES,4)}, {v(P1,4)}, {v(L,4)}
    v_mov_b32 v{T}, 0""")
    for i in range(16): a(f"v_fmac_f32 v{T}, 0, v{O+i}")
    a(f"""
    v_add_f32 v{T}, v{T}, v{L}
    v_cmp_ngt_f32 vcc, {fx(2.0**40)}, v{T}
    s_cbranch_vccnz attn_slow
attn_fin:
    v_rcp_f32 v{T}, v{L}
    s_mul_i32 s32, s24, {2*SLAB}
    s_add_u32 s33, s32, {SLAB}""")
    for i in range(16): a(f"v_mul_f32 v{O+i}, v{O+i}, v{T}")
    for i in range(8): a(f"v_cvt_pk_bf16_f32 v{O+i}, v{O+2*i}, v{O+2*i+1}")
    a(f"buffer_store_dwordx4 {v(O,4)}, v3, s[12:15], s32 offen sc1\nbuffer_store_dwordx4 {v(O+4,4)}, v3, s[12:15], s33 offen sc1")
    stamp(k, 3)
    prof_out(k, 4, 4, 26)
    a("s_endpgm")
    a(f"""
attn_slow:
    v_mov_b32 v{T}, 0xff800000
    s_mov_b32 s30, 0
attn_slow1:
    buffer_load_dwordx4 {v(K0,4)}, v2, s[8:11], s30 offen
    buffer_load_dwordx4 {v(K1,4)}, v2, s[8:11], s30 offen offset:1024
    s_waitcnt vmcnt(0)
    v_mfma_f32_32x32x16_bf16 {v(SA,16)}, {v(K0,4)}, {v(Q0,4)}, 0
    v_mfma_f32_32x32x16_bf16 {v(SA,16)}, {v(K1,4)}, {v(Q1,4)}, {v(SA,16)}""")
    rowmax(SA, T)
    a("s_add_u32 s30, s30, 4096\ns_cmp_lt_u32 s30, 0x40000\ns_cbranch_scc1 attn_slow1")
    negbcast(T)
    for i in range(16): a(f"v_mov_b32 v{O+i}, 0")
    for i in range(4): a(f"v_mov_b32 v{L+i}, 0")
    a(f"""
    s_mov_b32 s30, 0
attn_slow2:
    buffer_load_dwordx4 {v(K0,4)}, v2, s[8:11], s30 offen
    buffer_load_dwordx4 {v(K1,4)}, v2, s[8:11], s30 offen offset:1024
    buffer_load_dwordx4 {v(V0,4)}, v2, s[8:11], s30 offen offset:2048
    buffer_load_dwordx4 {v(V1,4)}, v2, s[8:11], s30 offen offset:3072
    s_waitcnt vmcnt(0)
    v_mfma_f32_32x32x16_bf16 {v(SA,16)}, {v(K0,4)}, {v(Q0,4)}, {v(NEG,16)}
    v_mfma_f32_32x32x16_bf16 {v(SA,16)}, {v(K1,4)}, {v(Q1,4)}, {v(SA,16)}""")
    for i in range(16): a(f"v_exp_f32 v{SA+i}, v{SA+i}")
    for i in range(8): a(f"v_cvt_pk_bf16_f32 v{P0+i}, v{SA+2*i}, v{SA+2*i+1}")
    a(f"""
    v_mfma_f32_32x32x16_bf16 {v(O,16)}, {v(V0,4)}, {v(P0,4)}, {v(O,16)}
    v_mfma_f32_32x32x16_bf16 {v(O,16)}, {v(V1,4)}, {v(P1,4)}, {v(O,16)}
    v_mfma_f32_16x16x32_bf16 {v(L,4)}, {v(ONES,4)}, {v(P0,4)}, {v(L,4)}
    v_mfma_f32_16x16x32_bf16 {v(L,4)}, {v(ONES,4)}, {v(P1,4)}, {v(L,4)}
    s_add_u32 s30, s30, 4096
    s_cmp_lt_u32 s30, 0x40000
    s_cbranch_scc1 attn_slow2
    s_branch attn_fin""")
    attn_side(k, 8)
    finish(k)
    return k


def k_attn4():
    R = 4; ST = 16384; SM = EXP.get("smf", 1)
    k = Kernel("attn_kernel", 256 + nside(), 256, SK_LDS, 192); a = k.a
    Q, ONES, NEG, S, O, L, P, K0, K1, V0, V1, T = 8, 24, 32, 64, 96, 128, 136, 152, 156, 160, 164, 176
    IDX = 28
    guard(k)
    a("s_cmp_ge_u32 s2, 256\ns_cbranch_scc1 attn_side")
    stamp(k, 0)
    load_ptrs(a, [(44, P_WS), (46, P_WO), (48, P_WD), (52, P_X)])
    a(f"""
    s_and_b32 s32, s2, 7
    s_lshr_b32 s33, s2, 3
    s_and_b32 s34, s32, 3
    s_lshl_b32 s34, s34, 3
    s_and_b32 s35, s33, 7
    s_add_u32 s24, s34, s35            ; head
    s_lshr_b32 s34, s32, 2
    s_lshl_b32 s34, s34, 2
    s_lshr_b32 s35, s33, 3
    s_add_u32 s25, s34, s35
    v_lshrrev_b32 v3, 6, v0
    v_and_b32 v1, 63, v0
    v_readfirstlane_b32 s26, v3
    v_lshlrev_b32 v2, 4, v1
    s_lshl_b32 s27, s25, 2
    s_add_u32 s27, s27, s26
    s_lshl_b32 s27, s27, 1
    s_lshl_b32 s28, s24, 18
    s_lshl_b32 s29, s26, 12            ; wave * 4096
    s_lshl_b32 s32, s24, 6
    s_add_u32 s32, s32, s27
    s_lshl_b32 s32, s32, 11            ; Q offset
    s_waitcnt lgkmcnt(0)""")
    srd(a, 4, 44, WS_Q, 4 << 20)
    a(f"s_add_u32 s8, s44, s28\ns_addc_u32 s9, s45, 0\ns_add_u32 s8, s8, {WS_KV}\ns_addc_u32 s9, s9, 0\ns_mov_b32 s10, 0x40000\ns_mov_b32 s11, 0x20000")
    a("s_mov_b32 s30, s29")
    def dma(slot):
        return [f"s_add_u32 m0, s29, {slot*ST}"] + [f"buffer_load_dwordx4 v2, s[8:11], s30 offen offset:{1024*i} lds" for i in range(4)] + [f"s_add_u32 s30, s30, {ST}"]
    a(f"buffer_load_dwordx4 {v(K0,4)}, v2, s[8:11], 0 offen\nbuffer_load_dwordx4 {v(K1,4)}, v2, s[8:11], 0 offen offset:1024")
    for i in range(4): a(f"buffer_load_dwordx4 {v(Q+4*i,4)}, v2, s[4:7], s32 offen offset:{1024*i}")
    for x in dma(0): a(x)
    srd(a, 12, 44, WS_O, 64 * SLAB)
    frag_off(a, 3, 27, 1, T)
    a("s_add_u32 s33, s27, 1")
    frag_off(a, 4, 33, 1, T)
    code_srd(k, 92, "attn_epi")
    a(f"v_lshlrev_b32 v{T+4}, 7, v0")
    srd(a, 16, 46, 0, 1024 * 2048); srd(a, 20, 48, 0, 3584 * 2048); srd(a, 56, 52, 0, 2048 * 2048)
    a(f"""
    s_lshl_b32 s32, s2, 2
    s_add_u32 s32, s32, s26
    s_mul_i32 s50, s32, {14*128}
    s_lshl_b32 s51, s32, 9
    s_lshl_b32 s54, s32, 10
    v_lshlrev_b32 v{T+6}, 7, v1
    v_mov_b32 v{T+8}, 0x80000000
    v_cmp_gt_u32 vcc, 4, v1
    v_cndmask_b32 v{T+7}, v{T+8}, v{T+6}, vcc
    v_cmp_gt_u32 vcc, 8, v1
    v_cndmask_b32 v{T+9}, v{T+8}, v{T+6}, vcc
    v_cmp_gt_u32 vcc, 14, v1
    v_cndmask_b32 v{T+6}, v{T+8}, v{T+6}, vcc""")
    if SM:
        a(f"""
        v_bfe_u32 v{T}, v1, 2, 1
        v_cmp_eq_u32 vcc, 0, v{T}
        v_mov_b32 v{T+1}, 0x3f803f80
        v_cndmask_b32 v{ONES}, 0, v{T+1}, vcc
        v_mov_b32 v{ONES+1}, v{ONES}
        v_xor_b32 v{ONES+2}, v{T+1}, v{ONES}
        v_mov_b32 v{ONES+3}, v{ONES+2}
        v_and_b32 v{T}, 1, v1
        v_mul_u32_u24 v{T}, 0xaaaa, v{T}
        v_add_u32 v{IDX}, 0x4444, v{T}""")
    else:
        a(f"""
        v_lshrrev_b32 v{T}, 4, v1
        v_lshrrev_b32 v{T+1}, 2, v1
        v_xor_b32 v{T}, v{T}, v{T+1}
        v_and_b32 v{T}, 1, v{T}
        v_cmp_eq_u32 vcc, 0, v{T}
        v_mov_b32 v{T+1}, 0x3f803f80
        v_cndmask_b32 v{ONES}, 0, v{T+1}, vcc""")
        for i in range(1, 4): a(f"v_mov_b32 v{ONES+i}, v{ONES}")
    for i in range(32): a(f"v_mov_b32 v{O+i}, 0")
    for i in range(8): a(f"v_mov_b32 v{L+i}, 0\nv_mov_b32 v{P+8+i}, 0\nv_mov_b32 v{V0+8+i}, 0")
    def lsum(w, p):
        if SM: return [f"v_smfmac_f32_16x16x64_bf16 {v(L+4*w,4)}, {v(ONES,4)}, {v(p,8)}, v{IDX}"]
        return [f"v_mfma_f32_16x16x32_bf16 {v(L+4*w,4)}, {v(ONES,4)}, {v(p+4*g,4)}, {v(L+4*w,4)}" for g in range(2)]
    a("s_waitcnt vmcnt(4)")
    for w in range(2):
        a(f"v_mfma_f32_32x32x16_bf16 {v(S+16*w,16)}, {v(K0,4)}, {v(Q+8*w,4)}, 0")
        a(f"v_mfma_f32_32x32x16_bf16 {v(S+16*w,16)}, {v(K1,4)}, {v(Q+8*w+4,4)}, {v(S+16*w,16)}")
    for st in range(1, R - 1):
        for x in dma(st): a(x)
    def rowmax(Sx, m):
        for i in range(0, 16, 2): a(f"v_max3_f32 v{m}, v{Sx+i}, v{Sx+i+1}, v{m}")
    def negbcast(m, w):
        a(f"v_mov_b32 v{m+1}, v{m}\nv_permlane32_swap_b32 v{m}, v{m+1}\nv_max_f32 v{m}, v{m}, v{m+1}")
        for i in range(16): a(f"v_sub_f32 v{NEG+16*w+i}, 0, v{m}")
    for w in range(2):
        a(f"v_mov_b32 v{T}, v{S+16*w}")
        rowmax(S + 16 * w, T); negbcast(T, w)
        if w == 0:
            for i in range(16): a(f"v_sub_f32 v{S+i}, v{S+i}, v{T}")
    a(f"""
    s_sub_u32 s30, s30, {ST}
    s_waitcnt vmcnt({4*(R-2)})
    s_barrier
    ds_read_b128 {v(V0,4)}, v2 offset:2048
    ds_read_b128 {v(V1,4)}, v2 offset:3072""")
    cnt = Cnt()
    def ph(n, E, site):
        def W(c, nm, tags):
            cnt.wait(c, (site, nm), tags)
            if E: E(cnt.text(c, (site, nm)))
        def X(x):
            if E: E(x)
        def RD(reg, blk, piece):
            X(f"ds_read_b128 {v(reg,4)}, v2 offset:{(blk % (4*R))*4096 + piece*1024}")
            cnt.issue("lg", (piece, blk))
        def VM(x, tag):
            X(x); cnt.issue("vm", tag)
        j = n >> 1; w = n & 1; o = 1 - w
        Sc, Sn, Pc, Pp = S + 16 * w, S + 16 * o, P + 8 * w, P + 8 * o
        vb = (n - 1) >> 1
        Vr = V0 + 8 * (vb % 2); Vw = V0 + 8 * ((j + 1) % 2)
        e = lambda *l: [X(f"v_exp_f32 v{Sc+i}, v{Sc+i}") for i in l]
        c = lambda *l: [X(f"v_cvt_pk_bf16_f32 v{Pc+i}, v{Sc+2*i}, v{Sc+2*i+1}") for i in l]
        d = dma((n // 8 - 1) % R) if n % 8 in (5, 6, 7) else None
        dd = n % 8 == 7
        tg = ("B", n // 8 - 1 + R)
        X(f"v_mfma_f32_32x32x16_bf16 {v(Sn,16)}, {v(K0,4)}, {v(Q+8*o,4)}, {v(NEG+16*o,16)}")
        if w == 0: RD(K0, j + 1, 0)
        else: W("lg", "k1", {(1, j + 1)})
        e(0, 1, 2, 3); c(0)
        X(f"v_mfma_f32_32x32x16_bf16 {v(Sn,16)}, {v(K1,4)}, {v(Q+8*o+4,4)}, {v(Sn,16)}")
        if w == 0: RD(K1, j + 1, 1)
        if dd: VM(d[1], tg); VM(d[2], tg)
        if n % 8 == 1: X(f"s_add_u32 s30, s30, {ST}")
        e(4, 5, 6); c(1, 2)
        X(f"v_mfma_f32_32x32x16_bf16 {v(O+16*o,16)}, {v(Vr,4)}, {v(Pp,4)}, {v(O+16*o,16)}")
        if n % 8 == 5: W("vm", "bar", {("B", n // 8 + 1)})
        if n % 8 == 6: X(d[0])
        if dd: VM(d[3], tg); VM(d[4], tg)
        e(7, 8, 9); c(3, 4)
        X(f"v_mfma_f32_32x32x16_bf16 {v(O+16*o,16)}, {v(Vr+4,4)}, {v(Pp+4,4)}, {v(O+16*o,16)}")
        if w == 0: W("lg", "k0", {(0, j + 1), (2, j), (3, j)})
        if n % 8 == 5: X("s_barrier")
        if n % 32 == 23: VM(f"buffer_load_dword v{T+5}, v{T+4}, s[92:95], 0 offen", ("C",))
        if n % 32 == 7: VM(f"buffer_load_dword v{T+5}, v{T+6}, s[20:23], s50 offen", ("C",))
        if n % 32 == 15:
            VM(f"buffer_load_dword v{T+5}, v{T+7}, s[16:19], s51 offen", ("C",))
            VM(f"buffer_load_dword v{T+5}, v{T+9}, s[56:59], s54 offen", ("C",))
        if n % 32 == 17: X(f"s_add_u32 s50, s50, {1024*14*128}")
        if n % 32 == 25: X(f"s_add_u32 s51, s51, {1024*512}")
        if n % 32 == 27: X(f"s_add_u32 s54, s54, {1024*1024}")
        e(10, 11, 12); c(5)
        ls = lsum(o, Pp)
        X(ls[0])
        RD(Vw + 4 * w, j + 1, 2 + w)
        e(13)
        if len(ls) > 1: X(ls[1])
        e(14, 15); c(6, 7)
    def preload():
        cnt.reset()
        for st in range(R - 1):
            for i in range(4): cnt.issue("vm", ("B", st))
        cnt.issue("lg", (2, 0)); cnt.issue("lg", (3, 0))
    preload()
    for n in range(128): ph(n, None, n % 32)
    preload()
    stamp(k, 1)
    a("s_mov_b32 s31, 4\n.p2align 6\nattn_loop:")
    for n in range(32): ph(n, a, n)
    a("s_sub_u32 s31, s31, 1\ns_cmp_lg_u32 s31, 0\ns_cbranch_scc1 attn_loop\nattn_epi:")
    stamp(k, 2)
    a(f"""
    v_mfma_f32_32x32x16_bf16 {v(O+16,16)}, {v(V0+8,4)}, {v(P+8,4)}, {v(O+16,16)}
    v_mfma_f32_32x32x16_bf16 {v(O+16,16)}, {v(V1+8,4)}, {v(P+12,4)}, {v(O+16,16)}""")
    for x in lsum(1, P + 8): a(x)
    a(f"v_mov_b32 v{T}, 0\nv_mov_b32 v{T+1}, 0")
    for i in range(32): a(f"v_fmac_f32 v{T+i%2}, 0, v{O+i}")
    def ltot():
        if SM: a(f"v_add_f32 v{L}, v{L}, v{L+1}\nv_add_f32 v{L+4}, v{L+4}, v{L+5}")
    ltot()
    a(f"""
    v_add_f32 v{T}, v{T}, v{T+1}
    v_add_f32 v{T}, v{T}, v{L}
    v_add_f32 v{T}, v{T}, v{L+4}
    v_cmp_ngt_f32 vcc, {fx(2.0**40)}, v{T}
    s_cbranch_vccnz attn_slow
attn_fin:
    v_rcp_f32 v{T}, v{L}
    v_rcp_f32 v{T+1}, v{L+4}
    s_mul_i32 s32, s24, {2*SLAB}
    s_add_u32 s33, s32, {SLAB}""")
    for w in range(2):
        Ow = O + 16 * w
        for i in range(16): a(f"v_mul_f32 v{Ow+i}, v{Ow+i}, v{T+w}")
        for i in range(8): a(f"v_cvt_pk_bf16_f32 v{Ow+i}, v{Ow+2*i}, v{Ow+2*i+1}")
        a(f"buffer_store_dwordx4 {v(Ow,4)}, v{3+w}, s[12:15], s32 offen sc1\nbuffer_store_dwordx4 {v(Ow+4,4)}, v{3+w}, s[12:15], s33 offen sc1")
    stamp(k, 3)
    prof_out(k, 4, 4, 26)
    a("s_endpgm")
    a(f"""
attn_slow:
    v_mov_b32 v{T}, 0xff800000
    v_mov_b32 v{T+2}, 0xff800000
    s_mov_b32 s30, 0
    s_waitcnt lgkmcnt(0)
attn_slow1:
    buffer_load_dwordx4 {v(K0,4)}, v2, s[8:11], s30 offen
    buffer_load_dwordx4 {v(K1,4)}, v2, s[8:11], s30 offen offset:1024
    s_waitcnt vmcnt(0)""")
    for w in range(2):
        a(f"v_mfma_f32_32x32x16_bf16 {v(S+16*w,16)}, {v(K0,4)}, {v(Q+8*w,4)}, 0")
        a(f"v_mfma_f32_32x32x16_bf16 {v(S+16*w,16)}, {v(K1,4)}, {v(Q+8*w+4,4)}, {v(S+16*w,16)}")
    for w in range(2): rowmax(S + 16 * w, T + 2 * w)
    a("s_add_u32 s30, s30, 4096\ns_cmp_lt_u32 s30, 0x40000\ns_cbranch_scc1 attn_slow1")
    for w in range(2): negbcast(T + 2 * w, w)
    for i in range(32): a(f"v_mov_b32 v{O+i}, 0")
    for i in range(8): a(f"v_mov_b32 v{L+i}, 0")
    a(f"""
    s_mov_b32 s30, 0
attn_slow2:
    buffer_load_dwordx4 {v(K0,4)}, v2, s[8:11], s30 offen
    buffer_load_dwordx4 {v(K1,4)}, v2, s[8:11], s30 offen offset:1024
    buffer_load_dwordx4 {v(V0,4)}, v2, s[8:11], s30 offen offset:2048
    buffer_load_dwordx4 {v(V1,4)}, v2, s[8:11], s30 offen offset:3072
    s_waitcnt vmcnt(0)""")
    for w in range(2):
        a(f"v_mfma_f32_32x32x16_bf16 {v(S+16*w,16)}, {v(K0,4)}, {v(Q+8*w,4)}, {v(NEG+16*w,16)}")
        a(f"v_mfma_f32_32x32x16_bf16 {v(S+16*w,16)}, {v(K1,4)}, {v(Q+8*w+4,4)}, {v(S+16*w,16)}")
    for i in range(32): a(f"v_exp_f32 v{S+i}, v{S+i}")
    for i in range(16): a(f"v_cvt_pk_bf16_f32 v{P+i}, v{S+2*i}, v{S+2*i+1}")
    for w in range(2):
        a(f"v_mfma_f32_32x32x16_bf16 {v(O+16*w,16)}, {v(V0,4)}, {v(P+8*w,4)}, {v(O+16*w,16)}")
        a(f"v_mfma_f32_32x32x16_bf16 {v(O+16*w,16)}, {v(V1,4)}, {v(P+8*w+4,4)}, {v(O+16*w,16)}")
        for x in lsum(w, P + 8 * w): a(x)
    a("s_add_u32 s30, s30, 4096\ns_cmp_lt_u32 s30, 0x40000\ns_cbranch_scc1 attn_slow2")
    ltot()
    a("s_branch attn_fin")
    attn_side(k, 4)
    finish(k)
    return k

def build(kernels, path, verbose=False):
    hdr = open("adaLN_cond__mha_block__geglu_ffn__prompt.s.ref").read().split("; Override launch")[0]
    out = hdr
    for k in kernels:
        out += f"; @launch kernel={k.name} grid=({k.grid},1,1) block=({k.block},1,1) lds={k.lds}\n"
    out += '.amdgcn_target "amdgcn-amd-amdhsa--gfx950"\n'
    for k in kernels:
        rep = []
        out += k.text(rep)
        if verbose:
            print(k.name, "vgpr", k.nv, "agpr", k.na, "lds", k.lds, "nops inserted:", len(rep))
            for r in rep:
                if "m0" not in r[1]: print("   ", r)
    out += '.section .rodata,"a"\n'
    for k in kernels: out += k.desc()
    open(path, "w").write(out)

CHECK = {"x2": "frag", "h2": False, "h1": False, "slab": SLAB}
def all_kernels():
    global QPRE
    QPRE = EXP.get("qpre", 1024)
    if EXP.get("fuse1", 1):
        ORDER[:] = ["pre_kernel", "qkv_kernel", "attn_kernel", "out_kernel", "gu_kernel", "down_kernel"]
        return [k_pre(), k_qkv(), k_attn4() if EXP.get('a4', 1) else k_attn(), k_out(), k_gu(), k_down()]
    ORDER[:] = ["pre_kernel", "ln1_kernel", "qkv_kernel", "attn_kernel", "out_kernel", "gu_kernel", "down_kernel"]
    return [k_pre(), k_ln("ln1_kernel", P_X, WS_H1, 0, 1), k_qkv(), k_attn(), k_out(), k_gu(), k_down()]

if __name__ == "__main__":
    vb = False
    for x in sys.argv[2:]:
        if x == "prof": PROF = True
        elif x == "verbose": vb = True
        else:
            kk, _, vv = x.partition("="); EXP[kk] = int(vv) if vv else 1
    build(all_kernels(), sys.argv[1] if len(sys.argv) > 1 else "adaLN_cond__mha_block__geglu_ffn__prompt.s", verbose=vb)
```

```python
import sys, math, struct
from asmlib import *

SLAB = 75776
WS_MODP = 0
WS_UV = 64 << 10
WS_STAT = 256 << 10
WS_WQ3 = 1 << 20
WS_WO3 = 5 << 19
WS_WD3 = 3 << 20
WS_H1 = 5 << 20
WS_Q = 10 << 20
WS_KV = 14 << 20
WS_O = 22 << 20
WS_X2 = 27 << 20
WS_Y2 = 32 << 20
WS_ACT = 37 << 20
WS_PROF = 56 << 20
KS = 2
P_X, P_WQKV, P_WO, P_BX, P_WG, P_WU, P_WD, P_C, P_WMOD, P_OUT, P_DBG, P_WS = [8 * i for i in range(12)]
LOG2E = 1.4426950408889634
PROF = False
EXP = {}
KID = {"qkv_kernel": 0, "out_kernel": 1, "gu_kernel": 2, "down_kernel": 3, "attn_kernel": 4}
def f2u(x): return struct.unpack("<I", struct.pack("<f", x))[0]
def fx(x): return hex(f2u(x))

class Kernel:
    def __init__(self, name, grid, block, lds, nv, na=0):
        self.name, self.grid, self.block, self.lds, self.nv, self.na = name, grid, block, lds, nv, na
        self.a = Asm()
    def text(self, report=None):
        body = fix_hazards(merge_waits(self.a.l), report)
        return (f".text\n.globl {self.name}\n.p2align 8\n.type {self.name},@function\n{self.name}:\n" + "\n".join(body) + "\n")
    def desc(self):
        acc = (self.nv + 3) // 4 * 4
        nfv = acc + self.na if self.na else self.nv
        return f""".p2align 6
.amdhsa_kernel {self.name}
  .amdhsa_next_free_vgpr {nfv}
  .amdhsa_next_free_sgpr 102
  .amdhsa_accum_offset {acc}
  .amdhsa_group_segment_fixed_size 0
  .amdhsa_kernarg_size 96
  .amdhsa_user_sgpr_count 2
  .amdhsa_user_sgpr_kernarg_segment_ptr 1
  .amdhsa_system_sgpr_workgroup_id_x 1
  .amdhsa_float_denorm_mode_32 3
  .amdhsa_float_denorm_mode_16_64 3
.end_amdhsa_kernel
"""

def stamp(k, i):
    if PROF: k.a(f"s_memtime {s(64+2*i,2)}\ns_memrealtime {s(74+2*i,2)}\ns_waitcnt lgkmcnt(0)")
def prof_out(k, n, kid, wave_s):
    if not PROF: return
    a = k.a
    a(f"s_waitcnt vmcnt(0)\ns_memtime {s(64+2*n,2)}\ns_memrealtime {s(74+2*n,2)}\ns_load_dwordx2 s[84:85], s[0:1], {P_WS}\ns_waitcnt lgkmcnt(0)")
    a(f"s_add_u32 s84, s84, {WS_PROF + kid*(1<<18)}\ns_addc_u32 s85, s85, 0\ns_mov_b32 s86, {1<<18}\ns_mov_b32 s87, 0x20000")
    a(f"s_lshl_b32 s88, s2, 3\ns_add_u32 s88, s88, s{wave_s}\ns_lshl_b32 s88, s88, 6\nv_mov_b32 v1, 0")
    for i in range(10):
        a(f"v_mov_b32 v0, s{64+2*i}\nbuffer_store_dword v0, v1, s[84:87], s88 offen offset:{4*i}")
def load_ptrs(a, pairs):
    for sreg, off in pairs: a(f"s_load_dwordx2 {s(sreg,2)}, s[0:1], {off}")
def srd(a, d, p, off, size):
    if off: a(f"s_add_u32 s{d}, s{p}, {off}\ns_addc_u32 s{d+1}, s{p+1}, 0")
    else: a(f"s_mov_b32 s{d}, s{p}\ns_mov_b32 s{d+1}, s{p+1}")
    a(f"s_mov_b32 s{d+2}, {size}\ns_mov_b32 s{d+3}, 0x20000")
def guard(k): k.a(f"s_cmp_ge_u32 s2, {k.grid}\ns_cbranch_scc1 {k.name}_end")
def finish(k): k.a(f"{k.name}_end:\ns_endpgm")
def unpack(a, dst, src, n):
    for i in range(n):
        a(f"v_lshlrev_b32 v{dst+2*i}, 16, v{src+i}\nv_and_b32 v{dst+2*i+1}, 0xffff0000, v{src+i}")
def rbf(a, x):
    a(f"v_cvt_pk_bf16_f32 v{x}, v{x}, v{x}\nv_and_b32 v{x}, 0xffff0000, v{x}")
def phys_line(a, dst, i, t):
    a(f"""
    v_mul_u32_u24 v{t}, 9363, v{i}
    v_lshrrev_b32 v{t}, 16, v{t}
    v_add_u32 v{dst}, v{i}, v{t}
    v_mul_u32_u24 v{t}, 7, v{t}
    v_sub_u32 v{t}, v{i}, v{t}
    v_add_u32 v{t}, 5, v{t}
    v_lshrrev_b32 v{t}, 3, v{t}
    v_add_lshl_u32 v{dst}, v{dst}, v{t}, 7""")
def frag_off(a, dst, srb, lane, t):
    a(f"v_lshrrev_b32 v{t}, 3, v{lane}\nv_lshl_add_u32 v{t}, s{srb}, 3, v{t}")
    phys_line(a, dst, t, t + 1)
    a(f"v_and_b32 v{t}, 7, v{lane}\nv_lshl_add_u32 v{dst}, v{t}, 4, v{dst}")
def tr_lane(a, T, lane, korder, colperm):
    a(f"""
    v_lshrrev_b32 v{T}, 5, v{lane}
    v_bfe_u32 v{T+1}, v{lane}, 4, 1
    v_bfe_u32 v{T+2}, v{lane}, 2, 2
    v_and_b32 v{T+3}, 3, v{lane}""")
    if colperm:
        a(f"v_lshrrev_b32 v{T+4}, 1, v{T+3}\nv_and_b32 v{T+3}, 1, v{T+3}\nv_lshl_add_u32 v{T+3}, v{T+3}, 1, v{T+4}")
    a(f"v_lshl_add_u32 v{T+4}, v{T}, {2 if korder=='split' else 3}, v{T+2}")
def panel_rd(a, T, e, o):
    a(f"""
    v_lshlrev_b32 v{T+4}, 7, v{T+4}
    v_lshl_add_u32 v{T+4}, v{T+1}, 5, v{T+4}
    v_lshl_add_u32 v{T+4}, v{T+3}, 3, v{T+4}
    v_lshrrev_b32 v{T+5}, 1, v{T+2}
    v_lshlrev_b32 v{T+5}, 6, v{T+5}
    v_add_u32 v{e}, v{T+4}, v{T+5}
    v_sub_u32 v{o}, v{T+4}, v{T+5}
    v_add_u32 v{o}, 64, v{o}""")
def panel_src(a, T, lane):
    a(f"""
    v_lshrrev_b32 v{T}, 3, v{lane}
    v_and_b32 v{T+1}, 7, v{lane}
    v_bfe_u32 v{T+2}, v{lane}, 4, 1
    v_lshlrev_b32 v{T+2}, 2, v{T+2}
    v_xor_b32 v{T+1}, v{T+1}, v{T+2}""")

SK_LDS = 65536 + 2048
def skinny(k, tag, mode, nt, pace=0, flag=False, nw=8, mid=None):
    a = k.a; NV = 1 if mode == "silu" else 2
    NC = 8 // nw; lg = (NC - 1).bit_length() if NC > 1 else 0
    VX = 100
    a(f"""
    s_lshl_b32 s55, s26, {6+lg}
    s_add_u32 s56, s52, s55""")
    if mode == "silu":
        a("v_add_lshl_u32 v4, v1, s56, 1")
        for c in range(NC): a(f"buffer_load_ushort v{VX+4*c}, v4, s[12:15], 0 offen offset:{128*c}")
    else:
        a("v_add_lshl_u32 v4, v1, s56, 2")
        for i, (p, idx) in enumerate([(0, 4), (1, 4), (0, 3), (1, 3)]):
            a(f"s_mov_b32 s57, {p*6144*4 + idx*4096}")
            for c in range(NC): a(f"buffer_load_dword v{VX+4*c+i}, v4, s[12:15], s57 offen offset:{256*c}")
    panel_src(a, 5, 1)
    a(f"""
    v_add_u32 v5, s55, v5
    v_mul_lo_u32 v5, v5, s51
    v_lshl_add_u32 v5, v6, 4, v5
    s_lshl_b32 s57, s26, {13+lg}
    s_lshl_b32 s59, s51, 3""")
    def dmas():
        for g in range(8 * NC):
            a(f"s_add_u32 m0, s57, {1024*g}\ns_nop 0\nbuffer_load_dwordx4 v5, s[8:11], s50 offen{nt} lds\ns_add_u32 s50, s50, s59")
            if pace and g < 8 * NC - 1: a(f"s_waitcnt vmcnt({pace-1})")
    if not mid: dmas()
    tr_lane(a, 12, 1, "contig", False)
    panel_rd(a, 12, 18, 19)
    a(f"""
    v_add_u32 v18, s57, v18
    v_add_u32 v19, s57, v19
    s_lshl_b32 s58, s26, {8+lg}
    s_add_u32 s58, s58, 0x10000
    v_lshl_add_u32 v6, v1, 1, s58
    v_and_b32 v7, 31, v1
    v_lshrrev_b32 v12, 5, v1
    v_lshlrev_b32 v12, 4, v12
    v_lshl_add_u32 v12, v7, 7, v12
    v_add_u32 v12, s58, v12
    s_waitcnt vmcnt({0 if mid else 8*NC})""")
    for c in range(NC):
        x = VX + 4 * c
        if mode == "silu":
            a(f"""
            v_lshlrev_b32 v{x}, 16, v{x}
            v_mul_f32 v{x+1}, {fx(-LOG2E)}, v{x}
            v_exp_f32 v{x+1}, v{x+1}
            v_add_f32 v{x+1}, 1.0, v{x+1}
            v_rcp_f32 v{x+1}, v{x+1}
            v_mul_f32 v{x}, v{x}, v{x+1}
            v_cvt_pk_bf16_f32 v{x}, v{x}, v{x}
            ds_write_b16 v6, v{x} offset:{256*c}""")
        else:
            a(f"v_add_f32 v{x}, v{x}, v{x+1}\nv_add_f32 v{x+2}, v{x+2}, v{x+3}")
            rbf(a, x)
            a(f"v_add_f32 v{x}, 1.0, v{x}\nv_cvt_pk_bf16_f32 v{x}, v{x}, v{x}\nv_cvt_pk_bf16_f32 v{x+2}, v{x+2}, v{x+2}")
            a(f"ds_write_b16 v6, v{x} offset:{256*c}\nds_write_b16 v6, v{x+2} offset:{256*c+128}")
    for i in range(16): a(f"v_mov_b32 v{20+i}, 0")
    if mid:
        dmas(); mid()
    a(f"v_cmp_gt_u32 vcc, {NV}, v7\ns_waitcnt vmcnt(0) lgkmcnt(0)")
    for c in range(NC):
        a("s_and_saveexec_b64 s[60:61], vcc")
        for sub in range(4): a(f"ds_read_b128 {v(20+4*sub,4)}, v12 offset:{32*sub+256*c}")
        a("s_mov_b64 exec, s[60:61]")
        for sub in range(4):
            for j in range(2):
                for r_ in range(2):
                    a(f"ds_read_b64_tr_b16 {v(36+8*sub+4*j+2*r_,2)}, v{18+j} offset:{128*(16*sub+4*r_)+8192*c}")
        for sub in range(4):
            a(f"s_waitcnt lgkmcnt({12-4*sub})")
            for j in range(2):
                d = v(68 + 16 * j, 16)
                a(f"v_mfma_f32_32x32x16_bf16 {d}, {v(20+4*sub,4)}, {v(36+8*sub+4*j,4)}, {d if (sub or c) else 0}")
    a(f"""
    v_lshl_add_u32 v6, v1, 2, s57
    v_cmp_gt_u32 vcc, 32, v1
    s_and_saveexec_b64 s[60:61], vcc""")
    for j in range(2):
        for q in range(NV): a(f"ds_write_b32 v6, v{68+16*j+q} offset:{256*q+128*j}")
    a(f"""
    s_mov_b64 exec, s[60:61]
    s_waitcnt lgkmcnt(0)
    s_barrier
    s_cmp_ge_u32 s26, {NV}
    s_cbranch_scc1 {k.name}_end
    s_lshl_b32 s57, s26, 8
    v_lshl_add_u32 v6, v1, 2, s57""")
    for w in range(nw): a(f"ds_read_b32 v{8+w}, v6 offset:{8192*NC*w}")
    a(f"s_mul_i32 s57, s26, s54\ns_add_u32 s53, s53, s57\nv_lshlrev_b32 v6, 2, v1\ns_waitcnt lgkmcnt(0)")
    for w in (4, 2, 1):
        if w < nw:
            for i in range(w): a(f"v_add_f32 v{8+i}, v{8+i}, v{8+w+i}")
    if not flag:
        a("buffer_store_dword v8, v6, s[16:19], s53 offen\ns_endpgm")
        return
    a("""
    buffer_store_dword v8, v6, s[16:19], s53 offen sc1
    s_lshl_b32 s57, s2, 2
    v_mov_b32 v9, 1
    v_mov_b32 v6, s57
    s_mov_b64 exec, 1
    s_waitcnt vmcnt(0)
    buffer_store_dword v9, v6, s[20:23], 0 offen sc1
    s_endpgm""")

def prefetch(a, gid, ps, nbytes, start, vt, srd_s=20):
    srd(a, srd_s, ps, 0, nbytes)
    a(f"""
    v_subrev_u32 v{vt}, {start}, v{gid}
    v_cmp_gt_u32 vcc, {nbytes//128}, v{vt}
    v_lshlrev_b32 v{vt}, 7, v{vt}
    v_mov_b32 v{vt+1}, 0x80000000
    v_cndmask_b32 v{vt}, v{vt+1}, v{vt}, vcc
    buffer_load_dword v{vt+1}, v{vt}, {s(srd_s,4)}, 0 offen""")

def strip_copy_issue(a, gid, ps, K, ldb, npan, start, vt, srd_s=20):
    srd(a, srd_s, ps, 0, K * ldb)
    n = 2 * npan
    a(f"""
    v_subrev_u32 v{vt}, {start}, v{gid}
    v_cmp_gt_u32 vcc, {K*n*8}, v{vt}
    v_and_b32 v{vt+1}, 7, v{vt}
    v_lshrrev_b32 v{vt}, 3, v{vt}""")
    if npan == 1:
        a(f"v_lshrrev_b32 v{vt+2}, 1, v{vt}\nv_and_b32 v{vt+3}, 1, v{vt}\nv_lshlrev_b32 v{vt+3}, 10, v{vt+3}")
    else:
        a(f"""
        v_mul_u32_u24 v{vt+2}, 10923, v{vt}
        v_lshrrev_b32 v{vt+2}, 16, v{vt+2}
        v_mul_u32_u24 v{vt+3}, 6, v{vt+2}
        v_sub_u32 v{vt+3}, v{vt}, v{vt+3}
        v_lshlrev_b32 v{vt+4}, 11, v{vt+3}
        v_add_u32 v{vt+3}, 5, v{vt+3}
        v_lshrrev_b32 v{vt+3}, 3, v{vt+3}
        v_mul_u32_u24 v{vt+3}, {6144-1024}, v{vt+3}
        v_sub_u32 v{vt+3}, v{vt+4}, v{vt+3}""")
    a(f"""
    v_mul_u32_u24 v{vt+2}, {ldb}, v{vt+2}
    v_add3_u32 v{vt+2}, v{vt+2}, v{vt+3}, 0
    v_lshl_add_u32 v{vt+2}, v{vt+1}, 4, v{vt+2}
    v_add_u32 v{vt+2}, 384, v{vt+2}
    v_mov_b32 v{vt+3}, 0x80000000
    v_cndmask_b32 v{vt+2}, v{vt+3}, v{vt+2}, vcc
    v_lshlrev_b32 v{vt}, 8, v{vt}
    v_lshl_add_u32 v{vt}, v{vt+1}, 4, v{vt}
    v_cndmask_b32 v{vt}, v{vt+3}, v{vt}, vcc
    buffer_load_dwordx4 {v(vt+4,4)}, v{vt+2}, {s(srd_s,4)}, 0 offen""")
def strip_copy_store(a, ws_s, off, size, vt, srd_s=20):
    srd(a, srd_s, ws_s, off, size)
    a(f"buffer_store_dwordx4 {v(vt+4,4)}, v{vt}, {s(srd_s,4)}, 0 offen sc1")

ORDER = []
def code_srd(k, d, start, upto=None, nwg=8):
    if EXP.get("nocpf"): nwg = 0
    i = ORDER.index(k.name)
    end = upto or (ORDER[min(i + 1, len(ORDER) - 1)] + "_end")
    k.npc = getattr(k, "npc", 0) + 1
    lab = f"{k.name}_pc{k.npc}"
    k.a(f"""
    s_getpc_b64 {s(d,2)}
{lab}:
    s_add_u32 s{d}, s{d}, {start}-{lab}
    s_addc_u32 s{d+1}, s{d+1}, 0
    s_mov_b32 s{d+2}, {end}-{start}+4
    s_cmp_lt_u32 s2, {nwg}
    s_cselect_b32 s{d+2}, s{d+2}, 0
    s_mov_b32 s{d+3}, 0x20000""")
def wave_lane(a):
    a("v_lshrrev_b32 v2, 6, v0\nv_and_b32 v1, 63, v0\nv_readfirstlane_b32 s26, v2")

def red32(a, x, t):
    for m in ("quad_perm:[1,0,3,2]", "quad_perm:[2,3,0,1]", "row_half_mirror", "row_mirror"):
        a(f"v_add_f32_dpp v{x}, v{x}, v{x} {m} row_mask:0xf bank_mask:0xf")
    a(f"v_mov_b32 v{t}, v{x}\nv_permlane16_swap_b32 v{x}, v{t}\nv_add_f32 v{x}, v{x}, v{t}")

QPRE = 256
def k_pre():
    GP = EXP.get("gpre", 0)
    k = Kernel("pre_kernel", 320 if GP else 256, 512, SK_LDS, 112); a = k.a
    guard(k)
    code_srd(k, 88, "pre_kernel_top", ORDER[-1] + "_end")
    a("v_lshlrev_b32 v108, 7, v0\nbuffer_load_dword v109, v108, s[88:91], 0 offen\npre_kernel_top:")
    load_ptrs(a, [(40, P_C), (42, P_WMOD), (44, P_WS), (46, P_WQKV), (48, P_X), (62, P_DBG)])
    wave_lane(a)
    a(f"""
    s_sub_u32 s27, s2, 128
    s_cmp_lt_u32 s27, 128
    s_cbranch_scc1 pre_side
    s_and_b32 s32, s2, 1
    s_lshr_b32 s33, s2, 1
    s_cmp_ge_u32 s33, 32
    s_cselect_b32 s34, 16, 0
    s_add_u32 s33, s33, s34
    s_cmp_ge_u32 s33, 160
    s_mov_b32 s34, 112
    s_cselect_b32 s34, 80, s34
    s_cmp_ge_u32 s33, 144
    s_cselect_b32 s34, s34, 0
    s_sub_u32 s33, s33, s34
    s_lshl_b32 s52, s32, 9
    s_mov_b32 s51, 12288
    s_mul_i32 s50, s52, s51
    s_lshl_b32 s34, s33, 7
    s_add_u32 s50, s50, s34
    s_mul_i32 s53, s32, {6144*4}
    s_lshl_b32 s34, s33, 8
    s_add_u32 s53, s53, s34
    s_mov_b32 s54, 0
    s_waitcnt lgkmcnt(0)""")
    srd(a, 8, 42, 0, 1024 * 12288); srd(a, 12, 40, 0, 2048); srd(a, 16, 44, WS_MODP, KS * 6144 * 4)
    F2 = EXP.get("fuse1", 1) == 2
    if F2: srd(a, 20, 62, 0, 256)
    skinny(k, "m", "silu", " nt" if EXP.get("mnt", 1) else "", flag=F2)
    a("""
pre_side:
    s_lshl_b32 s32, s27, 9
    v_add_u32 v3, s32, v0""")
    if not EXP.get("fuse1", 1):
        a("s_waitcnt lgkmcnt(0)")
        strip_copy_issue(a, 3, 46, 1024, 6144, 3, 0, 8)
        prefetch(a, 3, 46, 1024 * 6144, 65536 - 49152, 20)
        prefetch(a, 3, 48, 2048 * 2048, 0, 24)
        a("s_waitcnt vmcnt(2)")
        strip_copy_store(a, 44, WS_WQ3, 1024 * 1536, 8)
        finish(k)
        return k
    a(f"""
    v_lshrrev_b32 v1, 5, v0
    v_and_b32 v2, 31, v0               ; chunk
    s_lshl_b32 s24, s27, 4
    v_add_u32 v4, s24, v1
    v_lshlrev_b32 v4, 11, v4
    v_lshl_add_u32 v4, v2, 4, v4
    s_waitcnt lgkmcnt(0)""")
    srd(a, 4, 48, 0, 2048 * 2048); srd(a, 12, 44, WS_H1, 64 * SLAB)
    for i in range(4): a(f"buffer_load_dwordx4 {v(8+4*i,4)}, v4, s[4:7], 0 offen offset:{512*i} nt")
    if EXP.get("zflag"):
        srd(a, 20, 44, EXP["zflag"], 65536)
        a("v_lshlrev_b32 v76, 7, v3\nv_mov_b32 v77, 0\nbuffer_store_dword v77, v76, s[20:23], 0 offen")
    EARLY = (not F2) or EXP.get("pfearly", 1)
    if EARLY:
        strip_copy_issue(a, 3, 46, 1024, 6144, 3, 0, 64)
        prefetch(a, 3, 46, QPRE * 6144, 65536 - QPRE * 48, 72)
    a(f"""
    s_lshr_b32 s25, s27, 1
    s_lshl_b32 s25, s25, 3
    s_and_b32 s26, s27, 1
    s_lshl_b32 s26, s26, 1
    s_add_u32 s25, s25, s26
    v_bfe_u32 v26, v0, 4, 1
    v_lshl_add_u32 v26, v26, 2, s25
    v_bfe_u32 v27, v0, 3, 1
    v_add_u32 v26, v26, v27""")
    phys_line(a, 25, 26, 27)
    a(f"""
    v_and_b32 v26, 7, v0
    v_lshl_add_u32 v25, v26, 4, v25
    s_mov_b32 s25, {SLAB}
    v_mul_lo_u32 v27, v1, s25
    v_add_u32 v25, v25, v27
    v_lshrrev_b32 v27, 4, v0
    v_mul_u32_u24 v27, 272, v27
    v_and_b32 v26, 15, v0
    v_lshl_add_u32 v27, v26, 4, v27
    v_mul_u32_u24 v28, 272, v2
    v_lshl_add_u32 v28, v1, 4, v28""")
    if EXP.get("xsplit"): a("v_and_b32 v29, 1, v2\nv_mul_u32_u24 v29, 264, v29\nv_sub_u32 v28, v28, v29")
    a(f"s_waitcnt vmcnt({2 if EARLY else 0})")
    if not EARLY:
        a("""
        v_subrev_u32 v5, 64, v0
        s_mul_i32 s32, s27, 448
        v_add_u32 v5, s32, v5
        v_mov_b32 v29, 0x40000000
        v_cmp_gt_u32 vcc, 64, v0
        v_cndmask_b32 v3, v5, v29, vcc""")
        strip_copy_issue(a, 3, 46, 1024, 6144, 3, 0, 64)
        prefetch(a, 3, 46, QPRE * 6144, 57344 - QPRE * 48, 72)
    unpack(a, 32, 8, 16)
    a("v_add_f32 v6, v32, v33\nv_add_f32 v7, v34, v35")
    for i in range(4, 32): a(f"v_add_f32 v{6+i%2}, v{6+i%2}, v{32+i}")
    a("v_add_f32 v6, v6, v7")
    red32(a, 6, 7)
    a(f"v_mul_f32 v6, {fx(1/1024)}, v6")
    for i in range(32): a(f"v_sub_f32 v{32+i}, v{32+i}, v6")
    a("v_mul_f32 v6, v32, v32\nv_mul_f32 v7, v33, v33")
    for i in range(2, 32): a(f"v_fmac_f32 v{6+i%2}, v{32+i}, v{32+i}")
    a("v_add_f32 v6, v6, v7")
    red32(a, 6, 7)
    a(f"""
    v_mov_b32 v7, {fx(1e-5)}
    v_fmac_f32 v7, {fx(1/1024)}, v6
    v_rsq_f32 v6, v7""")
    if not F2:
        for i in range(4):
            for j in range(8): a(f"v_mul_f32 v{32+8*i+j}, v{32+8*i+j}, v6")
            for j in range(4): a(f"v_cvt_pk_f16_f32 v{8+4*i+j}, v{32+8*i+2*j}, v{33+8*i+2*j}")
            if EXP.get("xsplit"):
                a(f"ds_write_b64 v28, {v(8+4*i,2)} offset:{32*272*i}\nds_write_b64 v28, {v(10+4*i,2)} offset:{32*272*i+272}")
            else: a(f"ds_write_b128 v28, {v(8+4*i,4)} offset:{32*272*i}")
    else:
        CL = 36864
        for i in range(32): a(f"v_mul_f32 v{32+i}, v{32+i}, v6")
        srd(a, 16, 62, 0, 256); srd(a, 8, 44, WS_MODP, KS * 6144 * 4)
        a(f"""
        v_lshlrev_b32 v5, 4, v0
        v_lshlrev_b32 v24, 5, v2
        v_lshrrev_b32 v7, 6, v0
        v_lshlrev_b32 v6, 2, v0
        v_readfirstlane_b32 s26, v7
        s_cmp_lg_u32 s26, 0
        s_cbranch_scc1 pre_go
pre_poll:
        buffer_load_dword v7, v6, s[16:19], 0 offen sc1
        s_waitcnt vmcnt(0)
        v_cmp_eq_u32 vcc, 1, v7
        s_cmp_eq_u64 vcc, -1
        s_cbranch_scc1 pre_go
        s_sleep 1
        s_branch pre_poll
pre_go:
        s_barrier
        s_mov_b32 s32, {6144*4}
        buffer_load_dwordx4 v[8:11], v5, s[8:11], 0 offen sc1
        buffer_load_dwordx4 v[12:15], v5, s[8:11], s32 offen sc1
        s_cmp_ge_u32 s26, 4
        s_cselect_b32 s33, 1.0, 0
        s_waitcnt vmcnt(0)""")
        for j in range(4): a(f"v_add_f32 v{8+j}, v{8+j}, v{12+j}")
        for j in range(2): a(f"v_cvt_pk_bf16_f32 v{12+j}, v{8+2*j}, v{9+2*j}")
        unpack(a, 8, 12, 2)
        for j in range(4): a(f"v_add_f32 v{8+j}, s33, v{8+j}")
        for j in range(2): a(f"v_cvt_pk_bf16_f32 v{12+j}, v{8+2*j}, v{9+2*j}")
        unpack(a, 8, 12, 2)
        a(f"ds_write_b128 v5, v[8:11] offset:{CL}\ns_waitcnt lgkmcnt(0)\ns_barrier")
        B0, B1 = 8, 76
        def crd(i):
            B = B0 if i % 2 == 0 else B1
            for n, o in enumerate((4096, 4096 + 16, 0, 16)): a(f"ds_read_b128 {v(B+4*n,4)}, v24 offset:{CL+o+1024*i}")
        crd(0); crd(1)
        for i in range(4):
            B = B0 if i % 2 == 0 else B1
            a(f"s_waitcnt lgkmcnt({[4,5,5,1][i]})")
            for j in range(8): a(f"v_fma_f32 v{32+8*i+j}, v{32+8*i+j}, v{B+j}, v{B+8+j}")
            for j in range(4): a(f"v_cvt_pk_bf16_f32 v{92+j}, v{32+8*i+2*j}, v{33+8*i+2*j}")
            a(f"ds_write_b128 v28, v[92:95] offset:{32*272*i}")
            if i < 2: crd(i + 2)
    a("s_waitcnt lgkmcnt(0)\ns_barrier")
    for i in range(4): a(f"ds_read_b128 {v(32+4*i,4)}, v27 offset:{32*272*i}")
    for i in range(4):
        a(f"s_mov_b32 s25, {16*SLAB*i}\ns_waitcnt lgkmcnt({3-i})\nbuffer_store_dwordx4 {v(32+4*i,4)}, v25, s[12:15], s25 offen sc1")
    if not F2: a("s_waitcnt vmcnt(5)")
    strip_copy_store(a, 44, WS_WQ3, 1024 * 1536, 64)
    finish(k)
    return k

def k_ln(name, src_ptr, dst_off, shift_idx, scale_idx):
    k = Kernel(name, 256, 256, 8192 + 128 * 144, 128); a = k.a
    guard(k)
    load_ptrs(a, [(40, src_ptr), (44, P_WS)])
    code_srd(k, 88, name + "_end")
    a("v_lshlrev_b32 v30, 7, v0\nbuffer_load_dword v31, v30, s[88:91], 0 offen")
    a(f"""
    v_lshrrev_b32 v1, 5, v0
    v_and_b32 v2, 31, v0               ; chunk
    s_lshl_b32 s24, s2, 3
    v_add_u32 v3, s24, v1              ; row
    v_lshlrev_b32 v4, 11, v3
    v_lshl_add_u32 v4, v2, 4, v4
    v_lshlrev_b32 v5, 4, v0            ; tid*16
    s_waitcnt lgkmcnt(0)""")
    srd(a, 4, 40, 0, 2048 * 2048); srd(a, 8, 44, WS_MODP, KS * 6144 * 4); srd(a, 12, 44, dst_off, 64 * SLAB)
    for p in range(KS):
        a(f"s_mov_b32 s25, {p*6144*4 + scale_idx*4096}\nbuffer_load_dwordx4 {v(96+8*p,4)}, v5, s[8:11], s25 offen")
        a(f"s_mov_b32 s25, {p*6144*4 + shift_idx*4096}\nbuffer_load_dwordx4 {v(100+8*p,4)}, v5, s[8:11], s25 offen")
    for i in range(4): a(f"buffer_load_dwordx4 {v(8+4*i,4)}, v4, s[4:7], 0 offen offset:{512*i}")
    a(f"""
    s_lshr_b32 s25, s2, 2
    s_lshl_b32 s25, s25, 3
    s_and_b32 s26, s2, 3
    s_add_u32 s25, s25, s26
    v_bfe_u32 v26, v0, 3, 1
    v_lshl_add_u32 v26, v26, 2, s25""")
    phys_line(a, 25, 26, 27)
    a(f"""
    v_and_b32 v26, 7, v0
    v_lshl_add_u32 v25, v26, 4, v25
    v_lshrrev_b32 v27, 4, v0
    s_mov_b32 s25, {SLAB}
    v_mul_lo_u32 v27, v27, s25
    v_add_u32 v25, v25, v27
    v_lshrrev_b32 v27, 3, v0
    v_mul_u32_u24 v27, 144, v27
    v_lshl_add_u32 v27, v26, 4, v27
    v_mul_u32_u24 v28, 144, v2
    v_lshl_add_u32 v28, v1, 4, v28
    s_waitcnt vmcnt(4)""")
    for p in range(1, KS):
        for j in range(8): a(f"v_add_f32 v{96+j}, v{96+j}, v{96+8*p+j}")
    for j in range(4): a(f"v_cvt_pk_bf16_f32 v{112+j}, v{96+2*j}, v{97+2*j}")
    unpack(a, 96, 112, 4)
    for j in range(4): a(f"v_add_f32 v{96+j}, 1.0, v{96+j}")
    for j in range(2): a(f"v_cvt_pk_bf16_f32 v{112+j}, v{96+2*j}, v{97+2*j}")
    unpack(a, 96, 112, 2)
    a("ds_write_b128 v5, v[96:99]\nds_write_b128 v5, v[100:103] offset:4096")
    a("s_waitcnt vmcnt(0)")
    unpack(a, 32, 8, 16)
    a("v_add_f32 v6, v32, v33\nv_add_f32 v7, v34, v35")
    for i in range(4, 32): a(f"v_add_f32 v{6+i%2}, v{6+i%2}, v{32+i}")
    a("v_add_f32 v6, v6, v7")
    red32(a, 6, 7)
    a(f"v_mul_f32 v6, {fx(1/1024)}, v6")
    for i in range(32): a(f"v_sub_f32 v{32+i}, v{32+i}, v6")
    a("v_mul_f32 v6, v32, v32\nv_mul_f32 v7, v33, v33")
    for i in range(2, 32): a(f"v_fmac_f32 v{6+i%2}, v{32+i}, v{32+i}")
    a("v_add_f32 v6, v6, v7")
    red32(a, 6, 7)
    a(f"""
    v_mov_b32 v7, {fx(1e-5)}
    v_fmac_f32 v7, {fx(1/1024)}, v6
    v_rsq_f32 v6, v7
    v_lshlrev_b32 v24, 5, v2
    s_waitcnt lgkmcnt(0)
    s_barrier""")
    for i in range(4):
        a(f"ds_read_b128 {v(64+16*i,4)}, v24 offset:{1024*i}\nds_read_b128 {v(68+16*i,4)}, v24 offset:{1024*i+16}")
        a(f"ds_read_b128 {v(72+16*i,4)}, v24 offset:{4096+1024*i}\nds_read_b128 {v(76+16*i,4)}, v24 offset:{4096+1024*i+16}")
    for i in range(32): a(f"v_mul_f32 v{32+i}, v{32+i}, v6")
    for i in range(4):
        a(f"s_waitcnt lgkmcnt({12-4*i+i})")
        for j in range(8): a(f"v_fma_f32 v{32+8*i+j}, v{32+8*i+j}, v{64+16*i+j}, v{72+16*i+j}")
        for j in range(4): a(f"v_cvt_pk_bf16_f32 v{8+4*i+j}, v{32+8*i+2*j}, v{33+8*i+2*j}")
        a(f"ds_write_b128 v28, {v(8+4*i,4)} offset:{8192+32*144*i}")
    a("s_waitcnt lgkmcnt(0)\ns_barrier")
    for i in range(4): a(f"ds_read_b128 {v(32+4*i,4)}, v27 offset:{8192+32*144*i}")
    for i in range(4):
        a(f"s_mov_b32 s25, {16*SLAB*i}\ns_waitcnt lgkmcnt({3-i})\nbuffer_store_dwordx4 {v(32+4*i,4)}, v25, s[12:15], s25 offen sc1")
    finish(k)
    return k

def tile_map(a, TM, TN, xm, xn):
    tm_per, tn_per = TM // xm, TN // xn
    assert tm_per & (tm_per - 1) == 0
    a(f"""
    s_and_b32 s32, s2, 7
    s_lshr_b32 s33, s2, 3
    s_lshr_b32 s34, s32, {xn.bit_length()-1}
    s_and_b32 s35, s32, {xn-1}
    s_and_b32 s24, s33, {tm_per-1}
    s_lshr_b32 s25, s33, {tm_per.bit_length()-1}
    s_mul_i32 s34, s34, {tm_per}
    s_add_u32 s24, s24, s34
    s_mul_i32 s35, s35, {tn_per}
    s_add_u32 s25, s25, s35""")
    wave_lane(a)

def k_gemm(name, K, MB, NB, DA, R, U, PEEL, CAP, INIT, btype, a_off, korder, colperm, orient, TM, TN, xm, xn,
           ptrs, setup, epilogue, ldb, alt=None, big=False, ntemp=24, xlds=0, nxa=0, FB=1, mod=False):
    S = K // 16; NST = K // 64; WG = EXP.get(name[0] + 'WG', 2 if mod else 1)
    assert (NST - PEEL) % U == 0 and (4 * U) % DA == 0 and (4 * PEEL) % DA == 0 and (4 * U) % FB == 0 and (4 * PEEL) % FB == 0
    if btype == "panel":
        NP = NB // 2; STAGE = NP * 8192; ND = 2 * NP
    else:
        UPOFF = 16 * (64 * 14 + 8); STAGE = 2 * UPOFF; ND = 7
    VRE0, VRO0, VRE, VRO, VA = 3, 4, 5, 6, 7
    VB = VA + MB
    nfix = VB + ND
    if big:
        ACC = 256 - 16 * NB * MB; fk = "a"; BF = 0; AR = 4 * NB * FB; XA = AR + 4 * MB * DA; na = XA + nxa; nv = 256
        TMP = (nfix + 1) // 2 * 2; assert TMP + 14 <= ACC
    else:
        TMP = (nfix + 3) // 4 * 4
        ACC = (TMP + ntemp + 3) // 4 * 4
        fk = "v"; BF = ACC + 16 * NB * MB; AR = BF + 4 * NB * FB; nv = AR + 4 * MB * DA; na = 0; XA = None
        if mod: CM0 = nv; HF = CM0 + 32; VC = HF + 8; nv = VC + 1
    k = Kernel(name, TM * TN, 256, STAGE * R + xlds, nv, na); a = k.a
    k.ACC, k.TMP, k.MB, k.NB, k.BF, k.AR, k.VA, k.XL, k.XA = ACC, TMP, MB, NB, BF, AR, VA, STAGE * R, XA
    acc = lambda j, tb: ACC + 16 * (j * MB + tb)
    k.acc = acc
    guard(k)
    stamp(k, 0)
    load_ptrs(a, ptrs)
    tile_map(a, TM, TN, xm, xn)
    T = TMP
    a(f"s_lshl_b32 s37, s24, 2\ns_add_u32 s37, s37, s26\ns_mul_i32 s37, s37, {MB}")
    rd_rows = 8 if korder == "split" else 4
    if btype == "panel":
        off_alt, ldb_alt, pst_alt, sst_alt = alt
        a(f"""
        s_and_b32 s32, s25, 7
        s_lshr_b32 s33, s25, 3
        s_mul_i32 s33, s33, {sst_alt}
        s_lshl_b32 s34, s25, 7
        s_mov_b32 s51, {ldb}
        s_mov_b32 s52, 2048
        s_cmp_eq_u32 s32, {3 if not EXP.get('noalt') else 99}
        s_cselect_b32 s50, s33, s34
        s_cselect_b32 s51, {ldb_alt}, s51
        s_cselect_b32 s52, {pst_alt}, s52
        s_cselect_b32 s53, 1, 0
        s_lshl_b32 s39, s51, 6
        s_lshl_b32 s54, s51, 3""")
        panel_src(a, T, 1)
        a(f"""
        s_lshl_b32 s32, s26, 4
        v_add_u32 v{T}, s32, v{T}
        v_mul_lo_u32 v{T}, v{T}, s51
        v_lshl_add_u32 v{T}, v{T+1}, 4, v{T}
        v_add_u32 v{VB}, s50, v{T}
        v_add_u32 v{VB+1}, s54, v{VB}""")
        for p in range(1, NP):
            a(f"v_add_u32 v{VB+2*p}, s52, v{VB+2*p-2}\nv_add_u32 v{VB+2*p+1}, s52, v{VB+2*p-1}")
        dma_lds = [p * 8192 + g * 1024 for p in range(NP) for g in range(2)]
        a("s_lshl_b32 s36, s26, 11")
    else:
        a(f"""
        s_and_b32 s32, s26, 1
        s_mul_i32 s33, s32, {32*ldb}
        s_mul_i32 s34, s25, 224
        s_add_u32 s33, s33, s34
        s_mov_b32 s39, {64*ldb}""")
        for i in range(7):
            a(f"""
            v_add_u32 v{T}, {64*i}, v1
            v_mul_u32_u24 v{T+1}, 4682, v{T}
            v_lshrrev_b32 v{T+1}, 16, v{T+1}
            v_lshl_add_u32 v{T}, v{T}, 4, s33
            v_mul_u32_u24 v{T+1}, {ldb-224}, v{T+1}
            v_add_u32 v{VB+i}, v{T}, v{T+1}""")
        dma_lds = [1024 * i for i in range(7)]
        a(f"""
        s_mul_i32 s36, s32, 7168
        s_lshr_b32 s33, s26, 1
        s_mul_i32 s33, s33, {UPOFF}
        s_add_u32 s36, s36, s33""")
    for tb in range(MB):
        if tb: a(f"s_add_u32 s32, s37, {tb}")
        frag_off(a, VA + tb, 32 if tb else 37, 1, T)
    a(f"""
    s_mov_b32 s27, 0
    s_mov_b32 s28, 0
    s_mov_b32 s29, s36
    s_add_u32 s38, s36, {R*STAGE}
    s_mov_b32 s31, {(R-1)*STAGE}
    s_waitcnt lgkmcnt(0)""")
    srd(a, 4, 44, a_off, S * SLAB)
    if btype == "panel":
        a(f"""
        s_add_u32 s32, s44, {off_alt}
        s_addc_u32 s33, s45, 0
        s_cmp_eq_u32 s53, 1
        s_cselect_b32 s8, s32, s40
        s_cselect_b32 s9, s33, s41
        s_mul_i32 s10, s51, {K}
        s_mov_b32 s11, 0x20000""")
    else:
        a("s_cmp_ge_u32 s26, 2\ns_cselect_b32 s8, s42, s40\ns_cselect_b32 s9, s43, s41")
        a(f"s_mov_b32 s10, {K*ldb}\ns_mov_b32 s11, 0x20000")

    def late_setup():
        code_srd(k, 92, name + "_epi")
        a("v_lshlrev_b32 v2, 7, v0")
        tr_lane(a, T, 1, korder, colperm)
        if btype == "panel": panel_rd(a, T, VRE0, VRO0)
        else:
            a(f"""
            v_mul_u32_u24 v{T+4}, 224, v{T+4}
            v_lshl_add_u32 v{T+4}, v{T+3}, 3, v{T+4}
            v_mul_u32_u24 v{T+5}, {UPOFF}, v{T+1}
            v_add_u32 v{VRE0}, v{T+4}, v{T+5}""")
    if btype == "panel":
        def rd(j, sub, r_): return (VRE if j % 2 == 0 else VRO), (j // 2) * 8192 + 128 * (16 * sub + rd_rows * r_)
    else:
        def rd(j, sub, r_): return VRE, 32 * j + 224 * (16 * sub + rd_rows * r_)

    BOFF = 4 - FB
    def make_ops(extra):
        ops = []
        for ta in range(S + DA + 8):
            for tb in range(MB):
                ins = [f"buffer_load_dwordx4 {rr(fk, AR+4*(MB*(ta%DA)+tb), 4)}, v{VA+tb}, s[4:7], s27 offen"]
                if tb == MB - 1: ins.append(f"s_add_u32 s27, s27, {SLAB}")
                ops.append([ta - (1 if mod else 0), ta + (0 if mod else 1) - DA, len(ops), ins, ("A", ta)])
        for st in range(NST + R + 2):
            for i in range(ND):
                ins = [f"s_add_u32 m0, s29, {dma_lds[i]}", f"buffer_load_dwordx4 v{VB+i}, s[8:11], s28 offen lds"]
                if i == ND - 1:
                    ins += ["s_add_u32 s28, s28, s39", f"s_add_u32 s29, s29, {STAGE}", "s_cmp_eq_u32 s29, s38\ns_cselect_b32 s29, s36, s29"]
                ops.append([4 * st - FB - 0.5, 4 * (st + 2 - R) - FB + i * 4 // ND, len(ops), ins, ("B", st)])
        for need, ins in extra: ops.append([need, -999, len(ops), ins, ("X",)])
        ops.sort(key=lambda o: (o[0], o[2]))
        return ops

    cnt = Cnt()
    def run(emit):
        def E(x):
            if emit: emit(x)
        extra = setup(k, emit)
        ops = make_ops(extra)
        def take(t, cap):
            got = []
            for o in ops:
                if len(got) >= cap: break
                if o[1] <= t: got.append(o)
            for o in got: ops.remove(o)
            fl = []
            for o in got:
                for x in o[3]: fl.append((x, o[4] if x.startswith("buffer_") else None))
            return fl
        def W(site, c, nm, tags):
            cnt.wait(c, (site, nm), tags)
            E(cnt.text(c, (site, nm)))
        def flush(fill, n):
            for _ in range(n):
                if not fill: return
                x, tag = fill.pop(0)
                if x == "W": W(*tag); continue
                E(x)
                if tag and tag[0] == "L": cnt.issue("lg", tag[1])
                elif tag: cnt.issue("vm", tag)
        def barrier(site, st):
            W(site, "vm", "bar", {("B", st)})
            E("s_barrier")
            E(f"s_add_u32 s31, s31, {STAGE}\ns_cmp_eq_u32 s31, {R*STAGE}\ns_cselect_b32 s31, 0, s31\nv_add_u32 v{VRE}, s31, v{VRE0}")
            if btype == "panel": E(f"v_add_u32 v{VRO}, s31, v{VRO0}")
        def reads(tt, j):
            for r_ in range(2):
                base, off = rd(j, tt % 4, r_)
                E(f"ds_read_b64_tr_b16 {rr(fk, BF+4*(NB*(tt%FB)+j)+2*r_, 2)}, v{base} offset:{off}")
                cnt.issue("lg", ("F", tt, j))
        def cread(tt):
            base = (tt if tt < 4 * PEEL + 2 else 4 * PEEL + (tt - 4 * PEEL - 2) % (4 * U) + 2) * 128
            out = []; CM = CM0 + 16 * (tt % 2)
            for n in range(4): out.append((f"ds_read_b128 {v(CM+4*n,4)}, v{VC} offset:{base+16*n}", ("L", ("C", tt))))
            return out
        def xform(tt):
            r = AR + 4 * (tt % DA); out = []; CM = CM0 + 16 * (tt % 2)
            for i in range(8):
                out.append((f"v_fma_mix_f32 v{CM+8+i}, v{r+i//2}, v{CM+i}, v{CM+8+i} " + ("op_sel:[1,0,0] " if i % 2 else "") + "op_sel_hi:[1,0,0]", None))
            for i in range(4): out.append((f"v_cvt_pk_bf16_f32 v{HF+4*(tt%2)+i}, v{CM+8+2*i}, v{CM+9+2*i}", None))
            return out
        if mod:
            if emit:
                srd(a, 20, 44, WS_MODP, KS * 6144 * 4)
                a(f"v_lshlrev_b32 v{VC}, 4, v0")
            for p in range(KS):
                for n, idx in enumerate((1, 0)):
                    E(f"s_mov_b32 s32, {p*6144*4 + idx*4096}\nbuffer_load_dwordx4 {v(ACC+8*p+4*n,4)}, v{VC}, s[20:23], s32 offen")
                    cnt.issue("vm", ("M",))
        flush(take(-FB - 1, INIT), 999)
        if mod:
            if emit:
                a(f"""
                v_lshrrev_b32 v{ACC+24}, 1, v0
                v_lshlrev_b32 v{ACC+24}, 6, v{ACC+24}
                v_and_b32 v{ACC+25}, 1, v0
                v_lshl_add_u32 v{ACC+24}, v{ACC+25}, 4, v{ACC+24}
                v_add_u32 v{ACC+24}, {STAGE*R}, v{ACC+24}
                v_lshrrev_b32 v{VC}, 5, v1
                v_lshlrev_b32 v{VC}, 6, v{VC}
                v_add_u32 v{VC}, {STAGE*R}, v{VC}""")
        if emit:
            late_setup()
        if mod:
            W("pro", "vm", "M", {("M",)})
            if emit:
                for j in range(8): a(f"v_add_f32 v{ACC+j}, v{ACC+j}, v{ACC+8+j}")
                for j in range(4): a(f"v_cvt_pk_bf16_f32 v{ACC+16+j}, v{ACC+2*j}, v{ACC+2*j+1}")
                unpack(a, ACC, ACC + 16, 4)
                for j in range(4): a(f"v_add_f32 v{ACC+j}, 1.0, v{ACC+j}")
                for j in range(2): a(f"v_cvt_pk_bf16_f32 v{ACC+16+j}, v{ACC+2*j}, v{ACC+2*j+1}")
                unpack(a, ACC, ACC + 16, 2)
                a(f"ds_write_b128 v{ACC+24}, {v(ACC,4)}\nds_write_b128 v{ACC+24}, {v(ACC+4,4)} offset:32\ns_waitcnt lgkmcnt(0)")
        if emit:
            if PEEL == 0:
                for i in range(16 * NB * MB): a(f"v_mov_b32 v{ACC+i}, 0")
        barrier("pro", 0)
        if mod: flush(cread(0) + cread(1), 99)
        for tt in range(FB):
            for j in range(NB): reads(tt, j)
        if mod:
            assert PEEL > 0
            W("pro", "vm", "A", {("A", 0)}); W("pro", "lg", "C", {("C", 0)})
            flush(xform(0), 99)
        if PEEL == 0: flush(take(-1, 999), 999)
        if emit: stamp(k, 1)
        for t in range(S):
            peeled = t < 4 * PEEL
            site = ("p", t) if peeled else (t - 4 * PEEL) % (4 * U)
            if t == 4 * PEEL:
                assert not [o for o in ops if o[1] < t], f"{name}: backlog not drained"
                E(f"s_mov_b32 s30, {(NST-PEEL)//U}\n.p2align 6\n{name}_loop:")
            if t == 4 * PEEL + 4 * U:
                E(f"s_sub_u32 s30, s30, 1\ns_cmp_lg_u32 s30, 0\ns_cbranch_scc1 {name}_loop")
                if emit: return
            sub = t % 4
            fill = take(t, CAP if peeled else 999)
            if not peeled and site == 1: fill.append((f"buffer_load_dword {'v0' if not big else 'a%d' % (na - 1)}, v2, s[92:95], 0 offen", ("C",)))
            vfill = []
            if mod:
                xf = [("W", (site, "vm", "A", {("A", t + 1)})), ("W", (site, "lg", "C", {("C", t + 1)}))]
                cr = cread(t + 2)
                if not peeled and site == 4 * U - 1: vfillx = [(f"v_add_u32 v{VC}, {4*U*128}, v{VC}", None)]
                else: vfillx = []
                vfill = xform(t + 1) + vfillx
                fill = cr + fill
            n0 = len(fill); nv0 = len(vfill); nslots = NB * MB; slot = 0
            if not mod: W(site, "vm", "A", {("A", t)})
            for j in range(NB):
                if not mod or (t == 0 and j == 0): W(site, "lg", f"F{j}", {("F", t, min(NB - 1, j + (WG - 1 - j % WG)))})
                for tb in range(MB):
                    af = rr(fk, AR + 4 * (MB * (t % DA) + tb), 4) if not mod else v(HF + 4 * (t % 2), 4); bf = rr(fk, BF + 4 * (NB * (t % FB) + j), 4); c = v(acc(j, tb), 16)
                    x, y = (bf, af) if orient[j] == "tok" else (af, bf)
                    if EXP.get("fake16"):
                        c0 = v(acc(j, tb) + 8 * (t % 2), 4); c1 = v(acc(j, tb) + 8 * (t % 2) + 4, 4)
                        E(f"v_mfma_f32_16x16x32_bf16 {c0}, {x}, {y}, {c0 if (t > 1 or PEEL == 0) else 0}")
                        if fill and not (sub == BOFF and j == 0): flush(fill, 1)
                        E(f"v_mfma_f32_16x16x32_bf16 {c1}, {y}, {x}, {c1 if (t > 1 or PEEL == 0) else 0}")
                    else:
                        E(f"v_mfma_f32_32x32x16_bf16 {c}, {x}, {y}, {c if (t or PEEL == 0) else 0}")
                    slot += 1
                    if mod:
                        if j == 0: flush(xf, 9)
                        jn, tn_ = (j + 1, t) if j + 1 < NB else (0, t + 1)
                        W(site, "lg", f"N{j}", {("F", tn_, min(NB - 1, jn + (WG - 1 - jn % WG)))})
                    if tb == MB - 1:
                        if j == 0 and sub == BOFF: barrier(site, (t + FB) // 4)
                        reads(t + FB, j)
                    if not (sub == BOFF and j == 0 and tb < MB - 1):
                        flush(fill, max(0, (n0 * slot + nslots - 1) // nslots - (n0 - len(fill))))
                    vs = nslots - EXP.get("qvs", 1)
                    flush(vfill, max(0, (nv0 * min(slot, vs) + vs - 1) // vs - (nv0 - len(vfill))))
            flush(fill, 999)
        if (NST - PEEL) == U: E(f"s_sub_u32 s30, s30, 1\ns_cmp_lg_u32 s30, 0\ns_cbranch_scc1 {name}_loop")
    run(None)
    cnt.reset()
    run(a)
    a(f"{name}_epi:")
    stamp(k, 2)
    epilogue(k)
    stamp(k, 3)
    prof_out(k, 4, KID[name], 26)
    finish(k)
    return k

def k_qkv():
    def setup(k, a):
        if not EXP.get("fuse1", 1) or QPRE >= 1024: return []
        T = k.TMP; per = (1024 - QPRE) * 48 // 1024
        if a: srd(a, 16, 40, QPRE * 6144, (1024 - QPRE) * 6144)
        first = f"""s_lshl_b32 s32, s2, 2
        s_add_u32 s32, s32, s26
        s_lshl_b32 s55, s32, 7
        v_lshlrev_b32 v{T+6}, 17, v1"""
        return [(EXP.get("qpfat", 12), [first, f"buffer_load_dword v{T+7}, v{T+6}, s[16:19], s55 offen"])]
    def epi(k):
        a = k.a; T = k.TMP
        qs = LOG2E / math.sqrt(32)
        srd(a, 12, 44, WS_Q, 4 << 20); srd(a, 16, 44, WS_KV, 8 << 20)
        a(f"""
        v_lshlrev_b32 v{T}, 4, v1
        s_lshl_b32 s32, s25, 7
        s_add_u32 s32, s32, s37
        s_lshl_b32 s33, s32, 11          ; Q offset
        s_lshl_b32 s34, s32, 12
        s_add_u32 s35, s33, {64*2048}
        s_add_u32 s39, s34, {64*4096}""")
        for j in range(6):
            c = k.acc(j, 0)
            if j < 2:
                for i in range(16): a(f"v_mul_f32 v{c+i}, {fx(qs)}, v{c+i}")
            for g in range(2):
                for i in range(4 * g, 4 * g + 4): a(f"v_cvt_pk_bf16_f32 v{c+i}, v{c+2*i}, v{c+2*i+1}")
            for g in range(2):
                if j < 2: a(f"buffer_store_dwordx4 {v(c+4*g,4)}, v{T}, s[12:15], s{33 if j==0 else 35} offen offset:{1024*g} sc1")
                else: a(f"buffer_store_dwordx4 {v(c+4*g,4)}, v{T}, s[16:19], s{34 if j%2==0 else 39} offen offset:{(2048 if j>=4 else 0)+1024*g} sc1")
    return k_gemm("qkv_kernel", 1024, 1, 6, EXP.get("qDA", 8), EXP.get("qR", 4), 2, EXP.get("qPEEL", 4), EXP.get("qCAP", 4), EXP.get("qINIT", 9),
                  "panel", WS_H1, "contig", False, ["tok"]*4 + ["feat"]*2, 16, 16, 2, 4,
                  [(40, P_WQKV), (44, P_WS)], setup, epi, 6144, alt=(WS_WQ3, 1536, 256, 768),
                  mod=EXP.get('fuse1', 1) == 1, xlds=(8192 + 256 if EXP.get('fuse1', 1) == 1 else 0))

def colvec_ops(k, need, dst, idxs, va):
    ops = []
    first = [f"s_lshl_b32 s32, s25, 8\nv_lshl_add_u32 v{va}, v1, 2, s32"]
    for n, idx in enumerate(idxs):
        for p in range(KS):
            ops.append((need, first + [f"s_mov_b32 s32, {p*6144*4 + idx*4096}", f"buffer_load_dword v{dst+2*n+p}, v{va}, s[20:23], s32 offen"]))
            first = []
    return ops

def k_out():
    def setup(k, a):
        T = k.TMP
        if a:
            srd(a, 12, 42, 0, 4 << 20); srd(a, 20, 44, WS_MODP, KS * 6144 * 4)
        ops = colvec_ops(k, 30, T + 8, [2, 4], T + 6)
        first = [f"""v_lshrrev_b32 v{T+12}, 3, v1
        v_and_b32 v{T+7}, 7, v1
        v_xor_b32 v{T+7}, v{T+7}, v{T+12}
        v_lshlrev_b32 v{T+7}, 4, v{T+7}
        v_lshl_add_u32 v{T+7}, v{T+12}, 11, v{T+7}
        s_lshl_b32 s55, s37, 16
        s_lshl_b32 s32, s25, 7
        s_add_u32 s55, s55, s32
        s_lshl_b32 s56, s26, 12
        s_add_u32 s56, s56, {k.XL}"""]
        for i in range(4):
            ops.append((31, first + [f"s_add_u32 m0, s56, {1024*i}", "s_nop 0", f"buffer_load_dwordx4 v{T+7}, s[12:15], s55 offen lds", "s_add_u32 s55, s55, 0x4000"]))
            first = []
        return ops
    def epi(k):
        a = k.a; T = k.TMP; G = T + 16; C = G + 32; X = C + 32; P = X + 32
        srd(a, 12, 44, WS_X2, 64 * SLAB); srd(a, 16, 44, WS_Y2, 64 * SLAB); srd(a, 20, 44, WS_STAT, 16 * 2048 * 8)
        a(f"""
        v_add_f32 v{T+8}, v{T+8}, v{T+9}
        v_add_f32 v{T+10}, v{T+10}, v{T+11}""")
        rbf(a, T + 8); rbf(a, T + 10)
        a(f"v_add_f32 v{T+10}, 1.0, v{T+10}")
        rbf(a, T + 10)
        a(f"""
        s_lshl_b32 s32, s26, 9
        s_add_u32 s32, s32, {k.XL + 16384}
        v_lshl_add_u32 v{T}, v1, 2, s32
        ds_write_b32 v{T}, v{T+8}
        ds_write_b32 v{T}, v{T+10} offset:256
        v_lshrrev_b32 v{T+1}, 5, v1
        v_lshl_add_u32 v{T}, v{T+1}, 5, s32
        v_and_b32 v{T+2}, 31, v1
        v_and_b32 v{T+3}, 7, v1
        v_xor_b32 v{T+3}, v{T+3}, v{T+1}
        v_lshlrev_b32 v{T+3}, 4, v{T+3}
        v_lshl_add_u32 v{T+3}, v{T+2}, 7, v{T+3}
        v_add_u32 v{T+3}, s56, v{T+3}
        s_waitcnt lgkmcnt(0)""")
        for q in range(4):
            a(f"v_xor_b32 v{T+4}, {32*q}, v{T+3}\nds_read_b128 {v(P+4*q,4)}, v{T+4}")
        for q in range(4):
            for hh in range(2): a(f"ds_read_b128 {v(G+8*q+4*hh,4)}, v{T} offset:{64*q+16*hh}")
        a("s_waitcnt lgkmcnt(8)")
        unpack(a, X, P, 16)
        for q in range(4):
            for hh in range(2): a(f"ds_read_b128 {v(C+8*q+4*hh,4)}, v{T} offset:{256+64*q+16*hh}")
        a(f"s_mul_i32 s33, s25, {4*SLAB}\ns_waitcnt lgkmcnt(8)")
        for q in range(4):
            c = k.acc(q // 2, 0) + 8 * (q % 2)
            for i in range(8): a(f"v_fmac_f32 v{X+8*q+i}, v{G+8*q+i}, v{c+i}")
            for i in range(4): a(f"v_cvt_pk_bf16_f32 v{P+4*q+i}, v{X+8*q+2*i}, v{X+8*q+2*i+1}")
            a(f"s_add_u32 s34, s33, {q*SLAB}\nbuffer_store_dwordx4 {v(P+4*q,4)}, v{k.VA}, s[12:15], s34 offen sc1")
        unpack(a, X, P, 16)
        a("s_waitcnt lgkmcnt(0)")
        for q in range(4):
            for i in range(8): a(f"v_mul_f32 v{C+8*q+i}, v{C+8*q+i}, v{X+8*q+i}")
            for i in range(4): a(f"v_cvt_pk_bf16_f32 v{G+4*q+i}, v{C+8*q+2*i}, v{C+8*q+2*i+1}")
            a(f"s_add_u32 s34, s33, {q*SLAB}\nbuffer_store_dwordx4 {v(G+4*q,4)}, v{k.VA}, s[16:19], s34 offen sc1")
        a(f"v_add_f32 v{T+8}, v{X}, v{X+1}\nv_add_f32 v{T+9}, v{X+2}, v{X+3}")
        for i in range(4, 32): a(f"v_add_f32 v{T+8+i%2}, v{T+8+i%2}, v{X+i}")
        a(f"""
        v_add_f32 v{T+8}, v{T+8}, v{T+9}
        v_mov_b32 v{T+9}, v{T+8}
        v_permlane32_swap_b32 v{T+8}, v{T+9}
        v_add_f32 v{T+8}, v{T+8}, v{T+9}
        v_mul_f32 v{T+10}, {fx(1/64)}, v{T+8}""")
        for i in range(32): a(f"v_sub_f32 v{X+i}, v{X+i}, v{T+10}")
        a(f"v_mul_f32 v{T+9}, v{X}, v{X}\nv_mul_f32 v{T+10}, v{X+1}, v{X+1}")
        for i in range(2, 32): a(f"v_fmac_f32 v{T+9+i%2}, v{X+i}, v{X+i}")
        a(f"""
        v_add_f32 v{T+9}, v{T+9}, v{T+10}
        v_mov_b32 v{T+10}, v{T+9}
        v_permlane32_swap_b32 v{T+9}, v{T+10}
        v_add_f32 v{T+9}, v{T+9}, v{T+10}
        v_lshlrev_b32 v{T+2}, 3, v{T+2}
        s_lshl_b32 s32, s25, 14
        s_lshl_b32 s33, s37, 8
        s_add_u32 s32, s32, s33
        s_mov_b32 exec_hi, 0
        buffer_store_dwordx2 {v(T+8,2)}, v{T+2}, s[20:23], s32 offen sc1
        s_mov_b32 exec_hi, -1""")
    return k_gemm("out_kernel", 1024, 1, 2, 16, 6, 4, 0, 99, 999, "panel", WS_O, "split", True, ["tok"]*2, 16, 16, 4, 2,
                  [(40, P_WO), (42, P_X), (44, P_WS)], setup, epi, 2048, alt=(WS_WO3, 512, 0, 256), ntemp=16 + 96 + 16, xlds=16384 + 2048,
                  FB=EXP.get("pFB", 2))

def k_down():
    def setup(k, a):
        T = k.TMP
        if a:
            srd(a, 12, 44, WS_X2, 64 * SLAB); srd(a, 20, 44, WS_MODP, KS * 6144 * 4)
        ops = colvec_ops(k, 30, T + 8, [5], T + 6)
        first = [f"s_mul_i32 s55, s25, {4*SLAB}"]
        for q in range(4):
            ops.append((31, first + [f"buffer_load_dwordx4 {v(T+16+4*q,4)}, v{k.VA}, s[12:15], s55 offen", f"s_add_u32 s55, s55, {SLAB}"]))
            first = []
        return ops
    def epi(k):
        a = k.a; T = k.TMP; P = T + 16; G = P + 16; X = G + 32
        srd(a, 16, 46, 0, 4 << 20)
        a(f"v_add_f32 v{T+8}, v{T+8}, v{T+9}")
        rbf(a, T + 8)
        a(f"""
        s_lshl_b32 s32, s26, 8
        s_add_u32 s32, s32, {k.XL + 16384}
        v_lshl_add_u32 v{T}, v1, 2, s32
        ds_write_b32 v{T}, v{T+8}
        v_lshrrev_b32 v{T+1}, 5, v1
        v_lshl_add_u32 v{T}, v{T+1}, 5, s32
        s_lshl_b32 s56, s26, 12
        s_add_u32 s56, s56, {k.XL}
        v_and_b32 v{T+2}, 31, v1
        v_and_b32 v{T+3}, 7, v1
        v_xor_b32 v{T+3}, v{T+3}, v{T+1}
        v_lshlrev_b32 v{T+3}, 4, v{T+3}
        v_lshl_add_u32 v{T+3}, v{T+2}, 7, v{T+3}
        v_add_u32 v{T+3}, s56, v{T+3}
        s_waitcnt lgkmcnt(0)""")
        for q in range(4):
            for hh in range(2): a(f"ds_read_b128 {v(G+8*q+4*hh,4)}, v{T} offset:{64*q+16*hh}")
        unpack(a, X, P, 16)
        a(f"""
        v_lshl_add_u32 v{T+5}, v1, 4, s56
        v_lshrrev_b32 v{T+6}, 3, v1
        v_and_b32 v{T+7}, 7, v1
        v_xor_b32 v{T+7}, v{T+7}, v{T+6}
        v_lshlrev_b32 v{T+7}, 4, v{T+7}
        v_lshl_add_u32 v{T+7}, v{T+6}, 11, v{T+7}
        s_lshl_b32 s33, s37, 16
        s_lshl_b32 s32, s25, 7
        s_add_u32 s33, s33, s32
        s_waitcnt lgkmcnt(0)""")
        for q in range(4):
            c = k.acc(q // 2, 0) + 8 * (q % 2)
            for i in range(8): a(f"v_fmac_f32 v{X+8*q+i}, v{G+8*q+i}, v{c+i}")
            for i in range(4): a(f"v_cvt_pk_bf16_f32 v{P+4*q+i}, v{X+8*q+2*i}, v{X+8*q+2*i+1}")
            a(f"v_xor_b32 v{T+4}, {32*q}, v{T+3}\nds_write_b128 v{T+4}, {v(P+4*q,4)}")
        a("s_waitcnt lgkmcnt(0)")
        for i in range(4): a(f"ds_read_b128 {v(G+4*i,4)}, v{T+5} offset:{1024*i}")
        for i in range(4):
            a(f"s_waitcnt lgkmcnt({3-i})\nbuffer_store_dwordx4 {v(G+4*i,4)}, v{T+7}, s[16:19], s33 offen sc1\ns_add_u32 s33, s33, 0x4000")
    return k_gemm("down_kernel", 3584, 1, 2, 16, 6, 4, 0, 99, 999, "panel", WS_ACT, "split", True, ["tok"]*2, 16, 16, 4, 2,
                  [(40, P_WD), (44, P_WS), (46, P_OUT)], setup, epi, 2048, alt=(WS_WD3, 512, 0, 256), ntemp=16 + 16 + 64, xlds=16384 + 1024,
                  FB=EXP.get("pFB", 2))

def k_gu():
    def setup(k, a):
        T = k.TMP; XA = k.XA
        if a:
            srd(a, 16, 44, WS_STAT, 16 * 2048 * 8); srd(a, 20, 44, WS_UV, KS * 2 * 7168 * 4)
        ops = []
        first = [f"""v_and_b32 v{T+6}, 31, v1
        v_lshlrev_b32 v{T+6}, 3, v{T+6}
        v_lshrrev_b32 v{T+7}, 5, v1
        v_lshl_add_u32 v{T+6}, v{T+7}, 17, v{T+6}
        s_lshl_b32 s55, s37, 8"""]
        for i in range(8):
            for tb in range(2):
                ops.append((40, first + [f"buffer_load_dwordx2 {a_(XA+16*tb+2*i,2)}, v{T+6}, s[16:19], s55 offen offset:{256*tb}"] + (["s_add_u32 s55, s55, 0x4000"] if tb else [])))
                first = []
        first = [f"""v_cmp_lt_u32 vcc, 111, v0
        v_mov_b32 v{T+7}, {(3584-112)*4}
        v_cndmask_b32 v{T+7}, 0, v{T+7}, vcc
        v_lshl_add_u32 v{T+7}, v0, 2, v{T+7}
        s_mul_i32 s56, s25, 448"""]
        for i in range(4):
            ops.append((41, first + [f"buffer_load_dword a{XA+32+i}, v{T+7}, s[20:23], s56 offen", f"s_add_u32 s56, s56, {7168*4}"]))
            first = []
        return ops
    def epi(k):
        a = k.a; T = k.TMP; XA = k.XA
        c0 = -2 * math.sqrt(2 / math.pi) * LOG2E; c1 = c0 * 0.044715
        srd(a, 12, 44, WS_ACT, 224 * SLAB)
        for i in range(4): a(f"v_accvgpr_read_b32 v{10+i}, a{XA+32+i}")
        a(f"""
        v_add_f32 v10, v10, v12
        v_add_f32 v11, v11, v13
        v_lshlrev_b32 v2, 2, v0
        ds_write_b32 v2, v10 offset:{k.XL % 65536}
        ds_write_b32 v2, v11 offset:{k.XL % 65536 + 1024}""".replace("v_lshlrev_b32 v2, 2, v0", f"v_lshlrev_b32 v2, 2, v0\nv_add_u32 v2, {k.XL // 65536 * 65536}, v2"))
        for tb, D in ((0, 4), (1, 30)):
            for i in range(16): a(f"v_accvgpr_read_b32 v{10+i}, a{XA+16*tb+i}")
            a("v_add_f32 v26, v10, v12\nv_add_f32 v27, v11, v13")
            for i in range(2, 8): a(f"v_add_f32 v26, v26, v{10+2*i}\nv_add_f32 v27, v27, v{11+2*i}")
            a(f"""
            v_mov_b32 v28, v26
            v_permlane32_swap_b32 v26, v28
            v_add_f32 v26, v26, v28
            v_mul_f32 v28, {fx(1/16)}, v26""")
            for i in range(8): a(f"v_sub_f32 v{10+2*i}, v{10+2*i}, v28")
            a("v_mul_f32 v29, v10, v10")
            for i in range(1, 8): a(f"v_fmac_f32 v29, v{10+2*i}, v{10+2*i}")
            a(f"""
            v_fmac_f32 v27, {fx(1/64)}, v29
            v_mov_b32 v28, v27
            v_permlane32_swap_b32 v27, v28
            v_add_f32 v27, v27, v28
            v_mov_b32 v28, {fx(1e-5)}
            v_fmac_f32 v28, {fx(1/1024)}, v27
            v_rsq_f32 v{D}, v28
            v_mul_f32 v26, {fx(-1/1024)}, v26
            v_mul_f32 v{D+1}, v26, v{D}""")
        a(f"""
        v_lshrrev_b32 v9, 5, v1
        v_lshlrev_b32 v9, 4, v9
        v_add_u32 v9, {k.XL}, v9
        s_mul_i32 s32, s25, {7*SLAB}
        s_mov_b32 s34, {fx(c1)}
        s_mov_b32 s35, {fx(c1)}
        v_mov_b32 v26, {fx(c0)}
        v_mov_b32 v27, {fx(c0)}
        v_mov_b32 v28, 1.0
        v_mov_b32 v29, 1.0
        s_waitcnt lgkmcnt(0)
        s_barrier""")
        def rdq(j, q, B):
            o = 64 * j + 32 * q
            for n, oo in enumerate((o, o + 1024, o + 448, o + 448 + 1024)): a(f"ds_read_b128 {v(B+4*n,4)}, v9 offset:{oo}")
        pk = lambda r: v(r, 2)
        def fold(j, q, B):
            for tb, D in ((0, 4), (1, 30)):
                c = k.acc(j, tb) + 4 * q
                for i in (0, 2):
                    a(f"v_pk_fma_f32 {pk(c+i)}, {pk(c+i)}, {pk(D)}, {pk(B+4+i)} op_sel_hi:[1,0,1]")
                    a(f"v_pk_fma_f32 {pk(c+8+i)}, {pk(c+8+i)}, {pk(D)}, {pk(B+12+i)} op_sel_hi:[1,0,1]")
                for i in (0, 2):
                    a(f"v_pk_fma_f32 {pk(c+i)}, {pk(B+i)}, {pk(D)}, {pk(c+i)} op_sel:[0,1,0]")
                    a(f"v_pk_fma_f32 {pk(c+8+i)}, {pk(B+8+i)}, {pk(D)}, {pk(c+8+i)} op_sel:[0,1,0]")
        for j in range(7):
            if j == 0:
                rdq(0, 0, 10); a("s_waitcnt lgkmcnt(0)"); fold(0, 0, 10)
                rdq(0, 1, 10); a("s_waitcnt lgkmcnt(0)"); fold(0, 1, 10)
            else:
                a("s_waitcnt lgkmcnt(0)"); fold(j, 0, 10); fold(j, 1, k.acc(j - 1, 0))
            if j < 6: rdq(j + 1, 0, 10)
            for tb in range(2):
                c = k.acc(j, tb)
                for i in range(0, 8, 2): a(f"v_pk_mul_f32 {pk(c+8+i)}, {pk(c+8+i)}, {pk(c+i)}")
                for i in (0, 4):
                    a(f"v_pk_mul_f32 v[0:1], {pk(c+i)}, {pk(c+i)}\nv_pk_mul_f32 v[2:3], {pk(c+i+2)}, {pk(c+i+2)}")
                    a(f"v_pk_fma_f32 v[0:1], v[0:1], s[34:35], v[26:27]\nv_pk_fma_f32 v[2:3], v[2:3], s[34:35], v[26:27]")
                    a(f"v_pk_mul_f32 {pk(c+i)}, v[0:1], {pk(c+i)}\nv_pk_mul_f32 {pk(c+i+2)}, v[2:3], {pk(c+i+2)}")
                for i in range(8): a(f"v_exp_f32 v{c+i}, v{c+i}")
                for i in range(0, 8, 2): a(f"v_pk_add_f32 {pk(c+i)}, {pk(c+i)}, v[28:29]")
                for i in range(8): a(f"v_rcp_f32 v{c+i}, v{c+i}")
                for i in range(0, 8, 2): a(f"v_pk_mul_f32 {pk(c+i)}, {pk(c+i)}, {pk(c+8+i)}")
                for i in range(4): a(f"v_cvt_pk_bf16_f32 v{c+8+i}, v{c+2*i}, v{c+2*i+1}")
                a(f"buffer_store_dwordx4 {v(c+8,4)}, v{k.VA+tb}, s[12:15], s32 offen sc1")
                if tb == 0 and j < 6: rdq(j + 1, 1, c)
            a(f"s_add_u32 s32, s32, {SLAB}")
    return k_gemm("gu_kernel", 1024, 2, 7, EXP.get("gDA", 4), EXP.get("gR", 4), 2, EXP.get("gPEEL", 4), EXP.get("gCAP", 6), EXP.get("gINIT", 11),
                  "gu", WS_Y2, "contig", False, ["tok"]*7, 8, 32, 2, 4,
                  [(40, P_WG), (42, P_WU), (44, P_WS)], setup, epi, 7168, big=True, xlds=2048, nxa=37)

NSIDE = 288
def nside(): return 0 if EXP.get('noside') else (224 if EXP.get('gpre', 0) else 288)
def attn_side(k, nw):
    a = k.a
    a("attn_side:")
    if nw == 4 and EXP.get("sprio", 1): a("s_setprio 3")
    load_ptrs(a, [(40, P_C), (42, P_WMOD), (44, P_WS), (46, P_WG), (48, P_WU), (62, P_WO), (64, P_WD)])
    wave_lane(a)
    a(f"""
    s_sub_u32 s27, s2, 256
    s_lshl_b32 s32, s27, {(nw*64).bit_length()-1}
    v_add_u32 v3, s32, v0
    s_waitcnt lgkmcnt(0)""")
    def mid():
        strip_copy_issue(a, 3, 62, 1024, 2048, 1, 0, 108)
        strip_copy_issue(a, 3, 64, 3584, 2048, 1, 0 if EXP.get('gpre', 0) else 16384, 116)
        a("s_waitcnt vmcnt(0)")
        strip_copy_store(a, 44, WS_WO3, 1024 * 512, 108)
        strip_copy_store(a, 44, WS_WD3, 3584 * 512, 116)
    a(f"""
    s_and_b32 s32, s27, 1
    s_lshr_b32 s33, s27, 1
    s_lshl_b32 s52, s32, 9
    s_cmp_ge_u32 s33, 112
    s_cbranch_scc1 attn_side_g
    s_mov_b32 s51, 7168
    s_mul_i32 s53, s32, {2*7168*4}
    s_lshl_b32 s34, s33, 8
    s_add_u32 s53, s53, s34
    s_mov_b32 s54, {7168*4}
    s_cmp_ge_u32 s33, 56
    s_cselect_b32 s46, s48, s46
    s_cselect_b32 s47, s49, s47
    s_cselect_b32 s34, 56, 0
    s_sub_u32 s33, s33, s34
    s_mul_i32 s50, s52, s51
    s_lshl_b32 s34, s33, 7
    s_add_u32 s50, s50, s34""")
    srd(a, 8, 46, 0, 1024 * 7168); srd(a, 12, 44, WS_MODP, KS * 6144 * 4); srd(a, 16, 44, WS_UV, KS * 2 * 7168 * 4)
    skinny(k, "u", "pair", "", EXP.get("pace", 3 if nw == 4 else 1), nw=nw, mid=mid)
    if EXP.get("gpre", 0):
        a("attn_side_g:")
        return
    a(f"""
attn_side_g:
    s_sub_u32 s33, s33, {112-32}
    s_cmp_ge_u32 s33, 48
    s_cselect_b32 s34, 32, 0
    s_add_u32 s33, s33, s34
    s_mov_b32 s51, 12288
    s_mul_i32 s50, s52, s51
    s_lshl_b32 s34, s33, 7
    s_add_u32 s50, s50, s34
    s_mul_i32 s53, s32, {6144*4}
    s_lshl_b32 s34, s33, 8
    s_add_u32 s53, s53, s34
    s_mov_b32 s54, 0""")
    srd(a, 8, 42, 0, 1024 * 12288); srd(a, 12, 40, 0, 2048); srd(a, 16, 44, WS_MODP, KS * 6144 * 4)
    skinny(k, "g", "silu", " nt", EXP.get("pace", 3 if nw == 4 else 1), nw=nw, mid=mid)


def k_attn():
    R = 4; ST = 16384
    k = Kernel("attn_kernel", 256 + nside(), 512, SK_LDS, 128); a = k.a
    Q0, Q1, ONES, NEG, SA, SB, O, L, P0, P1, K0, K1, V0, V1, T = 4, 8, 12, 16, 32, 48, 64, 80, 84, 88, 92, 96, 100, 104, 108
    guard(k)
    a("s_cmp_ge_u32 s2, 256\ns_cbranch_scc1 attn_side")
    stamp(k, 0)
    load_ptrs(a, [(44, P_WS), (46, P_WO), (48, P_WD), (52, P_X)])
    if EXP.get("aprio", 1): a("s_setprio 2")
    a(f"""
    s_and_b32 s32, s2, 7
    s_lshr_b32 s33, s2, 3
    s_and_b32 s34, s32, 3
    s_lshl_b32 s34, s34, 3
    s_and_b32 s35, s33, 7
    s_add_u32 s24, s34, s35            ; head
    s_lshr_b32 s34, s32, 2
    s_lshl_b32 s34, s34, 2
    s_lshr_b32 s35, s33, 3
    s_add_u32 s25, s34, s35
    v_lshrrev_b32 v3, 6, v0
    v_and_b32 v1, 63, v0
    v_readfirstlane_b32 s26, v3
    v_lshlrev_b32 v2, 4, v1
    s_lshl_b32 s27, s25, 3
    s_add_u32 s27, s27, s26
    s_lshl_b32 s28, s24, 18
    s_lshl_b32 s29, s26, 11            ; wave * 2048
    s_lshl_b32 s32, s24, 6
    s_add_u32 s32, s32, s27
    s_lshl_b32 s32, s32, 11            ; Q offset
    s_waitcnt lgkmcnt(0)""")
    srd(a, 4, 44, WS_Q, 4 << 20)
    a(f"s_add_u32 s8, s44, s28\ns_addc_u32 s9, s45, 0\ns_add_u32 s8, s8, {WS_KV}\ns_addc_u32 s9, s9, 0\ns_mov_b32 s10, 0x40000\ns_mov_b32 s11, 0x20000")
    a("s_mov_b32 s30, s29")
    def dma(slot):
        return [f"s_add_u32 m0, s29, {slot*ST}", "buffer_load_dwordx4 v2, s[8:11], s30 offen lds",
                "buffer_load_dwordx4 v2, s[8:11], s30 offen offset:1024 lds", f"s_add_u32 s30, s30, {ST}"]
    a(f"buffer_load_dwordx4 {v(Q0,4)}, v2, s[4:7], s32 offen\nbuffer_load_dwordx4 {v(Q1,4)}, v2, s[4:7], s32 offen offset:1024")
    a(f"buffer_load_dwordx4 {v(K0,4)}, v2, s[8:11], 0 offen\nbuffer_load_dwordx4 {v(K1,4)}, v2, s[8:11], 0 offen offset:1024")
    for st in range(R - 1):
        for x in dma(st): a(x)
    srd(a, 12, 44, WS_O, 64 * SLAB)
    frag_off(a, 3, 27, 1, T)
    code_srd(k, 92, "attn_epi")
    a(f"v_lshlrev_b32 v{T+4}, 7, v0")
    if EXP.get("apf", 1):
        srd(a, 16, 46, 0, 1024 * 2048); srd(a, 20, 48, 0, 3584 * 2048)
        a(f"""
        s_lshl_b32 s32, s2, 3
        s_add_u32 s32, s32, s26
        s_mul_i32 s50, s32, {7*128}
        s_lshl_b32 s51, s32, 8
        v_lshlrev_b32 v{T+6}, 7, v1
        v_mov_b32 v{T+8}, 0x80000000
        v_cmp_gt_u32 vcc, 2, v1
        v_cndmask_b32 v{T+7}, v{T+8}, v{T+6}, vcc
        v_cmp_gt_u32 vcc, 4, v1
        v_cndmask_b32 v{T+9}, v{T+8}, v{T+6}, vcc
        s_lshl_b32 s54, s32, 9
        v_cmp_gt_u32 vcc, 7, v1
        v_cndmask_b32 v{T+6}, v{T+8}, v{T+6}, vcc""")
        srd(a, 56, 52, 0, 2048 * 2048)
    a(f"""
    v_lshrrev_b32 v{T}, 4, v1
    v_lshrrev_b32 v{T+1}, 2, v1
    v_xor_b32 v{T}, v{T}, v{T+1}
    v_and_b32 v{T}, 1, v{T}
    v_cmp_eq_u32 vcc, 0, v{T}
    v_mov_b32 v{T+1}, 0x3f803f80
    v_cndmask_b32 v{ONES}, 0, v{T+1}, vcc""")
    for i in range(1, 4): a(f"v_mov_b32 v{ONES+i}, v{ONES}")
    for i in range(16): a(f"v_mov_b32 v{O+i}, 0")
    for i in range(4): a(f"v_mov_b32 v{L+i}, 0\nv_mov_b32 v{P1+i}, 0\nv_mov_b32 v{V1+i}, 0")
    a(f"""
    s_waitcnt vmcnt({2*(R-1)})
    v_mfma_f32_32x32x16_bf16 {v(SA,16)}, {v(K0,4)}, {v(Q0,4)}, 0
    v_mfma_f32_32x32x16_bf16 {v(SA,16)}, {v(K1,4)}, {v(Q1,4)}, {v(SA,16)}""")
    def rowmax(S, m):
        for i in range(0, 16, 2): a(f"v_max3_f32 v{m}, v{S+i}, v{S+i+1}, v{m}")
    def negbcast(m):
        a(f"v_mov_b32 v{m+1}, v{m}\nv_permlane32_swap_b32 v{m}, v{m+1}\nv_max_f32 v{m}, v{m}, v{m+1}")
        for i in range(16): a(f"v_sub_f32 v{NEG+i}, 0, v{m}")
    a(f"v_mov_b32 v{T}, v{SA}")
    rowmax(SA, T); negbcast(T)
    for i in range(16): a(f"v_sub_f32 v{SA+i}, v{SA+i}, v{T}")
    a(f"""
    s_waitcnt vmcnt({2*(R-2)})
    s_barrier
    ds_read_b128 {v(K0,4)}, v2 offset:4096
    ds_read_b128 {v(K1,4)}, v2 offset:5120
    ds_read_b128 {v(V0,4)}, v2 offset:2048""")
    cnt = Cnt()
    def it(j, E, site):
        def W(c, nm, tags):
            cnt.wait(c, (site, nm), tags)
            if E: E(cnt.text(c, (site, nm)))
        def X(x):
            if E: E(x)
        def RD(reg, blk, piece):
            X(f"ds_read_b128 {v(reg,4)}, v2 offset:{(blk % (4*R))*4096 + piece*1024}")
            cnt.issue("lg", (piece, blk))
        S, Sn = (SA, SB) if j % 2 == 0 else (SB, SA)
        e = lambda i: X(f"v_exp_f32 v{S+i}, v{S+i}")
        c = lambda i: X(f"v_cvt_pk_bf16_f32 v{P0+i}, v{S+2*i}, v{S+2*i+1}")
        W("lg", "k", {(0, j + 1), (3, j - 1), (1, j + 1)})
        X(f"v_mfma_f32_32x32x16_bf16 {v(Sn,16)}, {v(K0,4)}, {v(Q0,4)}, {v(NEG,16)}")
        e(0); e(1); e(2)
        X(f"v_mfma_f32_32x32x16_bf16 {v(O,16)}, {v(V1,4)}, {v(P1,4)}, {v(O,16)}")
        RD(V1, j, 3)
        e(3); c(0); e(4); c(1)
        X(f"v_mfma_f32_32x32x16_bf16 {v(Sn,16)}, {v(K1,4)}, {v(Q1,4)}, {v(Sn,16)}")
        if j % 4 == 2:
            W("vm", "bar", {("B", j // 4 + 1)})
            X("s_barrier")
        RD(K0, j + 2, 0); RD(K1, j + 2, 1)
        e(5); e(6); e(7)
        X(f"v_mfma_f32_16x16x32_bf16 {v(L,4)}, {v(ONES,4)}, {v(P1,4)}, {v(L,4)}")
        if j % 4 == 2:
            d = dma((j // 4 - 1) % R)
            X(d[0])
        c(2); c(3); e(8); e(9)
        W("lg", "v0", {(2, j)})
        X(f"v_mfma_f32_32x32x16_bf16 {v(O,16)}, {v(V0,4)}, {v(P0,4)}, {v(O,16)}")
        RD(V0, j + 1, 2)
        if j % 4 == 2:
            X(d[1]); X(d[2]); X(d[3])
            cnt.issue("vm", ("B", j // 4 - 1 + R)); cnt.issue("vm", ("B", j // 4 - 1 + R))
        if j % 16 == 3:
            X(f"buffer_load_dword v{T+5}, v{T+4}, s[92:95], 0 offen"); cnt.issue("vm", ("C",))
        if EXP.get("apf", 1) and j % 16 == 7:
            X(f"buffer_load_dword v{T+5}, v{T+6}, s[20:23], s50 offen\ns_add_u32 s50, s50, {2048*7*128}"); cnt.issue("vm", ("C",))
        if EXP.get("apf", 1) and j % 16 == 15:
            X(f"buffer_load_dword v{T+5}, v{T+9}, s[56:59], s54 offen\ns_add_u32 s54, s54, {2048*512}"); cnt.issue("vm", ("C",))
        if EXP.get("apf", 1) and j % 16 == 11:
            X(f"buffer_load_dword v{T+5}, v{T+7}, s[16:19], s51 offen\ns_add_u32 s51, s51, {2048*256}"); cnt.issue("vm", ("C",))
        e(10); e(11); c(4); e(12)
        X(f"v_mfma_f32_16x16x32_bf16 {v(L,4)}, {v(ONES,4)}, {v(P0,4)}, {v(L,4)}")
        c(5); e(13); e(14); e(15); c(6); c(7)
    def preload():
        cnt.reset()
        for st in range(R - 1):
            cnt.issue("vm", ("B", st)); cnt.issue("vm", ("B", st))
        for tg in [(0, 1), (1, 1), (2, 0)]: cnt.issue("lg", tg)
    preload()
    for j in range(64): it(j, None, j % 16)
    preload()
    stamp(k, 1)
    a("s_mov_b32 s31, 4\n.p2align 6\nattn_loop:")
    for j in range(16): it(j, a, j)
    a("s_sub_u32 s31, s31, 1\ns_cmp_lg_u32 s31, 0\ns_cbranch_scc1 attn_loop\nattn_epi:")
    stamp(k, 2)
    a(f"""
    s_waitcnt lgkmcnt(0)
    v_mfma_f32_32x32x16_bf16 {v(O,16)}, {v(V1,4)}, {v(P1,4)}, {v(O,16)}
    v_mfma_f32_16x16x32_bf16 {v(L,4)}, {v(ONES,4)}, {v(P1,4)}, {v(L,4)}
    v_mov_b32 v{T}, 0""")
    for i in range(16): a(f"v_fmac_f32 v{T}, 0, v{O+i}")
    a(f"""
    v_add_f32 v{T}, v{T}, v{L}
    v_cmp_ngt_f32 vcc, {fx(2.0**40)}, v{T}
    s_cbranch_vccnz attn_slow
attn_fin:
    v_rcp_f32 v{T}, v{L}
    s_mul_i32 s32, s24, {2*SLAB}
    s_add_u32 s33, s32, {SLAB}""")
    for i in range(16): a(f"v_mul_f32 v{O+i}, v{O+i}, v{T}")
    for i in range(8): a(f"v_cvt_pk_bf16_f32 v{O+i}, v{O+2*i}, v{O+2*i+1}")
    a(f"buffer_store_dwordx4 {v(O,4)}, v3, s[12:15], s32 offen sc1\nbuffer_store_dwordx4 {v(O+4,4)}, v3, s[12:15], s33 offen sc1")
    stamp(k, 3)
    prof_out(k, 4, 4, 26)
    a("s_endpgm")
    a(f"""
attn_slow:
    v_mov_b32 v{T}, 0xff800000
    s_mov_b32 s30, 0
attn_slow1:
    buffer_load_dwordx4 {v(K0,4)}, v2, s[8:11], s30 offen
    buffer_load_dwordx4 {v(K1,4)}, v2, s[8:11], s30 offen offset:1024
    s_waitcnt vmcnt(0)
    v_mfma_f32_32x32x16_bf16 {v(SA,16)}, {v(K0,4)}, {v(Q0,4)}, 0
    v_mfma_f32_32x32x16_bf16 {v(SA,16)}, {v(K1,4)}, {v(Q1,4)}, {v(SA,16)}""")
    rowmax(SA, T)
    a("s_add_u32 s30, s30, 4096\ns_cmp_lt_u32 s30, 0x40000\ns_cbranch_scc1 attn_slow1")
    negbcast(T)
    for i in range(16): a(f"v_mov_b32 v{O+i}, 0")
    for i in range(4): a(f"v_mov_b32 v{L+i}, 0")
    a(f"""
    s_mov_b32 s30, 0
attn_slow2:
    buffer_load_dwordx4 {v(K0,4)}, v2, s[8:11], s30 offen
    buffer_load_dwordx4 {v(K1,4)}, v2, s[8:11], s30 offen offset:1024
    buffer_load_dwordx4 {v(V0,4)}, v2, s[8:11], s30 offen offset:2048
    buffer_load_dwordx4 {v(V1,4)}, v2, s[8:11], s30 offen offset:3072
    s_waitcnt vmcnt(0)
    v_mfma_f32_32x32x16_bf16 {v(SA,16)}, {v(K0,4)}, {v(Q0,4)}, {v(NEG,16)}
    v_mfma_f32_32x32x16_bf16 {v(SA,16)}, {v(K1,4)}, {v(Q1,4)}, {v(SA,16)}""")
    for i in range(16): a(f"v_exp_f32 v{SA+i}, v{SA+i}")
    for i in range(8): a(f"v_cvt_pk_bf16_f32 v{P0+i}, v{SA+2*i}, v{SA+2*i+1}")
    a(f"""
    v_mfma_f32_32x32x16_bf16 {v(O,16)}, {v(V0,4)}, {v(P0,4)}, {v(O,16)}
    v_mfma_f32_32x32x16_bf16 {v(O,16)}, {v(V1,4)}, {v(P1,4)}, {v(O,16)}
    v_mfma_f32_16x16x32_bf16 {v(L,4)}, {v(ONES,4)}, {v(P0,4)}, {v(L,4)}
    v_mfma_f32_16x16x32_bf16 {v(L,4)}, {v(ONES,4)}, {v(P1,4)}, {v(L,4)}
    s_add_u32 s30, s30, 4096
    s_cmp_lt_u32 s30, 0x40000
    s_cbranch_scc1 attn_slow2
    s_branch attn_fin""")
    attn_side(k, 8)
    finish(k)
    return k


def k_attn4():
    R = 4; ST = 16384; SM = EXP.get("smf", 1)
    k = Kernel("attn_kernel", 256 + nside(), 256, SK_LDS, 192); a = k.a
    Q, ONES, NEG, S, O, L, P, K0, K1, V0, V1, T = 8, 24, 32, 64, 96, 128, 136, 152, 156, 160, 164, 176
    IDX = 28
    guard(k)
    a("s_cmp_ge_u32 s2, 256\ns_cbranch_scc1 attn_side")
    stamp(k, 0)
    load_ptrs(a, [(44, P_WS), (46, P_WO), (48, P_WD), (52, P_X)])
    a(f"""
    s_and_b32 s32, s2, 7
    s_lshr_b32 s33, s2, 3
    s_and_b32 s34, s32, 3
    s_lshl_b32 s34, s34, 3
    s_and_b32 s35, s33, 7
    s_add_u32 s24, s34, s35            ; head
    s_lshr_b32 s34, s32, 2
    s_lshl_b32 s34, s34, 2
    s_lshr_b32 s35, s33, 3
    s_add_u32 s25, s34, s35
    v_lshrrev_b32 v3, 6, v0
    v_and_b32 v1, 63, v0
    v_readfirstlane_b32 s26, v3
    v_lshlrev_b32 v2, 4, v1
    s_lshl_b32 s27, s25, 2
    s_add_u32 s27, s27, s26
    s_lshl_b32 s27, s27, 1
    s_lshl_b32 s28, s24, 18
    s_lshl_b32 s29, s26, 12            ; wave * 4096
    s_lshl_b32 s32, s24, 6
    s_add_u32 s32, s32, s27
    s_lshl_b32 s32, s32, 11            ; Q offset
    s_waitcnt lgkmcnt(0)""")
    srd(a, 4, 44, WS_Q, 4 << 20)
    a(f"s_add_u32 s8, s44, s28\ns_addc_u32 s9, s45, 0\ns_add_u32 s8, s8, {WS_KV}\ns_addc_u32 s9, s9, 0\ns_mov_b32 s10, 0x40000\ns_mov_b32 s11, 0x20000")
    a("s_mov_b32 s30, s29")
    def dma(slot):
        return [f"s_add_u32 m0, s29, {slot*ST}"] + [f"buffer_load_dwordx4 v2, s[8:11], s30 offen offset:{1024*i} lds" for i in range(4)] + [f"s_add_u32 s30, s30, {ST}"]
    a(f"buffer_load_dwordx4 {v(K0,4)}, v2, s[8:11], 0 offen\nbuffer_load_dwordx4 {v(K1,4)}, v2, s[8:11], 0 offen offset:1024")
    for i in range(4): a(f"buffer_load_dwordx4 {v(Q+4*i,4)}, v2, s[4:7], s32 offen offset:{1024*i}")
    for x in dma(0): a(x)
    srd(a, 12, 44, WS_O, 64 * SLAB)
    frag_off(a, 3, 27, 1, T)
    a("s_add_u32 s33, s27, 1")
    frag_off(a, 4, 33, 1, T)
    code_srd(k, 92, "attn_epi")
    a(f"v_lshlrev_b32 v{T+4}, 7, v0")
    srd(a, 16, 46, 0, 1024 * 2048); srd(a, 20, 48, 0, 3584 * 2048); srd(a, 56, 52, 0, 2048 * 2048)
    a(f"""
    s_lshl_b32 s32, s2, 2
    s_add_u32 s32, s32, s26
    s_mul_i32 s50, s32, {14*128}
    s_lshl_b32 s51, s32, 9
    s_lshl_b32 s54, s32, 10
    v_lshlrev_b32 v{T+6}, 7, v1
    v_mov_b32 v{T+8}, 0x80000000
    v_cmp_gt_u32 vcc, 4, v1
    v_cndmask_b32 v{T+7}, v{T+8}, v{T+6}, vcc
    v_cmp_gt_u32 vcc, 8, v1
    v_cndmask_b32 v{T+9}, v{T+8}, v{T+6}, vcc
    v_cmp_gt_u32 vcc, 14, v1
    v_cndmask_b32 v{T+6}, v{T+8}, v{T+6}, vcc""")
    if SM:
        a(f"""
        v_bfe_u32 v{T}, v1, 2, 1
        v_cmp_eq_u32 vcc, 0, v{T}
        v_mov_b32 v{T+1}, 0x3f803f80
        v_cndmask_b32 v{ONES}, 0, v{T+1}, vcc
        v_mov_b32 v{ONES+1}, v{ONES}
        v_xor_b32 v{ONES+2}, v{T+1}, v{ONES}
        v_mov_b32 v{ONES+3}, v{ONES+2}
        v_and_b32 v{T}, 1, v1
        v_mul_u32_u24 v{T}, 0xaaaa, v{T}
        v_add_u32 v{IDX}, 0x4444, v{T}""")
    else:
        a(f"""
        v_lshrrev_b32 v{T}, 4, v1
        v_lshrrev_b32 v{T+1}, 2, v1
        v_xor_b32 v{T}, v{T}, v{T+1}
        v_and_b32 v{T}, 1, v{T}
        v_cmp_eq_u32 vcc, 0, v{T}
        v_mov_b32 v{T+1}, 0x3f803f80
        v_cndmask_b32 v{ONES}, 0, v{T+1}, vcc""")
        for i in range(1, 4): a(f"v_mov_b32 v{ONES+i}, v{ONES}")
    for i in range(32): a(f"v_mov_b32 v{O+i}, 0")
    for i in range(8): a(f"v_mov_b32 v{L+i}, 0\nv_mov_b32 v{P+8+i}, 0\nv_mov_b32 v{V0+8+i}, 0")
    def lsum(w, p):
        if SM: return [f"v_smfmac_f32_16x16x64_bf16 {v(L+4*w,4)}, {v(ONES,4)}, {v(p,8)}, v{IDX}"]
        return [f"v_mfma_f32_16x16x32_bf16 {v(L+4*w,4)}, {v(ONES,4)}, {v(p+4*g,4)}, {v(L+4*w,4)}" for g in range(2)]
    a("s_waitcnt vmcnt(4)")
    for w in range(2):
        a(f"v_mfma_f32_32x32x16_bf16 {v(S+16*w,16)}, {v(K0,4)}, {v(Q+8*w,4)}, 0")
        a(f"v_mfma_f32_32x32x16_bf16 {v(S+16*w,16)}, {v(K1,4)}, {v(Q+8*w+4,4)}, {v(S+16*w,16)}")
    for st in range(1, R - 1):
        for x in dma(st): a(x)
    def rowmax(Sx, m):
        for i in range(0, 16, 2): a(f"v_max3_f32 v{m}, v{Sx+i}, v{Sx+i+1}, v{m}")
    def negbcast(m, w):
        a(f"v_mov_b32 v{m+1}, v{m}\nv_permlane32_swap_b32 v{m}, v{m+1}\nv_max_f32 v{m}, v{m}, v{m+1}")
        for i in range(16): a(f"v_sub_f32 v{NEG+16*w+i}, 0, v{m}")
    for w in range(2):
        a(f"v_mov_b32 v{T}, v{S+16*w}")
        rowmax(S + 16 * w, T); negbcast(T, w)
        if w == 0:
            for i in range(16): a(f"v_sub_f32 v{S+i}, v{S+i}, v{T}")
    a(f"""
    s_sub_u32 s30, s30, {ST}
    s_waitcnt vmcnt({4*(R-2)})
    s_barrier
    ds_read_b128 {v(V0,4)}, v2 offset:2048
    ds_read_b128 {v(V1,4)}, v2 offset:3072""")
    cnt = Cnt()
    def ph(n, E, site):
        def W(c, nm, tags):
            cnt.wait(c, (site, nm), tags)
            if E: E(cnt.text(c, (site, nm)))
        def X(x):
            if E: E(x)
        def RD(reg, blk, piece):
            X(f"ds_read_b128 {v(reg,4)}, v2 offset:{(blk % (4*R))*4096 + piece*1024}")
            cnt.issue("lg", (piece, blk))
        def VM(x, tag):
            X(x); cnt.issue("vm", tag)
        j = n >> 1; w = n & 1; o = 1 - w
        Sc, Sn, Pc, Pp = S + 16 * w, S + 16 * o, P + 8 * w, P + 8 * o
        vb = (n - 1) >> 1
        Vr = V0 + 8 * (vb % 2); Vw = V0 + 8 * ((j + 1) % 2)
        e = lambda *l: [X(f"v_exp_f32 v{Sc+i}, v{Sc+i}") for i in l]
        c = lambda *l: [X(f"v_cvt_pk_bf16_f32 v{Pc+i}, v{Sc+2*i}, v{Sc+2*i+1}") for i in l]
        d = dma((n // 8 - 1) % R) if n % 8 in (5, 6, 7) else None
        dd = n % 8 == 7
        tg = ("B", n // 8 - 1 + R)
        X(f"v_mfma_f32_32x32x16_bf16 {v(Sn,16)}, {v(K0,4)}, {v(Q+8*o,4)}, {v(NEG+16*o,16)}")
        if w == 0: RD(K0, j + 1, 0)
        else: W("lg", "k1", {(1, j + 1)})
        e(0, 1, 2, 3); c(0)
        X(f"v_mfma_f32_32x32x16_bf16 {v(Sn,16)}, {v(K1,4)}, {v(Q+8*o+4,4)}, {v(Sn,16)}")
        if w == 0: RD(K1, j + 1, 1)
        if dd: VM(d[1], tg); VM(d[2], tg)
        if n % 8 == 1: X(f"s_add_u32 s30, s30, {ST}")
        e(4, 5, 6); c(1, 2)
        X(f"v_mfma_f32_32x32x16_bf16 {v(O+16*o,16)}, {v(Vr,4)}, {v(Pp,4)}, {v(O+16*o,16)}")
        if n % 8 == 5: W("vm", "bar", {("B", n // 8 + 1)})
        if n % 8 == 6: X(d[0])
        if dd: VM(d[3], tg); VM(d[4], tg)
        e(7, 8, 9); c(3, 4)
        X(f"v_mfma_f32_32x32x16_bf16 {v(O+16*o,16)}, {v(Vr+4,4)}, {v(Pp+4,4)}, {v(O+16*o,16)}")
        if w == 0: W("lg", "k0", {(0, j + 1), (2, j), (3, j)})
        if n % 8 == 5: X("s_barrier")
        if n % 32 == 23: VM(f"buffer_load_dword v{T+5}, v{T+4}, s[92:95], 0 offen", ("C",))
        if n % 32 == 7: VM(f"buffer_load_dword v{T+5}, v{T+6}, s[20:23], s50 offen", ("C",))
        if n % 32 == 15:
            VM(f"buffer_load_dword v{T+5}, v{T+7}, s[16:19], s51 offen", ("C",))
            VM(f"buffer_load_dword v{T+5}, v{T+9}, s[56:59], s54 offen", ("C",))
        if n % 32 == 17: X(f"s_add_u32 s50, s50, {1024*14*128}")
        if n % 32 == 25: X(f"s_add_u32 s51, s51, {1024*512}")
        if n % 32 == 27: X(f"s_add_u32 s54, s54, {1024*1024}")
        e(10, 11, 12); c(5)
        ls = lsum(o, Pp)
        X(ls[0])
        RD(Vw + 4 * w, j + 1, 2 + w)
        e(13)
        if len(ls) > 1: X(ls[1])
        e(14, 15); c(6, 7)
    def preload():
        cnt.reset()
        for st in range(R - 1):
            for i in range(4): cnt.issue("vm", ("B", st))
        cnt.issue("lg", (2, 0)); cnt.issue("lg", (3, 0))
    preload()
    for n in range(128): ph(n, None, n % 32)
    preload()
    stamp(k, 1)
    a("s_mov_b32 s31, 4\n.p2align 6\nattn_loop:")
    for n in range(32): ph(n, a, n)
    a("s_sub_u32 s31, s31, 1\ns_cmp_lg_u32 s31, 0\ns_cbranch_scc1 attn_loop\nattn_epi:")
    stamp(k, 2)
    a(f"""
    v_mfma_f32_32x32x16_bf16 {v(O+16,16)}, {v(V0+8,4)}, {v(P+8,4)}, {v(O+16,16)}
    v_mfma_f32_32x32x16_bf16 {v(O+16,16)}, {v(V1+8,4)}, {v(P+12,4)}, {v(O+16,16)}""")
    for x in lsum(1, P + 8): a(x)
    a(f"v_mov_b32 v{T}, 0\nv_mov_b32 v{T+1}, 0")
    for i in range(32): a(f"v_fmac_f32 v{T+i%2}, 0, v{O+i}")
    def ltot():
        if SM: a(f"v_add_f32 v{L}, v{L}, v{L+1}\nv_add_f32 v{L+4}, v{L+4}, v{L+5}")
    ltot()
    a(f"""
    v_add_f32 v{T}, v{T}, v{T+1}
    v_add_f32 v{T}, v{T}, v{L}
    v_add_f32 v{T}, v{T}, v{L+4}
    v_cmp_ngt_f32 vcc, {fx(2.0**40)}, v{T}
    s_cbranch_vccnz attn_slow
attn_fin:
    v_rcp_f32 v{T}, v{L}
    v_rcp_f32 v{T+1}, v{L+4}
    s_mul_i32 s32, s24, {2*SLAB}
    s_add_u32 s33, s32, {SLAB}""")
    for w in range(2):
        Ow = O + 16 * w
        for i in range(16): a(f"v_mul_f32 v{Ow+i}, v{Ow+i}, v{T+w}")
        for i in range(8): a(f"v_cvt_pk_bf16_f32 v{Ow+i}, v{Ow+2*i}, v{Ow+2*i+1}")
        a(f"buffer_store_dwordx4 {v(Ow,4)}, v{3+w}, s[12:15], s32 offen sc1\nbuffer_store_dwordx4 {v(Ow+4,4)}, v{3+w}, s[12:15], s33 offen sc1")
    stamp(k, 3)
    prof_out(k, 4, 4, 26)
    a("s_endpgm")
    a(f"""
attn_slow:
    v_mov_b32 v{T}, 0xff800000
    v_mov_b32 v{T+2}, 0xff800000
    s_mov_b32 s30, 0
    s_waitcnt lgkmcnt(0)
attn_slow1:
    buffer_load_dwordx4 {v(K0,4)}, v2, s[8:11], s30 offen
    buffer_load_dwordx4 {v(K1,4)}, v2, s[8:11], s30 offen offset:1024
    s_waitcnt vmcnt(0)""")
    for w in range(2):
        a(f"v_mfma_f32_32x32x16_bf16 {v(S+16*w,16)}, {v(K0,4)}, {v(Q+8*w,4)}, 0")
        a(f"v_mfma_f32_32x32x16_bf16 {v(S+16*w,16)}, {v(K1,4)}, {v(Q+8*w+4,4)}, {v(S+16*w,16)}")
    for w in range(2): rowmax(S + 16 * w, T + 2 * w)
    a("s_add_u32 s30, s30, 4096\ns_cmp_lt_u32 s30, 0x40000\ns_cbranch_scc1 attn_slow1")
    for w in range(2): negbcast(T + 2 * w, w)
    for i in range(32): a(f"v_mov_b32 v{O+i}, 0")
    for i in range(8): a(f"v_mov_b32 v{L+i}, 0")
    a(f"""
    s_mov_b32 s30, 0
attn_slow2:
    buffer_load_dwordx4 {v(K0,4)}, v2, s[8:11], s30 offen
    buffer_load_dwordx4 {v(K1,4)}, v2, s[8:11], s30 offen offset:1024
    buffer_load_dwordx4 {v(V0,4)}, v2, s[8:11], s30 offen offset:2048
    buffer_load_dwordx4 {v(V1,4)}, v2, s[8:11], s30 offen offset:3072
    s_waitcnt vmcnt(0)""")
    for w in range(2):
        a(f"v_mfma_f32_32x32x16_bf16 {v(S+16*w,16)}, {v(K0,4)}, {v(Q+8*w,4)}, {v(NEG+16*w,16)}")
        a(f"v_mfma_f32_32x32x16_bf16 {v(S+16*w,16)}, {v(K1,4)}, {v(Q+8*w+4,4)}, {v(S+16*w,16)}")
    for i in range(32): a(f"v_exp_f32 v{S+i}, v{S+i}")
    for i in range(16): a(f"v_cvt_pk_bf16_f32 v{P+i}, v{S+2*i}, v{S+2*i+1}")
    for w in range(2):
        a(f"v_mfma_f32_32x32x16_bf16 {v(O+16*w,16)}, {v(V0,4)}, {v(P+8*w,4)}, {v(O+16*w,16)}")
        a(f"v_mfma_f32_32x32x16_bf16 {v(O+16*w,16)}, {v(V1,4)}, {v(P+8*w+4,4)}, {v(O+16*w,16)}")
        for x in lsum(w, P + 8 * w): a(x)
    a("s_add_u32 s30, s30, 4096\ns_cmp_lt_u32 s30, 0x40000\ns_cbranch_scc1 attn_slow2")
    ltot()
    a("s_branch attn_fin")
    attn_side(k, 4)
    finish(k)
    return k

def build(kernels, path, verbose=False):
    hdr = open("adaLN_cond__mha_block__geglu_ffn__prompt.s.ref").read().split("; Override launch")[0]
    out = hdr
    for k in kernels:
        out += f"; @launch kernel={k.name} grid=({k.grid},1,1) block=({k.block},1,1) lds={k.lds}\n"
    out += '.amdgcn_target "amdgcn-amd-amdhsa--gfx950"\n'
    for k in kernels:
        rep = []
        out += k.text(rep)
        if verbose:
            print(k.name, "vgpr", k.nv, "agpr", k.na, "lds", k.lds, "nops inserted:", len(rep))
            for r in rep:
                if "m0" not in r[1]: print("   ", r)
    out += '.section .rodata,"a"\n'
    for k in kernels: out += k.desc()
    open(path, "w").write(out)

CHECK = {"x2": "frag", "h2": False, "h1": False, "slab": SLAB}
def all_kernels():
    global QPRE
    QPRE = EXP.get("qpre", 1024)
    if EXP.get("fuse1", 1):
        ORDER[:] = ["pre_kernel", "qkv_kernel", "attn_kernel", "out_kernel", "gu_kernel", "down_kernel"]
        return [k_pre(), k_qkv(), k_attn4() if EXP.get('a4', 1) else k_attn(), k_out(), k_gu(), k_down()]
    ORDER[:] = ["pre_kernel", "ln1_kernel", "qkv_kernel", "attn_kernel", "out_kernel", "gu_kernel", "down_kernel"]
    return [k_pre(), k_ln("ln1_kernel", P_X, WS_H1, 0, 1), k_qkv(), k_attn(), k_out(), k_gu(), k_down()]

if __name__ == "__main__":
    vb = False
    for x in sys.argv[2:]:
        if x == "prof": PROF = True
        elif x == "verbose": vb = True
        else:
            kk, _, vv = x.partition("="); EXP[kk] = int(vv) if vv else 1
    build(all_kernels(), sys.argv[1] if len(sys.argv) > 1 else "adaLN_cond__mha_block__geglu_ffn__prompt.s", verbose=vb)
```

```python
import sys, math
from asmlib import *
import g2
from g2 import (SLAB, WS_MODP, WS_UV, WS_STAT, WS_WQ3, WS_WO3, WS_WD3, WS_H1, WS_Q, WS_KV, WS_O, WS_X2, WS_Y2, WS_ACT, WS_PROF, KS,
                P_X, P_WQKV, P_WO, P_WG, P_WU, P_WD, P_C, P_WMOD, P_OUT, P_DBG, P_WS, LOG2E, EXP, KID, fx, Kernel, load_ptrs, srd,
                guard, finish, unpack, rbf, phys_line, code_srd, wave_lane)
WS_FLAG = 768 << 10
CHECK = {"x2": None, "h2": False, "h1": False, "slab": SLAB, "y2": "split"}

NSTAMP = [0]
def stamp(k):
    if not g2.PROF: return
    i = k.nst = getattr(k, "nst", 0)
    k.a(f"s_memtime s[72:73]\ns_memrealtime s[74:75]\ns_waitcnt lgkmcnt(0)\ns_mov_b32 s{76+2*i}, s72\ns_mov_b32 s{77+2*i}, s74")
    k.nst += 1
def prof_out(k, kid):
    if not g2.PROF: return
    a = k.a
    a("s_waitcnt vmcnt(0)"); stamp(k)
    a(f"s_add_u32 s4, s38, {WS_PROF + kid*(1<<18)}\ns_addc_u32 s5, s39, 0\ns_mov_b32 s6, {1<<18}\ns_mov_b32 s7, 0x20000")
    a(f"s_lshl_b32 s32, s2, 2\ns_add_u32 s32, s32, s26\ns_lshl_b32 s32, s32, 7\nv_mov_b32 v1, 0")
    for i in range(2 * k.nst): a(f"v_mov_b32 v0, s{76+i}\nbuffer_store_dword v0, v1, s[4:7], s32 offen offset:{4*i}")

class Gemm:
    def __init__(self, k, name, sset, K, MR, NC, DA, R, U, PEEL, CAP, INIT, btype, a_off, orient, TM, TN, xm, xn, ldb, alt,
                 lds0, vlow, acc0, frag, mod=False, FB=1, WG=1, sc1=False):
        self.__dict__.update(locals()); self.a = k.a
        self.S = K // 32; self.NST = K // 64
        b = 40 + 8 * sset
        self.tm, self.tn, self.rb0, self.sB, self.sW, self.sW0, self.sWE, self.sBI = range(b, b + 8)
        self.SB = 8 if sset == 0 else 28
        if btype == "panel": self.NP = NC // 4; self.STAGE = self.NP * 8192; self.ND = 2 * self.NP; self.NRB = 4
        else: self.UPOFF = 64 * 224; self.STAGE = 2 * self.UPOFF; self.ND = 7; self.NRB = 1
        self.VB = vlow; self.VR0 = self.VB + self.ND; self.VR = self.VR0 + 1; self.VA = self.VR + self.NRB
        self.vend = self.VA + MR
        self.fk, f0 = frag
        self.BF = f0; self.AR = f0 + 4 * NC * FB; self.fend = self.AR + 4 * MR * DA
        self.pre = 0
    def acc(self, j, i): return self.acc0 + 4 * (j * self.MR + i)

    def tile(self):
        tm_per, tn_per = self.TM // self.xm, self.TN // self.xn
        self.a(f"""
        s_and_b32 s32, s2, 7
        s_lshr_b32 s33, s2, 3
        s_lshr_b32 s34, s32, {self.xn.bit_length()-1}
        s_and_b32 s35, s32, {self.xn-1}
        s_and_b32 s{self.tm}, s33, {tm_per-1}
        s_lshr_b32 s{self.tn}, s33, {tm_per.bit_length()-1}
        s_mul_i32 s34, s34, {tm_per}
        s_add_u32 s{self.tm}, s{self.tm}, s34
        s_mul_i32 s35, s35, {tn_per}
        s_add_u32 s{self.tn}, s{self.tn}, s35
        s_lshl_b32 s{self.rb0}, s{self.tm}, 2
        s_add_u32 s{self.rb0}, s{self.rb0}, s26
        s_mul_i32 s{self.rb0}, s{self.rb0}, {self.MR//2}""")

    def b_addr(self, T):
        a = self.a; VB = self.VB; ldb = self.ldb
        if self.btype == "panel":
            off_alt, ldb_alt, pst_alt, sst_alt = self.alt
            sb = self.SB
            a(f"""
            s_and_b32 s32, s{self.tn}, 7
            s_lshr_b32 s33, s{self.tn}, 3
            s_mul_i32 s33, s33, {sst_alt}
            s_lshl_b32 s34, s{self.tn}, 7
            s_mov_b32 s35, {ldb}
            s_mov_b32 s{self.sB}, 2048
            s_cmp_eq_u32 s32, 3
            s_cselect_b32 s33, s33, s34
            s_cselect_b32 s35, {ldb_alt}, s35
            s_cselect_b32 s{self.sB}, {pst_alt}, s{self.sB}
            s_lshl_b32 s{self.sBI}, s35, 6
            s_lshl_b32 s34, s35, 3
            s_lshl_b32 s32, s26, 4
            v_lshrrev_b32 v{T}, 3, v1
            v_and_b32 v{T+1}, 7, v1
            v_and_b32 v{T+2}, 6, v{T}
            v_xor_b32 v{T+1}, v{T+1}, v{T+2}
            v_add_u32 v{T}, s32, v{T}
            v_mul_lo_u32 v{T}, v{T}, s35
            v_lshl_add_u32 v{T}, v{T+1}, 4, v{T}
            v_add_u32 v{VB}, s33, v{T}
            v_add_u32 v{VB+1}, s34, v{VB}""")
            for p in range(1, self.NP):
                a(f"v_add_u32 v{VB+2*p}, s{self.sB}, v{VB+2*p-2}\nv_add_u32 v{VB+2*p+1}, s{self.sB}, v{VB+2*p-1}")
            self.dma_lds = [p * 8192 + g * 1024 for p in range(self.NP) for g in range(2)]
            a(f"s_lshl_b32 s{self.sW0}, s26, 11")
        else:
            a(f"""
            s_and_b32 s32, s26, 1
            s_mul_i32 s33, s32, {32*ldb}
            s_mul_i32 s34, s{self.tn}, 224
            s_add_u32 s33, s33, s34
            s_mov_b32 s{self.sBI}, {64*ldb}""")
            for i in range(7):
                a(f"""
                v_add_u32 v{T}, {64*i}, v1
                v_mul_u32_u24 v{T+1}, 4682, v{T}
                v_lshrrev_b32 v{T+1}, 16, v{T+1}
                v_lshl_add_u32 v{T}, v{T}, 4, s33
                v_mul_u32_u24 v{T+1}, {ldb-224}, v{T+1}
                v_add_u32 v{VB+i}, v{T}, v{T+1}""")
            self.dma_lds = [1024 * i for i in range(7)]
            a(f"s_mul_i32 s{self.sW0}, s26, 7168")
        a(f"""
        s_add_u32 s{self.sW0}, s{self.sW0}, {self.lds0}
        s_mov_b32 s{self.sB}, 0
        s_mov_b32 s{self.sW}, s{self.sW0}
        s_add_u32 s{self.sWE}, s{self.sW0}, {self.R*self.STAGE}""")

    def b_srd(self, p0, p1=None):
        a = self.a; sb = self.SB
        if self.btype == "panel":
            a(f"""
            s_add_u32 s32, s38, {self.alt[0]}
            s_addc_u32 s33, s39, 0
            s_cmp_eq_u32 s{self.sBI}, {64*self.alt[1]}
            s_cselect_b32 s{sb}, s32, s{p0}
            s_cselect_b32 s{sb+1}, s33, s{p0+1}
            s_mul_i32 s{sb+2}, s{self.sBI}, {self.NST}
            s_mov_b32 s{sb+3}, 0x20000""")
        else:
            a(f"s_cmp_ge_u32 s26, 2\ns_cselect_b32 s{sb}, s{p1}, s{p0}\ns_cselect_b32 s{sb+1}, s{p1+1}, s{p0+1}")
            a(f"s_mov_b32 s{sb+2}, {self.K*self.ldb}\ns_mov_b32 s{sb+3}, 0x20000")

    def dma_op(self, i):
        ins = [f"s_add_u32 m0, s{self.sW}, {self.dma_lds[i]}", f"buffer_load_dwordx4 v{self.VB+i}, {s(self.SB,4)}, s{self.sB} offen lds"]
        if i == self.ND - 1:
            ins += [f"s_add_u32 s{self.sB}, s{self.sB}, s{self.sBI}", f"s_add_u32 s{self.sW}, s{self.sW}, {self.STAGE}",
                    f"s_cmp_eq_u32 s{self.sW}, s{self.sWE}\ns_cselect_b32 s{self.sW}, s{self.sW0}, s{self.sW}"]
        return ins
    def preload(self, n):
        self.pre = n
        return [self.dma_op(i) for st in range(n) for i in range(self.ND)]

    def a_addr(self, T):
        a = self.a
        a(f"""
        v_bfe_u32 v{T+2}, v1, 4, 1
        v_bfe_u32 v{T+3}, v1, 3, 1
        v_lshl_add_u32 v{T+2}, v{T+2}, 2, v{T+3}
        s_lshl_b32 s32, s{self.rb0}, 3
        v_add_u32 v{T+2}, s32, v{T+2}
        v_lshrrev_b32 v{T+3}, 5, v1
        v_mul_u32_u24 v{T+3}, {SLAB}, v{T+3}
        v_and_b32 v{T}, 7, v1
        v_lshl_add_u32 v{T+3}, v{T}, 4, v{T+3}""")
        for i in range(self.MR):
            a(f"v_add_u32 v{T}, {8*(i//2) + 2*(i%2)}, v{T+2}")
            phys_line(a, self.VA + i, T, T + 1)
            a(f"v_add_u32 v{self.VA+i}, v{self.VA+i}, v{T+3}")
        a("s_mov_b32 s27, 0")
    def a_srd(self): srd(self.a, 4, 38, self.a_off, 2 * self.S * SLAB)

    def r_addr(self, T):
        a = self.a
        a(f"""
        v_lshrrev_b32 v{T}, 5, v1
        v_bfe_u32 v{T+1}, v1, 2, 3
        v_lshl_add_u32 v{T}, v{T}, 4, v{T+1}
        v_and_b32 v{T+2}, 3, v1""")
        if self.btype == "panel":
            a(f"""
            v_lshlrev_b32 v{T}, 7, v{T}
            v_lshl_add_u32 v{T}, v{T+2}, 3, v{T}
            v_lshrrev_b32 v{T+1}, 1, v{T+1}
            v_lshl_add_u32 v{self.VR0}, v{T+1}, 5, v{T}""")
        else:
            a(f"v_mul_u32_u24 v{T}, 224, v{T}\nv_lshl_add_u32 v{self.VR0}, v{T+2}, 3, v{T}")
        a(f"s_mov_b32 s37, {self.lds0 + (self.R-1)*self.STAGE}")
    def rd(self, j, sub, r_):
        if self.btype == "panel": return self.VR + j % 4, (j // 4) * 8192 + 128 * (32 * sub + 8 * r_)
        return self.VR, (j % 2) * self.UPOFF + 32 * (j // 2) + 224 * (32 * sub + 8 * r_)

    def run(self, extra_fn, early=None, late=None, cpf=None, gate=None, POST=0, post_ops=None):
        g = self; a = self.a
        S, NST, MR, NC, DA, R, U, PEEL, FB, ND, mod, fk = g.S, g.NST, g.MR, g.NC, g.DA, g.R, g.U, g.PEEL, g.FB, g.ND, g.mod, g.fk
        assert (NST - PEEL - POST) % U == 0 and (2 * U) % DA == 0 and (2 * U) % FB == 0 and FB <= 2 and PEEL > 0
        sc = " sc1" if g.sc1 else ""
        def make_ops(extra):
            ops = []
            for ta in range(S + DA + 4):
                if ta >= S and ta + 1 - DA >= S - 2 * POST: break
                for i in range(MR):
                    ins = [f"buffer_load_dwordx4 {rr(fk, g.AR+4*(MR*(ta%DA)+i), 4)}, v{g.VA+i}, s[4:7], s27 offen{sc}"]
                    if i == MR - 1: ins.append(f"s_add_u32 s27, s27, {2*SLAB}")
                    ops.append([ta - (1 if mod else 0), ta + (0 if mod else 1) - DA, len(ops), ins, ("A", ta)])
            for st in range(g.pre, NST + R + 2):
                for i in range(ND):
                    ea = 2 * (st + 2 - R) - FB + i * 2 // ND
                    if st >= NST and ea >= S - 2 * POST: continue
                    ops.append([2 * st - FB - 0.5, ea, len(ops), g.dma_op(i), ("B", st)])
            for ea, ins in (post_ops or []): ops.append([1000, ea, len(ops), ins, ("X",)])
            for need, ins in extra: ops.append([need, -999, len(ops), ins, ("X",)])
            ops.sort(key=lambda o: (o[0], o[2]))
            return ops
        cnt = Cnt()
        def go(emit):
            emit0 = emit; em = [emit]
            def E(x):
                if em[0]: em[0](x)
            ops = make_ops(extra_fn())
            def take(t, cap):
                got = [o for o in ops if o[1] <= t][:cap]
                for o in got: ops.remove(o)
                return [(x, o[4] if x.startswith("buffer_") else None) for o in got for x in o[3]]
            def W(site, c, nm, tags):
                cnt.wait(c, (site, nm), tags)
                E(cnt.text(c, (site, nm)))
            def flush(fill, n):
                for _ in range(n):
                    if not fill: return
                    x, tag = fill.pop(0)
                    if x == "W": W(*tag); continue
                    E(x)
                    if tag and tag[0] == "L": cnt.issue("lg", tag[1])
                    elif tag: cnt.issue("vm", tag)
            def slot_s(): return [(f"s_add_u32 s37, s37, {g.STAGE}", None), (f"s_cmp_eq_u32 s37, {g.lds0 + R*g.STAGE}\ns_cselect_b32 s37, {g.lds0}, s37", None)]
            def slot_v():
                out = [f"v_add_u32 v{g.VR}, s37, v{g.VR0}"]
                for b in range(1, g.NRB): out.append(f"v_xor_b32 v{g.VR+b}, {32*b}, v{g.VR}")
                return out
            def reads(tt, j):
                out = []
                for r_ in range(2):
                    base, off = g.rd(j, tt % 2, r_)
                    out.append((f"ds_read_b64_tr_b16 {rr(fk, g.BF+4*(NC*(tt%FB)+j)+2*r_, 2)}, v{base} offset:{off}", ("L", ("F", tt, j))))
                return out
            def cread(tt):
                base = (tt if tt < 2 * PEEL + 2 else 2 * PEEL + (tt - 2 * PEEL - 2) % (2 * U) + 2) * 256
                CM = g.CM0 + 16 * (tt % 2)
                return [(f"ds_read_b128 {v(CM+4*n,4)}, v{g.VC} offset:{base+16*n}", ("L", ("C", tt))) for n in range(4)]
            def xform(tt):
                out = []; CM = g.CM0 + 16 * (tt % 2)
                for i in range(MR):
                    r = g.AR + 4 * (MR * (tt % DA) + i)
                    for e in range(8):
                        out.append((f"v_fma_mix_f32 v{g.XT+e}, v{r+e//2}, v{CM+e}, v{CM+8+e} " + ("op_sel:[1,0,0] " if e % 2 else "") + "op_sel_hi:[1,0,0]", None))
                    for e in range(4): out.append((f"v_cvt_pk_bf16_f32 v{g.HF+4*(MR*(tt%2)+i)+e}, v{g.XT+2*e}, v{g.XT+2*e+1}", None))
                return out
            if early: early(emit, cnt)
            if not gate: flush(take(-FB - 1, g.INIT), 999)
            if late: late(emit, lambda c, nm, tags: W("pro", c, nm, tags))
            W("pro", "vm", "bar", {("B", 0)})
            flush(slot_s(), 9)
            if not gate: E("s_barrier")
            for x in slot_v(): E(x)
            if FB == 2: flush(slot_s(), 9)
            if mod: flush(cread(0) + cread(1), 99)
            for tt in range(FB):
                for j in range(NC): flush(reads(tt, j), 2)
            if gate:
                if emit: gate()
                flush(take(-FB - 1, g.INIT), 999)
            W("pro", "vm", "A", {("A", 0)})
            if mod:
                W("pro", "lg", "C", {("C", 0)})
                flush(xform(0), 99)
            W("pro", "lg", "F", {("F", 0, min(NC - 1, g.WG - 1))})
            if emit: stamp(g.k)
            pend = []
            for t in range(S):
                peeled = t < 2 * PEEL or t >= S - 2 * POST
                site = ("p", t) if peeled else (t - 2 * PEEL) % (2 * U)
                if t == 2 * PEEL:
                    assert not [o for o in ops if o[1] < t], f"{g.name}: backlog not drained"
                    if emit0 and EXP.get("pstamp"): stamp(g.k)
                    E(f"s_mov_b32 s36, {(NST-PEEL-POST)//U}\n.p2align 6\n{g.name}_loop:")
                em[0] = emit0 if (peeled or t < 2 * PEEL + 2 * U) else None
                bar = (t + FB) % 2 == 0
                fill = take(t, g.CAP if peeled else 999)
                if cpf and not peeled and site == 1: fill.append((cpf, ("C",)))
                if (t + 1 + FB) % 2 == 0: fill = fill + slot_s()
                last = (not peeled) and site == 2 * U - 1
                if last: fill.append(("s_sub_u32 s36, s36, 1\ns_cmp_lg_u32 s36, 0", None))
                vfill = []
                if mod:
                    fill = cread(t + 2) + fill
                    vfill = xform(t + 1) + ([(f"v_add_u32 v{g.VC}, {2*U*256}, v{g.VC}", None)] if last else [])
                ngap = NC * MR
                first = MR + 1 if bar else 0
                n0 = len(fill); nv0 = len(vfill); gap = 0
                for j in range(NC):
                    for i in range(MR):
                        af = rr(fk, g.AR + 4 * (MR * (t % DA) + i), 4) if not mod else v(g.HF + 4 * (MR * (t % 2) + i), 4)
                        bf = rr(fk, g.BF + 4 * (NC * (t % FB) + j), 4); c = v(g.acc(j, i), 4)
                        x, y = (bf, af) if g.orient[j] == "tok" else (af, bf)
                        E(f"v_mfma_f32_16x16x32_bf16 {c}, {x}, {y}, {c if t else 0}")
                        gap += 1
                        if mod and gap == 1:
                            W(site, "vm", "A", {("A", t + 1)}); W(site, "lg", "C", {("C", t + 1)})
                        if i == MR - 1:
                            jn, tn_ = (j + 1, t) if j + 1 < NC else (0, t + 1)
                            if jn == 0 and not mod: W(site, "vm", "A", {("A", t + 1)})
                            assert not any(tg[1][1:] == (tn_, jn) for _, tg in pend)
                            tgt = min(NC - 1, jn + (g.WG - 1 - jn % g.WG))
                            while any(tg[1][1:] == (tn_, tgt) for _, tg in pend) or (FB == 1 and tn_ > t and tgt >= j): tgt -= 1
                            W(site, "lg", f"N{j}", {("F", tn_, tgt)})
                        busy = bool(pend) and MR > 2 and gap < ngap
                        flush(pend, 1)
                        if bar and gap == MR:
                            flush(pend, 9)
                            W(site, "vm", "bar", {("B", (t + FB) // 2)})
                            E("s_barrier")
                            for x in slot_v(): E(x)
                        if i == MR - 1: pend += reads(t + FB, j)
                        if (gap > first or first == 0) and not busy:
                            den = ngap - first
                            want = max(0, (n0 * (gap - first) + den - 1) // den - (n0 - len(fill)))
                            flush(fill, want)
                        vs = ngap - 2
                        if gap > 1: flush(vfill, max(0, (nv0 * min(gap - 1, vs) + vs - 1) // vs - (nv0 - len(vfill))))
                assert not fill and not vfill
                if last or t == 2 * PEEL - 1 or t == S - 1:
                    flush(pend, 9)
                    if last: E(f"s_cbranch_scc1 {g.name}_loop")
        go(None)
        cnt.reset()
        go(a)
        a(f"{g.name}_epi:")
        stamp(g.k)

def piece_lane(a, dst, t):
    a(f"""
    v_and_b32 v{dst}, 15, v1
    v_lshrrev_b32 v{t}, 5, v1
    v_lshl_add_u32 v{dst}, v{t}, 4, v{dst}
    v_bfe_u32 v{t}, v1, 4, 1
    v_lshl_add_u32 v{dst}, v{t}, 5, v{dst}
    v_lshlrev_b32 v{dst}, 4, v{dst}""")
def piece_slab(a, dst, srb, add, t):
    a(f"""
    v_bfe_u32 v{t}, v1, 4, 1
    v_lshrrev_b32 v{t+1}, 5, v1
    v_lshl_add_u32 v{t}, v{t}, 1, v{t+1}
    v_bfe_u32 v{t+1}, v1, 3, 1
    v_lshl_add_u32 v{t}, v{t}, 1, v{t+1}
    s_lshl_b32 s32, s{srb}, 3
    s_add_u32 s32, s32, {8*add}
    v_add_u32 v{t}, s32, v{t}""")
    phys_line(a, dst, t, t + 1)
    a(f"v_and_b32 v{t}, 7, v1\nv_lshl_add_u32 v{dst}, v{t}, 4, v{dst}")
def pack_swap(a, d, x, y):
    a(f"""
    v_cvt_pk_bf16_f32 v{d}, v{x}, v{x+1}
    v_cvt_pk_bf16_f32 v{d+1}, v{x+2}, v{x+3}
    v_cvt_pk_bf16_f32 v{d+2}, v{y}, v{y+1}
    v_cvt_pk_bf16_f32 v{d+3}, v{y+2}, v{y+3}""")
def swap2(a, d): a(f"v_permlane32_swap_b32 v{d}, v{d+2}\nv_permlane32_swap_b32 v{d+1}, v{d+3}")
def allred4(a, regs, t):
    for op in ("v_permlane16_swap_b32", "v_permlane32_swap_b32"):
        for n, r in enumerate(regs): a(f"v_mov_b32 v{t+n}, v{r}")
        for n, r in enumerate(regs): a(f"{op} v{r}, v{t+n}")
        for n, r in enumerate(regs): a(f"v_add_f32 v{r}, v{r}, v{t+n}")

def head(k, ptrs):
    guard(k); stamp(k)
    load_ptrs(k.a, [(38, P_WS)] + ptrs)
    wave_lane(k.a)

def k_qkv():
    R = EXP.get("qR", 4)
    k = Kernel("qkv_kernel", 256, 256, 24576 * R + 8192 + 512, 256); a = k.a
    g = Gemm(k, "qkv", 0, 1024, 2, 12, EXP.get("qDA", 4), R, 2, EXP.get("qPEEL", 4), EXP.get("qCAP", 8), EXP.get("qINIT", 14), "panel", WS_H1,
             ["tok"] * 8 + ["feat"] * 4, 16, 16, 2, 4, 6144, (WS_WQ3, 1536, 256, 768), 0, 3, 24, ("v", 120), mod=True, WG=EXP.get("qWG", 6))
    g.CM0 = g.fend; g.HF = g.CM0 + 32; g.XT = g.HF + 16; g.VC = 20; T = 16
    assert g.vend <= 16 and g.XT + 8 <= 256
    XL = 24576 * R; A0 = g.acc0
    head(k, [(60, P_WQKV)])
    g.tile(); g.b_addr(T); g.a_addr(T)
    a("s_waitcnt lgkmcnt(0)")
    g.a_srd(); g.b_srd(60)
    def early(emit, cnt):
        if emit:
            srd(a, 20, 38, WS_MODP, KS * 6144 * 4)
            a(f"v_lshlrev_b32 v{g.VC}, 4, v0")
        for p in range(KS):
            for n, idx in enumerate((1, 0)):
                if emit: a(f"s_mov_b32 s32, {p*6144*4 + idx*4096}\nbuffer_load_dwordx4 {v(A0+8*p+4*n,4)}, v{g.VC}, s[20:23], s32 offen")
                cnt.issue("vm", ("M",))
    def late(emit, W):
        if emit:
            g.r_addr(T)
            code_srd(k, 68, "qkv_epi")
            a(f"""
            v_lshlrev_b32 v2, 7, v0
            v_lshrrev_b32 v{A0+24}, 2, v0
            v_lshlrev_b32 v{A0+24}, 7, v{A0+24}
            v_and_b32 v{A0+25}, 1, v0
            v_lshl_add_u32 v{A0+24}, v{A0+25}, 6, v{A0+24}
            v_bfe_u32 v{A0+25}, v0, 1, 1
            v_lshl_add_u32 v{A0+24}, v{A0+25}, 4, v{A0+24}
            v_add_u32 v{A0+24}, {XL}, v{A0+24}
            v_lshrrev_b32 v{g.VC}, 4, v1
            v_lshlrev_b32 v{g.VC}, 6, v{g.VC}
            v_add_u32 v{g.VC}, {XL}, v{g.VC}""")
        W("vm", "M", {("M",)})
        if emit:
            for j in range(8): a(f"v_add_f32 v{A0+j}, v{A0+j}, v{A0+8+j}")
            for j in range(4): a(f"v_cvt_pk_bf16_f32 v{A0+16+j}, v{A0+2*j}, v{A0+2*j+1}")
            unpack(a, A0, A0 + 16, 4)
            for j in range(4): a(f"v_add_f32 v{A0+j}, 1.0, v{A0+j}")
            for j in range(2): a(f"v_cvt_pk_bf16_f32 v{A0+16+j}, v{A0+2*j}, v{A0+2*j+1}")
            unpack(a, A0, A0 + 16, 2)
            a(f"ds_write_b128 v{A0+24}, {v(A0,4)}\nds_write_b128 v{A0+24}, {v(A0+4,4)} offset:32\ns_waitcnt lgkmcnt(0)")
    g.run(lambda: [], early, late, "buffer_load_dword v0, v2, s[68:71], 0 offen")
    qs = LOG2E / math.sqrt(32)
    srd(a, 12, 38, WS_Q, 4 << 20); srd(a, 16, 38, WS_KV, 8 << 20)
    piece_lane(a, T, T + 1)
    a(f"""
    s_lshl_b32 s32, s{g.tn}, 7
    s_add_u32 s32, s32, s{g.rb0}
    s_lshl_b32 s33, s32, 11
    s_lshl_b32 s34, s32, 12
    s_add_u32 s35, s33, {64*2048}
    s_add_u32 s56, s34, {64*4096}""")
    jobs = []
    for j in range(8):
        hd, gg = (j >> 1) & 1, j & 1
        dst = (f"s[12:15], s{35 if hd else 33} offen offset:{1024*gg}" if j < 4 else f"s[16:19], s{56 if hd else 34} offen offset:{1024*gg}")
        jobs.append((g.acc(j, 0), g.acc(j, 1), j < 4, dst))
    for hd in range(2):
        for i in range(2):
            jobs.append((g.acc(8 + 2 * hd, i), g.acc(9 + 2 * hd, i), False, f"s[16:19], s{56 if hd else 34} offen offset:{2048+1024*i}"))
    prev = None
    for x, y, sc_, dst in jobs + [(None,) * 4]:
        if x is not None:
            if sc_:
                for r in list(range(x, x + 4)) + list(range(y, y + 4)): a(f"v_mul_f32 v{r}, {fx(qs)}, v{r}")
            pack_swap(a, x, x, y)
        if prev:
            swap2(a, prev[0])
            a(f"buffer_store_dwordx4 {v(prev[0],4)}, v{T}, {prev[1]} sc1")
        prev = (x, dst)
    stamp(k); prof_out(k, KID[k.name]); finish(k)
    return k

def colvec_ops(g, need, dst, idxs, va):
    ops = []
    first = [f"s_lshl_b32 s32, s{g.tn}, 8\nv_lshl_add_u32 v{va}, v1, 2, s32"]
    for n, idx in enumerate(idxs):
        for p in range(KS):
            ops.append((need, first + [f"s_mov_b32 s32, {p*6144*4 + idx*4096}", f"buffer_load_dword v{dst+2*n+p}, v{va}, s[20:23], s32 offen"]))
            first = []
    return ops
def tile_lds_addr(a, dst, t, sbase):
    a(f"""
    v_and_b32 v{dst}, 15, v1
    v_lshlrev_b32 v{dst}, 7, v{dst}
    v_lshrrev_b32 v{t}, 5, v1
    v_and_b32 v{t+1}, 7, v1
    v_xor_b32 v{t}, v{t}, v{t+1}
    v_lshl_add_u32 v{dst}, v{t}, 4, v{dst}
    v_bfe_u32 v{t}, v1, 4, 1
    v_lshl_add_u32 v{dst}, v{t}, 3, v{dst}
    v_add_u32 v{dst}, s{sbase}, v{dst}""")
def row_src(dst, t):
    return f"""v_lshrrev_b32 v{t}, 3, v1
    v_and_b32 v{dst}, 7, v1
    v_xor_b32 v{dst}, v{dst}, v{t}
    v_lshlrev_b32 v{dst}, 4, v{dst}
    v_lshl_add_u32 v{dst}, v{t}, 11, v{dst}"""

def out_gemm(k, lds0, frag, sset=0, vlow=3):
    return Gemm(k, "out", sset, 1024, 2, 4, 8, EXP.get("oR", 6), 4, 4, 99, 999, "panel", WS_O, ["tok"] * 4, 16, 16, 4, 2, 2048,
                (WS_WO3, 512, 0, 256), lds0, vlow, 32, frag, FB=2, WG=2)
def out_phase(k, g, XL, px, fillers=None, keep=None, nearly=0):
    a = k.a; T = 16
    def extra():
        ops = colvec_ops(g, 30, T + 8, [2, 4], T + 6)
        first = [row_src(T + 7, T + 12) + f"""
        s_lshl_b32 s56, s{g.rb0}, 16
        s_lshl_b32 s32, s{g.tn}, 7
        s_add_u32 s56, s56, s32
        s_lshl_b32 s57, s26, 12
        s_add_u32 s57, s57, {XL}"""]
        for i in range(4):
            ops.append((31, first + [f"s_add_u32 m0, s57, {1024*i}", "s_nop 0", f"buffer_load_dwordx4 v{T+7}, s[12:15], s56 offen lds", "s_add_u32 s56, s56, 0x4000"]))
            first = []
        return ops
    srd(a, 12, px, 0, 4 << 20); srd(a, 20, 38, WS_MODP, KS * 6144 * 4)
    def late(emit, W):
        if emit:
            g.r_addr(T); code_srd(k, 68, "out_epi", EXP.get("_out_cpf")); a("v_lshlrev_b32 v2, 7, v0")
    g.run(extra, None, late, f"buffer_load_dword v{T+15}, v2, s[68:71], 0 offen")
    fl = fillers() if fillers else []
    budget = [nearly]
    def F(n=1):
        for _ in range(n):
            if fl and budget[0] > 0:
                budget[0] -= 1
                for x in fl.pop(0): a(x)
    G, C, X, P = 64, 80, 96, 128
    F(4)
    srd(a, 12, 38, WS_X2, 4 << 20); srd(a, 16, 38, WS_Y2, 64 * SLAB); srd(a, 20, 38, WS_STAT, 16 * 2048 * 8)
    a(f"v_add_f32 v{T+8}, v{T+8}, v{T+9}\nv_add_f32 v{T+10}, v{T+10}, v{T+11}")
    rbf(a, T + 8); rbf(a, T + 10)
    a(f"v_add_f32 v{T+10}, 1.0, v{T+10}")
    rbf(a, T + 10)
    a(f"""
    s_lshl_b32 s33, s26, 9
    s_add_u32 s33, s33, {XL + 16384}
    v_lshl_add_u32 v{T}, v1, 2, s33
    ds_write_b32 v{T}, v{T+8}
    ds_write_b32 v{T}, v{T+10} offset:256""")
    F(3)
    tile_lds_addr(a, T + 3, T + 1, 57)
    a(f"v_lshrrev_b32 v{T}, 4, v1\nv_lshl_add_u32 v{T}, v{T}, 4, s33")
    for b in range(1, 4): a(f"v_xor_b32 v{T+3+b}, {32*b}, v{T+3}")
    for b in range(4):
        for i in range(2): a(f"ds_read_b64 {v(P+4*b+2*i,2)}, v{T+3+b} offset:{2048*i}")
    a("s_waitcnt lgkmcnt(8)")
    for b in range(4): a(f"ds_read_b128 {v(G+4*b,4)}, v{T} offset:{64*b}")
    for b in range(4): a(f"ds_read_b128 {v(C+4*b,4)}, v{T} offset:{256+64*b}")
    F(4)
    piece_slab(a, T + 2, g.rb0, 0, T + 8)
    a(f"""
    v_lshlrev_b32 v{T+1}, 4, v1
    s_lshl_b32 s34, s{g.rb0}, 4
    s_add_u32 s34, s34, s{g.tn}
    s_lshl_b32 s34, s34, 12
    s_mul_i32 s35, s{g.tn}, {4*SLAB}
    s_waitcnt lgkmcnt(8)""")
    unpack(a, X, P, 16)
    a("s_waitcnt lgkmcnt(4)")
    for b in range(4):
        for i in range(2):
            for e in range(4): a(f"v_fmac_f32 v{X+8*b+4*i+e}, v{G+4*b+e}, v{g.acc(b,i)+e}")
        for e in range(4): a(f"v_cvt_pk_bf16_f32 v{P+4*b+e}, v{X+8*b+2*e}, v{X+8*b+2*e+1}")
        if keep is None: a(f"buffer_store_dwordx4 {v(P+4*b,4)}, v{T+1}, s[12:15], s34 offen offset:{1024*b} sc1")
    unpack(a, X, P, 16)
    a("s_waitcnt lgkmcnt(0)")
    Y = 144
    for b in range(5):
        if b < 4:
            for i in range(2):
                for e in range(4): a(f"v_mul_f32 v{g.acc(b,i)+e}, v{C+4*b+e}, v{X+8*b+4*i+e}")
            pack_swap(a, Y + 4 * b, g.acc(b, 0), g.acc(b, 1))
        if b:
            swap2(a, Y + 4 * (b - 1))
            a(f"buffer_store_dwordx4 {v(Y+4*(b-1),4)}, v{T+2}, s[16:19], s35 offen sc1\ns_add_u32 s35, s35, {SLAB}")
    for i in range(2):
        r = [X + 8 * b + 4 * i + e for b in range(4) for e in range(4)]
        a(f"v_add_f32 v{T+8+2*i}, v{r[0]}, v{r[1]}")
        for x in r[2:]: a(f"v_add_f32 v{T+8+2*i}, v{T+8+2*i}, v{x}")
    allred4(a, [T + 8, T + 10], T + 12)
    a(f"v_mul_f32 v{T+12}, {fx(1/64)}, v{T+8}\nv_mul_f32 v{T+13}, {fx(1/64)}, v{T+10}")
    for i in range(2):
        r = [X + 8 * b + 4 * i + e for b in range(4) for e in range(4)]
        for x in r: a(f"v_sub_f32 v{x}, v{x}, v{T+12+i}")
        a(f"v_mul_f32 v{T+9+2*i}, v{r[0]}, v{r[0]}")
        for x in r[1:]: a(f"v_fmac_f32 v{T+9+2*i}, v{x}, v{x}")
    allred4(a, [T + 9, T + 11], T + 12)
    a(f"""
    v_cmp_lt_u32 vcc, 15, v1
    v_lshlrev_b32 v{T+1}, 3, v1
    s_lshl_b32 s32, s{g.tn}, 14
    s_lshl_b32 s33, s{g.rb0}, 8
    s_add_u32 s32, s32, s33
    v_cndmask_b32 v{T+8}, v{T+8}, v{T+10}, vcc
    v_cndmask_b32 v{T+9}, v{T+9}, v{T+11}, vcc
    s_mov_b32 exec_hi, 0
    buffer_store_dwordx2 {v(T+8,2)}, v{T+1}, s[20:23], s32 offen sc1
    s_mov_b32 exec_hi, -1""")
    if keep is not None:
        for i in range(16): a(f"v_accvgpr_write_b32 a{keep+i}, v{P+i}")
    return fl

def k_out():
    k = Kernel("out_kernel", 256, 256, 8192 * EXP.get("oR", 6) + 16384 + 2048, 256); a = k.a
    g = out_gemm(k, 0, ("v", 160))
    assert g.fend <= 256
    head(k, [(60, P_WO), (62, P_X)])
    g.tile(); g.b_addr(16); g.a_addr(16)
    a("s_waitcnt lgkmcnt(0)")
    g.a_srd(); g.b_srd(60)
    out_phase(k, g, 8192 * g.R, 62)
    stamp(k); prof_out(k, KID[k.name]); finish(k)
    return k

def down_gemm(k, lds0, frag, R, sset=0, vlow=3, sc1=False, acc0=32):
    return Gemm(k, "down", sset, 3584, 2, 4, 8, R, 4, 4, 99, 999, "panel", WS_ACT, ["tok"] * 4, 16, 16, 4, 2, 2048,
                (WS_WD3, 512, 0, 256), lds0, vlow, acc0, frag, FB=2, WG=2, sc1=sc1)
def down_phase(k, g, XL, pout, keep=None, gate=None):
    a = k.a; T = 16; P, G, X = 96, 112, 128
    sc = " sc1" if g.sc1 else ""
    def extra():
        ops = colvec_ops(g, 30, T + 8, [5], T + 6)
        if keep is not None: return ops
        first = [f"v_lshlrev_b32 v{T+7}, 4, v1\ns_lshl_b32 s56, s{g.rb0}, 4\ns_add_u32 s56, s56, s{g.tn}\ns_lshl_b32 s56, s56, 12"]
        for b in range(4):
            ops.append((31, first + [f"buffer_load_dwordx4 {v(P+4*b,4)}, v{T+7}, s[12:15], s56 offen offset:{1024*b}{sc}"]))
            first = []
        return ops
    if keep is None: srd(a, 12, 38, WS_X2, 4 << 20)
    srd(a, 20, 38, WS_MODP, KS * 6144 * 4)
    def late(emit, W):
        if emit:
            g.r_addr(T); code_srd(k, 68, "down_epi"); a("v_lshlrev_b32 v2, 7, v0")
    g.run(extra, None, late, f"buffer_load_dword v{T+15}, v2, s[68:71], 0 offen", gate)
    srd(a, 16, pout, 0, 4 << 20)
    a(f"v_add_f32 v{T+8}, v{T+8}, v{T+9}")
    rbf(a, T + 8)
    a(f"""
    s_lshl_b32 s33, s26, 8
    s_add_u32 s33, s33, {XL + 16384}
    v_lshl_add_u32 v{T}, v1, 2, s33
    ds_write_b32 v{T}, v{T+8}
    s_lshl_b32 s57, s26, 12
    s_add_u32 s57, s57, {XL}
    v_lshrrev_b32 v{T}, 4, v1
    v_lshl_add_u32 v{T}, v{T}, 4, s33""")
    tile_lds_addr(a, T + 3, T + 1, 57)
    a("s_waitcnt lgkmcnt(0)")
    for b in range(4): a(f"ds_read_b128 {v(G+4*b,4)}, v{T} offset:{64*b}")
    for b in range(1, 4): a(f"v_xor_b32 v{T+3+b}, {32*b}, v{T+3}")
    if keep is not None:
        for i in range(16): a(f"v_accvgpr_read_b32 v{P+i}, a{keep+i}")
    unpack(a, X, P, 16)
    a(row_src(T + 9, T + 8))
    a(f"""
    v_lshl_add_u32 v{T+10}, v1, 4, s57
    s_lshl_b32 s33, s{g.rb0}, 16
    s_lshl_b32 s32, s{g.tn}, 7
    s_add_u32 s33, s33, s32
    s_waitcnt lgkmcnt(0)""")
    for b in range(4):
        for i in range(2):
            for e in range(4): a(f"v_fmac_f32 v{X+8*b+4*i+e}, v{G+4*b+e}, v{g.acc(b,i)+e}")
        for e in range(4): a(f"v_cvt_pk_bf16_f32 v{P+4*b+e}, v{X+8*b+2*e}, v{X+8*b+2*e+1}")
        for i in range(2): a(f"ds_write_b64 v{T+3+b}, {v(P+4*b+2*i,2)} offset:{2048*i}")
    a("s_waitcnt lgkmcnt(0)")
    for i in range(4): a(f"ds_read_b128 {v(G+4*i,4)}, v{T+10} offset:{1024*i}")
    for i in range(4):
        a(f"s_waitcnt lgkmcnt({3-i})\nbuffer_store_dwordx4 {v(G+4*i,4)}, v{T+9}, s[16:19], s33 offen sc1\ns_add_u32 s33, s33, 0x4000")

def k_down():
    R = EXP.get("dR", 6)
    k = Kernel("down_kernel", 256, 256, 8192 * R + 16384 + 1024, 256); a = k.a
    g = down_gemm(k, 0, ("v", 160), R)
    head(k, [(60, P_WD), (62, P_OUT)])
    g.tile(); g.b_addr(16); g.a_addr(16)
    a("s_waitcnt lgkmcnt(0)")
    g.a_srd(); g.b_srd(60)
    down_phase(k, g, 8192 * R, 62)
    stamp(k); prof_out(k, KID[k.name]); finish(k)
    return k

def gu_gemm(k, lds0, sset=0, vlow=3, sc1=False):
    return Gemm(k, "gu", sset, 1024, 4, 14, EXP.get("gDA", 4), EXP.get("gR", 4), 2, EXP.get("gPEEL", 4), EXP.get("gCAP", 13), EXP.get("gINIT", 15),
                "gu", WS_Y2, ["tok"] * 14, 8, 32, 2, 4, 7168, None, lds0, vlow, 32, ("a", 0), WG=EXP.get("gWG", 7), sc1=sc1)
def gu_phase(k, g, XL, after_bar=None, gate=None, POST=0, post_ops=None):
    a = k.a; T = 16; XA = g.fend
    sc = " sc1" if g.sc1 else ""
    def extra():
        ops = []
        first = [f"""v_and_b32 v{T+6}, 15, v1
        v_lshlrev_b32 v{T+6}, 3, v{T+6}
        v_lshrrev_b32 v{T+7}, 4, v1
        v_lshl_add_u32 v{T+6}, v{T+7}, 16, v{T+6}
        s_lshl_b32 s56, s{g.rb0}, 8"""]
        for n in range(4):
            for i in range(4):
                ops.append((20, first + [f"buffer_load_dwordx2 {a_(XA+8*i+2*n,2)}, v{T+6}, s[16:19], s56 offen offset:{128*i}{sc}"] + (["s_add_u32 s56, s56, 0x4000"] if i == 3 else [])))
                first = []
        first = [f"""v_cmp_lt_u32 vcc, 111, v0
        v_mov_b32 v{T+7}, {(3584-112)*4}
        v_cndmask_b32 v{T+7}, 0, v{T+7}, vcc
        v_lshl_add_u32 v{T+7}, v0, 2, v{T+7}
        s_mul_i32 s57, s{g.tn}, 448"""]
        for i in range(4):
            ops.append((21, first + [f"buffer_load_dword a{XA+32+i}, v{T+7}, s[20:23], s57 offen", f"s_add_u32 s57, s57, {7168*4}"]))
            first = []
        return ops
    srd(a, 16, 38, WS_STAT, 16 * 2048 * 8); srd(a, 20, 38, WS_UV, KS * 2 * 7168 * 4)
    def late(emit, W):
        if emit:
            g.r_addr(T); code_srd(k, 68, "gu_epi"); a("v_lshlrev_b32 v2, 7, v0")
    g.run(extra, None, late, f"buffer_load_dword a{XA+36}, v2, s[68:71], 0 offen", gate, POST, post_ops)
    c0 = -2 * math.sqrt(2 / math.pi) * LOG2E; c1 = c0 * 0.044715
    srd(a, 12, 38, WS_ACT, 224 * SLAB)
    for i in range(4): a(f"v_accvgpr_read_b32 v{16+i}, a{XA+32+i}")
    a(f"""
    v_add_f32 v16, v16, v18
    v_add_f32 v17, v17, v19
    v_lshlrev_b32 v2, 2, v0
    v_add_u32 v2, {XL}, v2
    ds_write_b32 v2, v16
    ds_write_b32 v2, v17 offset:1024""")
    for pr in range(2):
        for i in range(16): a(f"v_accvgpr_read_b32 v{16+i}, a{XA+16*pr+i}")
        D = [4 + 4 * pr, 6 + 4 * pr]
        for i in range(2):
            b = 16 + 8 * i
            a(f"v_add_f32 v{D[i]}, v{b}, v{b+2}\nv_add_f32 v{D[i]+1}, v{b+1}, v{b+3}")
            for n in (2, 3): a(f"v_add_f32 v{D[i]}, v{D[i]}, v{b+2*n}\nv_add_f32 v{D[i]+1}, v{D[i]+1}, v{b+2*n+1}")
        allred4(a, D, 12)
        for i in range(2):
            b = 16 + 8 * i
            a(f"v_mul_f32 v12, {fx(1/16)}, v{D[i]}")
            for n in range(4): a(f"v_sub_f32 v{b+2*n}, v{b+2*n}, v12")
            a(f"v_mul_f32 v12, v{b}, v{b}")
            for n in range(1, 4): a(f"v_fmac_f32 v12, v{b+2*n}, v{b+2*n}")
            a(f"v_fmac_f32 v{D[i]+1}, {fx(1/64)}, v12")
        allred4(a, [D[0] + 1, D[1] + 1], 12)
        for i in range(2):
            a(f"""
            v_mov_b32 v12, {fx(1e-5)}
            v_fmac_f32 v12, {fx(1/1024)}, v{D[i]+1}
            v_mul_f32 v{D[i]+1}, {fx(-1/1024)}, v{D[i]}
            v_rsq_f32 v{D[i]}, v12
            s_nop 0
            v_mul_f32 v{D[i]+1}, v{D[i]+1}, v{D[i]}""")
    piece_slab(a, 12, g.rb0, 0, 14); piece_slab(a, 13, g.rb0, 1, 14)
    a(f"""
    v_lshrrev_b32 v2, 4, v1
    v_lshlrev_b32 v2, 4, v2
    v_add_u32 v2, {XL}, v2
    s_mul_i32 s58, s{g.tn}, {7*SLAB}
    s_mov_b32 s24, {fx(c1)}
    s_mov_b32 s25, {fx(c1)}
    v_mov_b32 v14, {fx(c0)}
    v_mov_b32 v15, 1.0
    s_waitcnt {'vmcnt(0) ' if after_bar else ''}lgkmcnt(0)
    s_barrier""")
    def rdc(f):
        for n, oo in enumerate((0, 1024, 448, 448 + 1024)): a(f"ds_read_b128 {v(16+4*n,4)}, v2 offset:{64*f+oo}")
    pk = lambda r: v(r, 2)
    rdc(0)
    fl = []
    def F(n):
        for _ in range(n):
            if fl:
                for x in fl.pop(0): a(x)
    for f in range(7):
        a("s_waitcnt lgkmcnt(0)")
        for i in range(4):
            cg, cu, D = g.acc(2 * f, i), g.acc(2 * f + 1, i), 4 + 2 * i
            for e in (0, 2):
                a(f"v_pk_fma_f32 {pk(cg+e)}, {pk(cg+e)}, {pk(D)}, {pk(20+e)} op_sel_hi:[1,0,1]")
                a(f"v_pk_fma_f32 {pk(cu+e)}, {pk(cu+e)}, {pk(D)}, {pk(28+e)} op_sel_hi:[1,0,1]")
            for e in (0, 2):
                a(f"v_pk_fma_f32 {pk(cg+e)}, {pk(16+e)}, {pk(D)}, {pk(cg+e)} op_sel:[0,1,0]")
                a(f"v_pk_fma_f32 {pk(cu+e)}, {pk(24+e)}, {pk(D)}, {pk(cu+e)} op_sel:[0,1,0]")
        if 0 < f < 6: rdc(f + 1)
        if f == 1 and after_bar: fl = after_bar(g.acc(0, 0))
        F(2)
        cg, cu = g.acc(2 * f, 0), g.acc(2 * f + 1, 0)
        tmp = g.acc(2 * f - 1, 0) if f else 16
        for e in range(0, 16, 2): a(f"v_pk_mul_f32 {pk(cu+e)}, {pk(cu+e)}, {pk(cg+e)}")
        for e in range(0, 16, 2): a(f"v_pk_mul_f32 {pk(tmp+e)}, {pk(cg+e)}, {pk(cg+e)}")
        for e in range(0, 16, 2): a(f"v_pk_fma_f32 {pk(tmp+e)}, {pk(tmp+e)}, s[24:25], v[14:15] op_sel_hi:[1,1,0]")
        for e in range(0, 16, 2): a(f"v_pk_mul_f32 {pk(cg+e)}, {pk(tmp+e)}, {pk(cg+e)}")
        if f == 0: rdc(1)
        for e in range(16): a(f"v_exp_f32 v{cg+e}, v{cg+e}")
        for e in range(0, 16, 2): a(f"v_pk_add_f32 {pk(cg+e)}, {pk(cg+e)}, v[14:15] op_sel:[0,1]")
        for e in range(16): a(f"v_rcp_f32 v{cg+e}, v{cg+e}")
        for e in range(0, 16, 2): a(f"v_pk_mul_f32 {pk(cu+e)}, {pk(cg+e)}, {pk(cu+e)}")
        for p_ in range(2): pack_swap(a, cg + 4 * p_, cu + 8 * p_, cu + 8 * p_ + 4)
        for p_ in range(2): swap2(a, cg + 4 * p_)
        for p_ in range(2): a(f"buffer_store_dwordx4 {v(cg+4*p_,4)}, v{12+p_}, s[12:15], s58 offen sc1")
        a(f"s_add_u32 s58, s58, {SLAB}")
        if f < 6: F(3 if f < 5 else 99)

def k_gu():
    R = EXP.get("gR", 4)
    k = Kernel("gu_kernel", 256, 256, 28672 * R + 2048, 256, 1); a = k.a
    g = gu_gemm(k, 0); k.na = g.fend + 37
    assert g.vend <= 16
    head(k, [(60, P_WG), (62, P_WU)])
    g.tile(); g.b_addr(16); g.a_addr(16)
    a("s_waitcnt lgkmcnt(0)")
    g.a_srd(); g.b_srd(60, 62)
    gu_phase(k, g, 28672 * R)
    stamp(k); prof_out(k, KID[k.name]); finish(k)
    return k

def publish(k, tag, s_mine, s_group):
    a = k.a
    srd(a, 12, 38, WS_FLAG, 65536)
    a(f"""
    s_lshl_b32 s32, s{s_mine}, 7
    s_lshl_b32 s59, s{s_group}, 7
    v_mov_b32 v30, 1
    v_mov_b32 v31, s32
    s_waitcnt vmcnt(0)
    s_barrier""")
    stamp(k)
    a(f"""
    s_cmp_lg_u32 s26, 0
    s_cbranch_scc1 {tag}_nf
    s_mov_b64 exec, 1
    buffer_store_dword v30, v31, s[12:15], 0 offen sc1
    s_mov_b64 exec, -1
{tag}_nf:""")
def await_flags(k, tag):
    k.a(f"""
    s_cmp_lg_u32 s26, 0
    s_cbranch_scc1 {tag}_go
    v_and_b32 v30, 31, v1
    v_lshlrev_b32 v30, 7, v30
{tag}_poll:
    buffer_load_dword v31, v30, s[12:15], s59 offen sc1
    s_waitcnt vmcnt(0)
    v_cmp_eq_u32 vcc, 1, v31
    s_cmp_eq_u64 vcc, -1
    s_cbranch_scc0 {tag}_poll
{tag}_go:
    s_waitcnt vmcnt(0)
    s_barrier""")
    stamp(k)

def k_mlp():
    k = Kernel("mlp_kernel", 256, 256, 163840, 256, 1); a = k.a
    oR = EXP.get("oR", 6); OL = 163840 - (8192 * oR + 18432); dR = 14
    go = out_gemm(k, OL, ("a", 0), 0)
    gg = gu_gemm(k, 0, 1, sc1=True)
    gd = down_gemm(k, 0, ("a", 0), dR, 0, vlow=28, sc1=True, acc0=64)
    KEEP = gg.fend + 38; k.na = KEEP + 18
    head(k, [(60, P_WO), (62, P_X), (64, P_WG), (66, P_WU)])
    go.tile(); go.b_addr(16); go.a_addr(16)
    a("s_waitcnt lgkmcnt(0)")
    go.a_srd(); go.b_srd(60)
    def pre_gu():
        gg.tile(); gg.b_addr(12); gg.b_srd(64, 66)
        return gg.preload(EXP.get("gpl", 2))
    rest = out_phase(k, go, OL + 8192 * oR, 62, pre_gu, KEEP, 7)
    a(f"""
    s_lshl_b32 s56, s{go.tm}, 4
    s_add_u32 s56, s56, s{go.tn}
    s_lshl_b32 s57, s{gg.tm}, 5""")
    load_ptrs(a, [(60, P_WD), (62, P_OUT)])
    publish(k, "h1", 56, 57)
    for grp in rest:
        for x in grp: a(x)
    gg.a_addr(16); gg.a_srd()
    a("s_waitcnt lgkmcnt(0)")
    gd.tile(); gd.b_addr(16); gd.b_srd(60)
    a(f"v_accvgpr_write_b32 a{KEEP+16}, v{gd.VB}\nv_accvgpr_write_b32 a{KEEP+17}, v{gd.VB+1}")
    npre = EXP.get("dpl", 13); pl = gd.preload(npre)
    S = gg.S
    NIN = EXP.get("dnin", 20)
    post = [(S - 5 + (0 if n < 2 else 1 if n < 6 else 2 if n < 10 else 3 if n < 14 else 4), grp) for n, grp in enumerate(pl[:NIN])]
    gu_phase(k, gg, 114688, None, lambda: await_flags(k, "h1"), 3, post)
    a(f"""
    s_lshl_b32 s56, s{gg.tm}, 5
    s_add_u32 s56, s56, s{gg.tn}
    s_add_u32 s56, s56, 256
    s_lshr_b32 s57, s{gd.tm}, 1
    s_lshl_b32 s57, s57, 5
    s_add_u32 s57, s57, 256""")
    gd.VB = 40; gd.VR0 = 42; gd.VR = 43; gd.VA = 47
    a(f"v_accvgpr_read_b32 v40, a{KEEP+16}\nv_accvgpr_read_b32 v41, a{KEEP+17}")
    publish(k, "h2", 56, 57)
    for grp in gd.preload(npre)[NIN:]:
        for x in grp: a(x)
    gd.a_addr(16); gd.a_srd()
    down_phase(k, gd, 116736, 62, KEEP, lambda: await_flags(k, "h2"))
    stamp(k); prof_out(k, KID["out_kernel"]); finish(k)
    return k
KID["mlp_kernel"] = KID["out_kernel"]

def all_kernels():
    g2.QPRE = 1024
    EXP["xsplit"] = 1
    if EXP.get("merge", 1):
        EXP["zflag"] = WS_FLAG
        g2.ORDER[:] = ["pre_kernel", "qkv_kernel", "attn_kernel", "mlp_kernel"]
        for kk, vv in (("gINIT", 8), ("gPEEL", 3), ("gCAP", 14)): EXP.setdefault(kk, vv)
        return [g2.k_pre(), k_qkv(), g2.k_attn4(), k_mlp()]
    g2.ORDER[:] = ["pre_kernel", "qkv_kernel", "attn_kernel", "out_kernel", "gu_kernel", "down_kernel"]
    return [g2.k_pre(), k_qkv(), g2.k_attn4(), k_out(), k_gu(), k_down()]

if __name__ == "__main__":
    vb = False
    for x in sys.argv[2:]:
        if x == "prof": g2.PROF = True
        elif x == "verbose": vb = True
        else:
            kk, _, vv = x.partition("="); EXP[kk] = int(vv) if vv else 1
    g2.build(all_kernels(), sys.argv[1] if len(sys.argv) > 1 else "adaLN_cond__mha_block__geglu_ffn__prompt.s", verbose=vb)
```

```python
import sys, math, struct
from asmlib import *

SLAB = 75776
WS_MODP = 0
WS_UV = 64 << 10
WS_STAT = 256 << 10
WS_WQ3 = 1 << 20
WS_WO3 = 5 << 19
WS_WD3 = 3 << 20
WS_H1 = 5 << 20
WS_Q = 10 << 20
WS_KV = 14 << 20
WS_O = 22 << 20
WS_X2 = 27 << 20
WS_Y2 = 32 << 20
WS_ACT = 37 << 20
WS_PROF = 56 << 20
KS = 2
P_X, P_WQKV, P_WO, P_BX, P_WG, P_WU, P_WD, P_C, P_WMOD, P_OUT, P_DBG, P_WS = [8 * i for i in range(12)]
LOG2E = 1.4426950408889634
PROF = False
EXP = {}
KID = {"qkv_kernel": 0, "out_kernel": 1, "gu_kernel": 2, "down_kernel": 3, "attn_kernel": 4}
def f2u(x): return struct.unpack("<I", struct.pack("<f", x))[0]
def fx(x): return hex(f2u(x))

class Kernel:
    def __init__(self, name, grid, block, lds, nv, na=0):
        self.name, self.grid, self.block, self.lds, self.nv, self.na = name, grid, block, lds, nv, na
        self.a = Asm()
    def text(self, report=None):
        body = fix_hazards(merge_waits(self.a.l), report)
        return (f".text\n.globl {self.name}\n.p2align 8\n.type {self.name},@function\n{self.name}:\n" + "\n".join(body) + "\n")
    def desc(self):
        acc = (self.nv + 3) // 4 * 4
        nfv = acc + self.na if self.na else self.nv
        return f""".p2align 6
.amdhsa_kernel {self.name}
  .amdhsa_next_free_vgpr {nfv}
  .amdhsa_next_free_sgpr 102
  .amdhsa_accum_offset {acc}
  .amdhsa_group_segment_fixed_size 0
  .amdhsa_kernarg_size 96
  .amdhsa_user_sgpr_count 2
  .amdhsa_user_sgpr_kernarg_segment_ptr 1
  .amdhsa_system_sgpr_workgroup_id_x 1
  .amdhsa_float_denorm_mode_32 3
  .amdhsa_float_denorm_mode_16_64 3
.end_amdhsa_kernel
"""

def stamp(k, i):
    if PROF: k.a(f"s_memtime {s(64+2*i,2)}\ns_memrealtime {s(74+2*i,2)}\ns_waitcnt lgkmcnt(0)")
def prof_out(k, n, kid, wave_s):
    if not PROF: return
    a = k.a
    a(f"s_waitcnt vmcnt(0)\ns_memtime {s(64+2*n,2)}\ns_memrealtime {s(74+2*n,2)}\ns_load_dwordx2 s[84:85], s[0:1], {P_WS}\ns_waitcnt lgkmcnt(0)")
    a(f"s_add_u32 s84, s84, {WS_PROF + kid*(1<<18)}\ns_addc_u32 s85, s85, 0\ns_mov_b32 s86, {1<<18}\ns_mov_b32 s87, 0x20000")
    a(f"s_lshl_b32 s88, s2, 3\ns_add_u32 s88, s88, s{wave_s}\ns_lshl_b32 s88, s88, 6\nv_mov_b32 v1, 0")
    for i in range(10):
        a(f"v_mov_b32 v0, s{64+2*i}\nbuffer_store_dword v0, v1, s[84:87], s88 offen offset:{4*i}")
def load_ptrs(a, pairs):
    for sreg, off in pairs: a(f"s_load_dwordx2 {s(sreg,2)}, s[0:1], {off}")
def srd(a, d, p, off, size):
    if off: a(f"s_add_u32 s{d}, s{p}, {off}\ns_addc_u32 s{d+1}, s{p+1}, 0")
    else: a(f"s_mov_b32 s{d}, s{p}\ns_mov_b32 s{d+1}, s{p+1}")
    a(f"s_mov_b32 s{d+2}, {size}\ns_mov_b32 s{d+3}, 0x20000")
def guard(k): k.a(f"s_cmp_ge_u32 s2, {k.grid}\ns_cbranch_scc1 {k.name}_end")
def finish(k): k.a(f"{k.name}_end:\ns_endpgm")
def unpack(a, dst, src, n):
    for i in range(n):
        a(f"v_lshlrev_b32 v{dst+2*i}, 16, v{src+i}\nv_and_b32 v{dst+2*i+1}, 0xffff0000, v{src+i}")
def rbf(a, x):
    a(f"v_cvt_pk_bf16_f32 v{x}, v{x}, v{x}\nv_and_b32 v{x}, 0xffff0000, v{x}")
def phys_line(a, dst, i, t):
    a(f"""
    v_mul_u32_u24 v{t}, 9363, v{i}
    v_lshrrev_b32 v{t}, 16, v{t}
    v_add_u32 v{dst}, v{i}, v{t}
    v_mul_u32_u24 v{t}, 7, v{t}
    v_sub_u32 v{t}, v{i}, v{t}
    v_add_u32 v{t}, 5, v{t}
    v_lshrrev_b32 v{t}, 3, v{t}
    v_add_lshl_u32 v{dst}, v{dst}, v{t}, 7""")
def frag_off(a, dst, srb, lane, t):
    a(f"v_lshrrev_b32 v{t}, 3, v{lane}\nv_lshl_add_u32 v{t}, s{srb}, 3, v{t}")
    phys_line(a, dst, t, t + 1)
    a(f"v_and_b32 v{t}, 7, v{lane}\nv_lshl_add_u32 v{dst}, v{t}, 4, v{dst}")
def tr_lane(a, T, lane, korder, colperm):
    a(f"""
    v_lshrrev_b32 v{T}, 5, v{lane}
    v_bfe_u32 v{T+1}, v{lane}, 4, 1
    v_bfe_u32 v{T+2}, v{lane}, 2, 2
    v_and_b32 v{T+3}, 3, v{lane}""")
    if colperm:
        a(f"v_lshrrev_b32 v{T+4}, 1, v{T+3}\nv_and_b32 v{T+3}, 1, v{T+3}\nv_lshl_add_u32 v{T+3}, v{T+3}, 1, v{T+4}")
    a(f"v_lshl_add_u32 v{T+4}, v{T}, {2 if korder=='split' else 3}, v{T+2}")
def panel_rd(a, T, e, o):
    a(f"""
    v_lshlrev_b32 v{T+4}, 7, v{T+4}
    v_lshl_add_u32 v{T+4}, v{T+1}, 5, v{T+4}
    v_lshl_add_u32 v{T+4}, v{T+3}, 3, v{T+4}
    v_lshrrev_b32 v{T+5}, 1, v{T+2}
    v_lshlrev_b32 v{T+5}, 6, v{T+5}
    v_add_u32 v{e}, v{T+4}, v{T+5}
    v_sub_u32 v{o}, v{T+4}, v{T+5}
    v_add_u32 v{o}, 64, v{o}""")
def panel_src(a, T, lane):
    a(f"""
    v_lshrrev_b32 v{T}, 3, v{lane}
    v_and_b32 v{T+1}, 7, v{lane}
    v_bfe_u32 v{T+2}, v{lane}, 4, 1
    v_lshlrev_b32 v{T+2}, 2, v{T+2}
    v_xor_b32 v{T+1}, v{T+1}, v{T+2}""")

SK_LDS = 65536 + 2048
def skinny(k, tag, mode, nt, pace=0, flag=False, nw=8, mid=None):
    a = k.a; NV = 1 if mode == "silu" else 2
    NC = 8 // nw; lg = (NC - 1).bit_length() if NC > 1 else 0
    VX = 100
    a(f"""
    s_lshl_b32 s55, s26, {6+lg}
    s_add_u32 s56, s52, s55""")
    if mode == "silu":
        a("v_add_lshl_u32 v4, v1, s56, 1")
        for c in range(NC): a(f"buffer_load_ushort v{VX+4*c}, v4, s[12:15], 0 offen offset:{128*c}")
    else:
        a("v_add_lshl_u32 v4, v1, s56, 2")
        for i, (p, idx) in enumerate([(0, 4), (1, 4), (0, 3), (1, 3)]):
            a(f"s_mov_b32 s57, {p*6144*4 + idx*4096}")
            for c in range(NC): a(f"buffer_load_dword v{VX+4*c+i}, v4, s[12:15], s57 offen offset:{256*c}")
    panel_src(a, 5, 1)
    a(f"""
    v_add_u32 v5, s55, v5
    v_mul_lo_u32 v5, v5, s51
    v_lshl_add_u32 v5, v6, 4, v5
    s_lshl_b32 s57, s26, {13+lg}
    s_lshl_b32 s59, s51, 3""")
    def dmas():
        for g in range(8 * NC):
            a(f"s_add_u32 m0, s57, {1024*g}\ns_nop 0\nbuffer_load_dwordx4 v5, s[8:11], s50 offen{nt} lds\ns_add_u32 s50, s50, s59")
            if pace and g < 8 * NC - 1: a(f"s_waitcnt vmcnt({pace-1})")
    if not mid: dmas()
    tr_lane(a, 12, 1, "contig", False)
    panel_rd(a, 12, 18, 19)
    a(f"""
    v_add_u32 v18, s57, v18
    v_add_u32 v19, s57, v19
    s_lshl_b32 s58, s26, {8+lg}
    s_add_u32 s58, s58, 0x10000
    v_lshl_add_u32 v6, v1, 1, s58
    v_and_b32 v7, 31, v1
    v_lshrrev_b32 v12, 5, v1
    v_lshlrev_b32 v12, 4, v12
    v_lshl_add_u32 v12, v7, 7, v12
    v_add_u32 v12, s58, v12
    s_waitcnt vmcnt({0 if mid else 8*NC})""")
    for c in range(NC):
        x = VX + 4 * c
        if mode == "silu":
            a(f"""
            v_lshlrev_b32 v{x}, 16, v{x}
            v_mul_f32 v{x+1}, {fx(-LOG2E)}, v{x}
            v_exp_f32 v{x+1}, v{x+1}
            v_add_f32 v{x+1}, 1.0, v{x+1}
            v_rcp_f32 v{x+1}, v{x+1}
            v_mul_f32 v{x}, v{x}, v{x+1}
            v_cvt_pk_bf16_f32 v{x}, v{x}, v{x}
            ds_write_b16 v6, v{x} offset:{256*c}""")
        else:
            a(f"v_add_f32 v{x}, v{x}, v{x+1}\nv_add_f32 v{x+2}, v{x+2}, v{x+3}")
            rbf(a, x)
            a(f"v_add_f32 v{x}, 1.0, v{x}\nv_cvt_pk_bf16_f32 v{x}, v{x}, v{x}\nv_cvt_pk_bf16_f32 v{x+2}, v{x+2}, v{x+2}")
            a(f"ds_write_b16 v6, v{x} offset:{256*c}\nds_write_b16 v6, v{x+2} offset:{256*c+128}")
    for i in range(16): a(f"v_mov_b32 v{20+i}, 0")
    if mid:
        dmas(); mid()
    a(f"v_cmp_gt_u32 vcc, {NV}, v7\ns_waitcnt vmcnt(0) lgkmcnt(0)")
    for c in range(NC):
        a("s_and_saveexec_b64 s[60:61], vcc")
        for sub in range(4): a(f"ds_read_b128 {v(20+4*sub,4)}, v12 offset:{32*sub+256*c}")
        a("s_mov_b64 exec, s[60:61]")
        for sub in range(4):
            for j in range(2):
                for r_ in range(2):
                    a(f"ds_read_b64_tr_b16 {v(36+8*sub+4*j+2*r_,2)}, v{18+j} offset:{128*(16*sub+4*r_)+8192*c}")
        for sub in range(4):
            a(f"s_waitcnt lgkmcnt({12-4*sub})")
            for j in range(2):
                d = v(68 + 16 * j, 16)
                a(f"v_mfma_f32_32x32x16_bf16 {d}, {v(20+4*sub,4)}, {v(36+8*sub+4*j,4)}, {d if (sub or c) else 0}")
    a(f"""
    v_lshl_add_u32 v6, v1, 2, s57
    v_cmp_gt_u32 vcc, 32, v1
    s_and_saveexec_b64 s[60:61], vcc""")
    for j in range(2):
        for q in range(NV): a(f"ds_write_b32 v6, v{68+16*j+q} offset:{256*q+128*j}")
    a(f"""
    s_mov_b64 exec, s[60:61]
    s_waitcnt lgkmcnt(0)
    s_barrier
    s_cmp_ge_u32 s26, {NV}
    s_cbranch_scc1 {k.name}_end
    s_lshl_b32 s57, s26, 8
    v_lshl_add_u32 v6, v1, 2, s57""")
    for w in range(nw): a(f"ds_read_b32 v{8+w}, v6 offset:{8192*NC*w}")
    a(f"s_mul_i32 s57, s26, s54\ns_add_u32 s53, s53, s57\nv_lshlrev_b32 v6, 2, v1\ns_waitcnt lgkmcnt(0)")
    for w in (4, 2, 1):
        if w < nw:
            for i in range(w): a(f"v_add_f32 v{8+i}, v{8+i}, v{8+w+i}")
    if not flag:
        a("buffer_store_dword v8, v6, s[16:19], s53 offen\ns_endpgm")
        return
    a("""
    buffer_store_dword v8, v6, s[16:19], s53 offen sc1
    s_lshl_b32 s57, s2, 2
    v_mov_b32 v9, 1
    v_mov_b32 v6, s57
    s_mov_b64 exec, 1
    s_waitcnt vmcnt(0)
    buffer_store_dword v9, v6, s[20:23], 0 offen sc1
    s_endpgm""")

def prefetch(a, gid, ps, nbytes, start, vt, srd_s=20):
    srd(a, srd_s, ps, 0, nbytes)
    a(f"""
    v_subrev_u32 v{vt}, {start}, v{gid}
    v_cmp_gt_u32 vcc, {nbytes//128}, v{vt}
    v_lshlrev_b32 v{vt}, 7, v{vt}
    v_mov_b32 v{vt+1}, 0x80000000
    v_cndmask_b32 v{vt}, v{vt+1}, v{vt}, vcc
    buffer_load_dword v{vt+1}, v{vt}, {s(srd_s,4)}, 0 offen""")

def strip_copy_issue(a, gid, ps, K, ldb, npan, start, vt, srd_s=20):
    srd(a, srd_s, ps, 0, K * ldb)
    n = 2 * npan
    a(f"""
    v_subrev_u32 v{vt}, {start}, v{gid}
    v_cmp_gt_u32 vcc, {K*n*8}, v{vt}
    v_and_b32 v{vt+1}, 7, v{vt}
    v_lshrrev_b32 v{vt}, 3, v{vt}""")
    if npan == 1:
        a(f"v_lshrrev_b32 v{vt+2}, 1, v{vt}\nv_and_b32 v{vt+3}, 1, v{vt}\nv_lshlrev_b32 v{vt+3}, 10, v{vt+3}")
    else:
        a(f"""
        v_mul_u32_u24 v{vt+2}, 10923, v{vt}
        v_lshrrev_b32 v{vt+2}, 16, v{vt+2}
        v_mul_u32_u24 v{vt+3}, 6, v{vt+2}
        v_sub_u32 v{vt+3}, v{vt}, v{vt+3}
        v_lshlrev_b32 v{vt+4}, 11, v{vt+3}
        v_add_u32 v{vt+3}, 5, v{vt+3}
        v_lshrrev_b32 v{vt+3}, 3, v{vt+3}
        v_mul_u32_u24 v{vt+3}, {6144-1024}, v{vt+3}
        v_sub_u32 v{vt+3}, v{vt+4}, v{vt+3}""")
    a(f"""
    v_mul_u32_u24 v{vt+2}, {ldb}, v{vt+2}
    v_add3_u32 v{vt+2}, v{vt+2}, v{vt+3}, 0
    v_lshl_add_u32 v{vt+2}, v{vt+1}, 4, v{vt+2}
    v_add_u32 v{vt+2}, 384, v{vt+2}
    v_mov_b32 v{vt+3}, 0x80000000
    v_cndmask_b32 v{vt+2}, v{vt+3}, v{vt+2}, vcc
    v_lshlrev_b32 v{vt}, 8, v{vt}
    v_lshl_add_u32 v{vt}, v{vt+1}, 4, v{vt}
    v_cndmask_b32 v{vt}, v{vt+3}, v{vt}, vcc
    buffer_load_dwordx4 {v(vt+4,4)}, v{vt+2}, {s(srd_s,4)}, 0 offen""")
def strip_copy_store(a, ws_s, off, size, vt, srd_s=20):
    srd(a, srd_s, ws_s, off, size)
    a(f"buffer_store_dwordx4 {v(vt+4,4)}, v{vt}, {s(srd_s,4)}, 0 offen sc1")

ORDER = []
def code_srd(k, d, start, upto=None, nwg=8):
    if EXP.get("nocpf"): nwg = 0
    i = ORDER.index(k.name)
    end = upto or (ORDER[min(i + 1, len(ORDER) - 1)] + "_end")
    k.npc = getattr(k, "npc", 0) + 1
    lab = f"{k.name}_pc{k.npc}"
    k.a(f"""
    s_getpc_b64 {s(d,2)}
{lab}:
    s_add_u32 s{d}, s{d}, {start}-{lab}
    s_addc_u32 s{d+1}, s{d+1}, 0
    s_mov_b32 s{d+2}, {end}-{start}+4
    s_cmp_lt_u32 s2, {nwg}
    s_cselect_b32 s{d+2}, s{d+2}, 0
    s_mov_b32 s{d+3}, 0x20000""")
def wave_lane(a):
    a("v_lshrrev_b32 v2, 6, v0\nv_and_b32 v1, 63, v0\nv_readfirstlane_b32 s26, v2")

def red32(a, x, t):
    for m in ("quad_perm:[1,0,3,2]", "quad_perm:[2,3,0,1]", "row_half_mirror", "row_mirror"):
        a(f"v_add_f32_dpp v{x}, v{x}, v{x} {m} row_mask:0xf bank_mask:0xf")
    a(f"v_mov_b32 v{t}, v{x}\nv_permlane16_swap_b32 v{x}, v{t}\nv_add_f32 v{x}, v{x}, v{t}")

QPRE = 256
def k_pre():
    GP = EXP.get("gpre", 0)
    NT = EXP.get("tlbwg", 8) if EXP.get("tlb", 0) else 0
    k = Kernel("pre_kernel", (320 if GP else 256) + NT, 512, SK_LDS, 112); a = k.a
    guard(k)
    if NT:
        sh = EXP["tlb"]
        a(f"s_cmp_lt_u32 s2, {k.grid - NT}\ns_cbranch_scc1 pre_main")
        bufs = [(P_WS, 0, 54 << 20), (P_WO, 0, 2 << 20), (P_WG, 0, 1024 * 7168), (P_WU, 0, 1024 * 7168), (P_WD, 0, 3584 * 2048), (P_OUT, 0, 4 << 20),
                (P_WQKV, 0, 1024 * 6144), (P_WMOD, 0, 1024 * 12288), (P_X, 0, 4 << 20)]
        for i, (p, o, n) in enumerate(bufs): a(f"s_load_dwordx2 {s(40+2*i,2)}, s[0:1], {p}")
        a(f"v_lshlrev_b32 v1, {sh}, v0\ns_waitcnt lgkmcnt(0)")
        for i, (p, o, n) in enumerate(bufs):
            srd(a, 4, 40 + 2 * i, 0, n)
            for c in range(0, n, 512 << sh):
                a(f"s_mov_b32 s8, {c}\nbuffer_load_dword v2, v1, s[4:7], s8 offen")
        a("s_endpgm\npre_main:")
    code_srd(k, 88, "pre_kernel_top", ORDER[-1] + "_end")
    a("v_lshlrev_b32 v108, 7, v0\nbuffer_load_dword v109, v108, s[88:91], 0 offen\npre_kernel_top:")
    load_ptrs(a, [(40, P_C), (42, P_WMOD), (44, P_WS), (46, P_WQKV), (48, P_X), (62, P_DBG)])
    wave_lane(a)
    a(f"""
    s_sub_u32 s27, s2, 128
    s_cmp_lt_u32 s27, 128
    s_cbranch_scc1 pre_side
    s_and_b32 s32, s2, 1
    s_lshr_b32 s33, s2, 1
    s_cmp_ge_u32 s33, 32
    s_cselect_b32 s34, 16, 0
    s_add_u32 s33, s33, s34
    s_cmp_ge_u32 s33, 160
    s_mov_b32 s34, 112
    s_cselect_b32 s34, 80, s34
    s_cmp_ge_u32 s33, 144
    s_cselect_b32 s34, s34, 0
    s_sub_u32 s33, s33, s34
    s_lshl_b32 s52, s32, 9
    s_mov_b32 s51, 12288
    s_mul_i32 s50, s52, s51
    s_lshl_b32 s34, s33, 7
    s_add_u32 s50, s50, s34
    s_mul_i32 s53, s32, {6144*4}
    s_lshl_b32 s34, s33, 8
    s_add_u32 s53, s53, s34
    s_mov_b32 s54, 0
    s_waitcnt lgkmcnt(0)""")
    srd(a, 8, 42, 0, 1024 * 12288); srd(a, 12, 40, 0, 2048); srd(a, 16, 44, WS_MODP, KS * 6144 * 4)
    F2 = EXP.get("fuse1", 1) == 2
    if F2: srd(a, 20, 62, 0, 256)
    skinny(k, "m", "silu", " nt" if EXP.get("mnt", 1) else "", flag=F2)
    a("""
pre_side:
    s_lshl_b32 s32, s27, 9
    v_add_u32 v3, s32, v0""")
    if not EXP.get("fuse1", 1):
        a("s_waitcnt lgkmcnt(0)")
        strip_copy_issue(a, 3, 46, 1024, 6144, 3, 0, 8)
        prefetch(a, 3, 46, 1024 * 6144, 65536 - 49152, 20)
        prefetch(a, 3, 48, 2048 * 2048, 0, 24)
        a("s_waitcnt vmcnt(2)")
        strip_copy_store(a, 44, WS_WQ3, 1024 * 1536, 8)
        finish(k)
        return k
    a(f"""
    v_lshrrev_b32 v1, 5, v0
    v_and_b32 v2, 31, v0               ; chunk
    s_lshl_b32 s24, s27, 4
    v_add_u32 v4, s24, v1
    v_lshlrev_b32 v4, 11, v4
    v_lshl_add_u32 v4, v2, 4, v4
    s_waitcnt lgkmcnt(0)""")
    srd(a, 4, 48, 0, 2048 * 2048); srd(a, 12, 44, WS_H1, 64 * SLAB)
    for i in range(4): a(f"buffer_load_dwordx4 {v(8+4*i,4)}, v4, s[4:7], 0 offen offset:{512*i} nt")
    if EXP.get("zflag"):
        srd(a, 20, 44, EXP["zflag"], 65536)
        a("v_lshlrev_b32 v76, 7, v3\nv_mov_b32 v77, 0\nbuffer_store_dword v77, v76, s[20:23], 0 offen")
    EARLY = (not F2) or EXP.get("pfearly", 1)
    if EARLY:
        strip_copy_issue(a, 3, 46, 1024, 6144, 3, 0, 64)
        prefetch(a, 3, 46, QPRE * 6144, 65536 - QPRE * 48, 72)
    a(f"""
    s_lshr_b32 s25, s27, 1
    s_lshl_b32 s25, s25, 3
    s_and_b32 s26, s27, 1
    s_lshl_b32 s26, s26, 1
    s_add_u32 s25, s25, s26
    v_bfe_u32 v26, v0, 4, 1
    v_lshl_add_u32 v26, v26, 2, s25
    v_bfe_u32 v27, v0, 3, 1
    v_add_u32 v26, v26, v27""")
    phys_line(a, 25, 26, 27)
    a(f"""
    v_and_b32 v26, 7, v0
    v_lshl_add_u32 v25, v26, 4, v25
    s_mov_b32 s25, {SLAB}
    v_mul_lo_u32 v27, v1, s25
    v_add_u32 v25, v25, v27
    v_lshrrev_b32 v27, 4, v0
    v_mul_u32_u24 v27, 272, v27
    v_and_b32 v26, 15, v0
    v_lshl_add_u32 v27, v26, 4, v27
    v_mul_u32_u24 v28, 272, v2
    v_lshl_add_u32 v28, v1, 4, v28""")
    if EXP.get("xsplit"): a("v_and_b32 v29, 1, v2\nv_mul_u32_u24 v29, 264, v29\nv_sub_u32 v28, v28, v29")
    a(f"s_waitcnt vmcnt({2 if EARLY else 0})")
    if not EARLY:
        a("""
        v_subrev_u32 v5, 64, v0
        s_mul_i32 s32, s27, 448
        v_add_u32 v5, s32, v5
        v_mov_b32 v29, 0x40000000
        v_cmp_gt_u32 vcc, 64, v0
        v_cndmask_b32 v3, v5, v29, vcc""")
        strip_copy_issue(a, 3, 46, 1024, 6144, 3, 0, 64)
        prefetch(a, 3, 46, QPRE * 6144, 57344 - QPRE * 48, 72)
    unpack(a, 32, 8, 16)
    a("v_add_f32 v6, v32, v33\nv_add_f32 v7, v34, v35")
    for i in range(4, 32): a(f"v_add_f32 v{6+i%2}, v{6+i%2}, v{32+i}")
    a("v_add_f32 v6, v6, v7")
    red32(a, 6, 7)
    a(f"v_mul_f32 v6, {fx(1/1024)}, v6")
    for i in range(32): a(f"v_sub_f32 v{32+i}, v{32+i}, v6")
    a("v_mul_f32 v6, v32, v32\nv_mul_f32 v7, v33, v33")
    for i in range(2, 32): a(f"v_fmac_f32 v{6+i%2}, v{32+i}, v{32+i}")
    a("v_add_f32 v6, v6, v7")
    red32(a, 6, 7)
    a(f"""
    v_mov_b32 v7, {fx(1e-5)}
    v_fmac_f32 v7, {fx(1/1024)}, v6
    v_rsq_f32 v6, v7""")
    if not F2:
        for i in range(4):
            for j in range(8): a(f"v_mul_f32 v{32+8*i+j}, v{32+8*i+j}, v6")
            for j in range(4): a(f"v_cvt_pk_f16_f32 v{8+4*i+j}, v{32+8*i+2*j}, v{33+8*i+2*j}")
            if EXP.get("xsplit"):
                a(f"ds_write_b64 v28, {v(8+4*i,2)} offset:{32*272*i}\nds_write_b64 v28, {v(10+4*i,2)} offset:{32*272*i+272}")
            else: a(f"ds_write_b128 v28, {v(8+4*i,4)} offset:{32*272*i}")
    else:
        CL = 36864
        for i in range(32): a(f"v_mul_f32 v{32+i}, v{32+i}, v6")
        srd(a, 16, 62, 0, 256); srd(a, 8, 44, WS_MODP, KS * 6144 * 4)
        a(f"""
        v_lshlrev_b32 v5, 4, v0
        v_lshlrev_b32 v24, 5, v2
        v_lshrrev_b32 v7, 6, v0
        v_lshlrev_b32 v6, 2, v0
        v_readfirstlane_b32 s26, v7
        s_cmp_lg_u32 s26, 0
        s_cbranch_scc1 pre_go
pre_poll:
        buffer_load_dword v7, v6, s[16:19], 0 offen sc1
        s_waitcnt vmcnt(0)
        v_cmp_eq_u32 vcc, 1, v7
        s_cmp_eq_u64 vcc, -1
        s_cbranch_scc1 pre_go
        s_sleep 1
        s_branch pre_poll
pre_go:
        s_barrier
        s_mov_b32 s32, {6144*4}
        buffer_load_dwordx4 v[8:11], v5, s[8:11], 0 offen sc1
        buffer_load_dwordx4 v[12:15], v5, s[8:11], s32 offen sc1
        s_cmp_ge_u32 s26, 4
        s_cselect_b32 s33, 1.0, 0
        s_waitcnt vmcnt(0)""")
        for j in range(4): a(f"v_add_f32 v{8+j}, v{8+j}, v{12+j}")
        for j in range(2): a(f"v_cvt_pk_bf16_f32 v{12+j}, v{8+2*j}, v{9+2*j}")
        unpack(a, 8, 12, 2)
        for j in range(4): a(f"v_add_f32 v{8+j}, s33, v{8+j}")
        for j in range(2): a(f"v_cvt_pk_bf16_f32 v{12+j}, v{8+2*j}, v{9+2*j}")
        unpack(a, 8, 12, 2)
        a(f"ds_write_b128 v5, v[8:11] offset:{CL}\ns_waitcnt lgkmcnt(0)\ns_barrier")
        B0, B1 = 8, 76
        def crd(i):
            B = B0 if i % 2 == 0 else B1
            for n, o in enumerate((4096, 4096 + 16, 0, 16)): a(f"ds_read_b128 {v(B+4*n,4)}, v24 offset:{CL+o+1024*i}")
        crd(0); crd(1)
        for i in range(4):
            B = B0 if i % 2 == 0 else B1
            a(f"s_waitcnt lgkmcnt({[4,5,5,1][i]})")
            for j in range(8): a(f"v_fma_f32 v{32+8*i+j}, v{32+8*i+j}, v{B+j}, v{B+8+j}")
            for j in range(4): a(f"v_cvt_pk_bf16_f32 v{92+j}, v{32+8*i+2*j}, v{33+8*i+2*j}")
            a(f"ds_write_b128 v28, v[92:95] offset:{32*272*i}")
            if i < 2: crd(i + 2)
    a("s_waitcnt lgkmcnt(0)\ns_barrier")
    for i in range(4): a(f"ds_read_b128 {v(32+4*i,4)}, v27 offset:{32*272*i}")
    for i in range(4):
        a(f"s_mov_b32 s25, {16*SLAB*i}\ns_waitcnt lgkmcnt({3-i})\nbuffer_store_dwordx4 {v(32+4*i,4)}, v25, s[12:15], s25 offen sc1")
    if not F2: a("s_waitcnt vmcnt(5)")
    strip_copy_store(a, 44, WS_WQ3, 1024 * 1536, 64)
    finish(k)
    return k

def k_ln(name, src_ptr, dst_off, shift_idx, scale_idx):
    k = Kernel(name, 256, 256, 8192 + 128 * 144, 128); a = k.a
    guard(k)
    load_ptrs(a, [(40, src_ptr), (44, P_WS)])
    code_srd(k, 88, name + "_end")
    a("v_lshlrev_b32 v30, 7, v0\nbuffer_load_dword v31, v30, s[88:91], 0 offen")
    a(f"""
    v_lshrrev_b32 v1, 5, v0
    v_and_b32 v2, 31, v0               ; chunk
    s_lshl_b32 s24, s2, 3
    v_add_u32 v3, s24, v1              ; row
    v_lshlrev_b32 v4, 11, v3
    v_lshl_add_u32 v4, v2, 4, v4
    v_lshlrev_b32 v5, 4, v0            ; tid*16
    s_waitcnt lgkmcnt(0)""")
    srd(a, 4, 40, 0, 2048 * 2048); srd(a, 8, 44, WS_MODP, KS * 6144 * 4); srd(a, 12, 44, dst_off, 64 * SLAB)
    for p in range(KS):
        a(f"s_mov_b32 s25, {p*6144*4 + scale_idx*4096}\nbuffer_load_dwordx4 {v(96+8*p,4)}, v5, s[8:11], s25 offen")
        a(f"s_mov_b32 s25, {p*6144*4 + shift_idx*4096}\nbuffer_load_dwordx4 {v(100+8*p,4)}, v5, s[8:11], s25 offen")
    for i in range(4): a(f"buffer_load_dwordx4 {v(8+4*i,4)}, v4, s[4:7], 0 offen offset:{512*i}")
    a(f"""
    s_lshr_b32 s25, s2, 2
    s_lshl_b32 s25, s25, 3
    s_and_b32 s26, s2, 3
    s_add_u32 s25, s25, s26
    v_bfe_u32 v26, v0, 3, 1
    v_lshl_add_u32 v26, v26, 2, s25""")
    phys_line(a, 25, 26, 27)
    a(f"""
    v_and_b32 v26, 7, v0
    v_lshl_add_u32 v25, v26, 4, v25
    v_lshrrev_b32 v27, 4, v0
    s_mov_b32 s25, {SLAB}
    v_mul_lo_u32 v27, v27, s25
    v_add_u32 v25, v25, v27
    v_lshrrev_b32 v27, 3, v0
    v_mul_u32_u24 v27, 144, v27
    v_lshl_add_u32 v27, v26, 4, v27
    v_mul_u32_u24 v28, 144, v2
    v_lshl_add_u32 v28, v1, 4, v28
    s_waitcnt vmcnt(4)""")
    for p in range(1, KS):
        for j in range(8): a(f"v_add_f32 v{96+j}, v{96+j}, v{96+8*p+j}")
    for j in range(4): a(f"v_cvt_pk_bf16_f32 v{112+j}, v{96+2*j}, v{97+2*j}")
    unpack(a, 96, 112, 4)
    for j in range(4): a(f"v_add_f32 v{96+j}, 1.0, v{96+j}")
    for j in range(2): a(f"v_cvt_pk_bf16_f32 v{112+j}, v{96+2*j}, v{97+2*j}")
    unpack(a, 96, 112, 2)
    a("ds_write_b128 v5, v[96:99]\nds_write_b128 v5, v[100:103] offset:4096")
    a("s_waitcnt vmcnt(0)")
    unpack(a, 32, 8, 16)
    a("v_add_f32 v6, v32, v33\nv_add_f32 v7, v34, v35")
    for i in range(4, 32): a(f"v_add_f32 v{6+i%2}, v{6+i%2}, v{32+i}")
    a("v_add_f32 v6, v6, v7")
    red32(a, 6, 7)
    a(f"v_mul_f32 v6, {fx(1/1024)}, v6")
    for i in range(32): a(f"v_sub_f32 v{32+i}, v{32+i}, v6")
    a("v_mul_f32 v6, v32, v32\nv_mul_f32 v7, v33, v33")
    for i in range(2, 32): a(f"v_fmac_f32 v{6+i%2}, v{32+i}, v{32+i}")
    a("v_add_f32 v6, v6, v7")
    red32(a, 6, 7)
    a(f"""
    v_mov_b32 v7, {fx(1e-5)}
    v_fmac_f32 v7, {fx(1/1024)}, v6
    v_rsq_f32 v6, v7
    v_lshlrev_b32 v24, 5, v2
    s_waitcnt lgkmcnt(0)
    s_barrier""")
    for i in range(4):
        a(f"ds_read_b128 {v(64+16*i,4)}, v24 offset:{1024*i}\nds_read_b128 {v(68+16*i,4)}, v24 offset:{1024*i+16}")
        a(f"ds_read_b128 {v(72+16*i,4)}, v24 offset:{4096+1024*i}\nds_read_b128 {v(76+16*i,4)}, v24 offset:{4096+1024*i+16}")
    for i in range(32): a(f"v_mul_f32 v{32+i}, v{32+i}, v6")
    for i in range(4):
        a(f"s_waitcnt lgkmcnt({12-4*i+i})")
        for j in range(8): a(f"v_fma_f32 v{32+8*i+j}, v{32+8*i+j}, v{64+16*i+j}, v{72+16*i+j}")
        for j in range(4): a(f"v_cvt_pk_bf16_f32 v{8+4*i+j}, v{32+8*i+2*j}, v{33+8*i+2*j}")
        a(f"ds_write_b128 v28, {v(8+4*i,4)} offset:{8192+32*144*i}")
    a("s_waitcnt lgkmcnt(0)\ns_barrier")
    for i in range(4): a(f"ds_read_b128 {v(32+4*i,4)}, v27 offset:{8192+32*144*i}")
    for i in range(4):
        a(f"s_mov_b32 s25, {16*SLAB*i}\ns_waitcnt lgkmcnt({3-i})\nbuffer_store_dwordx4 {v(32+4*i,4)}, v25, s[12:15], s25 offen sc1")
    finish(k)
    return k

def tile_map(a, TM, TN, xm, xn):
    tm_per, tn_per = TM // xm, TN // xn
    assert tm_per & (tm_per - 1) == 0
    a(f"""
    s_and_b32 s32, s2, 7
    s_lshr_b32 s33, s2, 3
    s_lshr_b32 s34, s32, {xn.bit_length()-1}
    s_and_b32 s35, s32, {xn-1}
    s_and_b32 s24, s33, {tm_per-1}
    s_lshr_b32 s25, s33, {tm_per.bit_length()-1}
    s_mul_i32 s34, s34, {tm_per}
    s_add_u32 s24, s24, s34
    s_mul_i32 s35, s35, {tn_per}
    s_add_u32 s25, s25, s35""")
    wave_lane(a)

def k_gemm(name, K, MB, NB, DA, R, U, PEEL, CAP, INIT, btype, a_off, korder, colperm, orient, TM, TN, xm, xn,
           ptrs, setup, epilogue, ldb, alt=None, big=False, ntemp=24, xlds=0, nxa=0, FB=1, mod=False):
    S = K // 16; NST = K // 64; WG = EXP.get(name[0] + 'WG', 2 if mod else 1)
    assert (NST - PEEL) % U == 0 and (4 * U) % DA == 0 and (4 * PEEL) % DA == 0 and (4 * U) % FB == 0 and (4 * PEEL) % FB == 0
    if btype == "panel":
        NP = NB // 2; STAGE = NP * 8192; ND = 2 * NP
    else:
        UPOFF = 16 * (64 * 14 + 8); STAGE = 2 * UPOFF; ND = 7
    VRE0, VRO0, VRE, VRO, VA = 3, 4, 5, 6, 7
    VB = VA + MB
    nfix = VB + ND
    if big:
        ACC = 256 - 16 * NB * MB; fk = "a"; BF = 0; AR = 4 * NB * FB; XA = AR + 4 * MB * DA; na = XA + nxa; nv = 256
        TMP = (nfix + 1) // 2 * 2; assert TMP + 14 <= ACC
    else:
        TMP = (nfix + 3) // 4 * 4
        ACC = (TMP + ntemp + 3) // 4 * 4
        fk = "v"; BF = ACC + 16 * NB * MB; AR = BF + 4 * NB * FB; nv = AR + 4 * MB * DA; na = 0; XA = None
        if mod: CM0 = nv; HF = CM0 + 32; VC = HF + 8; nv = VC + 1
    k = Kernel(name, TM * TN, 256, STAGE * R + xlds, nv, na); a = k.a
    k.ACC, k.TMP, k.MB, k.NB, k.BF, k.AR, k.VA, k.XL, k.XA = ACC, TMP, MB, NB, BF, AR, VA, STAGE * R, XA
    acc = lambda j, tb: ACC + 16 * (j * MB + tb)
    k.acc = acc
    guard(k)
    stamp(k, 0)
    load_ptrs(a, ptrs)
    tile_map(a, TM, TN, xm, xn)
    T = TMP
    a(f"s_lshl_b32 s37, s24, 2\ns_add_u32 s37, s37, s26\ns_mul_i32 s37, s37, {MB}")
    rd_rows = 8 if korder == "split" else 4
    if btype == "panel":
        off_alt, ldb_alt, pst_alt, sst_alt = alt
        a(f"""
        s_and_b32 s32, s25, 7
        s_lshr_b32 s33, s25, 3
        s_mul_i32 s33, s33, {sst_alt}
        s_lshl_b32 s34, s25, 7
        s_mov_b32 s51, {ldb}
        s_mov_b32 s52, 2048
        s_cmp_eq_u32 s32, {3 if not EXP.get('noalt') else 99}
        s_cselect_b32 s50, s33, s34
        s_cselect_b32 s51, {ldb_alt}, s51
        s_cselect_b32 s52, {pst_alt}, s52
        s_cselect_b32 s53, 1, 0
        s_lshl_b32 s39, s51, 6
        s_lshl_b32 s54, s51, 3""")
        panel_src(a, T, 1)
        a(f"""
        s_lshl_b32 s32, s26, 4
        v_add_u32 v{T}, s32, v{T}
        v_mul_lo_u32 v{T}, v{T}, s51
        v_lshl_add_u32 v{T}, v{T+1}, 4, v{T}
        v_add_u32 v{VB}, s50, v{T}
        v_add_u32 v{VB+1}, s54, v{VB}""")
        for p in range(1, NP):
            a(f"v_add_u32 v{VB+2*p}, s52, v{VB+2*p-2}\nv_add_u32 v{VB+2*p+1}, s52, v{VB+2*p-1}")
        dma_lds = [p * 8192 + g * 1024 for p in range(NP) for g in range(2)]
        a("s_lshl_b32 s36, s26, 11")
    else:
        a(f"""
        s_and_b32 s32, s26, 1
        s_mul_i32 s33, s32, {32*ldb}
        s_mul_i32 s34, s25, 224
        s_add_u32 s33, s33, s34
        s_mov_b32 s39, {64*ldb}""")
        for i in range(7):
            a(f"""
            v_add_u32 v{T}, {64*i}, v1
            v_mul_u32_u24 v{T+1}, 4682, v{T}
            v_lshrrev_b32 v{T+1}, 16, v{T+1}
            v_lshl_add_u32 v{T}, v{T}, 4, s33
            v_mul_u32_u24 v{T+1}, {ldb-224}, v{T+1}
            v_add_u32 v{VB+i}, v{T}, v{T+1}""")
        dma_lds = [1024 * i for i in range(7)]
        a(f"""
        s_mul_i32 s36, s32, 7168
        s_lshr_b32 s33, s26, 1
        s_mul_i32 s33, s33, {UPOFF}
        s_add_u32 s36, s36, s33""")
    for tb in range(MB):
        if tb: a(f"s_add_u32 s32, s37, {tb}")
        frag_off(a, VA + tb, 32 if tb else 37, 1, T)
    a(f"""
    s_mov_b32 s27, 0
    s_mov_b32 s28, 0
    s_mov_b32 s29, s36
    s_add_u32 s38, s36, {R*STAGE}
    s_mov_b32 s31, {(R-1)*STAGE}
    s_waitcnt lgkmcnt(0)""")
    srd(a, 4, 44, a_off, S * SLAB)
    if btype == "panel":
        a(f"""
        s_add_u32 s32, s44, {off_alt}
        s_addc_u32 s33, s45, 0
        s_cmp_eq_u32 s53, 1
        s_cselect_b32 s8, s32, s40
        s_cselect_b32 s9, s33, s41
        s_mul_i32 s10, s51, {K}
        s_mov_b32 s11, 0x20000""")
    else:
        a("s_cmp_ge_u32 s26, 2\ns_cselect_b32 s8, s42, s40\ns_cselect_b32 s9, s43, s41")
        a(f"s_mov_b32 s10, {K*ldb}\ns_mov_b32 s11, 0x20000")

    def late_setup():
        code_srd(k, 92, name + "_epi")
        a("v_lshlrev_b32 v2, 7, v0")
        tr_lane(a, T, 1, korder, colperm)
        if btype == "panel": panel_rd(a, T, VRE0, VRO0)
        else:
            a(f"""
            v_mul_u32_u24 v{T+4}, 224, v{T+4}
            v_lshl_add_u32 v{T+4}, v{T+3}, 3, v{T+4}
            v_mul_u32_u24 v{T+5}, {UPOFF}, v{T+1}
            v_add_u32 v{VRE0}, v{T+4}, v{T+5}""")
    if btype == "panel":
        def rd(j, sub, r_): return (VRE if j % 2 == 0 else VRO), (j // 2) * 8192 + 128 * (16 * sub + rd_rows * r_)
    else:
        def rd(j, sub, r_): return VRE, 32 * j + 224 * (16 * sub + rd_rows * r_)

    BOFF = 4 - FB
    def make_ops(extra):
        ops = []
        for ta in range(S + DA + 8):
            for tb in range(MB):
                ins = [f"buffer_load_dwordx4 {rr(fk, AR+4*(MB*(ta%DA)+tb), 4)}, v{VA+tb}, s[4:7], s27 offen"]
                if tb == MB - 1: ins.append(f"s_add_u32 s27, s27, {SLAB}")
                ops.append([ta - (1 if mod else 0), ta + (0 if mod else 1) - DA, len(ops), ins, ("A", ta)])
        for st in range(NST + R + 2):
            for i in range(ND):
                ins = [f"s_add_u32 m0, s29, {dma_lds[i]}", f"buffer_load_dwordx4 v{VB+i}, s[8:11], s28 offen lds"]
                if i == ND - 1:
                    ins += ["s_add_u32 s28, s28, s39", f"s_add_u32 s29, s29, {STAGE}", "s_cmp_eq_u32 s29, s38\ns_cselect_b32 s29, s36, s29"]
                ops.append([4 * st - FB - 0.5, 4 * (st + 2 - R) - FB + i * 4 // ND, len(ops), ins, ("B", st)])
        for need, ins in extra: ops.append([need, -999, len(ops), ins, ("X",)])
        ops.sort(key=lambda o: (o[0], o[2]))
        return ops

    cnt = Cnt()
    def run(emit):
        def E(x):
            if emit: emit(x)
        extra = setup(k, emit)
        ops = make_ops(extra)
        def take(t, cap):
            got = []
            for o in ops:
                if len(got) >= cap: break
                if o[1] <= t: got.append(o)
            for o in got: ops.remove(o)
            fl = []
            for o in got:
                for x in o[3]: fl.append((x, o[4] if x.startswith("buffer_") else None))
            return fl
        def W(site, c, nm, tags):
            cnt.wait(c, (site, nm), tags)
            E(cnt.text(c, (site, nm)))
        def flush(fill, n):
            for _ in range(n):
                if not fill: return
                x, tag = fill.pop(0)
                if x == "W": W(*tag); continue
                E(x)
                if tag and tag[0] == "L": cnt.issue("lg", tag[1])
                elif tag: cnt.issue("vm", tag)
        def barrier(site, st):
            W(site, "vm", "bar", {("B", st)})
            E("s_barrier")
            E(f"s_add_u32 s31, s31, {STAGE}\ns_cmp_eq_u32 s31, {R*STAGE}\ns_cselect_b32 s31, 0, s31\nv_add_u32 v{VRE}, s31, v{VRE0}")
            if btype == "panel": E(f"v_add_u32 v{VRO}, s31, v{VRO0}")
        def reads(tt, j):
            for r_ in range(2):
                base, off = rd(j, tt % 4, r_)
                E(f"ds_read_b64_tr_b16 {rr(fk, BF+4*(NB*(tt%FB)+j)+2*r_, 2)}, v{base} offset:{off}")
                cnt.issue("lg", ("F", tt, j))
        def cread(tt):
            base = (tt if tt < 4 * PEEL + 2 else 4 * PEEL + (tt - 4 * PEEL - 2) % (4 * U) + 2) * 128
            out = []; CM = CM0 + 16 * (tt % 2)
            for n in range(4): out.append((f"ds_read_b128 {v(CM+4*n,4)}, v{VC} offset:{base+16*n}", ("L", ("C", tt))))
            return out
        def xform(tt):
            r = AR + 4 * (tt % DA); out = []; CM = CM0 + 16 * (tt % 2)
            for i in range(8):
                out.append((f"v_fma_mix_f32 v{CM+8+i}, v{r+i//2}, v{CM+i}, v{CM+8+i} " + ("op_sel:[1,0,0] " if i % 2 else "") + "op_sel_hi:[1,0,0]", None))
            for i in range(4): out.append((f"v_cvt_pk_bf16_f32 v{HF+4*(tt%2)+i}, v{CM+8+2*i}, v{CM+9+2*i}", None))
            return out
        if mod:
            if emit:
                srd(a, 20, 44, WS_MODP, KS * 6144 * 4)
                a(f"v_lshlrev_b32 v{VC}, 4, v0")
            for p in range(KS):
                for n, idx in enumerate((1, 0)):
                    E(f"s_mov_b32 s32, {p*6144*4 + idx*4096}\nbuffer_load_dwordx4 {v(ACC+8*p+4*n,4)}, v{VC}, s[20:23], s32 offen")
                    cnt.issue("vm", ("M",))
        flush(take(-FB - 1, INIT), 999)
        if mod:
            if emit:
                a(f"""
                v_lshrrev_b32 v{ACC+24}, 1, v0
                v_lshlrev_b32 v{ACC+24}, 6, v{ACC+24}
                v_and_b32 v{ACC+25}, 1, v0
                v_lshl_add_u32 v{ACC+24}, v{ACC+25}, 4, v{ACC+24}
                v_add_u32 v{ACC+24}, {STAGE*R}, v{ACC+24}
                v_lshrrev_b32 v{VC}, 5, v1
                v_lshlrev_b32 v{VC}, 6, v{VC}
                v_add_u32 v{VC}, {STAGE*R}, v{VC}""")
        if emit:
            late_setup()
        if mod:
            W("pro", "vm", "M", {("M",)})
            if emit:
                for j in range(8): a(f"v_add_f32 v{ACC+j}, v{ACC+j}, v{ACC+8+j}")
                for j in range(4): a(f"v_cvt_pk_bf16_f32 v{ACC+16+j}, v{ACC+2*j}, v{ACC+2*j+1}")
                unpack(a, ACC, ACC + 16, 4)
                for j in range(4): a(f"v_add_f32 v{ACC+j}, 1.0, v{ACC+j}")
                for j in range(2): a(f"v_cvt_pk_bf16_f32 v{ACC+16+j}, v{ACC+2*j}, v{ACC+2*j+1}")
                unpack(a, ACC, ACC + 16, 2)
                a(f"ds_write_b128 v{ACC+24}, {v(ACC,4)}\nds_write_b128 v{ACC+24}, {v(ACC+4,4)} offset:32\ns_waitcnt lgkmcnt(0)")
        if emit:
            if PEEL == 0:
                for i in range(16 * NB * MB): a(f"v_mov_b32 v{ACC+i}, 0")
        barrier("pro", 0)
        if mod: flush(cread(0) + cread(1), 99)
        for tt in range(FB):
            for j in range(NB): reads(tt, j)
        if mod:
            assert PEEL > 0
            W("pro", "vm", "A", {("A", 0)}); W("pro", "lg", "C", {("C", 0)})
            flush(xform(0), 99)
        if PEEL == 0: flush(take(-1, 999), 999)
        if emit: stamp(k, 1)
        for t in range(S):
            peeled = t < 4 * PEEL
            site = ("p", t) if peeled else (t - 4 * PEEL) % (4 * U)
            if t == 4 * PEEL:
                assert not [o for o in ops if o[1] < t], f"{name}: backlog not drained"
                E(f"s_mov_b32 s30, {(NST-PEEL)//U}\n.p2align 6\n{name}_loop:")
            if t == 4 * PEEL + 4 * U:
                E(f"s_sub_u32 s30, s30, 1\ns_cmp_lg_u32 s30, 0\ns_cbranch_scc1 {name}_loop")
                if emit: return
            sub = t % 4
            fill = take(t, CAP if peeled else 999)
            if not peeled and site == 1: fill.append((f"buffer_load_dword {'v0' if not big else 'a%d' % (na - 1)}, v2, s[92:95], 0 offen", ("C",)))
            vfill = []
            if mod:
                xf = [("W", (site, "vm", "A", {("A", t + 1)})), ("W", (site, "lg", "C", {("C", t + 1)}))]
                cr = cread(t + 2)
                if not peeled and site == 4 * U - 1: vfillx = [(f"v_add_u32 v{VC}, {4*U*128}, v{VC}", None)]
                else: vfillx = []
                vfill = xform(t + 1) + vfillx
                fill = cr + fill
            n0 = len(fill); nv0 = len(vfill); nslots = NB * MB; slot = 0
            if not mod: W(site, "vm", "A", {("A", t)})
            for j in range(NB):
                if not mod or (t == 0 and j == 0): W(site, "lg", f"F{j}", {("F", t, min(NB - 1, j + (WG - 1 - j % WG)))})
                for tb in range(MB):
                    af = rr(fk, AR + 4 * (MB * (t % DA) + tb), 4) if not mod else v(HF + 4 * (t % 2), 4); bf = rr(fk, BF + 4 * (NB * (t % FB) + j), 4); c = v(acc(j, tb), 16)
                    x, y = (bf, af) if orient[j] == "tok" else (af, bf)
                    if EXP.get("fake16"):
                        c0 = v(acc(j, tb) + 8 * (t % 2), 4); c1 = v(acc(j, tb) + 8 * (t % 2) + 4, 4)
                        E(f"v_mfma_f32_16x16x32_bf16 {c0}, {x}, {y}, {c0 if (t > 1 or PEEL == 0) else 0}")
                        if fill and not (sub == BOFF and j == 0): flush(fill, 1)
                        E(f"v_mfma_f32_16x16x32_bf16 {c1}, {y}, {x}, {c1 if (t > 1 or PEEL == 0) else 0}")
                    else:
                        E(f"v_mfma_f32_32x32x16_bf16 {c}, {x}, {y}, {c if (t or PEEL == 0) else 0}")
                    slot += 1
                    if mod:
                        if j == 0: flush(xf, 9)
                        jn, tn_ = (j + 1, t) if j + 1 < NB else (0, t + 1)
                        W(site, "lg", f"N{j}", {("F", tn_, min(NB - 1, jn + (WG - 1 - jn % WG)))})
                    if tb == MB - 1:
                        if j == 0 and sub == BOFF: barrier(site, (t + FB) // 4)
                        reads(t + FB, j)
                    if not (sub == BOFF and j == 0 and tb < MB - 1):
                        flush(fill, max(0, (n0 * slot + nslots - 1) // nslots - (n0 - len(fill))))
                    vs = nslots - EXP.get("qvs", 1)
                    flush(vfill, max(0, (nv0 * min(slot, vs) + vs - 1) // vs - (nv0 - len(vfill))))
            flush(fill, 999)
        if (NST - PEEL) == U: E(f"s_sub_u32 s30, s30, 1\ns_cmp_lg_u32 s30, 0\ns_cbranch_scc1 {name}_loop")
    run(None)
    cnt.reset()
    run(a)
    a(f"{name}_epi:")
    stamp(k, 2)
    epilogue(k)
    stamp(k, 3)
    prof_out(k, 4, KID[name], 26)
    finish(k)
    return k

def k_qkv():
    def setup(k, a):
        if not EXP.get("fuse1", 1) or QPRE >= 1024: return []
        T = k.TMP; per = (1024 - QPRE) * 48 // 1024
        if a: srd(a, 16, 40, QPRE * 6144, (1024 - QPRE) * 6144)
        first = f"""s_lshl_b32 s32, s2, 2
        s_add_u32 s32, s32, s26
        s_lshl_b32 s55, s32, 7
        v_lshlrev_b32 v{T+6}, 17, v1"""
        return [(EXP.get("qpfat", 12), [first, f"buffer_load_dword v{T+7}, v{T+6}, s[16:19], s55 offen"])]
    def epi(k):
        a = k.a; T = k.TMP
        qs = LOG2E / math.sqrt(32)
        srd(a, 12, 44, WS_Q, 4 << 20); srd(a, 16, 44, WS_KV, 8 << 20)
        a(f"""
        v_lshlrev_b32 v{T}, 4, v1
        s_lshl_b32 s32, s25, 7
        s_add_u32 s32, s32, s37
        s_lshl_b32 s33, s32, 11          ; Q offset
        s_lshl_b32 s34, s32, 12
        s_add_u32 s35, s33, {64*2048}
        s_add_u32 s39, s34, {64*4096}""")
        for j in range(6):
            c = k.acc(j, 0)
            if j < 2:
                for i in range(16): a(f"v_mul_f32 v{c+i}, {fx(qs)}, v{c+i}")
            for g in range(2):
                for i in range(4 * g, 4 * g + 4): a(f"v_cvt_pk_bf16_f32 v{c+i}, v{c+2*i}, v{c+2*i+1}")
            for g in range(2):
                if j < 2: a(f"buffer_store_dwordx4 {v(c+4*g,4)}, v{T}, s[12:15], s{33 if j==0 else 35} offen offset:{1024*g} sc1")
                else: a(f"buffer_store_dwordx4 {v(c+4*g,4)}, v{T}, s[16:19], s{34 if j%2==0 else 39} offen offset:{(2048 if j>=4 else 0)+1024*g} sc1")
    return k_gemm("qkv_kernel", 1024, 1, 6, EXP.get("qDA", 8), EXP.get("qR", 4), 2, EXP.get("qPEEL", 4), EXP.get("qCAP", 4), EXP.get("qINIT", 9),
                  "panel", WS_H1, "contig", False, ["tok"]*4 + ["feat"]*2, 16, 16, 2, 4,
                  [(40, P_WQKV), (44, P_WS)], setup, epi, 6144, alt=(WS_WQ3, 1536, 256, 768),
                  mod=EXP.get('fuse1', 1) == 1, xlds=(8192 + 256 if EXP.get('fuse1', 1) == 1 else 0))

def colvec_ops(k, need, dst, idxs, va):
    ops = []
    first = [f"s_lshl_b32 s32, s25, 8\nv_lshl_add_u32 v{va}, v1, 2, s32"]
    for n, idx in enumerate(idxs):
        for p in range(KS):
            ops.append((need, first + [f"s_mov_b32 s32, {p*6144*4 + idx*4096}", f"buffer_load_dword v{dst+2*n+p}, v{va}, s[20:23], s32 offen"]))
            first = []
    return ops

def k_out():
    def setup(k, a):
        T = k.TMP
        if a:
            srd(a, 12, 42, 0, 4 << 20); srd(a, 20, 44, WS_MODP, KS * 6144 * 4)
        ops = colvec_ops(k, 30, T + 8, [2, 4], T + 6)
        first = [f"""v_lshrrev_b32 v{T+12}, 3, v1
        v_and_b32 v{T+7}, 7, v1
        v_xor_b32 v{T+7}, v{T+7}, v{T+12}
        v_lshlrev_b32 v{T+7}, 4, v{T+7}
        v_lshl_add_u32 v{T+7}, v{T+12}, 11, v{T+7}
        s_lshl_b32 s55, s37, 16
        s_lshl_b32 s32, s25, 7
        s_add_u32 s55, s55, s32
        s_lshl_b32 s56, s26, 12
        s_add_u32 s56, s56, {k.XL}"""]
        for i in range(4):
            ops.append((31, first + [f"s_add_u32 m0, s56, {1024*i}", "s_nop 0", f"buffer_load_dwordx4 v{T+7}, s[12:15], s55 offen lds", "s_add_u32 s55, s55, 0x4000"]))
            first = []
        return ops
    def epi(k):
        a = k.a; T = k.TMP; G = T + 16; C = G + 32; X = C + 32; P = X + 32
        srd(a, 12, 44, WS_X2, 64 * SLAB); srd(a, 16, 44, WS_Y2, 64 * SLAB); srd(a, 20, 44, WS_STAT, 16 * 2048 * 8)
        a(f"""
        v_add_f32 v{T+8}, v{T+8}, v{T+9}
        v_add_f32 v{T+10}, v{T+10}, v{T+11}""")
        rbf(a, T + 8); rbf(a, T + 10)
        a(f"v_add_f32 v{T+10}, 1.0, v{T+10}")
        rbf(a, T + 10)
        a(f"""
        s_lshl_b32 s32, s26, 9
        s_add_u32 s32, s32, {k.XL + 16384}
        v_lshl_add_u32 v{T}, v1, 2, s32
        ds_write_b32 v{T}, v{T+8}
        ds_write_b32 v{T}, v{T+10} offset:256
        v_lshrrev_b32 v{T+1}, 5, v1
        v_lshl_add_u32 v{T}, v{T+1}, 5, s32
        v_and_b32 v{T+2}, 31, v1
        v_and_b32 v{T+3}, 7, v1
        v_xor_b32 v{T+3}, v{T+3}, v{T+1}
        v_lshlrev_b32 v{T+3}, 4, v{T+3}
        v_lshl_add_u32 v{T+3}, v{T+2}, 7, v{T+3}
        v_add_u32 v{T+3}, s56, v{T+3}
        s_waitcnt lgkmcnt(0)""")
        for q in range(4):
            a(f"v_xor_b32 v{T+4}, {32*q}, v{T+3}\nds_read_b128 {v(P+4*q,4)}, v{T+4}")
        for q in range(4):
            for hh in range(2): a(f"ds_read_b128 {v(G+8*q+4*hh,4)}, v{T} offset:{64*q+16*hh}")
        a("s_waitcnt lgkmcnt(8)")
        unpack(a, X, P, 16)
        for q in range(4):
            for hh in range(2): a(f"ds_read_b128 {v(C+8*q+4*hh,4)}, v{T} offset:{256+64*q+16*hh}")
        a(f"s_mul_i32 s33, s25, {4*SLAB}\ns_waitcnt lgkmcnt(8)")
        for q in range(4):
            c = k.acc(q // 2, 0) + 8 * (q % 2)
            for i in range(8): a(f"v_fmac_f32 v{X+8*q+i}, v{G+8*q+i}, v{c+i}")
            for i in range(4): a(f"v_cvt_pk_bf16_f32 v{P+4*q+i}, v{X+8*q+2*i}, v{X+8*q+2*i+1}")
            a(f"s_add_u32 s34, s33, {q*SLAB}\nbuffer_store_dwordx4 {v(P+4*q,4)}, v{k.VA}, s[12:15], s34 offen sc1")
        unpack(a, X, P, 16)
        a("s_waitcnt lgkmcnt(0)")
        for q in range(4):
            for i in range(8): a(f"v_mul_f32 v{C+8*q+i}, v{C+8*q+i}, v{X+8*q+i}")
            for i in range(4): a(f"v_cvt_pk_bf16_f32 v{G+4*q+i}, v{C+8*q+2*i}, v{C+8*q+2*i+1}")
            a(f"s_add_u32 s34, s33, {q*SLAB}\nbuffer_store_dwordx4 {v(G+4*q,4)}, v{k.VA}, s[16:19], s34 offen sc1")
        a(f"v_add_f32 v{T+8}, v{X}, v{X+1}\nv_add_f32 v{T+9}, v{X+2}, v{X+3}")
        for i in range(4, 32): a(f"v_add_f32 v{T+8+i%2}, v{T+8+i%2}, v{X+i}")
        a(f"""
        v_add_f32 v{T+8}, v{T+8}, v{T+9}
        v_mov_b32 v{T+9}, v{T+8}
        v_permlane32_swap_b32 v{T+8}, v{T+9}
        v_add_f32 v{T+8}, v{T+8}, v{T+9}
        v_mul_f32 v{T+10}, {fx(1/64)}, v{T+8}""")
        for i in range(32): a(f"v_sub_f32 v{X+i}, v{X+i}, v{T+10}")
        a(f"v_mul_f32 v{T+9}, v{X}, v{X}\nv_mul_f32 v{T+10}, v{X+1}, v{X+1}")
        for i in range(2, 32): a(f"v_fmac_f32 v{T+9+i%2}, v{X+i}, v{X+i}")
        a(f"""
        v_add_f32 v{T+9}, v{T+9}, v{T+10}
        v_mov_b32 v{T+10}, v{T+9}
        v_permlane32_swap_b32 v{T+9}, v{T+10}
        v_add_f32 v{T+9}, v{T+9}, v{T+10}
        v_lshlrev_b32 v{T+2}, 3, v{T+2}
        s_lshl_b32 s32, s25, 14
        s_lshl_b32 s33, s37, 8
        s_add_u32 s32, s32, s33
        s_mov_b32 exec_hi, 0
        buffer_store_dwordx2 {v(T+8,2)}, v{T+2}, s[20:23], s32 offen sc1
        s_mov_b32 exec_hi, -1""")
    return k_gemm("out_kernel", 1024, 1, 2, 16, 6, 4, 0, 99, 999, "panel", WS_O, "split", True, ["tok"]*2, 16, 16, 4, 2,
                  [(40, P_WO), (42, P_X), (44, P_WS)], setup, epi, 2048, alt=(WS_WO3, 512, 0, 256), ntemp=16 + 96 + 16, xlds=16384 + 2048,
                  FB=EXP.get("pFB", 2))

def k_down():
    def setup(k, a):
        T = k.TMP
        if a:
            srd(a, 12, 44, WS_X2, 64 * SLAB); srd(a, 20, 44, WS_MODP, KS * 6144 * 4)
        ops = colvec_ops(k, 30, T + 8, [5], T + 6)
        first = [f"s_mul_i32 s55, s25, {4*SLAB}"]
        for q in range(4):
            ops.append((31, first + [f"buffer_load_dwordx4 {v(T+16+4*q,4)}, v{k.VA}, s[12:15], s55 offen", f"s_add_u32 s55, s55, {SLAB}"]))
            first = []
        return ops
    def epi(k):
        a = k.a; T = k.TMP; P = T + 16; G = P + 16; X = G + 32
        srd(a, 16, 46, 0, 4 << 20)
        a(f"v_add_f32 v{T+8}, v{T+8}, v{T+9}")
        rbf(a, T + 8)
        a(f"""
        s_lshl_b32 s32, s26, 8
        s_add_u32 s32, s32, {k.XL + 16384}
        v_lshl_add_u32 v{T}, v1, 2, s32
        ds_write_b32 v{T}, v{T+8}
        v_lshrrev_b32 v{T+1}, 5, v1
        v_lshl_add_u32 v{T}, v{T+1}, 5, s32
        s_lshl_b32 s56, s26, 12
        s_add_u32 s56, s56, {k.XL}
        v_and_b32 v{T+2}, 31, v1
        v_and_b32 v{T+3}, 7, v1
        v_xor_b32 v{T+3}, v{T+3}, v{T+1}
        v_lshlrev_b32 v{T+3}, 4, v{T+3}
        v_lshl_add_u32 v{T+3}, v{T+2}, 7, v{T+3}
        v_add_u32 v{T+3}, s56, v{T+3}
        s_waitcnt lgkmcnt(0)""")
        for q in range(4):
            for hh in range(2): a(f"ds_read_b128 {v(G+8*q+4*hh,4)}, v{T} offset:{64*q+16*hh}")
        unpack(a, X, P, 16)
        a(f"""
        v_lshl_add_u32 v{T+5}, v1, 4, s56
        v_lshrrev_b32 v{T+6}, 3, v1
        v_and_b32 v{T+7}, 7, v1
        v_xor_b32 v{T+7}, v{T+7}, v{T+6}
        v_lshlrev_b32 v{T+7}, 4, v{T+7}
        v_lshl_add_u32 v{T+7}, v{T+6}, 11, v{T+7}
        s_lshl_b32 s33, s37, 16
        s_lshl_b32 s32, s25, 7
        s_add_u32 s33, s33, s32
        s_waitcnt lgkmcnt(0)""")
        for q in range(4):
            c = k.acc(q // 2, 0) + 8 * (q % 2)
            for i in range(8): a(f"v_fmac_f32 v{X+8*q+i}, v{G+8*q+i}, v{c+i}")
            for i in range(4): a(f"v_cvt_pk_bf16_f32 v{P+4*q+i}, v{X+8*q+2*i}, v{X+8*q+2*i+1}")
            a(f"v_xor_b32 v{T+4}, {32*q}, v{T+3}\nds_write_b128 v{T+4}, {v(P+4*q,4)}")
        a("s_waitcnt lgkmcnt(0)")
        for i in range(4): a(f"ds_read_b128 {v(G+4*i,4)}, v{T+5} offset:{1024*i}")
        for i in range(4):
            a(f"s_waitcnt lgkmcnt({3-i})\nbuffer_store_dwordx4 {v(G+4*i,4)}, v{T+7}, s[16:19], s33 offen sc1\ns_add_u32 s33, s33, 0x4000")
    return k_gemm("down_kernel", 3584, 1, 2, 16, 6, 4, 0, 99, 999, "panel", WS_ACT, "split", True, ["tok"]*2, 16, 16, 4, 2,
                  [(40, P_WD), (44, P_WS), (46, P_OUT)], setup, epi, 2048, alt=(WS_WD3, 512, 0, 256), ntemp=16 + 16 + 64, xlds=16384 + 1024,
                  FB=EXP.get("pFB", 2))

def k_gu():
    def setup(k, a):
        T = k.TMP; XA = k.XA
        if a:
            srd(a, 16, 44, WS_STAT, 16 * 2048 * 8); srd(a, 20, 44, WS_UV, KS * 2 * 7168 * 4)
        ops = []
        first = [f"""v_and_b32 v{T+6}, 31, v1
        v_lshlrev_b32 v{T+6}, 3, v{T+6}
        v_lshrrev_b32 v{T+7}, 5, v1
        v_lshl_add_u32 v{T+6}, v{T+7}, 17, v{T+6}
        s_lshl_b32 s55, s37, 8"""]
        for i in range(8):
            for tb in range(2):
                ops.append((40, first + [f"buffer_load_dwordx2 {a_(XA+16*tb+2*i,2)}, v{T+6}, s[16:19], s55 offen offset:{256*tb}"] + (["s_add_u32 s55, s55, 0x4000"] if tb else [])))
                first = []
        first = [f"""v_cmp_lt_u32 vcc, 111, v0
        v_mov_b32 v{T+7}, {(3584-112)*4}
        v_cndmask_b32 v{T+7}, 0, v{T+7}, vcc
        v_lshl_add_u32 v{T+7}, v0, 2, v{T+7}
        s_mul_i32 s56, s25, 448"""]
        for i in range(4):
            ops.append((41, first + [f"buffer_load_dword a{XA+32+i}, v{T+7}, s[20:23], s56 offen", f"s_add_u32 s56, s56, {7168*4}"]))
            first = []
        return ops
    def epi(k):
        a = k.a; T = k.TMP; XA = k.XA
        c0 = -2 * math.sqrt(2 / math.pi) * LOG2E; c1 = c0 * 0.044715
        srd(a, 12, 44, WS_ACT, 224 * SLAB)
        for i in range(4): a(f"v_accvgpr_read_b32 v{10+i}, a{XA+32+i}")
        a(f"""
        v_add_f32 v10, v10, v12
        v_add_f32 v11, v11, v13
        v_lshlrev_b32 v2, 2, v0
        ds_write_b32 v2, v10 offset:{k.XL % 65536}
        ds_write_b32 v2, v11 offset:{k.XL % 65536 + 1024}""".replace("v_lshlrev_b32 v2, 2, v0", f"v_lshlrev_b32 v2, 2, v0\nv_add_u32 v2, {k.XL // 65536 * 65536}, v2"))
        for tb, D in ((0, 4), (1, 30)):
            for i in range(16): a(f"v_accvgpr_read_b32 v{10+i}, a{XA+16*tb+i}")
            a("v_add_f32 v26, v10, v12\nv_add_f32 v27, v11, v13")
            for i in range(2, 8): a(f"v_add_f32 v26, v26, v{10+2*i}\nv_add_f32 v27, v27, v{11+2*i}")
            a(f"""
            v_mov_b32 v28, v26
            v_permlane32_swap_b32 v26, v28
            v_add_f32 v26, v26, v28
            v_mul_f32 v28, {fx(1/16)}, v26""")
            for i in range(8): a(f"v_sub_f32 v{10+2*i}, v{10+2*i}, v28")
            a("v_mul_f32 v29, v10, v10")
            for i in range(1, 8): a(f"v_fmac_f32 v29, v{10+2*i}, v{10+2*i}")
            a(f"""
            v_fmac_f32 v27, {fx(1/64)}, v29
            v_mov_b32 v28, v27
            v_permlane32_swap_b32 v27, v28
            v_add_f32 v27, v27, v28
            v_mov_b32 v28, {fx(1e-5)}
            v_fmac_f32 v28, {fx(1/1024)}, v27
            v_rsq_f32 v{D}, v28
            v_mul_f32 v26, {fx(-1/1024)}, v26
            v_mul_f32 v{D+1}, v26, v{D}""")
        a(f"""
        v_lshrrev_b32 v9, 5, v1
        v_lshlrev_b32 v9, 4, v9
        v_add_u32 v9, {k.XL}, v9
        s_mul_i32 s32, s25, {7*SLAB}
        s_mov_b32 s34, {fx(c1)}
        s_mov_b32 s35, {fx(c1)}
        v_mov_b32 v26, {fx(c0)}
        v_mov_b32 v27, {fx(c0)}
        v_mov_b32 v28, 1.0
        v_mov_b32 v29, 1.0
        s_waitcnt lgkmcnt(0)
        s_barrier""")
        def rdq(j, q, B):
            o = 64 * j + 32 * q
            for n, oo in enumerate((o, o + 1024, o + 448, o + 448 + 1024)): a(f"ds_read_b128 {v(B+4*n,4)}, v9 offset:{oo}")
        pk = lambda r: v(r, 2)
        def fold(j, q, B):
            for tb, D in ((0, 4), (1, 30)):
                c = k.acc(j, tb) + 4 * q
                for i in (0, 2):
                    a(f"v_pk_fma_f32 {pk(c+i)}, {pk(c+i)}, {pk(D)}, {pk(B+4+i)} op_sel_hi:[1,0,1]")
                    a(f"v_pk_fma_f32 {pk(c+8+i)}, {pk(c+8+i)}, {pk(D)}, {pk(B+12+i)} op_sel_hi:[1,0,1]")
                for i in (0, 2):
                    a(f"v_pk_fma_f32 {pk(c+i)}, {pk(B+i)}, {pk(D)}, {pk(c+i)} op_sel:[0,1,0]")
                    a(f"v_pk_fma_f32 {pk(c+8+i)}, {pk(B+8+i)}, {pk(D)}, {pk(c+8+i)} op_sel:[0,1,0]")
        for j in range(7):
            if j == 0:
                rdq(0, 0, 10); a("s_waitcnt lgkmcnt(0)"); fold(0, 0, 10)
                rdq(0, 1, 10); a("s_waitcnt lgkmcnt(0)"); fold(0, 1, 10)
            else:
                a("s_waitcnt lgkmcnt(0)"); fold(j, 0, 10); fold(j, 1, k.acc(j - 1, 0))
            if j < 6: rdq(j + 1, 0, 10)
            for tb in range(2):
                c = k.acc(j, tb)
                for i in range(0, 8, 2): a(f"v_pk_mul_f32 {pk(c+8+i)}, {pk(c+8+i)}, {pk(c+i)}")
                for i in (0, 4):
                    a(f"v_pk_mul_f32 v[0:1], {pk(c+i)}, {pk(c+i)}\nv_pk_mul_f32 v[2:3], {pk(c+i+2)}, {pk(c+i+2)}")
                    a(f"v_pk_fma_f32 v[0:1], v[0:1], s[34:35], v[26:27]\nv_pk_fma_f32 v[2:3], v[2:3], s[34:35], v[26:27]")
                    a(f"v_pk_mul_f32 {pk(c+i)}, v[0:1], {pk(c+i)}\nv_pk_mul_f32 {pk(c+i+2)}, v[2:3], {pk(c+i+2)}")
                for i in range(8): a(f"v_exp_f32 v{c+i}, v{c+i}")
                for i in range(0, 8, 2): a(f"v_pk_add_f32 {pk(c+i)}, {pk(c+i)}, v[28:29]")
                for i in range(8): a(f"v_rcp_f32 v{c+i}, v{c+i}")
                for i in range(0, 8, 2): a(f"v_pk_mul_f32 {pk(c+i)}, {pk(c+i)}, {pk(c+8+i)}")
                for i in range(4): a(f"v_cvt_pk_bf16_f32 v{c+8+i}, v{c+2*i}, v{c+2*i+1}")
                a(f"buffer_store_dwordx4 {v(c+8,4)}, v{k.VA+tb}, s[12:15], s32 offen sc1")
                if tb == 0 and j < 6: rdq(j + 1, 1, c)
            a(f"s_add_u32 s32, s32, {SLAB}")
    return k_gemm("gu_kernel", 1024, 2, 7, EXP.get("gDA", 4), EXP.get("gR", 4), 2, EXP.get("gPEEL", 4), EXP.get("gCAP", 6), EXP.get("gINIT", 11),
                  "gu", WS_Y2, "contig", False, ["tok"]*7, 8, 32, 2, 4,
                  [(40, P_WG), (42, P_WU), (44, P_WS)], setup, epi, 7168, big=True, xlds=2048, nxa=37)

NSIDE = 288
def nside(): return 0 if EXP.get('noside') else (224 if EXP.get('gpre', 0) else 288)
def attn_side(k, nw):
    a = k.a
    a("attn_side:")
    if nw == 4 and EXP.get("sprio", 1): a("s_setprio 3")
    load_ptrs(a, [(40, P_C), (42, P_WMOD), (44, P_WS), (46, P_WG), (48, P_WU), (62, P_WO), (64, P_WD)])
    wave_lane(a)
    a(f"""
    s_sub_u32 s27, s2, 256
    s_lshl_b32 s32, s27, {(nw*64).bit_length()-1}
    v_add_u32 v3, s32, v0
    s_waitcnt lgkmcnt(0)""")
    def mid():
        strip_copy_issue(a, 3, 62, 1024, 2048, 1, 0, 108)
        strip_copy_issue(a, 3, 64, 3584, 2048, 1, 0 if EXP.get('gpre', 0) else 16384, 116)
        a("s_waitcnt vmcnt(0)")
        strip_copy_store(a, 44, WS_WO3, 1024 * 512, 108)
        strip_copy_store(a, 44, WS_WD3, 3584 * 512, 116)
    a(f"""
    s_and_b32 s32, s27, 1
    s_lshr_b32 s33, s27, 1
    s_lshl_b32 s52, s32, 9
    s_cmp_ge_u32 s33, 112
    s_cbranch_scc1 attn_side_g
    s_mov_b32 s51, 7168
    s_mul_i32 s53, s32, {2*7168*4}
    s_lshl_b32 s34, s33, 8
    s_add_u32 s53, s53, s34
    s_mov_b32 s54, {7168*4}
    s_cmp_ge_u32 s33, 56
    s_cselect_b32 s46, s48, s46
    s_cselect_b32 s47, s49, s47
    s_cselect_b32 s34, 56, 0
    s_sub_u32 s33, s33, s34
    s_mul_i32 s50, s52, s51
    s_lshl_b32 s34, s33, 7
    s_add_u32 s50, s50, s34""")
    srd(a, 8, 46, 0, 1024 * 7168); srd(a, 12, 44, WS_MODP, KS * 6144 * 4); srd(a, 16, 44, WS_UV, KS * 2 * 7168 * 4)
    skinny(k, "u", "pair", "", EXP.get("pace", 3 if nw == 4 else 1), nw=nw, mid=mid)
    if EXP.get("gpre", 0):
        a("attn_side_g:")
        return
    a(f"""
attn_side_g:
    s_sub_u32 s33, s33, {112-32}
    s_cmp_ge_u32 s33, 48
    s_cselect_b32 s34, 32, 0
    s_add_u32 s33, s33, s34
    s_mov_b32 s51, 12288
    s_mul_i32 s50, s52, s51
    s_lshl_b32 s34, s33, 7
    s_add_u32 s50, s50, s34
    s_mul_i32 s53, s32, {6144*4}
    s_lshl_b32 s34, s33, 8
    s_add_u32 s53, s53, s34
    s_mov_b32 s54, 0""")
    srd(a, 8, 42, 0, 1024 * 12288); srd(a, 12, 40, 0, 2048); srd(a, 16, 44, WS_MODP, KS * 6144 * 4)
    skinny(k, "g", "silu", " nt", EXP.get("pace", 3 if nw == 4 else 1), nw=nw, mid=mid)


def k_attn():
    R = 4; ST = 16384
    k = Kernel("attn_kernel", 256 + nside(), 512, SK_LDS, 128); a = k.a
    Q0, Q1, ONES, NEG, SA, SB, O, L, P0, P1, K0, K1, V0, V1, T = 4, 8, 12, 16, 32, 48, 64, 80, 84, 88, 92, 96, 100, 104, 108
    guard(k)
    a("s_cmp_ge_u32 s2, 256\ns_cbranch_scc1 attn_side")
    stamp(k, 0)
    load_ptrs(a, [(44, P_WS), (46, P_WO), (48, P_WD), (52, P_X)])
    if EXP.get("aprio", 1): a("s_setprio 2")
    a(f"""
    s_and_b32 s32, s2, 7
    s_lshr_b32 s33, s2, 3
    s_and_b32 s34, s32, 3
    s_lshl_b32 s34, s34, 3
    s_and_b32 s35, s33, 7
    s_add_u32 s24, s34, s35            ; head
    s_lshr_b32 s34, s32, 2
    s_lshl_b32 s34, s34, 2
    s_lshr_b32 s35, s33, 3
    s_add_u32 s25, s34, s35
    v_lshrrev_b32 v3, 6, v0
    v_and_b32 v1, 63, v0
    v_readfirstlane_b32 s26, v3
    v_lshlrev_b32 v2, 4, v1
    s_lshl_b32 s27, s25, 3
    s_add_u32 s27, s27, s26
    s_lshl_b32 s28, s24, 18
    s_lshl_b32 s29, s26, 11            ; wave * 2048
    s_lshl_b32 s32, s24, 6
    s_add_u32 s32, s32, s27
    s_lshl_b32 s32, s32, 11            ; Q offset
    s_waitcnt lgkmcnt(0)""")
    srd(a, 4, 44, WS_Q, 4 << 20)
    a(f"s_add_u32 s8, s44, s28\ns_addc_u32 s9, s45, 0\ns_add_u32 s8, s8, {WS_KV}\ns_addc_u32 s9, s9, 0\ns_mov_b32 s10, 0x40000\ns_mov_b32 s11, 0x20000")
    a("s_mov_b32 s30, s29")
    def dma(slot):
        return [f"s_add_u32 m0, s29, {slot*ST}", "buffer_load_dwordx4 v2, s[8:11], s30 offen lds",
                "buffer_load_dwordx4 v2, s[8:11], s30 offen offset:1024 lds", f"s_add_u32 s30, s30, {ST}"]
    a(f"buffer_load_dwordx4 {v(Q0,4)}, v2, s[4:7], s32 offen\nbuffer_load_dwordx4 {v(Q1,4)}, v2, s[4:7], s32 offen offset:1024")
    a(f"buffer_load_dwordx4 {v(K0,4)}, v2, s[8:11], 0 offen\nbuffer_load_dwordx4 {v(K1,4)}, v2, s[8:11], 0 offen offset:1024")
    for st in range(R - 1):
        for x in dma(st): a(x)
    srd(a, 12, 44, WS_O, 64 * SLAB)
    frag_off(a, 3, 27, 1, T)
    code_srd(k, 92, "attn_epi")
    a(f"v_lshlrev_b32 v{T+4}, 7, v0")
    if EXP.get("apf", 1):
        srd(a, 16, 46, 0, 1024 * 2048); srd(a, 20, 48, 0, 3584 * 2048)
        a(f"""
        s_lshl_b32 s32, s2, 3
        s_add_u32 s32, s32, s26
        s_mul_i32 s50, s32, {7*128}
        s_lshl_b32 s51, s32, 8
        v_lshlrev_b32 v{T+6}, 7, v1
        v_mov_b32 v{T+8}, 0x80000000
        v_cmp_gt_u32 vcc, 2, v1
        v_cndmask_b32 v{T+7}, v{T+8}, v{T+6}, vcc
        v_cmp_gt_u32 vcc, 4, v1
        v_cndmask_b32 v{T+9}, v{T+8}, v{T+6}, vcc
        s_lshl_b32 s54, s32, 9
        v_cmp_gt_u32 vcc, 7, v1
        v_cndmask_b32 v{T+6}, v{T+8}, v{T+6}, vcc""")
        srd(a, 56, 52, 0, 2048 * 2048)
    a(f"""
    v_lshrrev_b32 v{T}, 4, v1
    v_lshrrev_b32 v{T+1}, 2, v1
    v_xor_b32 v{T}, v{T}, v{T+1}
    v_and_b32 v{T}, 1, v{T}
    v_cmp_eq_u32 vcc, 0, v{T}
    v_mov_b32 v{T+1}, 0x3f803f80
    v_cndmask_b32 v{ONES}, 0, v{T+1}, vcc""")
    for i in range(1, 4): a(f"v_mov_b32 v{ONES+i}, v{ONES}")
    for i in range(16): a(f"v_mov_b32 v{O+i}, 0")
    for i in range(4): a(f"v_mov_b32 v{L+i}, 0\nv_mov_b32 v{P1+i}, 0\nv_mov_b32 v{V1+i}, 0")
    a(f"""
    s_waitcnt vmcnt({2*(R-1)})
    v_mfma_f32_32x32x16_bf16 {v(SA,16)}, {v(K0,4)}, {v(Q0,4)}, 0
    v_mfma_f32_32x32x16_bf16 {v(SA,16)}, {v(K1,4)}, {v(Q1,4)}, {v(SA,16)}""")
    def rowmax(S, m):
        for i in range(0, 16, 2): a(f"v_max3_f32 v{m}, v{S+i}, v{S+i+1}, v{m}")
    def negbcast(m):
        a(f"v_mov_b32 v{m+1}, v{m}\nv_permlane32_swap_b32 v{m}, v{m+1}\nv_max_f32 v{m}, v{m}, v{m+1}")
        for i in range(16): a(f"v_sub_f32 v{NEG+i}, 0, v{m}")
    a(f"v_mov_b32 v{T}, v{SA}")
    rowmax(SA, T); negbcast(T)
    for i in range(16): a(f"v_sub_f32 v{SA+i}, v{SA+i}, v{T}")
    a(f"""
    s_waitcnt vmcnt({2*(R-2)})
    s_barrier
    ds_read_b128 {v(K0,4)}, v2 offset:4096
    ds_read_b128 {v(K1,4)}, v2 offset:5120
    ds_read_b128 {v(V0,4)}, v2 offset:2048""")
    cnt = Cnt()
    def it(j, E, site):
        def W(c, nm, tags):
            cnt.wait(c, (site, nm), tags)
            if E: E(cnt.text(c, (site, nm)))
        def X(x):
            if E: E(x)
        def RD(reg, blk, piece):
            X(f"ds_read_b128 {v(reg,4)}, v2 offset:{(blk % (4*R))*4096 + piece*1024}")
            cnt.issue("lg", (piece, blk))
        S, Sn = (SA, SB) if j % 2 == 0 else (SB, SA)
        e = lambda i: X(f"v_exp_f32 v{S+i}, v{S+i}")
        c = lambda i: X(f"v_cvt_pk_bf16_f32 v{P0+i}, v{S+2*i}, v{S+2*i+1}")
        W("lg", "k", {(0, j + 1), (3, j - 1), (1, j + 1)})
        X(f"v_mfma_f32_32x32x16_bf16 {v(Sn,16)}, {v(K0,4)}, {v(Q0,4)}, {v(NEG,16)}")
        e(0); e(1); e(2)
        X(f"v_mfma_f32_32x32x16_bf16 {v(O,16)}, {v(V1,4)}, {v(P1,4)}, {v(O,16)}")
        RD(V1, j, 3)
        e(3); c(0); e(4); c(1)
        X(f"v_mfma_f32_32x32x16_bf16 {v(Sn,16)}, {v(K1,4)}, {v(Q1,4)}, {v(Sn,16)}")
        if j % 4 == 2:
            W("vm", "bar", {("B", j // 4 + 1)})
            X("s_barrier")
        RD(K0, j + 2, 0); RD(K1, j + 2, 1)
        e(5); e(6); e(7)
        X(f"v_mfma_f32_16x16x32_bf16 {v(L,4)}, {v(ONES,4)}, {v(P1,4)}, {v(L,4)}")
        if j % 4 == 2:
            d = dma((j // 4 - 1) % R)
            X(d[0])
        c(2); c(3); e(8); e(9)
        W("lg", "v0", {(2, j)})
        X(f"v_mfma_f32_32x32x16_bf16 {v(O,16)}, {v(V0,4)}, {v(P0,4)}, {v(O,16)}")
        RD(V0, j + 1, 2)
        if j % 4 == 2:
            X(d[1]); X(d[2]); X(d[3])
            cnt.issue("vm", ("B", j // 4 - 1 + R)); cnt.issue("vm", ("B", j // 4 - 1 + R))
        if j % 16 == 3:
            X(f"buffer_load_dword v{T+5}, v{T+4}, s[92:95], 0 offen"); cnt.issue("vm", ("C",))
        if EXP.get("apf", 1) and j % 16 == 7:
            X(f"buffer_load_dword v{T+5}, v{T+6}, s[20:23], s50 offen\ns_add_u32 s50, s50, {2048*7*128}"); cnt.issue("vm", ("C",))
        if EXP.get("apf", 1) and j % 16 == 15:
            X(f"buffer_load_dword v{T+5}, v{T+9}, s[56:59], s54 offen\ns_add_u32 s54, s54, {2048*512}"); cnt.issue("vm", ("C",))
        if EXP.get("apf", 1) and j % 16 == 11:
            X(f"buffer_load_dword v{T+5}, v{T+7}, s[16:19], s51 offen\ns_add_u32 s51, s51, {2048*256}"); cnt.issue("vm", ("C",))
        e(10); e(11); c(4); e(12)
        X(f"v_mfma_f32_16x16x32_bf16 {v(L,4)}, {v(ONES,4)}, {v(P0,4)}, {v(L,4)}")
        c(5); e(13); e(14); e(15); c(6); c(7)
    def preload():
        cnt.reset()
        for st in range(R - 1):
            cnt.issue("vm", ("B", st)); cnt.issue("vm", ("B", st))
        for tg in [(0, 1), (1, 1), (2, 0)]: cnt.issue("lg", tg)
    preload()
    for j in range(64): it(j, None, j % 16)
    preload()
    stamp(k, 1)
    a("s_mov_b32 s31, 4\n.p2align 6\nattn_loop:")
    for j in range(16): it(j, a, j)
    a("s_sub_u32 s31, s31, 1\ns_cmp_lg_u32 s31, 0\ns_cbranch_scc1 attn_loop\nattn_epi:")
    stamp(k, 2)
    a(f"""
    s_waitcnt lgkmcnt(0)
    v_mfma_f32_32x32x16_bf16 {v(O,16)}, {v(V1,4)}, {v(P1,4)}, {v(O,16)}
    v_mfma_f32_16x16x32_bf16 {v(L,4)}, {v(ONES,4)}, {v(P1,4)}, {v(L,4)}
    v_mov_b32 v{T}, 0""")
    for i in range(16): a(f"v_fmac_f32 v{T}, 0, v{O+i}")
    a(f"""
    v_add_f32 v{T}, v{T}, v{L}
    v_cmp_ngt_f32 vcc, {fx(2.0**40)}, v{T}
    s_cbranch_vccnz attn_slow
attn_fin:
    v_rcp_f32 v{T}, v{L}
    s_mul_i32 s32, s24, {2*SLAB}
    s_add_u32 s33, s32, {SLAB}""")
    for i in range(16): a(f"v_mul_f32 v{O+i}, v{O+i}, v{T}")
    for i in range(8): a(f"v_cvt_pk_bf16_f32 v{O+i}, v{O+2*i}, v{O+2*i+1}")
    a(f"buffer_store_dwordx4 {v(O,4)}, v3, s[12:15], s32 offen sc1\nbuffer_store_dwordx4 {v(O+4,4)}, v3, s[12:15], s33 offen sc1")
    stamp(k, 3)
    prof_out(k, 4, 4, 26)
    a("s_endpgm")
    a(f"""
attn_slow:
    v_mov_b32 v{T}, 0xff800000
    s_mov_b32 s30, 0
attn_slow1:
    buffer_load_dwordx4 {v(K0,4)}, v2, s[8:11], s30 offen
    buffer_load_dwordx4 {v(K1,4)}, v2, s[8:11], s30 offen offset:1024
    s_waitcnt vmcnt(0)
    v_mfma_f32_32x32x16_bf16 {v(SA,16)}, {v(K0,4)}, {v(Q0,4)}, 0
    v_mfma_f32_32x32x16_bf16 {v(SA,16)}, {v(K1,4)}, {v(Q1,4)}, {v(SA,16)}""")
    rowmax(SA, T)
    a("s_add_u32 s30, s30, 4096\ns_cmp_lt_u32 s30, 0x40000\ns_cbranch_scc1 attn_slow1")
    negbcast(T)
    for i in range(16): a(f"v_mov_b32 v{O+i}, 0")
    for i in range(4): a(f"v_mov_b32 v{L+i}, 0")
    a(f"""
    s_mov_b32 s30, 0
attn_slow2:
    buffer_load_dwordx4 {v(K0,4)}, v2, s[8:11], s30 offen
    buffer_load_dwordx4 {v(K1,4)}, v2, s[8:11], s30 offen offset:1024
    buffer_load_dwordx4 {v(V0,4)}, v2, s[8:11], s30 offen offset:2048
    buffer_load_dwordx4 {v(V1,4)}, v2, s[8:11], s30 offen offset:3072
    s_waitcnt vmcnt(0)
    v_mfma_f32_32x32x16_bf16 {v(SA,16)}, {v(K0,4)}, {v(Q0,4)}, {v(NEG,16)}
    v_mfma_f32_32x32x16_bf16 {v(SA,16)}, {v(K1,4)}, {v(Q1,4)}, {v(SA,16)}""")
    for i in range(16): a(f"v_exp_f32 v{SA+i}, v{SA+i}")
    for i in range(8): a(f"v_cvt_pk_bf16_f32 v{P0+i}, v{SA+2*i}, v{SA+2*i+1}")
    a(f"""
    v_mfma_f32_32x32x16_bf16 {v(O,16)}, {v(V0,4)}, {v(P0,4)}, {v(O,16)}
    v_mfma_f32_32x32x16_bf16 {v(O,16)}, {v(V1,4)}, {v(P1,4)}, {v(O,16)}
    v_mfma_f32_16x16x32_bf16 {v(L,4)}, {v(ONES,4)}, {v(P0,4)}, {v(L,4)}
    v_mfma_f32_16x16x32_bf16 {v(L,4)}, {v(ONES,4)}, {v(P1,4)}, {v(L,4)}
    s_add_u32 s30, s30, 4096
    s_cmp_lt_u32 s30, 0x40000
    s_cbranch_scc1 attn_slow2
    s_branch attn_fin""")
    attn_side(k, 8)
    finish(k)
    return k


def k_attn4():
    R = 4; ST = 16384; SM = EXP.get("smf", 1)
    k = Kernel("attn_kernel", 256 + nside(), 256, SK_LDS, 192); a = k.a
    Q, ONES, NEG, S, O, L, P, K0, K1, V0, V1, T = 8, 24, 32, 64, 96, 128, 136, 152, 156, 160, 164, 176
    IDX = 28
    guard(k)
    a("s_cmp_ge_u32 s2, 256\ns_cbranch_scc1 attn_side")
    stamp(k, 0)
    load_ptrs(a, [(44, P_WS), (46, P_WO), (48, P_WD), (52, P_X)])
    a(f"""
    s_and_b32 s32, s2, 7
    s_lshr_b32 s33, s2, 3
    s_and_b32 s34, s32, 3
    s_lshl_b32 s34, s34, 3
    s_and_b32 s35, s33, 7
    s_add_u32 s24, s34, s35            ; head
    s_lshr_b32 s34, s32, 2
    s_lshl_b32 s34, s34, 2
    s_lshr_b32 s35, s33, 3
    s_add_u32 s25, s34, s35
    v_lshrrev_b32 v3, 6, v0
    v_and_b32 v1, 63, v0
    v_readfirstlane_b32 s26, v3
    v_lshlrev_b32 v2, 4, v1
    s_lshl_b32 s27, s25, 2
    s_add_u32 s27, s27, s26
    s_lshl_b32 s27, s27, 1
    s_lshl_b32 s28, s24, 18
    s_lshl_b32 s29, s26, 12            ; wave * 4096
    s_lshl_b32 s32, s24, 6
    s_add_u32 s32, s32, s27
    s_lshl_b32 s32, s32, 11            ; Q offset
    s_waitcnt lgkmcnt(0)""")
    srd(a, 4, 44, WS_Q, 4 << 20)
    a(f"s_add_u32 s8, s44, s28\ns_addc_u32 s9, s45, 0\ns_add_u32 s8, s8, {WS_KV}\ns_addc_u32 s9, s9, 0\ns_mov_b32 s10, 0x40000\ns_mov_b32 s11, 0x20000")
    a("s_mov_b32 s30, s29")
    def dma(slot):
        return [f"s_add_u32 m0, s29, {slot*ST}"] + [f"buffer_load_dwordx4 v2, s[8:11], s30 offen offset:{1024*i} lds" for i in range(4)] + [f"s_add_u32 s30, s30, {ST}"]
    a(f"buffer_load_dwordx4 {v(K0,4)}, v2, s[8:11], 0 offen\nbuffer_load_dwordx4 {v(K1,4)}, v2, s[8:11], 0 offen offset:1024")
    for i in range(4): a(f"buffer_load_dwordx4 {v(Q+4*i,4)}, v2, s[4:7], s32 offen offset:{1024*i}")
    for x in dma(0): a(x)
    srd(a, 12, 44, WS_O, 64 * SLAB)
    frag_off(a, 3, 27, 1, T)
    a("s_add_u32 s33, s27, 1")
    frag_off(a, 4, 33, 1, T)
    code_srd(k, 92, "attn_epi")
    a(f"v_lshlrev_b32 v{T+4}, 7, v0")
    srd(a, 16, 46, 0, 1024 * 2048); srd(a, 20, 48, 0, 3584 * 2048); srd(a, 56, 52, 0, 2048 * 2048)
    a(f"""
    s_lshl_b32 s32, s2, 2
    s_add_u32 s32, s32, s26
    s_mul_i32 s50, s32, {14*128}
    s_lshl_b32 s51, s32, 9
    s_lshl_b32 s54, s32, 10
    v_lshlrev_b32 v{T+6}, 7, v1
    v_mov_b32 v{T+8}, 0x80000000
    v_cmp_gt_u32 vcc, 4, v1
    v_cndmask_b32 v{T+7}, v{T+8}, v{T+6}, vcc
    v_cmp_gt_u32 vcc, 8, v1
    v_cndmask_b32 v{T+9}, v{T+8}, v{T+6}, vcc
    v_cmp_gt_u32 vcc, 14, v1
    v_cndmask_b32 v{T+6}, v{T+8}, v{T+6}, vcc""")
    if SM:
        a(f"""
        v_bfe_u32 v{T}, v1, 2, 1
        v_cmp_eq_u32 vcc, 0, v{T}
        v_mov_b32 v{T+1}, 0x3f803f80
        v_cndmask_b32 v{ONES}, 0, v{T+1}, vcc
        v_mov_b32 v{ONES+1}, v{ONES}
        v_xor_b32 v{ONES+2}, v{T+1}, v{ONES}
        v_mov_b32 v{ONES+3}, v{ONES+2}
        v_and_b32 v{T}, 1, v1
        v_mul_u32_u24 v{T}, 0xaaaa, v{T}
        v_add_u32 v{IDX}, 0x4444, v{T}""")
    else:
        a(f"""
        v_lshrrev_b32 v{T}, 4, v1
        v_lshrrev_b32 v{T+1}, 2, v1
        v_xor_b32 v{T}, v{T}, v{T+1}
        v_and_b32 v{T}, 1, v{T}
        v_cmp_eq_u32 vcc, 0, v{T}
        v_mov_b32 v{T+1}, 0x3f803f80
        v_cndmask_b32 v{ONES}, 0, v{T+1}, vcc""")
        for i in range(1, 4): a(f"v_mov_b32 v{ONES+i}, v{ONES}")
    for i in range(32): a(f"v_mov_b32 v{O+i}, 0")
    for i in range(8): a(f"v_mov_b32 v{L+i}, 0\nv_mov_b32 v{P+8+i}, 0\nv_mov_b32 v{V0+8+i}, 0")
    def lsum(w, p):
        if SM: return [f"v_smfmac_f32_16x16x64_bf16 {v(L+4*w,4)}, {v(ONES,4)}, {v(p,8)}, v{IDX}"]
        return [f"v_mfma_f32_16x16x32_bf16 {v(L+4*w,4)}, {v(ONES,4)}, {v(p+4*g,4)}, {v(L+4*w,4)}" for g in range(2)]
    a("s_waitcnt vmcnt(4)")
    for w in range(2):
        a(f"v_mfma_f32_32x32x16_bf16 {v(S+16*w,16)}, {v(K0,4)}, {v(Q+8*w,4)}, 0")
        a(f"v_mfma_f32_32x32x16_bf16 {v(S+16*w,16)}, {v(K1,4)}, {v(Q+8*w+4,4)}, {v(S+16*w,16)}")
    for st in range(1, R - 1):
        for x in dma(st): a(x)
    def rowmax(Sx, m):
        for i in range(0, 16, 2): a(f"v_max3_f32 v{m}, v{Sx+i}, v{Sx+i+1}, v{m}")
    def negbcast(m, w):
        a(f"v_mov_b32 v{m+1}, v{m}\nv_permlane32_swap_b32 v{m}, v{m+1}\nv_max_f32 v{m}, v{m}, v{m+1}")
        for i in range(16): a(f"v_sub_f32 v{NEG+16*w+i}, 0, v{m}")
    for w in range(2):
        a(f"v_mov_b32 v{T}, v{S+16*w}")
        rowmax(S + 16 * w, T); negbcast(T, w)
        if w == 0:
            for i in range(16): a(f"v_sub_f32 v{S+i}, v{S+i}, v{T}")
    a(f"""
    s_sub_u32 s30, s30, {ST}
    s_waitcnt vmcnt({4*(R-2)})
    s_barrier
    ds_read_b128 {v(V0,4)}, v2 offset:2048
    ds_read_b128 {v(V1,4)}, v2 offset:3072""")
    cnt = Cnt()
    def ph(n, E, site):
        def W(c, nm, tags):
            cnt.wait(c, (site, nm), tags)
            if E: E(cnt.text(c, (site, nm)))
        def X(x):
            if E: E(x)
        def RD(reg, blk, piece):
            X(f"ds_read_b128 {v(reg,4)}, v2 offset:{(blk % (4*R))*4096 + piece*1024}")
            cnt.issue("lg", (piece, blk))
        def VM(x, tag):
            X(x); cnt.issue("vm", tag)
        j = n >> 1; w = n & 1; o = 1 - w
        Sc, Sn, Pc, Pp = S + 16 * w, S + 16 * o, P + 8 * w, P + 8 * o
        vb = (n - 1) >> 1
        Vr = V0 + 8 * (vb % 2); Vw = V0 + 8 * ((j + 1) % 2)
        e = lambda *l: [X(f"v_exp_f32 v{Sc+i}, v{Sc+i}") for i in l]
        c = lambda *l: [X(f"v_cvt_pk_bf16_f32 v{Pc+i}, v{Sc+2*i}, v{Sc+2*i+1}") for i in l]
        d = dma((n // 8 - 1) % R) if n % 8 in (5, 6, 7) else None
        dd = n % 8 == 7
        tg = ("B", n // 8 - 1 + R)
        X(f"v_mfma_f32_32x32x16_bf16 {v(Sn,16)}, {v(K0,4)}, {v(Q+8*o,4)}, {v(NEG+16*o,16)}")
        if w == 0: RD(K0, j + 1, 0)
        else: W("lg", "k1", {(1, j + 1)})
        e(0, 1, 2, 3); c(0)
        X(f"v_mfma_f32_32x32x16_bf16 {v(Sn,16)}, {v(K1,4)}, {v(Q+8*o+4,4)}, {v(Sn,16)}")
        if w == 0: RD(K1, j + 1, 1)
        if dd: VM(d[1], tg); VM(d[2], tg)
        if n % 8 == 1: X(f"s_add_u32 s30, s30, {ST}")
        e(4, 5, 6); c(1, 2)
        X(f"v_mfma_f32_32x32x16_bf16 {v(O+16*o,16)}, {v(Vr,4)}, {v(Pp,4)}, {v(O+16*o,16)}")
        if n % 8 == 5: W("vm", "bar", {("B", n // 8 + 1)})
        if n % 8 == 6: X(d[0])
        if dd: VM(d[3], tg); VM(d[4], tg)
        e(7, 8, 9); c(3, 4)
        X(f"v_mfma_f32_32x32x16_bf16 {v(O+16*o,16)}, {v(Vr+4,4)}, {v(Pp+4,4)}, {v(O+16*o,16)}")
        if w == 0: W("lg", "k0", {(0, j + 1), (2, j), (3, j)})
        if n % 8 == 5: X("s_barrier")
        if n % 32 == 23: VM(f"buffer_load_dword v{T+5}, v{T+4}, s[92:95], 0 offen", ("C",))
        if n % 32 == 7: VM(f"buffer_load_dword v{T+5}, v{T+6}, s[20:23], s50 offen", ("C",))
        if n % 32 == 15:
            VM(f"buffer_load_dword v{T+5}, v{T+7}, s[16:19], s51 offen", ("C",))
            VM(f"buffer_load_dword v{T+5}, v{T+9}, s[56:59], s54 offen", ("C",))
        if n % 32 == 17: X(f"s_add_u32 s50, s50, {1024*14*128}")
        if n % 32 == 25: X(f"s_add_u32 s51, s51, {1024*512}")
        if n % 32 == 27: X(f"s_add_u32 s54, s54, {1024*1024}")
        e(10, 11, 12); c(5)
        ls = lsum(o, Pp)
        X(ls[0])
        RD(Vw + 4 * w, j + 1, 2 + w)
        e(13)
        if len(ls) > 1: X(ls[1])
        e(14, 15); c(6, 7)
    def preload():
        cnt.reset()
        for st in range(R - 1):
            for i in range(4): cnt.issue("vm", ("B", st))
        cnt.issue("lg", (2, 0)); cnt.issue("lg", (3, 0))
    preload()
    for n in range(128): ph(n, None, n % 32)
    preload()
    stamp(k, 1)
    a("s_mov_b32 s31, 4\n.p2align 6\nattn_loop:")
    for n in range(32): ph(n, a, n)
    a("s_sub_u32 s31, s31, 1\ns_cmp_lg_u32 s31, 0\ns_cbranch_scc1 attn_loop\nattn_epi:")
    stamp(k, 2)
    a(f"""
    v_mfma_f32_32x32x16_bf16 {v(O+16,16)}, {v(V0+8,4)}, {v(P+8,4)}, {v(O+16,16)}
    v_mfma_f32_32x32x16_bf16 {v(O+16,16)}, {v(V1+8,4)}, {v(P+12,4)}, {v(O+16,16)}""")
    for x in lsum(1, P + 8): a(x)
    a(f"v_mov_b32 v{T}, 0\nv_mov_b32 v{T+1}, 0")
    for i in range(32): a(f"v_fmac_f32 v{T+i%2}, 0, v{O+i}")
    def ltot():
        if SM: a(f"v_add_f32 v{L}, v{L}, v{L+1}\nv_add_f32 v{L+4}, v{L+4}, v{L+5}")
    ltot()
    a(f"""
    v_add_f32 v{T}, v{T}, v{T+1}
    v_add_f32 v{T}, v{T}, v{L}
    v_add_f32 v{T}, v{T}, v{L+4}
    v_cmp_ngt_f32 vcc, {fx(2.0**40)}, v{T}
    s_cbranch_vccnz attn_slow
attn_fin:
    v_rcp_f32 v{T}, v{L}
    v_rcp_f32 v{T+1}, v{L+4}
    s_mul_i32 s32, s24, {2*SLAB}
    s_add_u32 s33, s32, {SLAB}""")
    for w in range(2):
        Ow = O + 16 * w
        for i in range(16): a(f"v_mul_f32 v{Ow+i}, v{Ow+i}, v{T+w}")
        for i in range(8): a(f"v_cvt_pk_bf16_f32 v{Ow+i}, v{Ow+2*i}, v{Ow+2*i+1}")
        a(f"buffer_store_dwordx4 {v(Ow,4)}, v{3+w}, s[12:15], s32 offen sc1\nbuffer_store_dwordx4 {v(Ow+4,4)}, v{3+w}, s[12:15], s33 offen sc1")
    stamp(k, 3)
    prof_out(k, 4, 4, 26)
    a("s_endpgm")
    a(f"""
attn_slow:
    v_mov_b32 v{T}, 0xff800000
    v_mov_b32 v{T+2}, 0xff800000
    s_mov_b32 s30, 0
    s_waitcnt lgkmcnt(0)
attn_slow1:
    buffer_load_dwordx4 {v(K0,4)}, v2, s[8:11], s30 offen
    buffer_load_dwordx4 {v(K1,4)}, v2, s[8:11], s30 offen offset:1024
    s_waitcnt vmcnt(0)""")
    for w in range(2):
        a(f"v_mfma_f32_32x32x16_bf16 {v(S+16*w,16)}, {v(K0,4)}, {v(Q+8*w,4)}, 0")
        a(f"v_mfma_f32_32x32x16_bf16 {v(S+16*w,16)}, {v(K1,4)}, {v(Q+8*w+4,4)}, {v(S+16*w,16)}")
    for w in range(2): rowmax(S + 16 * w, T + 2 * w)
    a("s_add_u32 s30, s30, 4096\ns_cmp_lt_u32 s30, 0x40000\ns_cbranch_scc1 attn_slow1")
    for w in range(2): negbcast(T + 2 * w, w)
    for i in range(32): a(f"v_mov_b32 v{O+i}, 0")
    for i in range(8): a(f"v_mov_b32 v{L+i}, 0")
    a(f"""
    s_mov_b32 s30, 0
attn_slow2:
    buffer_load_dwordx4 {v(K0,4)}, v2, s[8:11], s30 offen
    buffer_load_dwordx4 {v(K1,4)}, v2, s[8:11], s30 offen offset:1024
    buffer_load_dwordx4 {v(V0,4)}, v2, s[8:11], s30 offen offset:2048
    buffer_load_dwordx4 {v(V1,4)}, v2, s[8:11], s30 offen offset:3072
    s_waitcnt vmcnt(0)""")
    for w in range(2):
        a(f"v_mfma_f32_32x32x16_bf16 {v(S+16*w,16)}, {v(K0,4)}, {v(Q+8*w,4)}, {v(NEG+16*w,16)}")
        a(f"v_mfma_f32_32x32x16_bf16 {v(S+16*w,16)}, {v(K1,4)}, {v(Q+8*w+4,4)}, {v(S+16*w,16)}")
    for i in range(32): a(f"v_exp_f32 v{S+i}, v{S+i}")
    for i in range(16): a(f"v_cvt_pk_bf16_f32 v{P+i}, v{S+2*i}, v{S+2*i+1}")
    for w in range(2):
        a(f"v_mfma_f32_32x32x16_bf16 {v(O+16*w,16)}, {v(V0,4)}, {v(P+8*w,4)}, {v(O+16*w,16)}")
        a(f"v_mfma_f32_32x32x16_bf16 {v(O+16*w,16)}, {v(V1,4)}, {v(P+8*w+4,4)}, {v(O+16*w,16)}")
        for x in lsum(w, P + 8 * w): a(x)
    a("s_add_u32 s30, s30, 4096\ns_cmp_lt_u32 s30, 0x40000\ns_cbranch_scc1 attn_slow2")
    ltot()
    a("s_branch attn_fin")
    attn_side(k, 4)
    finish(k)
    return k

def build(kernels, path, verbose=False):
    hdr = open("adaLN_cond__mha_block__geglu_ffn__prompt.s.ref").read().split("; Override launch")[0]
    out = hdr
    for k in kernels:
        out += f"; @launch kernel={k.name} grid=({k.grid},1,1) block=({k.block},1,1) lds={k.lds}\n"
    out += '.amdgcn_target "amdgcn-amd-amdhsa--gfx950"\n'
    for k in kernels:
        rep = []
        out += k.text(rep)
        if verbose:
            print(k.name, "vgpr", k.nv, "agpr", k.na, "lds", k.lds, "nops inserted:", len(rep))
            for r in rep:
                if "m0" not in r[1]: print("   ", r)
    out += '.section .rodata,"a"\n'
    for k in kernels: out += k.desc()
    open(path, "w").write(out)

CHECK = {"x2": "frag", "h2": False, "h1": False, "slab": SLAB}
def all_kernels():
    global QPRE
    QPRE = EXP.get("qpre", 1024)
    if EXP.get("fuse1", 1):
        ORDER[:] = ["pre_kernel", "qkv_kernel", "attn_kernel", "out_kernel", "gu_kernel", "down_kernel"]
        return [k_pre(), k_qkv(), k_attn4() if EXP.get('a4', 1) else k_attn(), k_out(), k_gu(), k_down()]
    ORDER[:] = ["pre_kernel", "ln1_kernel", "qkv_kernel", "attn_kernel", "out_kernel", "gu_kernel", "down_kernel"]
    return [k_pre(), k_ln("ln1_kernel", P_X, WS_H1, 0, 1), k_qkv(), k_attn(), k_out(), k_gu(), k_down()]

if __name__ == "__main__":
    vb = False
    for x in sys.argv[2:]:
        if x == "prof": PROF = True
        elif x == "verbose": vb = True
        else:
            kk, _, vv = x.partition("="); EXP[kk] = int(vv) if vv else 1
    build(all_kernels(), sys.argv[1] if len(sys.argv) > 1 else "adaLN_cond__mha_block__geglu_ffn__prompt.s", verbose=vb)
```

```python
import sys, math, struct
from asmlib import *

SLAB = 75776
WS_MODP = 0
WS_UV = 64 << 10
WS_STAT = 256 << 10
WS_WQ3 = 1 << 20
WS_WO3 = 5 << 19
WS_WD3 = 3 << 20
WS_H1 = 5 << 20
WS_Q = 10 << 20
WS_KV = 14 << 20
WS_O = 22 << 20
WS_X2 = 27 << 20
WS_Y2 = 32 << 20
WS_ACT = 37 << 20
WS_PROF = 56 << 20
KS = 2
P_X, P_WQKV, P_WO, P_BX, P_WG, P_WU, P_WD, P_C, P_WMOD, P_OUT, P_DBG, P_WS = [8 * i for i in range(12)]
LOG2E = 1.4426950408889634
PROF = False
EXP = {}
KID = {"qkv_kernel": 0, "out_kernel": 1, "gu_kernel": 2, "down_kernel": 3, "attn_kernel": 4}
def f2u(x): return struct.unpack("<I", struct.pack("<f", x))[0]
def fx(x): return hex(f2u(x))

class Kernel:
    def __init__(self, name, grid, block, lds, nv, na=0):
        self.name, self.grid, self.block, self.lds, self.nv, self.na = name, grid, block, lds, nv, na
        self.a = Asm()
    def text(self, report=None):
        body = fix_hazards(merge_waits(self.a.l), report)
        return (f".text\n.globl {self.name}\n.p2align 8\n.type {self.name},@function\n{self.name}:\n" + "\n".join(body) + "\n")
    def desc(self):
        acc = (self.nv + 3) // 4 * 4
        nfv = acc + self.na if self.na else self.nv
        return f""".p2align 6
.amdhsa_kernel {self.name}
  .amdhsa_next_free_vgpr {nfv}
  .amdhsa_next_free_sgpr 102
  .amdhsa_accum_offset {acc}
  .amdhsa_group_segment_fixed_size 0
  .amdhsa_kernarg_size 96
  .amdhsa_user_sgpr_count 2
  .amdhsa_user_sgpr_kernarg_segment_ptr 1
  .amdhsa_system_sgpr_workgroup_id_x 1
  .amdhsa_float_denorm_mode_32 3
  .amdhsa_float_denorm_mode_16_64 3
.end_amdhsa_kernel
"""

def stamp(k, i):
    if PROF: k.a(f"s_memtime {s(64+2*i,2)}\ns_memrealtime {s(74+2*i,2)}\ns_waitcnt lgkmcnt(0)")
def prof_out(k, n, kid, wave_s):
    if not PROF: return
    a = k.a
    a(f"s_waitcnt vmcnt(0)\ns_memtime {s(64+2*n,2)}\ns_memrealtime {s(74+2*n,2)}\ns_load_dwordx2 s[84:85], s[0:1], {P_WS}\ns_waitcnt lgkmcnt(0)")
    a(f"s_add_u32 s84, s84, {WS_PROF + kid*(1<<18)}\ns_addc_u32 s85, s85, 0\ns_mov_b32 s86, {1<<18}\ns_mov_b32 s87, 0x20000")
    a(f"s_lshl_b32 s88, s2, 3\ns_add_u32 s88, s88, s{wave_s}\ns_lshl_b32 s88, s88, 6\nv_mov_b32 v1, 0")
    for i in range(10):
        a(f"v_mov_b32 v0, s{64+2*i}\nbuffer_store_dword v0, v1, s[84:87], s88 offen offset:{4*i}")
def load_ptrs(a, pairs):
    for sreg, off in pairs: a(f"s_load_dwordx2 {s(sreg,2)}, s[0:1], {off}")
def srd(a, d, p, off, size):
    if off: a(f"s_add_u32 s{d}, s{p}, {off}\ns_addc_u32 s{d+1}, s{p+1}, 0")
    else: a(f"s_mov_b32 s{d}, s{p}\ns_mov_b32 s{d+1}, s{p+1}")
    a(f"s_mov_b32 s{d+2}, {size}\ns_mov_b32 s{d+3}, 0x20000")
def guard(k): k.a(f"s_cmp_ge_u32 s2, {k.grid}\ns_cbranch_scc1 {k.name}_end")
def finish(k): k.a(f"{k.name}_end:\ns_endpgm")
def unpack(a, dst, src, n):
    for i in range(n):
        a(f"v_lshlrev_b32 v{dst+2*i}, 16, v{src+i}\nv_and_b32 v{dst+2*i+1}, 0xffff0000, v{src+i}")
def rbf(a, x):
    a(f"v_cvt_pk_bf16_f32 v{x}, v{x}, v{x}\nv_and_b32 v{x}, 0xffff0000, v{x}")
def phys_line(a, dst, i, t):
    a(f"""
    v_mul_u32_u24 v{t}, 9363, v{i}
    v_lshrrev_b32 v{t}, 16, v{t}
    v_add_u32 v{dst}, v{i}, v{t}
    v_mul_u32_u24 v{t}, 7, v{t}
    v_sub_u32 v{t}, v{i}, v{t}
    v_add_u32 v{t}, 5, v{t}
    v_lshrrev_b32 v{t}, 3, v{t}
    v_add_lshl_u32 v{dst}, v{dst}, v{t}, 7""")
def frag_off(a, dst, srb, lane, t):
    a(f"v_lshrrev_b32 v{t}, 3, v{lane}\nv_lshl_add_u32 v{t}, s{srb}, 3, v{t}")
    phys_line(a, dst, t, t + 1)
    a(f"v_and_b32 v{t}, 7, v{lane}\nv_lshl_add_u32 v{dst}, v{t}, 4, v{dst}")
def tr_lane(a, T, lane, korder, colperm):
    a(f"""
    v_lshrrev_b32 v{T}, 5, v{lane}
    v_bfe_u32 v{T+1}, v{lane}, 4, 1
    v_bfe_u32 v{T+2}, v{lane}, 2, 2
    v_and_b32 v{T+3}, 3, v{lane}""")
    if colperm:
        a(f"v_lshrrev_b32 v{T+4}, 1, v{T+3}\nv_and_b32 v{T+3}, 1, v{T+3}\nv_lshl_add_u32 v{T+3}, v{T+3}, 1, v{T+4}")
    a(f"v_lshl_add_u32 v{T+4}, v{T}, {2 if korder=='split' else 3}, v{T+2}")
def panel_rd(a, T, e, o):
    a(f"""
    v_lshlrev_b32 v{T+4}, 7, v{T+4}
    v_lshl_add_u32 v{T+4}, v{T+1}, 5, v{T+4}
    v_lshl_add_u32 v{T+4}, v{T+3}, 3, v{T+4}
    v_lshrrev_b32 v{T+5}, 1, v{T+2}
    v_lshlrev_b32 v{T+5}, 6, v{T+5}
    v_add_u32 v{e}, v{T+4}, v{T+5}
    v_sub_u32 v{o}, v{T+4}, v{T+5}
    v_add_u32 v{o}, 64, v{o}""")
def panel_src(a, T, lane):
    a(f"""
    v_lshrrev_b32 v{T}, 3, v{lane}
    v_and_b32 v{T+1}, 7, v{lane}
    v_bfe_u32 v{T+2}, v{lane}, 4, 1
    v_lshlrev_b32 v{T+2}, 2, v{T+2}
    v_xor_b32 v{T+1}, v{T+1}, v{T+2}""")

SK_LDS = 65536 + 2048
def skinny(k, tag, mode, nt, pace=0, flag=False, nw=8, mid=None):
    a = k.a; NV = 1 if mode == "silu" else 2
    NC = 8 // nw; lg = (NC - 1).bit_length() if NC > 1 else 0
    VX = 100
    a(f"""
    s_lshl_b32 s55, s26, {6+lg}
    s_add_u32 s56, s52, s55""")
    if mode == "silu":
        a("v_add_lshl_u32 v4, v1, s56, 1")
        for c in range(NC): a(f"buffer_load_ushort v{VX+4*c}, v4, s[12:15], 0 offen offset:{128*c}")
    else:
        a("v_add_lshl_u32 v4, v1, s56, 2")
        for i, (p, idx) in enumerate([(0, 4), (1, 4), (0, 3), (1, 3)]):
            a(f"s_mov_b32 s57, {p*6144*4 + idx*4096}")
            for c in range(NC): a(f"buffer_load_dword v{VX+4*c+i}, v4, s[12:15], s57 offen offset:{256*c}")
    panel_src(a, 5, 1)
    a(f"""
    v_add_u32 v5, s55, v5
    v_mul_lo_u32 v5, v5, s51
    v_lshl_add_u32 v5, v6, 4, v5
    s_lshl_b32 s57, s26, {13+lg}
    s_lshl_b32 s59, s51, 3""")
    def dmas():
        for g in range(8 * NC):
            a(f"s_add_u32 m0, s57, {1024*g}\ns_nop 0\nbuffer_load_dwordx4 v5, s[8:11], s50 offen{nt} lds\ns_add_u32 s50, s50, s59")
            if pace and g < 8 * NC - 1: a(f"s_waitcnt vmcnt({pace-1})")
    if not mid: dmas()
    tr_lane(a, 12, 1, "contig", False)
    panel_rd(a, 12, 18, 19)
    a(f"""
    v_add_u32 v18, s57, v18
    v_add_u32 v19, s57, v19
    s_lshl_b32 s58, s26, {8+lg}
    s_add_u32 s58, s58, 0x10000
    v_lshl_add_u32 v6, v1, 1, s58
    v_and_b32 v7, 31, v1
    v_lshrrev_b32 v12, 5, v1
    v_lshlrev_b32 v12, 4, v12
    v_lshl_add_u32 v12, v7, 7, v12
    v_add_u32 v12, s58, v12
    s_waitcnt vmcnt({0 if mid else 8*NC})""")
    for c in range(NC):
        x = VX + 4 * c
        if mode == "silu":
            a(f"""
            v_lshlrev_b32 v{x}, 16, v{x}
            v_mul_f32 v{x+1}, {fx(-LOG2E)}, v{x}
            v_exp_f32 v{x+1}, v{x+1}
            v_add_f32 v{x+1}, 1.0, v{x+1}
            v_rcp_f32 v{x+1}, v{x+1}
            v_mul_f32 v{x}, v{x}, v{x+1}
            v_cvt_pk_bf16_f32 v{x}, v{x}, v{x}
            ds_write_b16 v6, v{x} offset:{256*c}""")
        else:
            a(f"v_add_f32 v{x}, v{x}, v{x+1}\nv_add_f32 v{x+2}, v{x+2}, v{x+3}")
            rbf(a, x)
            a(f"v_add_f32 v{x}, 1.0, v{x}\nv_cvt_pk_bf16_f32 v{x}, v{x}, v{x}\nv_cvt_pk_bf16_f32 v{x+2}, v{x+2}, v{x+2}")
            a(f"ds_write_b16 v6, v{x} offset:{256*c}\nds_write_b16 v6, v{x+2} offset:{256*c+128}")
    for i in range(16): a(f"v_mov_b32 v{20+i}, 0")
    if mid:
        dmas(); mid()
    a(f"v_cmp_gt_u32 vcc, {NV}, v7\ns_waitcnt vmcnt(0) lgkmcnt(0)")
    for c in range(NC):
        a("s_and_saveexec_b64 s[60:61], vcc")
        for sub in range(4): a(f"ds_read_b128 {v(20+4*sub,4)}, v12 offset:{32*sub+256*c}")
        a("s_mov_b64 exec, s[60:61]")
        for sub in range(4):
            for j in range(2):
                for r_ in range(2):
                    a(f"ds_read_b64_tr_b16 {v(36+8*sub+4*j+2*r_,2)}, v{18+j} offset:{128*(16*sub+4*r_)+8192*c}")
        for sub in range(4):
            a(f"s_waitcnt lgkmcnt({12-4*sub})")
            for j in range(2):
                d = v(68 + 16 * j, 16)
                a(f"v_mfma_f32_32x32x16_bf16 {d}, {v(20+4*sub,4)}, {v(36+8*sub+4*j,4)}, {d if (sub or c) else 0}")
    a(f"""
    v_lshl_add_u32 v6, v1, 2, s57
    v_cmp_gt_u32 vcc, 32, v1
    s_and_saveexec_b64 s[60:61], vcc""")
    for j in range(2):
        for q in range(NV): a(f"ds_write_b32 v6, v{68+16*j+q} offset:{256*q+128*j}")
    a(f"""
    s_mov_b64 exec, s[60:61]
    s_waitcnt lgkmcnt(0)
    s_barrier
    s_cmp_ge_u32 s26, {NV}
    s_cbranch_scc1 {k.name}_end
    s_lshl_b32 s57, s26, 8
    v_lshl_add_u32 v6, v1, 2, s57""")
    for w in range(nw): a(f"ds_read_b32 v{8+w}, v6 offset:{8192*NC*w}")
    a(f"s_mul_i32 s57, s26, s54\ns_add_u32 s53, s53, s57\nv_lshlrev_b32 v6, 2, v1\ns_waitcnt lgkmcnt(0)")
    for w in (4, 2, 1):
        if w < nw:
            for i in range(w): a(f"v_add_f32 v{8+i}, v{8+i}, v{8+w+i}")
    if not flag:
        a("buffer_store_dword v8, v6, s[16:19], s53 offen\ns_endpgm")
        return
    a("""
    buffer_store_dword v8, v6, s[16:19], s53 offen sc1
    s_lshl_b32 s57, s2, 2
    v_mov_b32 v9, 1
    v_mov_b32 v6, s57
    s_mov_b64 exec, 1
    s_waitcnt vmcnt(0)
    buffer_store_dword v9, v6, s[20:23], 0 offen sc1
    s_endpgm""")

def prefetch(a, gid, ps, nbytes, start, vt, srd_s=20):
    srd(a, srd_s, ps, 0, nbytes)
    a(f"""
    v_subrev_u32 v{vt}, {start}, v{gid}
    v_cmp_gt_u32 vcc, {nbytes//128}, v{vt}
    v_lshlrev_b32 v{vt}, 7, v{vt}
    v_mov_b32 v{vt+1}, 0x80000000
    v_cndmask_b32 v{vt}, v{vt+1}, v{vt}, vcc
    buffer_load_dword v{vt+1}, v{vt}, {s(srd_s,4)}, 0 offen""")

def strip_copy_issue(a, gid, ps, K, ldb, npan, start, vt, srd_s=20, col=384, dsh=8, doff=0):
    srd(a, srd_s, ps, 0, K * ldb)
    n = 2 * npan
    a(f"""
    v_subrev_u32 v{vt}, {start}, v{gid}
    v_cmp_gt_u32 vcc, {K*n*8}, v{vt}
    v_and_b32 v{vt+1}, 7, v{vt}
    v_lshrrev_b32 v{vt}, 3, v{vt}""")
    if npan == 1:
        a(f"v_lshrrev_b32 v{vt+2}, 1, v{vt}\nv_and_b32 v{vt+3}, 1, v{vt}\nv_lshlrev_b32 v{vt+3}, 10, v{vt+3}")
    else:
        a(f"""
        v_mul_u32_u24 v{vt+2}, 10923, v{vt}
        v_lshrrev_b32 v{vt+2}, 16, v{vt+2}
        v_mul_u32_u24 v{vt+3}, 6, v{vt+2}
        v_sub_u32 v{vt+3}, v{vt}, v{vt+3}
        v_lshlrev_b32 v{vt+4}, 11, v{vt+3}
        v_add_u32 v{vt+3}, 5, v{vt+3}
        v_lshrrev_b32 v{vt+3}, 3, v{vt+3}
        v_mul_u32_u24 v{vt+3}, {6144-1024}, v{vt+3}
        v_sub_u32 v{vt+3}, v{vt+4}, v{vt+3}""")
    a(f"""
    v_mul_u32_u24 v{vt+2}, {ldb}, v{vt+2}
    v_add3_u32 v{vt+2}, v{vt+2}, v{vt+3}, 0
    v_lshl_add_u32 v{vt+2}, v{vt+1}, 4, v{vt+2}
    v_add_u32 v{vt+2}, {col}, v{vt+2}
    v_mov_b32 v{vt+3}, 0x80000000
    v_cndmask_b32 v{vt+2}, v{vt+3}, v{vt+2}, vcc
    v_lshlrev_b32 v{vt}, {dsh}, v{vt}
    v_lshl_add_u32 v{vt}, v{vt+1}, 4, v{vt}
    v_add_u32 v{vt}, {doff}, v{vt}
    v_cndmask_b32 v{vt}, v{vt+3}, v{vt}, vcc
    buffer_load_dwordx4 {v(vt+4,4)}, v{vt+2}, {s(srd_s,4)}, 0 offen""")
def strip_copy_store(a, ws_s, off, size, vt, srd_s=20):
    srd(a, srd_s, ws_s, off, size)
    a(f"buffer_store_dwordx4 {v(vt+4,4)}, v{vt}, {s(srd_s,4)}, 0 offen sc1")

ORDER = []
def code_srd(k, d, start, upto=None, nwg=8):
    if EXP.get("nocpf"): nwg = 0
    i = ORDER.index(k.name)
    end = upto or (ORDER[min(i + 1, len(ORDER) - 1)] + "_end")
    k.npc = getattr(k, "npc", 0) + 1
    lab = f"{k.name}_pc{k.npc}"
    k.a(f"""
    s_getpc_b64 {s(d,2)}
{lab}:
    s_add_u32 s{d}, s{d}, {start}-{lab}
    s_addc_u32 s{d+1}, s{d+1}, 0
    s_mov_b32 s{d+2}, {end}-{start}+4
    s_cmp_lt_u32 s2, {nwg}
    s_cselect_b32 s{d+2}, s{d+2}, 0
    s_mov_b32 s{d+3}, 0x20000""")
def cpf_addr(a, vr):
    a(f"""
    s_lshr_b32 s32, s2, 3
    s_lshl_b32 s32, s32, 2
    s_add_u32 s32, s32, s26
    s_lshl_b32 s32, s32, 9
    v_lshrrev_b32 v{vr}, 2, v1
    v_lshlrev_b32 v{vr}, 20, v{vr}
    v_lshl_add_u32 v{vr}, v1, 7, v{vr}
    v_add_u32 v{vr}, s32, v{vr}""")
def wave_lane(a):
    a("v_lshrrev_b32 v2, 6, v0\nv_and_b32 v1, 63, v0\nv_readfirstlane_b32 s26, v2")

def red32(a, x, t):
    for m in ("quad_perm:[1,0,3,2]", "quad_perm:[2,3,0,1]", "row_half_mirror", "row_mirror"):
        a(f"v_add_f32_dpp v{x}, v{x}, v{x} {m} row_mask:0xf bank_mask:0xf")
    a(f"v_mov_b32 v{t}, v{x}\nv_permlane16_swap_b32 v{x}, v{t}\nv_add_f32 v{x}, v{x}, v{t}")

QPRE = 256
def k_pre():
    GP = EXP.get("gpre", 0)
    NT = EXP.get("tlbwg", 8) if EXP.get("tlb", 0) else 0
    k = Kernel("pre_kernel", (320 if GP else 256) + NT, 512, SK_LDS, 112); a = k.a
    guard(k)
    if NT:
        sh = EXP["tlb"]
        a(f"s_cmp_lt_u32 s2, {k.grid - NT}\ns_cbranch_scc1 pre_main")
        bufs = [(P_WS, 0, 54 << 20), (P_WO, 0, 2 << 20), (P_WG, 0, 1024 * 7168), (P_WU, 0, 1024 * 7168), (P_WD, 0, 3584 * 2048), (P_OUT, 0, 4 << 20),
                (P_WQKV, 0, 1024 * 6144), (P_WMOD, 0, 1024 * 12288), (P_X, 0, 4 << 20)]
        for i, (p, o, n) in enumerate(bufs): a(f"s_load_dwordx2 {s(40+2*i,2)}, s[0:1], {p}")
        a(f"v_lshlrev_b32 v1, {sh}, v0\ns_waitcnt lgkmcnt(0)")
        for i, (p, o, n) in enumerate(bufs):
            srd(a, 4, 40 + 2 * i, 0, n)
            for c in range(0, n, 512 << sh):
                a(f"s_mov_b32 s8, {c}\nbuffer_load_dword v2, v1, s[4:7], s8 offen")
        a("s_endpgm\npre_main:")
    code_srd(k, 88, "pre_kernel_top", ORDER[-1] + "_end")
    a("v_lshlrev_b32 v108, 7, v0\nbuffer_load_dword v109, v108, s[88:91], 0 offen\ns_mov_b32 s3, 0x10000\nbuffer_load_dword v109, v108, s[88:91], s3 offen\npre_kernel_top:")
    load_ptrs(a, [(40, P_C), (42, P_WMOD), (44, P_WS), (46, P_WQKV), (48, P_X), (62, P_DBG)])
    wave_lane(a)
    a(f"""
    s_sub_u32 s27, s2, 128
    s_cmp_lt_u32 s27, 128
    s_cbranch_scc1 pre_side
    s_and_b32 s32, s2, 1
    s_lshr_b32 s33, s2, 1
    s_cmp_ge_u32 s33, 32
    s_cselect_b32 s34, 16, 0
    s_add_u32 s33, s33, s34
    s_cmp_ge_u32 s33, 160
    s_mov_b32 s34, 112
    s_cselect_b32 s34, 80, s34
    s_cmp_ge_u32 s33, 144
    s_cselect_b32 s34, s34, 0
    s_sub_u32 s33, s33, s34
    s_lshl_b32 s52, s32, 9
    s_mov_b32 s51, 12288
    s_mul_i32 s50, s52, s51
    s_lshl_b32 s34, s33, 7
    s_add_u32 s50, s50, s34
    s_mul_i32 s53, s32, {6144*4}
    s_lshl_b32 s34, s33, 8
    s_add_u32 s53, s53, s34
    s_mov_b32 s54, 0
    s_waitcnt lgkmcnt(0)""")
    srd(a, 8, 42, 0, 1024 * 12288); srd(a, 12, 40, 0, 2048); srd(a, 16, 44, WS_MODP, KS * 6144 * 4)
    F2 = EXP.get("fuse1", 1) == 2
    if F2: srd(a, 20, 62, 0, 256)
    skinny(k, "m", "silu", " nt" if EXP.get("mnt", 1) else "", flag=F2)
    a("""
pre_side:
    s_lshl_b32 s32, s27, 9
    v_add_u32 v3, s32, v0""")
    if not EXP.get("fuse1", 1):
        a("s_waitcnt lgkmcnt(0)")
        strip_copy_issue(a, 3, 46, 1024, 6144, 3, 0, 8)
        prefetch(a, 3, 46, 1024 * 6144, 65536 - 49152, 20)
        prefetch(a, 3, 48, 2048 * 2048, 0, 24)
        a("s_waitcnt vmcnt(2)")
        strip_copy_store(a, 44, WS_WQ3, 1024 * 1536, 8)
        finish(k)
        return k
    a(f"""
    v_lshrrev_b32 v1, 5, v0
    v_and_b32 v2, 31, v0               ; chunk
    s_lshl_b32 s24, s27, 4
    v_add_u32 v4, s24, v1
    v_lshlrev_b32 v4, 11, v4
    v_lshl_add_u32 v4, v2, 4, v4
    s_waitcnt lgkmcnt(0)""")
    srd(a, 4, 48, 0, 2048 * 2048); srd(a, 12, 44, WS_H1, 64 * SLAB)
    for i in range(4): a(f"buffer_load_dwordx4 {v(8+4*i,4)}, v4, s[4:7], 0 offen offset:{512*i} nt")
    if EXP.get("zflag"):
        srd(a, 20, 44, EXP["zflag"], 1536 * 128)
        a("v_lshlrev_b32 v76, 7, v3\nv_mov_b32 v78, 0\nv_mov_b32 v79, 0\nv_mov_b32 v80, 0\nv_mov_b32 v81, 0\nbuffer_store_dwordx4 v[78:81], v76, s[20:23], 0 offen")
    EARLY = (not F2) or EXP.get("pfearly", 1)
    if EARLY:
        strip_copy_issue(a, 3, 46, 1024, 6144, 3, 0, 64)
        prefetch(a, 3, 46, QPRE * 6144, 65536 - QPRE * 48, 72)
    a(f"""
    s_lshr_b32 s25, s27, 1
    s_lshl_b32 s25, s25, 3
    s_and_b32 s26, s27, 1
    s_lshl_b32 s26, s26, 1
    s_add_u32 s25, s25, s26
    v_bfe_u32 v26, v0, 4, 1
    v_lshl_add_u32 v26, v26, 2, s25
    v_bfe_u32 v27, v0, 3, 1
    v_add_u32 v26, v26, v27""")
    phys_line(a, 25, 26, 27)
    a(f"""
    v_and_b32 v26, 7, v0
    v_lshl_add_u32 v25, v26, 4, v25
    s_mov_b32 s25, {SLAB}
    v_mul_lo_u32 v27, v1, s25
    v_add_u32 v25, v25, v27
    v_lshrrev_b32 v27, 4, v0
    v_mul_u32_u24 v27, 272, v27
    v_and_b32 v26, 15, v0
    v_lshl_add_u32 v27, v26, 4, v27
    v_mul_u32_u24 v28, 272, v2
    v_lshl_add_u32 v28, v1, 4, v28""")
    if EXP.get("xsplit"): a("v_and_b32 v29, 1, v2\nv_mul_u32_u24 v29, 264, v29\nv_sub_u32 v28, v28, v29")
    a(f"s_waitcnt vmcnt({2 if EARLY else 0})")
    if not EARLY:
        a("""
        v_subrev_u32 v5, 64, v0
        s_mul_i32 s32, s27, 448
        v_add_u32 v5, s32, v5
        v_mov_b32 v29, 0x40000000
        v_cmp_gt_u32 vcc, 64, v0
        v_cndmask_b32 v3, v5, v29, vcc""")
        strip_copy_issue(a, 3, 46, 1024, 6144, 3, 0, 64)
        prefetch(a, 3, 46, QPRE * 6144, 57344 - QPRE * 48, 72)
    unpack(a, 32, 8, 16)
    a("v_add_f32 v6, v32, v33\nv_add_f32 v7, v34, v35")
    for i in range(4, 32): a(f"v_add_f32 v{6+i%2}, v{6+i%2}, v{32+i}")
    a("v_add_f32 v6, v6, v7")
    red32(a, 6, 7)
    a(f"v_mul_f32 v6, {fx(1/1024)}, v6")
    for i in range(32): a(f"v_sub_f32 v{32+i}, v{32+i}, v6")
    a("v_mul_f32 v6, v32, v32\nv_mul_f32 v7, v33, v33")
    for i in range(2, 32): a(f"v_fmac_f32 v{6+i%2}, v{32+i}, v{32+i}")
    a("v_add_f32 v6, v6, v7")
    red32(a, 6, 7)
    a(f"""
    v_mov_b32 v7, {fx(1e-5)}
    v_fmac_f32 v7, {fx(1/1024)}, v6
    v_rsq_f32 v6, v7""")
    if not F2:
        for i in range(4):
            for j in range(8): a(f"v_mul_f32 v{32+8*i+j}, v{32+8*i+j}, v6")
            for j in range(4): a(f"v_cvt_pk_f16_f32 v{8+4*i+j}, v{32+8*i+2*j}, v{33+8*i+2*j}")
            if EXP.get("xsplit"):
                a(f"ds_write_b64 v28, {v(8+4*i,2)} offset:{32*272*i}\nds_write_b64 v28, {v(10+4*i,2)} offset:{32*272*i+272}")
            else: a(f"ds_write_b128 v28, {v(8+4*i,4)} offset:{32*272*i}")
    else:
        CL = 36864
        for i in range(32): a(f"v_mul_f32 v{32+i}, v{32+i}, v6")
        srd(a, 16, 62, 0, 256); srd(a, 8, 44, WS_MODP, KS * 6144 * 4)
        a(f"""
        v_lshlrev_b32 v5, 4, v0
        v_lshlrev_b32 v24, 5, v2
        v_lshrrev_b32 v7, 6, v0
        v_lshlrev_b32 v6, 2, v0
        v_readfirstlane_b32 s26, v7
        s_cmp_lg_u32 s26, 0
        s_cbranch_scc1 pre_go
pre_poll:
        buffer_load_dword v7, v6, s[16:19], 0 offen sc1
        s_waitcnt vmcnt(0)
        v_cmp_eq_u32 vcc, 1, v7
        s_cmp_eq_u64 vcc, -1
        s_cbranch_scc1 pre_go
        s_sleep 1
        s_branch pre_poll
pre_go:
        s_barrier
        s_mov_b32 s32, {6144*4}
        buffer_load_dwordx4 v[8:11], v5, s[8:11], 0 offen sc1
        buffer_load_dwordx4 v[12:15], v5, s[8:11], s32 offen sc1
        s_cmp_ge_u32 s26, 4
        s_cselect_b32 s33, 1.0, 0
        s_waitcnt vmcnt(0)""")
        for j in range(4): a(f"v_add_f32 v{8+j}, v{8+j}, v{12+j}")
        for j in range(2): a(f"v_cvt_pk_bf16_f32 v{12+j}, v{8+2*j}, v{9+2*j}")
        unpack(a, 8, 12, 2)
        for j in range(4): a(f"v_add_f32 v{8+j}, s33, v{8+j}")
        for j in range(2): a(f"v_cvt_pk_bf16_f32 v{12+j}, v{8+2*j}, v{9+2*j}")
        unpack(a, 8, 12, 2)
        a(f"ds_write_b128 v5, v[8:11] offset:{CL}\ns_waitcnt lgkmcnt(0)\ns_barrier")
        B0, B1 = 8, 76
        def crd(i):
            B = B0 if i % 2 == 0 else B1
            for n, o in enumerate((4096, 4096 + 16, 0, 16)): a(f"ds_read_b128 {v(B+4*n,4)}, v24 offset:{CL+o+1024*i}")
        crd(0); crd(1)
        for i in range(4):
            B = B0 if i % 2 == 0 else B1
            a(f"s_waitcnt lgkmcnt({[4,5,5,1][i]})")
            for j in range(8): a(f"v_fma_f32 v{32+8*i+j}, v{32+8*i+j}, v{B+j}, v{B+8+j}")
            for j in range(4): a(f"v_cvt_pk_bf16_f32 v{92+j}, v{32+8*i+2*j}, v{33+8*i+2*j}")
            a(f"ds_write_b128 v28, v[92:95] offset:{32*272*i}")
            if i < 2: crd(i + 2)
    a("s_waitcnt lgkmcnt(0)\ns_barrier")
    for i in range(4): a(f"ds_read_b128 {v(32+4*i,4)}, v27 offset:{32*272*i}")
    for i in range(4):
        a(f"s_mov_b32 s25, {16*SLAB*i}\ns_waitcnt lgkmcnt({3-i})\nbuffer_store_dwordx4 {v(32+4*i,4)}, v25, s[12:15], s25 offen sc1")
    if not F2: a("s_waitcnt vmcnt(5)")
    strip_copy_store(a, 44, WS_WQ3, 1024 * 1536, 64)
    finish(k)
    return k

def k_ln(name, src_ptr, dst_off, shift_idx, scale_idx):
    k = Kernel(name, 256, 256, 8192 + 128 * 144, 128); a = k.a
    guard(k)
    load_ptrs(a, [(40, src_ptr), (44, P_WS)])
    code_srd(k, 88, name + "_end")
    a("v_lshlrev_b32 v30, 7, v0\nbuffer_load_dword v31, v30, s[88:91], 0 offen")
    a(f"""
    v_lshrrev_b32 v1, 5, v0
    v_and_b32 v2, 31, v0               ; chunk
    s_lshl_b32 s24, s2, 3
    v_add_u32 v3, s24, v1              ; row
    v_lshlrev_b32 v4, 11, v3
    v_lshl_add_u32 v4, v2, 4, v4
    v_lshlrev_b32 v5, 4, v0            ; tid*16
    s_waitcnt lgkmcnt(0)""")
    srd(a, 4, 40, 0, 2048 * 2048); srd(a, 8, 44, WS_MODP, KS * 6144 * 4); srd(a, 12, 44, dst_off, 64 * SLAB)
    for p in range(KS):
        a(f"s_mov_b32 s25, {p*6144*4 + scale_idx*4096}\nbuffer_load_dwordx4 {v(96+8*p,4)}, v5, s[8:11], s25 offen")
        a(f"s_mov_b32 s25, {p*6144*4 + shift_idx*4096}\nbuffer_load_dwordx4 {v(100+8*p,4)}, v5, s[8:11], s25 offen")
    for i in range(4): a(f"buffer_load_dwordx4 {v(8+4*i,4)}, v4, s[4:7], 0 offen offset:{512*i}")
    a(f"""
    s_lshr_b32 s25, s2, 2
    s_lshl_b32 s25, s25, 3
    s_and_b32 s26, s2, 3
    s_add_u32 s25, s25, s26
    v_bfe_u32 v26, v0, 3, 1
    v_lshl_add_u32 v26, v26, 2, s25""")
    phys_line(a, 25, 26, 27)
    a(f"""
    v_and_b32 v26, 7, v0
    v_lshl_add_u32 v25, v26, 4, v25
    v_lshrrev_b32 v27, 4, v0
    s_mov_b32 s25, {SLAB}
    v_mul_lo_u32 v27, v27, s25
    v_add_u32 v25, v25, v27
    v_lshrrev_b32 v27, 3, v0
    v_mul_u32_u24 v27, 144, v27
    v_lshl_add_u32 v27, v26, 4, v27
    v_mul_u32_u24 v28, 144, v2
    v_lshl_add_u32 v28, v1, 4, v28
    s_waitcnt vmcnt(4)""")
    for p in range(1, KS):
        for j in range(8): a(f"v_add_f32 v{96+j}, v{96+j}, v{96+8*p+j}")
    for j in range(4): a(f"v_cvt_pk_bf16_f32 v{112+j}, v{96+2*j}, v{97+2*j}")
    unpack(a, 96, 112, 4)
    for j in range(4): a(f"v_add_f32 v{96+j}, 1.0, v{96+j}")
    for j in range(2): a(f"v_cvt_pk_bf16_f32 v{112+j}, v{96+2*j}, v{97+2*j}")
    unpack(a, 96, 112, 2)
    a("ds_write_b128 v5, v[96:99]\nds_write_b128 v5, v[100:103] offset:4096")
    a("s_waitcnt vmcnt(0)")
    unpack(a, 32, 8, 16)
    a("v_add_f32 v6, v32, v33\nv_add_f32 v7, v34, v35")
    for i in range(4, 32): a(f"v_add_f32 v{6+i%2}, v{6+i%2}, v{32+i}")
    a("v_add_f32 v6, v6, v7")
    red32(a, 6, 7)
    a(f"v_mul_f32 v6, {fx(1/1024)}, v6")
    for i in range(32): a(f"v_sub_f32 v{32+i}, v{32+i}, v6")
    a("v_mul_f32 v6, v32, v32\nv_mul_f32 v7, v33, v33")
    for i in range(2, 32): a(f"v_fmac_f32 v{6+i%2}, v{32+i}, v{32+i}")
    a("v_add_f32 v6, v6, v7")
    red32(a, 6, 7)
    a(f"""
    v_mov_b32 v7, {fx(1e-5)}
    v_fmac_f32 v7, {fx(1/1024)}, v6
    v_rsq_f32 v6, v7
    v_lshlrev_b32 v24, 5, v2
    s_waitcnt lgkmcnt(0)
    s_barrier""")
    for i in range(4):
        a(f"ds_read_b128 {v(64+16*i,4)}, v24 offset:{1024*i}\nds_read_b128 {v(68+16*i,4)}, v24 offset:{1024*i+16}")
        a(f"ds_read_b128 {v(72+16*i,4)}, v24 offset:{4096+1024*i}\nds_read_b128 {v(76+16*i,4)}, v24 offset:{4096+1024*i+16}")
    for i in range(32): a(f"v_mul_f32 v{32+i}, v{32+i}, v6")
    for i in range(4):
        a(f"s_waitcnt lgkmcnt({12-4*i+i})")
        for j in range(8): a(f"v_fma_f32 v{32+8*i+j}, v{32+8*i+j}, v{64+16*i+j}, v{72+16*i+j}")
        for j in range(4): a(f"v_cvt_pk_bf16_f32 v{8+4*i+j}, v{32+8*i+2*j}, v{33+8*i+2*j}")
        a(f"ds_write_b128 v28, {v(8+4*i,4)} offset:{8192+32*144*i}")
    a("s_waitcnt lgkmcnt(0)\ns_barrier")
    for i in range(4): a(f"ds_read_b128 {v(32+4*i,4)}, v27 offset:{8192+32*144*i}")
    for i in range(4):
        a(f"s_mov_b32 s25, {16*SLAB*i}\ns_waitcnt lgkmcnt({3-i})\nbuffer_store_dwordx4 {v(32+4*i,4)}, v25, s[12:15], s25 offen sc1")
    finish(k)
    return k

def tile_map(a, TM, TN, xm, xn):
    tm_per, tn_per = TM // xm, TN // xn
    assert tm_per & (tm_per - 1) == 0
    a(f"""
    s_and_b32 s32, s2, 7
    s_lshr_b32 s33, s2, 3
    s_lshr_b32 s34, s32, {xn.bit_length()-1}
    s_and_b32 s35, s32, {xn-1}
    s_and_b32 s24, s33, {tm_per-1}
    s_lshr_b32 s25, s33, {tm_per.bit_length()-1}
    s_mul_i32 s34, s34, {tm_per}
    s_add_u32 s24, s24, s34
    s_mul_i32 s35, s35, {tn_per}
    s_add_u32 s25, s25, s35""")
    wave_lane(a)

def k_gemm(name, K, MB, NB, DA, R, U, PEEL, CAP, INIT, btype, a_off, korder, colperm, orient, TM, TN, xm, xn,
           ptrs, setup, epilogue, ldb, alt=None, big=False, ntemp=24, xlds=0, nxa=0, FB=1, mod=False):
    S = K // 16; NST = K // 64; WG = EXP.get(name[0] + 'WG', 2 if mod else 1)
    assert (NST - PEEL) % U == 0 and (4 * U) % DA == 0 and (4 * PEEL) % DA == 0 and (4 * U) % FB == 0 and (4 * PEEL) % FB == 0
    if btype == "panel":
        NP = NB // 2; STAGE = NP * 8192; ND = 2 * NP
    else:
        UPOFF = 16 * (64 * 14 + 8); STAGE = 2 * UPOFF; ND = 7
    VRE0, VRO0, VRE, VRO, VA = 3, 4, 5, 6, 7
    VB = VA + MB
    nfix = VB + ND
    if big:
        ACC = 256 - 16 * NB * MB; fk = "a"; BF = 0; AR = 4 * NB * FB; XA = AR + 4 * MB * DA; na = XA + nxa; nv = 256
        TMP = (nfix + 1) // 2 * 2; assert TMP + 14 <= ACC
    else:
        TMP = (nfix + 3) // 4 * 4
        ACC = (TMP + ntemp + 3) // 4 * 4
        fk = "v"; BF = ACC + 16 * NB * MB; AR = BF + 4 * NB * FB; nv = AR + 4 * MB * DA; na = 0; XA = None
        if mod: CM0 = nv; HF = CM0 + 32; VC = HF + 8; nv = VC + 1
    k = Kernel(name, TM * TN, 256, STAGE * R + xlds, nv, na); a = k.a
    k.ACC, k.TMP, k.MB, k.NB, k.BF, k.AR, k.VA, k.XL, k.XA = ACC, TMP, MB, NB, BF, AR, VA, STAGE * R, XA
    acc = lambda j, tb: ACC + 16 * (j * MB + tb)
    k.acc = acc
    guard(k)
    stamp(k, 0)
    load_ptrs(a, ptrs)
    tile_map(a, TM, TN, xm, xn)
    T = TMP
    a(f"s_lshl_b32 s37, s24, 2\ns_add_u32 s37, s37, s26\ns_mul_i32 s37, s37, {MB}")
    rd_rows = 8 if korder == "split" else 4
    if btype == "panel":
        off_alt, ldb_alt, pst_alt, sst_alt = alt
        a(f"""
        s_and_b32 s32, s25, 7
        s_lshr_b32 s33, s25, 3
        s_mul_i32 s33, s33, {sst_alt}
        s_lshl_b32 s34, s25, 7
        s_mov_b32 s51, {ldb}
        s_mov_b32 s52, 2048
        s_cmp_eq_u32 s32, {3 if not EXP.get('noalt') else 99}
        s_cselect_b32 s50, s33, s34
        s_cselect_b32 s51, {ldb_alt}, s51
        s_cselect_b32 s52, {pst_alt}, s52
        s_cselect_b32 s53, 1, 0
        s_lshl_b32 s39, s51, 6
        s_lshl_b32 s54, s51, 3""")
        panel_src(a, T, 1)
        a(f"""
        s_lshl_b32 s32, s26, 4
        v_add_u32 v{T}, s32, v{T}
        v_mul_lo_u32 v{T}, v{T}, s51
        v_lshl_add_u32 v{T}, v{T+1}, 4, v{T}
        v_add_u32 v{VB}, s50, v{T}
        v_add_u32 v{VB+1}, s54, v{VB}""")
        for p in range(1, NP):
            a(f"v_add_u32 v{VB+2*p}, s52, v{VB+2*p-2}\nv_add_u32 v{VB+2*p+1}, s52, v{VB+2*p-1}")
        dma_lds = [p * 8192 + g * 1024 for p in range(NP) for g in range(2)]
        a("s_lshl_b32 s36, s26, 11")
    else:
        a(f"""
        s_and_b32 s32, s26, 1
        s_mul_i32 s33, s32, {32*ldb}
        s_mul_i32 s34, s25, 224
        s_add_u32 s33, s33, s34
        s_mov_b32 s39, {64*ldb}""")
        for i in range(7):
            a(f"""
            v_add_u32 v{T}, {64*i}, v1
            v_mul_u32_u24 v{T+1}, 4682, v{T}
            v_lshrrev_b32 v{T+1}, 16, v{T+1}
            v_lshl_add_u32 v{T}, v{T}, 4, s33
            v_mul_u32_u24 v{T+1}, {ldb-224}, v{T+1}
            v_add_u32 v{VB+i}, v{T}, v{T+1}""")
        dma_lds = [1024 * i for i in range(7)]
        a(f"""
        s_mul_i32 s36, s32, 7168
        s_lshr_b32 s33, s26, 1
        s_mul_i32 s33, s33, {UPOFF}
        s_add_u32 s36, s36, s33""")
    for tb in range(MB):
        if tb: a(f"s_add_u32 s32, s37, {tb}")
        frag_off(a, VA + tb, 32 if tb else 37, 1, T)
    a(f"""
    s_mov_b32 s27, 0
    s_mov_b32 s28, 0
    s_mov_b32 s29, s36
    s_add_u32 s38, s36, {R*STAGE}
    s_mov_b32 s31, {(R-1)*STAGE}
    s_waitcnt lgkmcnt(0)""")
    srd(a, 4, 44, a_off, S * SLAB)
    if btype == "panel":
        a(f"""
        s_add_u32 s32, s44, {off_alt}
        s_addc_u32 s33, s45, 0
        s_cmp_eq_u32 s53, 1
        s_cselect_b32 s8, s32, s40
        s_cselect_b32 s9, s33, s41
        s_mul_i32 s10, s51, {K}
        s_mov_b32 s11, 0x20000""")
    else:
        a("s_cmp_ge_u32 s26, 2\ns_cselect_b32 s8, s42, s40\ns_cselect_b32 s9, s43, s41")
        a(f"s_mov_b32 s10, {K*ldb}\ns_mov_b32 s11, 0x20000")

    def late_setup():
        code_srd(k, 92, name + "_epi")
        a("v_lshlrev_b32 v2, 7, v0")
        tr_lane(a, T, 1, korder, colperm)
        if btype == "panel": panel_rd(a, T, VRE0, VRO0)
        else:
            a(f"""
            v_mul_u32_u24 v{T+4}, 224, v{T+4}
            v_lshl_add_u32 v{T+4}, v{T+3}, 3, v{T+4}
            v_mul_u32_u24 v{T+5}, {UPOFF}, v{T+1}
            v_add_u32 v{VRE0}, v{T+4}, v{T+5}""")
    if btype == "panel":
        def rd(j, sub, r_): return (VRE if j % 2 == 0 else VRO), (j // 2) * 8192 + 128 * (16 * sub + rd_rows * r_)
    else:
        def rd(j, sub, r_): return VRE, 32 * j + 224 * (16 * sub + rd_rows * r_)

    BOFF = 4 - FB
    def make_ops(extra):
        ops = []
        for ta in range(S + DA + 8):
            for tb in range(MB):
                ins = [f"buffer_load_dwordx4 {rr(fk, AR+4*(MB*(ta%DA)+tb), 4)}, v{VA+tb}, s[4:7], s27 offen"]
                if tb == MB - 1: ins.append(f"s_add_u32 s27, s27, {SLAB}")
                ops.append([ta - (1 if mod else 0), ta + (0 if mod else 1) - DA, len(ops), ins, ("A", ta)])
        for st in range(NST + R + 2):
            for i in range(ND):
                ins = [f"s_add_u32 m0, s29, {dma_lds[i]}", f"buffer_load_dwordx4 v{VB+i}, s[8:11], s28 offen lds"]
                if i == ND - 1:
                    ins += ["s_add_u32 s28, s28, s39", f"s_add_u32 s29, s29, {STAGE}", "s_cmp_eq_u32 s29, s38\ns_cselect_b32 s29, s36, s29"]
                ops.append([4 * st - FB - 0.5, 4 * (st + 2 - R) - FB + i * 4 // ND, len(ops), ins, ("B", st)])
        for need, ins in extra: ops.append([need, -999, len(ops), ins, ("X",)])
        ops.sort(key=lambda o: (o[0], o[2]))
        return ops

    cnt = Cnt()
    def run(emit):
        def E(x):
            if emit: emit(x)
        extra = setup(k, emit)
        ops = make_ops(extra)
        def take(t, cap):
            got = []
            for o in ops:
                if len(got) >= cap: break
                if o[1] <= t: got.append(o)
            for o in got: ops.remove(o)
            fl = []
            for o in got:
                for x in o[3]: fl.append((x, o[4] if x.startswith("buffer_") else None))
            return fl
        def W(site, c, nm, tags):
            cnt.wait(c, (site, nm), tags)
            E(cnt.text(c, (site, nm)))
        def flush(fill, n):
            for _ in range(n):
                if not fill: return
                x, tag = fill.pop(0)
                if x == "W": W(*tag); continue
                E(x)
                if tag and tag[0] == "L": cnt.issue("lg", tag[1])
                elif tag: cnt.issue("vm", tag)
        def barrier(site, st):
            W(site, "vm", "bar", {("B", st)})
            E("s_barrier")
            E(f"s_add_u32 s31, s31, {STAGE}\ns_cmp_eq_u32 s31, {R*STAGE}\ns_cselect_b32 s31, 0, s31\nv_add_u32 v{VRE}, s31, v{VRE0}")
            if btype == "panel": E(f"v_add_u32 v{VRO}, s31, v{VRO0}")
        def reads(tt, j):
            for r_ in range(2):
                base, off = rd(j, tt % 4, r_)
                E(f"ds_read_b64_tr_b16 {rr(fk, BF+4*(NB*(tt%FB)+j)+2*r_, 2)}, v{base} offset:{off}")
                cnt.issue("lg", ("F", tt, j))
        def cread(tt):
            base = (tt if tt < 4 * PEEL + 2 else 4 * PEEL + (tt - 4 * PEEL - 2) % (4 * U) + 2) * 128
            out = []; CM = CM0 + 16 * (tt % 2)
            for n in range(4): out.append((f"ds_read_b128 {v(CM+4*n,4)}, v{VC} offset:{base+16*n}", ("L", ("C", tt))))
            return out
        def xform(tt):
            r = AR + 4 * (tt % DA); out = []; CM = CM0 + 16 * (tt % 2)
            for i in range(8):
                out.append((f"v_fma_mix_f32 v{CM+8+i}, v{r+i//2}, v{CM+i}, v{CM+8+i} " + ("op_sel:[1,0,0] " if i % 2 else "") + "op_sel_hi:[1,0,0]", None))
            for i in range(4): out.append((f"v_cvt_pk_bf16_f32 v{HF+4*(tt%2)+i}, v{CM+8+2*i}, v{CM+9+2*i}", None))
            return out
        if mod:
            if emit:
                srd(a, 20, 44, WS_MODP, KS * 6144 * 4)
                a(f"v_lshlrev_b32 v{VC}, 4, v0")
            for p in range(KS):
                for n, idx in enumerate((1, 0)):
                    E(f"s_mov_b32 s32, {p*6144*4 + idx*4096}\nbuffer_load_dwordx4 {v(ACC+8*p+4*n,4)}, v{VC}, s[20:23], s32 offen")
                    cnt.issue("vm", ("M",))
        flush(take(-FB - 1, INIT), 999)
        if mod:
            if emit:
                a(f"""
                v_lshrrev_b32 v{ACC+24}, 1, v0
                v_lshlrev_b32 v{ACC+24}, 6, v{ACC+24}
                v_and_b32 v{ACC+25}, 1, v0
                v_lshl_add_u32 v{ACC+24}, v{ACC+25}, 4, v{ACC+24}
                v_add_u32 v{ACC+24}, {STAGE*R}, v{ACC+24}
                v_lshrrev_b32 v{VC}, 5, v1
                v_lshlrev_b32 v{VC}, 6, v{VC}
                v_add_u32 v{VC}, {STAGE*R}, v{VC}""")
        if emit:
            late_setup()
        if mod:
            W("pro", "vm", "M", {("M",)})
            if emit:
                for j in range(8): a(f"v_add_f32 v{ACC+j}, v{ACC+j}, v{ACC+8+j}")
                for j in range(4): a(f"v_cvt_pk_bf16_f32 v{ACC+16+j}, v{ACC+2*j}, v{ACC+2*j+1}")
                unpack(a, ACC, ACC + 16, 4)
                for j in range(4): a(f"v_add_f32 v{ACC+j}, 1.0, v{ACC+j}")
                for j in range(2): a(f"v_cvt_pk_bf16_f32 v{ACC+16+j}, v{ACC+2*j}, v{ACC+2*j+1}")
                unpack(a, ACC, ACC + 16, 2)
                a(f"ds_write_b128 v{ACC+24}, {v(ACC,4)}\nds_write_b128 v{ACC+24}, {v(ACC+4,4)} offset:32\ns_waitcnt lgkmcnt(0)")
        if emit:
            if PEEL == 0:
                for i in range(16 * NB * MB): a(f"v_mov_b32 v{ACC+i}, 0")
        barrier("pro", 0)
        if mod: flush(cread(0) + cread(1), 99)
        for tt in range(FB):
            for j in range(NB): reads(tt, j)
        if mod:
            assert PEEL > 0
            W("pro", "vm", "A", {("A", 0)}); W("pro", "lg", "C", {("C", 0)})
            flush(xform(0), 99)
        if PEEL == 0: flush(take(-1, 999), 999)
        if emit: stamp(k, 1)
        for t in range(S):
            peeled = t < 4 * PEEL
            site = ("p", t) if peeled else (t - 4 * PEEL) % (4 * U)
            if t == 4 * PEEL:
                assert not [o for o in ops if o[1] < t], f"{name}: backlog not drained"
                E(f"s_mov_b32 s30, {(NST-PEEL)//U}\n.p2align 6\n{name}_loop:")
            if t == 4 * PEEL + 4 * U:
                E(f"s_sub_u32 s30, s30, 1\ns_cmp_lg_u32 s30, 0\ns_cbranch_scc1 {name}_loop")
                if emit: return
            sub = t % 4
            fill = take(t, CAP if peeled else 999)
            if not peeled and site == 1: fill.append((f"buffer_load_dword {'v0' if not big else 'a%d' % (na - 1)}, v2, s[92:95], 0 offen", ("C",)))
            vfill = []
            if mod:
                xf = [("W", (site, "vm", "A", {("A", t + 1)})), ("W", (site, "lg", "C", {("C", t + 1)}))]
                cr = cread(t + 2)
                if not peeled and site == 4 * U - 1: vfillx = [(f"v_add_u32 v{VC}, {4*U*128}, v{VC}", None)]
                else: vfillx = []
                vfill = xform(t + 1) + vfillx
                fill = cr + fill
            n0 = len(fill); nv0 = len(vfill); nslots = NB * MB; slot = 0
            if not mod: W(site, "vm", "A", {("A", t)})
            for j in range(NB):
                if not mod or (t == 0 and j == 0): W(site, "lg", f"F{j}", {("F", t, min(NB - 1, j + (WG - 1 - j % WG)))})
                for tb in range(MB):
                    af = rr(fk, AR + 4 * (MB * (t % DA) + tb), 4) if not mod else v(HF + 4 * (t % 2), 4); bf = rr(fk, BF + 4 * (NB * (t % FB) + j), 4); c = v(acc(j, tb), 16)
                    x, y = (bf, af) if orient[j] == "tok" else (af, bf)
                    if EXP.get("fake16"):
                        c0 = v(acc(j, tb) + 8 * (t % 2), 4); c1 = v(acc(j, tb) + 8 * (t % 2) + 4, 4)
                        E(f"v_mfma_f32_16x16x32_bf16 {c0}, {x}, {y}, {c0 if (t > 1 or PEEL == 0) else 0}")
                        if fill and not (sub == BOFF and j == 0): flush(fill, 1)
                        E(f"v_mfma_f32_16x16x32_bf16 {c1}, {y}, {x}, {c1 if (t > 1 or PEEL == 0) else 0}")
                    else:
                        E(f"v_mfma_f32_32x32x16_bf16 {c}, {x}, {y}, {c if (t or PEEL == 0) else 0}")
                    slot += 1
                    if mod:
                        if j == 0: flush(xf, 9)
                        jn, tn_ = (j + 1, t) if j + 1 < NB else (0, t + 1)
                        W(site, "lg", f"N{j}", {("F", tn_, min(NB - 1, jn + (WG - 1 - jn % WG)))})
                    if tb == MB - 1:
                        if j == 0 and sub == BOFF: barrier(site, (t + FB) // 4)
                        reads(t + FB, j)
                    if not (sub == BOFF and j == 0 and tb < MB - 1):
                        flush(fill, max(0, (n0 * slot + nslots - 1) // nslots - (n0 - len(fill))))
                    vs = nslots - EXP.get("qvs", 1)
                    flush(vfill, max(0, (nv0 * min(slot, vs) + vs - 1) // vs - (nv0 - len(vfill))))
            flush(fill, 999)
        if (NST - PEEL) == U: E(f"s_sub_u32 s30, s30, 1\ns_cmp_lg_u32 s30, 0\ns_cbranch_scc1 {name}_loop")
    run(None)
    cnt.reset()
    run(a)
    a(f"{name}_epi:")
    stamp(k, 2)
    epilogue(k)
    stamp(k, 3)
    prof_out(k, 4, KID[name], 26)
    finish(k)
    return k

def k_qkv():
    def setup(k, a):
        if not EXP.get("fuse1", 1) or QPRE >= 1024: return []
        T = k.TMP; per = (1024 - QPRE) * 48 // 1024
        if a: srd(a, 16, 40, QPRE * 6144, (1024 - QPRE) * 6144)
        first = f"""s_lshl_b32 s32, s2, 2
        s_add_u32 s32, s32, s26
        s_lshl_b32 s55, s32, 7
        v_lshlrev_b32 v{T+6}, 17, v1"""
        return [(EXP.get("qpfat", 12), [first, f"buffer_load_dword v{T+7}, v{T+6}, s[16:19], s55 offen"])]
    def epi(k):
        a = k.a; T = k.TMP
        qs = LOG2E / math.sqrt(32)
        srd(a, 12, 44, WS_Q, 4 << 20); srd(a, 16, 44, WS_KV, 8 << 20)
        a(f"""
        v_lshlrev_b32 v{T}, 4, v1
        s_lshl_b32 s32, s25, 7
        s_add_u32 s32, s32, s37
        s_lshl_b32 s33, s32, 11          ; Q offset
        s_lshl_b32 s34, s32, 12
        s_add_u32 s35, s33, {64*2048}
        s_add_u32 s39, s34, {64*4096}""")
        for j in range(6):
            c = k.acc(j, 0)
            if j < 2:
                for i in range(16): a(f"v_mul_f32 v{c+i}, {fx(qs)}, v{c+i}")
            for g in range(2):
                for i in range(4 * g, 4 * g + 4): a(f"v_cvt_pk_bf16_f32 v{c+i}, v{c+2*i}, v{c+2*i+1}")
            for g in range(2):
                if j < 2: a(f"buffer_store_dwordx4 {v(c+4*g,4)}, v{T}, s[12:15], s{33 if j==0 else 35} offen offset:{1024*g} sc1")
                else: a(f"buffer_store_dwordx4 {v(c+4*g,4)}, v{T}, s[16:19], s{34 if j%2==0 else 39} offen offset:{(2048 if j>=4 else 0)+1024*g} sc1")
    return k_gemm("qkv_kernel", 1024, 1, 6, EXP.get("qDA", 8), EXP.get("qR", 4), 2, EXP.get("qPEEL", 4), EXP.get("qCAP", 4), EXP.get("qINIT", 9),
                  "panel", WS_H1, "contig", False, ["tok"]*4 + ["feat"]*2, 16, 16, 2, 4,
                  [(40, P_WQKV), (44, P_WS)], setup, epi, 6144, alt=(WS_WQ3, 1536, 256, 768),
                  mod=EXP.get('fuse1', 1) == 1, xlds=(8192 + 256 if EXP.get('fuse1', 1) == 1 else 0))

def colvec_ops(k, need, dst, idxs, va):
    ops = []
    first = [f"s_lshl_b32 s32, s25, 8\nv_lshl_add_u32 v{va}, v1, 2, s32"]
    for n, idx in enumerate(idxs):
        for p in range(KS):
            ops.append((need, first + [f"s_mov_b32 s32, {p*6144*4 + idx*4096}", f"buffer_load_dword v{dst+2*n+p}, v{va}, s[20:23], s32 offen"]))
            first = []
    return ops

def k_out():
    def setup(k, a):
        T = k.TMP
        if a:
            srd(a, 12, 42, 0, 4 << 20); srd(a, 20, 44, WS_MODP, KS * 6144 * 4)
        ops = colvec_ops(k, 30, T + 8, [2, 4], T + 6)
        first = [f"""v_lshrrev_b32 v{T+12}, 3, v1
        v_and_b32 v{T+7}, 7, v1
        v_xor_b32 v{T+7}, v{T+7}, v{T+12}
        v_lshlrev_b32 v{T+7}, 4, v{T+7}
        v_lshl_add_u32 v{T+7}, v{T+12}, 11, v{T+7}
        s_lshl_b32 s55, s37, 16
        s_lshl_b32 s32, s25, 7
        s_add_u32 s55, s55, s32
        s_lshl_b32 s56, s26, 12
        s_add_u32 s56, s56, {k.XL}"""]
        for i in range(4):
            ops.append((31, first + [f"s_add_u32 m0, s56, {1024*i}", "s_nop 0", f"buffer_load_dwordx4 v{T+7}, s[12:15], s55 offen lds", "s_add_u32 s55, s55, 0x4000"]))
            first = []
        return ops
    def epi(k):
        a = k.a; T = k.TMP; G = T + 16; C = G + 32; X = C + 32; P = X + 32
        srd(a, 12, 44, WS_X2, 64 * SLAB); srd(a, 16, 44, WS_Y2, 64 * SLAB); srd(a, 20, 44, WS_STAT, 16 * 2048 * 8)
        a(f"""
        v_add_f32 v{T+8}, v{T+8}, v{T+9}
        v_add_f32 v{T+10}, v{T+10}, v{T+11}""")
        rbf(a, T + 8); rbf(a, T + 10)
        a(f"v_add_f32 v{T+10}, 1.0, v{T+10}")
        rbf(a, T + 10)
        a(f"""
        s_lshl_b32 s32, s26, 9
        s_add_u32 s32, s32, {k.XL + 16384}
        v_lshl_add_u32 v{T}, v1, 2, s32
        ds_write_b32 v{T}, v{T+8}
        ds_write_b32 v{T}, v{T+10} offset:256
        v_lshrrev_b32 v{T+1}, 5, v1
        v_lshl_add_u32 v{T}, v{T+1}, 5, s32
        v_and_b32 v{T+2}, 31, v1
        v_and_b32 v{T+3}, 7, v1
        v_xor_b32 v{T+3}, v{T+3}, v{T+1}
        v_lshlrev_b32 v{T+3}, 4, v{T+3}
        v_lshl_add_u32 v{T+3}, v{T+2}, 7, v{T+3}
        v_add_u32 v{T+3}, s56, v{T+3}
        s_waitcnt lgkmcnt(0)""")
        for q in range(4):
            a(f"v_xor_b32 v{T+4}, {32*q}, v{T+3}\nds_read_b128 {v(P+4*q,4)}, v{T+4}")
        for q in range(4):
            for hh in range(2): a(f"ds_read_b128 {v(G+8*q+4*hh,4)}, v{T} offset:{64*q+16*hh}")
        a("s_waitcnt lgkmcnt(8)")
        unpack(a, X, P, 16)
        for q in range(4):
            for hh in range(2): a(f"ds_read_b128 {v(C+8*q+4*hh,4)}, v{T} offset:{256+64*q+16*hh}")
        a(f"s_mul_i32 s33, s25, {4*SLAB}\ns_waitcnt lgkmcnt(8)")
        for q in range(4):
            c = k.acc(q // 2, 0) + 8 * (q % 2)
            for i in range(8): a(f"v_fmac_f32 v{X+8*q+i}, v{G+8*q+i}, v{c+i}")
            for i in range(4): a(f"v_cvt_pk_bf16_f32 v{P+4*q+i}, v{X+8*q+2*i}, v{X+8*q+2*i+1}")
            a(f"s_add_u32 s34, s33, {q*SLAB}\nbuffer_store_dwordx4 {v(P+4*q,4)}, v{k.VA}, s[12:15], s34 offen sc1")
        unpack(a, X, P, 16)
        a("s_waitcnt lgkmcnt(0)")
        for q in range(4):
            for i in range(8): a(f"v_mul_f32 v{C+8*q+i}, v{C+8*q+i}, v{X+8*q+i}")
            for i in range(4): a(f"v_cvt_pk_bf16_f32 v{G+4*q+i}, v{C+8*q+2*i}, v{C+8*q+2*i+1}")
            a(f"s_add_u32 s34, s33, {q*SLAB}\nbuffer_store_dwordx4 {v(G+4*q,4)}, v{k.VA}, s[16:19], s34 offen sc1")
        a(f"v_add_f32 v{T+8}, v{X}, v{X+1}\nv_add_f32 v{T+9}, v{X+2}, v{X+3}")
        for i in range(4, 32): a(f"v_add_f32 v{T+8+i%2}, v{T+8+i%2}, v{X+i}")
        a(f"""
        v_add_f32 v{T+8}, v{T+8}, v{T+9}
        v_mov_b32 v{T+9}, v{T+8}
        v_permlane32_swap_b32 v{T+8}, v{T+9}
        v_add_f32 v{T+8}, v{T+8}, v{T+9}
        v_mul_f32 v{T+10}, {fx(1/64)}, v{T+8}""")
        for i in range(32): a(f"v_sub_f32 v{X+i}, v{X+i}, v{T+10}")
        a(f"v_mul_f32 v{T+9}, v{X}, v{X}\nv_mul_f32 v{T+10}, v{X+1}, v{X+1}")
        for i in range(2, 32): a(f"v_fmac_f32 v{T+9+i%2}, v{X+i}, v{X+i}")
        a(f"""
        v_add_f32 v{T+9}, v{T+9}, v{T+10}
        v_mov_b32 v{T+10}, v{T+9}
        v_permlane32_swap_b32 v{T+9}, v{T+10}
        v_add_f32 v{T+9}, v{T+9}, v{T+10}
        v_lshlrev_b32 v{T+2}, 3, v{T+2}
        s_lshl_b32 s32, s25, 14
        s_lshl_b32 s33, s37, 8
        s_add_u32 s32, s32, s33
        s_mov_b32 exec_hi, 0
        buffer_store_dwordx2 {v(T+8,2)}, v{T+2}, s[20:23], s32 offen sc1
        s_mov_b32 exec_hi, -1""")
    return k_gemm("out_kernel", 1024, 1, 2, 16, 6, 4, 0, 99, 999, "panel", WS_O, "split", True, ["tok"]*2, 16, 16, 4, 2,
                  [(40, P_WO), (42, P_X), (44, P_WS)], setup, epi, 2048, alt=(WS_WO3, 512, 0, 256), ntemp=16 + 96 + 16, xlds=16384 + 2048,
                  FB=EXP.get("pFB", 2))

def k_down():
    def setup(k, a):
        T = k.TMP
        if a:
            srd(a, 12, 44, WS_X2, 64 * SLAB); srd(a, 20, 44, WS_MODP, KS * 6144 * 4)
        ops = colvec_ops(k, 30, T + 8, [5], T + 6)
        first = [f"s_mul_i32 s55, s25, {4*SLAB}"]
        for q in range(4):
            ops.append((31, first + [f"buffer_load_dwordx4 {v(T+16+4*q,4)}, v{k.VA}, s[12:15], s55 offen", f"s_add_u32 s55, s55, {SLAB}"]))
            first = []
        return ops
    def epi(k):
        a = k.a; T = k.TMP; P = T + 16; G = P + 16; X = G + 32
        srd(a, 16, 46, 0, 4 << 20)
        a(f"v_add_f32 v{T+8}, v{T+8}, v{T+9}")
        rbf(a, T + 8)
        a(f"""
        s_lshl_b32 s32, s26, 8
        s_add_u32 s32, s32, {k.XL + 16384}
        v_lshl_add_u32 v{T}, v1, 2, s32
        ds_write_b32 v{T}, v{T+8}
        v_lshrrev_b32 v{T+1}, 5, v1
        v_lshl_add_u32 v{T}, v{T+1}, 5, s32
        s_lshl_b32 s56, s26, 12
        s_add_u32 s56, s56, {k.XL}
        v_and_b32 v{T+2}, 31, v1
        v_and_b32 v{T+3}, 7, v1
        v_xor_b32 v{T+3}, v{T+3}, v{T+1}
        v_lshlrev_b32 v{T+3}, 4, v{T+3}
        v_lshl_add_u32 v{T+3}, v{T+2}, 7, v{T+3}
        v_add_u32 v{T+3}, s56, v{T+3}
        s_waitcnt lgkmcnt(0)""")
        for q in range(4):
            for hh in range(2): a(f"ds_read_b128 {v(G+8*q+4*hh,4)}, v{T} offset:{64*q+16*hh}")
        unpack(a, X, P, 16)
        a(f"""
        v_lshl_add_u32 v{T+5}, v1, 4, s56
        v_lshrrev_b32 v{T+6}, 3, v1
        v_and_b32 v{T+7}, 7, v1
        v_xor_b32 v{T+7}, v{T+7}, v{T+6}
        v_lshlrev_b32 v{T+7}, 4, v{T+7}
        v_lshl_add_u32 v{T+7}, v{T+6}, 11, v{T+7}
        s_lshl_b32 s33, s37, 16
        s_lshl_b32 s32, s25, 7
        s_add_u32 s33, s33, s32
        s_waitcnt lgkmcnt(0)""")
        for q in range(4):
            c = k.acc(q // 2, 0) + 8 * (q % 2)
            for i in range(8): a(f"v_fmac_f32 v{X+8*q+i}, v{G+8*q+i}, v{c+i}")
            for i in range(4): a(f"v_cvt_pk_bf16_f32 v{P+4*q+i}, v{X+8*q+2*i}, v{X+8*q+2*i+1}")
            a(f"v_xor_b32 v{T+4}, {32*q}, v{T+3}\nds_write_b128 v{T+4}, {v(P+4*q,4)}")
        a("s_waitcnt lgkmcnt(0)")
        for i in range(4): a(f"ds_read_b128 {v(G+4*i,4)}, v{T+5} offset:{1024*i}")
        for i in range(4):
            a(f"s_waitcnt lgkmcnt({3-i})\nbuffer_store_dwordx4 {v(G+4*i,4)}, v{T+7}, s[16:19], s33 offen sc1\ns_add_u32 s33, s33, 0x4000")
    return k_gemm("down_kernel", 3584, 1, 2, 16, 6, 4, 0, 99, 999, "panel", WS_ACT, "split", True, ["tok"]*2, 16, 16, 4, 2,
                  [(40, P_WD), (44, P_WS), (46, P_OUT)], setup, epi, 2048, alt=(WS_WD3, 512, 0, 256), ntemp=16 + 16 + 64, xlds=16384 + 1024,
                  FB=EXP.get("pFB", 2))

def k_gu():
    def setup(k, a):
        T = k.TMP; XA = k.XA
        if a:
            srd(a, 16, 44, WS_STAT, 16 * 2048 * 8); srd(a, 20, 44, WS_UV, KS * 2 * 7168 * 4)
        ops = []
        first = [f"""v_and_b32 v{T+6}, 31, v1
        v_lshlrev_b32 v{T+6}, 3, v{T+6}
        v_lshrrev_b32 v{T+7}, 5, v1
        v_lshl_add_u32 v{T+6}, v{T+7}, 17, v{T+6}
        s_lshl_b32 s55, s37, 8"""]
        for i in range(8):
            for tb in range(2):
                ops.append((40, first + [f"buffer_load_dwordx2 {a_(XA+16*tb+2*i,2)}, v{T+6}, s[16:19], s55 offen offset:{256*tb}"] + (["s_add_u32 s55, s55, 0x4000"] if tb else [])))
                first = []
        first = [f"""v_cmp_lt_u32 vcc, 111, v0
        v_mov_b32 v{T+7}, {(3584-112)*4}
        v_cndmask_b32 v{T+7}, 0, v{T+7}, vcc
        v_lshl_add_u32 v{T+7}, v0, 2, v{T+7}
        s_mul_i32 s56, s25, 448"""]
        for i in range(4):
            ops.append((41, first + [f"buffer_load_dword a{XA+32+i}, v{T+7}, s[20:23], s56 offen", f"s_add_u32 s56, s56, {7168*4}"]))
            first = []
        return ops
    def epi(k):
        a = k.a; T = k.TMP; XA = k.XA
        c0 = -2 * math.sqrt(2 / math.pi) * LOG2E; c1 = c0 * 0.044715
        srd(a, 12, 44, WS_ACT, 224 * SLAB)
        for i in range(4): a(f"v_accvgpr_read_b32 v{10+i}, a{XA+32+i}")
        a(f"""
        v_add_f32 v10, v10, v12
        v_add_f32 v11, v11, v13
        v_lshlrev_b32 v2, 2, v0
        ds_write_b32 v2, v10 offset:{k.XL % 65536}
        ds_write_b32 v2, v11 offset:{k.XL % 65536 + 1024}""".replace("v_lshlrev_b32 v2, 2, v0", f"v_lshlrev_b32 v2, 2, v0\nv_add_u32 v2, {k.XL // 65536 * 65536}, v2"))
        for tb, D in ((0, 4), (1, 30)):
            for i in range(16): a(f"v_accvgpr_read_b32 v{10+i}, a{XA+16*tb+i}")
            a("v_add_f32 v26, v10, v12\nv_add_f32 v27, v11, v13")
            for i in range(2, 8): a(f"v_add_f32 v26, v26, v{10+2*i}\nv_add_f32 v27, v27, v{11+2*i}")
            a(f"""
            v_mov_b32 v28, v26
            v_permlane32_swap_b32 v26, v28
            v_add_f32 v26, v26, v28
            v_mul_f32 v28, {fx(1/16)}, v26""")
            for i in range(8): a(f"v_sub_f32 v{10+2*i}, v{10+2*i}, v28")
            a("v_mul_f32 v29, v10, v10")
            for i in range(1, 8): a(f"v_fmac_f32 v29, v{10+2*i}, v{10+2*i}")
            a(f"""
            v_fmac_f32 v27, {fx(1/64)}, v29
            v_mov_b32 v28, v27
            v_permlane32_swap_b32 v27, v28
            v_add_f32 v27, v27, v28
            v_mov_b32 v28, {fx(1e-5)}
            v_fmac_f32 v28, {fx(1/1024)}, v27
            v_rsq_f32 v{D}, v28
            v_mul_f32 v26, {fx(-1/1024)}, v26
            v_mul_f32 v{D+1}, v26, v{D}""")
        a(f"""
        v_lshrrev_b32 v9, 5, v1
        v_lshlrev_b32 v9, 4, v9
        v_add_u32 v9, {k.XL}, v9
        s_mul_i32 s32, s25, {7*SLAB}
        s_mov_b32 s34, {fx(c1)}
        s_mov_b32 s35, {fx(c1)}
        v_mov_b32 v26, {fx(c0)}
        v_mov_b32 v27, {fx(c0)}
        v_mov_b32 v28, 1.0
        v_mov_b32 v29, 1.0
        s_waitcnt lgkmcnt(0)
        s_barrier""")
        def rdq(j, q, B):
            o = 64 * j + 32 * q
            for n, oo in enumerate((o, o + 1024, o + 448, o + 448 + 1024)): a(f"ds_read_b128 {v(B+4*n,4)}, v9 offset:{oo}")
        pk = lambda r: v(r, 2)
        def fold(j, q, B):
            for tb, D in ((0, 4), (1, 30)):
                c = k.acc(j, tb) + 4 * q
                for i in (0, 2):
                    a(f"v_pk_fma_f32 {pk(c+i)}, {pk(c+i)}, {pk(D)}, {pk(B+4+i)} op_sel_hi:[1,0,1]")
                    a(f"v_pk_fma_f32 {pk(c+8+i)}, {pk(c+8+i)}, {pk(D)}, {pk(B+12+i)} op_sel_hi:[1,0,1]")
                for i in (0, 2):
                    a(f"v_pk_fma_f32 {pk(c+i)}, {pk(B+i)}, {pk(D)}, {pk(c+i)} op_sel:[0,1,0]")
                    a(f"v_pk_fma_f32 {pk(c+8+i)}, {pk(B+8+i)}, {pk(D)}, {pk(c+8+i)} op_sel:[0,1,0]")
        for j in range(7):
            if j == 0:
                rdq(0, 0, 10); a("s_waitcnt lgkmcnt(0)"); fold(0, 0, 10)
                rdq(0, 1, 10); a("s_waitcnt lgkmcnt(0)"); fold(0, 1, 10)
            else:
                a("s_waitcnt lgkmcnt(0)"); fold(j, 0, 10); fold(j, 1, k.acc(j - 1, 0))
            if j < 6: rdq(j + 1, 0, 10)
            for tb in range(2):
                c = k.acc(j, tb)
                for i in range(0, 8, 2): a(f"v_pk_mul_f32 {pk(c+8+i)}, {pk(c+8+i)}, {pk(c+i)}")
                for i in (0, 4):
                    a(f"v_pk_mul_f32 v[0:1], {pk(c+i)}, {pk(c+i)}\nv_pk_mul_f32 v[2:3], {pk(c+i+2)}, {pk(c+i+2)}")
                    a(f"v_pk_fma_f32 v[0:1], v[0:1], s[34:35], v[26:27]\nv_pk_fma_f32 v[2:3], v[2:3], s[34:35], v[26:27]")
                    a(f"v_pk_mul_f32 {pk(c+i)}, v[0:1], {pk(c+i)}\nv_pk_mul_f32 {pk(c+i+2)}, v[2:3], {pk(c+i+2)}")
                for i in range(8): a(f"v_exp_f32 v{c+i}, v{c+i}")
                for i in range(0, 8, 2): a(f"v_pk_add_f32 {pk(c+i)}, {pk(c+i)}, v[28:29]")
                for i in range(8): a(f"v_rcp_f32 v{c+i}, v{c+i}")
                for i in range(0, 8, 2): a(f"v_pk_mul_f32 {pk(c+i)}, {pk(c+i)}, {pk(c+8+i)}")
                for i in range(4): a(f"v_cvt_pk_bf16_f32 v{c+8+i}, v{c+2*i}, v{c+2*i+1}")
                a(f"buffer_store_dwordx4 {v(c+8,4)}, v{k.VA+tb}, s[12:15], s32 offen sc1")
                if tb == 0 and j < 6: rdq(j + 1, 1, c)
            a(f"s_add_u32 s32, s32, {SLAB}")
    return k_gemm("gu_kernel", 1024, 2, 7, EXP.get("gDA", 4), EXP.get("gR", 4), 2, EXP.get("gPEEL", 4), EXP.get("gCAP", 6), EXP.get("gINIT", 11),
                  "gu", WS_Y2, "contig", False, ["tok"]*7, 8, 32, 2, 4,
                  [(40, P_WG), (42, P_WU), (44, P_WS)], setup, epi, 7168, big=True, xlds=2048, nxa=37)

NSIDE = 288
def nside(): return 0 if EXP.get('noside') else (224 if EXP.get('gpre', 0) else 288)
def attn_side(k, nw):
    a = k.a
    a("attn_side:")
    if nw == 4 and EXP.get("sprio", 1): a("s_setprio 3")
    load_ptrs(a, [(40, P_C), (42, P_WMOD), (44, P_WS), (46, P_WG), (48, P_WU), (62, P_WO), (64, P_WD)])
    wave_lane(a)
    a(f"""
    s_sub_u32 s27, s2, 256
    s_lshl_b32 s32, s27, {(nw*64).bit_length()-1}
    v_add_u32 v3, s32, v0
    s_waitcnt lgkmcnt(0)""")
    def mid():
        if EXP.get("exclr"):
            srd(a, 20, 44, EXP["exclr"], 4 << 20)
            a("v_lshlrev_b32 v108, 4, v3\nv_mov_b32 v112, -1\nv_mov_b32 v113, -1\nv_mov_b32 v114, -1\nv_mov_b32 v115, -1")
            n = nside() * nw * 64 * 16
            for c in range(0, 4 << 20, n): a(f"s_mov_b32 s24, {c}\nbuffer_store_dwordx4 v[112:115], v108, s[20:23], s24 offen sc1")
        strip_copy_issue(a, 3, 62, 1024, 2048, 1, 0, 108)
        st = 0 if EXP.get('gpre', 0) else 16384
        if EXP.get("wd4"):
            strip_copy_issue(a, 3, 64, 3584, 2048, 1, st, 116, col=256, dsh=9)
            strip_copy_issue(a, 3, 64, 3584, 2048, 1, st, 124, col=384, dsh=9, doff=256)
        else: strip_copy_issue(a, 3, 64, 3584, 2048, 1, st, 116)
        a("s_waitcnt vmcnt(0)")
        strip_copy_store(a, 44, WS_WO3, 1024 * 512, 108)
        if EXP.get("wd4"):
            strip_copy_store(a, 44, EXP["wd4"], 3584 * 1024, 116); strip_copy_store(a, 44, EXP["wd4"], 3584 * 1024, 124)
        else: strip_copy_store(a, 44, WS_WD3, 3584 * 512, 116)
    a(f"""
    s_and_b32 s32, s27, 1
    s_lshr_b32 s33, s27, 1
    s_lshl_b32 s52, s32, 9
    s_cmp_ge_u32 s33, 112
    s_cbranch_scc1 attn_side_g
    s_mov_b32 s51, 7168
    s_mul_i32 s53, s32, {2*7168*4}
    s_lshl_b32 s34, s33, 8
    s_add_u32 s53, s53, s34
    s_mov_b32 s54, {7168*4}
    s_cmp_ge_u32 s33, 56
    s_cselect_b32 s46, s48, s46
    s_cselect_b32 s47, s49, s47
    s_cselect_b32 s34, 56, 0
    s_sub_u32 s33, s33, s34
    s_mul_i32 s50, s52, s51
    s_lshl_b32 s34, s33, 7
    s_add_u32 s50, s50, s34""")
    srd(a, 8, 46, 0, 1024 * 7168); srd(a, 12, 44, WS_MODP, KS * 6144 * 4); srd(a, 16, 44, WS_UV, KS * 2 * 7168 * 4)
    skinny(k, "u", "pair", "", EXP.get("pace", 3 if nw == 4 else 1), nw=nw, mid=mid)
    if EXP.get("gpre", 0):
        a("attn_side_g:")
        return
    a(f"""
attn_side_g:
    s_sub_u32 s33, s33, {112-32}
    s_cmp_ge_u32 s33, 48
    s_cselect_b32 s34, 32, 0
    s_add_u32 s33, s33, s34
    s_mov_b32 s51, 12288
    s_mul_i32 s50, s52, s51
    s_lshl_b32 s34, s33, 7
    s_add_u32 s50, s50, s34
    s_mul_i32 s53, s32, {6144*4}
    s_lshl_b32 s34, s33, 8
    s_add_u32 s53, s53, s34
    s_mov_b32 s54, 0""")
    srd(a, 8, 42, 0, 1024 * 12288); srd(a, 12, 40, 0, 2048); srd(a, 16, 44, WS_MODP, KS * 6144 * 4)
    skinny(k, "g", "silu", " nt", EXP.get("pace", 3 if nw == 4 else 1), nw=nw, mid=mid)


def k_attn():
    R = 4; ST = 16384
    k = Kernel("attn_kernel", 256 + nside(), 512, SK_LDS, 128); a = k.a
    Q0, Q1, ONES, NEG, SA, SB, O, L, P0, P1, K0, K1, V0, V1, T = 4, 8, 12, 16, 32, 48, 64, 80, 84, 88, 92, 96, 100, 104, 108
    guard(k)
    a("s_cmp_ge_u32 s2, 256\ns_cbranch_scc1 attn_side")
    stamp(k, 0)
    load_ptrs(a, [(44, P_WS), (46, P_WO), (48, P_WD), (52, P_X)])
    if EXP.get("aprio", 1): a("s_setprio 2")
    a(f"""
    s_and_b32 s32, s2, 7
    s_lshr_b32 s33, s2, 3
    s_and_b32 s34, s32, 3
    s_lshl_b32 s34, s34, 3
    s_and_b32 s35, s33, 7
    s_add_u32 s24, s34, s35            ; head
    s_lshr_b32 s34, s32, 2
    s_lshl_b32 s34, s34, 2
    s_lshr_b32 s35, s33, 3
    s_add_u32 s25, s34, s35
    v_lshrrev_b32 v3, 6, v0
    v_and_b32 v1, 63, v0
    v_readfirstlane_b32 s26, v3
    v_lshlrev_b32 v2, 4, v1
    s_lshl_b32 s27, s25, 3
    s_add_u32 s27, s27, s26
    s_lshl_b32 s28, s24, 18
    s_lshl_b32 s29, s26, 11            ; wave * 2048
    s_lshl_b32 s32, s24, 6
    s_add_u32 s32, s32, s27
    s_lshl_b32 s32, s32, 11            ; Q offset
    s_waitcnt lgkmcnt(0)""")
    srd(a, 4, 44, WS_Q, 4 << 20)
    a(f"s_add_u32 s8, s44, s28\ns_addc_u32 s9, s45, 0\ns_add_u32 s8, s8, {WS_KV}\ns_addc_u32 s9, s9, 0\ns_mov_b32 s10, 0x40000\ns_mov_b32 s11, 0x20000")
    a("s_mov_b32 s30, s29")
    def dma(slot):
        return [f"s_add_u32 m0, s29, {slot*ST}", "buffer_load_dwordx4 v2, s[8:11], s30 offen lds",
                "buffer_load_dwordx4 v2, s[8:11], s30 offen offset:1024 lds", f"s_add_u32 s30, s30, {ST}"]
    a(f"buffer_load_dwordx4 {v(Q0,4)}, v2, s[4:7], s32 offen\nbuffer_load_dwordx4 {v(Q1,4)}, v2, s[4:7], s32 offen offset:1024")
    a(f"buffer_load_dwordx4 {v(K0,4)}, v2, s[8:11], 0 offen\nbuffer_load_dwordx4 {v(K1,4)}, v2, s[8:11], 0 offen offset:1024")
    for st in range(R - 1):
        for x in dma(st): a(x)
    srd(a, 12, 44, WS_O, 64 * SLAB)
    frag_off(a, 3, 27, 1, T)
    code_srd(k, 92, "attn_epi")
    a(f"v_lshlrev_b32 v{T+4}, 7, v0")
    if EXP.get("apf", 1):
        srd(a, 16, 46, 0, 1024 * 2048); srd(a, 20, 48, 0, 3584 * 2048)
        a(f"""
        s_lshl_b32 s32, s2, 3
        s_add_u32 s32, s32, s26
        s_mul_i32 s50, s32, {7*128}
        s_lshl_b32 s51, s32, 8
        v_lshlrev_b32 v{T+6}, 7, v1
        v_mov_b32 v{T+8}, 0x80000000
        v_cmp_gt_u32 vcc, 2, v1
        v_cndmask_b32 v{T+7}, v{T+8}, v{T+6}, vcc
        v_cmp_gt_u32 vcc, 4, v1
        v_cndmask_b32 v{T+9}, v{T+8}, v{T+6}, vcc
        s_lshl_b32 s54, s32, 9
        v_cmp_gt_u32 vcc, 7, v1
        v_cndmask_b32 v{T+6}, v{T+8}, v{T+6}, vcc""")
        srd(a, 56, 52, 0, 2048 * 2048)
    a(f"""
    v_lshrrev_b32 v{T}, 4, v1
    v_lshrrev_b32 v{T+1}, 2, v1
    v_xor_b32 v{T}, v{T}, v{T+1}
    v_and_b32 v{T}, 1, v{T}
    v_cmp_eq_u32 vcc, 0, v{T}
    v_mov_b32 v{T+1}, 0x3f803f80
    v_cndmask_b32 v{ONES}, 0, v{T+1}, vcc""")
    for i in range(1, 4): a(f"v_mov_b32 v{ONES+i}, v{ONES}")
    for i in range(16): a(f"v_mov_b32 v{O+i}, 0")
    for i in range(4): a(f"v_mov_b32 v{L+i}, 0\nv_mov_b32 v{P1+i}, 0\nv_mov_b32 v{V1+i}, 0")
    a(f"""
    s_waitcnt vmcnt({2*(R-1)})
    v_mfma_f32_32x32x16_bf16 {v(SA,16)}, {v(K0,4)}, {v(Q0,4)}, 0
    v_mfma_f32_32x32x16_bf16 {v(SA,16)}, {v(K1,4)}, {v(Q1,4)}, {v(SA,16)}""")
    def rowmax(S, m):
        for i in range(0, 16, 2): a(f"v_max3_f32 v{m}, v{S+i}, v{S+i+1}, v{m}")
    def negbcast(m):
        a(f"v_mov_b32 v{m+1}, v{m}\nv_permlane32_swap_b32 v{m}, v{m+1}\nv_max_f32 v{m}, v{m}, v{m+1}")
        for i in range(16): a(f"v_sub_f32 v{NEG+i}, 0, v{m}")
    a(f"v_mov_b32 v{T}, v{SA}")
    rowmax(SA, T); negbcast(T)
    for i in range(16): a(f"v_sub_f32 v{SA+i}, v{SA+i}, v{T}")
    a(f"""
    s_waitcnt vmcnt({2*(R-2)})
    s_barrier
    ds_read_b128 {v(K0,4)}, v2 offset:4096
    ds_read_b128 {v(K1,4)}, v2 offset:5120
    ds_read_b128 {v(V0,4)}, v2 offset:2048""")
    cnt = Cnt()
    def it(j, E, site):
        def W(c, nm, tags):
            cnt.wait(c, (site, nm), tags)
            if E: E(cnt.text(c, (site, nm)))
        def X(x):
            if E: E(x)
        def RD(reg, blk, piece):
            X(f"ds_read_b128 {v(reg,4)}, v2 offset:{(blk % (4*R))*4096 + piece*1024}")
            cnt.issue("lg", (piece, blk))
        S, Sn = (SA, SB) if j % 2 == 0 else (SB, SA)
        e = lambda i: X(f"v_exp_f32 v{S+i}, v{S+i}")
        c = lambda i: X(f"v_cvt_pk_bf16_f32 v{P0+i}, v{S+2*i}, v{S+2*i+1}")
        W("lg", "k", {(0, j + 1), (3, j - 1), (1, j + 1)})
        X(f"v_mfma_f32_32x32x16_bf16 {v(Sn,16)}, {v(K0,4)}, {v(Q0,4)}, {v(NEG,16)}")
        e(0); e(1); e(2)
        X(f"v_mfma_f32_32x32x16_bf16 {v(O,16)}, {v(V1,4)}, {v(P1,4)}, {v(O,16)}")
        RD(V1, j, 3)
        e(3); c(0); e(4); c(1)
        X(f"v_mfma_f32_32x32x16_bf16 {v(Sn,16)}, {v(K1,4)}, {v(Q1,4)}, {v(Sn,16)}")
        if j % 4 == 2:
            W("vm", "bar", {("B", j // 4 + 1)})
            X("s_barrier")
        RD(K0, j + 2, 0); RD(K1, j + 2, 1)
        e(5); e(6); e(7)
        X(f"v_mfma_f32_16x16x32_bf16 {v(L,4)}, {v(ONES,4)}, {v(P1,4)}, {v(L,4)}")
        if j % 4 == 2:
            d = dma((j // 4 - 1) % R)
            X(d[0])
        c(2); c(3); e(8); e(9)
        W("lg", "v0", {(2, j)})
        X(f"v_mfma_f32_32x32x16_bf16 {v(O,16)}, {v(V0,4)}, {v(P0,4)}, {v(O,16)}")
        RD(V0, j + 1, 2)
        if j % 4 == 2:
            X(d[1]); X(d[2]); X(d[3])
            cnt.issue("vm", ("B", j // 4 - 1 + R)); cnt.issue("vm", ("B", j // 4 - 1 + R))
        if j % 16 == 3:
            X(f"buffer_load_dword v{T+5}, v{T+4}, s[92:95], 0 offen"); cnt.issue("vm", ("C",))
        if EXP.get("apf", 1) and j % 16 == 7:
            X(f"buffer_load_dword v{T+5}, v{T+6}, s[20:23], s50 offen\ns_add_u32 s50, s50, {2048*7*128}"); cnt.issue("vm", ("C",))
        if EXP.get("apf", 1) and j % 16 == 15:
            X(f"buffer_load_dword v{T+5}, v{T+9}, s[56:59], s54 offen\ns_add_u32 s54, s54, {2048*512}"); cnt.issue("vm", ("C",))
        if EXP.get("apf", 1) and j % 16 == 11:
            X(f"buffer_load_dword v{T+5}, v{T+7}, s[16:19], s51 offen\ns_add_u32 s51, s51, {2048*256}"); cnt.issue("vm", ("C",))
        e(10); e(11); c(4); e(12)
        X(f"v_mfma_f32_16x16x32_bf16 {v(L,4)}, {v(ONES,4)}, {v(P0,4)}, {v(L,4)}")
        c(5); e(13); e(14); e(15); c(6); c(7)
    def preload():
        cnt.reset()
        for st in range(R - 1):
            cnt.issue("vm", ("B", st)); cnt.issue("vm", ("B", st))
        for tg in [(0, 1), (1, 1), (2, 0)]: cnt.issue("lg", tg)
    preload()
    for j in range(64): it(j, None, j % 16)
    preload()
    stamp(k, 1)
    a("s_mov_b32 s31, 4\n.p2align 6\nattn_loop:")
    for j in range(16): it(j, a, j)
    a("s_sub_u32 s31, s31, 1\ns_cmp_lg_u32 s31, 0\ns_cbranch_scc1 attn_loop\nattn_epi:")
    stamp(k, 2)
    a(f"""
    s_waitcnt lgkmcnt(0)
    v_mfma_f32_32x32x16_bf16 {v(O,16)}, {v(V1,4)}, {v(P1,4)}, {v(O,16)}
    v_mfma_f32_16x16x32_bf16 {v(L,4)}, {v(ONES,4)}, {v(P1,4)}, {v(L,4)}
    v_mov_b32 v{T}, 0""")
    for i in range(16): a(f"v_fmac_f32 v{T}, 0, v{O+i}")
    a(f"""
    v_add_f32 v{T}, v{T}, v{L}
    v_cmp_ngt_f32 vcc, {fx(2.0**40)}, v{T}
    s_cbranch_vccnz attn_slow
attn_fin:
    v_rcp_f32 v{T}, v{L}
    s_mul_i32 s32, s24, {2*SLAB}
    s_add_u32 s33, s32, {SLAB}""")
    for i in range(16): a(f"v_mul_f32 v{O+i}, v{O+i}, v{T}")
    for i in range(8): a(f"v_cvt_pk_bf16_f32 v{O+i}, v{O+2*i}, v{O+2*i+1}")
    a(f"buffer_store_dwordx4 {v(O,4)}, v3, s[12:15], s32 offen sc1\nbuffer_store_dwordx4 {v(O+4,4)}, v3, s[12:15], s33 offen sc1")
    stamp(k, 3)
    prof_out(k, 4, 4, 26)
    a("s_endpgm")
    a(f"""
attn_slow:
    v_mov_b32 v{T}, 0xff800000
    s_mov_b32 s30, 0
attn_slow1:
    buffer_load_dwordx4 {v(K0,4)}, v2, s[8:11], s30 offen
    buffer_load_dwordx4 {v(K1,4)}, v2, s[8:11], s30 offen offset:1024
    s_waitcnt vmcnt(0)
    v_mfma_f32_32x32x16_bf16 {v(SA,16)}, {v(K0,4)}, {v(Q0,4)}, 0
    v_mfma_f32_32x32x16_bf16 {v(SA,16)}, {v(K1,4)}, {v(Q1,4)}, {v(SA,16)}""")
    rowmax(SA, T)
    a("s_add_u32 s30, s30, 4096\ns_cmp_lt_u32 s30, 0x40000\ns_cbranch_scc1 attn_slow1")
    negbcast(T)
    for i in range(16): a(f"v_mov_b32 v{O+i}, 0")
    for i in range(4): a(f"v_mov_b32 v{L+i}, 0")
    a(f"""
    s_mov_b32 s30, 0
attn_slow2:
    buffer_load_dwordx4 {v(K0,4)}, v2, s[8:11], s30 offen
    buffer_load_dwordx4 {v(K1,4)}, v2, s[8:11], s30 offen offset:1024
    buffer_load_dwordx4 {v(V0,4)}, v2, s[8:11], s30 offen offset:2048
    buffer_load_dwordx4 {v(V1,4)}, v2, s[8:11], s30 offen offset:3072
    s_waitcnt vmcnt(0)
    v_mfma_f32_32x32x16_bf16 {v(SA,16)}, {v(K0,4)}, {v(Q0,4)}, {v(NEG,16)}
    v_mfma_f32_32x32x16_bf16 {v(SA,16)}, {v(K1,4)}, {v(Q1,4)}, {v(SA,16)}""")
    for i in range(16): a(f"v_exp_f32 v{SA+i}, v{SA+i}")
    for i in range(8): a(f"v_cvt_pk_bf16_f32 v{P0+i}, v{SA+2*i}, v{SA+2*i+1}")
    a(f"""
    v_mfma_f32_32x32x16_bf16 {v(O,16)}, {v(V0,4)}, {v(P0,4)}, {v(O,16)}
    v_mfma_f32_32x32x16_bf16 {v(O,16)}, {v(V1,4)}, {v(P1,4)}, {v(O,16)}
    v_mfma_f32_16x16x32_bf16 {v(L,4)}, {v(ONES,4)}, {v(P0,4)}, {v(L,4)}
    v_mfma_f32_16x16x32_bf16 {v(L,4)}, {v(ONES,4)}, {v(P1,4)}, {v(L,4)}
    s_add_u32 s30, s30, 4096
    s_cmp_lt_u32 s30, 0x40000
    s_cbranch_scc1 attn_slow2
    s_branch attn_fin""")
    attn_side(k, 8)
    finish(k)
    return k


def k_attn4():
    R = 4; ST = 16384; SM = EXP.get("smf", 1)
    k = Kernel("attn_kernel", 256 + nside(), 256, SK_LDS, 192); a = k.a
    Q, ONES, NEG, S, O, L, P, K0, K1, V0, V1, T = 8, 24, 32, 64, 96, 128, 136, 152, 156, 160, 164, 176
    IDX = 28
    guard(k)
    a("s_cmp_ge_u32 s2, 256\ns_cbranch_scc1 attn_side")
    stamp(k, 0)
    load_ptrs(a, [(44, P_WS), (46, P_WO), (48, P_WD), (52, P_X)])
    a(f"""
    s_and_b32 s32, s2, 7
    s_lshr_b32 s33, s2, 3
    s_and_b32 s34, s32, 3
    s_lshl_b32 s34, s34, 3
    s_and_b32 s35, s33, 7
    s_add_u32 s24, s34, s35            ; head
    s_lshr_b32 s34, s32, 2
    s_lshl_b32 s34, s34, 2
    s_lshr_b32 s35, s33, 3
    s_add_u32 s25, s34, s35
    v_lshrrev_b32 v3, 6, v0
    v_and_b32 v1, 63, v0
    v_readfirstlane_b32 s26, v3
    v_lshlrev_b32 v2, 4, v1
    s_lshl_b32 s27, s25, 2
    s_add_u32 s27, s27, s26
    s_lshl_b32 s27, s27, 1
    s_lshl_b32 s28, s24, 18
    s_lshl_b32 s29, s26, 12            ; wave * 4096
    s_lshl_b32 s32, s24, 6
    s_add_u32 s32, s32, s27
    s_lshl_b32 s32, s32, 11            ; Q offset
    s_waitcnt lgkmcnt(0)""")
    srd(a, 4, 44, WS_Q, 4 << 20)
    a(f"s_add_u32 s8, s44, s28\ns_addc_u32 s9, s45, 0\ns_add_u32 s8, s8, {WS_KV}\ns_addc_u32 s9, s9, 0\ns_mov_b32 s10, 0x40000\ns_mov_b32 s11, 0x20000")
    a("s_mov_b32 s30, s29")
    def dma(slot):
        return [f"s_add_u32 m0, s29, {slot*ST}"] + [f"buffer_load_dwordx4 v2, s[8:11], s30 offen offset:{1024*i} lds" for i in range(4)] + [f"s_add_u32 s30, s30, {ST}"]
    a(f"buffer_load_dwordx4 {v(K0,4)}, v2, s[8:11], 0 offen\nbuffer_load_dwordx4 {v(K1,4)}, v2, s[8:11], 0 offen offset:1024")
    for i in range(4): a(f"buffer_load_dwordx4 {v(Q+4*i,4)}, v2, s[4:7], s32 offen offset:{1024*i}")
    for x in dma(0): a(x)
    srd(a, 12, 44, WS_O, 64 * SLAB)
    frag_off(a, 3, 27, 1, T)
    a("s_add_u32 s33, s27, 1")
    frag_off(a, 4, 33, 1, T)
    code_srd(k, 92, "attn_epi", None, 256)
    cpf_addr(a, T + 4)
    srd(a, 16, 46, 0, 1024 * 2048); srd(a, 20, 48, 0, 3584 * 2048); srd(a, 56, 52, 0, 2048 * 2048)
    a(f"""
    s_lshl_b32 s32, s2, 2
    s_add_u32 s32, s32, s26
    s_mul_i32 s50, s32, {14*128}
    s_lshl_b32 s51, s32, 9
    s_lshl_b32 s54, s32, 10
    v_lshlrev_b32 v{T+6}, 7, v1
    v_mov_b32 v{T+8}, 0x80000000
    v_cmp_gt_u32 vcc, 4, v1
    v_cndmask_b32 v{T+7}, v{T+8}, v{T+6}, vcc
    v_cmp_gt_u32 vcc, 8, v1
    v_cndmask_b32 v{T+9}, v{T+8}, v{T+6}, vcc
    v_cmp_gt_u32 vcc, 14, v1
    v_cndmask_b32 v{T+6}, v{T+8}, v{T+6}, vcc""")
    if SM:
        a(f"""
        v_bfe_u32 v{T}, v1, 2, 1
        v_cmp_eq_u32 vcc, 0, v{T}
        v_mov_b32 v{T+1}, 0x3f803f80
        v_cndmask_b32 v{ONES}, 0, v{T+1}, vcc
        v_mov_b32 v{ONES+1}, v{ONES}
        v_xor_b32 v{ONES+2}, v{T+1}, v{ONES}
        v_mov_b32 v{ONES+3}, v{ONES+2}
        v_and_b32 v{T}, 1, v1
        v_mul_u32_u24 v{T}, 0xaaaa, v{T}
        v_add_u32 v{IDX}, 0x4444, v{T}""")
    else:
        a(f"""
        v_lshrrev_b32 v{T}, 4, v1
        v_lshrrev_b32 v{T+1}, 2, v1
        v_xor_b32 v{T}, v{T}, v{T+1}
        v_and_b32 v{T}, 1, v{T}
        v_cmp_eq_u32 vcc, 0, v{T}
        v_mov_b32 v{T+1}, 0x3f803f80
        v_cndmask_b32 v{ONES}, 0, v{T+1}, vcc""")
        for i in range(1, 4): a(f"v_mov_b32 v{ONES+i}, v{ONES}")
    for i in range(32): a(f"v_mov_b32 v{O+i}, 0")
    for i in range(8): a(f"v_mov_b32 v{L+i}, 0\nv_mov_b32 v{P+8+i}, 0\nv_mov_b32 v{V0+8+i}, 0")
    def lsum(w, p):
        if SM: return [f"v_smfmac_f32_16x16x64_bf16 {v(L+4*w,4)}, {v(ONES,4)}, {v(p,8)}, v{IDX}"]
        return [f"v_mfma_f32_16x16x32_bf16 {v(L+4*w,4)}, {v(ONES,4)}, {v(p+4*g,4)}, {v(L+4*w,4)}" for g in range(2)]
    a("s_waitcnt vmcnt(4)")
    for w in range(2):
        a(f"v_mfma_f32_32x32x16_bf16 {v(S+16*w,16)}, {v(K0,4)}, {v(Q+8*w,4)}, 0")
        a(f"v_mfma_f32_32x32x16_bf16 {v(S+16*w,16)}, {v(K1,4)}, {v(Q+8*w+4,4)}, {v(S+16*w,16)}")
    for st in range(1, R - 1):
        for x in dma(st): a(x)
    def rowmax(Sx, m):
        for i in range(0, 16, 2): a(f"v_max3_f32 v{m}, v{Sx+i}, v{Sx+i+1}, v{m}")
    def negbcast(m, w):
        a(f"v_mov_b32 v{m+1}, v{m}\nv_permlane32_swap_b32 v{m}, v{m+1}\nv_max_f32 v{m}, v{m}, v{m+1}")
        for i in range(16): a(f"v_sub_f32 v{NEG+16*w+i}, 0, v{m}")
    for w in range(2):
        a(f"v_mov_b32 v{T}, v{S+16*w}")
        rowmax(S + 16 * w, T); negbcast(T, w)
        if w == 0:
            for i in range(16): a(f"v_sub_f32 v{S+i}, v{S+i}, v{T}")
    a(f"""
    s_sub_u32 s30, s30, {ST}
    s_waitcnt vmcnt({4*(R-2)})
    s_barrier
    ds_read_b128 {v(V0,4)}, v2 offset:2048
    ds_read_b128 {v(V1,4)}, v2 offset:3072""")
    cnt = Cnt()
    def ph(n, E, site):
        def W(c, nm, tags):
            cnt.wait(c, (site, nm), tags)
            if E: E(cnt.text(c, (site, nm)))
        def X(x):
            if E: E(x)
        def RD(reg, blk, piece):
            X(f"ds_read_b128 {v(reg,4)}, v2 offset:{(blk % (4*R))*4096 + piece*1024}")
            cnt.issue("lg", (piece, blk))
        def VM(x, tag):
            X(x); cnt.issue("vm", tag)
        j = n >> 1; w = n & 1; o = 1 - w
        Sc, Sn, Pc, Pp = S + 16 * w, S + 16 * o, P + 8 * w, P + 8 * o
        vb = (n - 1) >> 1
        Vr = V0 + 8 * (vb % 2); Vw = V0 + 8 * ((j + 1) % 2)
        e = lambda *l: [X(f"v_exp_f32 v{Sc+i}, v{Sc+i}") for i in l]
        c = lambda *l: [X(f"v_cvt_pk_bf16_f32 v{Pc+i}, v{Sc+2*i}, v{Sc+2*i+1}") for i in l]
        d = dma((n // 8 - 1) % R) if n % 8 in (5, 6, 7) else None
        dd = n % 8 == 7
        tg = ("B", n // 8 - 1 + R)
        X(f"v_mfma_f32_32x32x16_bf16 {v(Sn,16)}, {v(K0,4)}, {v(Q+8*o,4)}, {v(NEG+16*o,16)}")
        if w == 0: RD(K0, j + 1, 0)
        else: W("lg", "k1", {(1, j + 1)})
        e(0, 1, 2, 3); c(0)
        X(f"v_mfma_f32_32x32x16_bf16 {v(Sn,16)}, {v(K1,4)}, {v(Q+8*o+4,4)}, {v(Sn,16)}")
        if w == 0: RD(K1, j + 1, 1)
        if dd: VM(d[1], tg); VM(d[2], tg)
        if n % 8 == 1: X(f"s_add_u32 s30, s30, {ST}")
        e(4, 5, 6); c(1, 2)
        X(f"v_mfma_f32_32x32x16_bf16 {v(O+16*o,16)}, {v(Vr,4)}, {v(Pp,4)}, {v(O+16*o,16)}")
        if n % 8 == 5: W("vm", "bar", {("B", n // 8 + 1)})
        if n % 8 == 6: X(d[0])
        if dd: VM(d[3], tg); VM(d[4], tg)
        e(7, 8, 9); c(3, 4)
        X(f"v_mfma_f32_32x32x16_bf16 {v(O+16*o,16)}, {v(Vr+4,4)}, {v(Pp+4,4)}, {v(O+16*o,16)}")
        if w == 0: W("lg", "k0", {(0, j + 1), (2, j), (3, j)})
        if n % 8 == 5: X("s_barrier")
        if n % 32 == 23: VM(f"buffer_load_dword v{T+5}, v{T+4}, s[92:95], 0 offen", ("C",))
        if n % 32 == 7: VM(f"buffer_load_dword v{T+5}, v{T+6}, s[20:23], s50 offen", ("C",))
        if n % 32 == 15:
            VM(f"buffer_load_dword v{T+5}, v{T+7}, s[16:19], s51 offen", ("C",))
            VM(f"buffer_load_dword v{T+5}, v{T+9}, s[56:59], s54 offen", ("C",))
        if n % 32 == 17: X(f"s_add_u32 s50, s50, {1024*14*128}")
        if n % 32 == 25: X(f"s_add_u32 s51, s51, {1024*512}")
        if n % 32 == 27: X(f"s_add_u32 s54, s54, {1024*1024}")
        e(10, 11, 12); c(5)
        ls = lsum(o, Pp)
        X(ls[0])
        RD(Vw + 4 * w, j + 1, 2 + w)
        e(13)
        if len(ls) > 1: X(ls[1])
        e(14, 15); c(6, 7)
    def preload():
        cnt.reset()
        for st in range(R - 1):
            for i in range(4): cnt.issue("vm", ("B", st))
        cnt.issue("lg", (2, 0)); cnt.issue("lg", (3, 0))
    preload()
    for n in range(128): ph(n, None, n % 32)
    preload()
    stamp(k, 1)
    a("s_mov_b32 s31, 4\n.p2align 6\nattn_loop:")
    for n in range(32): ph(n, a, n)
    a("s_sub_u32 s31, s31, 1\ns_cmp_lg_u32 s31, 0\ns_cbranch_scc1 attn_loop\nattn_epi:")
    stamp(k, 2)
    a(f"""
    v_mfma_f32_32x32x16_bf16 {v(O+16,16)}, {v(V0+8,4)}, {v(P+8,4)}, {v(O+16,16)}
    v_mfma_f32_32x32x16_bf16 {v(O+16,16)}, {v(V1+8,4)}, {v(P+12,4)}, {v(O+16,16)}""")
    for x in lsum(1, P + 8): a(x)
    a(f"v_mov_b32 v{T}, 0\nv_mov_b32 v{T+1}, 0")
    for i in range(32): a(f"v_fmac_f32 v{T+i%2}, 0, v{O+i}")
    def ltot():
        if SM: a(f"v_add_f32 v{L}, v{L}, v{L+1}\nv_add_f32 v{L+4}, v{L+4}, v{L+5}")
    ltot()
    a(f"""
    v_add_f32 v{T}, v{T}, v{T+1}
    v_add_f32 v{T}, v{T}, v{L}
    v_add_f32 v{T}, v{T}, v{L+4}
    v_cmp_ngt_f32 vcc, {fx(2.0**40)}, v{T}
    s_cbranch_vccnz attn_slow
attn_fin:
    v_rcp_f32 v{T}, v{L}
    v_rcp_f32 v{T+1}, v{L+4}
    s_mul_i32 s32, s24, {2*SLAB}
    s_add_u32 s33, s32, {SLAB}""")
    for w in range(2):
        Ow = O + 16 * w
        for i in range(16): a(f"v_mul_f32 v{Ow+i}, v{Ow+i}, v{T+w}")
        for i in range(8): a(f"v_cvt_pk_bf16_f32 v{Ow+i}, v{Ow+2*i}, v{Ow+2*i+1}")
        a(f"buffer_store_dwordx4 {v(Ow,4)}, v{3+w}, s[12:15], s32 offen sc1\nbuffer_store_dwordx4 {v(Ow+4,4)}, v{3+w}, s[12:15], s33 offen sc1")
    stamp(k, 3)
    prof_out(k, 4, 4, 26)
    a("s_endpgm")
    a(f"""
attn_slow:
    v_mov_b32 v{T}, 0xff800000
    v_mov_b32 v{T+2}, 0xff800000
    s_mov_b32 s30, 0
    s_waitcnt lgkmcnt(0)
attn_slow1:
    buffer_load_dwordx4 {v(K0,4)}, v2, s[8:11], s30 offen
    buffer_load_dwordx4 {v(K1,4)}, v2, s[8:11], s30 offen offset:1024
    s_waitcnt vmcnt(0)""")
    for w in range(2):
        a(f"v_mfma_f32_32x32x16_bf16 {v(S+16*w,16)}, {v(K0,4)}, {v(Q+8*w,4)}, 0")
        a(f"v_mfma_f32_32x32x16_bf16 {v(S+16*w,16)}, {v(K1,4)}, {v(Q+8*w+4,4)}, {v(S+16*w,16)}")
    for w in range(2): rowmax(S + 16 * w, T + 2 * w)
    a("s_add_u32 s30, s30, 4096\ns_cmp_lt_u32 s30, 0x40000\ns_cbranch_scc1 attn_slow1")
    for w in range(2): negbcast(T + 2 * w, w)
    for i in range(32): a(f"v_mov_b32 v{O+i}, 0")
    for i in range(8): a(f"v_mov_b32 v{L+i}, 0")
    a(f"""
    s_mov_b32 s30, 0
attn_slow2:
    buffer_load_dwordx4 {v(K0,4)}, v2, s[8:11], s30 offen
    buffer_load_dwordx4 {v(K1,4)}, v2, s[8:11], s30 offen offset:1024
    buffer_load_dwordx4 {v(V0,4)}, v2, s[8:11], s30 offen offset:2048
    buffer_load_dwordx4 {v(V1,4)}, v2, s[8:11], s30 offen offset:3072
    s_waitcnt vmcnt(0)""")
    for w in range(2):
        a(f"v_mfma_f32_32x32x16_bf16 {v(S+16*w,16)}, {v(K0,4)}, {v(Q+8*w,4)}, {v(NEG+16*w,16)}")
        a(f"v_mfma_f32_32x32x16_bf16 {v(S+16*w,16)}, {v(K1,4)}, {v(Q+8*w+4,4)}, {v(S+16*w,16)}")
    for i in range(32): a(f"v_exp_f32 v{S+i}, v{S+i}")
    for i in range(16): a(f"v_cvt_pk_bf16_f32 v{P+i}, v{S+2*i}, v{S+2*i+1}")
    for w in range(2):
        a(f"v_mfma_f32_32x32x16_bf16 {v(O+16*w,16)}, {v(V0,4)}, {v(P+8*w,4)}, {v(O+16*w,16)}")
        a(f"v_mfma_f32_32x32x16_bf16 {v(O+16*w,16)}, {v(V1,4)}, {v(P+8*w+4,4)}, {v(O+16*w,16)}")
        for x in lsum(w, P + 8 * w): a(x)
    a("s_add_u32 s30, s30, 4096\ns_cmp_lt_u32 s30, 0x40000\ns_cbranch_scc1 attn_slow2")
    ltot()
    a("s_branch attn_fin")
    attn_side(k, 4)
    finish(k)
    return k

def build(kernels, path, verbose=False):
    hdr = open("adaLN_cond__mha_block__geglu_ffn__prompt.s.ref").read().split("; Override launch")[0]
    out = hdr
    for k in kernels:
        out += f"; @launch kernel={k.name} grid=({k.grid},1,1) block=({k.block},1,1) lds={k.lds}\n"
    out += '.amdgcn_target "amdgcn-amd-amdhsa--gfx950"\n'
    for k in kernels:
        rep = []
        out += k.text(rep)
        if verbose:
            print(k.name, "vgpr", k.nv, "agpr", k.na, "lds", k.lds, "nops inserted:", len(rep))
            for r in rep:
                if "m0" not in r[1]: print("   ", r)
    out += '.section .rodata,"a"\n'
    for k in kernels: out += k.desc()
    open(path, "w").write(out)

CHECK = {"x2": "frag", "h2": False, "h1": False, "slab": SLAB}
def all_kernels():
    global QPRE
    QPRE = EXP.get("qpre", 1024)
    if EXP.get("fuse1", 1):
        ORDER[:] = ["pre_kernel", "qkv_kernel", "attn_kernel", "out_kernel", "gu_kernel", "down_kernel"]
        return [k_pre(), k_qkv(), k_attn4() if EXP.get('a4', 1) else k_attn(), k_out(), k_gu(), k_down()]
    ORDER[:] = ["pre_kernel", "ln1_kernel", "qkv_kernel", "attn_kernel", "out_kernel", "gu_kernel", "down_kernel"]
    return [k_pre(), k_ln("ln1_kernel", P_X, WS_H1, 0, 1), k_qkv(), k_attn(), k_out(), k_gu(), k_down()]

if __name__ == "__main__":
    vb = False
    for x in sys.argv[2:]:
        if x == "prof": PROF = True
        elif x == "verbose": vb = True
        else:
            kk, _, vv = x.partition("="); EXP[kk] = int(vv) if vv else 1
    build(all_kernels(), sys.argv[1] if len(sys.argv) > 1 else "adaLN_cond__mha_block__geglu_ffn__prompt.s", verbose=vb)
```

```python
import sys, math
from asmlib import *
import g2
from g2 import (SLAB, WS_MODP, WS_UV, WS_STAT, WS_WQ3, WS_WO3, WS_WD3, WS_H1, WS_Q, WS_KV, WS_O, WS_X2, WS_Y2, WS_ACT, WS_PROF, KS,
                P_X, P_WQKV, P_WO, P_WG, P_WU, P_WD, P_C, P_WMOD, P_OUT, P_DBG, P_WS, LOG2E, EXP, KID, fx, Kernel, load_ptrs, srd,
                guard, finish, unpack, rbf, phys_line, code_srd, wave_lane, cpf_addr)
WS_FLAG = 768 << 10
NFLAG = 1536
WS_WD4 = 58 << 20
WS_EX = 62 << 20
CHECK = {"x2": None, "h2": False, "h1": False, "slab": SLAB, "y2": "split"}

NSTAMP = [0]
def stamp(k):
    if not g2.PROF: return
    i = k.nst = getattr(k, "nst", 0)
    k.a(f"s_memtime s[72:73]\ns_memrealtime s[74:75]\ns_waitcnt lgkmcnt(0)\ns_mov_b32 s{76+2*i}, s72\ns_mov_b32 s{77+2*i}, s74")
    k.nst += 1
def prof_out(k, kid):
    if not g2.PROF: return
    a = k.a
    a("s_waitcnt vmcnt(0)"); stamp(k)
    a(f"s_add_u32 s4, s38, {WS_PROF + kid*(1<<18)}\ns_addc_u32 s5, s39, 0\ns_mov_b32 s6, {1<<18}\ns_mov_b32 s7, 0x20000")
    a(f"s_lshl_b32 s32, s2, 2\ns_add_u32 s32, s32, s26\ns_lshl_b32 s32, s32, 7\nv_mov_b32 v1, 0")
    for i in range(2 * k.nst): a(f"v_mov_b32 v0, s{76+i}\nbuffer_store_dword v0, v1, s[4:7], s32 offen offset:{4*i}")

class Gemm:
    def __init__(self, k, name, sset, K, MR, NC, DA, R, U, PEEL, CAP, INIT, btype, a_off, orient, TM, TN, xm, xn, ldb, alt,
                 lds0, vlow, acc0, frag, mod=False, FB=1, WG=1, sc1=False, split=False):
        self.__dict__.update(locals()); self.a = k.a
        self.S = K // 32; self.NST = K // 64
        b = 40 + 8 * sset
        self.tm, self.tn, self.rb0, self.sB, self.sW, self.sW0, self.sWE, self.sBI = range(b, b + 8)
        self.SB = 8 if sset == 0 else 28
        if btype == "panel": self.NP = NC // 4; self.STAGE = self.NP * 8192; self.ND = 2 * self.NP; self.NRB = 4
        else: self.UPOFF = 64 * 224; self.STAGE = 2 * self.UPOFF; self.ND = 7; self.NRB = 1
        self.VB = vlow; self.VR0 = self.VB + self.ND; self.VR = self.VR0 + 1; self.VA = self.VR + self.NRB
        self.vend = self.VA + MR
        self.fk, f0 = frag
        self.BF = f0; self.AR = f0 + 4 * NC * FB; self.fend = self.AR + 4 * MR * DA
        self.pre = 0
    def acc(self, j, i): return self.acc0 + 4 * (j * self.MR + i)

    def tile(self):
        tm_per, tn_per = self.TM // self.xm, self.TN // self.xn
        self.a(f"""
        s_and_b32 s32, s2, 7
        s_lshr_b32 s33, s2, 3
        s_lshr_b32 s34, s32, {self.xn.bit_length()-1}
        s_and_b32 s35, s32, {self.xn-1}
        s_and_b32 s{self.tm}, s33, {tm_per-1}
        s_lshr_b32 s{self.tn}, s33, {tm_per.bit_length()-1}
        s_mul_i32 s34, s34, {tm_per}
        s_add_u32 s{self.tm}, s{self.tm}, s34
        s_mul_i32 s35, s35, {tn_per}
        s_add_u32 s{self.tn}, s{self.tn}, s35
        s_lshl_b32 s{self.rb0}, s{self.tm}, 2
        s_add_u32 s{self.rb0}, s{self.rb0}, s26
        s_mul_i32 s{self.rb0}, s{self.rb0}, {self.MR//2}""")

    def b_addr(self, T):
        a = self.a; VB = self.VB; ldb = self.ldb
        if self.btype == "panel":
            off_alt, ldb_alt, pst_alt, sst_alt = self.alt
            sb = self.SB
            a(f"""
            s_and_b32 s32, s{self.tn}, 7
            s_lshr_b32 s33, s{self.tn}, 3
            s_mul_i32 s33, s33, {sst_alt}
            s_lshl_b32 s34, s{self.tn}, 7
            s_mov_b32 s35, {ldb}
            s_mov_b32 s{self.sB}, 2048
            s_cmp_eq_u32 s32, 3
            s_cselect_b32 s33, s33, s34
            s_cselect_b32 s35, {ldb_alt}, s35
            s_cselect_b32 s{self.sB}, {pst_alt}, s{self.sB}""" if not self.split else f"""
            s_and_b32 s32, s{self.tn}, 6
            s_lshr_b32 s33, s{self.tn}, 3
            s_lshl_b32 s33, s33, 1
            s_and_b32 s34, s{self.tn}, 1
            s_add_u32 s33, s33, s34
            s_lshl_b32 s33, s33, 8
            s_lshl_b32 s34, s34, 1
            s_sub_u32 s{self.sB}, 1, s34
            s_lshl_b32 s34, s{self.tn}, 7
            s_mov_b32 s35, {ldb}
            s_cmp_eq_u32 s32, 2
            s_cselect_b32 s33, s33, s34
            s_cselect_b32 s35, {ldb_alt}, s35
            s_cselect_b32 s34, 8, 7
            s_lshl_b32 s{self.sB}, s{self.sB}, s34""")
            a(f"""
            s_lshl_b32 s{self.sBI}, s35, 6
            s_lshl_b32 s34, s35, 3
            s_lshl_b32 s32, s26, 4
            v_lshrrev_b32 v{T}, 3, v1
            v_and_b32 v{T+1}, 7, v1
            v_and_b32 v{T+2}, 6, v{T}
            v_xor_b32 v{T+1}, v{T+1}, v{T+2}
            v_add_u32 v{T}, s32, v{T}
            v_mul_lo_u32 v{T}, v{T}, s35
            v_lshl_add_u32 v{T}, v{T+1}, 4, v{T}
            v_add_u32 v{VB}, s33, v{T}
            v_add_u32 v{VB+1}, s34, v{VB}""")
            for p in range(1, self.NP):
                a(f"v_add_u32 v{VB+2*p}, s{self.sB}, v{VB+2*p-2}\nv_add_u32 v{VB+2*p+1}, s{self.sB}, v{VB+2*p-1}")
            self.dma_lds = [p * 8192 + g * 1024 for p in range(self.NP) for g in range(2)]
            a(f"s_lshl_b32 s{self.sW0}, s26, 11")
        else:
            a(f"""
            s_and_b32 s32, s26, 1
            s_mul_i32 s33, s32, {32*ldb}
            s_mul_i32 s34, s{self.tn}, 224
            s_add_u32 s33, s33, s34
            s_mov_b32 s{self.sBI}, {64*ldb}""")
            for i in range(7):
                a(f"""
                v_add_u32 v{T}, {64*i}, v1
                v_mul_u32_u24 v{T+1}, 4682, v{T}
                v_lshrrev_b32 v{T+1}, 16, v{T+1}
                v_lshl_add_u32 v{T}, v{T}, 4, s33
                v_mul_u32_u24 v{T+1}, {ldb-224}, v{T+1}
                v_add_u32 v{VB+i}, v{T}, v{T+1}""")
            self.dma_lds = [1024 * i for i in range(7)]
            a(f"s_mul_i32 s{self.sW0}, s26, 7168")
        a(f"""
        s_add_u32 s{self.sW0}, s{self.sW0}, {self.lds0}
        s_mov_b32 s{self.sB}, 0
        s_mov_b32 s{self.sW}, s{self.sW0}
        s_add_u32 s{self.sWE}, s{self.sW0}, {self.R*self.STAGE}""")

    def b_srd(self, p0, p1=None):
        a = self.a; sb = self.SB
        if self.btype == "panel":
            a(f"""
            s_add_u32 s32, s38, {self.alt[0]}
            s_addc_u32 s33, s39, 0
            s_cmp_eq_u32 s{self.sBI}, {64*self.alt[1]}
            s_cselect_b32 s{sb}, s32, s{p0}
            s_cselect_b32 s{sb+1}, s33, s{p0+1}
            s_mul_i32 s{sb+2}, s{self.sBI}, {self.NST}
            s_mov_b32 s{sb+3}, 0x20000""")
            if self.split:
                a(f"s_and_b32 s32, s{self.tn}, 1\ns_mul_i32 s32, s32, s{sb+2}\ns_add_u32 s{sb}, s{sb}, s32\ns_addc_u32 s{sb+1}, s{sb+1}, 0")
        else:
            a(f"s_cmp_ge_u32 s26, 2\ns_cselect_b32 s{sb}, s{p1}, s{p0}\ns_cselect_b32 s{sb+1}, s{p1+1}, s{p0+1}")
            a(f"s_mov_b32 s{sb+2}, {self.K*self.ldb}\ns_mov_b32 s{sb+3}, 0x20000")

    def dma_op(self, i):
        ins = [f"s_add_u32 m0, s{self.sW}, {self.dma_lds[i]}", f"buffer_load_dwordx4 v{self.VB+i}, {s(self.SB,4)}, s{self.sB} offen lds"]
        if i == self.ND - 1:
            ins += [f"s_add_u32 s{self.sB}, s{self.sB}, s{self.sBI}", f"s_add_u32 s{self.sW}, s{self.sW}, {self.STAGE}",
                    f"s_cmp_eq_u32 s{self.sW}, s{self.sWE}\ns_cselect_b32 s{self.sW}, s{self.sW0}, s{self.sW}"]
        return ins
    def preload(self, n):
        self.pre = n
        return [self.dma_op(i) for st in range(n) for i in range(self.ND)]

    def a_addr(self, T):
        a = self.a
        a(f"""
        v_bfe_u32 v{T+2}, v1, 4, 1
        v_bfe_u32 v{T+3}, v1, 3, 1
        v_lshl_add_u32 v{T+2}, v{T+2}, 2, v{T+3}
        s_lshl_b32 s32, s{self.rb0}, 3
        v_add_u32 v{T+2}, s32, v{T+2}
        v_lshrrev_b32 v{T+3}, 5, v1
        v_mul_u32_u24 v{T+3}, {SLAB}, v{T+3}
        v_and_b32 v{T}, 7, v1
        v_lshl_add_u32 v{T+3}, v{T}, 4, v{T+3}""")
        for i in range(self.MR):
            a(f"v_add_u32 v{T}, {8*(i//2) + 2*(i%2)}, v{T+2}")
            phys_line(a, self.VA + i, T, T + 1)
            a(f"v_add_u32 v{self.VA+i}, v{self.VA+i}, v{T+3}")
        a("s_mov_b32 s27, 0")
    def a_srd(self):
        srd(self.a, 4, 38, self.a_off, 2 * self.S * SLAB)
        if self.split: self.a(f"s_and_b32 s32, s{self.tn}, 1\ns_mul_i32 s32, s32, s6\ns_add_u32 s4, s4, s32\ns_addc_u32 s5, s5, 0")

    def r_addr(self, T):
        a = self.a
        a(f"""
        v_lshrrev_b32 v{T}, 5, v1
        v_bfe_u32 v{T+1}, v1, 2, 3
        v_lshl_add_u32 v{T}, v{T}, 4, v{T+1}
        v_and_b32 v{T+2}, 3, v1""")
        if self.btype == "panel":
            a(f"""
            v_lshlrev_b32 v{T}, 7, v{T}
            v_lshl_add_u32 v{T}, v{T+2}, 3, v{T}
            v_lshrrev_b32 v{T+1}, 1, v{T+1}
            v_lshl_add_u32 v{self.VR0}, v{T+1}, 5, v{T}""")
        else:
            a(f"v_mul_u32_u24 v{T}, 224, v{T}\nv_lshl_add_u32 v{self.VR0}, v{T+2}, 3, v{T}")
        a(f"s_mov_b32 s37, {self.lds0 + (self.R-1)*self.STAGE}")
    def rd(self, j, sub, r_):
        if self.btype == "panel": return self.VR + j % 4, (j // 4) * 8192 + 128 * (32 * sub + 8 * r_)
        return self.VR, (j % 2) * self.UPOFF + 32 * (j // 2) + 224 * (32 * sub + 8 * r_)

    def run(self, extra_fn, early=None, late=None, cpf=None, gate=None, POST=0, post_ops=None, timed=None):
        g = self; a = self.a
        S, NST, MR, NC, DA, R, U, PEEL, FB, ND, mod, fk = g.S, g.NST, g.MR, g.NC, g.DA, g.R, g.U, g.PEEL, g.FB, g.ND, g.mod, g.fk
        assert (NST - PEEL - POST) % U == 0 and (2 * U) % DA == 0 and (2 * U) % FB == 0 and FB <= 2 and PEEL > 0
        sc = " sc1" if g.sc1 else ""
        def make_ops(extra):
            ops = []
            for ta in range(S + DA + 4):
                if ta >= S and ta + 1 - DA >= S - 2 * POST: break
                for i in range(MR):
                    ins = [f"buffer_load_dwordx4 {rr(fk, g.AR+4*(MR*(ta%DA)+i), 4)}, v{g.VA+i}, s[4:7], s27 offen{sc}"]
                    if i == MR - 1: ins.append(f"s_add_u32 s27, s27, {2*SLAB}")
                    ops.append([ta - (1 if mod else 0), ta + (0 if mod else 1) - DA, len(ops), ins, ("A", ta)])
            for st in range(g.pre, NST + R + 2):
                for i in range(ND):
                    ea = 2 * (st + 2 - R) - FB + i * 2 // ND
                    if st >= NST and ea >= S - 2 * POST: continue
                    ops.append([2 * st - FB - 0.5, ea, len(ops), g.dma_op(i), ("B", st)])
            for ea, ins in (post_ops or []): ops.append([1000, ea, len(ops), ins, ("X",)])
            for need, ins in extra: ops.append([need, -999, len(ops), ins, ("X",)])
            ops.sort(key=lambda o: (o[0], o[2]))
            return ops
        cnt = Cnt()
        def go(emit):
            emit0 = emit; em = [emit]
            ng = [0]
            vq = [list(q) for q in (timed or [])]
            def E(x):
                ng[0] += len([1 for l in x.split("\n") if l.strip()])
                if em[0]: em[0](x)
            ops = make_ops(extra_fn())
            def take(t, cap):
                got = [o for o in ops if o[1] <= t][:cap]
                for o in got: ops.remove(o)
                return [(x, o[4] if x.startswith("buffer_") else None) for o in got for x in o[3]]
            def W(site, c, nm, tags):
                assert nm != "X" or not [o for o in ops if o[4] == ("X",) and o[0] < 100], "extras not issued"
                cnt.wait(c, (site, nm), tags)
                n_ = ng[0]; E(cnt.text(c, (site, nm))); ng[0] = n_ + (1 if nm[0] in "XU" or (nm[0] == "N" and (int(nm[1:]) + 1) % g.WG == 0) else 0)
            def flush(fill, n):
                for _ in range(n):
                    if not fill: return
                    x, tag = fill.pop(0)
                    if x == "W": W(*tag); continue
                    E(x)
                    if tag and tag[0] == "L": cnt.issue("lg", tag[1])
                    elif tag: cnt.issue("vm", tag)
            def slot_s(): return [(f"s_add_u32 s37, s37, {g.STAGE}", None), (f"s_cmp_eq_u32 s37, {g.lds0 + R*g.STAGE}\ns_cselect_b32 s37, {g.lds0}, s37", None)]
            def slot_v():
                out = [f"v_add_u32 v{g.VR}, s37, v{g.VR0}"]
                for b in range(1, g.NRB): out.append(f"v_xor_b32 v{g.VR+b}, {32*b}, v{g.VR}")
                return out
            def reads(tt, j):
                out = []
                for r_ in range(2):
                    base, off = g.rd(j, tt % 2, r_)
                    out.append((f"ds_read_b64_tr_b16 {rr(fk, g.BF+4*(NC*(tt%FB)+j)+2*r_, 2)}, v{base} offset:{off}", ("L", ("F", tt, j))))
                return out
            def cread(tt):
                base = (tt if tt < 2 * PEEL + 2 else 2 * PEEL + (tt - 2 * PEEL - 2) % (2 * U) + 2) * 256
                CM = g.CM0 + 16 * (tt % 2)
                return [(f"ds_read_b128 {v(CM+4*n,4)}, v{g.VC} offset:{base+16*n}", ("L", ("C", tt))) for n in range(4)]
            def xform(tt):
                out = []; CM = g.CM0 + 16 * (tt % 2)
                for i in range(MR):
                    r = g.AR + 4 * (MR * (tt % DA) + i)
                    for e in range(8):
                        out.append((f"v_fma_mix_f32 v{g.XT+e}, v{r+e//2}, v{CM+e}, v{CM+8+e} " + ("op_sel:[1,0,0] " if e % 2 else "") + "op_sel_hi:[1,0,0]", None))
                    for e in range(4): out.append((f"v_cvt_pk_bf16_f32 v{g.HF+4*(MR*(tt%2)+i)+e}, v{g.XT+2*e}, v{g.XT+2*e+1}", None))
                return out
            if early: early(emit, cnt)
            if not gate: flush(take(-FB - 1, g.INIT), 999)
            if late: late(emit, lambda c, nm, tags: W("pro", c, nm, tags))
            W("pro", "vm", "bar", {("B", 0)})
            flush(slot_s(), 9)
            if not gate: E("s_barrier")
            for x in slot_v(): E(x)
            if FB == 2: flush(slot_s(), 9)
            if mod: flush(cread(0) + cread(1), 99)
            for tt in range(FB):
                for j in range(NC): flush(reads(tt, j), 2)
            if gate:
                if emit: gate()
                flush(take(-FB - 1, g.INIT), 999)
            W("pro", "vm", "A", {("A", 0)})
            if mod:
                W("pro", "lg", "C", {("C", 0)})
                flush(xform(0), 99)
            W("pro", "lg", "F", {("F", 0, min(NC - 1, g.WG - 1))})
            if emit: stamp(g.k)
            pend = []
            for t in range(S):
                peeled = t < 2 * PEEL or t >= S - 2 * POST
                site = ("p", t) if peeled else (t - 2 * PEEL) % (2 * U)
                if t == 2 * PEEL and not peeled:
                    assert not [o for o in ops if o[1] < t], f"{g.name}: backlog not drained"
                    if emit0 and EXP.get("pstamp"): stamp(g.k)
                    E(f"s_mov_b32 s36, {(NST-PEEL-POST)//U}\n.p2align 6\n{g.name}_loop:")
                em[0] = emit0 if (peeled or t < 2 * PEEL + 2 * U) else None
                bar = (t + FB) % 2 == 0
                fill = take(t, g.CAP if peeled else 999)
                if cpf and ((not peeled and site == 1) or (PEEL + POST == NST and t % 8 == 5)): fill += [(x, ("C",)) for x in cpf.split("|")]

                if (t + 1 + FB) % 2 == 0: fill = fill + slot_s()
                last = (not peeled) and site == 2 * U - 1
                if last: fill.append(("s_sub_u32 s36, s36, 1\ns_cmp_lg_u32 s36, 0", None))
                vfill = []
                if mod:
                    fill = cread(t + 2) + fill
                    vfill = xform(t + 1) + ([(f"v_add_u32 v{g.VC}, {2*U*256}, v{g.VC}", None)] if last else [])
                ngap = NC * MR
                first = MR + 1 if bar else 0
                n0 = len(fill); nv0 = len(vfill); gap = 0
                for j in range(NC):
                    for i in range(MR):
                        af = rr(fk, g.AR + 4 * (MR * (t % DA) + i), 4) if not mod else v(g.HF + 4 * (MR * (t % 2) + i), 4)
                        bf = rr(fk, g.BF + 4 * (NC * (t % FB) + j), 4); c = v(g.acc(j, i), 4)
                        x, y = (bf, af) if g.orient[j] == "tok" else (af, bf)
                        E(f"v_mfma_f32_16x16x32_bf16 {c}, {x}, {y}, {c if t else 0}")
                        gap += 1; ng[0] = 0
                        if mod and gap == 1:
                            W(site, "vm", "A", {("A", t + 1)}); W(site, "lg", "C", {("C", t + 1)})
                        if i == MR - 1:
                            jn, tn_ = (j + 1, t) if j + 1 < NC else (0, t + 1)
                            if jn == 0 and not mod: W(site, "vm", "A", {("A", t + 1)})
                            assert not any(tg[1][1:] == (tn_, jn) for _, tg in pend)
                            tgt = min(NC - 1, jn + (g.WG - 1 - jn % g.WG))
                            while any(tg[1][1:] == (tn_, tgt) for _, tg in pend) or (FB == 1 and tn_ > t and tgt >= j): tgt -= 1
                            W(site, "lg", f"N{j}", {("F", tn_, tgt)})
                        busy = bool(pend) and MR > 2 and gap < ngap
                        flush(pend, 1)
                        if bar and gap == MR:
                            flush(pend, 9)
                            W(site, "vm", "bar", {("B", (t + FB) // 2)})
                            E("s_barrier")
                            for x in slot_v(): E(x)
                        if i == MR - 1: pend += reads(t + FB, j)
                        if (gap > first or first == 0) and not busy:
                            den = ngap - first
                            want = max(0, (n0 * (gap - first) + den - 1) // den - (n0 - len(fill)))
                            flush(fill, want)
                        G = t * ngap + gap - 1; placed = 0
                        while vq and vq[0][2] <= G:
                            left = sum(1 for q in vq if q[3] == vq[0][3])
                            must = left > vq[0][3] - G
                            mem = vq[0][0].startswith("ds_")
                            if not must and (ng[0] >= 2 or placed or (mem and ng[0] >= 1)): break
                            assert peeled
                            x, tg = vq.pop(0)[:2]; placed += 1
                            flush([(x, (site,) + tg if x == "W" else tg)], 1)
                        vs = ngap - 2
                        if gap > 1: flush(vfill, max(0, (nv0 * min(gap - 1, vs) + vs - 1) // vs - (nv0 - len(vfill))))
                assert not fill and not vfill
                if last or t == 2 * PEEL - 1 or t == S - 1:
                    flush(pend, 9)
                    if last: E(f"s_cbranch_scc1 {g.name}_loop")
            assert not vq
        go(None)
        cnt.reset()
        go(a)
        a(f"{g.name}_epi:")
        stamp(g.k)

def piece_lane(a, dst, t):
    a(f"""
    v_and_b32 v{dst}, 15, v1
    v_lshrrev_b32 v{t}, 5, v1
    v_lshl_add_u32 v{dst}, v{t}, 4, v{dst}
    v_bfe_u32 v{t}, v1, 4, 1
    v_lshl_add_u32 v{dst}, v{t}, 5, v{dst}
    v_lshlrev_b32 v{dst}, 4, v{dst}""")
def piece_slab(a, dst, srb, add, t):
    a(f"""
    v_bfe_u32 v{t}, v1, 4, 1
    v_lshrrev_b32 v{t+1}, 5, v1
    v_lshl_add_u32 v{t}, v{t}, 1, v{t+1}
    v_bfe_u32 v{t+1}, v1, 3, 1
    v_lshl_add_u32 v{t}, v{t}, 1, v{t+1}
    s_lshl_b32 s32, s{srb}, 3
    s_add_u32 s32, s32, {8*add}
    v_add_u32 v{t}, s32, v{t}""")
    phys_line(a, dst, t, t + 1)
    a(f"v_and_b32 v{t}, 7, v1\nv_lshl_add_u32 v{dst}, v{t}, 4, v{dst}")
def pack_swap(a, d, x, y):
    a(f"""
    v_cvt_pk_bf16_f32 v{d}, v{x}, v{x+1}
    v_cvt_pk_bf16_f32 v{d+1}, v{x+2}, v{x+3}
    v_cvt_pk_bf16_f32 v{d+2}, v{y}, v{y+1}
    v_cvt_pk_bf16_f32 v{d+3}, v{y+2}, v{y+3}""")
def swap2(a, d): a(f"v_permlane32_swap_b32 v{d}, v{d+2}\nv_permlane32_swap_b32 v{d+1}, v{d+3}")
def allred4(a, regs, t):
    for op in ("v_permlane16_swap_b32", "v_permlane32_swap_b32"):
        for n, r in enumerate(regs): a(f"v_mov_b32 v{t+n}, v{r}")
        for n, r in enumerate(regs): a(f"{op} v{r}, v{t+n}")
        for n, r in enumerate(regs): a(f"v_add_f32 v{r}, v{r}, v{t+n}")

def head(k, ptrs):
    guard(k); stamp(k)
    load_ptrs(k.a, [(38, P_WS)] + ptrs)
    wave_lane(k.a)

def k_qkv():
    R = EXP.get("qR", 4)
    k = Kernel("qkv_kernel", 256, 256, 24576 * R + 8192 + 512, 256); a = k.a
    g = Gemm(k, "qkv", 0, 1024, 2, 12, EXP.get("qDA", 4), R, 2, EXP.get("qPEEL", 4), EXP.get("qCAP", 8), EXP.get("qINIT", 14), "panel", WS_H1,
             ["tok"] * 8 + ["feat"] * 4, 16, 16, 2, 4, 6144, (WS_WQ3, 1536, 256, 768), 0, 3, 24, ("v", 120), mod=True, WG=EXP.get("qWG", 6))
    g.CM0 = g.fend; g.HF = g.CM0 + 32; g.XT = g.HF + 16; g.VC = 20; T = 16
    assert g.vend <= 16 and g.XT + 8 <= 256
    XL = 24576 * R; A0 = g.acc0
    head(k, [(60, P_WQKV)])
    g.tile(); g.b_addr(T); g.a_addr(T)
    a("s_waitcnt lgkmcnt(0)")
    g.a_srd(); g.b_srd(60)
    def early(emit, cnt):
        if emit:
            srd(a, 20, 38, WS_MODP, KS * 6144 * 4)
            a(f"v_lshlrev_b32 v{g.VC}, 4, v0")
        for p in range(KS):
            for n, idx in enumerate((1, 0)):
                if emit: a(f"s_mov_b32 s32, {p*6144*4 + idx*4096}\nbuffer_load_dwordx4 {v(A0+8*p+4*n,4)}, v{g.VC}, s[20:23], s32 offen")
                cnt.issue("vm", ("M",))
    def late(emit, W):
        if emit:
            g.r_addr(T)
            code_srd(k, 68, "qkv_epi", None, 256); cpf_addr(a, 2)
            a(f"""
            v_lshrrev_b32 v{A0+24}, 2, v0
            v_lshlrev_b32 v{A0+24}, 7, v{A0+24}
            v_and_b32 v{A0+25}, 1, v0
            v_lshl_add_u32 v{A0+24}, v{A0+25}, 6, v{A0+24}
            v_bfe_u32 v{A0+25}, v0, 1, 1
            v_lshl_add_u32 v{A0+24}, v{A0+25}, 4, v{A0+24}
            v_add_u32 v{A0+24}, {XL}, v{A0+24}
            v_lshrrev_b32 v{g.VC}, 4, v1
            v_lshlrev_b32 v{g.VC}, 6, v{g.VC}
            v_add_u32 v{g.VC}, {XL}, v{g.VC}""")
        W("vm", "M", {("M",)})
        if emit:
            for j in range(8): a(f"v_add_f32 v{A0+j}, v{A0+j}, v{A0+8+j}")
            for j in range(4): a(f"v_cvt_pk_bf16_f32 v{A0+16+j}, v{A0+2*j}, v{A0+2*j+1}")
            unpack(a, A0, A0 + 16, 4)
            for j in range(4): a(f"v_add_f32 v{A0+j}, 1.0, v{A0+j}")
            for j in range(2): a(f"v_cvt_pk_bf16_f32 v{A0+16+j}, v{A0+2*j}, v{A0+2*j+1}")
            unpack(a, A0, A0 + 16, 2)
            a(f"ds_write_b128 v{A0+24}, {v(A0,4)}\nds_write_b128 v{A0+24}, {v(A0+4,4)} offset:32\ns_waitcnt lgkmcnt(0)")
    g.run(lambda: [], early, late, "buffer_load_dword v0, v2, s[68:71], 0 offen")
    qs = LOG2E / math.sqrt(32)
    srd(a, 12, 38, WS_Q, 4 << 20); srd(a, 16, 38, WS_KV, 8 << 20)
    piece_lane(a, T, T + 1)
    a(f"""
    s_lshl_b32 s32, s{g.tn}, 7
    s_add_u32 s32, s32, s{g.rb0}
    s_lshl_b32 s33, s32, 11
    s_lshl_b32 s34, s32, 12
    s_add_u32 s35, s33, {64*2048}
    s_add_u32 s56, s34, {64*4096}""")
    jobs = []
    for j in range(8):
        hd, gg = (j >> 1) & 1, j & 1
        dst = (f"s[12:15], s{35 if hd else 33} offen offset:{1024*gg}" if j < 4 else f"s[16:19], s{56 if hd else 34} offen offset:{1024*gg}")
        jobs.append((g.acc(j, 0), g.acc(j, 1), j < 4, dst))
    for hd in range(2):
        for i in range(2):
            jobs.append((g.acc(8 + 2 * hd, i), g.acc(9 + 2 * hd, i), False, f"s[16:19], s{56 if hd else 34} offen offset:{2048+1024*i}"))
    prev = None
    for x, y, sc_, dst in jobs + [(None,) * 4]:
        if x is not None:
            if sc_:
                for r in list(range(x, x + 4)) + list(range(y, y + 4)): a(f"v_mul_f32 v{r}, {fx(qs)}, v{r}")
            pack_swap(a, x, x, y)
        if prev:
            swap2(a, prev[0])
            a(f"buffer_store_dwordx4 {v(prev[0],4)}, v{T}, {prev[1]} sc1")
        prev = (x, dst)
    stamp(k); prof_out(k, KID[k.name]); finish(k)
    return k

def colvec_ops(g, need, dst, idxs, va):
    ops = []
    first = [f"s_lshl_b32 s32, s{g.tn}, 8\nv_lshl_add_u32 v{va}, v1, 2, s32"]
    for n, idx in enumerate(idxs):
        for p in range(KS):
            ops.append((need, first + [f"s_mov_b32 s32, {p*6144*4 + idx*4096}", f"buffer_load_dword v{dst+2*n+p}, v{va}, s[20:23], s32 offen"]))
            first = []
    return ops
def tile_lds_addr(a, dst, t, sbase):
    a(f"""
    v_and_b32 v{dst}, 15, v1
    v_lshlrev_b32 v{dst}, 7, v{dst}
    v_lshrrev_b32 v{t}, 5, v1
    v_and_b32 v{t+1}, 7, v1
    v_xor_b32 v{t}, v{t}, v{t+1}
    v_lshl_add_u32 v{dst}, v{t}, 4, v{dst}
    v_bfe_u32 v{t}, v1, 4, 1
    v_lshl_add_u32 v{dst}, v{t}, 3, v{dst}
    v_add_u32 v{dst}, s{sbase}, v{dst}""")
def row_src(dst, t):
    return f"""v_lshrrev_b32 v{t}, 3, v1
    v_and_b32 v{dst}, 7, v1
    v_xor_b32 v{dst}, v{dst}, v{t}
    v_lshlrev_b32 v{dst}, 4, v{dst}
    v_lshl_add_u32 v{dst}, v{t}, 11, v{dst}"""

def out_gemm(k, lds0, frag, sset=0, vlow=3):
    return Gemm(k, "out", sset, 1024, 2, 4, 8, EXP.get("oR", 6), 4, 4, 99, 999, "panel", WS_O, ["tok"] * 4, 16, 16, 4, 2, 2048,
                (WS_WO3, 512, 0, 256), lds0, vlow, 32, frag, FB=2, WG=2)
def out_phase(k, g, XL, px, fillers=None, keep=None, nearly=0):
    a = k.a; T = 16
    def extra():
        ops = colvec_ops(g, 30, T + 8, [2, 4], T + 6)
        first = [row_src(T + 7, T + 12) + f"""
        s_lshl_b32 s56, s{g.rb0}, 16
        s_lshl_b32 s32, s{g.tn}, 7
        s_add_u32 s56, s56, s32
        s_lshl_b32 s57, s26, 12
        s_add_u32 s57, s57, {XL}"""]
        for i in range(4):
            ops.append((31, first + [f"s_add_u32 m0, s57, {1024*i}", "s_nop 0", f"buffer_load_dwordx4 v{T+7}, s[12:15], s56 offen lds", "s_add_u32 s56, s56, 0x4000"]))
            first = []
        return ops
    srd(a, 12, px, 0, 4 << 20); srd(a, 20, 38, WS_MODP, KS * 6144 * 4)
    def late(emit, W):
        if emit:
            g.r_addr(T); code_srd(k, 68, "out_epi", None, 256); cpf_addr(a, 2)
    g.run(extra, None, late, f"buffer_load_dword v{T+15}, v2, s[68:71], 0 offen")
    fl = fillers() if fillers else []
    budget = [nearly]
    def F(n=1):
        for _ in range(n):
            if fl and budget[0] > 0:
                budget[0] -= 1
                for x in fl.pop(0): a(x)
    G, C, X, P = 64, 80, 96, 128
    F(4)
    srd(a, 12, 38, WS_X2, 4 << 20); srd(a, 16, 38, WS_Y2, 64 * SLAB); srd(a, 20, 38, WS_STAT, 16 * 2048 * 8)
    a(f"v_add_f32 v{T+8}, v{T+8}, v{T+9}\nv_add_f32 v{T+10}, v{T+10}, v{T+11}")
    rbf(a, T + 8); rbf(a, T + 10)
    a(f"v_add_f32 v{T+10}, 1.0, v{T+10}")
    rbf(a, T + 10)
    a(f"""
    s_lshl_b32 s33, s26, 9
    s_add_u32 s33, s33, {XL + 16384}
    v_lshl_add_u32 v{T}, v1, 2, s33
    ds_write_b32 v{T}, v{T+8}
    ds_write_b32 v{T}, v{T+10} offset:256""")
    F(3)
    tile_lds_addr(a, T + 3, T + 1, 57)
    a(f"v_lshrrev_b32 v{T}, 4, v1\nv_lshl_add_u32 v{T}, v{T}, 4, s33")
    for b in range(1, 4): a(f"v_xor_b32 v{T+3+b}, {32*b}, v{T+3}")
    for b in range(4):
        for i in range(2): a(f"ds_read_b64 {v(P+4*b+2*i,2)}, v{T+3+b} offset:{2048*i}")
    a("s_waitcnt lgkmcnt(8)")
    for b in range(4): a(f"ds_read_b128 {v(G+4*b,4)}, v{T} offset:{64*b}")
    for b in range(4): a(f"ds_read_b128 {v(C+4*b,4)}, v{T} offset:{256+64*b}")
    F(4)
    piece_slab(a, T + 2, g.rb0, 0, T + 8)
    a(f"""
    v_lshlrev_b32 v{T+1}, 4, v1
    s_lshl_b32 s34, s{g.rb0}, 4
    s_add_u32 s34, s34, s{g.tn}
    s_lshl_b32 s34, s34, 12
    s_mul_i32 s35, s{g.tn}, {4*SLAB}
    s_waitcnt lgkmcnt(8)""")
    unpack(a, X, P, 16)
    a("s_waitcnt lgkmcnt(4)")
    for b in range(4):
        for i in range(2):
            for e in range(4): a(f"v_fmac_f32 v{X+8*b+4*i+e}, v{G+4*b+e}, v{g.acc(b,i)+e}")
        for e in range(4): a(f"v_cvt_pk_bf16_f32 v{P+4*b+e}, v{X+8*b+2*e}, v{X+8*b+2*e+1}")
        if keep is None: a(f"buffer_store_dwordx4 {v(P+4*b,4)}, v{T+1}, s[12:15], s34 offen offset:{1024*b} sc1")
    unpack(a, X, P, 16)
    a("s_waitcnt lgkmcnt(0)")
    Y = 144
    for b in range(5):
        if b < 4:
            for i in range(2):
                for e in range(4): a(f"v_mul_f32 v{g.acc(b,i)+e}, v{C+4*b+e}, v{X+8*b+4*i+e}")
            pack_swap(a, Y + 4 * b, g.acc(b, 0), g.acc(b, 1))
        if b:
            swap2(a, Y + 4 * (b - 1))
            a(f"buffer_store_dwordx4 {v(Y+4*(b-1),4)}, v{T+2}, s[16:19], s35 offen sc1\ns_add_u32 s35, s35, {SLAB}")
    for i in range(2):
        r = [X + 8 * b + 4 * i + e for b in range(4) for e in range(4)]
        a(f"v_add_f32 v{T+8+2*i}, v{r[0]}, v{r[1]}")
        for x in r[2:]: a(f"v_add_f32 v{T+8+2*i}, v{T+8+2*i}, v{x}")
    allred4(a, [T + 8, T + 10], T + 12)
    a(f"v_mul_f32 v{T+12}, {fx(1/64)}, v{T+8}\nv_mul_f32 v{T+13}, {fx(1/64)}, v{T+10}")
    for i in range(2):
        r = [X + 8 * b + 4 * i + e for b in range(4) for e in range(4)]
        for x in r: a(f"v_sub_f32 v{x}, v{x}, v{T+12+i}")
        a(f"v_mul_f32 v{T+9+2*i}, v{r[0]}, v{r[0]}")
        for x in r[1:]: a(f"v_fmac_f32 v{T+9+2*i}, v{x}, v{x}")
    allred4(a, [T + 9, T + 11], T + 12)
    a(f"""
    v_cmp_lt_u32 vcc, 15, v1
    v_lshlrev_b32 v{T+1}, 3, v1
    s_lshl_b32 s32, s{g.tn}, 14
    s_lshl_b32 s33, s{g.rb0}, 8
    s_add_u32 s32, s32, s33
    v_cndmask_b32 v{T+8}, v{T+8}, v{T+10}, vcc
    v_cndmask_b32 v{T+9}, v{T+9}, v{T+11}, vcc
    s_mov_b32 exec_hi, 0
    buffer_store_dwordx2 {v(T+8,2)}, v{T+1}, s[20:23], s32 offen sc1
    s_mov_b32 exec_hi, -1""")
    if keep is not None:
        for i in range(16): a(f"v_accvgpr_write_b32 a{keep+i}, v{P+i}")
    return fl

def k_out():
    k = Kernel("out_kernel", 256, 256, 8192 * EXP.get("oR", 6) + 16384 + 2048, 256); a = k.a
    g = out_gemm(k, 0, ("v", 160))
    assert g.fend <= 256
    head(k, [(60, P_WO), (62, P_X)])
    g.tile(); g.b_addr(16); g.a_addr(16)
    a("s_waitcnt lgkmcnt(0)")
    g.a_srd(); g.b_srd(60)
    out_phase(k, g, 8192 * g.R, 62)
    stamp(k); prof_out(k, KID[k.name]); finish(k)
    return k

def down_gemm(k, lds0, frag, R, sset=0, vlow=3, sc1=False, acc0=32):
    return Gemm(k, "down", sset, 3584, 2, 4, 8, R, 4, 4, 99, 999, "panel", WS_ACT, ["tok"] * 4, 16, 16, 4, 2, 2048,
                (WS_WD3, 512, 0, 256), lds0, vlow, acc0, frag, FB=2, WG=2, sc1=sc1)
def down_gemm2(k, frag, sset, vlow):
    return Gemm(k, "down", sset, 1792, 2, 8, EXP.get("dDA", 8), 7, 4, 4, 99, 999, "panel", WS_ACT, ["tok"] * 8, 16, 16, 4, 2, 2048,
                (WS_WD4, 1024, 0, 0), 0, vlow, 32, frag, FB=EXP.get("dFB", 1), WG=EXP.get("dWG", 2), sc1=True, split=True)
def down_phase(k, g, XL, pout, keep=None, gate=None):
    a = k.a; T = 16; P, G, X = 96, 112, 128
    sc = " sc1" if g.sc1 else ""
    def extra():
        ops = colvec_ops(g, 30, T + 8, [5], T + 6)
        if keep is not None: return ops
        first = [f"v_lshlrev_b32 v{T+7}, 4, v1\ns_lshl_b32 s56, s{g.rb0}, 4\ns_add_u32 s56, s56, s{g.tn}\ns_lshl_b32 s56, s56, 12"]
        for b in range(4):
            ops.append((31, first + [f"buffer_load_dwordx4 {v(P+4*b,4)}, v{T+7}, s[12:15], s56 offen offset:{1024*b}{sc}"]))
            first = []
        return ops
    if keep is None: srd(a, 12, 38, WS_X2, 4 << 20)
    srd(a, 20, 38, WS_MODP, KS * 6144 * 4)
    def late(emit, W):
        if emit:
            g.r_addr(T); code_srd(k, 68, "down_epi", None, 256); cpf_addr(a, 2)
    g.run(extra, None, late, f"buffer_load_dword v{T+15}, v2, s[68:71], 0 offen", gate)
    if g.split:
        srd(a, 16, 38, WS_EX, 4 << 20)
        a(f"""
        s_lshl_b32 s33, s{g.rb0}, 4
        s_add_u32 s33, s33, s{g.tn}
        s_lshl_b32 s58, s33, 12
        s_xor_b32 s34, s58, 0x1000
        v_lshlrev_b32 v{T+11}, 4, v1""")
        for n in range(4):
            c = g.acc(4 + n, 0)
            for e in range(4): a(f"v_cvt_pk_bf16_f32 v{c+e}, v{c+2*e}, v{c+2*e+1}")
            if EXP.get("extag"):
                for e in range(4): a(f"v_min_u32 v{c+e}, -2, v{c+e}")
            a(f"buffer_store_dwordx4 {v(c,4)}, v{T+11}, s[16:19], s34 offen offset:{1024*n} sc1")
    srd(a, 20, pout, 0, 4 << 20)
    a(f"v_add_f32 v{T+8}, v{T+8}, v{T+9}")
    rbf(a, T + 8)
    a(f"""
    s_lshl_b32 s33, s26, 8
    s_add_u32 s33, s33, {XL + 16384}
    v_lshl_add_u32 v{T}, v1, 2, s33
    ds_write_b32 v{T}, v{T+8}
    s_lshl_b32 s57, s26, 12
    s_add_u32 s57, s57, {XL}
    v_lshrrev_b32 v{T}, 4, v1
    v_lshl_add_u32 v{T}, v{T}, 4, s33""")
    tile_lds_addr(a, T + 3, T + 1, 57)
    a("s_waitcnt lgkmcnt(0)")
    for b in range(4): a(f"ds_read_b128 {v(G+4*b,4)}, v{T} offset:{64*b}")
    for b in range(1, 4): a(f"v_xor_b32 v{T+3+b}, {32*b}, v{T+3}")
    if keep is not None:
        for i in range(16): a(f"v_accvgpr_read_b32 v{P+i}, a{keep+i}")
    unpack(a, X, P, 16)
    a(row_src(T + 9, T + 8))
    a(f"""
    v_lshl_add_u32 v{T+10}, v1, 4, s57
    s_lshl_b32 s33, s{g.rb0}, 16
    s_lshl_b32 s32, s{g.tn}, 7
    s_add_u32 s33, s33, s32
    s_waitcnt lgkmcnt(0)""")
    if g.split and not EXP.get("extag"):
        a(f"""
        s_lshr_b32 s59, s58, 5
        s_add_u32 s59, s59, {512*128}
        s_xor_b32 s56, s59, 128
        v_mov_b32 v{T+12}, 1
        v_mov_b32 v{T+13}, 0
        s_mov_b64 exec, 1
        s_waitcnt vmcnt(0)
        buffer_store_dword v{T+12}, v{T+13}, s[12:15], s59 offen sc1
        s_mov_b64 exec, -1""")
        stamp(k)
        a("s_branch ex_first\nex_poll:")
        if EXP.get("exsl", 2): a(f"s_sleep {EXP.get('exsl', 2)}")
        a(f"""
ex_first:
        buffer_load_dword v{T+14}, v{T+13}, s[12:15], s56 offen sc1
        s_waitcnt vmcnt(0)
        v_cmp_eq_u32 vcc, 1, v{T+14}
        s_cbranch_vccz ex_poll""")
        for n in range(4): a(f"buffer_load_dwordx4 {v(160+4*n,4)}, v{T+11}, s[16:19], s58 offen offset:{1024*n} sc1")
    elif g.split:
        stamp(k)
        a("s_branch ex_first\nex_poll:")
        if EXP.get("exsl", 2): a(f"s_sleep {EXP.get('exsl', 2)}")
        a("ex_first:")
        for n in range(4): a(f"buffer_load_dwordx4 {v(160+4*n,4)}, v{T+11}, s[16:19], s58 offen offset:{1024*n} sc1")
        a(f"s_waitcnt vmcnt(0)\nv_max3_u32 v{T+12}, v160, v161, v162")
        for n in range(163, 175, 2): a(f"v_max3_u32 v{T+12}, v{n}, v{n+1}, v{T+12}")
        a(f"v_max_u32 v{T+12}, v175, v{T+12}\nv_cmp_eq_u32 vcc, -1, v{T+12}\ns_cbranch_vccnz ex_poll")
    for b in range(4):
        if g.split:
            a(f"s_waitcnt vmcnt({3-b})")
            unpack(a, g.acc(4 + b, 0), 160 + 4 * b, 4)
            for e in range(8): a(f"v_add_f32 v{g.acc(b,0)+e}, v{g.acc(b,0)+e}, v{g.acc(4+b,0)+e}")
        for i in range(2):
            for e in range(4): a(f"v_fmac_f32 v{X+8*b+4*i+e}, v{G+4*b+e}, v{g.acc(b,i)+e}")
        for e in range(4): a(f"v_cvt_pk_bf16_f32 v{P+4*b+e}, v{X+8*b+2*e}, v{X+8*b+2*e+1}")
        for i in range(2): a(f"ds_write_b64 v{T+3+b}, {v(P+4*b+2*i,2)} offset:{2048*i}")
    a("s_waitcnt lgkmcnt(0)")
    for i in range(4): a(f"ds_read_b128 {v(G+4*i,4)}, v{T+10} offset:{1024*i}")
    for i in range(4):
        a(f"s_waitcnt lgkmcnt({3-i})\nbuffer_store_dwordx4 {v(G+4*i,4)}, v{T+9}, s[20:23], s33 offen sc1\ns_add_u32 s33, s33, 0x4000")

def k_down():
    R = EXP.get("dR", 6)
    k = Kernel("down_kernel", 256, 256, 8192 * R + 16384 + 1024, 256); a = k.a
    g = down_gemm(k, 0, ("v", 160), R)
    head(k, [(60, P_WD), (62, P_OUT)])
    g.tile(); g.b_addr(16); g.a_addr(16)
    a("s_waitcnt lgkmcnt(0)")
    g.a_srd(); g.b_srd(60)
    down_phase(k, g, 8192 * R, 62)
    stamp(k); prof_out(k, KID[k.name]); finish(k)
    return k

def gu_gemm(k, lds0, sset=0, vlow=3, sc1=False):
    return Gemm(k, "gu", sset, 1024, 4, 14, EXP.get("gDA", 4), EXP.get("gR", 4), 2, EXP.get("gPEEL", 4), EXP.get("gCAP", 13), EXP.get("gINIT", 15),
                "gu", WS_Y2, ["tok"] * 14, 8, 32, 2, 4, 7168, None, lds0, vlow, 32, ("a", 0), WG=EXP.get("gWG", 7), sc1=sc1)
class Rec:
    def __init__(self): self.l = []
    def __call__(self, x): self.l += [t.strip() for t in x.split("\n") if t.strip()]

def gu_phase(k, g, XL, gate=None, POST=0, post_ops=None, stash=None):
    a = k.a; T = 16; XA = g.fend
    sc = " sc1" if g.sc1 else ""
    def extra():
        ops = []
        first = [f"""v_and_b32 v{T+6}, 15, v1
        v_lshlrev_b32 v{T+6}, 3, v{T+6}
        v_lshrrev_b32 v{T+7}, 4, v1
        v_lshl_add_u32 v{T+6}, v{T+7}, 16, v{T+6}
        s_lshl_b32 s56, s{g.rb0}, 8"""]
        for n in range(4):
            for i in range(4):
                ops.append((9, first + [f"buffer_load_dwordx2 {a_(XA+8*i+2*n,2)}, v{T+6}, s[16:19], s56 offen offset:{128*i}{sc}"] + (["s_add_u32 s56, s56, 0x4000"] if i == 3 else [])))
                first = []
        first = [f"""v_cmp_lt_u32 vcc, 111, v0
        v_mov_b32 v{T+7}, {(3584-112)*4}
        v_cndmask_b32 v{T+7}, 0, v{T+7}, vcc
        v_lshl_add_u32 v{T+7}, v0, 2, v{T+7}
        s_mul_i32 s57, s{g.tn}, 448"""]
        for i in range(4):
            ops.append((9.5, first + [f"buffer_load_dword a{XA+32+i}, v{T+7}, s[20:23], s57 offen{sc}", f"s_add_u32 s57, s57, {7168*4}"]))
            first = []
        return ops
    srd(a, 16, 38, WS_STAT, 16 * 2048 * 8); srd(a, 20, 38, WS_UV, KS * 2 * 7168 * 4)
    def late(emit, W):
        if emit:
            g.r_addr(T); code_srd(k, 68, "gu_epi", None, 256); cpf_addr(a, 2)
    timed = []
    def win(lo, hi, L):
        for x in L:
            x, tag = x if isinstance(x, tuple) else (x, ("L", ("Z",)) if x.startswith("ds_") else None)
            timed.append((x, tag, lo, hi))
    r = Rec()
    for i in range(4): r(f"v_accvgpr_read_b32 v{16+i}, a{XA+32+i}")
    r(f"""
    v_add_f32 v16, v16, v18
    v_add_f32 v17, v17, v19
    v_lshlrev_b32 v18, 2, v0
    v_add_u32 v18, {XL}, v18
    ds_write_b32 v18, v16
    ds_write_b32 v18, v17 offset:1024""")
    for i in range(4):
        D = 24 + 2 * i
        for n in range(8): r(f"v_accvgpr_read_b32 v{16+n}, a{XA+8*i+n}")
        r(f"v_add_f32 v{D}, v16, v18\nv_add_f32 v{D+1}, v17, v19")
        for n in (2, 3): r(f"v_add_f32 v{D}, v{D}, v{16+2*n}\nv_add_f32 v{D+1}, v{D+1}, v{17+2*n}")
        allred4(r, [D], 17)
        r(f"v_mul_f32 v17, {fx(1/16)}, v{D}")
        for n in range(4): r(f"v_sub_f32 v{16+2*n}, v{16+2*n}, v17")
        r("v_mul_f32 v17, v16, v16")
        for n in range(1, 4): r(f"v_fmac_f32 v17, v{16+2*n}, v{16+2*n}")
        r(f"v_fmac_f32 v{D+1}, {fx(1/64)}, v17")
        allred4(r, [D + 1], 17)
        r(f"""
        v_mov_b32 v17, {fx(1e-5)}
        v_fmac_f32 v17, {fx(1/1024)}, v{D+1}
        v_mul_f32 v{D}, {fx(-1/1024)}, v{D}
        v_sqrt_f32 v{D+1}, v17""")
    r(f"v_lshrrev_b32 v0, 4, v1\nv_lshlrev_b32 v0, 4, v0\nv_add_u32 v0, {XL}, v0")
    T0 = 16
    win(10 * 56, T0 * 56 - 10, [("W", ("vm", "X", {("X",)}))] + r.l)
    for j in range(14):
        g0 = (T0 + j) * 56 + 4 * (j + 3); off = 64 * (j // 2) + 448 * (j % 2)
        win(g0 - 19, g0 - 12, [(f"ds_read_b128 v[16:19], v0 offset:{off}", ("L", ("U", j))), (f"ds_read_b128 v[20:23], v0 offset:{off+1024}", ("L", ("U", j)))])
        if stash and j == 10:
            assert stash[3] * 56 <= g0 - 11 < (stash[3] + 1) * 56 - 8
            win(g0 - 11, g0 - 2, [f"v_accvgpr_read_b32 v{stash[1]+n}, a{stash[0]+n}" for n in range(stash[2])])
        win(g0, g0 + 40, [("W", ("lg", "U", {("U", j)}))] + [f"v_fmac_f32 v{g.acc(j,i)+e}, v{24+2*i+w}, v{16+4*w+e}" for w in range(2) for i in range(4) for e in range(4)])
    r = Rec()
    for i in range(4): r(f"v_rcp_f32 v{24+2*i}, v{25+2*i}")
    piece_slab(r, 12, g.rb0, 0, 14); piece_slab(r, 13, g.rb0, 1, 14)
    c0 = -2 * math.sqrt(2 / math.pi) * LOG2E; c1 = c0 * 0.044715
    r(f"s_mul_i32 s58, s{g.tn}, {7*SLAB}\ns_mov_b32 s24, {fx(c1)}\ns_mov_b32 s25, {fx(c1)}\nv_mov_b32 v14, {fx(c0)}")
    srd(r, 12, 38, WS_ACT, 224 * SLAB)
    L = []
    for x in r.l:
        if x.startswith("s_addc"): L[-1] += "\n" + x
        else: L.append(x)
    win(30 * 56 + 50, 32 * 56 - 2, L)
    g.run(extra, None, late, f"buffer_load_dword a{XA+36}, v2, s[68:71], 0 offen", gate, POST, post_ops, timed)
    pk = lambda r: v(r, 2)
    for f in range(7):
        cg, cu = g.acc(2 * f, 0), g.acc(2 * f + 1, 0)
        for h_ in ((0, 8) if f == 0 else (0,)):
            E_ = range(h_, h_ + 8, 2) if f == 0 else range(0, 16, 2)
            tmp = g.acc(2 * f - 1, 0) if f else 16 - h_
            for e in E_: a(f"v_pk_mul_f32 {pk(cg+e)}, {pk(cg+e)}, {pk(24+2*(e//4))} op_sel_hi:[1,0]")
            for e in E_: a(f"v_pk_mul_f32 {pk(tmp+e)}, {pk(cg+e)}, {pk(cg+e)}")
            for e in E_: a(f"v_pk_mul_f32 {pk(cu+e)}, {pk(cu+e)}, {pk(cg+e)}")
            for e in E_: a(f"v_pk_fma_f32 {pk(tmp+e)}, {pk(tmp+e)}, s[24:25], v[14:15] op_sel_hi:[1,1,0]")
            for e in E_: a(f"v_pk_mul_f32 {pk(cg+e)}, {pk(tmp+e)}, {pk(cg+e)}")
        for e in range(16): a(f"v_exp_f32 v{cg+e}, v{cg+e}")
        for e in range(0, 16, 2): a(f"v_pk_fma_f32 {pk(cg+e)}, {pk(cg+e)}, {pk(24+2*(e//4))}, {pk(24+2*(e//4))} op_sel:[0,1,1]")
        for e in range(16): a(f"v_rcp_f32 v{cg+e}, v{cg+e}")
        for e in range(0, 16, 2): a(f"v_pk_mul_f32 {pk(cu+e)}, {pk(cg+e)}, {pk(cu+e)}")
        for p_ in range(2): pack_swap(a, cg + 4 * p_, cu + 8 * p_, cu + 8 * p_ + 4)
        for p_ in range(2): swap2(a, cg + 4 * p_)
        for p_ in range(2): a(f"buffer_store_dwordx4 {v(cg+4*p_,4)}, v{12+p_}, s[12:15], s58 offen sc1")
        a(f"s_add_u32 s58, s58, {SLAB}")
    a("v_lshl_add_u32 v0, s26, 6, v1")

def k_gu():
    R = EXP.get("gR", 4)
    k = Kernel("gu_kernel", 256, 256, 28672 * R + 2048, 256, 1); a = k.a
    g = gu_gemm(k, 0); k.na = g.fend + 37
    assert g.vend <= 16
    head(k, [(60, P_WG), (62, P_WU)])
    g.tile(); g.b_addr(16); g.a_addr(16)
    a("s_waitcnt lgkmcnt(0)")
    g.a_srd(); g.b_srd(60, 62)
    g.PEEL = 13
    gu_phase(k, g, 28672 * R, None, 3)
    stamp(k); prof_out(k, KID[k.name]); finish(k)
    return k

def publish(k, tag, s_mine, s_group):
    a = k.a
    srd(a, 12, 38, WS_FLAG, NFLAG * 128)
    a(f"""
    s_lshl_b32 s32, s{s_mine}, 7
    s_lshl_b32 s59, s{s_group}, 7
    v_mov_b32 v30, 1
    v_mov_b32 v31, s32
    s_waitcnt vmcnt(0)
    s_barrier""")
    stamp(k)
    a(f"""
    s_cmp_lg_u32 s26, 0
    s_cbranch_scc1 {tag}_nf
    s_mov_b64 exec, 1
    buffer_store_dword v30, v31, s[12:15], 0 offen sc1
    s_mov_b64 exec, -1
{tag}_nf:""")
def await_flags(k, tag, n=32):
    k.a(f"""
    s_cmp_lg_u32 s26, 0
    s_cbranch_scc1 {tag}_go
    v_and_b32 v30, {n-1}, v1
    v_lshlrev_b32 v30, 7, v30
{tag}_poll:
    buffer_load_dword v31, v30, s[12:15], s59 offen sc1
    s_waitcnt vmcnt(0)
    v_cmp_eq_u32 vcc, 1, v31
    s_cmp_eq_u64 vcc, -1
    s_cbranch_scc0 {tag}_poll
{tag}_go:
    s_waitcnt vmcnt(0)
    s_barrier""")
    stamp(k)

def k_mlp():
    k = Kernel("mlp_kernel", 256, 256, 163840, 256, 1); a = k.a
    oR = EXP.get("oR", 6); OL = 163840 - (8192 * oR + 18432); dR = 14
    go = out_gemm(k, OL, ("a", 0), 0)
    gg = gu_gemm(k, 0, 1, sc1=True)
    SPL = EXP.get("splitk", 1)
    gd = down_gemm2(k, ("a", 0), 0, 26) if SPL else down_gemm(k, 0, ("a", 0), dR, 0, vlow=28, sc1=True, acc0=64)
    gg.PEEL = 13
    KEEP = gg.fend + 38; k.na = KEEP + 20
    assert gd.fend <= KEEP
    head(k, [(60, P_WO), (62, P_X), (64, P_WG), (66, P_WU)])
    go.tile(); go.b_addr(16); go.a_addr(16)
    a("s_waitcnt lgkmcnt(0)")
    go.a_srd(); go.b_srd(60)
    def pre_gu():
        gg.tile(); gg.b_addr(12); gg.b_srd(64, 66)
        return gg.preload(EXP.get("gpl", 2))
    rest = out_phase(k, go, OL + 8192 * oR, 62, pre_gu, KEEP, 7)
    a(f"""
    s_lshl_b32 s56, s{go.tm}, 4
    s_add_u32 s56, s56, s{go.tn}
    s_lshl_b32 s57, s{gg.tm}, 5""")
    load_ptrs(a, [(60, P_WD), (62, P_OUT)])
    publish(k, "h1", 56, 57)
    for grp in rest:
        for x in grp: a(x)
    gg.a_addr(16); gg.a_srd()
    a("s_waitcnt lgkmcnt(0)")
    gd.tile(); gd.b_addr(16); gd.b_srd(60)
    for n in range(gd.ND): a(f"v_accvgpr_write_b32 a{KEEP+16+n}, v{gd.VB+n}")
    gd.VB = 3
    npre = EXP.get("dpl", 6 if SPL else 13); pl = gd.preload(npre)
    S = gg.S
    NIN = EXP.get("dnin", 20)
    lim = (2, 4, 8, 12) if SPL else (2, 6, 10, 14)
    post = [(S - 5 + sum(n >= x for x in lim), grp) for n, grp in enumerate(pl[:NIN])]
    gu_phase(k, gg, 114688, lambda: await_flags(k, "h1"), 3, post, (KEEP + 16, 3, gd.ND, S - 6))
    a(f"""
    s_lshl_b32 s56, s{gg.tm}, 5
    s_add_u32 s56, s56, s{gg.tn}
    s_add_u32 s56, s56, 256
    s_lshr_b32 s57, s{gd.tm}, 1
    s_lshl_b32 s57, s57, 5
    s_add_u32 s57, s57, 256""")
    if SPL: a(f"s_and_b32 s32, s{gd.tn}, 1\ns_lshl_b32 s32, s32, 4\ns_add_u32 s57, s57, s32")
    gd.VR0 = 3 + gd.ND; gd.VR = gd.VR0 + 1; gd.VA = gd.VR + 4
    publish(k, "h2", 56, 57)
    for grp in gd.preload(npre)[NIN:]:
        for x in grp: a(x)
    gd.a_addr(16); gd.a_srd()
    down_phase(k, gd, 116736, 62, KEEP, lambda: await_flags(k, "h2", 16 if SPL else 32))
    if not SPL: stamp(k)
    prof_out(k, KID["out_kernel"]); finish(k)
    return k
KID["mlp_kernel"] = KID["out_kernel"]

def all_kernels():
    g2.QPRE = 1024
    EXP["xsplit"] = 1
    if EXP.get("merge", 1):
        EXP["zflag"] = WS_FLAG
        if EXP.get("splitk", 1): EXP["wd4"] = WS_WD4; EXP["exclr"] = WS_EX if EXP.get("extag") else 0
        g2.ORDER[:] = ["pre_kernel", "qkv_kernel", "attn_kernel", "mlp_kernel"]
        for kk, vv in (("gINIT", 8), ("gCAP", 12)): EXP.setdefault(kk, vv)
        return [g2.k_pre(), k_qkv(), g2.k_attn4(), k_mlp()]
    g2.ORDER[:] = ["pre_kernel", "qkv_kernel", "attn_kernel", "out_kernel", "gu_kernel", "down_kernel"]
    return [g2.k_pre(), k_qkv(), g2.k_attn4(), k_out(), k_gu(), k_down()]

if __name__ == "__main__":
    vb = False
    for x in sys.argv[2:]:
        if x == "prof": g2.PROF = True
        elif x == "verbose": vb = True
        else:
            kk, _, vv = x.partition("="); EXP[kk] = int(vv) if vv else 1
    g2.build(all_kernels(), sys.argv[1] if len(sys.argv) > 1 else "adaLN_cond__mha_block__geglu_ffn__prompt.s", verbose=vb)
```

```python
import sys, math, struct
from asmlib import *

SLAB = 75776
WS_MODP = 0
WS_UV = 64 << 10
WS_STAT = 256 << 10
WS_WQ3 = 1 << 20
WS_WO3 = 5 << 19
WS_WD3 = 3 << 20
WS_H1 = 5 << 20
WS_Q = 10 << 20
WS_KV = 14 << 20
WS_O = 22 << 20
WS_X2 = 27 << 20
WS_Y2 = 32 << 20
WS_ACT = 37 << 20
WS_PROF = 56 << 20
KS = 2
P_X, P_WQKV, P_WO, P_BX, P_WG, P_WU, P_WD, P_C, P_WMOD, P_OUT, P_DBG, P_WS = [8 * i for i in range(12)]
LOG2E = 1.4426950408889634
PROF = False
EXP = {}
KID = {"qkv_kernel": 0, "out_kernel": 1, "gu_kernel": 2, "down_kernel": 3, "attn_kernel": 4}
def f2u(x): return struct.unpack("<I", struct.pack("<f", x))[0]
def fx(x): return hex(f2u(x))

class Kernel:
    def __init__(self, name, grid, block, lds, nv, na=0):
        self.name, self.grid, self.block, self.lds, self.nv, self.na = name, grid, block, lds, nv, na
        self.a = Asm()
    def text(self, report=None):
        body = fix_hazards(merge_waits(self.a.l), report)
        return (f".text\n.globl {self.name}\n.p2align 8\n.type {self.name},@function\n{self.name}:\n" + "\n".join(body) + "\n")
    def desc(self):
        acc = (self.nv + 3) // 4 * 4
        nfv = acc + self.na if self.na else self.nv
        return f""".p2align 6
.amdhsa_kernel {self.name}
  .amdhsa_next_free_vgpr {nfv}
  .amdhsa_next_free_sgpr 102
  .amdhsa_accum_offset {acc}
  .amdhsa_group_segment_fixed_size 0
  .amdhsa_kernarg_size 96
  .amdhsa_user_sgpr_count 2
  .amdhsa_user_sgpr_kernarg_segment_ptr 1
  .amdhsa_system_sgpr_workgroup_id_x 1
  .amdhsa_float_denorm_mode_32 3
  .amdhsa_float_denorm_mode_16_64 3
.end_amdhsa_kernel
"""

def stamp(k, i):
    if PROF: k.a(f"s_memtime {s(64+2*i,2)}\ns_memrealtime {s(74+2*i,2)}\ns_waitcnt lgkmcnt(0)")
def prof_out(k, n, kid, wave_s):
    if not PROF: return
    a = k.a
    a(f"s_waitcnt vmcnt(0)\ns_memtime {s(64+2*n,2)}\ns_memrealtime {s(74+2*n,2)}\ns_load_dwordx2 s[84:85], s[0:1], {P_WS}\ns_waitcnt lgkmcnt(0)")
    a(f"s_add_u32 s84, s84, {WS_PROF + kid*(1<<18)}\ns_addc_u32 s85, s85, 0\ns_mov_b32 s86, {1<<18}\ns_mov_b32 s87, 0x20000")
    a(f"s_lshl_b32 s88, s2, 3\ns_add_u32 s88, s88, s{wave_s}\ns_lshl_b32 s88, s88, 6\nv_mov_b32 v1, 0")
    for i in range(10):
        a(f"v_mov_b32 v0, s{64+2*i}\nbuffer_store_dword v0, v1, s[84:87], s88 offen offset:{4*i}")
def load_ptrs(a, pairs):
    for sreg, off in pairs: a(f"s_load_dwordx2 {s(sreg,2)}, s[0:1], {off}")
def srd(a, d, p, off, size):
    if off: a(f"s_add_u32 s{d}, s{p}, {off}\ns_addc_u32 s{d+1}, s{p+1}, 0")
    else: a(f"s_mov_b32 s{d}, s{p}\ns_mov_b32 s{d+1}, s{p+1}")
    a(f"s_mov_b32 s{d+2}, {size}\ns_mov_b32 s{d+3}, 0x20000")
def guard(k): k.a(f"s_cmp_ge_u32 s2, {k.grid}\ns_cbranch_scc1 {k.name}_end")
def finish(k): k.a(f"{k.name}_end:\ns_endpgm")
def unpack(a, dst, src, n):
    for i in range(n):
        a(f"v_lshlrev_b32 v{dst+2*i}, 16, v{src+i}\nv_and_b32 v{dst+2*i+1}, 0xffff0000, v{src+i}")
def rbf(a, x):
    a(f"v_cvt_pk_bf16_f32 v{x}, v{x}, v{x}\nv_and_b32 v{x}, 0xffff0000, v{x}")
def phys_line(a, dst, i, t):
    a(f"""
    v_mul_u32_u24 v{t}, 9363, v{i}
    v_lshrrev_b32 v{t}, 16, v{t}
    v_add_u32 v{dst}, v{i}, v{t}
    v_mul_u32_u24 v{t}, 7, v{t}
    v_sub_u32 v{t}, v{i}, v{t}
    v_add_u32 v{t}, 5, v{t}
    v_lshrrev_b32 v{t}, 3, v{t}
    v_add_lshl_u32 v{dst}, v{dst}, v{t}, 7""")
def frag_off(a, dst, srb, lane, t):
    a(f"v_lshrrev_b32 v{t}, 3, v{lane}\nv_lshl_add_u32 v{t}, s{srb}, 3, v{t}")
    phys_line(a, dst, t, t + 1)
    a(f"v_and_b32 v{t}, 7, v{lane}\nv_lshl_add_u32 v{dst}, v{t}, 4, v{dst}")
def tr_lane(a, T, lane, korder, colperm):
    a(f"""
    v_lshrrev_b32 v{T}, 5, v{lane}
    v_bfe_u32 v{T+1}, v{lane}, 4, 1
    v_bfe_u32 v{T+2}, v{lane}, 2, 2
    v_and_b32 v{T+3}, 3, v{lane}""")
    if colperm:
        a(f"v_lshrrev_b32 v{T+4}, 1, v{T+3}\nv_and_b32 v{T+3}, 1, v{T+3}\nv_lshl_add_u32 v{T+3}, v{T+3}, 1, v{T+4}")
    a(f"v_lshl_add_u32 v{T+4}, v{T}, {2 if korder=='split' else 3}, v{T+2}")
def panel_rd(a, T, e, o):
    a(f"""
    v_lshlrev_b32 v{T+4}, 7, v{T+4}
    v_lshl_add_u32 v{T+4}, v{T+1}, 5, v{T+4}
    v_lshl_add_u32 v{T+4}, v{T+3}, 3, v{T+4}
    v_lshrrev_b32 v{T+5}, 1, v{T+2}
    v_lshlrev_b32 v{T+5}, 6, v{T+5}
    v_add_u32 v{e}, v{T+4}, v{T+5}
    v_sub_u32 v{o}, v{T+4}, v{T+5}
    v_add_u32 v{o}, 64, v{o}""")
def panel_src(a, T, lane):
    a(f"""
    v_lshrrev_b32 v{T}, 3, v{lane}
    v_and_b32 v{T+1}, 7, v{lane}
    v_bfe_u32 v{T+2}, v{lane}, 4, 1
    v_lshlrev_b32 v{T+2}, 2, v{T+2}
    v_xor_b32 v{T+1}, v{T+1}, v{T+2}""")

SK_LDS = 65536 + 2048
def skinny(k, tag, mode, nt, pace=0, flag=False, nw=8, mid=None, post=None):
    a = k.a; NV = 1 if mode == "silu" else 2
    NC = 8 // nw; lg = (NC - 1).bit_length() if NC > 1 else 0
    VX = 100
    a(f"""
    s_lshl_b32 s55, s26, {6+lg}
    s_add_u32 s56, s52, s55""")
    if mode == "silu":
        a("v_add_lshl_u32 v4, v1, s56, 1")
        for c in range(NC): a(f"buffer_load_ushort v{VX+4*c}, v4, s[12:15], 0 offen offset:{128*c}")
    else:
        a("v_add_lshl_u32 v4, v1, s56, 2")
        for i, (p, idx) in enumerate([(0, 4), (1, 4), (0, 3), (1, 3)]):
            a(f"s_mov_b32 s57, {p*6144*4 + idx*4096}")
            for c in range(NC): a(f"buffer_load_dword v{VX+4*c+i}, v4, s[12:15], s57 offen offset:{256*c}")
    panel_src(a, 5, 1)
    a(f"""
    v_add_u32 v5, s55, v5
    v_mul_lo_u32 v5, v5, s51
    v_lshl_add_u32 v5, v6, 4, v5
    s_lshl_b32 s57, s26, {13+lg}
    s_lshl_b32 s59, s51, 3""")
    def dmas():
        for g in range(8 * NC):
            a(f"s_add_u32 m0, s57, {1024*g}\ns_nop 0\nbuffer_load_dwordx4 v5, s[8:11], s50 offen{nt} lds\ns_add_u32 s50, s50, s59")
            if pace and g < 8 * NC - 1: a(f"s_waitcnt vmcnt({pace-1})")
    if not mid: dmas()
    if post: post()
    tr_lane(a, 12, 1, "contig", False)
    panel_rd(a, 12, 18, 19)
    a(f"""
    v_add_u32 v18, s57, v18
    v_add_u32 v19, s57, v19
    s_lshl_b32 s58, s26, {8+lg}
    s_add_u32 s58, s58, 0x10000
    v_lshl_add_u32 v6, v1, 1, s58
    v_and_b32 v7, 31, v1
    v_lshrrev_b32 v12, 5, v1
    v_lshlrev_b32 v12, 4, v12
    v_lshl_add_u32 v12, v7, 7, v12
    v_add_u32 v12, s58, v12
    s_waitcnt vmcnt({0 if mid else 8*NC + (1 if post else 0)})""")
    for c in range(NC):
        x = VX + 4 * c
        if mode == "silu":
            a(f"""
            v_lshlrev_b32 v{x}, 16, v{x}
            v_mul_f32 v{x+1}, {fx(-LOG2E)}, v{x}
            v_exp_f32 v{x+1}, v{x+1}
            v_add_f32 v{x+1}, 1.0, v{x+1}
            v_rcp_f32 v{x+1}, v{x+1}
            v_mul_f32 v{x}, v{x}, v{x+1}
            v_cvt_pk_bf16_f32 v{x}, v{x}, v{x}
            ds_write_b16 v6, v{x} offset:{256*c}""")
        else:
            a(f"v_add_f32 v{x}, v{x}, v{x+1}\nv_add_f32 v{x+2}, v{x+2}, v{x+3}")
            rbf(a, x)
            a(f"v_add_f32 v{x}, 1.0, v{x}\nv_cvt_pk_bf16_f32 v{x}, v{x}, v{x}\nv_cvt_pk_bf16_f32 v{x+2}, v{x+2}, v{x+2}")
            a(f"ds_write_b16 v6, v{x} offset:{256*c}\nds_write_b16 v6, v{x+2} offset:{256*c+128}")
    for i in range(16): a(f"v_mov_b32 v{20+i}, 0")
    if mid:
        dmas(); mid()
    a(f"v_cmp_gt_u32 vcc, {NV}, v7\ns_waitcnt vmcnt({1 if post else 0}) lgkmcnt(0)")
    for c in range(NC):
        a("s_and_saveexec_b64 s[60:61], vcc")
        for sub in range(4): a(f"ds_read_b128 {v(20+4*sub,4)}, v12 offset:{32*sub+256*c}")
        a("s_mov_b64 exec, s[60:61]")
        for sub in range(4):
            for j in range(2):
                for r_ in range(2):
                    a(f"ds_read_b64_tr_b16 {v(36+8*sub+4*j+2*r_,2)}, v{18+j} offset:{128*(16*sub+4*r_)+8192*c}")
        for sub in range(4):
            a(f"s_waitcnt lgkmcnt({12-4*sub})")
            for j in range(2):
                d = v(68 + 16 * j, 16)
                a(f"v_mfma_f32_32x32x16_bf16 {d}, {v(20+4*sub,4)}, {v(36+8*sub+4*j,4)}, {d if (sub or c) else 0}")
    a(f"""
    v_lshl_add_u32 v6, v1, 2, s57
    v_cmp_gt_u32 vcc, 32, v1
    s_and_saveexec_b64 s[60:61], vcc""")
    for j in range(2):
        for q in range(NV): a(f"ds_write_b32 v6, v{68+16*j+q} offset:{256*q+128*j}")
    a(f"""
    s_mov_b64 exec, s[60:61]
    s_waitcnt lgkmcnt(0)
    s_barrier
    s_cmp_ge_u32 s26, {NV}
    s_cbranch_scc1 {k.name}_end
    s_lshl_b32 s57, s26, 8
    v_lshl_add_u32 v6, v1, 2, s57""")
    for w in range(nw): a(f"ds_read_b32 v{8+w}, v6 offset:{8192*NC*w}")
    a(f"s_mul_i32 s57, s26, s54\ns_add_u32 s53, s53, s57\nv_lshlrev_b32 v6, 2, v1\ns_waitcnt lgkmcnt(0)")
    for w in (4, 2, 1):
        if w < nw:
            for i in range(w): a(f"v_add_f32 v{8+i}, v{8+i}, v{8+w+i}")
    if not flag:
        a("buffer_store_dword v8, v6, s[16:19], s53 offen\ns_endpgm")
        return
    a("""
    buffer_store_dword v8, v6, s[16:19], s53 offen sc1
    s_lshl_b32 s57, s2, 2
    v_mov_b32 v9, 1
    v_mov_b32 v6, s57
    s_mov_b64 exec, 1
    s_waitcnt vmcnt(0)
    buffer_store_dword v9, v6, s[20:23], 0 offen sc1
    s_endpgm""")

def prefetch(a, gid, ps, nbytes, start, vt, srd_s=20):
    srd(a, srd_s, ps, 0, nbytes)
    a(f"""
    v_subrev_u32 v{vt}, {start}, v{gid}
    v_cmp_gt_u32 vcc, {nbytes//128}, v{vt}
    v_lshlrev_b32 v{vt}, 7, v{vt}
    v_mov_b32 v{vt+1}, 0x80000000
    v_cndmask_b32 v{vt}, v{vt+1}, v{vt}, vcc
    buffer_load_dword v{vt+1}, v{vt}, {s(srd_s,4)}, 0 offen""")

def strip_copy_issue(a, gid, ps, K, ldb, npan, start, vt, srd_s=20, col=384, dsh=8, doff=0):
    srd(a, srd_s, ps, 0, K * ldb)
    n = 2 * npan
    a(f"""
    v_subrev_u32 v{vt}, {start}, v{gid}
    v_cmp_gt_u32 vcc, {K*n*8}, v{vt}
    v_and_b32 v{vt+1}, 7, v{vt}
    v_lshrrev_b32 v{vt}, 3, v{vt}""")
    if npan == 1:
        a(f"v_lshrrev_b32 v{vt+2}, 1, v{vt}\nv_and_b32 v{vt+3}, 1, v{vt}\nv_lshlrev_b32 v{vt+3}, 10, v{vt+3}")
    else:
        a(f"""
        v_mul_u32_u24 v{vt+2}, 10923, v{vt}
        v_lshrrev_b32 v{vt+2}, 16, v{vt+2}
        v_mul_u32_u24 v{vt+3}, 6, v{vt+2}
        v_sub_u32 v{vt+3}, v{vt}, v{vt+3}
        v_lshlrev_b32 v{vt+4}, 11, v{vt+3}
        v_add_u32 v{vt+3}, 5, v{vt+3}
        v_lshrrev_b32 v{vt+3}, 3, v{vt+3}
        v_mul_u32_u24 v{vt+3}, {6144-1024}, v{vt+3}
        v_sub_u32 v{vt+3}, v{vt+4}, v{vt+3}""")
    a(f"""
    v_mul_u32_u24 v{vt+2}, {ldb}, v{vt+2}
    v_add3_u32 v{vt+2}, v{vt+2}, v{vt+3}, 0
    v_lshl_add_u32 v{vt+2}, v{vt+1}, 4, v{vt+2}
    v_add_u32 v{vt+2}, {col}, v{vt+2}
    v_mov_b32 v{vt+3}, 0x80000000
    v_cndmask_b32 v{vt+2}, v{vt+3}, v{vt+2}, vcc
    v_lshlrev_b32 v{vt}, {dsh}, v{vt}
    v_lshl_add_u32 v{vt}, v{vt+1}, 4, v{vt}
    v_add_u32 v{vt}, {doff}, v{vt}
    v_cndmask_b32 v{vt}, v{vt+3}, v{vt}, vcc
    buffer_load_dwordx4 {v(vt+4,4)}, v{vt+2}, {s(srd_s,4)}, 0 offen""")
def strip_copy_store(a, ws_s, off, size, vt, srd_s=20):
    srd(a, srd_s, ws_s, off, size)
    a(f"buffer_store_dwordx4 {v(vt+4,4)}, v{vt}, {s(srd_s,4)}, 0 offen sc1")

ORDER = []
def code_srd(k, d, start, upto=None, nwg=8):
    if EXP.get("nocpf"): nwg = 0
    i = ORDER.index(k.name)
    end = upto or (ORDER[min(i + 1, len(ORDER) - 1)] + "_end")
    k.npc = getattr(k, "npc", 0) + 1
    lab = f"{k.name}_pc{k.npc}"
    k.a(f"""
    s_getpc_b64 {s(d,2)}
{lab}:
    s_add_u32 s{d}, s{d}, {start}-{lab}
    s_addc_u32 s{d+1}, s{d+1}, 0
    s_mov_b32 s{d+2}, {end}-{start}+4
    s_cmp_lt_u32 s2, {nwg}
    s_cselect_b32 s{d+2}, s{d+2}, 0
    s_mov_b32 s{d+3}, 0x20000""")
def cpf_addr(a, vr):
    a(f"""
    s_lshr_b32 s32, s2, 3
    s_lshl_b32 s32, s32, 2
    s_add_u32 s32, s32, s26
    s_lshl_b32 s32, s32, 9
    v_lshrrev_b32 v{vr}, 2, v1
    v_lshlrev_b32 v{vr}, 20, v{vr}
    v_lshl_add_u32 v{vr}, v1, 7, v{vr}
    v_add_u32 v{vr}, s32, v{vr}""")
def wave_lane(a):
    a("v_lshrrev_b32 v2, 6, v0\nv_and_b32 v1, 63, v0\nv_readfirstlane_b32 s26, v2")

def red32(a, x, t):
    for m in ("quad_perm:[1,0,3,2]", "quad_perm:[2,3,0,1]", "row_half_mirror", "row_mirror"):
        a(f"v_add_f32_dpp v{x}, v{x}, v{x} {m} row_mask:0xf bank_mask:0xf")
    a(f"v_mov_b32 v{t}, v{x}\nv_permlane16_swap_b32 v{x}, v{t}\nv_add_f32 v{x}, v{x}, v{t}")

QPRE = 256
def k_pre():
    GP = EXP.get("gpre", 0)
    NT = EXP.get("tlbwg", 8) if EXP.get("tlb", 0) else 0
    k = Kernel("pre_kernel", (256, 320, 288, 256)[GP] + NT, 512, SK_LDS, 112); a = k.a
    guard(k)
    if NT:
        sh = EXP["tlb"]
        a(f"s_cmp_lt_u32 s2, {k.grid - NT}\ns_cbranch_scc1 pre_main")
        bufs = [(P_WS, 0, 54 << 20), (P_WO, 0, 2 << 20), (P_WG, 0, 1024 * 7168), (P_WU, 0, 1024 * 7168), (P_WD, 0, 3584 * 2048), (P_OUT, 0, 4 << 20),
                (P_WQKV, 0, 1024 * 6144), (P_WMOD, 0, 1024 * 12288), (P_X, 0, 4 << 20)]
        for i, (p, o, n) in enumerate(bufs): a(f"s_load_dwordx2 {s(40+2*i,2)}, s[0:1], {p}")
        a(f"v_lshlrev_b32 v1, {sh}, v0\ns_waitcnt lgkmcnt(0)")
        for i, (p, o, n) in enumerate(bufs):
            srd(a, 4, 40 + 2 * i, 0, n)
            for c in range(0, n, 512 << sh):
                a(f"s_mov_b32 s8, {c}\nbuffer_load_dword v2, v1, s[4:7], s8 offen")
        a("s_endpgm\npre_main:")
    code_srd(k, 88, "pre_kernel_top", ORDER[-1] + "_end", 256)
    a("""
    s_lshr_b32 s3, s2, 3
    s_mul_i32 s3, s3, 3072
    v_lshlrev_b32 v108, 7, v0
    v_mov_b32 v109, 0x80000000
    v_cmp_gt_u32 vcc, 24, v0
    v_cndmask_b32 v108, v109, v108, vcc
    buffer_load_dword v109, v108, s[88:91], s3 offen
pre_kernel_top:""")
    load_ptrs(a, [(40, P_C), (42, P_WMOD), (44, P_WS), (46, P_WQKV), (48, P_X), (62, P_DBG), (64, P_WO)])
    wave_lane(a)
    if GP == 2:
        a(f"""
        s_mov_b32 s27, s2
        s_cmp_lt_u32 s2, 128
        s_cbranch_scc1 pre_side
        s_sub_u32 s35, s2, 128
        s_and_b32 s32, s35, 1
        s_lshr_b32 s33, s35, 1
        s_cmp_ge_u32 s33, 32
        s_cselect_b32 s34, 16, 0
        s_add_u32 s33, s33, s34""")
    else:
        a(f"""
        s_sub_u32 s27, s2, 128
        s_cmp_lt_u32 s27, 128
        s_cbranch_scc1 pre_side
        s_and_b32 s32, s2, 1
        s_lshr_b32 s33, s2, 1
        s_cmp_ge_u32 s33, 32
        s_cselect_b32 s34, 16, 0
        s_add_u32 s33, s33, s34
        s_cmp_ge_u32 s33, 160
        s_mov_b32 s34, 112
        s_cselect_b32 s34, 80, s34
        s_cmp_ge_u32 s33, 144
        s_cselect_b32 s34, s34, 0
        s_sub_u32 s33, s33, s34""")
    a(f"""
    s_lshl_b32 s52, s32, 9
    s_mov_b32 s51, 12288
    s_mul_i32 s50, s52, s51
    s_lshl_b32 s34, s33, 7
    s_add_u32 s50, s50, s34
    s_mul_i32 s53, s32, {6144*4}
    s_lshl_b32 s34, s33, 8
    s_add_u32 s53, s53, s34
    s_mov_b32 s54, 0
    s_waitcnt lgkmcnt(0)""")
    srd(a, 8, 42, 0, 1024 * 12288); srd(a, 12, 40, 0, 2048); srd(a, 16, 44, WS_MODP, KS * 6144 * 4)
    F2 = EXP.get("fuse1", 1) == 2
    if F2: srd(a, 20, 62, 0, 256)
    NS = EXP.get("pns", 160 if GP == 2 else 0); NL = -(-(49152 - 128 * NS) // (96 if GP == 2 else 128))
    def pf_share():
        if GP == 3: a("s_mov_b32 s35, s2")
        srd(a, 20, 46, 0, 128 * NS * 128)
        a(f"""
        s_mul_i32 s35, s35, {NS*128}
        v_lshlrev_b32 v110, 7, v0
        v_mov_b32 v111, 0x80000000
        v_cmp_gt_u32 vcc, {NS}, v0
        v_cndmask_b32 v110, v111, v110, vcc
        buffer_load_dword v111, v110, s[20:23], s35 offen""")
    skinny(k, "m", "silu", " nt" if EXP.get("mnt", 1) else "", flag=F2, post=pf_share if GP >= 2 and NS else None)
    a("""
pre_side:
    s_lshl_b32 s32, s27, 9
    v_add_u32 v3, s32, v0""")
    if not EXP.get("fuse1", 1):
        a("s_waitcnt lgkmcnt(0)")
        strip_copy_issue(a, 3, 46, 1024, 6144, 3, 0, 8)
        prefetch(a, 3, 46, 1024 * 6144, 65536 - 49152, 20)
        prefetch(a, 3, 48, 2048 * 2048, 0, 24)
        a("s_waitcnt vmcnt(2)")
        strip_copy_store(a, 44, WS_WQ3, 1024 * 1536, 8)
        finish(k)
        return k
    a(f"""
    v_lshrrev_b32 v1, 5, v0
    v_and_b32 v2, 31, v0               ; chunk
    s_lshl_b32 s24, s27, 4
    v_add_u32 v4, s24, v1
    v_lshlrev_b32 v4, 11, v4
    v_lshl_add_u32 v4, v2, 4, v4
    s_waitcnt lgkmcnt(0)""")
    srd(a, 4, 48, 0, 2048 * 2048); srd(a, 12, 44, WS_H1, 64 * SLAB)
    for i in range(4): a(f"buffer_load_dwordx4 {v(8+4*i,4)}, v4, s[4:7], 0 offen offset:{512*i} nt")
    if EXP.get("zflag"):
        srd(a, 20, 44, EXP["zflag"], 2048 * 128)
        a("""
        v_lshrrev_b32 v77, 7, v0
        v_lshlrev_b32 v77, 20, v77
        v_lshl_add_u32 v76, v0, 4, v77
        s_lshl_b32 s35, s27, 11
        v_mov_b32 v78, 0
        v_mov_b32 v79, 0
        v_mov_b32 v80, 0
        v_mov_b32 v81, 0
        buffer_store_dwordx4 v[78:81], v76, s[20:23], s35 offen sc1""")
    EARLY = (not F2) or EXP.get("pfearly", 1)
    if EARLY:
        if GP == 2:
            strip_copy_issue(a, 3, 64, 1024, 2048, 1, 0, 84)
            strip_copy_issue(a, 3, 46, 1024, 6144, 3, 16384, 64)
            a(f"""
            s_sub_u32 s35, s27, 32
            s_cselect_b32 s22, 0, s22
            s_mul_i32 s35, s35, {NL*128}
            s_add_u32 s35, s35, {128*NS*128}
            s_cmp_lt_u32 s27, 32
            s_cselect_b32 s35, 0, s35
            v_lshlrev_b32 v72, 7, v0
            v_mov_b32 v73, 0x80000000
            v_cmp_gt_u32 vcc, {NL}, v0
            v_cndmask_b32 v72, v73, v72, vcc
            buffer_load_dword v73, v72, s[20:23], s35 offen""")
        elif GP == 3:
            strip_copy_issue(a, 3, 64, 1024, 2048, 1, 49152, 84)
            strip_copy_issue(a, 3, 46, 1024, 6144, 3, 0, 64)
            a(f"""
            s_mul_i32 s35, s27, {NL*128}
            s_add_u32 s35, s35, {128*NS*128}
            v_lshlrev_b32 v72, 7, v0
            v_mov_b32 v73, 0x80000000
            v_cmp_gt_u32 vcc, {NL}, v0
            v_cndmask_b32 v72, v73, v72, vcc
            buffer_load_dword v73, v72, s[20:23], s35 offen""")
        else:
            strip_copy_issue(a, 3, 46, 1024, 6144, 3, 0, 64)
            prefetch(a, 3, 46, QPRE * 6144, 65536 - QPRE * 48, 72)
    a(f"""
    s_lshr_b32 s25, s27, 1
    s_lshl_b32 s25, s25, 3
    s_and_b32 s26, s27, 1
    s_lshl_b32 s26, s26, 1
    s_add_u32 s25, s25, s26
    v_bfe_u32 v26, v0, 4, 1
    v_lshl_add_u32 v26, v26, 2, s25
    v_bfe_u32 v27, v0, 3, 1
    v_add_u32 v26, v26, v27""")
    phys_line(a, 25, 26, 27)
    a(f"""
    v_and_b32 v26, 7, v0
    v_lshl_add_u32 v25, v26, 4, v25
    s_mov_b32 s25, {SLAB}
    v_mul_lo_u32 v27, v1, s25
    v_add_u32 v25, v25, v27
    v_lshrrev_b32 v27, 4, v0
    v_mul_u32_u24 v27, 272, v27
    v_and_b32 v26, 15, v0
    v_lshl_add_u32 v27, v26, 4, v27
    v_mul_u32_u24 v28, 272, v2
    v_lshl_add_u32 v28, v1, 4, v28""")
    if EXP.get("xsplit"): a("v_and_b32 v29, 1, v2\nv_mul_u32_u24 v29, 264, v29\nv_sub_u32 v28, v28, v29")
    a(f"s_waitcnt vmcnt({(3 if GP >= 2 else 2) if EARLY else 0})")
    if not EARLY:
        a("""
        v_subrev_u32 v5, 64, v0
        s_mul_i32 s32, s27, 448
        v_add_u32 v5, s32, v5
        v_mov_b32 v29, 0x40000000
        v_cmp_gt_u32 vcc, 64, v0
        v_cndmask_b32 v3, v5, v29, vcc""")
        strip_copy_issue(a, 3, 46, 1024, 6144, 3, 0, 64)
        prefetch(a, 3, 46, QPRE * 6144, 57344 - QPRE * 48, 72)
    unpack(a, 32, 8, 16)
    a("v_add_f32 v6, v32, v33\nv_add_f32 v7, v34, v35")
    for i in range(4, 32): a(f"v_add_f32 v{6+i%2}, v{6+i%2}, v{32+i}")
    a("v_add_f32 v6, v6, v7")
    red32(a, 6, 7)
    a(f"v_mul_f32 v6, {fx(1/1024)}, v6")
    for i in range(32): a(f"v_sub_f32 v{32+i}, v{32+i}, v6")
    a("v_mul_f32 v6, v32, v32\nv_mul_f32 v7, v33, v33")
    for i in range(2, 32): a(f"v_fmac_f32 v{6+i%2}, v{32+i}, v{32+i}")
    a("v_add_f32 v6, v6, v7")
    red32(a, 6, 7)
    a(f"""
    v_mov_b32 v7, {fx(1e-5)}
    v_fmac_f32 v7, {fx(1/1024)}, v6
    v_rsq_f32 v6, v7""")
    if not F2:
        for i in range(4):
            for j in range(8): a(f"v_mul_f32 v{32+8*i+j}, v{32+8*i+j}, v6")
            for j in range(4): a(f"v_cvt_pk_f16_f32 v{8+4*i+j}, v{32+8*i+2*j}, v{33+8*i+2*j}")
            if EXP.get("xsplit"):
                a(f"ds_write_b64 v28, {v(8+4*i,2)} offset:{32*272*i}\nds_write_b64 v28, {v(10+4*i,2)} offset:{32*272*i+272}")
            else: a(f"ds_write_b128 v28, {v(8+4*i,4)} offset:{32*272*i}")
    else:
        CL = 36864
        for i in range(32): a(f"v_mul_f32 v{32+i}, v{32+i}, v6")
        srd(a, 16, 62, 0, 256); srd(a, 8, 44, WS_MODP, KS * 6144 * 4)
        a(f"""
        v_lshlrev_b32 v5, 4, v0
        v_lshlrev_b32 v24, 5, v2
        v_lshrrev_b32 v7, 6, v0
        v_lshlrev_b32 v6, 2, v0
        v_readfirstlane_b32 s26, v7
        s_cmp_lg_u32 s26, 0
        s_cbranch_scc1 pre_go
pre_poll:
        buffer_load_dword v7, v6, s[16:19], 0 offen sc1
        s_waitcnt vmcnt(0)
        v_cmp_eq_u32 vcc, 1, v7
        s_cmp_eq_u64 vcc, -1
        s_cbranch_scc1 pre_go
        s_sleep 1
        s_branch pre_poll
pre_go:
        s_barrier
        s_mov_b32 s32, {6144*4}
        buffer_load_dwordx4 v[8:11], v5, s[8:11], 0 offen sc1
        buffer_load_dwordx4 v[12:15], v5, s[8:11], s32 offen sc1
        s_cmp_ge_u32 s26, 4
        s_cselect_b32 s33, 1.0, 0
        s_waitcnt vmcnt(0)""")
        for j in range(4): a(f"v_add_f32 v{8+j}, v{8+j}, v{12+j}")
        for j in range(2): a(f"v_cvt_pk_bf16_f32 v{12+j}, v{8+2*j}, v{9+2*j}")
        unpack(a, 8, 12, 2)
        for j in range(4): a(f"v_add_f32 v{8+j}, s33, v{8+j}")
        for j in range(2): a(f"v_cvt_pk_bf16_f32 v{12+j}, v{8+2*j}, v{9+2*j}")
        unpack(a, 8, 12, 2)
        a(f"ds_write_b128 v5, v[8:11] offset:{CL}\ns_waitcnt lgkmcnt(0)\ns_barrier")
        B0, B1 = 8, 76
        def crd(i):
            B = B0 if i % 2 == 0 else B1
            for n, o in enumerate((4096, 4096 + 16, 0, 16)): a(f"ds_read_b128 {v(B+4*n,4)}, v24 offset:{CL+o+1024*i}")
        crd(0); crd(1)
        for i in range(4):
            B = B0 if i % 2 == 0 else B1
            a(f"s_waitcnt lgkmcnt({[4,5,5,1][i]})")
            for j in range(8): a(f"v_fma_f32 v{32+8*i+j}, v{32+8*i+j}, v{B+j}, v{B+8+j}")
            for j in range(4): a(f"v_cvt_pk_bf16_f32 v{92+j}, v{32+8*i+2*j}, v{33+8*i+2*j}")
            a(f"ds_write_b128 v28, v[92:95] offset:{32*272*i}")
            if i < 2: crd(i + 2)
    a("s_waitcnt lgkmcnt(0)\ns_barrier")
    for i in range(4): a(f"ds_read_b128 {v(32+4*i,4)}, v27 offset:{32*272*i}")
    for i in range(4):
        a(f"s_mov_b32 s25, {16*SLAB*i}\ns_waitcnt lgkmcnt({3-i})\nbuffer_store_dwordx4 {v(32+4*i,4)}, v25, s[12:15], s25 offen sc1")
    if not F2: a("s_waitcnt vmcnt(5)")
    strip_copy_store(a, 44, WS_WQ3, 1024 * 1536, 64)
    if GP >= 2: strip_copy_store(a, 44, WS_WO3, 1024 * 512, 84)
    finish(k)
    return k

def k_ln(name, src_ptr, dst_off, shift_idx, scale_idx):
    k = Kernel(name, 256, 256, 8192 + 128 * 144, 128); a = k.a
    guard(k)
    load_ptrs(a, [(40, src_ptr), (44, P_WS)])
    code_srd(k, 88, name + "_end")
    a("v_lshlrev_b32 v30, 7, v0\nbuffer_load_dword v31, v30, s[88:91], 0 offen")
    a(f"""
    v_lshrrev_b32 v1, 5, v0
    v_and_b32 v2, 31, v0               ; chunk
    s_lshl_b32 s24, s2, 3
    v_add_u32 v3, s24, v1              ; row
    v_lshlrev_b32 v4, 11, v3
    v_lshl_add_u32 v4, v2, 4, v4
    v_lshlrev_b32 v5, 4, v0            ; tid*16
    s_waitcnt lgkmcnt(0)""")
    srd(a, 4, 40, 0, 2048 * 2048); srd(a, 8, 44, WS_MODP, KS * 6144 * 4); srd(a, 12, 44, dst_off, 64 * SLAB)
    for p in range(KS):
        a(f"s_mov_b32 s25, {p*6144*4 + scale_idx*4096}\nbuffer_load_dwordx4 {v(96+8*p,4)}, v5, s[8:11], s25 offen")
        a(f"s_mov_b32 s25, {p*6144*4 + shift_idx*4096}\nbuffer_load_dwordx4 {v(100+8*p,4)}, v5, s[8:11], s25 offen")
    for i in range(4): a(f"buffer_load_dwordx4 {v(8+4*i,4)}, v4, s[4:7], 0 offen offset:{512*i}")
    a(f"""
    s_lshr_b32 s25, s2, 2
    s_lshl_b32 s25, s25, 3
    s_and_b32 s26, s2, 3
    s_add_u32 s25, s25, s26
    v_bfe_u32 v26, v0, 3, 1
    v_lshl_add_u32 v26, v26, 2, s25""")
    phys_line(a, 25, 26, 27)
    a(f"""
    v_and_b32 v26, 7, v0
    v_lshl_add_u32 v25, v26, 4, v25
    v_lshrrev_b32 v27, 4, v0
    s_mov_b32 s25, {SLAB}
    v_mul_lo_u32 v27, v27, s25
    v_add_u32 v25, v25, v27
    v_lshrrev_b32 v27, 3, v0
    v_mul_u32_u24 v27, 144, v27
    v_lshl_add_u32 v27, v26, 4, v27
    v_mul_u32_u24 v28, 144, v2
    v_lshl_add_u32 v28, v1, 4, v28
    s_waitcnt vmcnt(4)""")
    for p in range(1, KS):
        for j in range(8): a(f"v_add_f32 v{96+j}, v{96+j}, v{96+8*p+j}")
    for j in range(4): a(f"v_cvt_pk_bf16_f32 v{112+j}, v{96+2*j}, v{97+2*j}")
    unpack(a, 96, 112, 4)
    for j in range(4): a(f"v_add_f32 v{96+j}, 1.0, v{96+j}")
    for j in range(2): a(f"v_cvt_pk_bf16_f32 v{112+j}, v{96+2*j}, v{97+2*j}")
    unpack(a, 96, 112, 2)
    a("ds_write_b128 v5, v[96:99]\nds_write_b128 v5, v[100:103] offset:4096")
    a("s_waitcnt vmcnt(0)")
    unpack(a, 32, 8, 16)
    a("v_add_f32 v6, v32, v33\nv_add_f32 v7, v34, v35")
    for i in range(4, 32): a(f"v_add_f32 v{6+i%2}, v{6+i%2}, v{32+i}")
    a("v_add_f32 v6, v6, v7")
    red32(a, 6, 7)
    a(f"v_mul_f32 v6, {fx(1/1024)}, v6")
    for i in range(32): a(f"v_sub_f32 v{32+i}, v{32+i}, v6")
    a("v_mul_f32 v6, v32, v32\nv_mul_f32 v7, v33, v33")
    for i in range(2, 32): a(f"v_fmac_f32 v{6+i%2}, v{32+i}, v{32+i}")
    a("v_add_f32 v6, v6, v7")
    red32(a, 6, 7)
    a(f"""
    v_mov_b32 v7, {fx(1e-5)}
    v_fmac_f32 v7, {fx(1/1024)}, v6
    v_rsq_f32 v6, v7
    v_lshlrev_b32 v24, 5, v2
    s_waitcnt lgkmcnt(0)
    s_barrier""")
    for i in range(4):
        a(f"ds_read_b128 {v(64+16*i,4)}, v24 offset:{1024*i}\nds_read_b128 {v(68+16*i,4)}, v24 offset:{1024*i+16}")
        a(f"ds_read_b128 {v(72+16*i,4)}, v24 offset:{4096+1024*i}\nds_read_b128 {v(76+16*i,4)}, v24 offset:{4096+1024*i+16}")
    for i in range(32): a(f"v_mul_f32 v{32+i}, v{32+i}, v6")
    for i in range(4):
        a(f"s_waitcnt lgkmcnt({12-4*i+i})")
        for j in range(8): a(f"v_fma_f32 v{32+8*i+j}, v{32+8*i+j}, v{64+16*i+j}, v{72+16*i+j}")
        for j in range(4): a(f"v_cvt_pk_bf16_f32 v{8+4*i+j}, v{32+8*i+2*j}, v{33+8*i+2*j}")
        a(f"ds_write_b128 v28, {v(8+4*i,4)} offset:{8192+32*144*i}")
    a("s_waitcnt lgkmcnt(0)\ns_barrier")
    for i in range(4): a(f"ds_read_b128 {v(32+4*i,4)}, v27 offset:{8192+32*144*i}")
    for i in range(4):
        a(f"s_mov_b32 s25, {16*SLAB*i}\ns_waitcnt lgkmcnt({3-i})\nbuffer_store_dwordx4 {v(32+4*i,4)}, v25, s[12:15], s25 offen sc1")
    finish(k)
    return k

def tile_map(a, TM, TN, xm, xn):
    tm_per, tn_per = TM // xm, TN // xn
    assert tm_per & (tm_per - 1) == 0
    a(f"""
    s_and_b32 s32, s2, 7
    s_lshr_b32 s33, s2, 3
    s_lshr_b32 s34, s32, {xn.bit_length()-1}
    s_and_b32 s35, s32, {xn-1}
    s_and_b32 s24, s33, {tm_per-1}
    s_lshr_b32 s25, s33, {tm_per.bit_length()-1}
    s_mul_i32 s34, s34, {tm_per}
    s_add_u32 s24, s24, s34
    s_mul_i32 s35, s35, {tn_per}
    s_add_u32 s25, s25, s35""")
    wave_lane(a)

def k_gemm(name, K, MB, NB, DA, R, U, PEEL, CAP, INIT, btype, a_off, korder, colperm, orient, TM, TN, xm, xn,
           ptrs, setup, epilogue, ldb, alt=None, big=False, ntemp=24, xlds=0, nxa=0, FB=1, mod=False):
    S = K // 16; NST = K // 64; WG = EXP.get(name[0] + 'WG', 2 if mod else 1)
    assert (NST - PEEL) % U == 0 and (4 * U) % DA == 0 and (4 * PEEL) % DA == 0 and (4 * U) % FB == 0 and (4 * PEEL) % FB == 0
    if btype == "panel":
        NP = NB // 2; STAGE = NP * 8192; ND = 2 * NP
    else:
        UPOFF = 16 * (64 * 14 + 8); STAGE = 2 * UPOFF; ND = 7
    VRE0, VRO0, VRE, VRO, VA = 3, 4, 5, 6, 7
    VB = VA + MB
    nfix = VB + ND
    if big:
        ACC = 256 - 16 * NB * MB; fk = "a"; BF = 0; AR = 4 * NB * FB; XA = AR + 4 * MB * DA; na = XA + nxa; nv = 256
        TMP = (nfix + 1) // 2 * 2; assert TMP + 14 <= ACC
    else:
        TMP = (nfix + 3) // 4 * 4
        ACC = (TMP + ntemp + 3) // 4 * 4
        fk = "v"; BF = ACC + 16 * NB * MB; AR = BF + 4 * NB * FB; nv = AR + 4 * MB * DA; na = 0; XA = None
        if mod: CM0 = nv; HF = CM0 + 32; VC = HF + 8; nv = VC + 1
    k = Kernel(name, TM * TN, 256, STAGE * R + xlds, nv, na); a = k.a
    k.ACC, k.TMP, k.MB, k.NB, k.BF, k.AR, k.VA, k.XL, k.XA = ACC, TMP, MB, NB, BF, AR, VA, STAGE * R, XA
    acc = lambda j, tb: ACC + 16 * (j * MB + tb)
    k.acc = acc
    guard(k)
    stamp(k, 0)
    load_ptrs(a, ptrs)
    tile_map(a, TM, TN, xm, xn)
    T = TMP
    a(f"s_lshl_b32 s37, s24, 2\ns_add_u32 s37, s37, s26\ns_mul_i32 s37, s37, {MB}")
    rd_rows = 8 if korder == "split" else 4
    if btype == "panel":
        off_alt, ldb_alt, pst_alt, sst_alt = alt
        a(f"""
        s_and_b32 s32, s25, 7
        s_lshr_b32 s33, s25, 3
        s_mul_i32 s33, s33, {sst_alt}
        s_lshl_b32 s34, s25, 7
        s_mov_b32 s51, {ldb}
        s_mov_b32 s52, 2048
        s_cmp_eq_u32 s32, {3 if not EXP.get('noalt') else 99}
        s_cselect_b32 s50, s33, s34
        s_cselect_b32 s51, {ldb_alt}, s51
        s_cselect_b32 s52, {pst_alt}, s52
        s_cselect_b32 s53, 1, 0
        s_lshl_b32 s39, s51, 6
        s_lshl_b32 s54, s51, 3""")
        panel_src(a, T, 1)
        a(f"""
        s_lshl_b32 s32, s26, 4
        v_add_u32 v{T}, s32, v{T}
        v_mul_lo_u32 v{T}, v{T}, s51
        v_lshl_add_u32 v{T}, v{T+1}, 4, v{T}
        v_add_u32 v{VB}, s50, v{T}
        v_add_u32 v{VB+1}, s54, v{VB}""")
        for p in range(1, NP):
            a(f"v_add_u32 v{VB+2*p}, s52, v{VB+2*p-2}\nv_add_u32 v{VB+2*p+1}, s52, v{VB+2*p-1}")
        dma_lds = [p * 8192 + g * 1024 for p in range(NP) for g in range(2)]
        a("s_lshl_b32 s36, s26, 11")
    else:
        a(f"""
        s_and_b32 s32, s26, 1
        s_mul_i32 s33, s32, {32*ldb}
        s_mul_i32 s34, s25, 224
        s_add_u32 s33, s33, s34
        s_mov_b32 s39, {64*ldb}""")
        for i in range(7):
            a(f"""
            v_add_u32 v{T}, {64*i}, v1
            v_mul_u32_u24 v{T+1}, 4682, v{T}
            v_lshrrev_b32 v{T+1}, 16, v{T+1}
            v_lshl_add_u32 v{T}, v{T}, 4, s33
            v_mul_u32_u24 v{T+1}, {ldb-224}, v{T+1}
            v_add_u32 v{VB+i}, v{T}, v{T+1}""")
        dma_lds = [1024 * i for i in range(7)]
        a(f"""
        s_mul_i32 s36, s32, 7168
        s_lshr_b32 s33, s26, 1
        s_mul_i32 s33, s33, {UPOFF}
        s_add_u32 s36, s36, s33""")
    for tb in range(MB):
        if tb: a(f"s_add_u32 s32, s37, {tb}")
        frag_off(a, VA + tb, 32 if tb else 37, 1, T)
    a(f"""
    s_mov_b32 s27, 0
    s_mov_b32 s28, 0
    s_mov_b32 s29, s36
    s_add_u32 s38, s36, {R*STAGE}
    s_mov_b32 s31, {(R-1)*STAGE}
    s_waitcnt lgkmcnt(0)""")
    srd(a, 4, 44, a_off, S * SLAB)
    if btype == "panel":
        a(f"""
        s_add_u32 s32, s44, {off_alt}
        s_addc_u32 s33, s45, 0
        s_cmp_eq_u32 s53, 1
        s_cselect_b32 s8, s32, s40
        s_cselect_b32 s9, s33, s41
        s_mul_i32 s10, s51, {K}
        s_mov_b32 s11, 0x20000""")
    else:
        a("s_cmp_ge_u32 s26, 2\ns_cselect_b32 s8, s42, s40\ns_cselect_b32 s9, s43, s41")
        a(f"s_mov_b32 s10, {K*ldb}\ns_mov_b32 s11, 0x20000")

    def late_setup():
        code_srd(k, 92, name + "_epi")
        a("v_lshlrev_b32 v2, 7, v0")
        tr_lane(a, T, 1, korder, colperm)
        if btype == "panel": panel_rd(a, T, VRE0, VRO0)
        else:
            a(f"""
            v_mul_u32_u24 v{T+4}, 224, v{T+4}
            v_lshl_add_u32 v{T+4}, v{T+3}, 3, v{T+4}
            v_mul_u32_u24 v{T+5}, {UPOFF}, v{T+1}
            v_add_u32 v{VRE0}, v{T+4}, v{T+5}""")
    if btype == "panel":
        def rd(j, sub, r_): return (VRE if j % 2 == 0 else VRO), (j // 2) * 8192 + 128 * (16 * sub + rd_rows * r_)
    else:
        def rd(j, sub, r_): return VRE, 32 * j + 224 * (16 * sub + rd_rows * r_)

    BOFF = 4 - FB
    def make_ops(extra):
        ops = []
        for ta in range(S + DA + 8):
            for tb in range(MB):
                ins = [f"buffer_load_dwordx4 {rr(fk, AR+4*(MB*(ta%DA)+tb), 4)}, v{VA+tb}, s[4:7], s27 offen"]
                if tb == MB - 1: ins.append(f"s_add_u32 s27, s27, {SLAB}")
                ops.append([ta - (1 if mod else 0), ta + (0 if mod else 1) - DA, len(ops), ins, ("A", ta)])
        for st in range(NST + R + 2):
            for i in range(ND):
                ins = [f"s_add_u32 m0, s29, {dma_lds[i]}", f"buffer_load_dwordx4 v{VB+i}, s[8:11], s28 offen lds"]
                if i == ND - 1:
                    ins += ["s_add_u32 s28, s28, s39", f"s_add_u32 s29, s29, {STAGE}", "s_cmp_eq_u32 s29, s38\ns_cselect_b32 s29, s36, s29"]
                ops.append([4 * st - FB - 0.5, 4 * (st + 2 - R) - FB + i * 4 // ND, len(ops), ins, ("B", st)])
        for need, ins in extra: ops.append([need, -999, len(ops), ins, ("X",)])
        ops.sort(key=lambda o: (o[0], o[2]))
        return ops

    cnt = Cnt()
    def run(emit):
        def E(x):
            if emit: emit(x)
        extra = setup(k, emit)
        ops = make_ops(extra)
        def take(t, cap):
            got = []
            for o in ops:
                if len(got) >= cap: break
                if o[1] <= t: got.append(o)
            for o in got: ops.remove(o)
            fl = []
            for o in got:
                for x in o[3]: fl.append((x, o[4] if x.startswith("buffer_") else None))
            return fl
        def W(site, c, nm, tags):
            cnt.wait(c, (site, nm), tags)
            E(cnt.text(c, (site, nm)))
        def flush(fill, n):
            for _ in range(n):
                if not fill: return
                x, tag = fill.pop(0)
                if x == "W": W(*tag); continue
                E(x)
                if tag and tag[0] == "L": cnt.issue("lg", tag[1])
                elif tag: cnt.issue("vm", tag)
        def barrier(site, st):
            W(site, "vm", "bar", {("B", st)})
            E("s_barrier")
            E(f"s_add_u32 s31, s31, {STAGE}\ns_cmp_eq_u32 s31, {R*STAGE}\ns_cselect_b32 s31, 0, s31\nv_add_u32 v{VRE}, s31, v{VRE0}")
            if btype == "panel": E(f"v_add_u32 v{VRO}, s31, v{VRO0}")
        def reads(tt, j):
            for r_ in range(2):
                base, off = rd(j, tt % 4, r_)
                E(f"ds_read_b64_tr_b16 {rr(fk, BF+4*(NB*(tt%FB)+j)+2*r_, 2)}, v{base} offset:{off}")
                cnt.issue("lg", ("F", tt, j))
        def cread(tt):
            base = (tt if tt < 4 * PEEL + 2 else 4 * PEEL + (tt - 4 * PEEL - 2) % (4 * U) + 2) * 128
            out = []; CM = CM0 + 16 * (tt % 2)
            for n in range(4): out.append((f"ds_read_b128 {v(CM+4*n,4)}, v{VC} offset:{base+16*n}", ("L", ("C", tt))))
            return out
        def xform(tt):
            r = AR + 4 * (tt % DA); out = []; CM = CM0 + 16 * (tt % 2)
            for i in range(8):
                out.append((f"v_fma_mix_f32 v{CM+8+i}, v{r+i//2}, v{CM+i}, v{CM+8+i} " + ("op_sel:[1,0,0] " if i % 2 else "") + "op_sel_hi:[1,0,0]", None))
            for i in range(4): out.append((f"v_cvt_pk_bf16_f32 v{HF+4*(tt%2)+i}, v{CM+8+2*i}, v{CM+9+2*i}", None))
            return out
        if mod:
            if emit:
                srd(a, 20, 44, WS_MODP, KS * 6144 * 4)
                a(f"v_lshlrev_b32 v{VC}, 4, v0")
            for p in range(KS):
                for n, idx in enumerate((1, 0)):
                    E(f"s_mov_b32 s32, {p*6144*4 + idx*4096}\nbuffer_load_dwordx4 {v(ACC+8*p+4*n,4)}, v{VC}, s[20:23], s32 offen")
                    cnt.issue("vm", ("M",))
        flush(take(-FB - 1, INIT), 999)
        if mod:
            if emit:
                a(f"""
                v_lshrrev_b32 v{ACC+24}, 1, v0
                v_lshlrev_b32 v{ACC+24}, 6, v{ACC+24}
                v_and_b32 v{ACC+25}, 1, v0
                v_lshl_add_u32 v{ACC+24}, v{ACC+25}, 4, v{ACC+24}
                v_add_u32 v{ACC+24}, {STAGE*R}, v{ACC+24}
                v_lshrrev_b32 v{VC}, 5, v1
                v_lshlrev_b32 v{VC}, 6, v{VC}
                v_add_u32 v{VC}, {STAGE*R}, v{VC}""")
        if emit:
            late_setup()
        if mod:
            W("pro", "vm", "M", {("M",)})
            if emit:
                for j in range(8): a(f"v_add_f32 v{ACC+j}, v{ACC+j}, v{ACC+8+j}")
                for j in range(4): a(f"v_cvt_pk_bf16_f32 v{ACC+16+j}, v{ACC+2*j}, v{ACC+2*j+1}")
                unpack(a, ACC, ACC + 16, 4)
                for j in range(4): a(f"v_add_f32 v{ACC+j}, 1.0, v{ACC+j}")
                for j in range(2): a(f"v_cvt_pk_bf16_f32 v{ACC+16+j}, v{ACC+2*j}, v{ACC+2*j+1}")
                unpack(a, ACC, ACC + 16, 2)
                a(f"ds_write_b128 v{ACC+24}, {v(ACC,4)}\nds_write_b128 v{ACC+24}, {v(ACC+4,4)} offset:32\ns_waitcnt lgkmcnt(0)")
        if emit:
            if PEEL == 0:
                for i in range(16 * NB * MB): a(f"v_mov_b32 v{ACC+i}, 0")
        barrier("pro", 0)
        if mod: flush(cread(0) + cread(1), 99)
        for tt in range(FB):
            for j in range(NB): reads(tt, j)
        if mod:
            assert PEEL > 0
            W("pro", "vm", "A", {("A", 0)}); W("pro", "lg", "C", {("C", 0)})
            flush(xform(0), 99)
        if PEEL == 0: flush(take(-1, 999), 999)
        if emit: stamp(k, 1)
        for t in range(S):
            peeled = t < 4 * PEEL
            site = ("p", t) if peeled else (t - 4 * PEEL) % (4 * U)
            if t == 4 * PEEL:
                assert not [o for o in ops if o[1] < t], f"{name}: backlog not drained"
                E(f"s_mov_b32 s30, {(NST-PEEL)//U}\n.p2align 6\n{name}_loop:")
            if t == 4 * PEEL + 4 * U:
                E(f"s_sub_u32 s30, s30, 1\ns_cmp_lg_u32 s30, 0\ns_cbranch_scc1 {name}_loop")
                if emit: return
            sub = t % 4
            fill = take(t, CAP if peeled else 999)
            if not peeled and site == 1: fill.append((f"buffer_load_dword {'v0' if not big else 'a%d' % (na - 1)}, v2, s[92:95], 0 offen", ("C",)))
            vfill = []
            if mod:
                xf = [("W", (site, "vm", "A", {("A", t + 1)})), ("W", (site, "lg", "C", {("C", t + 1)}))]
                cr = cread(t + 2)
                if not peeled and site == 4 * U - 1: vfillx = [(f"v_add_u32 v{VC}, {4*U*128}, v{VC}", None)]
                else: vfillx = []
                vfill = xform(t + 1) + vfillx
                fill = cr + fill
            n0 = len(fill); nv0 = len(vfill); nslots = NB * MB; slot = 0
            if not mod: W(site, "vm", "A", {("A", t)})
            for j in range(NB):
                if not mod or (t == 0 and j == 0): W(site, "lg", f"F{j}", {("F", t, min(NB - 1, j + (WG - 1 - j % WG)))})
                for tb in range(MB):
                    af = rr(fk, AR + 4 * (MB * (t % DA) + tb), 4) if not mod else v(HF + 4 * (t % 2), 4); bf = rr(fk, BF + 4 * (NB * (t % FB) + j), 4); c = v(acc(j, tb), 16)
                    x, y = (bf, af) if orient[j] == "tok" else (af, bf)
                    if EXP.get("fake16"):
                        c0 = v(acc(j, tb) + 8 * (t % 2), 4); c1 = v(acc(j, tb) + 8 * (t % 2) + 4, 4)
                        E(f"v_mfma_f32_16x16x32_bf16 {c0}, {x}, {y}, {c0 if (t > 1 or PEEL == 0) else 0}")
                        if fill and not (sub == BOFF and j == 0): flush(fill, 1)
                        E(f"v_mfma_f32_16x16x32_bf16 {c1}, {y}, {x}, {c1 if (t > 1 or PEEL == 0) else 0}")
                    else:
                        E(f"v_mfma_f32_32x32x16_bf16 {c}, {x}, {y}, {c if (t or PEEL == 0) else 0}")
                    slot += 1
                    if mod:
                        if j == 0: flush(xf, 9)
                        jn, tn_ = (j + 1, t) if j + 1 < NB else (0, t + 1)
                        W(site, "lg", f"N{j}", {("F", tn_, min(NB - 1, jn + (WG - 1 - jn % WG)))})
                    if tb == MB - 1:
                        if j == 0 and sub == BOFF: barrier(site, (t + FB) // 4)
                        reads(t + FB, j)
                    if not (sub == BOFF and j == 0 and tb < MB - 1):
                        flush(fill, max(0, (n0 * slot + nslots - 1) // nslots - (n0 - len(fill))))
                    vs = nslots - EXP.get("qvs", 1)
                    flush(vfill, max(0, (nv0 * min(slot, vs) + vs - 1) // vs - (nv0 - len(vfill))))
            flush(fill, 999)
        if (NST - PEEL) == U: E(f"s_sub_u32 s30, s30, 1\ns_cmp_lg_u32 s30, 0\ns_cbranch_scc1 {name}_loop")
    run(None)
    cnt.reset()
    run(a)
    a(f"{name}_epi:")
    stamp(k, 2)
    epilogue(k)
    stamp(k, 3)
    prof_out(k, 4, KID[name], 26)
    finish(k)
    return k

def k_qkv():
    def setup(k, a):
        if not EXP.get("fuse1", 1) or QPRE >= 1024: return []
        T = k.TMP; per = (1024 - QPRE) * 48 // 1024
        if a: srd(a, 16, 40, QPRE * 6144, (1024 - QPRE) * 6144)
        first = f"""s_lshl_b32 s32, s2, 2
        s_add_u32 s32, s32, s26
        s_lshl_b32 s55, s32, 7
        v_lshlrev_b32 v{T+6}, 17, v1"""
        return [(EXP.get("qpfat", 12), [first, f"buffer_load_dword v{T+7}, v{T+6}, s[16:19], s55 offen"])]
    def epi(k):
        a = k.a; T = k.TMP
        qs = LOG2E / math.sqrt(32)
        srd(a, 12, 44, WS_Q, 4 << 20); srd(a, 16, 44, WS_KV, 8 << 20)
        a(f"""
        v_lshlrev_b32 v{T}, 4, v1
        s_lshl_b32 s32, s25, 7
        s_add_u32 s32, s32, s37
        s_lshl_b32 s33, s32, 11          ; Q offset
        s_lshl_b32 s34, s32, 12
        s_add_u32 s35, s33, {64*2048}
        s_add_u32 s39, s34, {64*4096}""")
        for j in range(6):
            c = k.acc(j, 0)
            if j < 2:
                for i in range(16): a(f"v_mul_f32 v{c+i}, {fx(qs)}, v{c+i}")
            for g in range(2):
                for i in range(4 * g, 4 * g + 4): a(f"v_cvt_pk_bf16_f32 v{c+i}, v{c+2*i}, v{c+2*i+1}")
            for g in range(2):
                if j < 2: a(f"buffer_store_dwordx4 {v(c+4*g,4)}, v{T}, s[12:15], s{33 if j==0 else 35} offen offset:{1024*g} sc1")
                else: a(f"buffer_store_dwordx4 {v(c+4*g,4)}, v{T}, s[16:19], s{34 if j%2==0 else 39} offen offset:{(2048 if j>=4 else 0)+1024*g} sc1")
    return k_gemm("qkv_kernel", 1024, 1, 6, EXP.get("qDA", 8), EXP.get("qR", 4), 2, EXP.get("qPEEL", 4), EXP.get("qCAP", 4), EXP.get("qINIT", 9),
                  "panel", WS_H1, "contig", False, ["tok"]*4 + ["feat"]*2, 16, 16, 2, 4,
                  [(40, P_WQKV), (44, P_WS)], setup, epi, 6144, alt=(WS_WQ3, 1536, 256, 768),
                  mod=EXP.get('fuse1', 1) == 1, xlds=(8192 + 256 if EXP.get('fuse1', 1) == 1 else 0))

def colvec_ops(k, need, dst, idxs, va):
    ops = []
    first = [f"s_lshl_b32 s32, s25, 8\nv_lshl_add_u32 v{va}, v1, 2, s32"]
    for n, idx in enumerate(idxs):
        for p in range(KS):
            ops.append((need, first + [f"s_mov_b32 s32, {p*6144*4 + idx*4096}", f"buffer_load_dword v{dst+2*n+p}, v{va}, s[20:23], s32 offen"]))
            first = []
    return ops

def k_out():
    def setup(k, a):
        T = k.TMP
        if a:
            srd(a, 12, 42, 0, 4 << 20); srd(a, 20, 44, WS_MODP, KS * 6144 * 4)
        ops = colvec_ops(k, 30, T + 8, [2, 4], T + 6)
        first = [f"""v_lshrrev_b32 v{T+12}, 3, v1
        v_and_b32 v{T+7}, 7, v1
        v_xor_b32 v{T+7}, v{T+7}, v{T+12}
        v_lshlrev_b32 v{T+7}, 4, v{T+7}
        v_lshl_add_u32 v{T+7}, v{T+12}, 11, v{T+7}
        s_lshl_b32 s55, s37, 16
        s_lshl_b32 s32, s25, 7
        s_add_u32 s55, s55, s32
        s_lshl_b32 s56, s26, 12
        s_add_u32 s56, s56, {k.XL}"""]
        for i in range(4):
            ops.append((31, first + [f"s_add_u32 m0, s56, {1024*i}", "s_nop 0", f"buffer_load_dwordx4 v{T+7}, s[12:15], s55 offen lds", "s_add_u32 s55, s55, 0x4000"]))
            first = []
        return ops
    def epi(k):
        a = k.a; T = k.TMP; G = T + 16; C = G + 32; X = C + 32; P = X + 32
        srd(a, 12, 44, WS_X2, 64 * SLAB); srd(a, 16, 44, WS_Y2, 64 * SLAB); srd(a, 20, 44, WS_STAT, 16 * 2048 * 8)
        a(f"""
        v_add_f32 v{T+8}, v{T+8}, v{T+9}
        v_add_f32 v{T+10}, v{T+10}, v{T+11}""")
        rbf(a, T + 8); rbf(a, T + 10)
        a(f"v_add_f32 v{T+10}, 1.0, v{T+10}")
        rbf(a, T + 10)
        a(f"""
        s_lshl_b32 s32, s26, 9
        s_add_u32 s32, s32, {k.XL + 16384}
        v_lshl_add_u32 v{T}, v1, 2, s32
        ds_write_b32 v{T}, v{T+8}
        ds_write_b32 v{T}, v{T+10} offset:256
        v_lshrrev_b32 v{T+1}, 5, v1
        v_lshl_add_u32 v{T}, v{T+1}, 5, s32
        v_and_b32 v{T+2}, 31, v1
        v_and_b32 v{T+3}, 7, v1
        v_xor_b32 v{T+3}, v{T+3}, v{T+1}
        v_lshlrev_b32 v{T+3}, 4, v{T+3}
        v_lshl_add_u32 v{T+3}, v{T+2}, 7, v{T+3}
        v_add_u32 v{T+3}, s56, v{T+3}
        s_waitcnt lgkmcnt(0)""")
        for q in range(4):
            a(f"v_xor_b32 v{T+4}, {32*q}, v{T+3}\nds_read_b128 {v(P+4*q,4)}, v{T+4}")
        for q in range(4):
            for hh in range(2): a(f"ds_read_b128 {v(G+8*q+4*hh,4)}, v{T} offset:{64*q+16*hh}")
        a("s_waitcnt lgkmcnt(8)")
        unpack(a, X, P, 16)
        for q in range(4):
            for hh in range(2): a(f"ds_read_b128 {v(C+8*q+4*hh,4)}, v{T} offset:{256+64*q+16*hh}")
        a(f"s_mul_i32 s33, s25, {4*SLAB}\ns_waitcnt lgkmcnt(8)")
        for q in range(4):
            c = k.acc(q // 2, 0) + 8 * (q % 2)
            for i in range(8): a(f"v_fmac_f32 v{X+8*q+i}, v{G+8*q+i}, v{c+i}")
            for i in range(4): a(f"v_cvt_pk_bf16_f32 v{P+4*q+i}, v{X+8*q+2*i}, v{X+8*q+2*i+1}")
            a(f"s_add_u32 s34, s33, {q*SLAB}\nbuffer_store_dwordx4 {v(P+4*q,4)}, v{k.VA}, s[12:15], s34 offen sc1")
        unpack(a, X, P, 16)
        a("s_waitcnt lgkmcnt(0)")
        for q in range(4):
            for i in range(8): a(f"v_mul_f32 v{C+8*q+i}, v{C+8*q+i}, v{X+8*q+i}")
            for i in range(4): a(f"v_cvt_pk_bf16_f32 v{G+4*q+i}, v{C+8*q+2*i}, v{C+8*q+2*i+1}")
            a(f"s_add_u32 s34, s33, {q*SLAB}\nbuffer_store_dwordx4 {v(G+4*q,4)}, v{k.VA}, s[16:19], s34 offen sc1")
        a(f"v_add_f32 v{T+8}, v{X}, v{X+1}\nv_add_f32 v{T+9}, v{X+2}, v{X+3}")
        for i in range(4, 32): a(f"v_add_f32 v{T+8+i%2}, v{T+8+i%2}, v{X+i}")
        a(f"""
        v_add_f32 v{T+8}, v{T+8}, v{T+9}
        v_mov_b32 v{T+9}, v{T+8}
        v_permlane32_swap_b32 v{T+8}, v{T+9}
        v_add_f32 v{T+8}, v{T+8}, v{T+9}
        v_mul_f32 v{T+10}, {fx(1/64)}, v{T+8}""")
        for i in range(32): a(f"v_sub_f32 v{X+i}, v{X+i}, v{T+10}")
        a(f"v_mul_f32 v{T+9}, v{X}, v{X}\nv_mul_f32 v{T+10}, v{X+1}, v{X+1}")
        for i in range(2, 32): a(f"v_fmac_f32 v{T+9+i%2}, v{X+i}, v{X+i}")
        a(f"""
        v_add_f32 v{T+9}, v{T+9}, v{T+10}
        v_mov_b32 v{T+10}, v{T+9}
        v_permlane32_swap_b32 v{T+9}, v{T+10}
        v_add_f32 v{T+9}, v{T+9}, v{T+10}
        v_lshlrev_b32 v{T+2}, 3, v{T+2}
        s_lshl_b32 s32, s25, 14
        s_lshl_b32 s33, s37, 8
        s_add_u32 s32, s32, s33
        s_mov_b32 exec_hi, 0
        buffer_store_dwordx2 {v(T+8,2)}, v{T+2}, s[20:23], s32 offen sc1
        s_mov_b32 exec_hi, -1""")
    return k_gemm("out_kernel", 1024, 1, 2, 16, 6, 4, 0, 99, 999, "panel", WS_O, "split", True, ["tok"]*2, 16, 16, 4, 2,
                  [(40, P_WO), (42, P_X), (44, P_WS)], setup, epi, 2048, alt=(WS_WO3, 512, 0, 256), ntemp=16 + 96 + 16, xlds=16384 + 2048,
                  FB=EXP.get("pFB", 2))

def k_down():
    def setup(k, a):
        T = k.TMP
        if a:
            srd(a, 12, 44, WS_X2, 64 * SLAB); srd(a, 20, 44, WS_MODP, KS * 6144 * 4)
        ops = colvec_ops(k, 30, T + 8, [5], T + 6)
        first = [f"s_mul_i32 s55, s25, {4*SLAB}"]
        for q in range(4):
            ops.append((31, first + [f"buffer_load_dwordx4 {v(T+16+4*q,4)}, v{k.VA}, s[12:15], s55 offen", f"s_add_u32 s55, s55, {SLAB}"]))
            first = []
        return ops
    def epi(k):
        a = k.a; T = k.TMP; P = T + 16; G = P + 16; X = G + 32
        srd(a, 16, 46, 0, 4 << 20)
        a(f"v_add_f32 v{T+8}, v{T+8}, v{T+9}")
        rbf(a, T + 8)
        a(f"""
        s_lshl_b32 s32, s26, 8
        s_add_u32 s32, s32, {k.XL + 16384}
        v_lshl_add_u32 v{T}, v1, 2, s32
        ds_write_b32 v{T}, v{T+8}
        v_lshrrev_b32 v{T+1}, 5, v1
        v_lshl_add_u32 v{T}, v{T+1}, 5, s32
        s_lshl_b32 s56, s26, 12
        s_add_u32 s56, s56, {k.XL}
        v_and_b32 v{T+2}, 31, v1
        v_and_b32 v{T+3}, 7, v1
        v_xor_b32 v{T+3}, v{T+3}, v{T+1}
        v_lshlrev_b32 v{T+3}, 4, v{T+3}
        v_lshl_add_u32 v{T+3}, v{T+2}, 7, v{T+3}
        v_add_u32 v{T+3}, s56, v{T+3}
        s_waitcnt lgkmcnt(0)""")
        for q in range(4):
            for hh in range(2): a(f"ds_read_b128 {v(G+8*q+4*hh,4)}, v{T} offset:{64*q+16*hh}")
        unpack(a, X, P, 16)
        a(f"""
        v_lshl_add_u32 v{T+5}, v1, 4, s56
        v_lshrrev_b32 v{T+6}, 3, v1
        v_and_b32 v{T+7}, 7, v1
        v_xor_b32 v{T+7}, v{T+7}, v{T+6}
        v_lshlrev_b32 v{T+7}, 4, v{T+7}
        v_lshl_add_u32 v{T+7}, v{T+6}, 11, v{T+7}
        s_lshl_b32 s33, s37, 16
        s_lshl_b32 s32, s25, 7
        s_add_u32 s33, s33, s32
        s_waitcnt lgkmcnt(0)""")
        for q in range(4):
            c = k.acc(q // 2, 0) + 8 * (q % 2)
            for i in range(8): a(f"v_fmac_f32 v{X+8*q+i}, v{G+8*q+i}, v{c+i}")
            for i in range(4): a(f"v_cvt_pk_bf16_f32 v{P+4*q+i}, v{X+8*q+2*i}, v{X+8*q+2*i+1}")
            a(f"v_xor_b32 v{T+4}, {32*q}, v{T+3}\nds_write_b128 v{T+4}, {v(P+4*q,4)}")
        a("s_waitcnt lgkmcnt(0)")
        for i in range(4): a(f"ds_read_b128 {v(G+4*i,4)}, v{T+5} offset:{1024*i}")
        for i in range(4):
            a(f"s_waitcnt lgkmcnt({3-i})\nbuffer_store_dwordx4 {v(G+4*i,4)}, v{T+7}, s[16:19], s33 offen sc1\ns_add_u32 s33, s33, 0x4000")
    return k_gemm("down_kernel", 3584, 1, 2, 16, 6, 4, 0, 99, 999, "panel", WS_ACT, "split", True, ["tok"]*2, 16, 16, 4, 2,
                  [(40, P_WD), (44, P_WS), (46, P_OUT)], setup, epi, 2048, alt=(WS_WD3, 512, 0, 256), ntemp=16 + 16 + 64, xlds=16384 + 1024,
                  FB=EXP.get("pFB", 2))

def k_gu():
    def setup(k, a):
        T = k.TMP; XA = k.XA
        if a:
            srd(a, 16, 44, WS_STAT, 16 * 2048 * 8); srd(a, 20, 44, WS_UV, KS * 2 * 7168 * 4)
        ops = []
        first = [f"""v_and_b32 v{T+6}, 31, v1
        v_lshlrev_b32 v{T+6}, 3, v{T+6}
        v_lshrrev_b32 v{T+7}, 5, v1
        v_lshl_add_u32 v{T+6}, v{T+7}, 17, v{T+6}
        s_lshl_b32 s55, s37, 8"""]
        for i in range(8):
            for tb in range(2):
                ops.append((40, first + [f"buffer_load_dwordx2 {a_(XA+16*tb+2*i,2)}, v{T+6}, s[16:19], s55 offen offset:{256*tb}"] + (["s_add_u32 s55, s55, 0x4000"] if tb else [])))
                first = []
        first = [f"""v_cmp_lt_u32 vcc, 111, v0
        v_mov_b32 v{T+7}, {(3584-112)*4}
        v_cndmask_b32 v{T+7}, 0, v{T+7}, vcc
        v_lshl_add_u32 v{T+7}, v0, 2, v{T+7}
        s_mul_i32 s56, s25, 448"""]
        for i in range(4):
            ops.append((41, first + [f"buffer_load_dword a{XA+32+i}, v{T+7}, s[20:23], s56 offen", f"s_add_u32 s56, s56, {7168*4}"]))
            first = []
        return ops
    def epi(k):
        a = k.a; T = k.TMP; XA = k.XA
        c0 = -2 * math.sqrt(2 / math.pi) * LOG2E; c1 = c0 * 0.044715
        srd(a, 12, 44, WS_ACT, 224 * SLAB)
        for i in range(4): a(f"v_accvgpr_read_b32 v{10+i}, a{XA+32+i}")
        a(f"""
        v_add_f32 v10, v10, v12
        v_add_f32 v11, v11, v13
        v_lshlrev_b32 v2, 2, v0
        ds_write_b32 v2, v10 offset:{k.XL % 65536}
        ds_write_b32 v2, v11 offset:{k.XL % 65536 + 1024}""".replace("v_lshlrev_b32 v2, 2, v0", f"v_lshlrev_b32 v2, 2, v0\nv_add_u32 v2, {k.XL // 65536 * 65536}, v2"))
        for tb, D in ((0, 4), (1, 30)):
            for i in range(16): a(f"v_accvgpr_read_b32 v{10+i}, a{XA+16*tb+i}")
            a("v_add_f32 v26, v10, v12\nv_add_f32 v27, v11, v13")
            for i in range(2, 8): a(f"v_add_f32 v26, v26, v{10+2*i}\nv_add_f32 v27, v27, v{11+2*i}")
            a(f"""
            v_mov_b32 v28, v26
            v_permlane32_swap_b32 v26, v28
            v_add_f32 v26, v26, v28
            v_mul_f32 v28, {fx(1/16)}, v26""")
            for i in range(8): a(f"v_sub_f32 v{10+2*i}, v{10+2*i}, v28")
            a("v_mul_f32 v29, v10, v10")
            for i in range(1, 8): a(f"v_fmac_f32 v29, v{10+2*i}, v{10+2*i}")
            a(f"""
            v_fmac_f32 v27, {fx(1/64)}, v29
            v_mov_b32 v28, v27
            v_permlane32_swap_b32 v27, v28
            v_add_f32 v27, v27, v28
            v_mov_b32 v28, {fx(1e-5)}
            v_fmac_f32 v28, {fx(1/1024)}, v27
            v_rsq_f32 v{D}, v28
            v_mul_f32 v26, {fx(-1/1024)}, v26
            v_mul_f32 v{D+1}, v26, v{D}""")
        a(f"""
        v_lshrrev_b32 v9, 5, v1
        v_lshlrev_b32 v9, 4, v9
        v_add_u32 v9, {k.XL}, v9
        s_mul_i32 s32, s25, {7*SLAB}
        s_mov_b32 s34, {fx(c1)}
        s_mov_b32 s35, {fx(c1)}
        v_mov_b32 v26, {fx(c0)}
        v_mov_b32 v27, {fx(c0)}
        v_mov_b32 v28, 1.0
        v_mov_b32 v29, 1.0
        s_waitcnt lgkmcnt(0)
        s_barrier""")
        def rdq(j, q, B):
            o = 64 * j + 32 * q
            for n, oo in enumerate((o, o + 1024, o + 448, o + 448 + 1024)): a(f"ds_read_b128 {v(B+4*n,4)}, v9 offset:{oo}")
        pk = lambda r: v(r, 2)
        def fold(j, q, B):
            for tb, D in ((0, 4), (1, 30)):
                c = k.acc(j, tb) + 4 * q
                for i in (0, 2):
                    a(f"v_pk_fma_f32 {pk(c+i)}, {pk(c+i)}, {pk(D)}, {pk(B+4+i)} op_sel_hi:[1,0,1]")
                    a(f"v_pk_fma_f32 {pk(c+8+i)}, {pk(c+8+i)}, {pk(D)}, {pk(B+12+i)} op_sel_hi:[1,0,1]")
                for i in (0, 2):
                    a(f"v_pk_fma_f32 {pk(c+i)}, {pk(B+i)}, {pk(D)}, {pk(c+i)} op_sel:[0,1,0]")
                    a(f"v_pk_fma_f32 {pk(c+8+i)}, {pk(B+8+i)}, {pk(D)}, {pk(c+8+i)} op_sel:[0,1,0]")
        for j in range(7):
            if j == 0:
                rdq(0, 0, 10); a("s_waitcnt lgkmcnt(0)"); fold(0, 0, 10)
                rdq(0, 1, 10); a("s_waitcnt lgkmcnt(0)"); fold(0, 1, 10)
            else:
                a("s_waitcnt lgkmcnt(0)"); fold(j, 0, 10); fold(j, 1, k.acc(j - 1, 0))
            if j < 6: rdq(j + 1, 0, 10)
            for tb in range(2):
                c = k.acc(j, tb)
                for i in range(0, 8, 2): a(f"v_pk_mul_f32 {pk(c+8+i)}, {pk(c+8+i)}, {pk(c+i)}")
                for i in (0, 4):
                    a(f"v_pk_mul_f32 v[0:1], {pk(c+i)}, {pk(c+i)}\nv_pk_mul_f32 v[2:3], {pk(c+i+2)}, {pk(c+i+2)}")
                    a(f"v_pk_fma_f32 v[0:1], v[0:1], s[34:35], v[26:27]\nv_pk_fma_f32 v[2:3], v[2:3], s[34:35], v[26:27]")
                    a(f"v_pk_mul_f32 {pk(c+i)}, v[0:1], {pk(c+i)}\nv_pk_mul_f32 {pk(c+i+2)}, v[2:3], {pk(c+i+2)}")
                for i in range(8): a(f"v_exp_f32 v{c+i}, v{c+i}")
                for i in range(0, 8, 2): a(f"v_pk_add_f32 {pk(c+i)}, {pk(c+i)}, v[28:29]")
                for i in range(8): a(f"v_rcp_f32 v{c+i}, v{c+i}")
                for i in range(0, 8, 2): a(f"v_pk_mul_f32 {pk(c+i)}, {pk(c+i)}, {pk(c+8+i)}")
                for i in range(4): a(f"v_cvt_pk_bf16_f32 v{c+8+i}, v{c+2*i}, v{c+2*i+1}")
                a(f"buffer_store_dwordx4 {v(c+8,4)}, v{k.VA+tb}, s[12:15], s32 offen sc1")
                if tb == 0 and j < 6: rdq(j + 1, 1, c)
            a(f"s_add_u32 s32, s32, {SLAB}")
    return k_gemm("gu_kernel", 1024, 2, 7, EXP.get("gDA", 4), EXP.get("gR", 4), 2, EXP.get("gPEEL", 4), EXP.get("gCAP", 6), EXP.get("gINIT", 11),
                  "gu", WS_Y2, "contig", False, ["tok"]*7, 8, 32, 2, 4,
                  [(40, P_WG), (42, P_WU), (44, P_WS)], setup, epi, 7168, big=True, xlds=2048, nxa=37)

NSIDE = 288
def nside(): return 0 if EXP.get('noside') else (224 if EXP.get('gpre', 0) else 288)
def attn_side(k, nw):
    a = k.a
    a("attn_side:")
    if nw == 4 and EXP.get("sprio", 1): a("s_setprio 3")
    load_ptrs(a, [(40, P_C), (42, P_WMOD), (44, P_WS), (46, P_WG), (48, P_WU), (62, P_WO), (64, P_WD)])
    wave_lane(a)
    a(f"""
    s_sub_u32 s27, s2, 256
    s_lshl_b32 s32, s27, {(nw*64).bit_length()-1}
    v_add_u32 v3, s32, v0
    s_waitcnt lgkmcnt(0)""")
    def mid():
        if EXP.get("exclr"):
            srd(a, 20, 44, EXP["exclr"], 4 << 20)
            a("v_lshlrev_b32 v108, 4, v3\nv_mov_b32 v112, -1\nv_mov_b32 v113, -1\nv_mov_b32 v114, -1\nv_mov_b32 v115, -1")
            n = nside() * nw * 64 * 16
            for c in range(0, 4 << 20, n): a(f"s_mov_b32 s24, {c}\nbuffer_store_dwordx4 v[112:115], v108, s[20:23], s24 offen sc1")
        strip_copy_issue(a, 3, 62, 1024, 2048, 1, 0, 108)
        st = 0 if EXP.get('gpre', 0) else 16384
        if EXP.get("wd4"):
            strip_copy_issue(a, 3, 64, 3584, 2048, 1, st, 116, col=256, dsh=9)
            strip_copy_issue(a, 3, 64, 3584, 2048, 1, st, 124, col=384, dsh=9, doff=256)
        else: strip_copy_issue(a, 3, 64, 3584, 2048, 1, st, 116)
        a("s_waitcnt vmcnt(0)")
        strip_copy_store(a, 44, WS_WO3, 1024 * 512, 108)
        if EXP.get("wd4"):
            strip_copy_store(a, 44, EXP["wd4"], 3584 * 1024, 116); strip_copy_store(a, 44, EXP["wd4"], 3584 * 1024, 124)
        else: strip_copy_store(a, 44, WS_WD3, 3584 * 512, 116)
    a(f"""
    s_and_b32 s32, s27, 1
    s_lshr_b32 s33, s27, 1
    s_lshl_b32 s52, s32, 9
    s_cmp_ge_u32 s33, 112
    s_cbranch_scc1 attn_side_g
    s_mov_b32 s51, 7168
    s_mul_i32 s53, s32, {2*7168*4}
    s_lshl_b32 s34, s33, 8
    s_add_u32 s53, s53, s34
    s_mov_b32 s54, {7168*4}
    s_cmp_ge_u32 s33, 56
    s_cselect_b32 s46, s48, s46
    s_cselect_b32 s47, s49, s47
    s_cselect_b32 s34, 56, 0
    s_sub_u32 s33, s33, s34
    s_mul_i32 s50, s52, s51
    s_lshl_b32 s34, s33, 7
    s_add_u32 s50, s50, s34""")
    srd(a, 8, 46, 0, 1024 * 7168); srd(a, 12, 44, WS_MODP, KS * 6144 * 4); srd(a, 16, 44, WS_UV, KS * 2 * 7168 * 4)
    skinny(k, "u", "pair", "", EXP.get("pace", 3 if nw == 4 else 1), nw=nw, mid=mid)
    if EXP.get("gpre", 0):
        a("attn_side_g:")
        return
    a(f"""
attn_side_g:
    s_sub_u32 s33, s33, {112-32}
    s_cmp_ge_u32 s33, 48
    s_cselect_b32 s34, 32, 0
    s_add_u32 s33, s33, s34
    s_mov_b32 s51, 12288
    s_mul_i32 s50, s52, s51
    s_lshl_b32 s34, s33, 7
    s_add_u32 s50, s50, s34
    s_mul_i32 s53, s32, {6144*4}
    s_lshl_b32 s34, s33, 8
    s_add_u32 s53, s53, s34
    s_mov_b32 s54, 0""")
    srd(a, 8, 42, 0, 1024 * 12288); srd(a, 12, 40, 0, 2048); srd(a, 16, 44, WS_MODP, KS * 6144 * 4)
    skinny(k, "g", "silu", " nt", EXP.get("pace", 3 if nw == 4 else 1), nw=nw, mid=mid)


def k_attn():
    R = 4; ST = 16384
    k = Kernel("attn_kernel", 256 + nside(), 512, SK_LDS, 128); a = k.a
    Q0, Q1, ONES, NEG, SA, SB, O, L, P0, P1, K0, K1, V0, V1, T = 4, 8, 12, 16, 32, 48, 64, 80, 84, 88, 92, 96, 100, 104, 108
    guard(k)
    a("s_cmp_ge_u32 s2, 256\ns_cbranch_scc1 attn_side")
    stamp(k, 0)
    load_ptrs(a, [(44, P_WS), (46, P_WO), (48, P_WD), (52, P_X)])
    if EXP.get("aprio", 1): a("s_setprio 2")
    a(f"""
    s_and_b32 s32, s2, 7
    s_lshr_b32 s33, s2, 3
    s_and_b32 s34, s32, 3
    s_lshl_b32 s34, s34, 3
    s_and_b32 s35, s33, 7
    s_add_u32 s24, s34, s35            ; head
    s_lshr_b32 s34, s32, 2
    s_lshl_b32 s34, s34, 2
    s_lshr_b32 s35, s33, 3
    s_add_u32 s25, s34, s35
    v_lshrrev_b32 v3, 6, v0
    v_and_b32 v1, 63, v0
    v_readfirstlane_b32 s26, v3
    v_lshlrev_b32 v2, 4, v1
    s_lshl_b32 s27, s25, 3
    s_add_u32 s27, s27, s26
    s_lshl_b32 s28, s24, 18
    s_lshl_b32 s29, s26, 11            ; wave * 2048
    s_lshl_b32 s32, s24, 6
    s_add_u32 s32, s32, s27
    s_lshl_b32 s32, s32, 11            ; Q offset
    s_waitcnt lgkmcnt(0)""")
    srd(a, 4, 44, WS_Q, 4 << 20)
    a(f"s_add_u32 s8, s44, s28\ns_addc_u32 s9, s45, 0\ns_add_u32 s8, s8, {WS_KV}\ns_addc_u32 s9, s9, 0\ns_mov_b32 s10, 0x40000\ns_mov_b32 s11, 0x20000")
    a("s_mov_b32 s30, s29")
    def dma(slot):
        return [f"s_add_u32 m0, s29, {slot*ST}", "buffer_load_dwordx4 v2, s[8:11], s30 offen lds",
                "buffer_load_dwordx4 v2, s[8:11], s30 offen offset:1024 lds", f"s_add_u32 s30, s30, {ST}"]
    a(f"buffer_load_dwordx4 {v(Q0,4)}, v2, s[4:7], s32 offen\nbuffer_load_dwordx4 {v(Q1,4)}, v2, s[4:7], s32 offen offset:1024")
    a(f"buffer_load_dwordx4 {v(K0,4)}, v2, s[8:11], 0 offen\nbuffer_load_dwordx4 {v(K1,4)}, v2, s[8:11], 0 offen offset:1024")
    for st in range(R - 1):
        for x in dma(st): a(x)
    srd(a, 12, 44, WS_O, 64 * SLAB)
    frag_off(a, 3, 27, 1, T)
    code_srd(k, 92, "attn_epi")
    a(f"v_lshlrev_b32 v{T+4}, 7, v0")
    if EXP.get("apf", 1):
        srd(a, 16, 46, 0, 1024 * 2048); srd(a, 20, 48, 0, 3584 * 2048)
        a(f"""
        s_lshl_b32 s32, s2, 3
        s_add_u32 s32, s32, s26
        s_mul_i32 s50, s32, {7*128}
        s_lshl_b32 s51, s32, 8
        v_lshlrev_b32 v{T+6}, 7, v1
        v_mov_b32 v{T+8}, 0x80000000
        v_cmp_gt_u32 vcc, 2, v1
        v_cndmask_b32 v{T+7}, v{T+8}, v{T+6}, vcc
        v_cmp_gt_u32 vcc, 4, v1
        v_cndmask_b32 v{T+9}, v{T+8}, v{T+6}, vcc
        s_lshl_b32 s54, s32, 9
        v_cmp_gt_u32 vcc, 7, v1
        v_cndmask_b32 v{T+6}, v{T+8}, v{T+6}, vcc""")
        srd(a, 56, 52, 0, 2048 * 2048)
    a(f"""
    v_lshrrev_b32 v{T}, 4, v1
    v_lshrrev_b32 v{T+1}, 2, v1
    v_xor_b32 v{T}, v{T}, v{T+1}
    v_and_b32 v{T}, 1, v{T}
    v_cmp_eq_u32 vcc, 0, v{T}
    v_mov_b32 v{T+1}, 0x3f803f80
    v_cndmask_b32 v{ONES}, 0, v{T+1}, vcc""")
    for i in range(1, 4): a(f"v_mov_b32 v{ONES+i}, v{ONES}")
    for i in range(16): a(f"v_mov_b32 v{O+i}, 0")
    for i in range(4): a(f"v_mov_b32 v{L+i}, 0\nv_mov_b32 v{P1+i}, 0\nv_mov_b32 v{V1+i}, 0")
    a(f"""
    s_waitcnt vmcnt({2*(R-1)})
    v_mfma_f32_32x32x16_bf16 {v(SA,16)}, {v(K0,4)}, {v(Q0,4)}, 0
    v_mfma_f32_32x32x16_bf16 {v(SA,16)}, {v(K1,4)}, {v(Q1,4)}, {v(SA,16)}""")
    def rowmax(S, m):
        for i in range(0, 16, 2): a(f"v_max3_f32 v{m}, v{S+i}, v{S+i+1}, v{m}")
    def negbcast(m):
        a(f"v_mov_b32 v{m+1}, v{m}\nv_permlane32_swap_b32 v{m}, v{m+1}\nv_max_f32 v{m}, v{m}, v{m+1}")
        for i in range(16): a(f"v_sub_f32 v{NEG+i}, 0, v{m}")
    a(f"v_mov_b32 v{T}, v{SA}")
    rowmax(SA, T); negbcast(T)
    for i in range(16): a(f"v_sub_f32 v{SA+i}, v{SA+i}, v{T}")
    a(f"""
    s_waitcnt vmcnt({2*(R-2)})
    s_barrier
    ds_read_b128 {v(K0,4)}, v2 offset:4096
    ds_read_b128 {v(K1,4)}, v2 offset:5120
    ds_read_b128 {v(V0,4)}, v2 offset:2048""")
    cnt = Cnt()
    def it(j, E, site):
        def W(c, nm, tags):
            cnt.wait(c, (site, nm), tags)
            if E: E(cnt.text(c, (site, nm)))
        def X(x):
            if E: E(x)
        def RD(reg, blk, piece):
            X(f"ds_read_b128 {v(reg,4)}, v2 offset:{(blk % (4*R))*4096 + piece*1024}")
            cnt.issue("lg", (piece, blk))
        S, Sn = (SA, SB) if j % 2 == 0 else (SB, SA)
        e = lambda i: X(f"v_exp_f32 v{S+i}, v{S+i}")
        c = lambda i: X(f"v_cvt_pk_bf16_f32 v{P0+i}, v{S+2*i}, v{S+2*i+1}")
        W("lg", "k", {(0, j + 1), (3, j - 1), (1, j + 1)})
        X(f"v_mfma_f32_32x32x16_bf16 {v(Sn,16)}, {v(K0,4)}, {v(Q0,4)}, {v(NEG,16)}")
        e(0); e(1); e(2)
        X(f"v_mfma_f32_32x32x16_bf16 {v(O,16)}, {v(V1,4)}, {v(P1,4)}, {v(O,16)}")
        RD(V1, j, 3)
        e(3); c(0); e(4); c(1)
        X(f"v_mfma_f32_32x32x16_bf16 {v(Sn,16)}, {v(K1,4)}, {v(Q1,4)}, {v(Sn,16)}")
        if j % 4 == 2:
            W("vm", "bar", {("B", j // 4 + 1)})
            X("s_barrier")
        RD(K0, j + 2, 0); RD(K1, j + 2, 1)
        e(5); e(6); e(7)
        X(f"v_mfma_f32_16x16x32_bf16 {v(L,4)}, {v(ONES,4)}, {v(P1,4)}, {v(L,4)}")
        if j % 4 == 2:
            d = dma((j // 4 - 1) % R)
            X(d[0])
        c(2); c(3); e(8); e(9)
        W("lg", "v0", {(2, j)})
        X(f"v_mfma_f32_32x32x16_bf16 {v(O,16)}, {v(V0,4)}, {v(P0,4)}, {v(O,16)}")
        RD(V0, j + 1, 2)
        if j % 4 == 2:
            X(d[1]); X(d[2]); X(d[3])
            cnt.issue("vm", ("B", j // 4 - 1 + R)); cnt.issue("vm", ("B", j // 4 - 1 + R))
        if j % 16 == 3:
            X(f"buffer_load_dword v{T+5}, v{T+4}, s[92:95], 0 offen"); cnt.issue("vm", ("C",))
        if EXP.get("apf", 1) and j % 16 == 7:
            X(f"buffer_load_dword v{T+5}, v{T+6}, s[20:23], s50 offen\ns_add_u32 s50, s50, {2048*7*128}"); cnt.issue("vm", ("C",))
        if EXP.get("apf", 1) and j % 16 == 15:
            X(f"buffer_load_dword v{T+5}, v{T+9}, s[56:59], s54 offen\ns_add_u32 s54, s54, {2048*512}"); cnt.issue("vm", ("C",))
        if EXP.get("apf", 1) and j % 16 == 11:
            X(f"buffer_load_dword v{T+5}, v{T+7}, s[16:19], s51 offen\ns_add_u32 s51, s51, {2048*256}"); cnt.issue("vm", ("C",))
        e(10); e(11); c(4); e(12)
        X(f"v_mfma_f32_16x16x32_bf16 {v(L,4)}, {v(ONES,4)}, {v(P0,4)}, {v(L,4)}")
        c(5); e(13); e(14); e(15); c(6); c(7)
    def preload():
        cnt.reset()
        for st in range(R - 1):
            cnt.issue("vm", ("B", st)); cnt.issue("vm", ("B", st))
        for tg in [(0, 1), (1, 1), (2, 0)]: cnt.issue("lg", tg)
    preload()
    for j in range(64): it(j, None, j % 16)
    preload()
    stamp(k, 1)
    a("s_mov_b32 s31, 4\n.p2align 6\nattn_loop:")
    for j in range(16): it(j, a, j)
    a("s_sub_u32 s31, s31, 1\ns_cmp_lg_u32 s31, 0\ns_cbranch_scc1 attn_loop\nattn_epi:")
    stamp(k, 2)
    a(f"""
    s_waitcnt lgkmcnt(0)
    v_mfma_f32_32x32x16_bf16 {v(O,16)}, {v(V1,4)}, {v(P1,4)}, {v(O,16)}
    v_mfma_f32_16x16x32_bf16 {v(L,4)}, {v(ONES,4)}, {v(P1,4)}, {v(L,4)}
    v_mov_b32 v{T}, 0""")
    for i in range(16): a(f"v_fmac_f32 v{T}, 0, v{O+i}")
    a(f"""
    v_add_f32 v{T}, v{T}, v{L}
    v_cmp_ngt_f32 vcc, {fx(2.0**40)}, v{T}
    s_cbranch_vccnz attn_slow
attn_fin:
    v_rcp_f32 v{T}, v{L}
    s_mul_i32 s32, s24, {2*SLAB}
    s_add_u32 s33, s32, {SLAB}""")
    for i in range(16): a(f"v_mul_f32 v{O+i}, v{O+i}, v{T}")
    for i in range(8): a(f"v_cvt_pk_bf16_f32 v{O+i}, v{O+2*i}, v{O+2*i+1}")
    a(f"buffer_store_dwordx4 {v(O,4)}, v3, s[12:15], s32 offen sc1\nbuffer_store_dwordx4 {v(O+4,4)}, v3, s[12:15], s33 offen sc1")
    stamp(k, 3)
    prof_out(k, 4, 4, 26)
    a("s_endpgm")
    a(f"""
attn_slow:
    v_mov_b32 v{T}, 0xff800000
    s_mov_b32 s30, 0
attn_slow1:
    buffer_load_dwordx4 {v(K0,4)}, v2, s[8:11], s30 offen
    buffer_load_dwordx4 {v(K1,4)}, v2, s[8:11], s30 offen offset:1024
    s_waitcnt vmcnt(0)
    v_mfma_f32_32x32x16_bf16 {v(SA,16)}, {v(K0,4)}, {v(Q0,4)}, 0
    v_mfma_f32_32x32x16_bf16 {v(SA,16)}, {v(K1,4)}, {v(Q1,4)}, {v(SA,16)}""")
    rowmax(SA, T)
    a("s_add_u32 s30, s30, 4096\ns_cmp_lt_u32 s30, 0x40000\ns_cbranch_scc1 attn_slow1")
    negbcast(T)
    for i in range(16): a(f"v_mov_b32 v{O+i}, 0")
    for i in range(4): a(f"v_mov_b32 v{L+i}, 0")
    a(f"""
    s_mov_b32 s30, 0
attn_slow2:
    buffer_load_dwordx4 {v(K0,4)}, v2, s[8:11], s30 offen
    buffer_load_dwordx4 {v(K1,4)}, v2, s[8:11], s30 offen offset:1024
    buffer_load_dwordx4 {v(V0,4)}, v2, s[8:11], s30 offen offset:2048
    buffer_load_dwordx4 {v(V1,4)}, v2, s[8:11], s30 offen offset:3072
    s_waitcnt vmcnt(0)
    v_mfma_f32_32x32x16_bf16 {v(SA,16)}, {v(K0,4)}, {v(Q0,4)}, {v(NEG,16)}
    v_mfma_f32_32x32x16_bf16 {v(SA,16)}, {v(K1,4)}, {v(Q1,4)}, {v(SA,16)}""")
    for i in range(16): a(f"v_exp_f32 v{SA+i}, v{SA+i}")
    for i in range(8): a(f"v_cvt_pk_bf16_f32 v{P0+i}, v{SA+2*i}, v{SA+2*i+1}")
    a(f"""
    v_mfma_f32_32x32x16_bf16 {v(O,16)}, {v(V0,4)}, {v(P0,4)}, {v(O,16)}
    v_mfma_f32_32x32x16_bf16 {v(O,16)}, {v(V1,4)}, {v(P1,4)}, {v(O,16)}
    v_mfma_f32_16x16x32_bf16 {v(L,4)}, {v(ONES,4)}, {v(P0,4)}, {v(L,4)}
    v_mfma_f32_16x16x32_bf16 {v(L,4)}, {v(ONES,4)}, {v(P1,4)}, {v(L,4)}
    s_add_u32 s30, s30, 4096
    s_cmp_lt_u32 s30, 0x40000
    s_cbranch_scc1 attn_slow2
    s_branch attn_fin""")
    attn_side(k, 8)
    finish(k)
    return k


def k_attn4():
    R = 4; ST = 16384; SM = EXP.get("smf", 1)
    k = Kernel("attn_kernel", 256 + nside(), 256, SK_LDS, 192); a = k.a
    Q, ONES, NEG, S, O, L, P, K0, K1, V0, V1, T = 8, 24, 32, 64, 96, 128, 136, 152, 156, 160, 164, 176
    IDX = 28
    guard(k)
    a("s_cmp_ge_u32 s2, 256\ns_cbranch_scc1 attn_side")
    stamp(k, 0)
    load_ptrs(a, [(44, P_WS), (46, P_WO), (48, P_WD), (52, P_X)])
    a(f"""
    s_and_b32 s32, s2, 7
    s_lshr_b32 s33, s2, 3
    s_and_b32 s34, s32, 3
    s_lshl_b32 s34, s34, 3
    s_and_b32 s35, s33, 7
    s_add_u32 s24, s34, s35            ; head
    s_lshr_b32 s34, s32, 2
    s_lshl_b32 s34, s34, 2
    s_lshr_b32 s35, s33, 3
    s_add_u32 s25, s34, s35
    v_lshrrev_b32 v3, 6, v0
    v_and_b32 v1, 63, v0
    v_readfirstlane_b32 s26, v3
    v_lshlrev_b32 v2, 4, v1
    s_lshl_b32 s27, s25, 2
    s_add_u32 s27, s27, s26
    s_lshl_b32 s27, s27, 1
    s_lshl_b32 s28, s24, 18
    s_lshl_b32 s29, s26, 12            ; wave * 4096
    s_lshl_b32 s32, s24, 6
    s_add_u32 s32, s32, s27
    s_lshl_b32 s32, s32, 11            ; Q offset
    s_waitcnt lgkmcnt(0)""")
    srd(a, 4, 44, WS_Q, 4 << 20)
    a(f"s_add_u32 s8, s44, s28\ns_addc_u32 s9, s45, 0\ns_add_u32 s8, s8, {WS_KV}\ns_addc_u32 s9, s9, 0\ns_mov_b32 s10, 0x40000\ns_mov_b32 s11, 0x20000")
    a("s_mov_b32 s30, s29")
    def dma(slot):
        return [f"s_add_u32 m0, s29, {slot*ST}"] + [f"buffer_load_dwordx4 v2, s[8:11], s30 offen offset:{1024*i} lds" for i in range(4)] + [f"s_add_u32 s30, s30, {ST}"]
    a(f"buffer_load_dwordx4 {v(K0,4)}, v2, s[8:11], 0 offen\nbuffer_load_dwordx4 {v(K1,4)}, v2, s[8:11], 0 offen offset:1024")
    for i in range(4): a(f"buffer_load_dwordx4 {v(Q+4*i,4)}, v2, s[4:7], s32 offen offset:{1024*i}")
    for x in dma(0): a(x)
    srd(a, 12, 44, WS_O, 64 * SLAB)
    frag_off(a, 3, 27, 1, T)
    a("s_add_u32 s33, s27, 1")
    frag_off(a, 4, 33, 1, T)
    code_srd(k, 92, "attn_epi", None, 256)
    cpf_addr(a, T + 4)
    srd(a, 16, 46, 0, 1024 * 2048); srd(a, 20, 48, 0, 3584 * 2048); srd(a, 56, 52, 0, 2048 * 2048)
    a(f"""
    s_lshl_b32 s32, s2, 2
    s_add_u32 s32, s32, s26
    s_mul_i32 s50, s32, {14*128}
    s_lshl_b32 s51, s32, 9
    s_lshl_b32 s54, s32, 10
    v_lshlrev_b32 v{T+6}, 7, v1
    v_mov_b32 v{T+8}, 0x80000000
    v_cmp_gt_u32 vcc, 4, v1
    v_cndmask_b32 v{T+7}, v{T+8}, v{T+6}, vcc
    v_cmp_gt_u32 vcc, 8, v1
    v_cndmask_b32 v{T+9}, v{T+8}, v{T+6}, vcc
    v_cmp_gt_u32 vcc, 14, v1
    v_cndmask_b32 v{T+6}, v{T+8}, v{T+6}, vcc""")
    if SM:
        a(f"""
        v_bfe_u32 v{T}, v1, 2, 1
        v_cmp_eq_u32 vcc, 0, v{T}
        v_mov_b32 v{T+1}, 0x3f803f80
        v_cndmask_b32 v{ONES}, 0, v{T+1}, vcc
        v_mov_b32 v{ONES+1}, v{ONES}
        v_xor_b32 v{ONES+2}, v{T+1}, v{ONES}
        v_mov_b32 v{ONES+3}, v{ONES+2}
        v_and_b32 v{T}, 1, v1
        v_mul_u32_u24 v{T}, 0xaaaa, v{T}
        v_add_u32 v{IDX}, 0x4444, v{T}""")
    else:
        a(f"""
        v_lshrrev_b32 v{T}, 4, v1
        v_lshrrev_b32 v{T+1}, 2, v1
        v_xor_b32 v{T}, v{T}, v{T+1}
        v_and_b32 v{T}, 1, v{T}
        v_cmp_eq_u32 vcc, 0, v{T}
        v_mov_b32 v{T+1}, 0x3f803f80
        v_cndmask_b32 v{ONES}, 0, v{T+1}, vcc""")
        for i in range(1, 4): a(f"v_mov_b32 v{ONES+i}, v{ONES}")
    for i in range(32): a(f"v_mov_b32 v{O+i}, 0")
    for i in range(8): a(f"v_mov_b32 v{L+i}, 0\nv_mov_b32 v{P+8+i}, 0\nv_mov_b32 v{V0+8+i}, 0")
    def lsum(w, p):
        if SM: return [f"v_smfmac_f32_16x16x64_bf16 {v(L+4*w,4)}, {v(ONES,4)}, {v(p,8)}, v{IDX}"]
        return [f"v_mfma_f32_16x16x32_bf16 {v(L+4*w,4)}, {v(ONES,4)}, {v(p+4*g,4)}, {v(L+4*w,4)}" for g in range(2)]
    a("s_waitcnt vmcnt(4)")
    for w in range(2):
        a(f"v_mfma_f32_32x32x16_bf16 {v(S+16*w,16)}, {v(K0,4)}, {v(Q+8*w,4)}, 0")
        a(f"v_mfma_f32_32x32x16_bf16 {v(S+16*w,16)}, {v(K1,4)}, {v(Q+8*w+4,4)}, {v(S+16*w,16)}")
    for st in range(1, R - 1):
        for x in dma(st): a(x)
    def rowmax(Sx, m):
        for i in range(0, 16, 2): a(f"v_max3_f32 v{m}, v{Sx+i}, v{Sx+i+1}, v{m}")
    def negbcast(m, w):
        a(f"v_mov_b32 v{m+1}, v{m}\nv_permlane32_swap_b32 v{m}, v{m+1}\nv_max_f32 v{m}, v{m}, v{m+1}")
        for i in range(16): a(f"v_sub_f32 v{NEG+16*w+i}, 0, v{m}")
    for w in range(2):
        a(f"v_mov_b32 v{T}, v{S+16*w}")
        rowmax(S + 16 * w, T); negbcast(T, w)
        if w == 0:
            for i in range(16): a(f"v_sub_f32 v{S+i}, v{S+i}, v{T}")
    a(f"""
    s_sub_u32 s30, s30, {ST}
    s_waitcnt vmcnt({4*(R-2)})
    s_barrier
    ds_read_b128 {v(V0,4)}, v2 offset:2048
    ds_read_b128 {v(V1,4)}, v2 offset:3072""")
    cnt = Cnt()
    def ph(n, E, site):
        def W(c, nm, tags):
            cnt.wait(c, (site, nm), tags)
            if E: E(cnt.text(c, (site, nm)))
        def X(x):
            if E: E(x)
        def RD(reg, blk, piece):
            X(f"ds_read_b128 {v(reg,4)}, v2 offset:{(blk % (4*R))*4096 + piece*1024}")
            cnt.issue("lg", (piece, blk))
        def VM(x, tag):
            X(x); cnt.issue("vm", tag)
        j = n >> 1; w = n & 1; o = 1 - w
        Sc, Sn, Pc, Pp = S + 16 * w, S + 16 * o, P + 8 * w, P + 8 * o
        vb = (n - 1) >> 1
        Vr = V0 + 8 * (vb % 2); Vw = V0 + 8 * ((j + 1) % 2)
        e = lambda *l: [X(f"v_exp_f32 v{Sc+i}, v{Sc+i}") for i in l]
        c = lambda *l: [X(f"v_cvt_pk_bf16_f32 v{Pc+i}, v{Sc+2*i}, v{Sc+2*i+1}") for i in l]
        d = dma((n // 8 - 1) % R) if n % 8 in (5, 6, 7) else None
        dd = n % 8 == 7
        tg = ("B", n // 8 - 1 + R)
        X(f"v_mfma_f32_32x32x16_bf16 {v(Sn,16)}, {v(K0,4)}, {v(Q+8*o,4)}, {v(NEG+16*o,16)}")
        if w == 0: RD(K0, j + 1, 0)
        else: W("lg", "k1", {(1, j + 1)})
        e(0, 1, 2, 3); c(0)
        X(f"v_mfma_f32_32x32x16_bf16 {v(Sn,16)}, {v(K1,4)}, {v(Q+8*o+4,4)}, {v(Sn,16)}")
        if w == 0: RD(K1, j + 1, 1)
        if dd: VM(d[1], tg); VM(d[2], tg)
        if n % 8 == 1: X(f"s_add_u32 s30, s30, {ST}")
        e(4, 5, 6); c(1, 2)
        X(f"v_mfma_f32_32x32x16_bf16 {v(O+16*o,16)}, {v(Vr,4)}, {v(Pp,4)}, {v(O+16*o,16)}")
        if n % 8 == 5: W("vm", "bar", {("B", n // 8 + 1)})
        if n % 8 == 6: X(d[0])
        if dd: VM(d[3], tg); VM(d[4], tg)
        e(7, 8, 9); c(3, 4)
        X(f"v_mfma_f32_32x32x16_bf16 {v(O+16*o,16)}, {v(Vr+4,4)}, {v(Pp+4,4)}, {v(O+16*o,16)}")
        if w == 0: W("lg", "k0", {(0, j + 1), (2, j), (3, j)})
        if n % 8 == 5: X("s_barrier")
        if n % 32 == 23: VM(f"buffer_load_dword v{T+5}, v{T+4}, s[92:95], 0 offen", ("C",))
        if n % 32 == 7: VM(f"buffer_load_dword v{T+5}, v{T+6}, s[20:23], s50 offen", ("C",))
        if n % 32 == 15:
            VM(f"buffer_load_dword v{T+5}, v{T+7}, s[16:19], s51 offen", ("C",))
            VM(f"buffer_load_dword v{T+5}, v{T+9}, s[56:59], s54 offen", ("C",))
        if n % 32 == 17: X(f"s_add_u32 s50, s50, {1024*14*128}")
        if n % 32 == 25: X(f"s_add_u32 s51, s51, {1024*512}")
        if n % 32 == 27: X(f"s_add_u32 s54, s54, {1024*1024}")
        e(10, 11, 12); c(5)
        ls = lsum(o, Pp)
        X(ls[0])
        RD(Vw + 4 * w, j + 1, 2 + w)
        e(13)
        if len(ls) > 1: X(ls[1])
        e(14, 15); c(6, 7)
    def preload():
        cnt.reset()
        for st in range(R - 1):
            for i in range(4): cnt.issue("vm", ("B", st))
        cnt.issue("lg", (2, 0)); cnt.issue("lg", (3, 0))
    preload()
    for n in range(128): ph(n, None, n % 32)
    preload()
    stamp(k, 1)
    a("s_mov_b32 s31, 4\n.p2align 6\nattn_loop:")
    for n in range(32): ph(n, a, n)
    a("s_sub_u32 s31, s31, 1\ns_cmp_lg_u32 s31, 0\ns_cbranch_scc1 attn_loop\nattn_epi:")
    stamp(k, 2)
    a(f"""
    v_mfma_f32_32x32x16_bf16 {v(O+16,16)}, {v(V0+8,4)}, {v(P+8,4)}, {v(O+16,16)}
    v_mfma_f32_32x32x16_bf16 {v(O+16,16)}, {v(V1+8,4)}, {v(P+12,4)}, {v(O+16,16)}""")
    for x in lsum(1, P + 8): a(x)
    a(f"v_mov_b32 v{T}, 0\nv_mov_b32 v{T+1}, 0")
    for i in range(32): a(f"v_fmac_f32 v{T+i%2}, 0, v{O+i}")
    def ltot():
        if SM: a(f"v_add_f32 v{L}, v{L}, v{L+1}\nv_add_f32 v{L+4}, v{L+4}, v{L+5}")
    ltot()
    a(f"""
    v_add_f32 v{T}, v{T}, v{T+1}
    v_add_f32 v{T}, v{T}, v{L}
    v_add_f32 v{T}, v{T}, v{L+4}
    v_cmp_ngt_f32 vcc, {fx(2.0**40)}, v{T}
    s_cbranch_vccnz attn_slow
attn_fin:
    v_rcp_f32 v{T}, v{L}
    v_rcp_f32 v{T+1}, v{L+4}
    s_mul_i32 s32, s24, {2*SLAB}
    s_add_u32 s33, s32, {SLAB}""")
    for w in range(2):
        Ow = O + 16 * w
        for i in range(16): a(f"v_mul_f32 v{Ow+i}, v{Ow+i}, v{T+w}")
        for i in range(8): a(f"v_cvt_pk_bf16_f32 v{Ow+i}, v{Ow+2*i}, v{Ow+2*i+1}")
        a(f"buffer_store_dwordx4 {v(Ow,4)}, v{3+w}, s[12:15], s32 offen sc1\nbuffer_store_dwordx4 {v(Ow+4,4)}, v{3+w}, s[12:15], s33 offen sc1")
    stamp(k, 3)
    prof_out(k, 4, 4, 26)
    a("s_endpgm")
    a(f"""
attn_slow:
    v_mov_b32 v{T}, 0xff800000
    v_mov_b32 v{T+2}, 0xff800000
    s_mov_b32 s30, 0
    s_waitcnt lgkmcnt(0)
attn_slow1:
    buffer_load_dwordx4 {v(K0,4)}, v2, s[8:11], s30 offen
    buffer_load_dwordx4 {v(K1,4)}, v2, s[8:11], s30 offen offset:1024
    s_waitcnt vmcnt(0)""")
    for w in range(2):
        a(f"v_mfma_f32_32x32x16_bf16 {v(S+16*w,16)}, {v(K0,4)}, {v(Q+8*w,4)}, 0")
        a(f"v_mfma_f32_32x32x16_bf16 {v(S+16*w,16)}, {v(K1,4)}, {v(Q+8*w+4,4)}, {v(S+16*w,16)}")
    for w in range(2): rowmax(S + 16 * w, T + 2 * w)
    a("s_add_u32 s30, s30, 4096\ns_cmp_lt_u32 s30, 0x40000\ns_cbranch_scc1 attn_slow1")
    for w in range(2): negbcast(T + 2 * w, w)
    for i in range(32): a(f"v_mov_b32 v{O+i}, 0")
    for i in range(8): a(f"v_mov_b32 v{L+i}, 0")
    a(f"""
    s_mov_b32 s30, 0
attn_slow2:
    buffer_load_dwordx4 {v(K0,4)}, v2, s[8:11], s30 offen
    buffer_load_dwordx4 {v(K1,4)}, v2, s[8:11], s30 offen offset:1024
    buffer_load_dwordx4 {v(V0,4)}, v2, s[8:11], s30 offen offset:2048
    buffer_load_dwordx4 {v(V1,4)}, v2, s[8:11], s30 offen offset:3072
    s_waitcnt vmcnt(0)""")
    for w in range(2):
        a(f"v_mfma_f32_32x32x16_bf16 {v(S+16*w,16)}, {v(K0,4)}, {v(Q+8*w,4)}, {v(NEG+16*w,16)}")
        a(f"v_mfma_f32_32x32x16_bf16 {v(S+16*w,16)}, {v(K1,4)}, {v(Q+8*w+4,4)}, {v(S+16*w,16)}")
    for i in range(32): a(f"v_exp_f32 v{S+i}, v{S+i}")
    for i in range(16): a(f"v_cvt_pk_bf16_f32 v{P+i}, v{S+2*i}, v{S+2*i+1}")
    for w in range(2):
        a(f"v_mfma_f32_32x32x16_bf16 {v(O+16*w,16)}, {v(V0,4)}, {v(P+8*w,4)}, {v(O+16*w,16)}")
        a(f"v_mfma_f32_32x32x16_bf16 {v(O+16*w,16)}, {v(V1,4)}, {v(P+8*w+4,4)}, {v(O+16*w,16)}")
        for x in lsum(w, P + 8 * w): a(x)
    a("s_add_u32 s30, s30, 4096\ns_cmp_lt_u32 s30, 0x40000\ns_cbranch_scc1 attn_slow2")
    ltot()
    a("s_branch attn_fin")
    attn_side(k, 4)
    finish(k)
    return k

def build(kernels, path, verbose=False):
    hdr = open("adaLN_cond__mha_block__geglu_ffn__prompt.s.ref").read().split("; Override launch")[0]
    out = hdr
    for k in kernels:
        out += f"; @launch kernel={k.name} grid=({k.grid},1,1) block=({k.block},1,1) lds={k.lds}\n"
    out += '.amdgcn_target "amdgcn-amd-amdhsa--gfx950"\n'
    for k in kernels:
        rep = []
        out += k.text(rep)
        if verbose:
            print(k.name, "vgpr", k.nv, "agpr", k.na, "lds", k.lds, "nops inserted:", len(rep))
            for r in rep:
                if "m0" not in r[1]: print("   ", r)
    out += '.section .rodata,"a"\n'
    for k in kernels: out += k.desc()
    open(path, "w").write(out)

CHECK = {"x2": "frag", "h2": False, "h1": False, "slab": SLAB}
def all_kernels():
    global QPRE
    QPRE = EXP.get("qpre", 1024)
    if EXP.get("fuse1", 1):
        ORDER[:] = ["pre_kernel", "qkv_kernel", "attn_kernel", "out_kernel", "gu_kernel", "down_kernel"]
        return [k_pre(), k_qkv(), k_attn4() if EXP.get('a4', 1) else k_attn(), k_out(), k_gu(), k_down()]
    ORDER[:] = ["pre_kernel", "ln1_kernel", "qkv_kernel", "attn_kernel", "out_kernel", "gu_kernel", "down_kernel"]
    return [k_pre(), k_ln("ln1_kernel", P_X, WS_H1, 0, 1), k_qkv(), k_attn(), k_out(), k_gu(), k_down()]

if __name__ == "__main__":
    vb = False
    for x in sys.argv[2:]:
        if x == "prof": PROF = True
        elif x == "verbose": vb = True
        else:
            kk, _, vv = x.partition("="); EXP[kk] = int(vv) if vv else 1
    build(all_kernels(), sys.argv[1] if len(sys.argv) > 1 else "adaLN_cond__mha_block__geglu_ffn__prompt.s", verbose=vb)
```

```python
import sys, math
from asmlib import *
import g2
from g2 import (SLAB, WS_MODP, WS_UV, WS_STAT, WS_WQ3, WS_WO3, WS_WD3, WS_H1, WS_Q, WS_KV, WS_O, WS_X2, WS_Y2, WS_ACT, WS_PROF, KS,
                P_X, P_WQKV, P_WO, P_WG, P_WU, P_WD, P_C, P_WMOD, P_OUT, P_DBG, P_WS, LOG2E, EXP, KID, fx, Kernel, load_ptrs, srd,
                guard, finish, unpack, rbf, phys_line, code_srd, wave_lane, cpf_addr)
WS_FLAG = 768 << 10
NFLAG = 2048
F_OUT, F_GU, F_EX, F_ATT, F_QKV = 0, 256, 512, 1536, 1792
WS_GBP = 192 << 10
WS_WD4 = 58 << 20
WS_EX = 62 << 20
CHECK = {"x2": None, "h2": False, "h1": False, "slab": SLAB, "y2": "split"}

NSTAMP = [0]
def stamp(k, force=False, last=False):
    if not g2.PROF: return
    if EXP.get("gst") and k.name == "mlp_kernel" and not force and getattr(k, "nst", 0) > 0: return
    k.nall = getattr(k, "nall", -1) + 1
    i = k.nst = getattr(k, "nst", 0)
    if k.name == "mlp_kernel" and not last and not EXP.get("gst") and (k.nall < EXP.get("p0", 0) or i >= 10): return
    k.a(f"s_memtime s[72:73]\ns_memrealtime s[74:75]\ns_waitcnt lgkmcnt(0)\ns_mov_b32 s{76+2*i}, s72\ns_mov_b32 s{77+2*i}, s74")
    k.nst += 1
def prof_out(k, kid):
    if not g2.PROF: return
    a = k.a
    a("s_waitcnt vmcnt(0)"); stamp(k, last=True)
    a(f"s_add_u32 s4, s38, {WS_PROF + kid*(1<<18)}\ns_addc_u32 s5, s39, 0\ns_mov_b32 s6, {1<<18}\ns_mov_b32 s7, 0x20000")
    a(f"s_lshl_b32 s32, s2, 2\ns_add_u32 s32, s32, s26\ns_lshl_b32 s32, s32, 7\nv_mov_b32 v1, 0")
    for i in range(2 * k.nst): a(f"v_mov_b32 v0, s{76+i}\nbuffer_store_dword v0, v1, s[4:7], s32 offen offset:{4*i}")

class Gemm:
    def __init__(self, k, name, sset, K, MR, NC, DA, R, U, PEEL, CAP, INIT, btype, a_off, orient, TM, TN, xm, xn, ldb, alt,
                 lds0, vlow, acc0, frag, mod=False, FB=1, WG=1, sc1=False, split=False):
        self.__dict__.update(locals()); self.a = k.a
        self.S = K // 32; self.NST = K // 64
        b = 40 + 8 * sset
        self.tm, self.tn, self.rb0, self.sB, self.sW, self.sW0, self.sWE, self.sBI = range(b, b + 8)
        self.SB = 8 if sset == 0 else 28
        if btype == "panel": self.NP = NC // 4; self.STAGE = self.NP * 8192; self.ND = 2 * self.NP; self.NRB = 4
        else: self.UPOFF = 64 * 224; self.STAGE = 2 * self.UPOFF; self.ND = 7; self.NRB = 1
        self.VB = vlow; self.VR0 = self.VB + self.ND; self.VR = self.VR0 + 1; self.VA = self.VR + self.NRB
        self.vend = self.VA + MR
        self.fk, f0 = frag
        self.BF = f0; self.AR = f0 + 4 * NC * FB; self.fend = self.AR + 4 * MR * DA
        self.pre = 0
        self.slot0 = 0
    def acc(self, j, i): return self.acc0 + 4 * (j * self.MR + i)

    def tile(self):
        tm_per, tn_per = self.TM // self.xm, self.TN // self.xn
        self.a(f"""
        s_and_b32 s32, s2, 7
        s_lshr_b32 s33, s2, 3
        s_lshr_b32 s34, s32, {self.xn.bit_length()-1}
        s_and_b32 s35, s32, {self.xn-1}
        s_and_b32 s{self.tm}, s33, {tm_per-1}
        s_lshr_b32 s{self.tn}, s33, {tm_per.bit_length()-1}
        s_mul_i32 s34, s34, {tm_per}
        s_add_u32 s{self.tm}, s{self.tm}, s34
        s_mul_i32 s35, s35, {tn_per}
        s_add_u32 s{self.tn}, s{self.tn}, s35
        s_lshl_b32 s{self.rb0}, s{self.tm}, 2
        s_add_u32 s{self.rb0}, s{self.rb0}, s26
        s_mul_i32 s{self.rb0}, s{self.rb0}, {self.MR//2}""")

    def b_addr(self, T):
        a = self.a; VB = self.VB; ldb = self.ldb
        if self.btype == "panel":
            off_alt, ldb_alt, pst_alt, sst_alt = self.alt
            sb = self.SB
            a(f"""
            s_and_b32 s32, s{self.tn}, 7
            s_lshr_b32 s33, s{self.tn}, 3
            s_mul_i32 s33, s33, {sst_alt}
            s_lshl_b32 s34, s{self.tn}, 7
            s_mov_b32 s35, {ldb}
            s_mov_b32 s{self.sB}, 2048
            s_cmp_eq_u32 s32, 3
            s_cselect_b32 s33, s33, s34
            s_cselect_b32 s35, {ldb_alt}, s35
            s_cselect_b32 s{self.sB}, {pst_alt}, s{self.sB}""" if not self.split else f"""
            s_and_b32 s32, s{self.tn}, 6
            s_lshr_b32 s33, s{self.tn}, 3
            s_lshl_b32 s33, s33, 1
            s_and_b32 s34, s{self.tn}, 1
            s_add_u32 s33, s33, s34
            s_lshl_b32 s33, s33, 8
            s_lshl_b32 s34, s34, 1
            s_sub_u32 s{self.sB}, 1, s34
            s_lshl_b32 s34, s{self.tn}, 7
            s_mov_b32 s35, {ldb}
            s_cmp_eq_u32 s32, 2
            s_cselect_b32 s33, s33, s34
            s_cselect_b32 s35, {ldb_alt}, s35
            s_cselect_b32 s34, 8, 7
            s_lshl_b32 s{self.sB}, s{self.sB}, s34""")
            a(f"""
            s_lshl_b32 s{self.sBI}, s35, 6
            s_lshl_b32 s34, s35, 3
            s_lshl_b32 s32, s26, 4
            v_lshrrev_b32 v{T}, 3, v1
            v_and_b32 v{T+1}, 7, v1
            v_and_b32 v{T+2}, 6, v{T}
            v_xor_b32 v{T+1}, v{T+1}, v{T+2}
            v_add_u32 v{T}, s32, v{T}
            v_mul_lo_u32 v{T}, v{T}, s35
            v_lshl_add_u32 v{T}, v{T+1}, 4, v{T}
            v_add_u32 v{VB}, s33, v{T}
            v_add_u32 v{VB+1}, s34, v{VB}""")
            for p in range(1, self.NP):
                a(f"v_add_u32 v{VB+2*p}, s{self.sB}, v{VB+2*p-2}\nv_add_u32 v{VB+2*p+1}, s{self.sB}, v{VB+2*p-1}")
            self.dma_lds = [p * 8192 + g * 1024 for p in range(self.NP) for g in range(2)]
            a(f"s_lshl_b32 s{self.sW0}, s26, 11")
        else:
            a(f"""
            s_and_b32 s32, s26, 1
            s_mul_i32 s33, s32, {32*ldb}
            s_mul_i32 s34, s{self.tn}, 224
            s_add_u32 s33, s33, s34
            s_mov_b32 s{self.sBI}, {64*ldb}""")
            for i in range(7):
                a(f"""
                v_add_u32 v{T}, {64*i}, v1
                v_mul_u32_u24 v{T+1}, 4682, v{T}
                v_lshrrev_b32 v{T+1}, 16, v{T+1}
                v_lshl_add_u32 v{T}, v{T}, 4, s33
                v_mul_u32_u24 v{T+1}, {ldb-224}, v{T+1}
                v_add_u32 v{VB+i}, v{T}, v{T+1}""")
            self.dma_lds = [1024 * i for i in range(7)]
            a(f"s_mul_i32 s{self.sW0}, s26, 7168")
        a(f"""
        s_add_u32 s{self.sW0}, s{self.sW0}, {self.lds0}
        s_mov_b32 s{self.sB}, 0
        s_add_u32 s{self.sW}, s{self.sW0}, {self.slot0*self.STAGE}
        s_add_u32 s{self.sWE}, s{self.sW0}, {self.R*self.STAGE}""")

    def b_srd(self, p0, p1=None):
        a = self.a; sb = self.SB
        if self.btype == "panel":
            a(f"""
            s_add_u32 s32, s38, {self.alt[0]}
            s_addc_u32 s33, s39, 0
            s_cmp_eq_u32 s{self.sBI}, {64*self.alt[1]}
            s_cselect_b32 s{sb}, s32, s{p0}
            s_cselect_b32 s{sb+1}, s33, s{p0+1}
            s_mul_i32 s{sb+2}, s{self.sBI}, {self.NST}
            s_mov_b32 s{sb+3}, 0x20000""")
            if self.split:
                a(f"s_and_b32 s32, s{self.tn}, 1\ns_mul_i32 s32, s32, s{sb+2}\ns_add_u32 s{sb}, s{sb}, s32\ns_addc_u32 s{sb+1}, s{sb+1}, 0")
        else:
            a(f"s_cmp_ge_u32 s26, 2\ns_cselect_b32 s{sb}, s{p1}, s{p0}\ns_cselect_b32 s{sb+1}, s{p1+1}, s{p0+1}")
            a(f"s_mov_b32 s{sb+2}, {self.K*self.ldb}\ns_mov_b32 s{sb+3}, 0x20000")

    def dma_op(self, i):
        ins = [f"s_add_u32 m0, s{self.sW}, {self.dma_lds[i]}", f"buffer_load_dwordx4 v{self.VB+i}, {s(self.SB,4)}, s{self.sB} offen lds"]
        if i == self.ND - 1:
            ins += [f"s_add_u32 s{self.sB}, s{self.sB}, s{self.sBI}", f"s_add_u32 s{self.sW}, s{self.sW}, {self.STAGE}",
                    f"s_cmp_eq_u32 s{self.sW}, s{self.sWE}\ns_cselect_b32 s{self.sW}, s{self.sW0}, s{self.sW}"]
        return ins
    def preload(self, n):
        self.pre = n
        return [self.dma_op(i) for st in range(n) for i in range(self.ND)]

    def a_addr(self, T):
        a = self.a
        a(f"""
        v_bfe_u32 v{T+2}, v1, 4, 1
        v_bfe_u32 v{T+3}, v1, 3, 1
        v_lshl_add_u32 v{T+2}, v{T+2}, 2, v{T+3}
        s_lshl_b32 s32, s{self.rb0}, 3
        v_add_u32 v{T+2}, s32, v{T+2}
        v_lshrrev_b32 v{T+3}, 5, v1
        v_mul_u32_u24 v{T+3}, {SLAB}, v{T+3}
        v_and_b32 v{T}, 7, v1
        v_lshl_add_u32 v{T+3}, v{T}, 4, v{T+3}""")
        for i in range(self.MR):
            a(f"v_add_u32 v{T}, {8*(i//2) + 2*(i%2)}, v{T+2}")
            phys_line(a, self.VA + i, T, T + 1)
            a(f"v_add_u32 v{self.VA+i}, v{self.VA+i}, v{T+3}")
        a("s_mov_b32 s27, 0")
    def a_srd(self):
        srd(self.a, 4, 38, self.a_off, 2 * self.S * SLAB)
        if self.split: self.a(f"s_and_b32 s32, s{self.tn}, 1\ns_mul_i32 s32, s32, s6\ns_add_u32 s4, s4, s32\ns_addc_u32 s5, s5, 0")

    def r_addr(self, T):
        a = self.a
        a(f"""
        v_lshrrev_b32 v{T}, 5, v1
        v_bfe_u32 v{T+1}, v1, 2, 3
        v_lshl_add_u32 v{T}, v{T}, 4, v{T+1}
        v_and_b32 v{T+2}, 3, v1""")
        if self.btype == "panel":
            a(f"""
            v_lshlrev_b32 v{T}, 7, v{T}
            v_lshl_add_u32 v{T}, v{T+2}, 3, v{T}
            v_lshrrev_b32 v{T+1}, 1, v{T+1}
            v_lshl_add_u32 v{self.VR0}, v{T+1}, 5, v{T}""")
        else:
            a(f"v_mul_u32_u24 v{T}, 224, v{T}\nv_lshl_add_u32 v{self.VR0}, v{T+2}, 3, v{T}")
        a(f"s_mov_b32 s37, {self.lds0 + ((self.slot0-1) % self.R)*self.STAGE}")
    def rd(self, j, sub, r_):
        if self.btype == "panel": return self.VR + j % 4, (j // 4) * 8192 + 128 * (32 * sub + 8 * r_)
        return self.VR, (j % 2) * self.UPOFF + 32 * (j // 2) + 224 * (32 * sub + 8 * r_)

    def run(self, extra_fn, early=None, late=None, cpf=None, gate=None, POST=0, post_ops=None, timed=None, gfirst=False):
        g = self; a = self.a
        S, NST, MR, NC, DA, R, U, PEEL, FB, ND, mod, fk = g.S, g.NST, g.MR, g.NC, g.DA, g.R, g.U, g.PEEL, g.FB, g.ND, g.mod, g.fk
        assert (NST - PEEL - POST) % U == 0 and (2 * U) % DA == 0 and (2 * U) % FB == 0 and FB <= 2 and PEEL > 0
        sc = " sc1" if g.sc1 else ""
        def make_ops(extra):
            ops = []
            for ta in range(S + DA + 4):
                if ta >= S and ta + 1 - DA >= S - 2 * POST: break
                for i in range(MR):
                    ins = [f"buffer_load_dwordx4 {rr(fk, g.AR+4*(MR*(ta%DA)+i), 4)}, v{g.VA+i}, s[4:7], s27 offen{sc}"]
                    if i == MR - 1: ins.append(f"s_add_u32 s27, s27, {2*SLAB}")
                    ops.append([ta - (1 if mod else 0), ta + (0 if mod else 1) - DA, len(ops), ins, ("A", ta)])
            for st in range(g.pre, NST + R + 2 if g.pre < NST else 0):
                for i in range(ND):
                    ea = 2 * (st + 2 - R) - FB + i * 2 // ND
                    if st >= NST and ea >= S - 2 * POST: continue
                    ops.append([2 * st - FB - 0.5, ea, len(ops), g.dma_op(i), ("B", st)])
            for ea, ins in (post_ops or []): ops.append([1000, ea, len(ops), ins, ("X",)])
            for need, ins in extra: ops.append([need, -999, len(ops), ins, ("X",)])
            ops.sort(key=lambda o: (o[0], o[2]))
            return ops
        cnt = Cnt()
        def go(emit):
            emit0 = emit; em = [emit]
            ng = [0]
            vq = [list(q) for q in (timed or [])]
            def E(x):
                ng[0] += len([1 for l in x.split("\n") if l.strip()]) + (1 if x.startswith("buffer_") else 0)
                if em[0]: em[0](x)
            ops = make_ops(extra_fn())
            def take(t, cap):
                got = [o for o in ops if o[1] <= t][:cap]
                for o in got: ops.remove(o)
                return [(x, o[4] if x.startswith("buffer_") else None) for o in got for x in o[3]]
            def W(site, c, nm, tags):
                assert nm != "X" or not [o for o in ops if o[4] == ("X",) and o[0] < 100], "extras not issued"
                cnt.wait(c, (site, nm), tags)
                n_ = ng[0]; E(cnt.text(c, (site, nm))); ng[0] = n_ + (1 if nm[0] in "XU" or (nm[0] == "N" and (int(nm[1:]) + 1) % g.WG == 0) else 0)
            def flush(fill, n):
                for _ in range(n):
                    if not fill: return
                    x, tag = fill.pop(0)
                    if x == "W": W(*tag); continue
                    E(x)
                    if tag and tag[0] == "L": cnt.issue("lg", tag[1])
                    elif tag: cnt.issue("vm", tag)
            def slot_s(): return [(f"s_add_u32 s37, s37, {g.STAGE}", None), (f"s_cmp_eq_u32 s37, {g.lds0 + R*g.STAGE}\ns_cselect_b32 s37, {g.lds0}, s37", None)]
            def slot_v():
                out = [f"v_add_u32 v{g.VR}, s37, v{g.VR0}"]
                for b in range(1, g.NRB): out.append(f"v_xor_b32 v{g.VR+b}, {32*b}, v{g.VR}")
                return out
            def reads(tt, j):
                out = []
                for r_ in range(2):
                    base, off = g.rd(j, tt % 2, r_)
                    out.append((f"ds_read_b64_tr_b16 {rr(fk, g.BF+4*(NC*(tt%FB)+j)+2*r_, 2)}, v{base} offset:{off}", ("L", ("F", tt, j))))
                return out
            def cread(tt):
                base = (tt if tt < 2 * PEEL + 2 else 2 * PEEL + (tt - 2 * PEEL - 2) % (2 * U) + 2) * 256
                CM = g.CM0 + 16 * (tt % 2)
                return [(f"ds_read_b128 {v(CM+4*n,4)}, v{g.VC} offset:{base+16*n}", ("L", ("C", tt))) for n in range(4)]
            def xform(tt):
                out = []; CM = g.CM0 + 16 * (tt % 2)
                for i in range(MR):
                    r = g.AR + 4 * (MR * (tt % DA) + i)
                    for e in range(8):
                        out.append((f"v_fma_mix_f32 v{g.XT+e}, v{r+e//2}, v{CM+e}, v{CM+8+e} " + ("op_sel:[1,0,0] " if e % 2 else "") + "op_sel_hi:[1,0,0]", None))
                    for e in range(4): out.append((f"v_cvt_pk_bf16_f32 v{g.HF+4*(MR*(tt%2)+i)+e}, v{g.XT+2*e}, v{g.XT+2*e+1}", None))
                return out
            if early: early(emit, cnt)
            if not gate: flush(take(-FB - 1, g.INIT), 999)
            if late: late(emit, lambda c, nm, tags: W("pro", c, nm, tags))
            W("pro", "vm", "bar", {("B", 0)})
            flush(slot_s(), 9)
            if not gate: E("s_barrier")
            if gate and gfirst:
                if emit: gate()
                flush(take(-FB - 1, g.INIT), 999)
            for x in slot_v(): E(x)
            if FB == 2: flush(slot_s(), 9)
            if mod: flush(cread(0) + cread(1), 99)
            for tt in range(FB):
                for j in range(NC): flush(reads(tt, j), 2)
            if gate and not gfirst:
                if emit: gate()
                flush(take(-FB - 1, g.INIT), 999)
            W("pro", "vm", "A", {("A", 0)})
            if mod:
                W("pro", "lg", "C", {("C", 0)})
                flush(xform(0), 99)
            W("pro", "lg", "F", {("F", 0, min(NC - 1, g.WG - 1))})
            if emit: stamp(g.k)
            pend = []
            for t in range(S):
                peeled = t < 2 * PEEL or t >= S - 2 * POST
                site = ("p", t) if peeled else (t - 2 * PEEL) % (2 * U)
                if t == 2 * PEEL and not peeled:
                    assert not [o for o in ops if o[1] < t], f"{g.name}: backlog not drained"
                    if emit0 and EXP.get("pstamp"): stamp(g.k)
                    E(f"s_mov_b32 s36, {(NST-PEEL-POST)//U}\n.p2align 6\n{g.name}_loop:")
                em[0] = emit0 if (peeled or t < 2 * PEEL + 2 * U) else None
                if emit0 and EXP.get("gst") and g.name == "gu" and t in (0, 2, 4, 6, 10, 16, 22, 26, 28, 30): stamp(g.k, True)
                bar = (t + FB) % 2 == 0
                fill = take(t, g.CAP if peeled else 999)
                if cpf and ((not peeled and site == 1) or (PEEL + POST == NST and t % EXP.get('cpfn', 4) == 1)): fill += [(x, ("C",)) for x in cpf.split("|")]

                if (t + 1 + FB) % 2 == 0: fill = fill + slot_s()
                last = (not peeled) and site == 2 * U - 1
                if last: fill.append(("s_sub_u32 s36, s36, 1\ns_cmp_lg_u32 s36, 0", None))
                vfill = []
                if mod:
                    fill = cread(t + 2) + fill
                    vfill = xform(t + 1) + ([(f"v_add_u32 v{g.VC}, {2*U*256}, v{g.VC}", None)] if last else [])
                ngap = NC * MR
                first = MR + 1 if bar else 0
                n0 = len(fill); nv0 = len(vfill); gap = 0
                for j in range(NC):
                    for i in range(MR):
                        af = rr(fk, g.AR + 4 * (MR * (t % DA) + i), 4) if not mod else v(g.HF + 4 * (MR * (t % 2) + i), 4)
                        bf = rr(fk, g.BF + 4 * (NC * (t % FB) + j), 4); c = v(g.acc(j, i), 4)
                        x, y = (bf, af) if g.orient[j] == "tok" else (af, bf)
                        E(f"v_mfma_f32_16x16x32_bf16 {c}, {x}, {y}, {c if t else 0}")
                        gap += 1; ng[0] = 0
                        if mod and gap == 1:
                            W(site, "vm", "A", {("A", t + 1)}); W(site, "lg", "C", {("C", t + 1)})
                        if i == MR - 1:
                            jn, tn_ = (j + 1, t) if j + 1 < NC else (0, t + 1)
                            if jn == 0 and not mod: W(site, "vm", "A", {("A", t + 1)})
                            assert not any(tg[1][1:] == (tn_, jn) for _, tg in pend)
                            tgt = min(NC - 1, jn + (g.WG - 1 - jn % g.WG))
                            while any(tg[1][1:] == (tn_, tgt) for _, tg in pend) or (FB == 1 and tn_ > t and tgt >= j): tgt -= 1
                            W(site, "lg", f"N{j}", {("F", tn_, tgt)})
                        busy = bool(pend) and MR > 2 and gap < ngap
                        flush(pend, 1)
                        if bar and gap == MR:
                            flush(pend, 9)
                            W(site, "vm", "bar", {("B", (t + FB) // 2)})
                            if g.pre < NST or site == 0: E("s_barrier")
                            for x in slot_v(): E(x)
                        if i == MR - 1: pend += reads(t + FB, j)
                        if (gap > first or first == 0) and not busy:
                            den = ngap - first
                            want = max(0, (n0 * (gap - first) + den - 1) // den - (n0 - len(fill)))
                            flush(fill, want)
                        G = t * ngap + gap - 1; placed = 0
                        while vq and vq[0][2] <= G:
                            left = sum(1 for q in vq if q[3] == vq[0][3])
                            must = left > vq[0][3] - G
                            mem = not vq[0][0].startswith(("v_fmac_f32 v", "W"))
                            if not must and (ng[0] >= 2 or placed or (mem and ng[0] >= 1)): break
                            assert peeled
                            x, tg = vq.pop(0)[:2]; placed += 1
                            flush([(x, (site,) + tg if x == "W" else tg)], 1)
                        vs = ngap - 2
                        if gap > 1: flush(vfill, max(0, (nv0 * min(gap - 1, vs) + vs - 1) // vs - (nv0 - len(vfill))))
                assert not fill and not vfill
                if last or t == 2 * PEEL - 1 or t == S - 1:
                    flush(pend, 9)
                    if last: E(f"s_cbranch_scc1 {g.name}_loop")
            assert not vq
        go(None)
        cnt.reset()
        go(a)
        a(f"{g.name}_epi:")
        stamp(g.k, g.name == "gu")

def piece_lane(a, dst, t):
    a(f"""
    v_and_b32 v{dst}, 15, v1
    v_lshrrev_b32 v{t}, 5, v1
    v_lshl_add_u32 v{dst}, v{t}, 4, v{dst}
    v_bfe_u32 v{t}, v1, 4, 1
    v_lshl_add_u32 v{dst}, v{t}, 5, v{dst}
    v_lshlrev_b32 v{dst}, 4, v{dst}""")
def piece_slab(a, dst, srb, add, t):
    a(f"""
    v_bfe_u32 v{t}, v1, 4, 1
    v_lshrrev_b32 v{t+1}, 5, v1
    v_lshl_add_u32 v{t}, v{t}, 1, v{t+1}
    v_bfe_u32 v{t+1}, v1, 3, 1
    v_lshl_add_u32 v{t}, v{t}, 1, v{t+1}
    s_lshl_b32 s32, s{srb}, 3
    s_add_u32 s32, s32, {8*add}
    v_add_u32 v{t}, s32, v{t}""")
    phys_line(a, dst, t, t + 1)
    a(f"v_and_b32 v{t}, 7, v1\nv_lshl_add_u32 v{dst}, v{t}, 4, v{dst}")
def pack_swap(a, d, x, y):
    a(f"""
    v_cvt_pk_bf16_f32 v{d}, v{x}, v{x+1}
    v_cvt_pk_bf16_f32 v{d+1}, v{x+2}, v{x+3}
    v_cvt_pk_bf16_f32 v{d+2}, v{y}, v{y+1}
    v_cvt_pk_bf16_f32 v{d+3}, v{y+2}, v{y+3}""")
def swap2(a, d): a(f"v_permlane32_swap_b32 v{d}, v{d+2}\nv_permlane32_swap_b32 v{d+1}, v{d+3}")
def allred4(a, regs, t):
    for op in ("v_permlane16_swap_b32", "v_permlane32_swap_b32"):
        for n, r in enumerate(regs): a(f"v_mov_b32 v{t+n}, v{r}")
        for n, r in enumerate(regs): a(f"{op} v{r}, v{t+n}")
        for n, r in enumerate(regs): a(f"v_add_f32 v{r}, v{r}, v{t+n}")

def head(k, ptrs):
    guard(k); stamp(k)
    load_ptrs(k.a, [(38, P_WS)] + ptrs)
    wave_lane(k.a)

def k_qkv():
    k = Kernel("qkv_kernel", 256, 256, 24576 * EXP.get("qR", 4) + 8192 + 512, 256)
    head(k, [(60, P_WQKV)])
    qkv_phase(k)
    stamp(k); prof_out(k, KID[k.name]); finish(k)
    return k
def qkv_phase(k):
    R = EXP.get("qR", 4); a = k.a
    g = Gemm(k, "qkv", 0, 1024, 2, 12, EXP.get("qDA", 4), R, 2, EXP.get("qPEEL", 4), EXP.get("qCAP", 8), EXP.get("qINIT", 14), "panel", WS_H1,
             ["tok"] * 8 + ["feat"] * 4, 16, 16, 2, 4, 6144, (WS_WQ3, 1536, 256, 768), 0, 3, 24, ("v", 120), mod=True, WG=EXP.get("qWG", 6))
    g.CM0 = g.fend; g.HF = g.CM0 + 32; g.XT = g.HF + 16; g.VC = 20; T = 16
    assert g.vend <= 16 and g.XT + 8 <= 256
    XL = 24576 * R; A0 = g.acc0
    g.tile(); g.b_addr(T); g.a_addr(T)
    a("s_waitcnt lgkmcnt(0)")
    g.a_srd(); g.b_srd(60)
    def early(emit, cnt):
        if emit:
            srd(a, 20, 38, WS_MODP, KS * 6144 * 4)
            a(f"v_lshlrev_b32 v{g.VC}, 4, v0")
        for p in range(KS):
            for n, idx in enumerate((1, 0)):
                if emit: a(f"s_mov_b32 s32, {p*6144*4 + idx*4096}\nbuffer_load_dwordx4 {v(A0+8*p+4*n,4)}, v{g.VC}, s[20:23], s32 offen")
                cnt.issue("vm", ("M",))
    def late(emit, W):
        if emit:
            g.r_addr(T)
            code_srd(k, 68, "qkv_epi", None, 256); cpf_addr(a, 2)
            a(f"""
            v_lshrrev_b32 v{A0+24}, 2, v0
            v_lshlrev_b32 v{A0+24}, 7, v{A0+24}
            v_and_b32 v{A0+25}, 1, v0
            v_lshl_add_u32 v{A0+24}, v{A0+25}, 6, v{A0+24}
            v_bfe_u32 v{A0+25}, v0, 1, 1
            v_lshl_add_u32 v{A0+24}, v{A0+25}, 4, v{A0+24}
            v_add_u32 v{A0+24}, {XL}, v{A0+24}
            v_lshrrev_b32 v{g.VC}, 4, v1
            v_lshlrev_b32 v{g.VC}, 6, v{g.VC}
            v_add_u32 v{g.VC}, {XL}, v{g.VC}""")
        W("vm", "M", {("M",)})
        if emit:
            for j in range(8): a(f"v_add_f32 v{A0+j}, v{A0+j}, v{A0+8+j}")
            for j in range(4): a(f"v_cvt_pk_bf16_f32 v{A0+16+j}, v{A0+2*j}, v{A0+2*j+1}")
            unpack(a, A0, A0 + 16, 4)
            for j in range(4): a(f"v_add_f32 v{A0+j}, 1.0, v{A0+j}")
            for j in range(2): a(f"v_cvt_pk_bf16_f32 v{A0+16+j}, v{A0+2*j}, v{A0+2*j+1}")
            unpack(a, A0, A0 + 16, 2)
            a(f"ds_write_b128 v{A0+24}, {v(A0,4)}\nds_write_b128 v{A0+24}, {v(A0+4,4)} offset:32\ns_waitcnt lgkmcnt(0)")
    g.run(lambda: [], early, late, "buffer_load_dword v0, v2, s[68:71], 0 offen")
    qs = LOG2E / math.sqrt(32)
    srd(a, 12, 38, WS_Q, 4 << 20); srd(a, 16, 38, WS_KV, 8 << 20)
    piece_lane(a, T, T + 1)
    a(f"""
    s_lshl_b32 s32, s{g.tn}, 7
    s_add_u32 s32, s32, s{g.rb0}
    s_lshl_b32 s33, s32, 11
    s_lshl_b32 s34, s32, 12
    s_add_u32 s35, s33, {64*2048}
    s_add_u32 s56, s34, {64*4096}""")
    jobs = []
    for j in range(8):
        hd, gg = (j >> 1) & 1, j & 1
        dst = (f"s[12:15], s{35 if hd else 33} offen offset:{1024*gg}" if j < 4 else f"s[16:19], s{56 if hd else 34} offen offset:{1024*gg}")
        jobs.append((g.acc(j, 0), g.acc(j, 1), j < 4, dst))
    for hd in range(2):
        for i in range(2):
            jobs.append((g.acc(8 + 2 * hd, i), g.acc(9 + 2 * hd, i), False, f"s[16:19], s{56 if hd else 34} offen offset:{2048+1024*i}"))
    prev = None
    for x, y, sc_, dst in jobs + [(None,) * 4]:
        if x is not None:
            if sc_:
                for r in list(range(x, x + 4)) + list(range(y, y + 4)): a(f"v_mul_f32 v{r}, {fx(qs)}, v{r}")
            pack_swap(a, x, x, y)
        if prev:
            swap2(a, prev[0])
            a(f"buffer_store_dwordx4 {v(prev[0],4)}, v{T}, {prev[1]} sc1")
        prev = (x, dst)
    a("v_lshl_add_u32 v0, s26, 6, v1")
    return g

def colvec_ops(g, need, dst, idxs, va):
    ops = []
    first = [f"s_lshl_b32 s32, s{g.tn}, 8\nv_lshl_add_u32 v{va}, v1, 2, s32"]
    for n, idx in enumerate(idxs):
        for p in range(KS):
            ops.append((need, first + [f"s_mov_b32 s32, {p*6144*4 + idx*4096}", f"buffer_load_dword v{dst+2*n+p}, v{va}, s[20:23], s32 offen{' sc1' if g.sc1 else ''}"]))
            first = []
    return ops
def tile_lds_addr(a, dst, t, sbase):
    a(f"""
    v_and_b32 v{dst}, 15, v1
    v_lshlrev_b32 v{dst}, 7, v{dst}
    v_lshrrev_b32 v{t}, 5, v1
    v_and_b32 v{t+1}, 7, v1
    v_xor_b32 v{t}, v{t}, v{t+1}
    v_lshl_add_u32 v{dst}, v{t}, 4, v{dst}
    v_bfe_u32 v{t}, v1, 4, 1
    v_lshl_add_u32 v{dst}, v{t}, 3, v{dst}
    v_add_u32 v{dst}, s{sbase}, v{dst}""")
def row_src(dst, t):
    return f"""v_lshrrev_b32 v{t}, 3, v1
    v_and_b32 v{dst}, 7, v1
    v_xor_b32 v{dst}, v{dst}, v{t}
    v_lshlrev_b32 v{dst}, 4, v{dst}
    v_lshl_add_u32 v{dst}, v{t}, 11, v{dst}"""

def out_gemm(k, lds0, frag, sset=0, vlow=3):
    return Gemm(k, "out", sset, 1024, 2, 4, 8, EXP.get("oR", 6), 4, 4, 99, 999, "panel", WS_O, ["tok"] * 4, 16, 16, 4, 2, 2048,
                (WS_WO3, 512, 0, 256), lds0, vlow, 32, frag, FB=2, WG=2)
def out_phase(k, g, XL, px, fillers=None, keep=None, nearly=0, gate=None):
    a = k.a; T = 16
    def extra():
        ops = colvec_ops(g, 30, T + 8, [2, 4], T + 6)
        if px is None: return ops
        first = [row_src(T + 7, T + 12) + f"""
        s_lshl_b32 s56, s{g.rb0}, 16
        s_lshl_b32 s32, s{g.tn}, 7
        s_add_u32 s56, s56, s32
        s_lshl_b32 s57, s26, 12
        s_add_u32 s57, s57, {XL}"""]
        for i in range(4):
            ops.append((31, first + [f"s_add_u32 m0, s57, {1024*i}", "s_nop 0", f"buffer_load_dwordx4 v{T+7}, s[12:15], s56 offen lds", "s_add_u32 s56, s56, 0x4000"]))
            first = []
        return ops
    if px is not None: srd(a, 12, px, 0, 4 << 20)
    else: a(f"s_lshl_b32 s57, s26, 12\ns_add_u32 s57, s57, {XL}")
    srd(a, 20, 38, WS_MODP, KS * 6144 * 4)
    def late(emit, W):
        if emit:
            g.r_addr(T); code_srd(k, 68, "out_epi", None, 256); cpf_addr(a, 2)
    g.run(extra, None, late, f"buffer_load_dword v{T+15}, v2, s[68:71], 0 offen", gate)
    fl = fillers() if fillers else []
    budget = [nearly]
    def F(n=1):
        for _ in range(n):
            if fl and budget[0] > 0:
                budget[0] -= 1
                for x in fl.pop(0): a(x)
    G, C, X, P = 64, 80, 96, 128
    F(4)
    srd(a, 12, 38, WS_X2, 4 << 20); srd(a, 16, 38, WS_Y2, 64 * SLAB); srd(a, 20, 38, WS_STAT, 16 * 2048 * 8)
    a(f"v_add_f32 v{T+8}, v{T+8}, v{T+9}\nv_add_f32 v{T+10}, v{T+10}, v{T+11}")
    rbf(a, T + 8); rbf(a, T + 10)
    a(f"v_add_f32 v{T+10}, 1.0, v{T+10}")
    rbf(a, T + 10)
    a(f"""
    s_lshl_b32 s33, s26, 9
    s_add_u32 s33, s33, {XL + 16384}
    v_lshl_add_u32 v{T}, v1, 2, s33
    ds_write_b32 v{T}, v{T+8}
    ds_write_b32 v{T}, v{T+10} offset:256""")
    F(3)
    tile_lds_addr(a, T + 3, T + 1, 57)
    a(f"v_lshrrev_b32 v{T}, 4, v1\nv_lshl_add_u32 v{T}, v{T}, 4, s33")
    for b in range(1, 4): a(f"v_xor_b32 v{T+3+b}, {32*b}, v{T+3}")
    for b in range(4):
        for i in range(2): a(f"ds_read_b64 {v(P+4*b+2*i,2)}, v{T+3+b} offset:{2048*i}")
    a("s_waitcnt lgkmcnt(8)")
    for b in range(4): a(f"ds_read_b128 {v(G+4*b,4)}, v{T} offset:{64*b}")
    for b in range(4): a(f"ds_read_b128 {v(C+4*b,4)}, v{T} offset:{256+64*b}")
    F(4)
    piece_slab(a, T + 2, g.rb0, 0, T + 8)
    a(f"""
    v_lshlrev_b32 v{T+1}, 4, v1
    s_lshl_b32 s34, s{g.rb0}, 4
    s_add_u32 s34, s34, s{g.tn}
    s_lshl_b32 s34, s34, 12
    s_mul_i32 s35, s{g.tn}, {4*SLAB}
    s_waitcnt lgkmcnt(8)""")
    unpack(a, X, P, 16)
    a("s_waitcnt lgkmcnt(4)")
    for b in range(4):
        for i in range(2):
            for e in range(4): a(f"v_fmac_f32 v{X+8*b+4*i+e}, v{G+4*b+e}, v{g.acc(b,i)+e}")
        for e in range(4): a(f"v_cvt_pk_bf16_f32 v{P+4*b+e}, v{X+8*b+2*e}, v{X+8*b+2*e+1}")
        if keep is None: a(f"buffer_store_dwordx4 {v(P+4*b,4)}, v{T+1}, s[12:15], s34 offen offset:{1024*b} sc1")
    unpack(a, X, P, 16)
    a("s_waitcnt lgkmcnt(0)")
    Y = 144
    for b in range(5):
        if b < 4:
            for i in range(2):
                for e in range(4): a(f"v_mul_f32 v{g.acc(b,i)+e}, v{C+4*b+e}, v{X+8*b+4*i+e}")
            pack_swap(a, Y + 4 * b, g.acc(b, 0), g.acc(b, 1))
        if b:
            swap2(a, Y + 4 * (b - 1))
            a(f"buffer_store_dwordx4 {v(Y+4*(b-1),4)}, v{T+2}, s[16:19], s35 offen sc1\ns_add_u32 s35, s35, {SLAB}")
    for i in range(2):
        r = [X + 8 * b + 4 * i + e for b in range(4) for e in range(4)]
        a(f"v_add_f32 v{T+8+2*i}, v{r[0]}, v{r[1]}")
        for x in r[2:]: a(f"v_add_f32 v{T+8+2*i}, v{T+8+2*i}, v{x}")
    allred4(a, [T + 8, T + 10], T + 12)
    a(f"v_mul_f32 v{T+12}, {fx(1/64)}, v{T+8}\nv_mul_f32 v{T+13}, {fx(1/64)}, v{T+10}")
    for i in range(2):
        r = [X + 8 * b + 4 * i + e for b in range(4) for e in range(4)]
        for x in r: a(f"v_sub_f32 v{x}, v{x}, v{T+12+i}")
        a(f"v_mul_f32 v{T+9+2*i}, v{r[0]}, v{r[0]}")
        for x in r[1:]: a(f"v_fmac_f32 v{T+9+2*i}, v{x}, v{x}")
    allred4(a, [T + 9, T + 11], T + 12)
    a(f"""
    v_cmp_lt_u32 vcc, 15, v1
    v_lshlrev_b32 v{T+1}, 3, v1
    s_lshl_b32 s32, s{g.tn}, 14
    s_lshl_b32 s33, s{g.rb0}, 8
    s_add_u32 s32, s32, s33
    v_cndmask_b32 v{T+8}, v{T+8}, v{T+10}, vcc
    v_cndmask_b32 v{T+9}, v{T+9}, v{T+11}, vcc
    s_mov_b32 exec_hi, 0
    buffer_store_dwordx2 {v(T+8,2)}, v{T+1}, s[20:23], s32 offen sc1
    s_mov_b32 exec_hi, -1""")
    if keep is not None:
        for i in range(16): a(f"v_accvgpr_write_b32 a{keep+i}, v{P+i}")
    return fl

def k_out():
    k = Kernel("out_kernel", 256, 256, 8192 * EXP.get("oR", 6) + 16384 + 2048, 256); a = k.a
    g = out_gemm(k, 0, ("v", 160))
    assert g.fend <= 256
    head(k, [(60, P_WO), (62, P_X)])
    g.tile(); g.b_addr(16); g.a_addr(16)
    a("s_waitcnt lgkmcnt(0)")
    g.a_srd(); g.b_srd(60)
    out_phase(k, g, 8192 * g.R, 62)
    stamp(k); prof_out(k, KID[k.name]); finish(k)
    return k

def down_gemm(k, lds0, frag, R, sset=0, vlow=3, sc1=False, acc0=32):
    return Gemm(k, "down", sset, 3584, 2, 4, 8, R, 4, 4, 99, 999, "panel", WS_ACT, ["tok"] * 4, 16, 16, 4, 2, 2048,
                (WS_WD3, 512, 0, 256), lds0, vlow, acc0, frag, FB=2, WG=2, sc1=sc1)
def down_gemm2(k, frag, sset, vlow):
    return Gemm(k, "down", sset, 1792, 2, 8, EXP.get("dDA", 8), 7, 4, 4, 99, 999, "panel", WS_ACT, ["tok"] * 8, 16, 16, 4, 2, 2048,
                (WS_WD4, 1024, 0, 0), 0, vlow, 32, frag, FB=EXP.get("dFB", 1), WG=EXP.get("dWG", 2), sc1=True, split=True)
def down_phase(k, g, XL, pout, keep=None, gate=None, gbp=False):
    a = k.a; T = 16; P, G, X = 96, 112, 128
    sc = " sc1" if g.sc1 else ""
    def extra():
        if gbp:
            first = [f"s_lshl_b32 s32, s{g.tn}, 8\nv_lshl_add_u32 v{T+6}, v1, 2, s32\ns_mov_b32 s56, 0"]
            ops = []
            for p in range(16):
                ops.append((30, first + [f"buffer_load_dword v{176+p}, v{T+6}, s[20:23], s56 offen sc1", "s_add_u32 s56, s56, 4096"])); first = []
            return ops
        ops = colvec_ops(g, 30, T + 8, [5], T + 6)
        if keep is not None: return ops
        first = [f"v_lshlrev_b32 v{T+7}, 4, v1\ns_lshl_b32 s56, s{g.rb0}, 4\ns_add_u32 s56, s56, s{g.tn}\ns_lshl_b32 s56, s56, 12"]
        for b in range(4):
            ops.append((31, first + [f"buffer_load_dwordx4 {v(P+4*b,4)}, v{T+7}, s[12:15], s56 offen offset:{1024*b}{sc}"]))
            first = []
        return ops
    if keep is None: srd(a, 12, 38, WS_X2, 4 << 20)
    if gbp: srd(a, 20, 38, WS_GBP, 65536)
    else: srd(a, 20, 38, WS_MODP, KS * 6144 * 4)
    def late(emit, W):
        if emit:
            g.r_addr(T); code_srd(k, 68, "down_epi", None, 256); cpf_addr(a, 2)
    g.run(extra, None, late, f"buffer_load_dword v{T+15}, v2, s[68:71], 0 offen", gate)
    if g.split:
        srd(a, 16, 38, WS_EX, 4 << 20)
        a(f"""
        s_lshl_b32 s33, s{g.rb0}, 4
        s_add_u32 s33, s33, s{g.tn}
        s_lshl_b32 s58, s33, 12
        s_xor_b32 s34, s58, 0x1000
        v_lshlrev_b32 v{T+11}, 4, v1""")
        for n in range(4):
            c = g.acc(4 + n, 0)
            for e in range(4): a(f"v_cvt_pk_bf16_f32 v{c+e}, v{c+2*e}, v{c+2*e+1}")
            if EXP.get("extag"):
                for e in range(4): a(f"v_min_u32 v{c+e}, -2, v{c+e}")
            a(f"buffer_store_dwordx4 {v(c,4)}, v{T+11}, s[16:19], s34 offen offset:{1024*n} sc1")
    srd(a, 20, pout, 0, 4 << 20)
    if gbp:
        for w_ in (8, 4, 2):
            for i in range(w_): a(f"v_add_f32 v{176+i}, v{176+i}, v{176+w_+i}")
        a(f"v_add_f32 v{T+8}, v176, v177")
    else: a(f"v_add_f32 v{T+8}, v{T+8}, v{T+9}")
    rbf(a, T + 8)
    a(f"""
    s_lshl_b32 s33, s26, 8
    s_add_u32 s33, s33, {XL + 16384}
    v_lshl_add_u32 v{T}, v1, 2, s33
    ds_write_b32 v{T}, v{T+8}
    s_lshl_b32 s57, s26, 12
    s_add_u32 s57, s57, {XL}
    v_lshrrev_b32 v{T}, 4, v1
    v_lshl_add_u32 v{T}, v{T}, 4, s33""")
    tile_lds_addr(a, T + 3, T + 1, 57)
    a("s_waitcnt lgkmcnt(0)")
    for b in range(4): a(f"ds_read_b128 {v(G+4*b,4)}, v{T} offset:{64*b}")
    for b in range(1, 4): a(f"v_xor_b32 v{T+3+b}, {32*b}, v{T+3}")
    if keep is not None:
        for i in range(16): a(f"v_accvgpr_read_b32 v{P+i}, a{keep+i}")
    unpack(a, X, P, 16)
    a(row_src(T + 9, T + 8))
    a(f"""
    v_lshl_add_u32 v{T+10}, v1, 4, s57
    s_lshl_b32 s33, s{g.rb0}, 16
    s_lshl_b32 s32, s{g.tn}, 7
    s_add_u32 s33, s33, s32
    s_waitcnt lgkmcnt(0)""")
    if g.split and not EXP.get("extag"):
        a(f"""
        s_lshr_b32 s59, s58, 5
        s_add_u32 s59, s59, {512*128}
        s_xor_b32 s56, s59, 128
        v_mov_b32 v{T+12}, 1
        v_mov_b32 v{T+13}, 0
        s_mov_b64 exec, 1
        s_waitcnt vmcnt(0)
        buffer_store_dword v{T+12}, v{T+13}, s[12:15], s59 offen sc1
        s_mov_b64 exec, -1""")
        stamp(k)
        a("s_branch ex_first\nex_poll:")
        if EXP.get("exsl", 2): a(f"s_sleep {EXP.get('exsl', 2)}")
        a(f"""
ex_first:
        buffer_load_dword v{T+14}, v{T+13}, s[12:15], s56 offen sc1
        s_waitcnt vmcnt(0)
        v_cmp_eq_u32 vcc, 1, v{T+14}
        s_cbranch_vccz ex_poll""")
        for n in range(4): a(f"buffer_load_dwordx4 {v(160+4*n,4)}, v{T+11}, s[16:19], s58 offen offset:{1024*n} sc1")
    elif g.split:
        stamp(k)
        a("s_branch ex_first\nex_poll:")
        if EXP.get("exsl", 2): a(f"s_sleep {EXP.get('exsl', 2)}")
        a("ex_first:")
        for n in range(4): a(f"buffer_load_dwordx4 {v(160+4*n,4)}, v{T+11}, s[16:19], s58 offen offset:{1024*n} sc1")
        a(f"s_waitcnt vmcnt(0)\nv_max3_u32 v{T+12}, v160, v161, v162")
        for n in range(163, 175, 2): a(f"v_max3_u32 v{T+12}, v{n}, v{n+1}, v{T+12}")
        a(f"v_max_u32 v{T+12}, v175, v{T+12}\nv_cmp_eq_u32 vcc, -1, v{T+12}\ns_cbranch_vccnz ex_poll")
    for b in range(4):
        if g.split:
            a(f"s_waitcnt vmcnt({3-b})")
            unpack(a, g.acc(4 + b, 0), 160 + 4 * b, 4)
            for e in range(8): a(f"v_add_f32 v{g.acc(b,0)+e}, v{g.acc(b,0)+e}, v{g.acc(4+b,0)+e}")
        for i in range(2):
            for e in range(4): a(f"v_fmac_f32 v{X+8*b+4*i+e}, v{G+4*b+e}, v{g.acc(b,i)+e}")
        for e in range(4): a(f"v_cvt_pk_bf16_f32 v{P+4*b+e}, v{X+8*b+2*e}, v{X+8*b+2*e+1}")
        for i in range(2): a(f"ds_write_b64 v{T+3+b}, {v(P+4*b+2*i,2)} offset:{2048*i}")
    a("s_waitcnt lgkmcnt(0)")
    for i in range(4): a(f"ds_read_b128 {v(G+4*i,4)}, v{T+10} offset:{1024*i}")
    for i in range(4):
        a(f"s_waitcnt lgkmcnt({3-i})\nbuffer_store_dwordx4 {v(G+4*i,4)}, v{T+9}, s[20:23], s33 offen sc1\ns_add_u32 s33, s33, 0x4000")

def k_down():
    R = EXP.get("dR", 6)
    k = Kernel("down_kernel", 256, 256, 8192 * R + 16384 + 1024, 256); a = k.a
    g = down_gemm(k, 0, ("v", 160), R)
    head(k, [(60, P_WD), (62, P_OUT)])
    g.tile(); g.b_addr(16); g.a_addr(16)
    a("s_waitcnt lgkmcnt(0)")
    g.a_srd(); g.b_srd(60)
    down_phase(k, g, 8192 * R, 62)
    stamp(k); prof_out(k, KID[k.name]); finish(k)
    return k

def gu_gemm(k, lds0, sset=0, vlow=3, sc1=False):
    return Gemm(k, "gu", sset, 1024, 4, 14, EXP.get("gDA", 4), EXP.get("gR", 4), 2, EXP.get("gPEEL", 4), EXP.get("gCAP", 13), EXP.get("gINIT", 15),
                "gu", WS_Y2, ["tok"] * 14, 8, 32, 2, 4, 7168, None, lds0, vlow, 32, ("a", 0), WG=EXP.get("gWG", 7), sc1=sc1)
class Rec:
    def __init__(self): self.l = []
    def __call__(self, x): self.l += [t.strip() for t in x.split("\n") if t.strip()]

def gu_phase(k, g, XL, gate=None, POST=0, post_ops=None, stash=None, gfirst=False):
    a = k.a; T = 16; XA = g.fend
    sc = " sc1" if g.sc1 else ""
    def extra():
        ops = []
        first = [f"""v_and_b32 v{T+6}, 15, v1
        v_lshlrev_b32 v{T+6}, 3, v{T+6}
        v_lshrrev_b32 v{T+7}, 4, v1
        v_lshl_add_u32 v{T+6}, v{T+7}, 16, v{T+6}
        s_lshl_b32 s56, s{g.rb0}, 8"""]
        for n in range(4):
            for i in range(4):
                ops.append((7, first + [f"buffer_load_dwordx2 {a_(XA+8*i+2*n,2)}, v{T+6}, s[16:19], s56 offen offset:{128*i}{sc}"] + (["s_add_u32 s56, s56, 0x4000"] if i == 3 else [])))
                first = []
        first = [f"""v_cmp_lt_u32 vcc, 111, v0
        v_mov_b32 v{T+7}, {(3584-112)*4}
        v_cndmask_b32 v{T+7}, 0, v{T+7}, vcc
        v_lshl_add_u32 v{T+7}, v0, 2, v{T+7}
        s_mul_i32 s57, s{g.tn}, 448"""]
        for i in range(4):
            ops.append((7.5, first + [f"buffer_load_dword a{XA+32+i}, v{T+7}, s[20:23], s57 offen{sc}", f"s_add_u32 s57, s57, {7168*4}"]))
            first = []
        return ops
    srd(a, 16, 38, WS_STAT, 16 * 2048 * 8); srd(a, 20, 38, WS_UV, KS * 2 * 7168 * 4)
    def late(emit, W):
        if emit:
            g.r_addr(T); code_srd(k, 68, "gu_top", None, 256); cpf_addr(a, 2); a("gu_top:")
    timed = []
    def win(lo, hi, L):
        for x in L:
            x, tag = x if isinstance(x, tuple) else (x, ("L", ("Z",)) if x.startswith("ds_") else None)
            timed.append((x, tag, lo, hi))
    r = Rec()
    for i in range(4): r(f"v_accvgpr_read_b32 v{16+i}, a{XA+32+i}")
    r(f"""
    v_add_f32 v16, v16, v18
    v_add_f32 v17, v17, v19
    v_lshlrev_b32 v18, 2, v0
    v_add_u32 v18, {XL}, v18
    ds_write_b32 v18, v16
    ds_write_b32 v18, v17 offset:1024""")
    for i in range(4):
        D = 24 + 2 * i
        for n in range(8): r(f"v_accvgpr_read_b32 v{16+n}, a{XA+8*i+n}")
        r(f"v_add_f32 v{D}, v16, v18\nv_add_f32 v{D+1}, v17, v19")
        for n in (2, 3): r(f"v_add_f32 v{D}, v{D}, v{16+2*n}\nv_add_f32 v{D+1}, v{D+1}, v{17+2*n}")
        allred4(r, [D], 17)
        r(f"v_mul_f32 v17, {fx(1/16)}, v{D}")
        for n in range(4): r(f"v_sub_f32 v{16+2*n}, v{16+2*n}, v17")
        r("v_mul_f32 v17, v16, v16")
        for n in range(1, 4): r(f"v_fmac_f32 v17, v{16+2*n}, v{16+2*n}")
        r(f"v_fmac_f32 v{D+1}, {fx(1/64)}, v17")
        allred4(r, [D + 1], 17)
        r(f"""
        v_mov_b32 v17, {fx(1e-5)}
        v_fmac_f32 v17, {fx(1/1024)}, v{D+1}
        v_mul_f32 v{D}, {fx(-1/1024)}, v{D}
        v_sqrt_f32 v{D+1}, v17""")
    r(f"v_lshrrev_b32 v0, 4, v1\nv_lshlrev_b32 v0, 4, v0\nv_add_u32 v0, {XL}, v0")
    T0 = 16
    win(8 * 56, T0 * 56 - 10, [("W", ("vm", "X", {("X",)}))] + r.l)
    for j in range(14):
        g0 = (T0 + j) * 56 + 4 * (j + 3); off = 64 * (j // 2) + 448 * (j % 2)
        win(g0 - 19, g0 - 12, [(f"ds_read_b128 v[16:19], v0 offset:{off}", ("L", ("U", j))), (f"ds_read_b128 v[20:23], v0 offset:{off+1024}", ("L", ("U", j)))])
        if stash and j == 10:
            assert stash[3] * 56 <= g0 - 11 < (stash[3] + 1) * 56 - 8
            win(g0 - 11, g0 - 2, [f"v_accvgpr_read_b32 v{stash[1]+n}, a{stash[0]+n}" for n in range(stash[2])])
        win(g0, g0 + 40, [("W", ("lg", "U", {("U", j)}))] + [f"v_fmac_f32 v{g.acc(j,i)+e}, v{24+2*i+w}, v{16+4*w+e}" for w in range(2) for i in range(4) for e in range(4)])
    r = Rec()
    for i in range(4): r(f"v_rcp_f32 v{24+2*i}, v{25+2*i}")
    piece_slab(r, 12, g.rb0, 0, 14); piece_slab(r, 13, g.rb0, 1, 14)
    c0 = -2 * math.sqrt(2 / math.pi) * LOG2E; c1 = c0 * 0.044715
    r(f"s_mul_i32 s58, s{g.tn}, {7*SLAB}\ns_mov_b32 s24, {fx(c1)}\ns_mov_b32 s25, {fx(c1)}\nv_mov_b32 v14, {fx(c0)}")
    srd(r, 12, 38, WS_ACT, 224 * SLAB)
    L = []
    for x in r.l:
        if x.startswith("s_addc"): L[-1] += "\n" + x
        else: L.append(x)
    win(30 * 56 + 50, 32 * 56 - 2, L)
    g.run(extra, None, late, f"buffer_load_dword a{XA+36}, v2, s[68:71], 0 offen", gate, POST, post_ops, timed, gfirst)
    pk = lambda r: v(r, 2)
    for f in range(7):
        cg, cu = g.acc(2 * f, 0), g.acc(2 * f + 1, 0)
        for h_ in ((0, 8) if f == 0 else (0,)):
            E_ = range(h_, h_ + 8, 2) if f == 0 else range(0, 16, 2)
            tmp = g.acc(2 * f - 1, 0) if f else 16 - h_
            for e in E_: a(f"v_pk_mul_f32 {pk(cg+e)}, {pk(cg+e)}, {pk(24+2*(e//4))} op_sel_hi:[1,0]")
            for e in E_: a(f"v_pk_mul_f32 {pk(tmp+e)}, {pk(cg+e)}, {pk(cg+e)}")
            for e in E_: a(f"v_pk_mul_f32 {pk(cu+e)}, {pk(cu+e)}, {pk(cg+e)}")
            for e in E_: a(f"v_pk_fma_f32 {pk(tmp+e)}, {pk(tmp+e)}, s[24:25], v[14:15] op_sel_hi:[1,1,0]")
            for e in E_: a(f"v_pk_mul_f32 {pk(cg+e)}, {pk(tmp+e)}, {pk(cg+e)}")
        for e in range(16): a(f"v_exp_f32 v{cg+e}, v{cg+e}")
        for e in range(0, 16, 2): a(f"v_pk_fma_f32 {pk(cg+e)}, {pk(cg+e)}, {pk(24+2*(e//4))}, {pk(24+2*(e//4))} op_sel:[0,1,1]")
        for e in range(16): a(f"v_rcp_f32 v{cg+e}, v{cg+e}")
        for e in range(0, 16, 2): a(f"v_pk_mul_f32 {pk(cu+e)}, {pk(cg+e)}, {pk(cu+e)}")
        for p_ in range(2): pack_swap(a, cg + 4 * p_, cu + 8 * p_, cu + 8 * p_ + 4)
        for p_ in range(2): swap2(a, cg + 4 * p_)
        for p_ in range(2): a(f"buffer_store_dwordx4 {v(cg+4*p_,4)}, v{12+p_}, s[12:15], s58 offen sc1")
        a(f"s_add_u32 s58, s58, {SLAB}")
    a("v_lshl_add_u32 v0, s26, 6, v1")

def k_gu():
    R = EXP.get("gR", 4)
    k = Kernel("gu_kernel", 256, 256, 28672 * R + 2048, 256, 1); a = k.a
    g = gu_gemm(k, 0); k.na = g.fend + 37
    assert g.vend <= 16
    head(k, [(60, P_WG), (62, P_WU)])
    g.tile(); g.b_addr(16); g.a_addr(16)
    a("s_waitcnt lgkmcnt(0)")
    g.a_srd(); g.b_srd(60, 62)
    g.PEEL = 13
    gu_phase(k, g, 28672 * R, None, 3)
    stamp(k); prof_out(k, KID[k.name]); finish(k)
    return k

def publish(k, tag, s_mine, s_group, everyone=None):
    a = k.a
    srd(a, 12, 38, WS_FLAG, NFLAG * 128)
    if everyone is not None:
        a(f"v_lshlrev_b32 v30, 7, v1\ns_lshl_b32 s32, s26, 13\ns_add_u32 s32, s32, {128*everyone}")
        poll(a, tag + "_all", "s32")
    a(f"""
    s_lshl_b32 s32, s{s_mine}, 7
    s_lshl_b32 s59, s{s_group}, 7
    v_mov_b32 v30, 1
    v_mov_b32 v31, s32
    s_waitcnt vmcnt(0)
    s_barrier""")
    stamp(k)
    a(f"""
    s_cmp_lg_u32 s26, 0
    s_cbranch_scc1 {tag}_nf
    s_mov_b64 exec, 1
    buffer_store_dword v30, v31, s[12:15], 0 offen sc1
    s_mov_b64 exec, -1
{tag}_nf:""")
def poll(a, lab, soff):
    a(f"""
{lab}:
    buffer_load_dword v31, v30, s[12:15], {soff} offen sc1
    s_waitcnt vmcnt(0)
    v_cmp_eq_u32 vcc, 1, v31
    s_cmp_eq_u64 vcc, -1
    s_cbranch_scc0 {lab}""")
def await_flags(k, tag, n=32, extra=None, everyone=None):
    a = k.a
    if everyone is not None:
        a(f"v_lshlrev_b32 v30, 7, v1\ns_lshl_b32 s32, s26, 13\ns_add_u32 s32, s32, {128*everyone}")
        poll(a, tag + "_all", "s32")
    a(f"""
    s_cmp_lg_u32 s26, 0
    s_cbranch_scc1 {tag}_go
    v_and_b32 v30, {n-1}, v1
    v_lshlrev_b32 v30, 7, v30
    v_add_u32 v30, s59, v30""")
    if extra is not None:
        a(f"v_and_b32 v31, 1, v1\nv_add_lshl_u32 v31, v31, s{extra}, 7\nv_cmp_lt_u32 vcc, 31, v1\nv_cndmask_b32 v30, v30, v31, vcc")
    poll(a, tag + "_poll", "0")
    a(f"{tag}_go:\ns_waitcnt vmcnt(0)\ns_barrier")
    stamp(k)

def attn_phase(k, go, XLo, gate):
    a = k.a; R = 4; ST = 16384
    Q, ONES, IDX, NEG, S, O, L, P, K0, K1, V0, V1, T = 8, 24, 28, 32, 64, 96, 128, 136, 152, 156, 160, 164, 176
    VX, VU, VRAW, VS = 194, 195, 200, 208
    LV, LR, LS = 65536, 67584, 69632
    load_ptrs(a, [(98, P_WD), (24, P_C), (34, P_WMOD)])
    a(f"""
    s_and_b32 s32, s2, 7
    s_lshr_b32 s33, s2, 3
    s_and_b32 s48, s32, 3
    s_lshl_b32 s48, s48, 3
    s_and_b32 s49, s33, 7
    s_add_u32 s48, s48, s49            ; head
    s_lshr_b32 s49, s32, 2
    s_lshl_b32 s49, s49, 2
    s_lshr_b32 s33, s33, 3
    s_add_u32 s49, s49, s33
    s_lshl_b32 s55, s49, 5
    s_add_u32 s55, s55, s48
    v_lshlrev_b32 v2, 4, v1
    s_lshl_b32 s50, s49, 2
    s_add_u32 s50, s50, s26
    s_lshl_b32 s50, s50, 1
    s_lshl_b32 s51, s26, 12            ; wave * 4096
    s_lshl_b32 s36, s48, 6
    s_add_u32 s36, s36, s50
    s_lshl_b32 s36, s36, 11            ; Q offset
    s_lshl_b32 s32, s48, 18
    s_add_u32 s28, s38, s32
    s_addc_u32 s29, s39, 0
    s_add_u32 s28, s28, {WS_KV}
    s_addc_u32 s29, s29, 0
    s_mov_b32 s30, 0x40000
    s_mov_b32 s31, 0x20000
    s_mov_b32 s52, s51""")
    srd(a, 16, 38, WS_Q, 4 << 20)
    sc = " sc1" if gate else ""
    def dma(slot):
        return [f"s_add_u32 m0, s51, {slot*ST}"] + [f"buffer_load_dwordx4 v2, s[28:31], s52 offen offset:{1024*i}{sc} lds" for i in range(4)] + [f"s_add_u32 s52, s52, {ST}"]
    def first_loads():
        a(f"buffer_load_dwordx4 {v(K0,4)}, v2, s[28:31], 0 offen{sc}\nbuffer_load_dwordx4 {v(K1,4)}, v2, s[28:31], 0 offen offset:1024{sc}")
        for i in range(4): a(f"buffer_load_dwordx4 {v(Q+4*i,4)}, v2, s[16:19], s36 offen offset:{1024*i}{sc}")
        for x in dma(0): a(x)
    if not gate: first_loads()
    a(f"""
    s_waitcnt lgkmcnt(0)
    s_and_b32 s53, s55, 1              ; K half
    s_lshr_b32 s54, s55, 1             ; strip
    s_cmp_ge_u32 s54, 56
    s_cselect_b32 s4, s66, s64
    s_cselect_b32 s5, s67, s65
    s_cselect_b32 s32, 56, 0
    s_mov_b32 s57, 7168
    s_cmp_ge_u32 s54, 112
    s_cselect_b32 s4, s34, s4
    s_cselect_b32 s5, s35, s5
    s_cselect_b32 s32, 80, s32
    s_cselect_b32 s57, 12288, s57
    s_lshl_b32 s6, s57, 10
    s_mov_b32 s7, 0x20000
    s_sub_u32 s32, s54, s32
    s_lshl_b32 s33, s53, 9
    s_lshl_b32 s37, s26, 7
    s_add_u32 s33, s33, s37
    s_mul_i32 s27, s33, s57
    s_lshl_b32 s32, s32, 7
    s_add_u32 s27, s27, s32
    s_lshl_b32 s56, s26, 14
    s_add_u32 s56, s56, {LS}""")
    g2.panel_src(a, T, 1)
    a(f"""
    v_mul_lo_u32 v{T}, v{T}, s57
    v_lshl_add_u32 v{VU}, v{T+1}, 4, v{T}
    s_lshl_b32 s32, s57, 3
    s_sub_u32 s32, s32, 1024
    v_add_u32 v{VU+1}, s32, v{VU}
    s_lshl_b32 s57, s57, 4
    s_cmp_ge_u32 s54, 112
    s_cbranch_scc1 att_vs""")
    srd(a, 20, 38, WS_MODP, KS * 6144 * 4)
    a(f"v_add_lshl_u32 v{T}, v1, s33, 2")
    for i, (p, idx) in enumerate([(0, 4), (1, 4), (0, 3), (1, 3)]):
        a(f"s_mov_b32 s32, {p*6144*4 + idx*4096}")
        for c in range(2): a(f"buffer_load_dword v{VRAW+4*c+i}, v{T}, s[20:23], s32 offen offset:{256*c}")
    a("s_branch att_vd\natt_vs:")
    srd(a, 20, 24, 0, 2048)
    a(f"v_add_lshl_u32 v{T}, v1, s33, 1")
    for i in range(4):
        for c in range(2): a(f"buffer_load_ushort v{VRAW+4*c+i}, v{T}, s[20:23], 0 offen offset:{128*c}")
    a("att_vd:")
    VG = 197; LG, LGV, LGR = 135168, 157696, 159744
    srd(a, 20, 24, 0, 2048)
    a(f"""
    s_lshr_b32 s32, s55, 4
    s_lshl_b32 s32, s32, 6
    s_lshl_b32 s33, s26, 4
    s_add_u32 s32, s32, s33
    v_add_lshl_u32 v{T}, v1, s32, 1
    buffer_load_ushort v{VG+1}, v{T}, s[20:23], 0 offen
    s_mul_i32 s101, s32, 12288
    s_and_b32 s32, s55, 15
    s_lshl_b32 s32, s32, 7
    s_add_u32 s101, s101, s32
    s_add_u32 s101, s101, {80*128}""")
    srd(a, 20, 34, 0, 1024 * 12288)
    g2.panel_src(a, T, 1)
    a(f"v_mul_u32_u24 v{T}, 12288, v{T}\nv_lshl_add_u32 v{VG}, v{T+1}, 4, v{T}")
    go.tile(); go.b_addr(T); go.b_srd(60)
    a(row_src(VX, T))
    a(f"""
    s_lshl_b32 s24, s{go.rb0}, 16
    s_lshl_b32 s32, s{go.tn}, 7
    s_add_u32 s24, s24, s32
    s_lshl_b32 s25, s26, 11
    s_add_u32 s25, s25, {LG}""")
    g2.frag_off(a, 3, 50, 1, T)
    a("s_add_u32 s33, s50, 1")
    g2.frag_off(a, 4, 33, 1, T)
    code_srd(k, 68, "attn_epi", None, 256); cpf_addr(a, T + 4)
    a(f"""
    s_lshl_b32 s32, s2, 2
    s_add_u32 s32, s32, s26
    s_mul_i32 s3, s32, {14*128}
    s_lshl_b32 s58, s32, 9
    v_lshlrev_b32 v{T+6}, 7, v1
    v_mov_b32 v{T+8}, 0x80000000
    v_cmp_gt_u32 vcc, 4, v1
    v_cndmask_b32 v{T+7}, v{T+8}, v{T+6}, vcc
    v_cmp_gt_u32 vcc, 14, v1
    v_cndmask_b32 v{T+6}, v{T+8}, v{T+6}, vcc
    v_bfe_u32 v{T}, v1, 2, 1
    v_cmp_eq_u32 vcc, 0, v{T}
    v_mov_b32 v{T+1}, 0x3f803f80
    v_cndmask_b32 v{ONES}, 0, v{T+1}, vcc
    v_mov_b32 v{ONES+1}, v{ONES}
    v_xor_b32 v{ONES+2}, v{T+1}, v{ONES}
    v_mov_b32 v{ONES+3}, v{ONES+2}
    v_and_b32 v{T}, 1, v1
    v_mul_u32_u24 v{T}, 0xaaaa, v{T}
    v_add_u32 v{IDX}, 0x4444, v{T}""")
    for i in range(32): a(f"v_mov_b32 v{O+i}, 0")
    for i in range(8): a(f"v_mov_b32 v{L+i}, 0\nv_mov_b32 v{P+8+i}, 0\nv_mov_b32 v{V0+8+i}, 0")
    for i in list(range(16)) + [80, 81, 82, 83]: a(f"v_accvgpr_write_b32 a{i}, 0")
    A_, B_ = 224, 232
    g2.tr_lane(a, A_, 1, "contig", False); g2.panel_rd(a, A_, B_, B_ + 1)
    a(f"""
    v_add_u32 v{B_+7}, s25, v{B_}
    v_add_u32 v{B_+8}, s25, v{B_+1}
    v_add_u32 v{B_}, s56, v{B_}
    v_add_u32 v{B_+1}, s56, v{B_+1}
    s_lshl_b32 s33, s26, 9
    s_add_u32 s33, s33, {LV}
    v_lshl_add_u32 v{B_+2}, v1, 1, s33
    v_and_b32 v{B_+3}, 31, v1
    v_lshrrev_b32 v{B_+4}, 5, v1
    v_lshlrev_b32 v{B_+4}, 4, v{B_+4}
    v_lshl_add_u32 v{B_+4}, v{B_+3}, 7, v{B_+4}
    v_add_u32 v{B_+4}, s33, v{B_+4}
    s_cmp_ge_u32 s54, 112
    s_waitcnt vmcnt(0)
    s_cbranch_scc1 att_ps""")
    for c in range(2):
        x = VRAW + 4 * c
        a(f"v_add_f32 v{x}, v{x}, v{x+1}\nv_add_f32 v{x+2}, v{x+2}, v{x+3}")
        rbf(a, x)
        a(f"v_add_f32 v{x}, 1.0, v{x}")
    a(f"""
    s_mul_i32 s100, s53, {2*7168*4}
    s_lshl_b32 s32, s54, 8
    s_add_u32 s100, s100, s32
    s_mul_i32 s32, s26, {7168*4}
    s_add_u32 s100, s100, s32
    s_add_u32 s100, s100, {WS_UV}
    s_mov_b32 s37, 2
    s_branch att_pd
att_ps:""")
    for c in range(2):
        x = VRAW + 4 * c
        a(f"""
        v_lshlrev_b32 v{x}, 16, v{x}
        v_mul_f32 v{x+1}, {fx(-LOG2E)}, v{x}
        v_exp_f32 v{x+1}, v{x+1}
        v_add_f32 v{x+1}, 1.0, v{x+1}
        v_rcp_f32 v{x+1}, v{x+1}
        v_mul_f32 v{x}, v{x}, v{x+1}""")
    a(f"""
    s_mul_i32 s100, s53, {6144*4}
    s_sub_u32 s32, s54, 80
    s_lshl_b32 s32, s32, 8
    s_add_u32 s100, s100, s32
    s_mov_b32 s37, 1
att_pd:""")
    for c in range(2):
        x = VRAW + 4 * c
        a(f"v_cvt_pk_bf16_f32 v{x}, v{x}, v{x}\nv_cvt_pk_bf16_f32 v{x+2}, v{x+2}, v{x+2}")
        a(f"ds_write_b16 v{B_+2}, v{x} offset:{256*c}\nds_write_b16 v{B_+2}, v{x+2} offset:{256*c+128}")
    x = VG + 1
    a(f"""
    v_lshlrev_b32 v{x}, 16, v{x}
    v_mul_f32 v{x+1}, {fx(-LOG2E)}, v{x}
    v_exp_f32 v{x+1}, v{x+1}
    v_add_f32 v{x+1}, 1.0, v{x+1}
    v_rcp_f32 v{x+1}, v{x+1}
    v_mul_f32 v{x}, v{x}, v{x+1}
    v_cvt_pk_bf16_f32 v{x}, v{x}, v{x}
    v_add_u32 v{B_+2}, {LGV-LV}, v{B_+2}
    ds_write_b16 v{B_+2}, v{x}
    v_add_u32 v{B_+9}, {LGV-LV}, v{B_+4}
    s_add_u32 s33, s33, {LR-LV}
    v_lshl_add_u32 v{B_+2}, v1, 2, s33
    v_add_u32 v{B_+10}, {LGR-LR}, v{B_+2}
    s_lshl_b32 s33, s26, 8
    s_add_u32 s33, s33, {LR}
    s_lshl_b32 s32, s55, 8
    s_add_u32 s32, s32, {WS_GBP}
    s_cmp_eq_u32 s26, 2
    s_cselect_b32 s33, {LGR}, s33
    s_cselect_b32 s100, s32, s100
    s_cselect_b32 s37, 3, s37
    v_lshl_add_u32 v{B_+6}, v1, 2, s33
    v_lshlrev_b32 v{B_+5}, 2, v1
    s_lshl_b32 s32, s2, 8
    v_add_u32 v{A_}, s32, v0""")
    r = Rec()
    g2.strip_copy_issue(r, A_, 98, 3584, 2048, 1, 0, VS, 12, col=256, dsh=9)
    g2.strip_copy_issue(r, A_, 98, 3584, 2048, 1, 0, VS + 8, 12, col=384, dsh=9, doff=256)
    for x in r.l:
        if x.startswith("v_"): a(x)
    strip_loads = [x for x in r.l if x.startswith("buffer_")]
    upair = [f"buffer_load_dwordx4 v{VU}, s[4:7], s27 offen lds", f"buffer_load_dwordx4 v{VU+1}, s[4:7], s27 offen offset:1024 lds"]
    if gate:
        gate(); first_loads()
    srd(a, 12, 98, 0, 3584 * 2048); srd(a, 16, 60, 1 << 20, 1 << 20)
    lsum = lambda w, p: f"v_smfmac_f32_16x16x64_bf16 {v(L+4*w,4)}, {v(ONES,4)}, {v(p,8)}, v{IDX}"
    for x in dma(1): a(x)
    a(f"s_waitcnt vmcnt(8)")
    for w in range(2):
        a(f"v_mfma_f32_32x32x16_bf16 {v(S+16*w,16)}, {v(K0,4)}, {v(Q+8*w,4)}, 0")
        a(f"v_mfma_f32_32x32x16_bf16 {v(S+16*w,16)}, {v(K1,4)}, {v(Q+8*w+4,4)}, {v(S+16*w,16)}")
    def rowmax(Sx, m):
        for i in range(0, 16, 2): a(f"v_max3_f32 v{m}, v{Sx+i}, v{Sx+i+1}, v{m}")
    def negbcast(m, w):
        a(f"v_mov_b32 v{m+1}, v{m}\nv_permlane32_swap_b32 v{m}, v{m+1}\nv_max_f32 v{m}, v{m}, v{m+1}")
        for i in range(16): a(f"v_sub_f32 v{NEG+16*w+i}, 0, v{m}")
    for w in range(2):
        a(f"v_mov_b32 v{T}, v{S+16*w}")
        rowmax(S + 16 * w, T); negbcast(T, w)
        if w == 0:
            for i in range(16): a(f"v_sub_f32 v{S+i}, v{S+i}, v{T}")
            for x in dma(2): a(x)
    a(f"""
    s_mov_b32 m0, s56
    s_sub_u32 s52, s52, {ST}
    {upair[0]}
    {upair[1]}
    s_add_u32 s56, s56, 2048
    s_add_u32 s27, s27, s57
    s_mov_b32 m0, s56
    s_nop 0
    {upair[0]}
    {upair[1]}
    s_waitcnt vmcnt({4*(R-2)+4})
    s_barrier
    ds_read_b128 {v(V0,4)}, v2 offset:2048
    ds_read_b128 {v(V1,4)}, v2 offset:3072""")
    cnt = Cnt()
    def ph(n, E, site):
        def W(c, nm, tags):
            cnt.wait(c, (site, nm), tags)
            if E: E(cnt.text(c, (site, nm)))
        def X(x):
            if E: E(x)
        def RD(reg, blk, piece):
            X(f"ds_read_b128 {v(reg,4)}, v2 offset:{(blk % (4*R))*4096 + piece*1024}")
            cnt.issue("lg", (piece, blk))
        def VM(x, tag=("C",)):
            X(x); cnt.issue("vm", tag)
        j = n >> 1; w = n & 1; o = 1 - w; m = n % 8; half = n // 64
        Sc, Sn, Pc, Pp = S + 16 * w, S + 16 * o, P + 8 * w, P + 8 * o
        vb = (n - 1) >> 1
        Vr = V0 + 8 * (vb % 2); Vw = V0 + 8 * ((j + 1) % 2)
        e = lambda *l: [X(f"v_exp_f32 v{Sc+i}, v{Sc+i}") for i in l]
        c = lambda *l: [X(f"v_cvt_pk_bf16_f32 v{Pc+i}, v{Sc+2*i}, v{Sc+2*i+1}") for i in l]
        d = dma((n // 8 - 1) % R); tg = ("B", n // 8 - 1 + R)
        b0, b1 = go.dma_op(0), go.dma_op(1)
        xs = n % 32 < 24
        st4 = (n % 32) // 8
        slot = {}
        def at(mm, sl, f):
            if mm == m: slot.setdefault(sl, []).append(f)
        at(0, "C", lambda: X(d[0]))
        at(1, "B", lambda: X(d[5]))
        at(1, "C", lambda: W("vm", "bar", {("B", n // 8 + 1)}))
        at(1, "D", lambda: X("s_barrier"))
        for i, (mm, sl) in enumerate(((2, "C"), (3, "B"), (3, "D"), (4, "C"))): at(mm, sl, lambda i=i: VM(d[1 + i], tg))
        if xs:
            at(3, "C", lambda: X("s_add_u32 s56, s56, 2048" if half == 0 else b1[3]))
            at(2, "D", lambda: X("s_add_u32 s27, s27, s57" if half == 0 else b1[2]))
            at(4, "D", lambda: X("s_mov_b32 m0, s56" if half == 0 else b0[0]))
            at(5, "B", lambda: VM(upair[0], ("U",)) if half == 0 else VM(b0[1]))
            at(5, "D", lambda: VM(upair[1], ("U",)) if half == 0 else VM(b1[1].replace(f"v{go.VB+1},", f"v{VU},").replace(" lds", " offset:1024 lds")))
        if half == 1 and st4 % 2 == 0:
            at(6, "C", lambda: X("s_mov_b32 m0, s25"))
            at(7, "B", lambda: VM(f"buffer_load_dwordx4 v{VX}, s[20:23], s24 offen lds"))
            at(7, "C", lambda: X("s_add_u32 s24, s24, 0x4000"))
            at(7, "D", lambda: X("s_add_u32 s25, s25, 1024"))
        if half == 0 and st4 == 0:
            at(6, "C", lambda: X("s_mov_b32 m0, s25"))
            at(7, "B", lambda: VM(f"buffer_load_dwordx4 v{VG}, s[20:23], s101 offen nt lds"))
            at(7, "C", lambda: X(f"s_add_u32 s101, s101, {8*12288}"))
            at(7, "D", lambda: X("s_add_u32 s25, s25, 1024"))
        if st4 == 1:
            at(7, "B", lambda: VM(f"buffer_load_dword v{T+5}, v{T+6}, s[12:15], s3 offen"))
            at(7, "C", lambda: X(f"s_add_u32 s3, s3, {1024*14*128}"))
            at(7, "D", lambda: VM(f"buffer_load_dword v{T+5}, v{T+4}, s[68:71], 0 offen"))
        if st4 == 3 and half == 0:
            at(5, "B", lambda: VM(f"buffer_load_dword v{T+5}, v{T+7}, s[16:19], s58 offen"))
            at(5, "C", lambda: X(f"s_add_u32 s58, s58, {1024*512}"))
        def run_slot(sl):
            for f in slot.get(sl, []): f()
        X(f"v_mfma_f32_32x32x16_bf16 {v(Sn,16)}, {v(K0,4)}, {v(Q+8*o,4)}, {v(NEG+16*o,16)}")
        if w == 0: RD(K0, j + 1, 0)
        else: W("lg", "k1", {(1, j + 1)})
        e(0, 1, 2, 3); c(0)
        X(f"v_mfma_f32_32x32x16_bf16 {v(Sn,16)}, {v(K1,4)}, {v(Q+8*o+4,4)}, {v(Sn,16)}")
        if w == 0: RD(K1, j + 1, 1)
        run_slot("B")
        e(4, 5, 6); c(1, 2)
        X(f"v_mfma_f32_32x32x16_bf16 {v(O+16*o,16)}, {v(Vr,4)}, {v(Pp,4)}, {v(O+16*o,16)}")
        run_slot("C")
        e(7, 8, 9); c(3, 4)
        X(f"v_mfma_f32_32x32x16_bf16 {v(O+16*o,16)}, {v(Vr+4,4)}, {v(Pp+4,4)}, {v(O+16*o,16)}")
        if w == 0: W("lg", "k0", {(0, j + 1), (2, j), (3, j)})
        run_slot("D")
        e(10, 11, 12); c(5)
        X(lsum(o, Pp))
        RD(Vw + 4 * w, j + 1, 2 + w)
        e(13, 14, 15); c(6, 7)
    def side(E):
        cnt.wait("vm", ("side", "U"), {("U",)}); cnt.drain("lg")
        for _ in range(7): cnt.issue("vm", ("C",))
        if not E: return
        srd(a, 16, 38, 0, 0); srd(a, 20, 62, 0, 4 << 20)
        a(f"""
        s_cmp_lt_u32 s26, s37
        s_cselect_b32 s18, {WS_FLAG}, 0
        s_lshl_b32 s25, s26, 12
        s_add_u32 s25, s25, {XLo}""")
        a(f"v_cmp_gt_u32 vcc, 2, v{B_+3}")
        a(cnt.text("vm", ("side", "U")))
        for c in range(2):
            a("s_and_saveexec_b64 s[34:35], vcc")
            if c == 0: a(f"ds_read_b128 a[80:83], v{B_+9}")
            for sub in range(4): a(f"ds_read_b128 {a_(4*sub,4)}, v{B_+4} offset:{32*sub+256*c}")
            a("s_mov_b64 exec, s[34:35]")
            if c == 0:
                for jj in range(2):
                    for r_ in range(2): a(f"ds_read_b64_tr_b16 {a_(116+4*jj+2*r_,2)}, v{B_+7+jj} offset:{512*r_}")
            for sub in range(4):
                for jj in range(2):
                    for r_ in range(2): a(f"ds_read_b64_tr_b16 {a_(16+8*sub+4*jj+2*r_,2)}, v{B_+jj} offset:{128*(16*sub+4*r_)+8192*c}")
            if c == 0:
                for x in strip_loads: a(x)
            for sub in range(4):
                a(f"s_waitcnt lgkmcnt({12-4*sub})")
                if c == 0 and sub == 0:
                    for jj in range(2): a(f"v_mfma_f32_32x32x16_bf16 {a_(84+16*jj,16)}, a[80:83], {a_(116+4*jj,4)}, 0")
                for jj in range(2):
                    d_ = a_(48 + 16 * jj, 16)
                    a(f"v_mfma_f32_32x32x16_bf16 {d_}, {a_(4*sub,4)}, {a_(16+8*sub+4*jj,4)}, {d_ if (sub or c) else 0}")
        a("s_mov_b32 exec_hi, 0")
        for jj in range(2): a(f"ds_write_b32 v{B_+10}, a{84+16*jj} offset:{128*jj}")
        for jj in range(2):
            for q in range(2): a(f"ds_write_b32 v{B_+2}, a{48+16*jj+q} offset:{256*q+128*jj}")
        a("s_mov_b32 exec_hi, -1\ns_waitcnt lgkmcnt(0)\ns_barrier")
        for w in range(4): a(f"ds_read_b32 v{A_+w}, v{B_+6} offset:{512*w}")
        for x in go.dma_op(0) + go.dma_op(1)[:4] + go.dma_op(0) + go.dma_op(1)[:2]: a(x)
        a(f"""
        v_subrev_u32 v{VU}, 1024, v{go.VB+1}
        s_waitcnt lgkmcnt(0)
        v_add_f32 v{A_}, v{A_}, v{A_+1}
        v_add_f32 v{A_+2}, v{A_+2}, v{A_+3}
        v_add_f32 v{A_}, v{A_}, v{A_+2}
        buffer_store_dword v{A_}, v{B_+5}, s[16:19], s100 offen sc1""")
    def whole(E):
        cnt.reset()
        for st in range(R - 1):
            for i in range(4): cnt.issue("vm", ("B", st))
        for i in range(4): cnt.issue("vm", ("U",))
        cnt.issue("lg", (2, 0)); cnt.issue("lg", (3, 0))
        for half in range(2):
            if E: E(f"s_mov_b32 s36, 2\n.p2align 6\nattn_loop{half}:")
            for n in range(64 * half, 64 * half + 64): ph(n, E if n % 64 < 32 else None, (half, n % 32))
            if E: E(f"s_sub_u32 s36, s36, 1\ns_cmp_lg_u32 s36, 0\ns_cbranch_scc1 attn_loop{half}")
            if half == 0:
                if E and EXP.get("ast"): stamp(k)
                side(E)
                if E and EXP.get("ast"): stamp(k)
    whole(None)
    stamp(k)
    whole(a)
    go.pre = 8
    a("attn_epi:")
    a(f"s_add_u32 s{go.sB}, s{go.sB}, s{go.sBI}\ns_mov_b32 s{go.sW}, s{go.sW0}")
    stamp(k)
    a(f"""
    v_mfma_f32_32x32x16_bf16 {v(O+16,16)}, {v(V0+8,4)}, {v(P+8,4)}, {v(O+16,16)}
    v_mfma_f32_32x32x16_bf16 {v(O+16,16)}, {v(V1+8,4)}, {v(P+12,4)}, {v(O+16,16)}""")
    a(lsum(1, P + 8))
    g2.strip_copy_store(a, 38, WS_WD4, 3584 * 1024, VS, 4); g2.strip_copy_store(a, 38, WS_WD4, 3584 * 1024, VS + 8, 4)
    srd(a, 16, 38, WS_O, 64 * SLAB)
    a(f"v_mov_b32 v{T}, 0\nv_mov_b32 v{T+1}, 0")
    for i in range(32): a(f"v_fmac_f32 v{T+i%2}, 0, v{O+i}")
    ltot = f"v_add_f32 v{L}, v{L}, v{L+1}\nv_add_f32 v{L+4}, v{L+4}, v{L+5}"
    a(ltot)
    a(f"""
    v_add_f32 v{T}, v{T}, v{T+1}
    v_add_f32 v{T}, v{T}, v{L}
    v_add_f32 v{T}, v{T}, v{L+4}
    v_cmp_ngt_f32 vcc, {fx(2.0**40)}, v{T}
    s_cbranch_vccnz attn_slow
attn_fin:
    v_rcp_f32 v{T}, v{L}
    v_rcp_f32 v{T+1}, v{L+4}
    s_mul_i32 s32, s48, {2*SLAB}
    s_add_u32 s33, s32, {SLAB}""")
    for w in range(2):
        Ow = O + 16 * w
        for i in range(16): a(f"v_mul_f32 v{Ow+i}, v{Ow+i}, v{T+w}")
        for i in range(8): a(f"v_cvt_pk_bf16_f32 v{Ow+i}, v{Ow+2*i}, v{Ow+2*i+1}")
        a(f"buffer_store_dwordx4 {v(Ow,4)}, v{3+w}, s[16:19], s32 offen sc1\nbuffer_store_dwordx4 {v(Ow+4,4)}, v{3+w}, s[16:19], s33 offen sc1")
    def slow():
        a(f"""
attn_slow:
        v_mov_b32 v{T}, 0xff800000
        v_mov_b32 v{T+2}, 0xff800000
        s_mov_b32 s52, 0
        s_waitcnt lgkmcnt(0)
attn_slow1:
        buffer_load_dwordx4 {v(K0,4)}, v2, s[28:31], s52 offen{sc}
        buffer_load_dwordx4 {v(K1,4)}, v2, s[28:31], s52 offen offset:1024{sc}
        s_waitcnt vmcnt(0)""")
        for w in range(2):
            a(f"v_mfma_f32_32x32x16_bf16 {v(S+16*w,16)}, {v(K0,4)}, {v(Q+8*w,4)}, 0")
            a(f"v_mfma_f32_32x32x16_bf16 {v(S+16*w,16)}, {v(K1,4)}, {v(Q+8*w+4,4)}, {v(S+16*w,16)}")
        for w in range(2): rowmax(S + 16 * w, T + 2 * w)
        a("s_add_u32 s52, s52, 4096\ns_cmp_lt_u32 s52, 0x40000\ns_cbranch_scc1 attn_slow1")
        for w in range(2): negbcast(T + 2 * w, w)
        for i in range(32): a(f"v_mov_b32 v{O+i}, 0")
        for i in range(8): a(f"v_mov_b32 v{L+i}, 0")
        a("s_mov_b32 s52, 0\nattn_slow2:")
        for n, r_ in enumerate((K0, K1, V0, V1)): a(f"buffer_load_dwordx4 {v(r_,4)}, v2, s[28:31], s52 offen offset:{1024*n}{sc}")
        a("s_waitcnt vmcnt(0)")
        for w in range(2):
            a(f"v_mfma_f32_32x32x16_bf16 {v(S+16*w,16)}, {v(K0,4)}, {v(Q+8*w,4)}, {v(NEG+16*w,16)}")
            a(f"v_mfma_f32_32x32x16_bf16 {v(S+16*w,16)}, {v(K1,4)}, {v(Q+8*w+4,4)}, {v(S+16*w,16)}")
        for i in range(32): a(f"v_exp_f32 v{S+i}, v{S+i}")
        for i in range(16): a(f"v_cvt_pk_bf16_f32 v{P+i}, v{S+2*i}, v{S+2*i+1}")
        for w in range(2):
            a(f"v_mfma_f32_32x32x16_bf16 {v(O+16*w,16)}, {v(V0,4)}, {v(P+8*w,4)}, {v(O+16*w,16)}")
            a(f"v_mfma_f32_32x32x16_bf16 {v(O+16*w,16)}, {v(V1,4)}, {v(P+8*w+4,4)}, {v(O+16*w,16)}")
            a(lsum(w, P + 8 * w))
        a("s_add_u32 s52, s52, 4096\ns_cmp_lt_u32 s52, 0x40000\ns_cbranch_scc1 attn_slow2")
        a(ltot)
        a("s_branch attn_fin")
    return slow

def k_mlp():
    k = Kernel("mlp_kernel", 256, 256, 163840, 256, 1); a = k.a
    oR = EXP.get("oR", 6); OL = 163840 - (8192 * oR + 18432); dR = 14
    go = out_gemm(k, OL, ("a", 0), 0)
    gg = gu_gemm(k, 0, 1, sc1=True)
    SPL = EXP.get("splitk", 1)
    gd = down_gemm2(k, ("a", 0), 0, 26) if SPL else down_gemm(k, 0, ("a", 0), dR, 0, vlow=28, sc1=True, acc0=64)
    gg.PEEL = 13
    KEEP = gg.fend + 38; k.na = KEEP + 20
    assert gd.fend <= KEEP
    MG = EXP.get("merge", 3)
    ptrs = [(60, P_WO), (62, P_X), (64, P_WG), (66, P_WU)]
    def pre_gu():
        gg.tile(); gg.b_addr(12); gg.b_srd(64, 66)
        return gg.preload(EXP.get("gpl", 2))
    slow = None
    if MG == 1:
        head(k, ptrs)
        go.tile(); go.b_addr(16); go.a_addr(16)
        a("s_waitcnt lgkmcnt(0)")
        go.a_srd(); go.b_srd(60)
        rest = out_phase(k, go, OL + 8192 * oR, 62, pre_gu, KEEP, 7)
    else:
        go.lds0 = 0; go.R = 17; go.slot0 = 9; go.VB = 192; go.sc1 = True; XLo = 17 * 8192
        assert SPL
        gg.lds0 = 24576; gg.slot0 = 2; gd.lds0 = 8192; gd.R = 8; gd.slot0 = 5
        gate = None
        if MG == 3:
            head(k, [(60, P_WQKV)])
            gq = qkv_phase(k)
            load_ptrs(a, ptrs)
            a(f"""
            s_lshl_b32 s56, s{gq.tn}, 4
            s_add_u32 s56, s56, s{gq.tm}
            s_add_u32 s56, s56, {F_QKV}
            s_and_b32 s57, s2, 3
            s_lshl_b32 s57, s57, 2
            s_bfe_u32 s32, s2, 0x20004
            s_add_u32 s57, s57, s32
            s_lshl_b32 s57, s57, 4
            s_add_u32 s57, s57, {F_QKV}""")
            publish(k, "hq", 56, 57)
            gate = lambda: await_flags(k, "hq", 16)
        else:
            head(k, ptrs)
            a("s_waitcnt lgkmcnt(0)")
        slow = attn_phase(k, go, XLo, gate)
        a(f"""
        s_add_u32 s56, s55, {F_ATT}
        s_lshr_b32 s57, s{go.tm}, 1
        s_lshl_b32 s57, s57, 5
        s_add_u32 s57, s57, {F_ATT}
        s_lshl_b32 s58, s{go.tn}, 1
        s_add_u32 s58, s58, {F_ATT + 224}
        s_waitcnt lgkmcnt(0)""")
        publish(k, "h0", 56, 57)
        for grp in go.preload(16)[16:]:
            for x in grp: a(x)
        go.a_addr(16); go.a_srd()
        rest = out_phase(k, go, XLo, None, pre_gu, KEEP, 7, lambda: await_flags(k, "h0", 32, 58))
    if rest is None: gg.tile()
    a(f"""
    s_lshl_b32 s56, s{go.tm}, 4
    s_add_u32 s56, s56, s{go.tn}
    s_lshl_b32 s57, s{gg.tm}, 5""")
    load_ptrs(a, [(60, P_WD), (62, P_OUT)])
    if rest is None:
        gg.b_addr(12); gg.b_srd(64, 66); rest = gg.preload(EXP.get("gpl", 2))
    publish(k, "h1", 56, 57, F_ATT if MG > 1 else None)
    for grp in rest:
        for x in grp: a(x)
    gg.a_addr(16); gg.a_srd()
    a("s_waitcnt lgkmcnt(0)")
    gd.tile(); gd.b_addr(16); gd.b_srd(60)
    for n in range(gd.ND): a(f"v_accvgpr_write_b32 a{KEEP+16+n}, v{gd.VB+n}")
    gd.VB = 3
    npre = EXP.get("dpl", gd.R - 1); pl = gd.preload(npre)
    S = gg.S
    NIN = EXP.get("dnin", 20)
    lim = ((2, 4, 8, 12) if MG == 1 else (2, 4, 10, 16)) if SPL else (2, 6, 10, 14)
    post = [(S - 5 + sum(n >= x for x in lim), grp) for n, grp in enumerate(pl[:NIN])]
    gu_phase(k, gg, 114688 if MG == 1 else 0, lambda: await_flags(k, "h1"), 3, post, (KEEP + 16, 3, gd.ND, S - 6))
    a(f"""
    s_lshl_b32 s56, s{gg.tm}, 5
    s_add_u32 s56, s56, s{gg.tn}
    s_add_u32 s56, s56, 256
    s_lshr_b32 s57, s{gd.tm}, 1
    s_lshl_b32 s57, s57, 5
    s_add_u32 s57, s57, 256""")
    if SPL: a(f"s_and_b32 s32, s{gd.tn}, 1\ns_lshl_b32 s32, s32, 4\ns_add_u32 s57, s57, s32")
    gd.VR0 = 3 + gd.ND; gd.VR = gd.VR0 + 1; gd.VA = gd.VR + 4
    publish(k, "h2", 56, 57)
    for grp in gd.preload(npre)[NIN:]:
        for x in grp: a(x)
    gd.a_addr(16); gd.a_srd()
    down_phase(k, gd, 116736 if MG == 1 else 139264, 62, KEEP, lambda: await_flags(k, "h2", 16 if SPL else 32), MG > 1)
    if not SPL: stamp(k)
    prof_out(k, KID["out_kernel"])
    if slow:
        a("s_endpgm"); slow()
    finish(k)
    return k
KID["mlp_kernel"] = KID["out_kernel"]

def all_kernels():
    g2.QPRE = 1024
    EXP["xsplit"] = 1
    MG = EXP.get("merge", 3)
    if MG:
        EXP["zflag"] = WS_FLAG
        if EXP.get("splitk", 1): EXP["wd4"] = WS_WD4; EXP["exclr"] = WS_EX if EXP.get("extag") else 0
        g2.ORDER[:] = ["pre_kernel", "qkv_kernel", "attn_kernel", "mlp_kernel"]
        for kk, vv in (("gINIT", 12), ("gCAP", 10)): EXP.setdefault(kk, vv)
        if MG > 1:
            EXP["gpre"] = 3
            g2.ORDER[:] = ["pre_kernel", "qkv_kernel", "mlp_kernel"] if MG == 2 else ["pre_kernel", "mlp_kernel"]
            return [g2.k_pre()] + ([k_qkv()] if MG == 2 else []) + [k_mlp()]
        return [g2.k_pre(), k_qkv(), g2.k_attn4(), k_mlp()]
    g2.ORDER[:] = ["pre_kernel", "qkv_kernel", "attn_kernel", "out_kernel", "gu_kernel", "down_kernel"]
    return [g2.k_pre(), k_qkv(), g2.k_attn4(), k_out(), k_gu(), k_down()]

if __name__ == "__main__":
    vb = False
    for x in sys.argv[2:]:
        if x == "prof": g2.PROF = True
        elif x == "verbose": vb = True
        else:
            kk, _, vv = x.partition("="); EXP[kk] = int(vv) if vv else 1
    g2.build(all_kernels(), sys.argv[1] if len(sys.argv) > 1 else "adaLN_cond__mha_block__geglu_ffn__prompt.s", verbose=vb)
```

```python
import sys, math, struct
from asmlib import *

SLAB = 75776
WS_MODP = 0
WS_UV = 64 << 10
WS_STAT = 256 << 10
WS_WQ3 = 1 << 20
WS_WO3 = 5 << 19
WS_WD3 = 3 << 20
WS_H1 = 5 << 20
WS_Q = 10 << 20
WS_KV = 14 << 20
WS_O = 22 << 20
WS_X2 = 27 << 20
WS_Y2 = 32 << 20
WS_ACT = 37 << 20
WS_PROF = 56 << 20
KS = 2
P_X, P_WQKV, P_WO, P_BX, P_WG, P_WU, P_WD, P_C, P_WMOD, P_OUT, P_DBG, P_WS = [8 * i for i in range(12)]
LOG2E = 1.4426950408889634
PROF = False
EXP = {}
KID = {"qkv_kernel": 0, "out_kernel": 1, "gu_kernel": 2, "down_kernel": 3, "attn_kernel": 4}
def f2u(x): return struct.unpack("<I", struct.pack("<f", x))[0]
def fx(x): return hex(f2u(x))

class Kernel:
    def __init__(self, name, grid, block, lds, nv, na=0):
        self.name, self.grid, self.block, self.lds, self.nv, self.na = name, grid, block, lds, nv, na
        self.a = Asm()
    def text(self, report=None):
        body = fix_hazards(merge_waits(self.a.l), report)
        return (f".text\n.globl {self.name}\n.p2align 8\n.type {self.name},@function\n{self.name}:\n" + "\n".join(body) + "\n")
    def desc(self):
        acc = (self.nv + 3) // 4 * 4
        nfv = acc + self.na if self.na else self.nv
        return f""".p2align 6
.amdhsa_kernel {self.name}
  .amdhsa_next_free_vgpr {nfv}
  .amdhsa_next_free_sgpr 102
  .amdhsa_accum_offset {acc}
  .amdhsa_group_segment_fixed_size 0
  .amdhsa_kernarg_size 96
  .amdhsa_user_sgpr_count 2
  .amdhsa_user_sgpr_kernarg_segment_ptr 1
  .amdhsa_system_sgpr_workgroup_id_x 1
  .amdhsa_float_denorm_mode_32 3
  .amdhsa_float_denorm_mode_16_64 3
.end_amdhsa_kernel
"""

def stamp(k, i):
    if PROF: k.a(f"s_memtime {s(64+2*i,2)}\ns_memrealtime {s(74+2*i,2)}\ns_waitcnt lgkmcnt(0)")
def prof_out(k, n, kid, wave_s):
    if not PROF: return
    a = k.a
    a(f"s_waitcnt vmcnt(0)\ns_memtime {s(64+2*n,2)}\ns_memrealtime {s(74+2*n,2)}\ns_load_dwordx2 s[84:85], s[0:1], {P_WS}\ns_waitcnt lgkmcnt(0)")
    a(f"s_add_u32 s84, s84, {WS_PROF + kid*(1<<18)}\ns_addc_u32 s85, s85, 0\ns_mov_b32 s86, {1<<18}\ns_mov_b32 s87, 0x20000")
    a(f"s_lshl_b32 s88, s2, 3\ns_add_u32 s88, s88, s{wave_s}\ns_lshl_b32 s88, s88, 6\nv_mov_b32 v1, 0")
    for i in range(10):
        a(f"v_mov_b32 v0, s{64+2*i}\nbuffer_store_dword v0, v1, s[84:87], s88 offen offset:{4*i}")
def load_ptrs(a, pairs):
    for sreg, off in pairs: a(f"s_load_dwordx2 {s(sreg,2)}, s[0:1], {off}")
def srd(a, d, p, off, size):
    if off: a(f"s_add_u32 s{d}, s{p}, {off}\ns_addc_u32 s{d+1}, s{p+1}, 0")
    else: a(f"s_mov_b32 s{d}, s{p}\ns_mov_b32 s{d+1}, s{p+1}")
    a(f"s_mov_b32 s{d+2}, {size}\ns_mov_b32 s{d+3}, 0x20000")
def guard(k): k.a(f"s_cmp_ge_u32 s2, {k.grid}\ns_cbranch_scc1 {k.name}_end")
def finish(k): k.a(f"{k.name}_end:\ns_endpgm")
def unpack(a, dst, src, n):
    for i in range(n):
        a(f"v_lshlrev_b32 v{dst+2*i}, 16, v{src+i}\nv_and_b32 v{dst+2*i+1}, 0xffff0000, v{src+i}")
def rbf(a, x):
    a(f"v_cvt_pk_bf16_f32 v{x}, v{x}, v{x}\nv_and_b32 v{x}, 0xffff0000, v{x}")
def phys_line(a, dst, i, t):
    a(f"""
    v_mul_u32_u24 v{t}, 9363, v{i}
    v_lshrrev_b32 v{t}, 16, v{t}
    v_add_u32 v{dst}, v{i}, v{t}
    v_mul_u32_u24 v{t}, 7, v{t}
    v_sub_u32 v{t}, v{i}, v{t}
    v_add_u32 v{t}, 5, v{t}
    v_lshrrev_b32 v{t}, 3, v{t}
    v_add_lshl_u32 v{dst}, v{dst}, v{t}, 7""")
def frag_off(a, dst, srb, lane, t):
    a(f"v_lshrrev_b32 v{t}, 3, v{lane}\nv_lshl_add_u32 v{t}, s{srb}, 3, v{t}")
    phys_line(a, dst, t, t + 1)
    a(f"v_and_b32 v{t}, 7, v{lane}\nv_lshl_add_u32 v{dst}, v{t}, 4, v{dst}")
def tr_lane(a, T, lane, korder, colperm):
    a(f"""
    v_lshrrev_b32 v{T}, 5, v{lane}
    v_bfe_u32 v{T+1}, v{lane}, 4, 1
    v_bfe_u32 v{T+2}, v{lane}, 2, 2
    v_and_b32 v{T+3}, 3, v{lane}""")
    if colperm:
        a(f"v_lshrrev_b32 v{T+4}, 1, v{T+3}\nv_and_b32 v{T+3}, 1, v{T+3}\nv_lshl_add_u32 v{T+3}, v{T+3}, 1, v{T+4}")
    a(f"v_lshl_add_u32 v{T+4}, v{T}, {2 if korder=='split' else 3}, v{T+2}")
def panel_rd(a, T, e, o):
    a(f"""
    v_lshlrev_b32 v{T+4}, 7, v{T+4}
    v_lshl_add_u32 v{T+4}, v{T+1}, 5, v{T+4}
    v_lshl_add_u32 v{T+4}, v{T+3}, 3, v{T+4}
    v_lshrrev_b32 v{T+5}, 1, v{T+2}
    v_lshlrev_b32 v{T+5}, 6, v{T+5}
    v_add_u32 v{e}, v{T+4}, v{T+5}
    v_sub_u32 v{o}, v{T+4}, v{T+5}
    v_add_u32 v{o}, 64, v{o}""")
def panel_src(a, T, lane):
    a(f"""
    v_lshrrev_b32 v{T}, 3, v{lane}
    v_and_b32 v{T+1}, 7, v{lane}
    v_bfe_u32 v{T+2}, v{lane}, 4, 1
    v_lshlrev_b32 v{T+2}, 2, v{T+2}
    v_xor_b32 v{T+1}, v{T+1}, v{T+2}""")

SK_LDS = 65536 + 2048
def skinny(k, tag, mode, nt, pace=0, flag=False, nw=8, mid=None, post=None):
    a = k.a; NV = 1 if mode == "silu" else 2
    NC = 8 // nw; lg = (NC - 1).bit_length() if NC > 1 else 0
    VX = 100
    a(f"""
    s_lshl_b32 s55, s26, {6+lg}
    s_add_u32 s56, s52, s55""")
    if mode == "silu":
        a("v_add_lshl_u32 v4, v1, s56, 1")
        for c in range(NC): a(f"buffer_load_ushort v{VX+4*c}, v4, s[12:15], 0 offen offset:{128*c}")
    else:
        a("v_add_lshl_u32 v4, v1, s56, 2")
        for i, (p, idx) in enumerate([(0, 4), (1, 4), (0, 3), (1, 3)]):
            a(f"s_mov_b32 s57, {p*6144*4 + idx*4096}")
            for c in range(NC): a(f"buffer_load_dword v{VX+4*c+i}, v4, s[12:15], s57 offen offset:{256*c}")
    panel_src(a, 5, 1)
    a(f"""
    v_add_u32 v5, s55, v5
    v_mul_lo_u32 v5, v5, s51
    v_lshl_add_u32 v5, v6, 4, v5
    s_lshl_b32 s57, s26, {13+lg}
    s_lshl_b32 s59, s51, 3""")
    def dmas():
        for g in range(8 * NC):
            a(f"s_add_u32 m0, s57, {1024*g}\ns_nop 0\nbuffer_load_dwordx4 v5, s[8:11], s50 offen{nt} lds\ns_add_u32 s50, s50, s59")
            if pace and g < 8 * NC - 1: a(f"s_waitcnt vmcnt({pace-1})")
    if not mid: dmas()
    if post: post()
    tr_lane(a, 12, 1, "contig", False)
    panel_rd(a, 12, 18, 19)
    a(f"""
    v_add_u32 v18, s57, v18
    v_add_u32 v19, s57, v19
    s_lshl_b32 s58, s26, {8+lg}
    s_add_u32 s58, s58, 0x10000
    v_lshl_add_u32 v6, v1, 1, s58
    v_and_b32 v7, 31, v1
    v_lshrrev_b32 v12, 5, v1
    v_lshlrev_b32 v12, 4, v12
    v_lshl_add_u32 v12, v7, 7, v12
    v_add_u32 v12, s58, v12
    s_waitcnt vmcnt({0 if mid else 8*NC + (1 if post else 0)})""")
    for c in range(NC):
        x = VX + 4 * c
        if mode == "silu":
            a(f"""
            v_lshlrev_b32 v{x}, 16, v{x}
            v_mul_f32 v{x+1}, {fx(-LOG2E)}, v{x}
            v_exp_f32 v{x+1}, v{x+1}
            v_add_f32 v{x+1}, 1.0, v{x+1}
            v_rcp_f32 v{x+1}, v{x+1}
            v_mul_f32 v{x}, v{x}, v{x+1}
            v_cvt_pk_bf16_f32 v{x}, v{x}, v{x}
            ds_write_b16 v6, v{x} offset:{256*c}""")
        else:
            a(f"v_add_f32 v{x}, v{x}, v{x+1}\nv_add_f32 v{x+2}, v{x+2}, v{x+3}")
            rbf(a, x)
            a(f"v_add_f32 v{x}, 1.0, v{x}\nv_cvt_pk_bf16_f32 v{x}, v{x}, v{x}\nv_cvt_pk_bf16_f32 v{x+2}, v{x+2}, v{x+2}")
            a(f"ds_write_b16 v6, v{x} offset:{256*c}\nds_write_b16 v6, v{x+2} offset:{256*c+128}")
    for i in range(16): a(f"v_mov_b32 v{20+i}, 0")
    if mid:
        dmas(); mid()
    a(f"v_cmp_gt_u32 vcc, {NV}, v7\ns_waitcnt vmcnt({1 if post else 0}) lgkmcnt(0)")
    for c in range(NC):
        a("s_and_saveexec_b64 s[60:61], vcc")
        for sub in range(4): a(f"ds_read_b128 {v(20+4*sub,4)}, v12 offset:{32*sub+256*c}")
        a("s_mov_b64 exec, s[60:61]")
        for sub in range(4):
            for j in range(2):
                for r_ in range(2):
                    a(f"ds_read_b64_tr_b16 {v(36+8*sub+4*j+2*r_,2)}, v{18+j} offset:{128*(16*sub+4*r_)+8192*c}")
        for sub in range(4):
            a(f"s_waitcnt lgkmcnt({12-4*sub})")
            for j in range(2):
                d = v(68 + 16 * j, 16)
                a(f"v_mfma_f32_32x32x16_bf16 {d}, {v(20+4*sub,4)}, {v(36+8*sub+4*j,4)}, {d if (sub or c) else 0}")
    a(f"""
    v_lshl_add_u32 v6, v1, 2, s57
    v_cmp_gt_u32 vcc, 32, v1
    s_and_saveexec_b64 s[60:61], vcc""")
    for j in range(2):
        for q in range(NV): a(f"ds_write_b32 v6, v{68+16*j+q} offset:{256*q+128*j}")
    a(f"""
    s_mov_b64 exec, s[60:61]
    s_waitcnt lgkmcnt(0)
    s_barrier
    s_cmp_ge_u32 s26, {NV}
    s_cbranch_scc1 {k.name}_end
    s_lshl_b32 s57, s26, 8
    v_lshl_add_u32 v6, v1, 2, s57""")
    for w in range(nw): a(f"ds_read_b32 v{8+w}, v6 offset:{8192*NC*w}")
    a(f"s_mul_i32 s57, s26, s54\ns_add_u32 s53, s53, s57\nv_lshlrev_b32 v6, 2, v1\ns_waitcnt lgkmcnt(0)")
    for w in (4, 2, 1):
        if w < nw:
            for i in range(w): a(f"v_add_f32 v{8+i}, v{8+i}, v{8+w+i}")
    if not flag:
        a("buffer_store_dword v8, v6, s[16:19], s53 offen\ns_endpgm")
        return
    a("""
    buffer_store_dword v8, v6, s[16:19], s53 offen sc1
    s_lshl_b32 s57, s2, 2
    v_mov_b32 v9, 1
    v_mov_b32 v6, s57
    s_mov_b64 exec, 1
    s_waitcnt vmcnt(0)
    buffer_store_dword v9, v6, s[20:23], 0 offen sc1
    s_endpgm""")

def prefetch(a, gid, ps, nbytes, start, vt, srd_s=20):
    srd(a, srd_s, ps, 0, nbytes)
    a(f"""
    v_subrev_u32 v{vt}, {start}, v{gid}
    v_cmp_gt_u32 vcc, {nbytes//128}, v{vt}
    v_lshlrev_b32 v{vt}, 7, v{vt}
    v_mov_b32 v{vt+1}, 0x80000000
    v_cndmask_b32 v{vt}, v{vt+1}, v{vt}, vcc
    buffer_load_dword v{vt+1}, v{vt}, {s(srd_s,4)}, 0 offen""")

def strip_copy_issue(a, gid, ps, K, ldb, npan, start, vt, srd_s=20, col=384, dsh=8, doff=0):
    srd(a, srd_s, ps, 0, K * ldb)
    n = 2 * npan
    a(f"""
    v_subrev_u32 v{vt}, {start}, v{gid}
    v_cmp_gt_u32 vcc, {K*n*8}, v{vt}
    v_and_b32 v{vt+1}, 7, v{vt}
    v_lshrrev_b32 v{vt}, 3, v{vt}""")
    if npan == 1:
        a(f"v_lshrrev_b32 v{vt+2}, 1, v{vt}\nv_and_b32 v{vt+3}, 1, v{vt}\nv_lshlrev_b32 v{vt+3}, 10, v{vt+3}")
    else:
        a(f"""
        v_mul_u32_u24 v{vt+2}, 10923, v{vt}
        v_lshrrev_b32 v{vt+2}, 16, v{vt+2}
        v_mul_u32_u24 v{vt+3}, 6, v{vt+2}
        v_sub_u32 v{vt+3}, v{vt}, v{vt+3}
        v_lshlrev_b32 v{vt+4}, 11, v{vt+3}
        v_add_u32 v{vt+3}, 5, v{vt+3}
        v_lshrrev_b32 v{vt+3}, 3, v{vt+3}
        v_mul_u32_u24 v{vt+3}, {6144-1024}, v{vt+3}
        v_sub_u32 v{vt+3}, v{vt+4}, v{vt+3}""")
    a(f"""
    v_mul_u32_u24 v{vt+2}, {ldb}, v{vt+2}
    v_add3_u32 v{vt+2}, v{vt+2}, v{vt+3}, 0
    v_lshl_add_u32 v{vt+2}, v{vt+1}, 4, v{vt+2}
    v_add_u32 v{vt+2}, {col}, v{vt+2}
    v_mov_b32 v{vt+3}, 0x80000000
    v_cndmask_b32 v{vt+2}, v{vt+3}, v{vt+2}, vcc
    v_lshlrev_b32 v{vt}, {dsh}, v{vt}
    v_lshl_add_u32 v{vt}, v{vt+1}, 4, v{vt}
    v_add_u32 v{vt}, {doff}, v{vt}
    v_cndmask_b32 v{vt}, v{vt+3}, v{vt}, vcc
    buffer_load_dwordx4 {v(vt+4,4)}, v{vt+2}, {s(srd_s,4)}, 0 offen""")
def strip_copy_store(a, ws_s, off, size, vt, srd_s=20):
    srd(a, srd_s, ws_s, off, size)
    a(f"buffer_store_dwordx4 {v(vt+4,4)}, v{vt}, {s(srd_s,4)}, 0 offen sc1")

ORDER = []
def code_srd(k, d, start, upto=None, nwg=8):
    if EXP.get("nocpf"): nwg = 0
    i = ORDER.index(k.name)
    end = upto or (ORDER[min(i + 1, len(ORDER) - 1)] + "_end")
    k.npc = getattr(k, "npc", 0) + 1
    lab = f"{k.name}_pc{k.npc}"
    k.a(f"""
    s_getpc_b64 {s(d,2)}
{lab}:
    s_add_u32 s{d}, s{d}, {start}-{lab}
    s_addc_u32 s{d+1}, s{d+1}, 0
    s_mov_b32 s{d+2}, {end}-{start}+4
    s_cmp_lt_u32 s2, {nwg}
    s_cselect_b32 s{d+2}, s{d+2}, 0
    s_mov_b32 s{d+3}, 0x20000""")
def cpf_addr(a, vr):
    a(f"""
    s_lshr_b32 s32, s2, 3
    s_lshl_b32 s32, s32, 2
    s_add_u32 s32, s32, s26
    s_lshl_b32 s32, s32, 9
    v_lshrrev_b32 v{vr}, 2, v1
    v_lshlrev_b32 v{vr}, 20, v{vr}
    v_lshl_add_u32 v{vr}, v1, 7, v{vr}
    v_add_u32 v{vr}, s32, v{vr}""")
def wave_lane(a):
    a("v_lshrrev_b32 v2, 6, v0\nv_and_b32 v1, 63, v0\nv_readfirstlane_b32 s26, v2")

def red32(a, x, t):
    for m in ("quad_perm:[1,0,3,2]", "quad_perm:[2,3,0,1]", "row_half_mirror", "row_mirror"):
        a(f"v_add_f32_dpp v{x}, v{x}, v{x} {m} row_mask:0xf bank_mask:0xf")
    a(f"v_mov_b32 v{t}, v{x}\nv_permlane16_swap_b32 v{x}, v{t}\nv_add_f32 v{x}, v{x}, v{t}")

QPRE = 256
def k_pre():
    GP = EXP.get("gpre", 0)
    NT = EXP.get("tlbwg", 8) if EXP.get("tlb", 0) else 0
    k = Kernel("pre_kernel", (256, 320, 288, 256)[GP] + NT, 512, SK_LDS, 112); a = k.a
    guard(k)
    if NT:
        sh = EXP["tlb"]
        a(f"s_cmp_lt_u32 s2, {k.grid - NT}\ns_cbranch_scc1 pre_main")
        bufs = [(P_WS, 0, 54 << 20), (P_WO, 0, 2 << 20), (P_WG, 0, 1024 * 7168), (P_WU, 0, 1024 * 7168), (P_WD, 0, 3584 * 2048), (P_OUT, 0, 4 << 20),
                (P_WQKV, 0, 1024 * 6144), (P_WMOD, 0, 1024 * 12288), (P_X, 0, 4 << 20)]
        for i, (p, o, n) in enumerate(bufs): a(f"s_load_dwordx2 {s(40+2*i,2)}, s[0:1], {p}")
        a(f"v_lshlrev_b32 v1, {sh}, v0\ns_waitcnt lgkmcnt(0)")
        for i, (p, o, n) in enumerate(bufs):
            srd(a, 4, 40 + 2 * i, 0, n)
            for c in range(0, n, 512 << sh):
                a(f"s_mov_b32 s8, {c}\nbuffer_load_dword v2, v1, s[4:7], s8 offen")
        a("s_endpgm\npre_main:")
    code_srd(k, 88, "pre_kernel_top", ORDER[-1] + "_end", 256)
    a("""
    s_lshr_b32 s3, s2, 3
    s_mul_i32 s3, s3, 3072
    v_lshlrev_b32 v108, 7, v0
    v_mov_b32 v109, 0x80000000
    v_cmp_gt_u32 vcc, 24, v0
    v_cndmask_b32 v108, v109, v108, vcc
    buffer_load_dword v109, v108, s[88:91], s3 offen
pre_kernel_top:""")
    load_ptrs(a, [(40, P_C), (42, P_WMOD), (44, P_WS), (46, P_WQKV), (48, P_X), (62, P_DBG), (64, P_WO)])
    wave_lane(a)
    if GP == 2:
        a(f"""
        s_mov_b32 s27, s2
        s_cmp_lt_u32 s2, 128
        s_cbranch_scc1 pre_side
        s_sub_u32 s35, s2, 128
        s_and_b32 s32, s35, 1
        s_lshr_b32 s33, s35, 1
        s_cmp_ge_u32 s33, 32
        s_cselect_b32 s34, 16, 0
        s_add_u32 s33, s33, s34""")
    else:
        a(f"""
        s_sub_u32 s27, s2, 128
        s_cmp_lt_u32 s27, 128
        s_cbranch_scc1 pre_side
        s_and_b32 s32, s2, 1
        s_lshr_b32 s33, s2, 1
        s_cmp_ge_u32 s33, 32
        s_cselect_b32 s34, 16, 0
        s_add_u32 s33, s33, s34
        s_cmp_ge_u32 s33, 160
        s_mov_b32 s34, 112
        s_cselect_b32 s34, 80, s34
        s_cmp_ge_u32 s33, 144
        s_cselect_b32 s34, s34, 0
        s_sub_u32 s33, s33, s34""")
    a(f"""
    s_lshl_b32 s52, s32, 9
    s_mov_b32 s51, 12288
    s_mul_i32 s50, s52, s51
    s_lshl_b32 s34, s33, 7
    s_add_u32 s50, s50, s34
    s_mul_i32 s53, s32, {6144*4}
    s_lshl_b32 s34, s33, 8
    s_add_u32 s53, s53, s34
    s_mov_b32 s54, 0
    s_waitcnt lgkmcnt(0)""")
    srd(a, 8, 42, 0, 1024 * 12288); srd(a, 12, 40, 0, 2048); srd(a, 16, 44, WS_MODP, KS * 6144 * 4)
    F2 = EXP.get("fuse1", 1) == 2
    if F2: srd(a, 20, 62, 0, 256)
    NS = EXP.get("pns", 160 if GP == 2 else 0); NL = -(-(49152 - 128 * NS) // (96 if GP == 2 else 128))
    def pf_share():
        if GP == 3: a("s_mov_b32 s35, s2")
        srd(a, 20, 46, 0, 128 * NS * 128)
        a(f"""
        s_mul_i32 s35, s35, {NS*128}
        v_lshlrev_b32 v110, 7, v0
        v_mov_b32 v111, 0x80000000
        v_cmp_gt_u32 vcc, {NS}, v0
        v_cndmask_b32 v110, v111, v110, vcc
        buffer_load_dword v111, v110, s[20:23], s35 offen""")
    skinny(k, "m", "silu", " nt" if EXP.get("mnt", 1) else "", flag=F2, post=pf_share if GP >= 2 and NS else None)
    a("""
pre_side:
    s_lshl_b32 s32, s27, 9
    v_add_u32 v3, s32, v0""")
    if not EXP.get("fuse1", 1):
        a("s_waitcnt lgkmcnt(0)")
        strip_copy_issue(a, 3, 46, 1024, 6144, 3, 0, 8)
        prefetch(a, 3, 46, 1024 * 6144, 65536 - 49152, 20)
        prefetch(a, 3, 48, 2048 * 2048, 0, 24)
        a("s_waitcnt vmcnt(2)")
        strip_copy_store(a, 44, WS_WQ3, 1024 * 1536, 8)
        finish(k)
        return k
    if EXP.get("noln"):
        a("s_waitcnt lgkmcnt(0)")
        strip_copy_issue(a, 3, 64, 1024, 2048, 1, 49152, 84)
        strip_copy_issue(a, 3, 46, 1024, 6144, 3, 0, 64)
        NL = -(-(QPRE * 48 - 128 * NS) // 128)
        a(f"""
        s_mov_b32 s22, {QPRE * 6144}
        s_mul_i32 s35, s27, {NL*128}
        s_add_u32 s35, s35, {128*NS*128}
        v_lshlrev_b32 v72, 7, v0
        v_mov_b32 v73, 0x80000000
        v_cmp_gt_u32 vcc, {NL}, v0
        v_cndmask_b32 v74, v73, v72, vcc
        buffer_load_dword v75, v74, s[20:23], s35 offen
        v_subrev_u32 v72, {256*128}, v72
        v_cmp_lt_u32 vcc, 255, v0
        v_cndmask_b32 v74, v73, v72, vcc
        s_lshl_b32 s35, s27, 15""")
        srd(a, 20, 48, 0, 4 << 20)
        a("buffer_load_dword v75, v74, s[20:23], s35 offen")
        srd(a, 20, 44, EXP["zflag"], 2560 * 128)
        a("""
        v_lshlrev_b32 v76, 4, v0
        v_cmp_gt_u32 vcc, 160, v0
        v_cndmask_b32 v76, v73, v76, vcc
        s_mul_i32 s35, s27, 2560
        v_mov_b32 v78, 0
        v_mov_b32 v79, 0
        v_mov_b32 v80, 0
        v_mov_b32 v81, 0
        buffer_store_dwordx4 v[78:81], v76, s[20:23], s35 offen sc1
        s_waitcnt vmcnt(3)""")
        strip_copy_store(a, 44, WS_WQ3, 1024 * 1536, 64)
        strip_copy_store(a, 44, WS_WO3, 1024 * 512, 84)
        finish(k)
        return k
    a(f"""
    v_lshrrev_b32 v1, 5, v0
    v_and_b32 v2, 31, v0               ; chunk
    s_lshl_b32 s24, s27, 4
    v_add_u32 v4, s24, v1
    v_lshlrev_b32 v4, 11, v4
    v_lshl_add_u32 v4, v2, 4, v4
    s_waitcnt lgkmcnt(0)""")
    srd(a, 4, 48, 0, 2048 * 2048); srd(a, 12, 44, WS_H1, 64 * SLAB)
    for i in range(4): a(f"buffer_load_dwordx4 {v(8+4*i,4)}, v4, s[4:7], 0 offen offset:{512*i} nt")
    if EXP.get("zflag"):
        srd(a, 20, 44, EXP["zflag"], 2560 * 128)
        a("""
        v_lshlrev_b32 v76, 4, v0
        v_mov_b32 v77, 0x80000000
        v_cmp_gt_u32 vcc, 160, v0
        v_cndmask_b32 v76, v77, v76, vcc
        s_mul_i32 s35, s27, 2560
        v_mov_b32 v78, 0
        v_mov_b32 v79, 0
        v_mov_b32 v80, 0
        v_mov_b32 v81, 0
        buffer_store_dwordx4 v[78:81], v76, s[20:23], s35 offen sc1""")
    EARLY = (not F2) or EXP.get("pfearly", 1)
    if EARLY:
        if GP == 2:
            strip_copy_issue(a, 3, 64, 1024, 2048, 1, 0, 84)
            strip_copy_issue(a, 3, 46, 1024, 6144, 3, 16384, 64)
            a(f"""
            s_sub_u32 s35, s27, 32
            s_cselect_b32 s22, 0, s22
            s_mul_i32 s35, s35, {NL*128}
            s_add_u32 s35, s35, {128*NS*128}
            s_cmp_lt_u32 s27, 32
            s_cselect_b32 s35, 0, s35
            v_lshlrev_b32 v72, 7, v0
            v_mov_b32 v73, 0x80000000
            v_cmp_gt_u32 vcc, {NL}, v0
            v_cndmask_b32 v72, v73, v72, vcc
            buffer_load_dword v73, v72, s[20:23], s35 offen""")
        elif GP == 3:
            strip_copy_issue(a, 3, 64, 1024, 2048, 1, 49152, 84)
            strip_copy_issue(a, 3, 46, 1024, 6144, 3, 0, 64)
            a(f"""
            s_mul_i32 s35, s27, {NL*128}
            s_add_u32 s35, s35, {128*NS*128}
            v_lshlrev_b32 v72, 7, v0
            v_mov_b32 v73, 0x80000000
            v_cmp_gt_u32 vcc, {NL}, v0
            v_cndmask_b32 v72, v73, v72, vcc
            buffer_load_dword v73, v72, s[20:23], s35 offen""")
        else:
            strip_copy_issue(a, 3, 46, 1024, 6144, 3, 0, 64)
            prefetch(a, 3, 46, QPRE * 6144, 65536 - QPRE * 48, 72)
    a(f"""
    s_lshr_b32 s25, s27, 1
    s_lshl_b32 s25, s25, 3
    s_and_b32 s26, s27, 1
    s_lshl_b32 s26, s26, 1
    s_add_u32 s25, s25, s26
    v_bfe_u32 v26, v0, 4, 1
    v_lshl_add_u32 v26, v26, 2, s25
    v_bfe_u32 v27, v0, 3, 1
    v_add_u32 v26, v26, v27""")
    phys_line(a, 25, 26, 27)
    a(f"""
    v_and_b32 v26, 7, v0
    v_lshl_add_u32 v25, v26, 4, v25
    s_mov_b32 s25, {SLAB}
    v_mul_lo_u32 v27, v1, s25
    v_add_u32 v25, v25, v27
    v_lshrrev_b32 v27, 4, v0
    v_mul_u32_u24 v27, 272, v27
    v_and_b32 v26, 15, v0
    v_lshl_add_u32 v27, v26, 4, v27
    v_mul_u32_u24 v28, 272, v2
    v_lshl_add_u32 v28, v1, 4, v28""")
    if EXP.get("xsplit"): a("v_and_b32 v29, 1, v2\nv_mul_u32_u24 v29, 264, v29\nv_sub_u32 v28, v28, v29")
    a(f"s_waitcnt vmcnt({(3 if GP >= 2 else 2) if EARLY else 0})")
    if not EARLY:
        a("""
        v_subrev_u32 v5, 64, v0
        s_mul_i32 s32, s27, 448
        v_add_u32 v5, s32, v5
        v_mov_b32 v29, 0x40000000
        v_cmp_gt_u32 vcc, 64, v0
        v_cndmask_b32 v3, v5, v29, vcc""")
        strip_copy_issue(a, 3, 46, 1024, 6144, 3, 0, 64)
        prefetch(a, 3, 46, QPRE * 6144, 57344 - QPRE * 48, 72)
    unpack(a, 32, 8, 16)
    a("v_add_f32 v6, v32, v33\nv_add_f32 v7, v34, v35")
    for i in range(4, 32): a(f"v_add_f32 v{6+i%2}, v{6+i%2}, v{32+i}")
    a("v_add_f32 v6, v6, v7")
    red32(a, 6, 7)
    a(f"v_mul_f32 v6, {fx(1/1024)}, v6")
    for i in range(32): a(f"v_sub_f32 v{32+i}, v{32+i}, v6")
    a("v_mul_f32 v6, v32, v32\nv_mul_f32 v7, v33, v33")
    for i in range(2, 32): a(f"v_fmac_f32 v{6+i%2}, v{32+i}, v{32+i}")
    a("v_add_f32 v6, v6, v7")
    red32(a, 6, 7)
    a(f"""
    v_mov_b32 v7, {fx(1e-5)}
    v_fmac_f32 v7, {fx(1/1024)}, v6
    v_rsq_f32 v6, v7""")
    if not F2:
        for i in range(4):
            for j in range(8): a(f"v_mul_f32 v{32+8*i+j}, v{32+8*i+j}, v6")
            for j in range(4): a(f"v_cvt_pk_f16_f32 v{8+4*i+j}, v{32+8*i+2*j}, v{33+8*i+2*j}")
            if EXP.get("xsplit"):
                a(f"ds_write_b64 v28, {v(8+4*i,2)} offset:{32*272*i}\nds_write_b64 v28, {v(10+4*i,2)} offset:{32*272*i+272}")
            else: a(f"ds_write_b128 v28, {v(8+4*i,4)} offset:{32*272*i}")
    else:
        CL = 36864
        for i in range(32): a(f"v_mul_f32 v{32+i}, v{32+i}, v6")
        srd(a, 16, 62, 0, 256); srd(a, 8, 44, WS_MODP, KS * 6144 * 4)
        a(f"""
        v_lshlrev_b32 v5, 4, v0
        v_lshlrev_b32 v24, 5, v2
        v_lshrrev_b32 v7, 6, v0
        v_lshlrev_b32 v6, 2, v0
        v_readfirstlane_b32 s26, v7
        s_cmp_lg_u32 s26, 0
        s_cbranch_scc1 pre_go
pre_poll:
        buffer_load_dword v7, v6, s[16:19], 0 offen sc1
        s_waitcnt vmcnt(0)
        v_cmp_eq_u32 vcc, 1, v7
        s_cmp_eq_u64 vcc, -1
        s_cbranch_scc1 pre_go
        s_sleep 1
        s_branch pre_poll
pre_go:
        s_barrier
        s_mov_b32 s32, {6144*4}
        buffer_load_dwordx4 v[8:11], v5, s[8:11], 0 offen sc1
        buffer_load_dwordx4 v[12:15], v5, s[8:11], s32 offen sc1
        s_cmp_ge_u32 s26, 4
        s_cselect_b32 s33, 1.0, 0
        s_waitcnt vmcnt(0)""")
        for j in range(4): a(f"v_add_f32 v{8+j}, v{8+j}, v{12+j}")
        for j in range(2): a(f"v_cvt_pk_bf16_f32 v{12+j}, v{8+2*j}, v{9+2*j}")
        unpack(a, 8, 12, 2)
        for j in range(4): a(f"v_add_f32 v{8+j}, s33, v{8+j}")
        for j in range(2): a(f"v_cvt_pk_bf16_f32 v{12+j}, v{8+2*j}, v{9+2*j}")
        unpack(a, 8, 12, 2)
        a(f"ds_write_b128 v5, v[8:11] offset:{CL}\ns_waitcnt lgkmcnt(0)\ns_barrier")
        B0, B1 = 8, 76
        def crd(i):
            B = B0 if i % 2 == 0 else B1
            for n, o in enumerate((4096, 4096 + 16, 0, 16)): a(f"ds_read_b128 {v(B+4*n,4)}, v24 offset:{CL+o+1024*i}")
        crd(0); crd(1)
        for i in range(4):
            B = B0 if i % 2 == 0 else B1
            a(f"s_waitcnt lgkmcnt({[4,5,5,1][i]})")
            for j in range(8): a(f"v_fma_f32 v{32+8*i+j}, v{32+8*i+j}, v{B+j}, v{B+8+j}")
            for j in range(4): a(f"v_cvt_pk_bf16_f32 v{92+j}, v{32+8*i+2*j}, v{33+8*i+2*j}")
            a(f"ds_write_b128 v28, v[92:95] offset:{32*272*i}")
            if i < 2: crd(i + 2)
    a("s_waitcnt lgkmcnt(0)\ns_barrier")
    for i in range(4): a(f"ds_read_b128 {v(32+4*i,4)}, v27 offset:{32*272*i}")
    for i in range(4):
        a(f"s_mov_b32 s25, {16*SLAB*i}\ns_waitcnt lgkmcnt({3-i})\nbuffer_store_dwordx4 {v(32+4*i,4)}, v25, s[12:15], s25 offen sc1")
    if not F2: a("s_waitcnt vmcnt(5)")
    strip_copy_store(a, 44, WS_WQ3, 1024 * 1536, 64)
    if GP >= 2: strip_copy_store(a, 44, WS_WO3, 1024 * 512, 84)
    finish(k)
    return k

def k_ln(name, src_ptr, dst_off, shift_idx, scale_idx):
    k = Kernel(name, 256, 256, 8192 + 128 * 144, 128); a = k.a
    guard(k)
    load_ptrs(a, [(40, src_ptr), (44, P_WS)])
    code_srd(k, 88, name + "_end")
    a("v_lshlrev_b32 v30, 7, v0\nbuffer_load_dword v31, v30, s[88:91], 0 offen")
    a(f"""
    v_lshrrev_b32 v1, 5, v0
    v_and_b32 v2, 31, v0               ; chunk
    s_lshl_b32 s24, s2, 3
    v_add_u32 v3, s24, v1              ; row
    v_lshlrev_b32 v4, 11, v3
    v_lshl_add_u32 v4, v2, 4, v4
    v_lshlrev_b32 v5, 4, v0            ; tid*16
    s_waitcnt lgkmcnt(0)""")
    srd(a, 4, 40, 0, 2048 * 2048); srd(a, 8, 44, WS_MODP, KS * 6144 * 4); srd(a, 12, 44, dst_off, 64 * SLAB)
    for p in range(KS):
        a(f"s_mov_b32 s25, {p*6144*4 + scale_idx*4096}\nbuffer_load_dwordx4 {v(96+8*p,4)}, v5, s[8:11], s25 offen")
        a(f"s_mov_b32 s25, {p*6144*4 + shift_idx*4096}\nbuffer_load_dwordx4 {v(100+8*p,4)}, v5, s[8:11], s25 offen")
    for i in range(4): a(f"buffer_load_dwordx4 {v(8+4*i,4)}, v4, s[4:7], 0 offen offset:{512*i}")
    a(f"""
    s_lshr_b32 s25, s2, 2
    s_lshl_b32 s25, s25, 3
    s_and_b32 s26, s2, 3
    s_add_u32 s25, s25, s26
    v_bfe_u32 v26, v0, 3, 1
    v_lshl_add_u32 v26, v26, 2, s25""")
    phys_line(a, 25, 26, 27)
    a(f"""
    v_and_b32 v26, 7, v0
    v_lshl_add_u32 v25, v26, 4, v25
    v_lshrrev_b32 v27, 4, v0
    s_mov_b32 s25, {SLAB}
    v_mul_lo_u32 v27, v27, s25
    v_add_u32 v25, v25, v27
    v_lshrrev_b32 v27, 3, v0
    v_mul_u32_u24 v27, 144, v27
    v_lshl_add_u32 v27, v26, 4, v27
    v_mul_u32_u24 v28, 144, v2
    v_lshl_add_u32 v28, v1, 4, v28
    s_waitcnt vmcnt(4)""")
    for p in range(1, KS):
        for j in range(8): a(f"v_add_f32 v{96+j}, v{96+j}, v{96+8*p+j}")
    for j in range(4): a(f"v_cvt_pk_bf16_f32 v{112+j}, v{96+2*j}, v{97+2*j}")
    unpack(a, 96, 112, 4)
    for j in range(4): a(f"v_add_f32 v{96+j}, 1.0, v{96+j}")
    for j in range(2): a(f"v_cvt_pk_bf16_f32 v{112+j}, v{96+2*j}, v{97+2*j}")
    unpack(a, 96, 112, 2)
    a("ds_write_b128 v5, v[96:99]\nds_write_b128 v5, v[100:103] offset:4096")
    a("s_waitcnt vmcnt(0)")
    unpack(a, 32, 8, 16)
    a("v_add_f32 v6, v32, v33\nv_add_f32 v7, v34, v35")
    for i in range(4, 32): a(f"v_add_f32 v{6+i%2}, v{6+i%2}, v{32+i}")
    a("v_add_f32 v6, v6, v7")
    red32(a, 6, 7)
    a(f"v_mul_f32 v6, {fx(1/1024)}, v6")
    for i in range(32): a(f"v_sub_f32 v{32+i}, v{32+i}, v6")
    a("v_mul_f32 v6, v32, v32\nv_mul_f32 v7, v33, v33")
    for i in range(2, 32): a(f"v_fmac_f32 v{6+i%2}, v{32+i}, v{32+i}")
    a("v_add_f32 v6, v6, v7")
    red32(a, 6, 7)
    a(f"""
    v_mov_b32 v7, {fx(1e-5)}
    v_fmac_f32 v7, {fx(1/1024)}, v6
    v_rsq_f32 v6, v7
    v_lshlrev_b32 v24, 5, v2
    s_waitcnt lgkmcnt(0)
    s_barrier""")
    for i in range(4):
        a(f"ds_read_b128 {v(64+16*i,4)}, v24 offset:{1024*i}\nds_read_b128 {v(68+16*i,4)}, v24 offset:{1024*i+16}")
        a(f"ds_read_b128 {v(72+16*i,4)}, v24 offset:{4096+1024*i}\nds_read_b128 {v(76+16*i,4)}, v24 offset:{4096+1024*i+16}")
    for i in range(32): a(f"v_mul_f32 v{32+i}, v{32+i}, v6")
    for i in range(4):
        a(f"s_waitcnt lgkmcnt({12-4*i+i})")
        for j in range(8): a(f"v_fma_f32 v{32+8*i+j}, v{32+8*i+j}, v{64+16*i+j}, v{72+16*i+j}")
        for j in range(4): a(f"v_cvt_pk_bf16_f32 v{8+4*i+j}, v{32+8*i+2*j}, v{33+8*i+2*j}")
        a(f"ds_write_b128 v28, {v(8+4*i,4)} offset:{8192+32*144*i}")
    a("s_waitcnt lgkmcnt(0)\ns_barrier")
    for i in range(4): a(f"ds_read_b128 {v(32+4*i,4)}, v27 offset:{8192+32*144*i}")
    for i in range(4):
        a(f"s_mov_b32 s25, {16*SLAB*i}\ns_waitcnt lgkmcnt({3-i})\nbuffer_store_dwordx4 {v(32+4*i,4)}, v25, s[12:15], s25 offen sc1")
    finish(k)
    return k

def tile_map(a, TM, TN, xm, xn):
    tm_per, tn_per = TM // xm, TN // xn
    assert tm_per & (tm_per - 1) == 0
    a(f"""
    s_and_b32 s32, s2, 7
    s_lshr_b32 s33, s2, 3
    s_lshr_b32 s34, s32, {xn.bit_length()-1}
    s_and_b32 s35, s32, {xn-1}
    s_and_b32 s24, s33, {tm_per-1}
    s_lshr_b32 s25, s33, {tm_per.bit_length()-1}
    s_mul_i32 s34, s34, {tm_per}
    s_add_u32 s24, s24, s34
    s_mul_i32 s35, s35, {tn_per}
    s_add_u32 s25, s25, s35""")
    wave_lane(a)

def k_gemm(name, K, MB, NB, DA, R, U, PEEL, CAP, INIT, btype, a_off, korder, colperm, orient, TM, TN, xm, xn,
           ptrs, setup, epilogue, ldb, alt=None, big=False, ntemp=24, xlds=0, nxa=0, FB=1, mod=False):
    S = K // 16; NST = K // 64; WG = EXP.get(name[0] + 'WG', 2 if mod else 1)
    assert (NST - PEEL) % U == 0 and (4 * U) % DA == 0 and (4 * PEEL) % DA == 0 and (4 * U) % FB == 0 and (4 * PEEL) % FB == 0
    if btype == "panel":
        NP = NB // 2; STAGE = NP * 8192; ND = 2 * NP
    else:
        UPOFF = 16 * (64 * 14 + 8); STAGE = 2 * UPOFF; ND = 7
    VRE0, VRO0, VRE, VRO, VA = 3, 4, 5, 6, 7
    VB = VA + MB
    nfix = VB + ND
    if big:
        ACC = 256 - 16 * NB * MB; fk = "a"; BF = 0; AR = 4 * NB * FB; XA = AR + 4 * MB * DA; na = XA + nxa; nv = 256
        TMP = (nfix + 1) // 2 * 2; assert TMP + 14 <= ACC
    else:
        TMP = (nfix + 3) // 4 * 4
        ACC = (TMP + ntemp + 3) // 4 * 4
        fk = "v"; BF = ACC + 16 * NB * MB; AR = BF + 4 * NB * FB; nv = AR + 4 * MB * DA; na = 0; XA = None
        if mod: CM0 = nv; HF = CM0 + 32; VC = HF + 8; nv = VC + 1
    k = Kernel(name, TM * TN, 256, STAGE * R + xlds, nv, na); a = k.a
    k.ACC, k.TMP, k.MB, k.NB, k.BF, k.AR, k.VA, k.XL, k.XA = ACC, TMP, MB, NB, BF, AR, VA, STAGE * R, XA
    acc = lambda j, tb: ACC + 16 * (j * MB + tb)
    k.acc = acc
    guard(k)
    stamp(k, 0)
    load_ptrs(a, ptrs)
    tile_map(a, TM, TN, xm, xn)
    T = TMP
    a(f"s_lshl_b32 s37, s24, 2\ns_add_u32 s37, s37, s26\ns_mul_i32 s37, s37, {MB}")
    rd_rows = 8 if korder == "split" else 4
    if btype == "panel":
        off_alt, ldb_alt, pst_alt, sst_alt = alt
        a(f"""
        s_and_b32 s32, s25, 7
        s_lshr_b32 s33, s25, 3
        s_mul_i32 s33, s33, {sst_alt}
        s_lshl_b32 s34, s25, 7
        s_mov_b32 s51, {ldb}
        s_mov_b32 s52, 2048
        s_cmp_eq_u32 s32, {3 if not EXP.get('noalt') else 99}
        s_cselect_b32 s50, s33, s34
        s_cselect_b32 s51, {ldb_alt}, s51
        s_cselect_b32 s52, {pst_alt}, s52
        s_cselect_b32 s53, 1, 0
        s_lshl_b32 s39, s51, 6
        s_lshl_b32 s54, s51, 3""")
        panel_src(a, T, 1)
        a(f"""
        s_lshl_b32 s32, s26, 4
        v_add_u32 v{T}, s32, v{T}
        v_mul_lo_u32 v{T}, v{T}, s51
        v_lshl_add_u32 v{T}, v{T+1}, 4, v{T}
        v_add_u32 v{VB}, s50, v{T}
        v_add_u32 v{VB+1}, s54, v{VB}""")
        for p in range(1, NP):
            a(f"v_add_u32 v{VB+2*p}, s52, v{VB+2*p-2}\nv_add_u32 v{VB+2*p+1}, s52, v{VB+2*p-1}")
        dma_lds = [p * 8192 + g * 1024 for p in range(NP) for g in range(2)]
        a("s_lshl_b32 s36, s26, 11")
    else:
        a(f"""
        s_and_b32 s32, s26, 1
        s_mul_i32 s33, s32, {32*ldb}
        s_mul_i32 s34, s25, 224
        s_add_u32 s33, s33, s34
        s_mov_b32 s39, {64*ldb}""")
        for i in range(7):
            a(f"""
            v_add_u32 v{T}, {64*i}, v1
            v_mul_u32_u24 v{T+1}, 4682, v{T}
            v_lshrrev_b32 v{T+1}, 16, v{T+1}
            v_lshl_add_u32 v{T}, v{T}, 4, s33
            v_mul_u32_u24 v{T+1}, {ldb-224}, v{T+1}
            v_add_u32 v{VB+i}, v{T}, v{T+1}""")
        dma_lds = [1024 * i for i in range(7)]
        a(f"""
        s_mul_i32 s36, s32, 7168
        s_lshr_b32 s33, s26, 1
        s_mul_i32 s33, s33, {UPOFF}
        s_add_u32 s36, s36, s33""")
    for tb in range(MB):
        if tb: a(f"s_add_u32 s32, s37, {tb}")
        frag_off(a, VA + tb, 32 if tb else 37, 1, T)
    a(f"""
    s_mov_b32 s27, 0
    s_mov_b32 s28, 0
    s_mov_b32 s29, s36
    s_add_u32 s38, s36, {R*STAGE}
    s_mov_b32 s31, {(R-1)*STAGE}
    s_waitcnt lgkmcnt(0)""")
    srd(a, 4, 44, a_off, S * SLAB)
    if btype == "panel":
        a(f"""
        s_add_u32 s32, s44, {off_alt}
        s_addc_u32 s33, s45, 0
        s_cmp_eq_u32 s53, 1
        s_cselect_b32 s8, s32, s40
        s_cselect_b32 s9, s33, s41
        s_mul_i32 s10, s51, {K}
        s_mov_b32 s11, 0x20000""")
    else:
        a("s_cmp_ge_u32 s26, 2\ns_cselect_b32 s8, s42, s40\ns_cselect_b32 s9, s43, s41")
        a(f"s_mov_b32 s10, {K*ldb}\ns_mov_b32 s11, 0x20000")

    def late_setup():
        code_srd(k, 92, name + "_epi")
        a("v_lshlrev_b32 v2, 7, v0")
        tr_lane(a, T, 1, korder, colperm)
        if btype == "panel": panel_rd(a, T, VRE0, VRO0)
        else:
            a(f"""
            v_mul_u32_u24 v{T+4}, 224, v{T+4}
            v_lshl_add_u32 v{T+4}, v{T+3}, 3, v{T+4}
            v_mul_u32_u24 v{T+5}, {UPOFF}, v{T+1}
            v_add_u32 v{VRE0}, v{T+4}, v{T+5}""")
    if btype == "panel":
        def rd(j, sub, r_): return (VRE if j % 2 == 0 else VRO), (j // 2) * 8192 + 128 * (16 * sub + rd_rows * r_)
    else:
        def rd(j, sub, r_): return VRE, 32 * j + 224 * (16 * sub + rd_rows * r_)

    BOFF = 4 - FB
    def make_ops(extra):
        ops = []
        for ta in range(S + DA + 8):
            for tb in range(MB):
                ins = [f"buffer_load_dwordx4 {rr(fk, AR+4*(MB*(ta%DA)+tb), 4)}, v{VA+tb}, s[4:7], s27 offen"]
                if tb == MB - 1: ins.append(f"s_add_u32 s27, s27, {SLAB}")
                ops.append([ta - (1 if mod else 0), ta + (0 if mod else 1) - DA, len(ops), ins, ("A", ta)])
        for st in range(NST + R + 2):
            for i in range(ND):
                ins = [f"s_add_u32 m0, s29, {dma_lds[i]}", f"buffer_load_dwordx4 v{VB+i}, s[8:11], s28 offen lds"]
                if i == ND - 1:
                    ins += ["s_add_u32 s28, s28, s39", f"s_add_u32 s29, s29, {STAGE}", "s_cmp_eq_u32 s29, s38\ns_cselect_b32 s29, s36, s29"]
                ops.append([4 * st - FB - 0.5, 4 * (st + 2 - R) - FB + i * 4 // ND, len(ops), ins, ("B", st)])
        for need, ins in extra: ops.append([need, -999, len(ops), ins, ("X",)])
        ops.sort(key=lambda o: (o[0], o[2]))
        return ops

    cnt = Cnt()
    def run(emit):
        def E(x):
            if emit: emit(x)
        extra = setup(k, emit)
        ops = make_ops(extra)
        def take(t, cap):
            got = []
            for o in ops:
                if len(got) >= cap: break
                if o[1] <= t: got.append(o)
            for o in got: ops.remove(o)
            fl = []
            for o in got:
                for x in o[3]: fl.append((x, o[4] if x.startswith("buffer_") else None))
            return fl
        def W(site, c, nm, tags):
            cnt.wait(c, (site, nm), tags)
            E(cnt.text(c, (site, nm)))
        def flush(fill, n):
            for _ in range(n):
                if not fill: return
                x, tag = fill.pop(0)
                if x == "W": W(*tag); continue
                E(x)
                if tag and tag[0] == "L": cnt.issue("lg", tag[1])
                elif tag: cnt.issue("vm", tag)
        def barrier(site, st):
            W(site, "vm", "bar", {("B", st)})
            E("s_barrier")
            E(f"s_add_u32 s31, s31, {STAGE}\ns_cmp_eq_u32 s31, {R*STAGE}\ns_cselect_b32 s31, 0, s31\nv_add_u32 v{VRE}, s31, v{VRE0}")
            if btype == "panel": E(f"v_add_u32 v{VRO}, s31, v{VRO0}")
        def reads(tt, j):
            for r_ in range(2):
                base, off = rd(j, tt % 4, r_)
                E(f"ds_read_b64_tr_b16 {rr(fk, BF+4*(NB*(tt%FB)+j)+2*r_, 2)}, v{base} offset:{off}")
                cnt.issue("lg", ("F", tt, j))
        def cread(tt):
            base = (tt if tt < 4 * PEEL + 2 else 4 * PEEL + (tt - 4 * PEEL - 2) % (4 * U) + 2) * 128
            out = []; CM = CM0 + 16 * (tt % 2)
            for n in range(4): out.append((f"ds_read_b128 {v(CM+4*n,4)}, v{VC} offset:{base+16*n}", ("L", ("C", tt))))
            return out
        def xform(tt):
            r = AR + 4 * (tt % DA); out = []; CM = CM0 + 16 * (tt % 2)
            for i in range(8):
                out.append((f"v_fma_mix_f32 v{CM+8+i}, v{r+i//2}, v{CM+i}, v{CM+8+i} " + ("op_sel:[1,0,0] " if i % 2 else "") + "op_sel_hi:[1,0,0]", None))
            for i in range(4): out.append((f"v_cvt_pk_bf16_f32 v{HF+4*(tt%2)+i}, v{CM+8+2*i}, v{CM+9+2*i}", None))
            return out
        if mod:
            if emit:
                srd(a, 20, 44, WS_MODP, KS * 6144 * 4)
                a(f"v_lshlrev_b32 v{VC}, 4, v0")
            for p in range(KS):
                for n, idx in enumerate((1, 0)):
                    E(f"s_mov_b32 s32, {p*6144*4 + idx*4096}\nbuffer_load_dwordx4 {v(ACC+8*p+4*n,4)}, v{VC}, s[20:23], s32 offen")
                    cnt.issue("vm", ("M",))
        flush(take(-FB - 1, INIT), 999)
        if mod:
            if emit:
                a(f"""
                v_lshrrev_b32 v{ACC+24}, 1, v0
                v_lshlrev_b32 v{ACC+24}, 6, v{ACC+24}
                v_and_b32 v{ACC+25}, 1, v0
                v_lshl_add_u32 v{ACC+24}, v{ACC+25}, 4, v{ACC+24}
                v_add_u32 v{ACC+24}, {STAGE*R}, v{ACC+24}
                v_lshrrev_b32 v{VC}, 5, v1
                v_lshlrev_b32 v{VC}, 6, v{VC}
                v_add_u32 v{VC}, {STAGE*R}, v{VC}""")
        if emit:
            late_setup()
        if mod:
            W("pro", "vm", "M", {("M",)})
            if emit:
                for j in range(8): a(f"v_add_f32 v{ACC+j}, v{ACC+j}, v{ACC+8+j}")
                for j in range(4): a(f"v_cvt_pk_bf16_f32 v{ACC+16+j}, v{ACC+2*j}, v{ACC+2*j+1}")
                unpack(a, ACC, ACC + 16, 4)
                for j in range(4): a(f"v_add_f32 v{ACC+j}, 1.0, v{ACC+j}")
                for j in range(2): a(f"v_cvt_pk_bf16_f32 v{ACC+16+j}, v{ACC+2*j}, v{ACC+2*j+1}")
                unpack(a, ACC, ACC + 16, 2)
                a(f"ds_write_b128 v{ACC+24}, {v(ACC,4)}\nds_write_b128 v{ACC+24}, {v(ACC+4,4)} offset:32\ns_waitcnt lgkmcnt(0)")
        if emit:
            if PEEL == 0:
                for i in range(16 * NB * MB): a(f"v_mov_b32 v{ACC+i}, 0")
        barrier("pro", 0)
        if mod: flush(cread(0) + cread(1), 99)
        for tt in range(FB):
            for j in range(NB): reads(tt, j)
        if mod:
            assert PEEL > 0
            W("pro", "vm", "A", {("A", 0)}); W("pro", "lg", "C", {("C", 0)})
            flush(xform(0), 99)
        if PEEL == 0: flush(take(-1, 999), 999)
        if emit: stamp(k, 1)
        for t in range(S):
            peeled = t < 4 * PEEL
            site = ("p", t) if peeled else (t - 4 * PEEL) % (4 * U)
            if t == 4 * PEEL:
                assert not [o for o in ops if o[1] < t], f"{name}: backlog not drained"
                E(f"s_mov_b32 s30, {(NST-PEEL)//U}\n.p2align 6\n{name}_loop:")
            if t == 4 * PEEL + 4 * U:
                E(f"s_sub_u32 s30, s30, 1\ns_cmp_lg_u32 s30, 0\ns_cbranch_scc1 {name}_loop")
                if emit: return
            sub = t % 4
            fill = take(t, CAP if peeled else 999)
            if not peeled and site == 1: fill.append((f"buffer_load_dword {'v0' if not big else 'a%d' % (na - 1)}, v2, s[92:95], 0 offen", ("C",)))
            vfill = []
            if mod:
                xf = [("W", (site, "vm", "A", {("A", t + 1)})), ("W", (site, "lg", "C", {("C", t + 1)}))]
                cr = cread(t + 2)
                if not peeled and site == 4 * U - 1: vfillx = [(f"v_add_u32 v{VC}, {4*U*128}, v{VC}", None)]
                else: vfillx = []
                vfill = xform(t + 1) + vfillx
                fill = cr + fill
            n0 = len(fill); nv0 = len(vfill); nslots = NB * MB; slot = 0
            if not mod: W(site, "vm", "A", {("A", t)})
            for j in range(NB):
                if not mod or (t == 0 and j == 0): W(site, "lg", f"F{j}", {("F", t, min(NB - 1, j + (WG - 1 - j % WG)))})
                for tb in range(MB):
                    af = rr(fk, AR + 4 * (MB * (t % DA) + tb), 4) if not mod else v(HF + 4 * (t % 2), 4); bf = rr(fk, BF + 4 * (NB * (t % FB) + j), 4); c = v(acc(j, tb), 16)
                    x, y = (bf, af) if orient[j] == "tok" else (af, bf)
                    if EXP.get("fake16"):
                        c0 = v(acc(j, tb) + 8 * (t % 2), 4); c1 = v(acc(j, tb) + 8 * (t % 2) + 4, 4)
                        E(f"v_mfma_f32_16x16x32_bf16 {c0}, {x}, {y}, {c0 if (t > 1 or PEEL == 0) else 0}")
                        if fill and not (sub == BOFF and j == 0): flush(fill, 1)
                        E(f"v_mfma_f32_16x16x32_bf16 {c1}, {y}, {x}, {c1 if (t > 1 or PEEL == 0) else 0}")
                    else:
                        E(f"v_mfma_f32_32x32x16_bf16 {c}, {x}, {y}, {c if (t or PEEL == 0) else 0}")
                    slot += 1
                    if mod:
                        if j == 0: flush(xf, 9)
                        jn, tn_ = (j + 1, t) if j + 1 < NB else (0, t + 1)
                        W(site, "lg", f"N{j}", {("F", tn_, min(NB - 1, jn + (WG - 1 - jn % WG)))})
                    if tb == MB - 1:
                        if j == 0 and sub == BOFF: barrier(site, (t + FB) // 4)
                        reads(t + FB, j)
                    if not (sub == BOFF and j == 0 and tb < MB - 1):
                        flush(fill, max(0, (n0 * slot + nslots - 1) // nslots - (n0 - len(fill))))
                    vs = nslots - EXP.get("qvs", 1)
                    flush(vfill, max(0, (nv0 * min(slot, vs) + vs - 1) // vs - (nv0 - len(vfill))))
            flush(fill, 999)
        if (NST - PEEL) == U: E(f"s_sub_u32 s30, s30, 1\ns_cmp_lg_u32 s30, 0\ns_cbranch_scc1 {name}_loop")
    run(None)
    cnt.reset()
    run(a)
    a(f"{name}_epi:")
    stamp(k, 2)
    epilogue(k)
    stamp(k, 3)
    prof_out(k, 4, KID[name], 26)
    finish(k)
    return k

def k_qkv():
    def setup(k, a):
        if not EXP.get("fuse1", 1) or QPRE >= 1024: return []
        T = k.TMP; per = (1024 - QPRE) * 48 // 1024
        if a: srd(a, 16, 40, QPRE * 6144, (1024 - QPRE) * 6144)
        first = f"""s_lshl_b32 s32, s2, 2
        s_add_u32 s32, s32, s26
        s_lshl_b32 s55, s32, 7
        v_lshlrev_b32 v{T+6}, 17, v1"""
        return [(EXP.get("qpfat", 12), [first, f"buffer_load_dword v{T+7}, v{T+6}, s[16:19], s55 offen"])]
    def epi(k):
        a = k.a; T = k.TMP
        qs = LOG2E / math.sqrt(32)
        srd(a, 12, 44, WS_Q, 4 << 20); srd(a, 16, 44, WS_KV, 8 << 20)
        a(f"""
        v_lshlrev_b32 v{T}, 4, v1
        s_lshl_b32 s32, s25, 7
        s_add_u32 s32, s32, s37
        s_lshl_b32 s33, s32, 11          ; Q offset
        s_lshl_b32 s34, s32, 12
        s_add_u32 s35, s33, {64*2048}
        s_add_u32 s39, s34, {64*4096}""")
        for j in range(6):
            c = k.acc(j, 0)
            if j < 2:
                for i in range(16): a(f"v_mul_f32 v{c+i}, {fx(qs)}, v{c+i}")
            for g in range(2):
                for i in range(4 * g, 4 * g + 4): a(f"v_cvt_pk_bf16_f32 v{c+i}, v{c+2*i}, v{c+2*i+1}")
            for g in range(2):
                if j < 2: a(f"buffer_store_dwordx4 {v(c+4*g,4)}, v{T}, s[12:15], s{33 if j==0 else 35} offen offset:{1024*g} sc1")
                else: a(f"buffer_store_dwordx4 {v(c+4*g,4)}, v{T}, s[16:19], s{34 if j%2==0 else 39} offen offset:{(2048 if j>=4 else 0)+1024*g} sc1")
    return k_gemm("qkv_kernel", 1024, 1, 6, EXP.get("qDA", 8), EXP.get("qR", 4), 2, EXP.get("qPEEL", 4), EXP.get("qCAP", 4), EXP.get("qINIT", 9),
                  "panel", WS_H1, "contig", False, ["tok"]*4 + ["feat"]*2, 16, 16, 2, 4,
                  [(40, P_WQKV), (44, P_WS)], setup, epi, 6144, alt=(WS_WQ3, 1536, 256, 768),
                  mod=EXP.get('fuse1', 1) == 1, xlds=(8192 + 256 if EXP.get('fuse1', 1) == 1 else 0))

def colvec_ops(k, need, dst, idxs, va):
    ops = []
    first = [f"s_lshl_b32 s32, s25, 8\nv_lshl_add_u32 v{va}, v1, 2, s32"]
    for n, idx in enumerate(idxs):
        for p in range(KS):
            ops.append((need, first + [f"s_mov_b32 s32, {p*6144*4 + idx*4096}", f"buffer_load_dword v{dst+2*n+p}, v{va}, s[20:23], s32 offen"]))
            first = []
    return ops

def k_out():
    def setup(k, a):
        T = k.TMP
        if a:
            srd(a, 12, 42, 0, 4 << 20); srd(a, 20, 44, WS_MODP, KS * 6144 * 4)
        ops = colvec_ops(k, 30, T + 8, [2, 4], T + 6)
        first = [f"""v_lshrrev_b32 v{T+12}, 3, v1
        v_and_b32 v{T+7}, 7, v1
        v_xor_b32 v{T+7}, v{T+7}, v{T+12}
        v_lshlrev_b32 v{T+7}, 4, v{T+7}
        v_lshl_add_u32 v{T+7}, v{T+12}, 11, v{T+7}
        s_lshl_b32 s55, s37, 16
        s_lshl_b32 s32, s25, 7
        s_add_u32 s55, s55, s32
        s_lshl_b32 s56, s26, 12
        s_add_u32 s56, s56, {k.XL}"""]
        for i in range(4):
            ops.append((31, first + [f"s_add_u32 m0, s56, {1024*i}", "s_nop 0", f"buffer_load_dwordx4 v{T+7}, s[12:15], s55 offen lds", "s_add_u32 s55, s55, 0x4000"]))
            first = []
        return ops
    def epi(k):
        a = k.a; T = k.TMP; G = T + 16; C = G + 32; X = C + 32; P = X + 32
        srd(a, 12, 44, WS_X2, 64 * SLAB); srd(a, 16, 44, WS_Y2, 64 * SLAB); srd(a, 20, 44, WS_STAT, 16 * 2048 * 8)
        a(f"""
        v_add_f32 v{T+8}, v{T+8}, v{T+9}
        v_add_f32 v{T+10}, v{T+10}, v{T+11}""")
        rbf(a, T + 8); rbf(a, T + 10)
        a(f"v_add_f32 v{T+10}, 1.0, v{T+10}")
        rbf(a, T + 10)
        a(f"""
        s_lshl_b32 s32, s26, 9
        s_add_u32 s32, s32, {k.XL + 16384}
        v_lshl_add_u32 v{T}, v1, 2, s32
        ds_write_b32 v{T}, v{T+8}
        ds_write_b32 v{T}, v{T+10} offset:256
        v_lshrrev_b32 v{T+1}, 5, v1
        v_lshl_add_u32 v{T}, v{T+1}, 5, s32
        v_and_b32 v{T+2}, 31, v1
        v_and_b32 v{T+3}, 7, v1
        v_xor_b32 v{T+3}, v{T+3}, v{T+1}
        v_lshlrev_b32 v{T+3}, 4, v{T+3}
        v_lshl_add_u32 v{T+3}, v{T+2}, 7, v{T+3}
        v_add_u32 v{T+3}, s56, v{T+3}
        s_waitcnt lgkmcnt(0)""")
        for q in range(4):
            a(f"v_xor_b32 v{T+4}, {32*q}, v{T+3}\nds_read_b128 {v(P+4*q,4)}, v{T+4}")
        for q in range(4):
            for hh in range(2): a(f"ds_read_b128 {v(G+8*q+4*hh,4)}, v{T} offset:{64*q+16*hh}")
        a("s_waitcnt lgkmcnt(8)")
        unpack(a, X, P, 16)
        for q in range(4):
            for hh in range(2): a(f"ds_read_b128 {v(C+8*q+4*hh,4)}, v{T} offset:{256+64*q+16*hh}")
        a(f"s_mul_i32 s33, s25, {4*SLAB}\ns_waitcnt lgkmcnt(8)")
        for q in range(4):
            c = k.acc(q // 2, 0) + 8 * (q % 2)
            for i in range(8): a(f"v_fmac_f32 v{X+8*q+i}, v{G+8*q+i}, v{c+i}")
            for i in range(4): a(f"v_cvt_pk_bf16_f32 v{P+4*q+i}, v{X+8*q+2*i}, v{X+8*q+2*i+1}")
            a(f"s_add_u32 s34, s33, {q*SLAB}\nbuffer_store_dwordx4 {v(P+4*q,4)}, v{k.VA}, s[12:15], s34 offen sc1")
        unpack(a, X, P, 16)
        a("s_waitcnt lgkmcnt(0)")
        for q in range(4):
            for i in range(8): a(f"v_mul_f32 v{C+8*q+i}, v{C+8*q+i}, v{X+8*q+i}")
            for i in range(4): a(f"v_cvt_pk_bf16_f32 v{G+4*q+i}, v{C+8*q+2*i}, v{C+8*q+2*i+1}")
            a(f"s_add_u32 s34, s33, {q*SLAB}\nbuffer_store_dwordx4 {v(G+4*q,4)}, v{k.VA}, s[16:19], s34 offen sc1")
        a(f"v_add_f32 v{T+8}, v{X}, v{X+1}\nv_add_f32 v{T+9}, v{X+2}, v{X+3}")
        for i in range(4, 32): a(f"v_add_f32 v{T+8+i%2}, v{T+8+i%2}, v{X+i}")
        a(f"""
        v_add_f32 v{T+8}, v{T+8}, v{T+9}
        v_mov_b32 v{T+9}, v{T+8}
        v_permlane32_swap_b32 v{T+8}, v{T+9}
        v_add_f32 v{T+8}, v{T+8}, v{T+9}
        v_mul_f32 v{T+10}, {fx(1/64)}, v{T+8}""")
        for i in range(32): a(f"v_sub_f32 v{X+i}, v{X+i}, v{T+10}")
        a(f"v_mul_f32 v{T+9}, v{X}, v{X}\nv_mul_f32 v{T+10}, v{X+1}, v{X+1}")
        for i in range(2, 32): a(f"v_fmac_f32 v{T+9+i%2}, v{X+i}, v{X+i}")
        a(f"""
        v_add_f32 v{T+9}, v{T+9}, v{T+10}
        v_mov_b32 v{T+10}, v{T+9}
        v_permlane32_swap_b32 v{T+9}, v{T+10}
        v_add_f32 v{T+9}, v{T+9}, v{T+10}
        v_lshlrev_b32 v{T+2}, 3, v{T+2}
        s_lshl_b32 s32, s25, 14
        s_lshl_b32 s33, s37, 8
        s_add_u32 s32, s32, s33
        s_mov_b32 exec_hi, 0
        buffer_store_dwordx2 {v(T+8,2)}, v{T+2}, s[20:23], s32 offen sc1
        s_mov_b32 exec_hi, -1""")
    return k_gemm("out_kernel", 1024, 1, 2, 16, 6, 4, 0, 99, 999, "panel", WS_O, "split", True, ["tok"]*2, 16, 16, 4, 2,
                  [(40, P_WO), (42, P_X), (44, P_WS)], setup, epi, 2048, alt=(WS_WO3, 512, 0, 256), ntemp=16 + 96 + 16, xlds=16384 + 2048,
                  FB=EXP.get("pFB", 2))

def k_down():
    def setup(k, a):
        T = k.TMP
        if a:
            srd(a, 12, 44, WS_X2, 64 * SLAB); srd(a, 20, 44, WS_MODP, KS * 6144 * 4)
        ops = colvec_ops(k, 30, T + 8, [5], T + 6)
        first = [f"s_mul_i32 s55, s25, {4*SLAB}"]
        for q in range(4):
            ops.append((31, first + [f"buffer_load_dwordx4 {v(T+16+4*q,4)}, v{k.VA}, s[12:15], s55 offen", f"s_add_u32 s55, s55, {SLAB}"]))
            first = []
        return ops
    def epi(k):
        a = k.a; T = k.TMP; P = T + 16; G = P + 16; X = G + 32
        srd(a, 16, 46, 0, 4 << 20)
        a(f"v_add_f32 v{T+8}, v{T+8}, v{T+9}")
        rbf(a, T + 8)
        a(f"""
        s_lshl_b32 s32, s26, 8
        s_add_u32 s32, s32, {k.XL + 16384}
        v_lshl_add_u32 v{T}, v1, 2, s32
        ds_write_b32 v{T}, v{T+8}
        v_lshrrev_b32 v{T+1}, 5, v1
        v_lshl_add_u32 v{T}, v{T+1}, 5, s32
        s_lshl_b32 s56, s26, 12
        s_add_u32 s56, s56, {k.XL}
        v_and_b32 v{T+2}, 31, v1
        v_and_b32 v{T+3}, 7, v1
        v_xor_b32 v{T+3}, v{T+3}, v{T+1}
        v_lshlrev_b32 v{T+3}, 4, v{T+3}
        v_lshl_add_u32 v{T+3}, v{T+2}, 7, v{T+3}
        v_add_u32 v{T+3}, s56, v{T+3}
        s_waitcnt lgkmcnt(0)""")
        for q in range(4):
            for hh in range(2): a(f"ds_read_b128 {v(G+8*q+4*hh,4)}, v{T} offset:{64*q+16*hh}")
        unpack(a, X, P, 16)
        a(f"""
        v_lshl_add_u32 v{T+5}, v1, 4, s56
        v_lshrrev_b32 v{T+6}, 3, v1
        v_and_b32 v{T+7}, 7, v1
        v_xor_b32 v{T+7}, v{T+7}, v{T+6}
        v_lshlrev_b32 v{T+7}, 4, v{T+7}
        v_lshl_add_u32 v{T+7}, v{T+6}, 11, v{T+7}
        s_lshl_b32 s33, s37, 16
        s_lshl_b32 s32, s25, 7
        s_add_u32 s33, s33, s32
        s_waitcnt lgkmcnt(0)""")
        for q in range(4):
            c = k.acc(q // 2, 0) + 8 * (q % 2)
            for i in range(8): a(f"v_fmac_f32 v{X+8*q+i}, v{G+8*q+i}, v{c+i}")
            for i in range(4): a(f"v_cvt_pk_bf16_f32 v{P+4*q+i}, v{X+8*q+2*i}, v{X+8*q+2*i+1}")
            a(f"v_xor_b32 v{T+4}, {32*q}, v{T+3}\nds_write_b128 v{T+4}, {v(P+4*q,4)}")
        a("s_waitcnt lgkmcnt(0)")
        for i in range(4): a(f"ds_read_b128 {v(G+4*i,4)}, v{T+5} offset:{1024*i}")
        for i in range(4):
            a(f"s_waitcnt lgkmcnt({3-i})\nbuffer_store_dwordx4 {v(G+4*i,4)}, v{T+7}, s[16:19], s33 offen sc1\ns_add_u32 s33, s33, 0x4000")
    return k_gemm("down_kernel", 3584, 1, 2, 16, 6, 4, 0, 99, 999, "panel", WS_ACT, "split", True, ["tok"]*2, 16, 16, 4, 2,
                  [(40, P_WD), (44, P_WS), (46, P_OUT)], setup, epi, 2048, alt=(WS_WD3, 512, 0, 256), ntemp=16 + 16 + 64, xlds=16384 + 1024,
                  FB=EXP.get("pFB", 2))

def k_gu():
    def setup(k, a):
        T = k.TMP; XA = k.XA
        if a:
            srd(a, 16, 44, WS_STAT, 16 * 2048 * 8); srd(a, 20, 44, WS_UV, KS * 2 * 7168 * 4)
        ops = []
        first = [f"""v_and_b32 v{T+6}, 31, v1
        v_lshlrev_b32 v{T+6}, 3, v{T+6}
        v_lshrrev_b32 v{T+7}, 5, v1
        v_lshl_add_u32 v{T+6}, v{T+7}, 17, v{T+6}
        s_lshl_b32 s55, s37, 8"""]
        for i in range(8):
            for tb in range(2):
                ops.append((40, first + [f"buffer_load_dwordx2 {a_(XA+16*tb+2*i,2)}, v{T+6}, s[16:19], s55 offen offset:{256*tb}"] + (["s_add_u32 s55, s55, 0x4000"] if tb else [])))
                first = []
        first = [f"""v_cmp_lt_u32 vcc, 111, v0
        v_mov_b32 v{T+7}, {(3584-112)*4}
        v_cndmask_b32 v{T+7}, 0, v{T+7}, vcc
        v_lshl_add_u32 v{T+7}, v0, 2, v{T+7}
        s_mul_i32 s56, s25, 448"""]
        for i in range(4):
            ops.append((41, first + [f"buffer_load_dword a{XA+32+i}, v{T+7}, s[20:23], s56 offen", f"s_add_u32 s56, s56, {7168*4}"]))
            first = []
        return ops
    def epi(k):
        a = k.a; T = k.TMP; XA = k.XA
        c0 = -2 * math.sqrt(2 / math.pi) * LOG2E; c1 = c0 * 0.044715
        srd(a, 12, 44, WS_ACT, 224 * SLAB)
        for i in range(4): a(f"v_accvgpr_read_b32 v{10+i}, a{XA+32+i}")
        a(f"""
        v_add_f32 v10, v10, v12
        v_add_f32 v11, v11, v13
        v_lshlrev_b32 v2, 2, v0
        ds_write_b32 v2, v10 offset:{k.XL % 65536}
        ds_write_b32 v2, v11 offset:{k.XL % 65536 + 1024}""".replace("v_lshlrev_b32 v2, 2, v0", f"v_lshlrev_b32 v2, 2, v0\nv_add_u32 v2, {k.XL // 65536 * 65536}, v2"))
        for tb, D in ((0, 4), (1, 30)):
            for i in range(16): a(f"v_accvgpr_read_b32 v{10+i}, a{XA+16*tb+i}")
            a("v_add_f32 v26, v10, v12\nv_add_f32 v27, v11, v13")
            for i in range(2, 8): a(f"v_add_f32 v26, v26, v{10+2*i}\nv_add_f32 v27, v27, v{11+2*i}")
            a(f"""
            v_mov_b32 v28, v26
            v_permlane32_swap_b32 v26, v28
            v_add_f32 v26, v26, v28
            v_mul_f32 v28, {fx(1/16)}, v26""")
            for i in range(8): a(f"v_sub_f32 v{10+2*i}, v{10+2*i}, v28")
            a("v_mul_f32 v29, v10, v10")
            for i in range(1, 8): a(f"v_fmac_f32 v29, v{10+2*i}, v{10+2*i}")
            a(f"""
            v_fmac_f32 v27, {fx(1/64)}, v29
            v_mov_b32 v28, v27
            v_permlane32_swap_b32 v27, v28
            v_add_f32 v27, v27, v28
            v_mov_b32 v28, {fx(1e-5)}
            v_fmac_f32 v28, {fx(1/1024)}, v27
            v_rsq_f32 v{D}, v28
            v_mul_f32 v26, {fx(-1/1024)}, v26
            v_mul_f32 v{D+1}, v26, v{D}""")
        a(f"""
        v_lshrrev_b32 v9, 5, v1
        v_lshlrev_b32 v9, 4, v9
        v_add_u32 v9, {k.XL}, v9
        s_mul_i32 s32, s25, {7*SLAB}
        s_mov_b32 s34, {fx(c1)}
        s_mov_b32 s35, {fx(c1)}
        v_mov_b32 v26, {fx(c0)}
        v_mov_b32 v27, {fx(c0)}
        v_mov_b32 v28, 1.0
        v_mov_b32 v29, 1.0
        s_waitcnt lgkmcnt(0)
        s_barrier""")
        def rdq(j, q, B):
            o = 64 * j + 32 * q
            for n, oo in enumerate((o, o + 1024, o + 448, o + 448 + 1024)): a(f"ds_read_b128 {v(B+4*n,4)}, v9 offset:{oo}")
        pk = lambda r: v(r, 2)
        def fold(j, q, B):
            for tb, D in ((0, 4), (1, 30)):
                c = k.acc(j, tb) + 4 * q
                for i in (0, 2):
                    a(f"v_pk_fma_f32 {pk(c+i)}, {pk(c+i)}, {pk(D)}, {pk(B+4+i)} op_sel_hi:[1,0,1]")
                    a(f"v_pk_fma_f32 {pk(c+8+i)}, {pk(c+8+i)}, {pk(D)}, {pk(B+12+i)} op_sel_hi:[1,0,1]")
                for i in (0, 2):
                    a(f"v_pk_fma_f32 {pk(c+i)}, {pk(B+i)}, {pk(D)}, {pk(c+i)} op_sel:[0,1,0]")
                    a(f"v_pk_fma_f32 {pk(c+8+i)}, {pk(B+8+i)}, {pk(D)}, {pk(c+8+i)} op_sel:[0,1,0]")
        for j in range(7):
            if j == 0:
                rdq(0, 0, 10); a("s_waitcnt lgkmcnt(0)"); fold(0, 0, 10)
                rdq(0, 1, 10); a("s_waitcnt lgkmcnt(0)"); fold(0, 1, 10)
            else:
                a("s_waitcnt lgkmcnt(0)"); fold(j, 0, 10); fold(j, 1, k.acc(j - 1, 0))
            if j < 6: rdq(j + 1, 0, 10)
            for tb in range(2):
                c = k.acc(j, tb)
                for i in range(0, 8, 2): a(f"v_pk_mul_f32 {pk(c+8+i)}, {pk(c+8+i)}, {pk(c+i)}")
                for i in (0, 4):
                    a(f"v_pk_mul_f32 v[0:1], {pk(c+i)}, {pk(c+i)}\nv_pk_mul_f32 v[2:3], {pk(c+i+2)}, {pk(c+i+2)}")
                    a(f"v_pk_fma_f32 v[0:1], v[0:1], s[34:35], v[26:27]\nv_pk_fma_f32 v[2:3], v[2:3], s[34:35], v[26:27]")
                    a(f"v_pk_mul_f32 {pk(c+i)}, v[0:1], {pk(c+i)}\nv_pk_mul_f32 {pk(c+i+2)}, v[2:3], {pk(c+i+2)}")
                for i in range(8): a(f"v_exp_f32 v{c+i}, v{c+i}")
                for i in range(0, 8, 2): a(f"v_pk_add_f32 {pk(c+i)}, {pk(c+i)}, v[28:29]")
                for i in range(8): a(f"v_rcp_f32 v{c+i}, v{c+i}")
                for i in range(0, 8, 2): a(f"v_pk_mul_f32 {pk(c+i)}, {pk(c+i)}, {pk(c+8+i)}")
                for i in range(4): a(f"v_cvt_pk_bf16_f32 v{c+8+i}, v{c+2*i}, v{c+2*i+1}")
                a(f"buffer_store_dwordx4 {v(c+8,4)}, v{k.VA+tb}, s[12:15], s32 offen sc1")
                if tb == 0 and j < 6: rdq(j + 1, 1, c)
            a(f"s_add_u32 s32, s32, {SLAB}")
    return k_gemm("gu_kernel", 1024, 2, 7, EXP.get("gDA", 4), EXP.get("gR", 4), 2, EXP.get("gPEEL", 4), EXP.get("gCAP", 6), EXP.get("gINIT", 11),
                  "gu", WS_Y2, "contig", False, ["tok"]*7, 8, 32, 2, 4,
                  [(40, P_WG), (42, P_WU), (44, P_WS)], setup, epi, 7168, big=True, xlds=2048, nxa=37)

NSIDE = 288
def nside(): return 0 if EXP.get('noside') else (224 if EXP.get('gpre', 0) else 288)
def attn_side(k, nw):
    a = k.a
    a("attn_side:")
    if nw == 4 and EXP.get("sprio", 1): a("s_setprio 3")
    load_ptrs(a, [(40, P_C), (42, P_WMOD), (44, P_WS), (46, P_WG), (48, P_WU), (62, P_WO), (64, P_WD)])
    wave_lane(a)
    a(f"""
    s_sub_u32 s27, s2, 256
    s_lshl_b32 s32, s27, {(nw*64).bit_length()-1}
    v_add_u32 v3, s32, v0
    s_waitcnt lgkmcnt(0)""")
    def mid():
        if EXP.get("exclr"):
            srd(a, 20, 44, EXP["exclr"], 4 << 20)
            a("v_lshlrev_b32 v108, 4, v3\nv_mov_b32 v112, -1\nv_mov_b32 v113, -1\nv_mov_b32 v114, -1\nv_mov_b32 v115, -1")
            n = nside() * nw * 64 * 16
            for c in range(0, 4 << 20, n): a(f"s_mov_b32 s24, {c}\nbuffer_store_dwordx4 v[112:115], v108, s[20:23], s24 offen sc1")
        strip_copy_issue(a, 3, 62, 1024, 2048, 1, 0, 108)
        st = 0 if EXP.get('gpre', 0) else 16384
        if EXP.get("wd4"):
            strip_copy_issue(a, 3, 64, 3584, 2048, 1, st, 116, col=256, dsh=9)
            strip_copy_issue(a, 3, 64, 3584, 2048, 1, st, 124, col=384, dsh=9, doff=256)
        else: strip_copy_issue(a, 3, 64, 3584, 2048, 1, st, 116)
        a("s_waitcnt vmcnt(0)")
        strip_copy_store(a, 44, WS_WO3, 1024 * 512, 108)
        if EXP.get("wd4"):
            strip_copy_store(a, 44, EXP["wd4"], 3584 * 1024, 116); strip_copy_store(a, 44, EXP["wd4"], 3584 * 1024, 124)
        else: strip_copy_store(a, 44, WS_WD3, 3584 * 512, 116)
    a(f"""
    s_and_b32 s32, s27, 1
    s_lshr_b32 s33, s27, 1
    s_lshl_b32 s52, s32, 9
    s_cmp_ge_u32 s33, 112
    s_cbranch_scc1 attn_side_g
    s_mov_b32 s51, 7168
    s_mul_i32 s53, s32, {2*7168*4}
    s_lshl_b32 s34, s33, 8
    s_add_u32 s53, s53, s34
    s_mov_b32 s54, {7168*4}
    s_cmp_ge_u32 s33, 56
    s_cselect_b32 s46, s48, s46
    s_cselect_b32 s47, s49, s47
    s_cselect_b32 s34, 56, 0
    s_sub_u32 s33, s33, s34
    s_mul_i32 s50, s52, s51
    s_lshl_b32 s34, s33, 7
    s_add_u32 s50, s50, s34""")
    srd(a, 8, 46, 0, 1024 * 7168); srd(a, 12, 44, WS_MODP, KS * 6144 * 4); srd(a, 16, 44, WS_UV, KS * 2 * 7168 * 4)
    skinny(k, "u", "pair", "", EXP.get("pace", 3 if nw == 4 else 1), nw=nw, mid=mid)
    if EXP.get("gpre", 0):
        a("attn_side_g:")
        return
    a(f"""
attn_side_g:
    s_sub_u32 s33, s33, {112-32}
    s_cmp_ge_u32 s33, 48
    s_cselect_b32 s34, 32, 0
    s_add_u32 s33, s33, s34
    s_mov_b32 s51, 12288
    s_mul_i32 s50, s52, s51
    s_lshl_b32 s34, s33, 7
    s_add_u32 s50, s50, s34
    s_mul_i32 s53, s32, {6144*4}
    s_lshl_b32 s34, s33, 8
    s_add_u32 s53, s53, s34
    s_mov_b32 s54, 0""")
    srd(a, 8, 42, 0, 1024 * 12288); srd(a, 12, 40, 0, 2048); srd(a, 16, 44, WS_MODP, KS * 6144 * 4)
    skinny(k, "g", "silu", " nt", EXP.get("pace", 3 if nw == 4 else 1), nw=nw, mid=mid)


def k_attn():
    R = 4; ST = 16384
    k = Kernel("attn_kernel", 256 + nside(), 512, SK_LDS, 128); a = k.a
    Q0, Q1, ONES, NEG, SA, SB, O, L, P0, P1, K0, K1, V0, V1, T = 4, 8, 12, 16, 32, 48, 64, 80, 84, 88, 92, 96, 100, 104, 108
    guard(k)
    a("s_cmp_ge_u32 s2, 256\ns_cbranch_scc1 attn_side")
    stamp(k, 0)
    load_ptrs(a, [(44, P_WS), (46, P_WO), (48, P_WD), (52, P_X)])
    if EXP.get("aprio", 1): a("s_setprio 2")
    a(f"""
    s_and_b32 s32, s2, 7
    s_lshr_b32 s33, s2, 3
    s_and_b32 s34, s32, 3
    s_lshl_b32 s34, s34, 3
    s_and_b32 s35, s33, 7
    s_add_u32 s24, s34, s35            ; head
    s_lshr_b32 s34, s32, 2
    s_lshl_b32 s34, s34, 2
    s_lshr_b32 s35, s33, 3
    s_add_u32 s25, s34, s35
    v_lshrrev_b32 v3, 6, v0
    v_and_b32 v1, 63, v0
    v_readfirstlane_b32 s26, v3
    v_lshlrev_b32 v2, 4, v1
    s_lshl_b32 s27, s25, 3
    s_add_u32 s27, s27, s26
    s_lshl_b32 s28, s24, 18
    s_lshl_b32 s29, s26, 11            ; wave * 2048
    s_lshl_b32 s32, s24, 6
    s_add_u32 s32, s32, s27
    s_lshl_b32 s32, s32, 11            ; Q offset
    s_waitcnt lgkmcnt(0)""")
    srd(a, 4, 44, WS_Q, 4 << 20)
    a(f"s_add_u32 s8, s44, s28\ns_addc_u32 s9, s45, 0\ns_add_u32 s8, s8, {WS_KV}\ns_addc_u32 s9, s9, 0\ns_mov_b32 s10, 0x40000\ns_mov_b32 s11, 0x20000")
    a("s_mov_b32 s30, s29")
    def dma(slot):
        return [f"s_add_u32 m0, s29, {slot*ST}", "buffer_load_dwordx4 v2, s[8:11], s30 offen lds",
                "buffer_load_dwordx4 v2, s[8:11], s30 offen offset:1024 lds", f"s_add_u32 s30, s30, {ST}"]
    a(f"buffer_load_dwordx4 {v(Q0,4)}, v2, s[4:7], s32 offen\nbuffer_load_dwordx4 {v(Q1,4)}, v2, s[4:7], s32 offen offset:1024")
    a(f"buffer_load_dwordx4 {v(K0,4)}, v2, s[8:11], 0 offen\nbuffer_load_dwordx4 {v(K1,4)}, v2, s[8:11], 0 offen offset:1024")
    for st in range(R - 1):
        for x in dma(st): a(x)
    srd(a, 12, 44, WS_O, 64 * SLAB)
    frag_off(a, 3, 27, 1, T)
    code_srd(k, 92, "attn_epi")
    a(f"v_lshlrev_b32 v{T+4}, 7, v0")
    if EXP.get("apf", 1):
        srd(a, 16, 46, 0, 1024 * 2048); srd(a, 20, 48, 0, 3584 * 2048)
        a(f"""
        s_lshl_b32 s32, s2, 3
        s_add_u32 s32, s32, s26
        s_mul_i32 s50, s32, {7*128}
        s_lshl_b32 s51, s32, 8
        v_lshlrev_b32 v{T+6}, 7, v1
        v_mov_b32 v{T+8}, 0x80000000
        v_cmp_gt_u32 vcc, 2, v1
        v_cndmask_b32 v{T+7}, v{T+8}, v{T+6}, vcc
        v_cmp_gt_u32 vcc, 4, v1
        v_cndmask_b32 v{T+9}, v{T+8}, v{T+6}, vcc
        s_lshl_b32 s54, s32, 9
        v_cmp_gt_u32 vcc, 7, v1
        v_cndmask_b32 v{T+6}, v{T+8}, v{T+6}, vcc""")
        srd(a, 56, 52, 0, 2048 * 2048)
    a(f"""
    v_lshrrev_b32 v{T}, 4, v1
    v_lshrrev_b32 v{T+1}, 2, v1
    v_xor_b32 v{T}, v{T}, v{T+1}
    v_and_b32 v{T}, 1, v{T}
    v_cmp_eq_u32 vcc, 0, v{T}
    v_mov_b32 v{T+1}, 0x3f803f80
    v_cndmask_b32 v{ONES}, 0, v{T+1}, vcc""")
    for i in range(1, 4): a(f"v_mov_b32 v{ONES+i}, v{ONES}")
    for i in range(16): a(f"v_mov_b32 v{O+i}, 0")
    for i in range(4): a(f"v_mov_b32 v{L+i}, 0\nv_mov_b32 v{P1+i}, 0\nv_mov_b32 v{V1+i}, 0")
    a(f"""
    s_waitcnt vmcnt({2*(R-1)})
    v_mfma_f32_32x32x16_bf16 {v(SA,16)}, {v(K0,4)}, {v(Q0,4)}, 0
    v_mfma_f32_32x32x16_bf16 {v(SA,16)}, {v(K1,4)}, {v(Q1,4)}, {v(SA,16)}""")
    def rowmax(S, m):
        for i in range(0, 16, 2): a(f"v_max3_f32 v{m}, v{S+i}, v{S+i+1}, v{m}")
    def negbcast(m):
        a(f"v_mov_b32 v{m+1}, v{m}\nv_permlane32_swap_b32 v{m}, v{m+1}\nv_max_f32 v{m}, v{m}, v{m+1}")
        for i in range(16): a(f"v_sub_f32 v{NEG+i}, 0, v{m}")
    a(f"v_mov_b32 v{T}, v{SA}")
    rowmax(SA, T); negbcast(T)
    for i in range(16): a(f"v_sub_f32 v{SA+i}, v{SA+i}, v{T}")
    a(f"""
    s_waitcnt vmcnt({2*(R-2)})
    s_barrier
    ds_read_b128 {v(K0,4)}, v2 offset:4096
    ds_read_b128 {v(K1,4)}, v2 offset:5120
    ds_read_b128 {v(V0,4)}, v2 offset:2048""")
    cnt = Cnt()
    def it(j, E, site):
        def W(c, nm, tags):
            cnt.wait(c, (site, nm), tags)
            if E: E(cnt.text(c, (site, nm)))
        def X(x):
            if E: E(x)
        def RD(reg, blk, piece):
            X(f"ds_read_b128 {v(reg,4)}, v2 offset:{(blk % (4*R))*4096 + piece*1024}")
            cnt.issue("lg", (piece, blk))
        S, Sn = (SA, SB) if j % 2 == 0 else (SB, SA)
        e = lambda i: X(f"v_exp_f32 v{S+i}, v{S+i}")
        c = lambda i: X(f"v_cvt_pk_bf16_f32 v{P0+i}, v{S+2*i}, v{S+2*i+1}")
        W("lg", "k", {(0, j + 1), (3, j - 1), (1, j + 1)})
        X(f"v_mfma_f32_32x32x16_bf16 {v(Sn,16)}, {v(K0,4)}, {v(Q0,4)}, {v(NEG,16)}")
        e(0); e(1); e(2)
        X(f"v_mfma_f32_32x32x16_bf16 {v(O,16)}, {v(V1,4)}, {v(P1,4)}, {v(O,16)}")
        RD(V1, j, 3)
        e(3); c(0); e(4); c(1)
        X(f"v_mfma_f32_32x32x16_bf16 {v(Sn,16)}, {v(K1,4)}, {v(Q1,4)}, {v(Sn,16)}")
        if j % 4 == 2:
            W("vm", "bar", {("B", j // 4 + 1)})
            X("s_barrier")
        RD(K0, j + 2, 0); RD(K1, j + 2, 1)
        e(5); e(6); e(7)
        X(f"v_mfma_f32_16x16x32_bf16 {v(L,4)}, {v(ONES,4)}, {v(P1,4)}, {v(L,4)}")
        if j % 4 == 2:
            d = dma((j // 4 - 1) % R)
            X(d[0])
        c(2); c(3); e(8); e(9)
        W("lg", "v0", {(2, j)})
        X(f"v_mfma_f32_32x32x16_bf16 {v(O,16)}, {v(V0,4)}, {v(P0,4)}, {v(O,16)}")
        RD(V0, j + 1, 2)
        if j % 4 == 2:
            X(d[1]); X(d[2]); X(d[3])
            cnt.issue("vm", ("B", j // 4 - 1 + R)); cnt.issue("vm", ("B", j // 4 - 1 + R))
        if j % 16 == 3:
            X(f"buffer_load_dword v{T+5}, v{T+4}, s[92:95], 0 offen"); cnt.issue("vm", ("C",))
        if EXP.get("apf", 1) and j % 16 == 7:
            X(f"buffer_load_dword v{T+5}, v{T+6}, s[20:23], s50 offen\ns_add_u32 s50, s50, {2048*7*128}"); cnt.issue("vm", ("C",))
        if EXP.get("apf", 1) and j % 16 == 15:
            X(f"buffer_load_dword v{T+5}, v{T+9}, s[56:59], s54 offen\ns_add_u32 s54, s54, {2048*512}"); cnt.issue("vm", ("C",))
        if EXP.get("apf", 1) and j % 16 == 11:
            X(f"buffer_load_dword v{T+5}, v{T+7}, s[16:19], s51 offen\ns_add_u32 s51, s51, {2048*256}"); cnt.issue("vm", ("C",))
        e(10); e(11); c(4); e(12)
        X(f"v_mfma_f32_16x16x32_bf16 {v(L,4)}, {v(ONES,4)}, {v(P0,4)}, {v(L,4)}")
        c(5); e(13); e(14); e(15); c(6); c(7)
    def preload():
        cnt.reset()
        for st in range(R - 1):
            cnt.issue("vm", ("B", st)); cnt.issue("vm", ("B", st))
        for tg in [(0, 1), (1, 1), (2, 0)]: cnt.issue("lg", tg)
    preload()
    for j in range(64): it(j, None, j % 16)
    preload()
    stamp(k, 1)
    a("s_mov_b32 s31, 4\n.p2align 6\nattn_loop:")
    for j in range(16): it(j, a, j)
    a("s_sub_u32 s31, s31, 1\ns_cmp_lg_u32 s31, 0\ns_cbranch_scc1 attn_loop\nattn_epi:")
    stamp(k, 2)
    a(f"""
    s_waitcnt lgkmcnt(0)
    v_mfma_f32_32x32x16_bf16 {v(O,16)}, {v(V1,4)}, {v(P1,4)}, {v(O,16)}
    v_mfma_f32_16x16x32_bf16 {v(L,4)}, {v(ONES,4)}, {v(P1,4)}, {v(L,4)}
    v_mov_b32 v{T}, 0""")
    for i in range(16): a(f"v_fmac_f32 v{T}, 0, v{O+i}")
    a(f"""
    v_add_f32 v{T}, v{T}, v{L}
    v_cmp_ngt_f32 vcc, {fx(2.0**40)}, v{T}
    s_cbranch_vccnz attn_slow
attn_fin:
    v_rcp_f32 v{T}, v{L}
    s_mul_i32 s32, s24, {2*SLAB}
    s_add_u32 s33, s32, {SLAB}""")
    for i in range(16): a(f"v_mul_f32 v{O+i}, v{O+i}, v{T}")
    for i in range(8): a(f"v_cvt_pk_bf16_f32 v{O+i}, v{O+2*i}, v{O+2*i+1}")
    a(f"buffer_store_dwordx4 {v(O,4)}, v3, s[12:15], s32 offen sc1\nbuffer_store_dwordx4 {v(O+4,4)}, v3, s[12:15], s33 offen sc1")
    stamp(k, 3)
    prof_out(k, 4, 4, 26)
    a("s_endpgm")
    a(f"""
attn_slow:
    v_mov_b32 v{T}, 0xff800000
    s_mov_b32 s30, 0
attn_slow1:
    buffer_load_dwordx4 {v(K0,4)}, v2, s[8:11], s30 offen
    buffer_load_dwordx4 {v(K1,4)}, v2, s[8:11], s30 offen offset:1024
    s_waitcnt vmcnt(0)
    v_mfma_f32_32x32x16_bf16 {v(SA,16)}, {v(K0,4)}, {v(Q0,4)}, 0
    v_mfma_f32_32x32x16_bf16 {v(SA,16)}, {v(K1,4)}, {v(Q1,4)}, {v(SA,16)}""")
    rowmax(SA, T)
    a("s_add_u32 s30, s30, 4096\ns_cmp_lt_u32 s30, 0x40000\ns_cbranch_scc1 attn_slow1")
    negbcast(T)
    for i in range(16): a(f"v_mov_b32 v{O+i}, 0")
    for i in range(4): a(f"v_mov_b32 v{L+i}, 0")
    a(f"""
    s_mov_b32 s30, 0
attn_slow2:
    buffer_load_dwordx4 {v(K0,4)}, v2, s[8:11], s30 offen
    buffer_load_dwordx4 {v(K1,4)}, v2, s[8:11], s30 offen offset:1024
    buffer_load_dwordx4 {v(V0,4)}, v2, s[8:11], s30 offen offset:2048
    buffer_load_dwordx4 {v(V1,4)}, v2, s[8:11], s30 offen offset:3072
    s_waitcnt vmcnt(0)
    v_mfma_f32_32x32x16_bf16 {v(SA,16)}, {v(K0,4)}, {v(Q0,4)}, {v(NEG,16)}
    v_mfma_f32_32x32x16_bf16 {v(SA,16)}, {v(K1,4)}, {v(Q1,4)}, {v(SA,16)}""")
    for i in range(16): a(f"v_exp_f32 v{SA+i}, v{SA+i}")
    for i in range(8): a(f"v_cvt_pk_bf16_f32 v{P0+i}, v{SA+2*i}, v{SA+2*i+1}")
    a(f"""
    v_mfma_f32_32x32x16_bf16 {v(O,16)}, {v(V0,4)}, {v(P0,4)}, {v(O,16)}
    v_mfma_f32_32x32x16_bf16 {v(O,16)}, {v(V1,4)}, {v(P1,4)}, {v(O,16)}
    v_mfma_f32_16x16x32_bf16 {v(L,4)}, {v(ONES,4)}, {v(P0,4)}, {v(L,4)}
    v_mfma_f32_16x16x32_bf16 {v(L,4)}, {v(ONES,4)}, {v(P1,4)}, {v(L,4)}
    s_add_u32 s30, s30, 4096
    s_cmp_lt_u32 s30, 0x40000
    s_cbranch_scc1 attn_slow2
    s_branch attn_fin""")
    attn_side(k, 8)
    finish(k)
    return k


def k_attn4():
    R = 4; ST = 16384; SM = EXP.get("smf", 1)
    k = Kernel("attn_kernel", 256 + nside(), 256, SK_LDS, 192); a = k.a
    Q, ONES, NEG, S, O, L, P, K0, K1, V0, V1, T = 8, 24, 32, 64, 96, 128, 136, 152, 156, 160, 164, 176
    IDX = 28
    guard(k)
    a("s_cmp_ge_u32 s2, 256\ns_cbranch_scc1 attn_side")
    stamp(k, 0)
    load_ptrs(a, [(44, P_WS), (46, P_WO), (48, P_WD), (52, P_X)])
    a(f"""
    s_and_b32 s32, s2, 7
    s_lshr_b32 s33, s2, 3
    s_and_b32 s34, s32, 3
    s_lshl_b32 s34, s34, 3
    s_and_b32 s35, s33, 7
    s_add_u32 s24, s34, s35            ; head
    s_lshr_b32 s34, s32, 2
    s_lshl_b32 s34, s34, 2
    s_lshr_b32 s35, s33, 3
    s_add_u32 s25, s34, s35
    v_lshrrev_b32 v3, 6, v0
    v_and_b32 v1, 63, v0
    v_readfirstlane_b32 s26, v3
    v_lshlrev_b32 v2, 4, v1
    s_lshl_b32 s27, s25, 2
    s_add_u32 s27, s27, s26
    s_lshl_b32 s27, s27, 1
    s_lshl_b32 s28, s24, 18
    s_lshl_b32 s29, s26, 12            ; wave * 4096
    s_lshl_b32 s32, s24, 6
    s_add_u32 s32, s32, s27
    s_lshl_b32 s32, s32, 11            ; Q offset
    s_waitcnt lgkmcnt(0)""")
    srd(a, 4, 44, WS_Q, 4 << 20)
    a(f"s_add_u32 s8, s44, s28\ns_addc_u32 s9, s45, 0\ns_add_u32 s8, s8, {WS_KV}\ns_addc_u32 s9, s9, 0\ns_mov_b32 s10, 0x40000\ns_mov_b32 s11, 0x20000")
    a("s_mov_b32 s30, s29")
    def dma(slot):
        return [f"s_add_u32 m0, s29, {slot*ST}"] + [f"buffer_load_dwordx4 v2, s[8:11], s30 offen offset:{1024*i} lds" for i in range(4)] + [f"s_add_u32 s30, s30, {ST}"]
    a(f"buffer_load_dwordx4 {v(K0,4)}, v2, s[8:11], 0 offen\nbuffer_load_dwordx4 {v(K1,4)}, v2, s[8:11], 0 offen offset:1024")
    for i in range(4): a(f"buffer_load_dwordx4 {v(Q+4*i,4)}, v2, s[4:7], s32 offen offset:{1024*i}")
    for x in dma(0): a(x)
    srd(a, 12, 44, WS_O, 64 * SLAB)
    frag_off(a, 3, 27, 1, T)
    a("s_add_u32 s33, s27, 1")
    frag_off(a, 4, 33, 1, T)
    code_srd(k, 92, "attn_epi", None, 256)
    cpf_addr(a, T + 4)
    srd(a, 16, 46, 0, 1024 * 2048); srd(a, 20, 48, 0, 3584 * 2048); srd(a, 56, 52, 0, 2048 * 2048)
    a(f"""
    s_lshl_b32 s32, s2, 2
    s_add_u32 s32, s32, s26
    s_mul_i32 s50, s32, {14*128}
    s_lshl_b32 s51, s32, 9
    s_lshl_b32 s54, s32, 10
    v_lshlrev_b32 v{T+6}, 7, v1
    v_mov_b32 v{T+8}, 0x80000000
    v_cmp_gt_u32 vcc, 4, v1
    v_cndmask_b32 v{T+7}, v{T+8}, v{T+6}, vcc
    v_cmp_gt_u32 vcc, 8, v1
    v_cndmask_b32 v{T+9}, v{T+8}, v{T+6}, vcc
    v_cmp_gt_u32 vcc, 14, v1
    v_cndmask_b32 v{T+6}, v{T+8}, v{T+6}, vcc""")
    if SM:
        a(f"""
        v_bfe_u32 v{T}, v1, 2, 1
        v_cmp_eq_u32 vcc, 0, v{T}
        v_mov_b32 v{T+1}, 0x3f803f80
        v_cndmask_b32 v{ONES}, 0, v{T+1}, vcc
        v_mov_b32 v{ONES+1}, v{ONES}
        v_xor_b32 v{ONES+2}, v{T+1}, v{ONES}
        v_mov_b32 v{ONES+3}, v{ONES+2}
        v_and_b32 v{T}, 1, v1
        v_mul_u32_u24 v{T}, 0xaaaa, v{T}
        v_add_u32 v{IDX}, 0x4444, v{T}""")
    else:
        a(f"""
        v_lshrrev_b32 v{T}, 4, v1
        v_lshrrev_b32 v{T+1}, 2, v1
        v_xor_b32 v{T}, v{T}, v{T+1}
        v_and_b32 v{T}, 1, v{T}
        v_cmp_eq_u32 vcc, 0, v{T}
        v_mov_b32 v{T+1}, 0x3f803f80
        v_cndmask_b32 v{ONES}, 0, v{T+1}, vcc""")
        for i in range(1, 4): a(f"v_mov_b32 v{ONES+i}, v{ONES}")
    for i in range(32): a(f"v_mov_b32 v{O+i}, 0")
    for i in range(8): a(f"v_mov_b32 v{L+i}, 0\nv_mov_b32 v{P+8+i}, 0\nv_mov_b32 v{V0+8+i}, 0")
    def lsum(w, p):
        if SM: return [f"v_smfmac_f32_16x16x64_bf16 {v(L+4*w,4)}, {v(ONES,4)}, {v(p,8)}, v{IDX}"]
        return [f"v_mfma_f32_16x16x32_bf16 {v(L+4*w,4)}, {v(ONES,4)}, {v(p+4*g,4)}, {v(L+4*w,4)}" for g in range(2)]
    a("s_waitcnt vmcnt(4)")
    for w in range(2):
        a(f"v_mfma_f32_32x32x16_bf16 {v(S+16*w,16)}, {v(K0,4)}, {v(Q+8*w,4)}, 0")
        a(f"v_mfma_f32_32x32x16_bf16 {v(S+16*w,16)}, {v(K1,4)}, {v(Q+8*w+4,4)}, {v(S+16*w,16)}")
    for st in range(1, R - 1):
        for x in dma(st): a(x)
    def rowmax(Sx, m):
        for i in range(0, 16, 2): a(f"v_max3_f32 v{m}, v{Sx+i}, v{Sx+i+1}, v{m}")
    def negbcast(m, w):
        a(f"v_mov_b32 v{m+1}, v{m}\nv_permlane32_swap_b32 v{m}, v{m+1}\nv_max_f32 v{m}, v{m}, v{m+1}")
        for i in range(16): a(f"v_sub_f32 v{NEG+16*w+i}, 0, v{m}")
    for w in range(2):
        a(f"v_mov_b32 v{T}, v{S+16*w}")
        rowmax(S + 16 * w, T); negbcast(T, w)
        if w == 0:
            for i in range(16): a(f"v_sub_f32 v{S+i}, v{S+i}, v{T}")
    a(f"""
    s_sub_u32 s30, s30, {ST}
    s_waitcnt vmcnt({4*(R-2)})
    s_barrier
    ds_read_b128 {v(V0,4)}, v2 offset:2048
    ds_read_b128 {v(V1,4)}, v2 offset:3072""")
    cnt = Cnt()
    def ph(n, E, site):
        def W(c, nm, tags):
            cnt.wait(c, (site, nm), tags)
            if E: E(cnt.text(c, (site, nm)))
        def X(x):
            if E: E(x)
        def RD(reg, blk, piece):
            X(f"ds_read_b128 {v(reg,4)}, v2 offset:{(blk % (4*R))*4096 + piece*1024}")
            cnt.issue("lg", (piece, blk))
        def VM(x, tag):
            X(x); cnt.issue("vm", tag)
        j = n >> 1; w = n & 1; o = 1 - w
        Sc, Sn, Pc, Pp = S + 16 * w, S + 16 * o, P + 8 * w, P + 8 * o
        vb = (n - 1) >> 1
        Vr = V0 + 8 * (vb % 2); Vw = V0 + 8 * ((j + 1) % 2)
        e = lambda *l: [X(f"v_exp_f32 v{Sc+i}, v{Sc+i}") for i in l]
        c = lambda *l: [X(f"v_cvt_pk_bf16_f32 v{Pc+i}, v{Sc+2*i}, v{Sc+2*i+1}") for i in l]
        d = dma((n // 8 - 1) % R) if n % 8 in (5, 6, 7) else None
        dd = n % 8 == 7
        tg = ("B", n // 8 - 1 + R)
        X(f"v_mfma_f32_32x32x16_bf16 {v(Sn,16)}, {v(K0,4)}, {v(Q+8*o,4)}, {v(NEG+16*o,16)}")
        if w == 0: RD(K0, j + 1, 0)
        else: W("lg", "k1", {(1, j + 1)})
        e(0, 1, 2, 3); c(0)
        X(f"v_mfma_f32_32x32x16_bf16 {v(Sn,16)}, {v(K1,4)}, {v(Q+8*o+4,4)}, {v(Sn,16)}")
        if w == 0: RD(K1, j + 1, 1)
        if dd: VM(d[1], tg); VM(d[2], tg)
        if n % 8 == 1: X(f"s_add_u32 s30, s30, {ST}")
        e(4, 5, 6); c(1, 2)
        X(f"v_mfma_f32_32x32x16_bf16 {v(O+16*o,16)}, {v(Vr,4)}, {v(Pp,4)}, {v(O+16*o,16)}")
        if n % 8 == 5: W("vm", "bar", {("B", n // 8 + 1)})
        if n % 8 == 6: X(d[0])
        if dd: VM(d[3], tg); VM(d[4], tg)
        e(7, 8, 9); c(3, 4)
        X(f"v_mfma_f32_32x32x16_bf16 {v(O+16*o,16)}, {v(Vr+4,4)}, {v(Pp+4,4)}, {v(O+16*o,16)}")
        if w == 0: W("lg", "k0", {(0, j + 1), (2, j), (3, j)})
        if n % 8 == 5: X("s_barrier")
        if n % 32 == 23: VM(f"buffer_load_dword v{T+5}, v{T+4}, s[92:95], 0 offen", ("C",))
        if n % 32 == 7: VM(f"buffer_load_dword v{T+5}, v{T+6}, s[20:23], s50 offen", ("C",))
        if n % 32 == 15:
            VM(f"buffer_load_dword v{T+5}, v{T+7}, s[16:19], s51 offen", ("C",))
            VM(f"buffer_load_dword v{T+5}, v{T+9}, s[56:59], s54 offen", ("C",))
        if n % 32 == 17: X(f"s_add_u32 s50, s50, {1024*14*128}")
        if n % 32 == 25: X(f"s_add_u32 s51, s51, {1024*512}")
        if n % 32 == 27: X(f"s_add_u32 s54, s54, {1024*1024}")
        e(10, 11, 12); c(5)
        ls = lsum(o, Pp)
        X(ls[0])
        RD(Vw + 4 * w, j + 1, 2 + w)
        e(13)
        if len(ls) > 1: X(ls[1])
        e(14, 15); c(6, 7)
    def preload():
        cnt.reset()
        for st in range(R - 1):
            for i in range(4): cnt.issue("vm", ("B", st))
        cnt.issue("lg", (2, 0)); cnt.issue("lg", (3, 0))
    preload()
    for n in range(128): ph(n, None, n % 32)
    preload()
    stamp(k, 1)
    a("s_mov_b32 s31, 4\n.p2align 6\nattn_loop:")
    for n in range(32): ph(n, a, n)
    a("s_sub_u32 s31, s31, 1\ns_cmp_lg_u32 s31, 0\ns_cbranch_scc1 attn_loop\nattn_epi:")
    stamp(k, 2)
    a(f"""
    v_mfma_f32_32x32x16_bf16 {v(O+16,16)}, {v(V0+8,4)}, {v(P+8,4)}, {v(O+16,16)}
    v_mfma_f32_32x32x16_bf16 {v(O+16,16)}, {v(V1+8,4)}, {v(P+12,4)}, {v(O+16,16)}""")
    for x in lsum(1, P + 8): a(x)
    a(f"v_mov_b32 v{T}, 0\nv_mov_b32 v{T+1}, 0")
    for i in range(32): a(f"v_fmac_f32 v{T+i%2}, 0, v{O+i}")
    def ltot():
        if SM: a(f"v_add_f32 v{L}, v{L}, v{L+1}\nv_add_f32 v{L+4}, v{L+4}, v{L+5}")
    ltot()
    a(f"""
    v_add_f32 v{T}, v{T}, v{T+1}
    v_add_f32 v{T}, v{T}, v{L}
    v_add_f32 v{T}, v{T}, v{L+4}
    v_cmp_ngt_f32 vcc, {fx(2.0**40)}, v{T}
    s_cbranch_vccnz attn_slow
attn_fin:
    v_rcp_f32 v{T}, v{L}
    v_rcp_f32 v{T+1}, v{L+4}
    s_mul_i32 s32, s24, {2*SLAB}
    s_add_u32 s33, s32, {SLAB}""")
    for w in range(2):
        Ow = O + 16 * w
        for i in range(16): a(f"v_mul_f32 v{Ow+i}, v{Ow+i}, v{T+w}")
        for i in range(8): a(f"v_cvt_pk_bf16_f32 v{Ow+i}, v{Ow+2*i}, v{Ow+2*i+1}")
        a(f"buffer_store_dwordx4 {v(Ow,4)}, v{3+w}, s[12:15], s32 offen sc1\nbuffer_store_dwordx4 {v(Ow+4,4)}, v{3+w}, s[12:15], s33 offen sc1")
    stamp(k, 3)
    prof_out(k, 4, 4, 26)
    a("s_endpgm")
    a(f"""
attn_slow:
    v_mov_b32 v{T}, 0xff800000
    v_mov_b32 v{T+2}, 0xff800000
    s_mov_b32 s30, 0
    s_waitcnt lgkmcnt(0)
attn_slow1:
    buffer_load_dwordx4 {v(K0,4)}, v2, s[8:11], s30 offen
    buffer_load_dwordx4 {v(K1,4)}, v2, s[8:11], s30 offen offset:1024
    s_waitcnt vmcnt(0)""")
    for w in range(2):
        a(f"v_mfma_f32_32x32x16_bf16 {v(S+16*w,16)}, {v(K0,4)}, {v(Q+8*w,4)}, 0")
        a(f"v_mfma_f32_32x32x16_bf16 {v(S+16*w,16)}, {v(K1,4)}, {v(Q+8*w+4,4)}, {v(S+16*w,16)}")
    for w in range(2): rowmax(S + 16 * w, T + 2 * w)
    a("s_add_u32 s30, s30, 4096\ns_cmp_lt_u32 s30, 0x40000\ns_cbranch_scc1 attn_slow1")
    for w in range(2): negbcast(T + 2 * w, w)
    for i in range(32): a(f"v_mov_b32 v{O+i}, 0")
    for i in range(8): a(f"v_mov_b32 v{L+i}, 0")
    a(f"""
    s_mov_b32 s30, 0
attn_slow2:
    buffer_load_dwordx4 {v(K0,4)}, v2, s[8:11], s30 offen
    buffer_load_dwordx4 {v(K1,4)}, v2, s[8:11], s30 offen offset:1024
    buffer_load_dwordx4 {v(V0,4)}, v2, s[8:11], s30 offen offset:2048
    buffer_load_dwordx4 {v(V1,4)}, v2, s[8:11], s30 offen offset:3072
    s_waitcnt vmcnt(0)""")
    for w in range(2):
        a(f"v_mfma_f32_32x32x16_bf16 {v(S+16*w,16)}, {v(K0,4)}, {v(Q+8*w,4)}, {v(NEG+16*w,16)}")
        a(f"v_mfma_f32_32x32x16_bf16 {v(S+16*w,16)}, {v(K1,4)}, {v(Q+8*w+4,4)}, {v(S+16*w,16)}")
    for i in range(32): a(f"v_exp_f32 v{S+i}, v{S+i}")
    for i in range(16): a(f"v_cvt_pk_bf16_f32 v{P+i}, v{S+2*i}, v{S+2*i+1}")
    for w in range(2):
        a(f"v_mfma_f32_32x32x16_bf16 {v(O+16*w,16)}, {v(V0,4)}, {v(P+8*w,4)}, {v(O+16*w,16)}")
        a(f"v_mfma_f32_32x32x16_bf16 {v(O+16*w,16)}, {v(V1,4)}, {v(P+8*w+4,4)}, {v(O+16*w,16)}")
        for x in lsum(w, P + 8 * w): a(x)
    a("s_add_u32 s30, s30, 4096\ns_cmp_lt_u32 s30, 0x40000\ns_cbranch_scc1 attn_slow2")
    ltot()
    a("s_branch attn_fin")
    attn_side(k, 4)
    finish(k)
    return k

def build(kernels, path, verbose=False):
    hdr = open("adaLN_cond__mha_block__geglu_ffn__prompt.s.ref").read().split("; Override launch")[0]
    out = hdr
    for k in kernels:
        out += f"; @launch kernel={k.name} grid=({k.grid},1,1) block=({k.block},1,1) lds={k.lds}\n"
    out += '.amdgcn_target "amdgcn-amd-amdhsa--gfx950"\n'
    for k in kernels:
        rep = []
        out += k.text(rep)
        if verbose:
            print(k.name, "vgpr", k.nv, "agpr", k.na, "lds", k.lds, "nops inserted:", len(rep))
            for r in rep:
                if "m0" not in r[1]: print("   ", r)
    out += '.section .rodata,"a"\n'
    for k in kernels: out += k.desc()
    open(path, "w").write(out)

CHECK = {"x2": "frag", "h2": False, "h1": False, "slab": SLAB}
def all_kernels():
    global QPRE
    QPRE = EXP.get("qpre", 1024)
    if EXP.get("fuse1", 1):
        ORDER[:] = ["pre_kernel", "qkv_kernel", "attn_kernel", "out_kernel", "gu_kernel", "down_kernel"]
        return [k_pre(), k_qkv(), k_attn4() if EXP.get('a4', 1) else k_attn(), k_out(), k_gu(), k_down()]
    ORDER[:] = ["pre_kernel", "ln1_kernel", "qkv_kernel", "attn_kernel", "out_kernel", "gu_kernel", "down_kernel"]
    return [k_pre(), k_ln("ln1_kernel", P_X, WS_H1, 0, 1), k_qkv(), k_attn(), k_out(), k_gu(), k_down()]

if __name__ == "__main__":
    vb = False
    for x in sys.argv[2:]:
        if x == "prof": PROF = True
        elif x == "verbose": vb = True
        else:
            kk, _, vv = x.partition("="); EXP[kk] = int(vv) if vv else 1
    build(all_kernels(), sys.argv[1] if len(sys.argv) > 1 else "adaLN_cond__mha_block__geglu_ffn__prompt.s", verbose=vb)
```

```python
import sys, math
from asmlib import *
import g2
from g2 import (SLAB, WS_MODP, WS_UV, WS_STAT, WS_WQ3, WS_WO3, WS_WD3, WS_H1, WS_Q, WS_KV, WS_O, WS_X2, WS_Y2, WS_ACT, WS_PROF, KS,
                P_X, P_WQKV, P_WO, P_WG, P_WU, P_WD, P_C, P_WMOD, P_OUT, P_DBG, P_WS, LOG2E, EXP, KID, fx, Kernel, load_ptrs, srd,
                guard, finish, unpack, rbf, phys_line, code_srd, wave_lane, cpf_addr)
WS_FLAG = 704 << 10
NFLAG = 2560
F_OUT, F_GU, F_EX, F_ATT, F_QKV, F_LN, F_GU2 = 0, 256, 512, 1536, 1792, 2048, 2304
WS_GBP = 192 << 10
WS_WD4 = 58 << 20
WS_EX = 62 << 20
CHECK = {"actperm": True, "x2": None, "h2": False, "h1": False, "slab": SLAB, "y2": "split"}

NSTAMP = [0]
def stamp(k, force=False, last=False):
    if not g2.PROF: return
    if EXP.get("gst") and k.name == "mlp_kernel" and not force and getattr(k, "nst", 0) > 0: return
    k.nall = getattr(k, "nall", -1) + 1
    i = k.nst = getattr(k, "nst", 0)
    if k.name == "mlp_kernel" and not last and not EXP.get("gst") and (k.nall < EXP.get("p0", 0) or i >= 10): return
    k.a(f"s_memtime s[72:73]\ns_memrealtime s[74:75]\ns_waitcnt lgkmcnt(0)\ns_mov_b32 s{76+2*i}, s72\ns_mov_b32 s{77+2*i}, s74")
    k.nst += 1
def prof_out(k, kid):
    if not g2.PROF: return
    a = k.a
    a("s_waitcnt vmcnt(0)"); stamp(k, last=True)
    a(f"s_add_u32 s4, s38, {WS_PROF + kid*(1<<18)}\ns_addc_u32 s5, s39, 0\ns_mov_b32 s6, {1<<18}\ns_mov_b32 s7, 0x20000")
    a(f"s_lshl_b32 s32, s2, 2\ns_add_u32 s32, s32, s26\ns_lshl_b32 s32, s32, 7\nv_mov_b32 v1, 0")
    for i in range(2 * k.nst): a(f"v_mov_b32 v0, s{76+i}\nbuffer_store_dword v0, v1, s[4:7], s32 offen offset:{4*i}")

class Gemm:
    def __init__(self, k, name, sset, K, MR, NC, DA, R, U, PEEL, CAP, INIT, btype, a_off, orient, TM, TN, xm, xn, ldb, alt,
                 lds0, vlow, acc0, frag, mod=False, FB=1, WG=1, sc1=False, split=False):
        self.__dict__.update(locals()); self.a = k.a
        self.S = K // 32; self.NST = K // 64
        b = 40 + 8 * sset
        self.tm, self.tn, self.rb0, self.sB, self.sW, self.sW0, self.sWE, self.sBI = range(b, b + 8)
        self.SB = 8 if sset == 0 else 28
        if btype == "panel": self.NP = NC // 4; self.STAGE = self.NP * 8192; self.ND = 2 * self.NP; self.NRB = 4
        else: self.UPOFF = 64 * 224; self.STAGE = 2 * self.UPOFF; self.ND = 7; self.NRB = 1
        self.VB = vlow; self.VR0 = self.VB + self.ND; self.VR = self.VR0 + 1; self.VA = self.VR + self.NRB
        self.vend = self.VA + MR
        self.fk, f0 = frag
        self.BF = f0; self.AR = f0 + 4 * NC * FB; self.fend = self.AR + 4 * MR * DA
        self.pre = 0
        self.slot0 = 0
        self.VT = None
    def acc(self, j, i): return self.acc0 + 4 * (j * self.MR + i)

    def tile(self):
        tm_per, tn_per = self.TM // self.xm, self.TN // self.xn
        self.a(f"""
        s_and_b32 s32, s2, 7
        s_lshr_b32 s33, s2, 3
        s_lshr_b32 s34, s32, {self.xn.bit_length()-1}
        s_and_b32 s35, s32, {self.xn-1}
        s_and_b32 s{self.tm}, s33, {tm_per-1}
        s_lshr_b32 s{self.tn}, s33, {tm_per.bit_length()-1}
        s_mul_i32 s34, s34, {tm_per}
        s_add_u32 s{self.tm}, s{self.tm}, s34
        s_mul_i32 s35, s35, {tn_per}
        s_add_u32 s{self.tn}, s{self.tn}, s35
        s_lshl_b32 s{self.rb0}, s{self.tm}, 2
        s_add_u32 s{self.rb0}, s{self.rb0}, s26
        s_mul_i32 s{self.rb0}, s{self.rb0}, {self.MR//2}""")

    def b_addr(self, T):
        a = self.a; VB = self.VB; ldb = self.ldb
        if self.btype == "panel":
            off_alt, ldb_alt, pst_alt, sst_alt = self.alt
            sb = self.SB
            a(f"""
            s_and_b32 s32, s{self.tn}, 7
            s_lshr_b32 s33, s{self.tn}, 3
            s_mul_i32 s33, s33, {sst_alt}
            s_lshl_b32 s34, s{self.tn}, 7
            s_mov_b32 s35, {ldb}
            s_mov_b32 s{self.sB}, 2048
            s_cmp_eq_u32 s32, 3
            s_cselect_b32 s33, s33, s34
            s_cselect_b32 s35, {ldb_alt}, s35
            s_cselect_b32 s{self.sB}, {pst_alt}, s{self.sB}""" if not self.split else f"""
            s_and_b32 s32, s{self.tn}, 6
            s_lshr_b32 s33, s{self.tn}, 3
            s_lshl_b32 s33, s33, 1
            s_and_b32 s34, s{self.tn}, 1
            s_add_u32 s33, s33, s34
            s_lshl_b32 s33, s33, 8
            s_lshl_b32 s34, s34, 1
            s_sub_u32 s{self.sB}, 1, s34
            s_lshl_b32 s34, s{self.tn}, 7
            s_mov_b32 s35, {ldb}
            s_cmp_eq_u32 s32, 2
            s_cselect_b32 s33, s33, s34
            s_cselect_b32 s35, {ldb_alt}, s35
            s_cselect_b32 s34, 8, 7
            s_lshl_b32 s{self.sB}, s{self.sB}, s34""")
            a(f"""
            s_lshl_b32 s{self.sBI}, s35, 6
            s_lshl_b32 s34, s35, 3
            s_lshl_b32 s32, s26, 4
            v_lshrrev_b32 v{T}, 3, v1
            v_and_b32 v{T+1}, 7, v1
            v_and_b32 v{T+2}, 6, v{T}
            v_xor_b32 v{T+1}, v{T+1}, v{T+2}
            v_add_u32 v{T}, s32, v{T}
            v_mul_lo_u32 v{T}, v{T}, s35
            v_lshl_add_u32 v{T}, v{T+1}, 4, v{T}
            v_add_u32 v{VB}, s33, v{T}
            v_add_u32 v{VB+1}, s34, v{VB}""")
            for p in range(1, self.NP):
                a(f"v_add_u32 v{VB+2*p}, s{self.sB}, v{VB+2*p-2}\nv_add_u32 v{VB+2*p+1}, s{self.sB}, v{VB+2*p-1}")
            self.dma_lds = [p * 8192 + g * 1024 for p in range(self.NP) for g in range(2)]
            a(f"s_lshl_b32 s{self.sW0}, s26, 11")
        else:
            a(f"""
            s_and_b32 s32, s26, 1
            s_mul_i32 s33, s32, {32*ldb}
            s_mul_i32 s34, s{self.tn}, 224
            s_add_u32 s33, s33, s34
            s_mov_b32 s{self.sBI}, {64*ldb}""")
            for i in range(7):
                a(f"""
                v_add_u32 v{T}, {64*i}, v1
                v_mul_u32_u24 v{T+1}, 4682, v{T}
                v_lshrrev_b32 v{T+1}, 16, v{T+1}
                v_lshl_add_u32 v{T}, v{T}, 4, s33
                v_mul_u32_u24 v{T+1}, {ldb-224}, v{T+1}
                v_add_u32 v{VB+i}, v{T}, v{T+1}""")
            self.dma_lds = [1024 * i for i in range(7)]
            a(f"s_mul_i32 s{self.sW0}, s26, 7168")
        a(f"""
        s_add_u32 s{self.sW0}, s{self.sW0}, {self.lds0}
        s_mov_b32 s{self.sB}, 0
        s_add_u32 s{self.sW}, s{self.sW0}, {self.slot0*self.STAGE}
        s_add_u32 s{self.sWE}, s{self.sW0}, {self.R*self.STAGE}""")

    def b_srd(self, p0, p1=None):
        a = self.a; sb = self.SB
        if self.btype == "panel":
            a(f"""
            s_add_u32 s32, s38, {self.alt[0]}
            s_addc_u32 s33, s39, 0
            s_cmp_eq_u32 s{self.sBI}, {64*self.alt[1]}
            s_cselect_b32 s{sb}, s32, s{p0}
            s_cselect_b32 s{sb+1}, s33, s{p0+1}
            s_mul_i32 s{sb+2}, s{self.sBI}, {self.NST}
            s_mov_b32 s{sb+3}, 0x20000""")
            if self.split:
                a(f"s_and_b32 s32, s{self.tn}, 1\ns_mul_i32 s32, s32, s{sb+2}\ns_add_u32 s{sb}, s{sb}, s32\ns_addc_u32 s{sb+1}, s{sb+1}, 0")
        else:
            a(f"s_cmp_ge_u32 s26, 2\ns_cselect_b32 s{sb}, s{p1}, s{p0}\ns_cselect_b32 s{sb+1}, s{p1+1}, s{p0+1}")
            a(f"s_mov_b32 s{sb+2}, {self.K*self.ldb}\ns_mov_b32 s{sb+3}, 0x20000")

    def dma_op(self, i):
        ins = [f"s_add_u32 m0, s{self.sW}, {self.dma_lds[i]}", f"buffer_load_dwordx4 v{self.VB+i}, {s(self.SB,4)}, s{self.sB} offen lds"]
        if i == self.ND - 1:
            inc = f"s_add_u32 s{self.sB}, s{self.sB}, s{self.sBI}" if self.VT is None else f"s_add_u32 s{self.sBI}, s{self.sBI}, 1\nv_readlane_b32 s{self.sB}, v{self.VT}, s{self.sBI}"
            ins += [inc, f"s_add_u32 s{self.sW}, s{self.sW}, {self.STAGE}",
                    f"s_cmp_eq_u32 s{self.sW}, s{self.sWE}\ns_cselect_b32 s{self.sW}, s{self.sW0}, s{self.sW}"]
        return ins
    def preload(self, n):
        self.pre = n
        return [self.dma_op(i) for st in range(n) for i in range(self.ND)]

    def a_addr(self, T):
        a = self.a
        a(f"""
        v_bfe_u32 v{T+2}, v1, 4, 1
        v_bfe_u32 v{T+3}, v1, 3, 1
        v_lshl_add_u32 v{T+2}, v{T+2}, 2, v{T+3}
        s_lshl_b32 s32, s{self.rb0}, 3
        v_add_u32 v{T+2}, s32, v{T+2}
        v_lshrrev_b32 v{T+3}, 5, v1
        v_mul_u32_u24 v{T+3}, {SLAB}, v{T+3}
        v_and_b32 v{T}, 7, v1
        v_lshl_add_u32 v{T+3}, v{T}, 4, v{T+3}""")
        for i in range(self.MR):
            a(f"v_add_u32 v{T}, {8*(i//2) + 2*(i%2)}, v{T+2}")
            phys_line(a, self.VA + i, T, T + 1)
            a(f"v_add_u32 v{self.VA+i}, v{self.VA+i}, v{T+3}")
        a("s_mov_b32 s27, 0")
    def a_srd(self):
        srd(self.a, 4, 38, self.a_off, 2 * self.S * SLAB)
        if self.split: self.a(f"s_and_b32 s32, s{self.tn}, 1\ns_mul_i32 s32, s32, s6\ns_add_u32 s4, s4, s32\ns_addc_u32 s5, s5, 0")

    def r_addr(self, T):
        a = self.a
        a(f"""
        v_lshrrev_b32 v{T}, 5, v1
        v_bfe_u32 v{T+1}, v1, 2, 3
        v_lshl_add_u32 v{T}, v{T}, 4, v{T+1}
        v_and_b32 v{T+2}, 3, v1""")
        if self.btype == "panel":
            a(f"""
            v_lshlrev_b32 v{T}, 7, v{T}
            v_lshl_add_u32 v{T}, v{T+2}, 3, v{T}
            v_lshrrev_b32 v{T+1}, 1, v{T+1}
            v_lshl_add_u32 v{self.VR0}, v{T+1}, 5, v{T}""")
        else:
            a(f"v_mul_u32_u24 v{T}, 224, v{T}\nv_lshl_add_u32 v{self.VR0}, v{T+2}, 3, v{T}")
        a(f"s_mov_b32 s37, {self.lds0 + ((self.slot0-1) % self.R)*self.STAGE}")
    def rd(self, j, sub, r_):
        if self.btype == "panel": return self.VR + j % 4, (j // 4) * 8192 + 128 * (32 * sub + 8 * r_)
        return self.VR, (j % 2) * self.UPOFF + 32 * (j // 2) + 224 * (32 * sub + 8 * r_)

    def run(self, extra_fn, early=None, late=None, cpf=None, gate=None, POST=0, post_ops=None, timed=None, gfirst=False, top=None, after=None):
        g = self; a = self.a
        S, NST, MR, NC, DA, R, U, PEEL, FB, ND, mod, fk = g.S, g.NST, g.MR, g.NC, g.DA, g.R, g.U, g.PEEL, g.FB, g.ND, g.mod, g.fk
        assert (NST - PEEL - POST) % U == 0 and (2 * U) % DA == 0 and (2 * U) % FB == 0 and FB <= 2 and PEEL > 0
        sc = " sc1" if g.sc1 else ""
        def make_ops(extra):
            ops = []
            for ta in range(S + DA + 4):
                if ta >= S and ta + 1 - DA >= S - 2 * POST: break
                for i in range(MR):
                    ins = [f"buffer_load_dwordx4 {rr(fk, g.AR+4*(MR*(ta%DA)+i), 4)}, v{g.VA+i}, s[4:7], s27 offen{sc}"]
                    if i == MR - 1: ins.append(f"s_add_u32 s27, s27, {2*SLAB}")
                    ops.append([ta - (1 if mod else 0), ta + (0 if mod else 1) - DA, len(ops), ins, ("A", ta)])
            for st in range(g.pre, NST + R + 2 if g.pre < NST else 0):
                for i in range(ND):
                    ea = 2 * (st + 2 - R) - FB + i * 2 // ND
                    if st >= NST and ea >= S - 2 * POST: continue
                    ops.append([2 * st - FB - 0.5, ea, len(ops), g.dma_op(i), ("B", st)])
            for ea, ins in (post_ops or []): ops.append([1000, ea, len(ops), ins, ("X",)])
            for need, ins in extra: ops.append([need, -999, len(ops), ins, ("X",)])
            ops.sort(key=lambda o: (o[0], o[2]))
            return ops
        cnt = Cnt()
        def go(emit):
            emit0 = emit; em = [emit]
            ng = [0]
            vq = [list(q) for q in (timed or [])]
            def E(x):
                ng[0] += len([1 for l in x.split("\n") if l.strip()]) + (1 if x.startswith("buffer_") else 0)
                if em[0]: em[0](x)
            ops = make_ops(extra_fn())
            def take(t, cap):
                got = [o for o in ops if o[1] <= t][:cap]
                for o in got: ops.remove(o)
                return [(x, o[4] if x.startswith("buffer_") else None) for o in got for x in o[3]]
            def W(site, c, nm, tags):
                assert nm != "X" or not [o for o in ops if o[4] == ("X",) and o[0] < 100], "extras not issued"
                cnt.wait(c, (site, nm), tags)
                n_ = ng[0]; E(cnt.text(c, (site, nm))); ng[0] = n_ + (1 if nm[0] in "XU" or (nm[0] == "N" and (int(nm[1:]) + 1) % g.WG == 0) else 0)
            def flush(fill, n):
                for _ in range(n):
                    if not fill: return
                    x, tag = fill.pop(0)
                    if x == "W": W(*tag); continue
                    E(x)
                    if tag and tag[0] == "L": cnt.issue("lg", tag[1])
                    elif tag: cnt.issue("vm", tag)
            def slot_s(): return [(f"s_add_u32 s37, s37, {g.STAGE}", None), (f"s_cmp_eq_u32 s37, {g.lds0 + R*g.STAGE}\ns_cselect_b32 s37, {g.lds0}, s37", None)]
            def slot_v():
                out = [f"v_add_u32 v{g.VR}, s37, v{g.VR0}"]
                for b in range(1, g.NRB): out.append(f"v_xor_b32 v{g.VR+b}, {32*b}, v{g.VR}")
                return out
            def reads(tt, j):
                out = []
                for r_ in range(2):
                    base, off = g.rd(j, tt % 2, r_)
                    out.append((f"ds_read_b64_tr_b16 {rr(fk, g.BF+4*(NC*(tt%FB)+j)+2*r_, 2)}, v{base} offset:{off}", ("L", ("F", tt, j))))
                return out
            def cread(tt):
                base = (tt if tt < 2 * PEEL + 2 else 2 * PEEL + (tt - 2 * PEEL - 2) % (2 * U) + 2) * 256
                CM = g.CM0 + 16 * (tt % 2)
                return [(f"ds_read_b128 {v(CM+4*n,4)}, v{g.VC} offset:{base+16*n}", ("L", ("C", tt))) for n in range(4)]
            def xform(tt):
                out = []; CM = g.CM0 + 16 * (tt % 2)
                for i in range(MR):
                    r = g.AR + 4 * (MR * (tt % DA) + i)
                    for e in range(8):
                        out.append((f"v_fma_mix_f32 v{g.XT+e}, v{r+e//2}, v{CM+e}, v{CM+8+e} " + ("op_sel:[1,0,0] " if e % 2 else "") + "op_sel_hi:[1,0,0]", None))
                    for e in range(4): out.append((f"v_cvt_pk_bf16_f32 v{g.HF+4*(MR*(tt%2)+i)+e}, v{g.XT+2*e}, v{g.XT+2*e+1}", None))
                return out
            if early: early(emit, cnt)
            if not gate: flush(take(-FB - 1, g.INIT), 999)
            if late: late(emit, lambda c, nm, tags: W("pro", c, nm, tags))
            W("pro", "vm", "bar", {("B", 0)})
            flush(slot_s(), 9)
            if not gate: E("s_barrier")
            if gate and gfirst:
                if emit: gate()
                flush(take(-FB - 1, g.INIT), 999)
            for x in slot_v(): E(x)
            if FB == 2: flush(slot_s(), 9)
            if mod: flush(cread(0) + cread(1), 99)
            for tt in range(FB):
                for j in range(NC): flush(reads(tt, j), 2)
            if gate and not gfirst:
                if emit: gate()
                if after:
                    flush(take(-FB - 1, 4), 999)
                    if emit: after()
                flush(take(-FB - 1, g.INIT), 999)
            W("pro", "vm", "A", {("A", 0)})
            if mod:
                W("pro", "lg", "C", {("C", 0)})
                flush(xform(0), 99)
            W("pro", "lg", "F", {("F", 0, min(NC - 1, g.WG - 1))})
            if emit: stamp(g.k)
            pend = []
            for t in range(S):
                peeled = t < 2 * PEEL or t >= S - 2 * POST
                site = ("p", t) if peeled else (t - 2 * PEEL) % (2 * U)
                if t == 2 * PEEL and not peeled:
                    assert not [o for o in ops if o[1] < t], f"{g.name}: backlog not drained"
                    if emit0 and EXP.get("pstamp"): stamp(g.k)
                    E(f"s_mov_b32 s36, {(NST-PEEL-POST)//U}\n.p2align 6\n{g.name}_loop:")
                em[0] = emit0 if (peeled or t < 2 * PEEL + 2 * U) else None
                if top and site == 0:
                    E(top)
                if emit0 and EXP.get("gst") and g.name == "gu" and t in (0, 2, 4, 6, 10, 16, 22, 26, 28, 30): stamp(g.k, True)
                bar = (t + FB) % 2 == 0
                fill = take(t, g.CAP if peeled else 999)
                if cpf and ((not peeled and site == 1) or (PEEL + POST == NST and t % EXP.get('cpfn', 4) == 1)): fill += [(x, ("C",)) for x in cpf.split("|")]

                if (t + 1 + FB) % 2 == 0: fill = fill + slot_s()
                last = (not peeled) and site == 2 * U - 1
                if last: fill.append(("s_sub_u32 s36, s36, 1\ns_cmp_lg_u32 s36, 0", None))
                vfill = []
                if mod:
                    fill = cread(t + 2) + fill
                    vfill = xform(t + 1) + ([(f"v_add_u32 v{g.VC}, {2*U*256}, v{g.VC}", None)] if last else [])
                ngap = NC * MR
                first = MR + 1 if bar else 0
                n0 = len(fill); nv0 = len(vfill); gap = 0
                for j in range(NC):
                    for i in range(MR):
                        af = rr(fk, g.AR + 4 * (MR * (t % DA) + i), 4) if not mod else v(g.HF + 4 * (MR * (t % 2) + i), 4)
                        bf = rr(fk, g.BF + 4 * (NC * (t % FB) + j), 4); c = v(g.acc(j, i), 4)
                        x, y = (bf, af) if g.orient[j] == "tok" else (af, bf)
                        E(f"v_mfma_f32_16x16x32_bf16 {c}, {x}, {y}, {c if t else 0}")
                        gap += 1; ng[0] = 0
                        if mod and gap == 1:
                            W(site, "vm", "A", {("A", t + 1)}); W(site, "lg", "C", {("C", t + 1)})
                        if i == MR - 1:
                            jn, tn_ = (j + 1, t) if j + 1 < NC else (0, t + 1)
                            if jn == 0 and not mod: W(site, "vm", "A", {("A", t + 1)})
                            assert not any(tg[1][1:] == (tn_, jn) for _, tg in pend)
                            tgt = min(NC - 1, jn + (g.WG - 1 - jn % g.WG))
                            while any(tg[1][1:] == (tn_, tgt) for _, tg in pend) or (FB == 1 and tn_ > t and tgt >= j): tgt -= 1
                            W(site, "lg", f"N{j}", {("F", tn_, tgt)})
                        busy = bool(pend) and MR > 2 and gap < ngap
                        flush(pend, 1)
                        if bar and gap == MR:
                            flush(pend, 9)
                            W(site, "vm", "bar", {("B", (t + FB) // 2)})
                            if g.pre < NST or site == 0: E("s_barrier")
                            for x in slot_v(): E(x)
                        if i == MR - 1: pend += reads(t + FB, j)
                        if (gap > first or first == 0) and not busy:
                            den = ngap - first
                            want = max(0, (n0 * (gap - first) + den - 1) // den - (n0 - len(fill)))
                            flush(fill, want)
                        G = t * ngap + gap - 1; placed = 0
                        while vq and vq[0][2] <= G:
                            left = sum(1 for q in vq if q[3] == vq[0][3])
                            must = left > vq[0][3] - G
                            mem = not vq[0][0].startswith(("v_fmac_f32 v", "W"))
                            if not must and (ng[0] >= 2 or placed or (mem and ng[0] >= 1)): break
                            assert peeled
                            x, tg = vq.pop(0)[:2]; placed += 1
                            flush([(x, (site,) + tg if x == "W" else tg)], 1)
                        vs = ngap - 2
                        if gap > 1: flush(vfill, max(0, (nv0 * min(gap - 1, vs) + vs - 1) // vs - (nv0 - len(vfill))))
                assert not fill and not vfill
                if last or t == 2 * PEEL - 1 or t == S - 1:
                    flush(pend, 9)
                    if last: E(f"s_cbranch_scc1 {g.name}_loop")
            assert not vq
        go(None)
        cnt.reset()
        go(a)
        a(f"{g.name}_epi:")
        stamp(g.k, g.name == "gu")

def piece_lane(a, dst, t):
    a(f"""
    v_and_b32 v{dst}, 15, v1
    v_lshrrev_b32 v{t}, 5, v1
    v_lshl_add_u32 v{dst}, v{t}, 4, v{dst}
    v_bfe_u32 v{t}, v1, 4, 1
    v_lshl_add_u32 v{dst}, v{t}, 5, v{dst}
    v_lshlrev_b32 v{dst}, 4, v{dst}""")
def piece_slab(a, dst, srb, add, t):
    a(f"""
    v_bfe_u32 v{t}, v1, 4, 1
    v_lshrrev_b32 v{t+1}, 5, v1
    v_lshl_add_u32 v{t}, v{t}, 1, v{t+1}
    v_bfe_u32 v{t+1}, v1, 3, 1
    v_lshl_add_u32 v{t}, v{t}, 1, v{t+1}
    s_lshl_b32 s32, s{srb}, 3
    s_add_u32 s32, s32, {8*add}
    v_add_u32 v{t}, s32, v{t}""")
    phys_line(a, dst, t, t + 1)
    a(f"v_and_b32 v{t}, 7, v1\nv_lshl_add_u32 v{dst}, v{t}, 4, v{dst}")
def pack_swap(a, d, x, y):
    a(f"""
    v_cvt_pk_bf16_f32 v{d}, v{x}, v{x+1}
    v_cvt_pk_bf16_f32 v{d+1}, v{x+2}, v{x+3}
    v_cvt_pk_bf16_f32 v{d+2}, v{y}, v{y+1}
    v_cvt_pk_bf16_f32 v{d+3}, v{y+2}, v{y+3}""")
def swap2(a, d): a(f"v_permlane32_swap_b32 v{d}, v{d+2}\nv_permlane32_swap_b32 v{d+1}, v{d+3}")
def allred4(a, regs, t):
    for op in ("v_permlane16_swap_b32", "v_permlane32_swap_b32"):
        for n, r in enumerate(regs): a(f"v_mov_b32 v{t+n}, v{r}")
        for n, r in enumerate(regs): a(f"{op} v{r}, v{t+n}")
        for n, r in enumerate(regs): a(f"v_add_f32 v{r}, v{r}, v{t+n}")

def head(k, ptrs):
    guard(k); stamp(k)
    load_ptrs(k.a, [(38, P_WS)] + ptrs)
    wave_lane(k.a)

def k_qkv():
    k = Kernel("qkv_kernel", 256, 256, 24576 * EXP.get("qR", 4) + 8192 + 512, 256)
    head(k, [(60, P_WQKV)])
    qkv_phase(k)
    stamp(k); prof_out(k, KID[k.name]); finish(k)
    return k
def ln_qkv_front(k):
    R = EXP.get("qR", 4); a = k.a
    g = Gemm(k, "qkv", 0, 1024, 2, 12, EXP.get("qDA", 4), R, 2, EXP.get("qPEEL", 2), EXP.get("qCAP", 8), EXP.get("qINIT", 6), "panel", WS_H1,
             ["tok"] * 8 + ["feat"] * 4, 16, 16, 2, 4, 6144, (WS_WQ3, 1536, 256, 768), 0, 3, 24, ("v", 120), WG=EXP.get("qWG", 6), sc1=True)
    T = 16; CL = 24576 * R; TL = CL + 8192
    X8, F, C = 128, 144, 176
    g.tile()
    a(f"""
    s_lshl_b32 s56, s{g.tm}, 4
    s_add_u32 s56, s56, s{g.tn}
    s_lshl_b32 s57, s56, 14
    v_lshrrev_b32 v20, 5, v0
    v_and_b32 v21, 31, v0
    v_lshlrev_b32 v22, 11, v20
    v_lshl_add_u32 v22, v21, 4, v22
    v_lshlrev_b32 v23, 4, v0
    s_waitcnt lgkmcnt(0)""")
    srd(a, 12, 62, 0, 4 << 20); srd(a, 20, 38, WS_MODP, KS * 6144 * 4)
    for i in range(4): a(f"buffer_load_dwordx4 {v(X8+4*i,4)}, v22, s[12:15], s57 offen offset:{512*i}")
    for p in range(KS):
        a(f"s_mov_b32 s32, {p*6144*4 + 4096}\nbuffer_load_dwordx4 {v(C+8*p,4)}, v23, s[20:23], s32 offen")
        a(f"s_mov_b32 s32, {p*6144*4}\nbuffer_load_dwordx4 {v(C+8*p+4,4)}, v23, s[20:23], s32 offen")
    g.b_addr(T); g.b_srd(60)
    pl = g.preload(EXP.get("qpl", 2)); n0 = 6 * EXP.get("qpl0", 1)
    for grp in pl[:n0]:
        for x in grp: a(x)
    srd(a, 16, 38, WS_H1, 64 * SLAB)
    a(f"""
    s_lshr_b32 s32, s56, 2
    s_lshl_b32 s32, s32, 3
    s_and_b32 s33, s56, 3
    s_add_u32 s32, s32, s33
    v_bfe_u32 v26, v0, 3, 1
    v_lshl_add_u32 v26, v26, 2, s32""")
    phys_line(a, 25, 26, 27)
    a(f"""
    v_and_b32 v26, 7, v0
    v_lshl_add_u32 v25, v26, 4, v25
    v_lshrrev_b32 v27, 4, v0
    v_mul_u32_u24 v27, {SLAB}, v27
    v_add_u32 v25, v25, v27
    v_lshrrev_b32 v27, 3, v0
    v_mul_u32_u24 v27, 144, v27
    v_lshl_add_u32 v27, v26, 4, v27
    v_add_u32 v27, {TL}, v27
    v_mul_u32_u24 v28, 144, v21
    v_lshl_add_u32 v28, v20, 4, v28
    v_and_b32 v29, 1, v21
    v_mul_u32_u24 v29, 136, v29
    v_sub_u32 v28, v28, v29
    v_add_u32 v28, {TL}, v28
    v_add_u32 v23, {CL}, v23
    v_lshlrev_b32 v24, 5, v21
    v_add_u32 v24, {CL}, v24
    s_waitcnt vmcnt({n0})""")
    for j in range(8): a(f"v_add_f32 v{C+j}, v{C+j}, v{C+8+j}")
    for j in range(4): a(f"v_cvt_pk_bf16_f32 v{C+16+j}, v{C+2*j}, v{C+2*j+1}")
    unpack(a, C, C + 16, 4)
    for j in range(4): a(f"v_add_f32 v{C+j}, 1.0, v{C+j}")
    for j in range(2): a(f"v_cvt_pk_bf16_f32 v{C+16+j}, v{C+2*j}, v{C+2*j+1}")
    unpack(a, C, C + 16, 2)
    a(f"ds_write_b128 v23, {v(C,4)}\nds_write_b128 v23, {v(C+4,4)} offset:4096")
    unpack(a, F, X8, 16)
    pk = lambda r: v(r, 2)
    a(f"v_pk_add_f32 v[30:31], {pk(F)}, {pk(F+2)}")
    for i in range(4, 32, 2): a(f"v_pk_add_f32 v[30:31], v[30:31], {pk(F+i)}")
    a("v_add_f32 v30, v30, v31\ns_waitcnt lgkmcnt(0)\ns_barrier")
    for i in range(4):
        for n, o in enumerate((0, 16, 4096, 4096 + 16)): a(f"ds_read_b128 {v(C+16*i+4*n,4)}, v24 offset:{1024*i+o}")
    g2.red32(a, 30, 31)
    a(f"v_mul_f32 v30, {fx(-1/1024)}, v30")
    for i in range(0, 32, 2): a(f"v_pk_add_f32 {pk(F+i)}, {pk(F+i)}, v[30:31] op_sel_hi:[1,0]")
    a(f"v_pk_mul_f32 v[30:31], {pk(F)}, {pk(F)}")
    for i in range(2, 32, 2): a(f"v_pk_fma_f32 v[30:31], {pk(F+i)}, {pk(F+i)}, v[30:31]")
    a("v_add_f32 v30, v30, v31")
    g2.red32(a, 30, 31)
    a(f"""
    v_mov_b32 v31, {fx(1e-5)}
    v_fmac_f32 v31, {fx(1/1024)}, v30
    v_rsq_f32 v30, v31
    s_waitcnt lgkmcnt(0)""")
    for i in range(4):
        for j in range(0, 8, 2): a(f"v_pk_mul_f32 {pk(F+8*i+j)}, {pk(F+8*i+j)}, v[30:31] op_sel_hi:[1,0]")
        for j in range(0, 8, 2): a(f"v_pk_fma_f32 {pk(F+8*i+j)}, {pk(F+8*i+j)}, {pk(C+16*i+j)}, {pk(C+16*i+8+j)}")
        for j in range(4): a(f"v_cvt_pk_bf16_f32 v{X8+4*i+j}, v{F+8*i+2*j}, v{F+8*i+2*j+1}")
        a(f"ds_write_b64 v28, {v(X8+4*i,2)} offset:{32*144*i}\nds_write_b64 v28, {v(X8+4*i+2,2)} offset:{32*144*i+144}")
    a("s_waitcnt lgkmcnt(0)\ns_barrier")
    for i in range(4): a(f"ds_read_b128 {v(F+4*i,4)}, v27 offset:{32*144*i}")
    for i in range(4):
        a(f"s_mov_b32 s32, {16*SLAB*i}\ns_waitcnt lgkmcnt({3-i})\nbuffer_store_dwordx4 {v(F+4*i,4)}, v25, s[16:19], s32 offen sc1")
    a(f"s_add_u32 s56, s56, {F_LN}\ns_lshl_b32 s57, s{g.tm}, 4\ns_add_u32 s57, s57, {F_LN}")
    g.a_addr(T); g.a_srd()
    publish(k, "hl", 56, 57)
    for grp in pl[n0:]:
        for x in grp: a(x)
    def late(emit, W):
        if emit:
            g.r_addr(T); code_srd(k, 68, "qkv_epi", None, 256); cpf_addr(a, 2)
    g.run(lambda: [], None, late, "buffer_load_dword v0, v2, s[68:71], 0 offen", lambda: await_flags(k, "hl", 16))
    return g

def xm_qkv_front(k):
    R = EXP.get("qR", 4); a = k.a
    g = Gemm(k, "qkv", 0, 1024, 2, 12, EXP.get("qDA", 4), R, 2, EXP.get("qPEEL", 2), EXP.get("qCAP", 8), EXP.get("qINIT", 6), "panel", WS_X2,
             ["tok"] * 8 + ["feat"] * 4, 16, 16, 2, 4, 6144, (WS_WQ3, 1536, 256, 768), 0, 3, 24, ("v", 120), WG=EXP.get("qWG", 6), sc1=True)
    T = 16; X8, C, F, H = 128, 144, 176, 184
    g.tile()
    a(f"""
    s_lshl_b32 s56, s{g.tn}, 2
    s_add_u32 s56, s56, s26
    s_mul_i32 s57, s56, {SLAB}
    s_lshl_b32 s56, s56, 6
    v_lshrrev_b32 v24, 5, v1
    v_lshl_add_u32 v24, v24, 4, s56
    s_lshl_b32 s58, s{g.tm}, 2""")
    for i in range(4):
        a(f"s_add_u32 s33, s58, {i}")
        g2.frag_off(a, 20 + i, 33, 1, T)
    a("s_waitcnt lgkmcnt(0)")
    srd(a, 12, 38, WS_H1, 64 * SLAB); srd(a, 20, 38, WS_MODP, KS * 6144 * 4)
    for p in range(KS):
        for n, idx in enumerate((1, 0)):
            a(f"s_mov_b32 s32, {p*6144*4 + idx*4096}")
            for q in range(2): a(f"buffer_load_dwordx4 {v(C+16*p+8*n+4*q,4)}, v24, s[20:23], s32 offen offset:{32*q}")
    for i in range(4): a(f"buffer_load_dwordx4 {v(X8+4*i,4)}, v{20+i}, s[12:15], s57 offen")
    g.b_addr(T); g.b_srd(60)
    pl = g.preload(EXP.get("qpl", 2)); n0 = EXP.get("qpl0", 6)
    for grp in pl[:n0]:
        for x in grp: a(x)
    srd(a, 16, 38, WS_X2, 64 * SLAB)
    a(f"s_waitcnt vmcnt({n0+4})")
    for j in range(16): a(f"v_add_f32 v{C+j}, v{C+j}, v{C+16+j}")
    for j in range(8): a(f"v_cvt_pk_bf16_f32 v{C+16+j}, v{C+2*j}, v{C+2*j+1}")
    unpack(a, C, C + 16, 8)
    for j in range(8): a(f"v_add_f32 v{C+j}, 1.0, v{C+j}")
    for j in range(4): a(f"v_cvt_pk_bf16_f32 v{C+16+j}, v{C+2*j}, v{C+2*j+1}")
    unpack(a, C, C + 16, 4)
    for i in range(4):
        a(f"s_waitcnt vmcnt({n0+3})")
        for e in range(8): a(f"v_fma_mix_f32 v{F+e}, v{X8+4*i+e//2}, v{C+e}, v{C+8+e} " + ("op_sel:[1,0,0] " if e % 2 else "") + "op_sel_hi:[1,0,0]")
        for e in range(4): a(f"v_cvt_pk_bf16_f32 v{H+4*i+e}, v{F+2*e}, v{F+2*e+1}")
        a(f"buffer_store_dwordx4 {v(H+4*i,4)}, v{20+i}, s[16:19], s57 offen sc1")
    a(f"""
    s_lshl_b32 s57, s{g.tm}, 4
    s_add_u32 s57, s57, {F_LN}
    s_add_u32 s56, s57, s{g.tn}""")
    g.a_addr(T); g.a_srd()
    publish(k, "hl", 56, 57)
    for grp in pl[n0:]:
        for x in grp: a(x)
    def late(emit, W):
        if emit:
            g.r_addr(T); code_srd(k, 68, "qkv_epi", None, 256); cpf_addr(a, 2)
    g.run(lambda: [], None, late, "buffer_load_dword v0, v2, s[68:71], 0 offen", lambda: await_flags(k, "hl", 16), gfirst=n0 < 6)
    return g

def mod_qkv_front(k):
    R = EXP.get("qR", 4); a = k.a
    g = Gemm(k, "qkv", 0, 1024, 2, 12, EXP.get("qDA", 4), R, 2, EXP.get("qPEEL", 4), EXP.get("qCAP", 8), EXP.get("qINIT", 14), "panel", WS_H1,
             ["tok"] * 8 + ["feat"] * 4, 16, 16, 2, 4, 6144, (WS_WQ3, 1536, 256, 768), 0, 3, 24, ("v", 120), mod=True, WG=EXP.get("qWG", 6))
    g.CM0 = g.fend; g.HF = g.CM0 + 32; g.XT = g.HF + 16; g.VC = 20; T = 16
    assert g.vend <= 16 and g.XT + 8 <= 256
    XL = 24576 * R; A0 = g.acc0
    g.tile(); g.b_addr(T); g.a_addr(T)
    a("s_waitcnt lgkmcnt(0)")
    g.a_srd(); g.b_srd(60)
    def early(emit, cnt):
        if emit:
            srd(a, 20, 38, WS_MODP, KS * 6144 * 4)
            a(f"v_lshlrev_b32 v{g.VC}, 4, v0")
        for p in range(KS):
            for n, idx in enumerate((1, 0)):
                if emit: a(f"s_mov_b32 s32, {p*6144*4 + idx*4096}\nbuffer_load_dwordx4 {v(A0+8*p+4*n,4)}, v{g.VC}, s[20:23], s32 offen")
                cnt.issue("vm", ("M",))
    def late(emit, W):
        if emit:
            g.r_addr(T)
            code_srd(k, 68, "qkv_epi", None, 256); cpf_addr(a, 2)
            a(f"""
            v_lshrrev_b32 v{A0+24}, 2, v0
            v_lshlrev_b32 v{A0+24}, 7, v{A0+24}
            v_and_b32 v{A0+25}, 1, v0
            v_lshl_add_u32 v{A0+24}, v{A0+25}, 6, v{A0+24}
            v_bfe_u32 v{A0+25}, v0, 1, 1
            v_lshl_add_u32 v{A0+24}, v{A0+25}, 4, v{A0+24}
            v_add_u32 v{A0+24}, {XL}, v{A0+24}
            v_lshrrev_b32 v{g.VC}, 4, v1
            v_lshlrev_b32 v{g.VC}, 6, v{g.VC}
            v_add_u32 v{g.VC}, {XL}, v{g.VC}""")
        W("vm", "M", {("M",)})
        if emit:
            for j in range(8): a(f"v_add_f32 v{A0+j}, v{A0+j}, v{A0+8+j}")
            for j in range(4): a(f"v_cvt_pk_bf16_f32 v{A0+16+j}, v{A0+2*j}, v{A0+2*j+1}")
            unpack(a, A0, A0 + 16, 4)
            for j in range(4): a(f"v_add_f32 v{A0+j}, 1.0, v{A0+j}")
            for j in range(2): a(f"v_cvt_pk_bf16_f32 v{A0+16+j}, v{A0+2*j}, v{A0+2*j+1}")
            unpack(a, A0, A0 + 16, 2)
            a(f"ds_write_b128 v{A0+24}, {v(A0,4)}\nds_write_b128 v{A0+24}, {v(A0+4,4)} offset:32\ns_waitcnt lgkmcnt(0)")
    g.run(lambda: [], early, late, "buffer_load_dword v0, v2, s[68:71], 0 offen")
    return g

def qkv_phase(k, ln=False):
    a = k.a; T = 16
    g = (mod_qkv_front, ln_qkv_front, xm_qkv_front)[ln](k)
    qs = LOG2E / math.sqrt(32)
    srd(a, 12, 38, WS_Q, 4 << 20); srd(a, 16, 38, WS_KV, 8 << 20)
    piece_lane(a, T, T + 1)
    a(f"""
    s_lshl_b32 s32, s{g.tn}, 7
    s_add_u32 s32, s32, s{g.rb0}
    s_lshl_b32 s33, s32, 11
    s_lshl_b32 s34, s32, 12
    s_add_u32 s35, s33, {64*2048}
    s_add_u32 s56, s34, {64*4096}""")
    jobs = []
    for j in range(8):
        hd, gg = (j >> 1) & 1, j & 1
        dst = (f"s[12:15], s{35 if hd else 33} offen offset:{1024*gg}" if j < 4 else f"s[16:19], s{56 if hd else 34} offen offset:{1024*gg}")
        jobs.append((g.acc(j, 0), g.acc(j, 1), j < 4, dst))
    for hd in range(2):
        for i in range(2):
            jobs.append((g.acc(8 + 2 * hd, i), g.acc(9 + 2 * hd, i), False, f"s[16:19], s{56 if hd else 34} offen offset:{2048+1024*i}"))
    prev = None
    for x, y, sc_, dst in jobs + [(None,) * 4]:
        if x is not None:
            if sc_:
                for r in list(range(x, x + 4)) + list(range(y, y + 4)): a(f"v_mul_f32 v{r}, {fx(qs)}, v{r}")
            pack_swap(a, x, x, y)
        if prev:
            swap2(a, prev[0])
            a(f"buffer_store_dwordx4 {v(prev[0],4)}, v{T}, {prev[1]} sc1")
        prev = (x, dst)
    a("v_lshl_add_u32 v0, s26, 6, v1")
    return g

def colvec_ops(g, need, dst, idxs, va):
    ops = []
    first = [f"s_lshl_b32 s32, s{g.tn}, 8\nv_lshl_add_u32 v{va}, v1, 2, s32"]
    for n, idx in enumerate(idxs):
        for p in range(KS):
            ops.append((need, first + [f"s_mov_b32 s32, {p*6144*4 + idx*4096}", f"buffer_load_dword v{dst+2*n+p}, v{va}, s[20:23], s32 offen{' sc1' if g.sc1 else ''}"]))
            first = []
    return ops
def tile_lds_addr(a, dst, t, sbase):
    a(f"""
    v_and_b32 v{dst}, 15, v1
    v_lshlrev_b32 v{dst}, 7, v{dst}
    v_lshrrev_b32 v{t}, 5, v1
    v_and_b32 v{t+1}, 7, v1
    v_xor_b32 v{t}, v{t}, v{t+1}
    v_lshl_add_u32 v{dst}, v{t}, 4, v{dst}
    v_bfe_u32 v{t}, v1, 4, 1
    v_lshl_add_u32 v{dst}, v{t}, 3, v{dst}
    v_add_u32 v{dst}, s{sbase}, v{dst}""")
def row_src(dst, t):
    return f"""v_lshrrev_b32 v{t}, 3, v1
    v_and_b32 v{dst}, 7, v1
    v_xor_b32 v{dst}, v{dst}, v{t}
    v_lshlrev_b32 v{dst}, 4, v{dst}
    v_lshl_add_u32 v{dst}, v{t}, 11, v{dst}"""

def out_gemm(k, lds0, frag, sset=0, vlow=3):
    return Gemm(k, "out", sset, 1024, 2, 4, 8, EXP.get("oR", 6), 4, 4, 99, 999, "panel", WS_O, ["tok"] * 4, 16, 16, 4, 2, 2048,
                (WS_WO3, 512, 0, 256), lds0, vlow, 32, frag, FB=2, WG=2)
def out_phase(k, g, XL, px, fillers=None, keep=None, nearly=0, gate=None):
    a = k.a; T = 16
    def extra():
        ops = colvec_ops(g, 30, T + 8, [2, 4], T + 6)
        if px is None: return ops
        first = [row_src(T + 7, T + 12) + f"""
        s_lshl_b32 s56, s{g.rb0}, 16
        s_lshl_b32 s32, s{g.tn}, 7
        s_add_u32 s56, s56, s32
        s_lshl_b32 s57, s26, 12
        s_add_u32 s57, s57, {XL}"""]
        for i in range(4):
            ops.append((31, first + [f"s_add_u32 m0, s57, {1024*i}", "s_nop 0", f"buffer_load_dwordx4 v{T+7}, s[12:15], s56 offen lds", "s_add_u32 s56, s56, 0x4000"]))
            first = []
        return ops
    if px is not None: srd(a, 12, px, 0, 4 << 20)
    else: a(f"s_lshl_b32 s57, s26, 12\ns_add_u32 s57, s57, {XL}")
    srd(a, 20, 38, WS_MODP, KS * 6144 * 4)
    def late(emit, W):
        if emit:
            g.r_addr(T); code_srd(k, 68, "out_epi", None, 256); cpf_addr(a, 2)
    g.run(extra, None, late, f"buffer_load_dword v{T+15}, v2, s[68:71], 0 offen", gate)
    fl = fillers() if fillers else []
    budget = [nearly]
    def F(n=1):
        for _ in range(n):
            if fl and budget[0] > 0:
                budget[0] -= 1
                for x in fl.pop(0): a(x)
    G, C, X, P = 64, 80, 96, 128
    F(4)
    srd(a, 12, 38, WS_X2, 4 << 20); srd(a, 16, 38, WS_Y2, 64 * SLAB); srd(a, 20, 38, WS_STAT, 16 * 2048 * 8)
    a(f"v_add_f32 v{T+8}, v{T+8}, v{T+9}\nv_add_f32 v{T+10}, v{T+10}, v{T+11}")
    rbf(a, T + 8); rbf(a, T + 10)
    a(f"v_add_f32 v{T+10}, 1.0, v{T+10}")
    rbf(a, T + 10)
    a(f"""
    s_lshl_b32 s33, s26, 9
    s_add_u32 s33, s33, {XL + 16384}
    v_lshl_add_u32 v{T}, v1, 2, s33
    ds_write_b32 v{T}, v{T+8}
    ds_write_b32 v{T}, v{T+10} offset:256""")
    F(3)
    tile_lds_addr(a, T + 3, T + 1, 57)
    a(f"v_lshrrev_b32 v{T}, 4, v1\nv_lshl_add_u32 v{T}, v{T}, 4, s33")
    for b in range(1, 4): a(f"v_xor_b32 v{T+3+b}, {32*b}, v{T+3}")
    for b in range(4):
        for i in range(2): a(f"ds_read_b64 {v(P+4*b+2*i,2)}, v{T+3+b} offset:{2048*i}")
    a("s_waitcnt lgkmcnt(8)")
    for b in range(4): a(f"ds_read_b128 {v(G+4*b,4)}, v{T} offset:{64*b}")
    for b in range(4): a(f"ds_read_b128 {v(C+4*b,4)}, v{T} offset:{256+64*b}")
    F(4)
    piece_slab(a, T + 2, g.rb0, 0, T + 8)
    a(f"""
    v_lshlrev_b32 v{T+1}, 4, v1
    s_lshl_b32 s34, s{g.rb0}, 4
    s_add_u32 s34, s34, s{g.tn}
    s_lshl_b32 s34, s34, 12
    s_mul_i32 s35, s{g.tn}, {4*SLAB}
    s_waitcnt lgkmcnt(8)""")
    unpack(a, X, P, 16)
    a("s_waitcnt lgkmcnt(4)")
    for b in range(4):
        for i in range(2):
            for e in range(4): a(f"v_fmac_f32 v{X+8*b+4*i+e}, v{G+4*b+e}, v{g.acc(b,i)+e}")
        for e in range(4): a(f"v_cvt_pk_bf16_f32 v{P+4*b+e}, v{X+8*b+2*e}, v{X+8*b+2*e+1}")
        if keep is None: a(f"buffer_store_dwordx4 {v(P+4*b,4)}, v{T+1}, s[12:15], s34 offen offset:{1024*b} sc1")
    unpack(a, X, P, 16)
    a("s_waitcnt lgkmcnt(0)")
    Y = 144
    for b in range(5):
        if b < 4:
            for i in range(2):
                for e in range(4): a(f"v_mul_f32 v{g.acc(b,i)+e}, v{C+4*b+e}, v{X+8*b+4*i+e}")
            pack_swap(a, Y + 4 * b, g.acc(b, 0), g.acc(b, 1))
        if b:
            swap2(a, Y + 4 * (b - 1))
            a(f"buffer_store_dwordx4 {v(Y+4*(b-1),4)}, v{T+2}, s[16:19], s35 offen sc1\ns_add_u32 s35, s35, {SLAB}")
    for i in range(2):
        r = [X + 8 * b + 4 * i + e for b in range(4) for e in range(4)]
        a(f"v_add_f32 v{T+8+2*i}, v{r[0]}, v{r[1]}")
        for x in r[2:]: a(f"v_add_f32 v{T+8+2*i}, v{T+8+2*i}, v{x}")
    allred4(a, [T + 8, T + 10], T + 12)
    a(f"v_mul_f32 v{T+12}, {fx(1/64)}, v{T+8}\nv_mul_f32 v{T+13}, {fx(1/64)}, v{T+10}")
    for i in range(2):
        r = [X + 8 * b + 4 * i + e for b in range(4) for e in range(4)]
        for x in r: a(f"v_sub_f32 v{x}, v{x}, v{T+12+i}")
        a(f"v_mul_f32 v{T+9+2*i}, v{r[0]}, v{r[0]}")
        for x in r[1:]: a(f"v_fmac_f32 v{T+9+2*i}, v{x}, v{x}")
    allred4(a, [T + 9, T + 11], T + 12)
    a(f"""
    v_cmp_lt_u32 vcc, 15, v1
    v_lshlrev_b32 v{T+1}, 3, v1
    s_lshl_b32 s32, s{g.tn}, 14
    s_lshl_b32 s33, s{g.rb0}, 8
    s_add_u32 s32, s32, s33
    v_cndmask_b32 v{T+8}, v{T+8}, v{T+10}, vcc
    v_cndmask_b32 v{T+9}, v{T+9}, v{T+11}, vcc
    s_mov_b32 exec_hi, 0
    buffer_store_dwordx2 {v(T+8,2)}, v{T+1}, s[20:23], s32 offen sc1
    s_mov_b32 exec_hi, -1""")
    if keep is not None:
        for i in range(16): a(f"v_accvgpr_write_b32 a{keep+i}, v{P+i}")
    return fl

def k_out():
    k = Kernel("out_kernel", 256, 256, 8192 * EXP.get("oR", 6) + 16384 + 2048, 256); a = k.a
    g = out_gemm(k, 0, ("v", 160))
    assert g.fend <= 256
    head(k, [(60, P_WO), (62, P_X)])
    g.tile(); g.b_addr(16); g.a_addr(16)
    a("s_waitcnt lgkmcnt(0)")
    g.a_srd(); g.b_srd(60)
    out_phase(k, g, 8192 * g.R, 62)
    stamp(k); prof_out(k, KID[k.name]); finish(k)
    return k

def down_gemm(k, lds0, frag, R, sset=0, vlow=3, sc1=False, acc0=32):
    return Gemm(k, "down", sset, 3584, 2, 4, 8, R, 4, 4, 99, 999, "panel", WS_ACT, ["tok"] * 4, 16, 16, 4, 2, 2048,
                (WS_WD3, 512, 0, 256), lds0, vlow, acc0, frag, FB=2, WG=2, sc1=sc1)
def down_gemm2(k, frag, sset, vlow):
    return Gemm(k, "down", sset, 1792, 2, 8, EXP.get("dDA", 8), 7, 4, 4, EXP.get("dCAP", 99), EXP.get("dINIT", 999), "panel", WS_ACT, ["tok"] * 8, 16, 16, 4, 2, 2048,
                (WS_WD4, 1024, 0, 0), 0, vlow, 32, frag, FB=EXP.get("dFB", 1), WG=EXP.get("dWG", 2), sc1=True, split=True)
def down_phase(k, g, XL, pout, keep=None, gate=None, gbp=False, two=False):
    a = k.a; T = 16; P, G, X = 96, 112, 128
    sc = " sc1" if g.sc1 else ""
    def extra():
        if gbp:
            first = [f"""v_and_b32 v{T+6}, 15, v1
            v_lshrrev_b32 v{T+7}, 4, v1
            v_lshlrev_b32 v{T+6}, 4, v{T+6}
            v_lshl_add_u32 v{T+6}, v{T+7}, 14, v{T+6}
            s_lshl_b32 s56, s{g.tn}, 8"""]
            ops = []
            for p in range(4):
                ops.append((30, first + [f"buffer_load_dwordx4 {v(176+4*p,4)}, v{T+6}, s[20:23], s56 offen sc1", "s_add_u32 s56, s56, 4096"])); first = []
            return ops
        ops = colvec_ops(g, 30, T + 8, [5], T + 6)
        if keep is not None: return ops
        first = [f"v_lshlrev_b32 v{T+7}, 4, v1\ns_lshl_b32 s56, s{g.rb0}, 4\ns_add_u32 s56, s56, s{g.tn}\ns_lshl_b32 s56, s56, 12"]
        for b in range(4):
            ops.append((31, first + [f"buffer_load_dwordx4 {v(P+4*b,4)}, v{T+7}, s[12:15], s56 offen offset:{1024*b}{sc}"]))
            first = []
        return ops
    if keep is None: srd(a, 12, 38, WS_X2, 4 << 20)
    if gbp: srd(a, 20, 38, WS_GBP, 65536)
    else: srd(a, 20, 38, WS_MODP, KS * 6144 * 4)
    def late(emit, W):
        if emit:
            g.r_addr(T); code_srd(k, 68, "down_epi", None, 256); cpf_addr(a, 2)
    cpf = f"buffer_load_dword v{T+15}, v2, s[68:71], 0 offen"; top = None
    if two:
        assert g.DA == 8 and g.PEEL == 4 and g.U == 4
        top = f"""s_sub_u32 s32, s36, 4
        s_cmp_gt_u32 s32, 1
        s_cbranch_scc1 dn_ok
        s_cmp_eq_u32 s32, 0
        s_cbranch_scc1 dn_chk
        buffer_load_dword v15, v14, s[12:15], 0 offen sc1
        s_branch dn_ok
dn_chk:
        v_cmp_eq_u32 vcc, 1, v15
        s_cmp_eq_u64 vcc, -1
        s_cbranch_scc1 dn_ok
        buffer_load_dword v15, v14, s[12:15], 0 offen sc1
        s_waitcnt vmcnt(0)
        s_branch dn_chk
dn_ok:"""
    g.run(extra, None, late, cpf, gate, top=top, after=two)
    if g.split:
        srd(a, 16, 38, WS_EX, 4 << 20)
        a(f"""
        s_lshl_b32 s33, s{g.rb0}, 4
        s_add_u32 s33, s33, s{g.tn}
        s_lshl_b32 s58, s33, 12
        s_xor_b32 s34, s58, 0x1000
        v_lshlrev_b32 v{T+11}, 4, v1""")
        for n in range(4):
            c = g.acc(4 + n, 0)
            for e in range(4): a(f"v_cvt_pk_bf16_f32 v{c+e}, v{c+2*e}, v{c+2*e+1}")
            if EXP.get("extag"):
                for e in range(4): a(f"v_min_u32 v{c+e}, -2, v{c+e}")
            a(f"buffer_store_dwordx4 {v(c,4)}, v{T+11}, s[16:19], s34 offen offset:{1024*n} sc1")
    srd(a, 20, pout, 0, 4 << 20)
    a(f"s_lshl_b32 s33, s26, 8\ns_add_u32 s33, s33, {XL + 16384}")
    if gbp:
        for w_ in (8, 4):
            for i in range(w_): a(f"v_add_f32 v{176+i}, v{176+i}, v{176+w_+i}")
        allred4(a, [176, 177, 178, 179], 180)
        a("v_cvt_pk_bf16_f32 v180, v176, v177\nv_cvt_pk_bf16_f32 v181, v178, v179")
        unpack(a, 176, 180, 2)
        a(f"v_and_b32 v{T}, 15, v1\nv_lshl_add_u32 v{T}, v{T}, 4, s33\nds_write_b128 v{T}, v[176:179]")
    else:
        a(f"v_add_f32 v{T+8}, v{T+8}, v{T+9}")
        rbf(a, T + 8)
        a(f"v_lshl_add_u32 v{T}, v1, 2, s33\nds_write_b32 v{T}, v{T+8}")
    a(f"""
    s_lshl_b32 s57, s26, 12
    s_add_u32 s57, s57, {XL}
    v_lshrrev_b32 v{T}, 4, v1
    v_lshl_add_u32 v{T}, v{T}, 4, s33""")
    tile_lds_addr(a, T + 3, T + 1, 57)
    a("s_waitcnt lgkmcnt(0)")
    for b in range(4): a(f"ds_read_b128 {v(G+4*b,4)}, v{T} offset:{64*b}")
    for b in range(1, 4): a(f"v_xor_b32 v{T+3+b}, {32*b}, v{T+3}")
    if keep is not None:
        for i in range(16): a(f"v_accvgpr_read_b32 v{P+i}, a{keep+i}")
    unpack(a, X, P, 16)
    a(row_src(T + 9, T + 8))
    a(f"""
    v_lshl_add_u32 v{T+10}, v1, 4, s57
    s_lshl_b32 s33, s{g.rb0}, 16
    s_lshl_b32 s32, s{g.tn}, 7
    s_add_u32 s33, s33, s32
    s_waitcnt lgkmcnt(0)""")
    if g.split and not EXP.get("extag"):
        a(f"""
        s_lshr_b32 s59, s58, 5
        s_add_u32 s59, s59, {512*128}
        s_xor_b32 s56, s59, 128
        v_mov_b32 v{T+12}, 1
        v_mov_b32 v{T+13}, 0
        s_mov_b64 exec, 1
        s_waitcnt vmcnt(0)
        buffer_store_dword v{T+12}, v{T+13}, s[12:15], s59 offen sc1
        s_mov_b64 exec, -1""")
        stamp(k)
        a("s_branch ex_first\nex_poll:")
        if EXP.get("exsl", 2): a(f"s_sleep {EXP.get('exsl', 2)}")
        a(f"""
ex_first:
        buffer_load_dword v{T+14}, v{T+13}, s[12:15], s56 offen sc1
        s_waitcnt vmcnt(0)
        v_cmp_eq_u32 vcc, 1, v{T+14}
        s_cbranch_vccz ex_poll""")
        for n in range(4): a(f"buffer_load_dwordx4 {v(160+4*n,4)}, v{T+11}, s[16:19], s58 offen offset:{1024*n} sc1")
    elif g.split:
        stamp(k)
        a("s_branch ex_first\nex_poll:")
        if EXP.get("exsl", 2): a(f"s_sleep {EXP.get('exsl', 2)}")
        a("ex_first:")
        for n in range(4): a(f"buffer_load_dwordx4 {v(160+4*n,4)}, v{T+11}, s[16:19], s58 offen offset:{1024*n} sc1")
        a(f"s_waitcnt vmcnt(0)\nv_max3_u32 v{T+12}, v160, v161, v162")
        for n in range(163, 175, 2): a(f"v_max3_u32 v{T+12}, v{n}, v{n+1}, v{T+12}")
        a(f"v_max_u32 v{T+12}, v175, v{T+12}\nv_cmp_eq_u32 vcc, -1, v{T+12}\ns_cbranch_vccnz ex_poll")
    for b in range(4):
        if g.split:
            a(f"s_waitcnt vmcnt({3-b})")
            unpack(a, g.acc(4 + b, 0), 160 + 4 * b, 4)
            for e in range(8): a(f"v_add_f32 v{g.acc(b,0)+e}, v{g.acc(b,0)+e}, v{g.acc(4+b,0)+e}")
        for i in range(2):
            for e in range(4): a(f"v_fmac_f32 v{X+8*b+4*i+e}, v{G+4*b+e}, v{g.acc(b,i)+e}")
        for e in range(4): a(f"v_cvt_pk_bf16_f32 v{P+4*b+e}, v{X+8*b+2*e}, v{X+8*b+2*e+1}")
        for i in range(2): a(f"ds_write_b64 v{T+3+b}, {v(P+4*b+2*i,2)} offset:{2048*i}")
    a("s_waitcnt lgkmcnt(0)")
    for i in range(4): a(f"ds_read_b128 {v(G+4*i,4)}, v{T+10} offset:{1024*i}")
    for i in range(4):
        a(f"s_waitcnt lgkmcnt({3-i})\nbuffer_store_dwordx4 {v(G+4*i,4)}, v{T+9}, s[20:23], s33 offen sc1\ns_add_u32 s33, s33, 0x4000")

def k_down():
    R = EXP.get("dR", 6)
    k = Kernel("down_kernel", 256, 256, 8192 * R + 16384 + 1024, 256); a = k.a
    g = down_gemm(k, 0, ("v", 160), R)
    head(k, [(60, P_WD), (62, P_OUT)])
    g.tile(); g.b_addr(16); g.a_addr(16)
    a("s_waitcnt lgkmcnt(0)")
    g.a_srd(); g.b_srd(60)
    down_phase(k, g, 8192 * R, 62)
    stamp(k); prof_out(k, KID[k.name]); finish(k)
    return k

def gu_gemm(k, lds0, sset=0, vlow=3, sc1=False):
    return Gemm(k, "gu", sset, 1024, 4, 14, EXP.get("gDA", 4), EXP.get("gR", 4), 2, EXP.get("gPEEL", 4), EXP.get("gCAP", 13), EXP.get("gINIT", 15),
                "gu", WS_Y2, ["tok"] * 14, 8, 32, 2, 4, 7168, None, lds0, vlow, 32, ("a", 0), WG=EXP.get("gWG", 7), sc1=sc1)
class Rec:
    def __init__(self): self.l = []
    def __call__(self, x): self.l += [t.strip() for t in x.split("\n") if t.strip()]

def gu_phase(k, g, XL, gate=None, POST=0, post_ops=None, stash=None, gfirst=False, mid=None):
    a = k.a; T = 16; XA = g.fend
    sc = " sc1" if g.sc1 else ""
    def extra():
        ops = []
        first = [f"""v_and_b32 v{T+6}, 15, v1
        v_lshlrev_b32 v{T+6}, 3, v{T+6}
        v_lshrrev_b32 v{T+7}, 4, v1
        v_lshl_add_u32 v{T+6}, v{T+7}, 16, v{T+6}
        s_lshl_b32 s56, s{g.rb0}, 8"""]
        for n in range(4):
            for i in range(4):
                ops.append((7, first + [f"buffer_load_dwordx2 {a_(XA+8*i+2*n,2)}, v{T+6}, s[16:19], s56 offen offset:{128*i}{sc}"] + (["s_add_u32 s56, s56, 0x4000"] if i == 3 else [])))
                first = []
        first = [f"""v_cmp_lt_u32 vcc, 111, v0
        v_mov_b32 v{T+7}, {(3584-112)*4}
        v_cndmask_b32 v{T+7}, 0, v{T+7}, vcc
        v_lshl_add_u32 v{T+7}, v0, 2, v{T+7}
        s_mul_i32 s57, s{g.tn}, 448"""]
        for i in range(4):
            ops.append((7.5, first + [f"buffer_load_dword a{XA+32+i}, v{T+7}, s[20:23], s57 offen{sc}", f"s_add_u32 s57, s57, {7168*4}"]))
            first = []
        return ops
    srd(a, 16, 38, WS_STAT, 16 * 2048 * 8); srd(a, 20, 38, WS_UV, KS * 2 * 7168 * 4)
    def late(emit, W):
        if emit:
            g.r_addr(T); code_srd(k, 68, "gu_top", None, 256); cpf_addr(a, 2); a("gu_top:")
    timed = []
    def win(lo, hi, L):
        for x in L:
            x, tag = x if isinstance(x, tuple) else (x, ("L", ("Z",)) if x.startswith("ds_") else None)
            timed.append((x, tag, lo, hi))
    r = Rec()
    for i in range(4): r(f"v_accvgpr_read_b32 v{16+i}, a{XA+32+i}")
    r(f"""
    v_add_f32 v16, v16, v18
    v_add_f32 v17, v17, v19
    v_lshlrev_b32 v18, 2, v0
    v_add_u32 v18, {XL}, v18
    ds_write_b32 v18, v16
    ds_write_b32 v18, v17 offset:1024""")
    for i in range(4):
        D = 24 + 2 * i
        for n in range(8): r(f"v_accvgpr_read_b32 v{16+n}, a{XA+8*i+n}")
        r(f"v_add_f32 v{D}, v16, v18\nv_add_f32 v{D+1}, v17, v19")
        for n in (2, 3): r(f"v_add_f32 v{D}, v{D}, v{16+2*n}\nv_add_f32 v{D+1}, v{D+1}, v{17+2*n}")
        allred4(r, [D], 17)
        r(f"v_mul_f32 v17, {fx(1/16)}, v{D}")
        for n in range(4): r(f"v_sub_f32 v{16+2*n}, v{16+2*n}, v17")
        r("v_mul_f32 v17, v16, v16")
        for n in range(1, 4): r(f"v_fmac_f32 v17, v{16+2*n}, v{16+2*n}")
        r(f"v_fmac_f32 v{D+1}, {fx(1/64)}, v17")
        allred4(r, [D + 1], 17)
        r(f"""
        v_mov_b32 v17, {fx(1e-5)}
        v_fmac_f32 v17, {fx(1/1024)}, v{D+1}
        v_mul_f32 v{D}, {fx(-1/1024)}, v{D}
        v_sqrt_f32 v{D+1}, v17""")
    r(f"v_lshrrev_b32 v0, 4, v1\nv_lshlrev_b32 v0, 4, v0\nv_add_u32 v0, {XL}, v0")
    T0 = 16
    win(8 * 56, T0 * 56 - 10, [("W", ("vm", "X", {("X",)}))] + r.l)
    for j in range(14):
        g0 = (T0 + j) * 56 + 4 * (j + 3); off = 64 * (j // 2) + 448 * (j % 2)
        win(g0 - 19, g0 - 12, [(f"ds_read_b128 v[16:19], v0 offset:{off}", ("L", ("U", j))), (f"ds_read_b128 v[20:23], v0 offset:{off+1024}", ("L", ("U", j)))])
        if stash and j == 10:
            assert stash[3] * 56 <= g0 - 11 < (stash[3] + 1) * 56 - 8
            win(g0 - 11, g0 - 2, [f"v_accvgpr_read_b32 v{stash[1]+n}, a{stash[0]+n}" for n in range(stash[2])])
        win(g0, g0 + 40, [("W", ("lg", "U", {("U", j)}))] + [f"v_fmac_f32 v{g.acc(j,i)+e}, v{24+2*i+w}, v{16+4*w+e}" for w in range(2) for i in range(4) for e in range(4)])
    r = Rec()
    for i in range(4): r(f"v_rcp_f32 v{24+2*i}, v{25+2*i}")
    piece_slab(r, 12, g.rb0, 0, 14); piece_slab(r, 13, g.rb0, 1, 14)
    c0 = -2 * math.sqrt(2 / math.pi) * LOG2E; c1 = c0 * 0.044715
    if mid:
        r(f"""
        s_lshr_b32 s58, s{g.tn}, 4
        s_mul_i32 s58, s58, 112
        s_and_b32 s56, s{g.tn}, 15
        s_mul_i32 s57, s56, 3
        s_lshl_b32 s56, s56, 2
        s_add_u32 s57, s57, s58
        s_add_u32 s58, s58, s56
        s_add_u32 s57, s57, 64
        s_mul_i32 s58, s58, {SLAB}
        s_mul_i32 s57, s57, {SLAB}""")
    else: r(f"s_mul_i32 s58, s{g.tn}, {7*SLAB}")
    r(f"s_mov_b32 s24, {fx(c1)}\ns_mov_b32 s25, {fx(c1)}\nv_mov_b32 v14, {fx(c0)}")
    srd(r, 16, 38, WS_ACT, 224 * SLAB)
    L = []
    for x in r.l:
        if x.startswith("s_addc"): L[-1] += "\n" + x
        else: L.append(x)
    win(30 * 56 + 50, 32 * 56 - 1, L)
    g.run(extra, None, late, f"buffer_load_dword a{XA+36}, v2, s[68:71], 0 offen", gate, POST, post_ops, timed, gfirst)
    pk = lambda r: v(r, 2)
    for f in range(7):
        cg, cu = g.acc(2 * f, 0), g.acc(2 * f + 1, 0)
        for h_ in ((0, 8) if f == 0 else (0,)):
            E_ = range(h_, h_ + 8, 2) if f == 0 else range(0, 16, 2)
            tmp = g.acc(2 * f - 1, 0) if f else 16 - h_
            for e in E_: a(f"v_pk_mul_f32 {pk(cg+e)}, {pk(cg+e)}, {pk(24+2*(e//4))} op_sel_hi:[1,0]")
            for e in E_: a(f"v_pk_mul_f32 {pk(tmp+e)}, {pk(cg+e)}, {pk(cg+e)}")
            for e in E_: a(f"v_pk_mul_f32 {pk(cu+e)}, {pk(cu+e)}, {pk(cg+e)}")
            for e in E_: a(f"v_pk_fma_f32 {pk(tmp+e)}, {pk(tmp+e)}, s[24:25], v[14:15] op_sel_hi:[1,1,0]")
            for e in E_: a(f"v_pk_mul_f32 {pk(cg+e)}, {pk(tmp+e)}, {pk(cg+e)}")
        for e in range(16): a(f"v_exp_f32 v{cg+e}, v{cg+e}")
        for e in range(0, 16, 2): a(f"v_pk_fma_f32 {pk(cg+e)}, {pk(cg+e)}, {pk(24+2*(e//4))}, {pk(24+2*(e//4))} op_sel:[0,1,1]")
        for e in range(16): a(f"v_rcp_f32 v{cg+e}, v{cg+e}")
        for e in range(0, 16, 2): a(f"v_pk_mul_f32 {pk(cu+e)}, {pk(cg+e)}, {pk(cu+e)}")
        for p_ in range(2): pack_swap(a, cg + 4 * p_, cu + 8 * p_, cu + 8 * p_ + 4)
        for p_ in range(2): swap2(a, cg + 4 * p_)
        if mid and f == 4:
            a("s_mov_b32 s58, s57"); mid()
        for p_ in range(2): a(f"buffer_store_dwordx4 {v(cg+4*p_,4)}, v{12+p_}, s[16:19], s58 offen sc1")
        a(f"s_add_u32 s58, s58, {SLAB}")
    a("v_lshl_add_u32 v0, s26, 6, v1")

def k_gu():
    R = EXP.get("gR", 4)
    k = Kernel("gu_kernel", 256, 256, 28672 * R + 2048, 256, 1); a = k.a
    g = gu_gemm(k, 0); k.na = g.fend + 37
    assert g.vend <= 16
    head(k, [(60, P_WG), (62, P_WU)])
    g.tile(); g.b_addr(16); g.a_addr(16)
    a("s_waitcnt lgkmcnt(0)")
    g.a_srd(); g.b_srd(60, 62)
    g.PEEL = 13
    gu_phase(k, g, 28672 * R, None, 3)
    stamp(k); prof_out(k, KID[k.name]); finish(k)
    return k

def publish(k, tag, s_mine, s_group, everyone=None, vt=30):
    a = k.a
    srd(a, 12, 38, WS_FLAG, NFLAG * 128)
    if everyone is not None:
        a(f"v_lshlrev_b32 v30, 7, v1\ns_lshl_b32 s32, s26, 13\ns_add_u32 s32, s32, {128*everyone}")
        poll(a, tag + "_all", "s32")
    a(f"""
    s_lshl_b32 s32, s{s_mine}, 7
    s_lshl_b32 s59, s{s_group}, 7
    v_mov_b32 v{vt}, 1
    v_mov_b32 v{vt+1}, s32
    s_waitcnt vmcnt(0) lgkmcnt(0)
    s_barrier""")
    stamp(k)
    a(f"""
    s_cmp_lg_u32 s26, 0
    s_cbranch_scc1 {tag}_nf
    s_mov_b64 exec, 1
    buffer_store_dword v{vt}, v{vt+1}, s[12:15], 0 offen sc1
    s_mov_b64 exec, -1
{tag}_nf:""")
def poll(a, lab, soff):
    a(f"""
{lab}:
    buffer_load_dword v31, v30, s[12:15], {soff} offen sc1
    s_waitcnt vmcnt(0)
    v_cmp_eq_u32 vcc, 1, v31
    s_cmp_eq_u64 vcc, -1
    s_cbranch_scc0 {lab}""")
def await_flags(k, tag, n=32, extra=None, everyone=None):
    a = k.a
    if everyone is not None:
        a(f"v_lshlrev_b32 v30, 7, v1\ns_lshl_b32 s32, s26, 13\ns_add_u32 s32, s32, {128*everyone}")
        poll(a, tag + "_all", "s32")
    a(f"""
    s_cmp_lg_u32 s26, 0
    s_cbranch_scc1 {tag}_go
    v_and_b32 v30, {n-1}, v1
    v_lshlrev_b32 v30, 7, v30
    v_add_u32 v30, s59, v30""")
    if extra is not None:
        a(f"v_and_b32 v31, 1, v1\nv_add_lshl_u32 v31, v31, s{extra}, 7\nv_cmp_lt_u32 vcc, 31, v1\nv_cndmask_b32 v30, v30, v31, vcc")
    poll(a, tag + "_poll", "0")
    a(f"{tag}_go:\ns_waitcnt vmcnt(0)\ns_barrier")
    stamp(k)

def attn_phase(k, go, XLo, gate, pub=None):
    a = k.a; R = 4; ST = 16384
    Q, ONES, IDX, NEG, S, O, L, P, K0, K1, V0, V1, T = 8, 24, 28, 32, 64, 96, 128, 136, 152, 156, 160, 164, 176
    VX, VU, VRAW, VS = 194, 195, 200, 208
    LV, LR, LS = 161792, 67584, 69632
    if pub: a("s_waitcnt vmcnt(12)")
    load_ptrs(a, [(98, P_WD), (24, P_C), (34, P_WMOD)])
    a(f"""
    s_and_b32 s32, s2, 7
    s_lshr_b32 s33, s2, 3
    s_and_b32 s48, s32, 3
    s_lshl_b32 s48, s48, 3
    s_and_b32 s49, s33, 7
    s_add_u32 s48, s48, s49            ; head
    s_lshr_b32 s49, s32, 2
    s_lshl_b32 s49, s49, 2
    s_lshr_b32 s33, s33, 3
    s_add_u32 s49, s49, s33
    s_lshl_b32 s55, s49, 5
    s_add_u32 s55, s55, s48
    v_lshlrev_b32 v2, 4, v1
    s_lshl_b32 s50, s49, 2
    s_add_u32 s50, s50, s26
    s_lshl_b32 s50, s50, 1
    s_lshl_b32 s51, s26, 12            ; wave * 4096
    s_lshl_b32 s36, s48, 6
    s_add_u32 s36, s36, s50
    s_lshl_b32 s36, s36, 11            ; Q offset
    s_lshl_b32 s32, s48, 18
    s_add_u32 s28, s38, s32
    s_addc_u32 s29, s39, 0
    s_add_u32 s28, s28, {WS_KV}
    s_addc_u32 s29, s29, 0
    s_mov_b32 s30, 0x40000
    s_mov_b32 s31, 0x20000
    s_mov_b32 s52, s51""")
    srd(a, 16, 38, WS_Q, 4 << 20)
    sc = " sc1" if gate else ""
    def dma(slot):
        return [f"s_add_u32 m0, s51, {slot*ST}"] + [f"buffer_load_dwordx4 v2, s[28:31], s52 offen offset:{1024*i}{sc} lds" for i in range(4)] + [f"s_add_u32 s52, s52, {ST}"]
    def first_loads():
        a(f"buffer_load_dwordx4 {v(K0,4)}, v2, s[28:31], 0 offen{sc}\nbuffer_load_dwordx4 {v(K1,4)}, v2, s[28:31], 0 offen offset:1024{sc}")
        for i in range(4): a(f"buffer_load_dwordx4 {v(Q+4*i,4)}, v2, s[16:19], s36 offen offset:{1024*i}{sc}")
        for x in dma(0): a(x)
    if not gate: first_loads()
    a(f"""
    s_waitcnt lgkmcnt(0)
    s_and_b32 s53, s55, 1              ; K half
    s_lshr_b32 s54, s55, 1             ; strip
    s_cmp_ge_u32 s54, 56
    s_cselect_b32 s4, s66, s64
    s_cselect_b32 s5, s67, s65
    s_cselect_b32 s32, 56, 0
    s_mov_b32 s57, 7168
    s_cmp_ge_u32 s54, 112
    s_cselect_b32 s4, s34, s4
    s_cselect_b32 s5, s35, s5
    s_cselect_b32 s32, 80, s32
    s_cselect_b32 s57, 12288, s57
    s_lshl_b32 s6, s57, 10
    s_mov_b32 s7, 0x20000
    s_sub_u32 s32, s54, s32
    s_lshl_b32 s33, s53, 9
    s_lshl_b32 s37, s26, 7
    s_add_u32 s33, s33, s37
    s_mul_i32 s27, s33, s57
    s_lshl_b32 s32, s32, 7
    s_add_u32 s27, s27, s32
    s_lshl_b32 s56, s26, 14
    s_add_u32 s56, s56, {LS}""")
    g2.panel_src(a, T, 1)
    a(f"""
    v_mul_lo_u32 v{T}, v{T}, s57
    v_lshl_add_u32 v{VU}, v{T+1}, 4, v{T}
    s_lshl_b32 s32, s57, 3
    s_sub_u32 s32, s32, 1024
    v_add_u32 v{VU+1}, s32, v{VU}
    s_lshl_b32 s57, s57, 4
    s_cmp_ge_u32 s54, 112
    s_cbranch_scc1 att_vs""")
    srd(a, 20, 38, WS_MODP, KS * 6144 * 4)
    a(f"v_add_lshl_u32 v{T}, v1, s33, 2")
    for i, (p, idx) in enumerate([(0, 4), (1, 4), (0, 3), (1, 3)]):
        a(f"s_mov_b32 s32, {p*6144*4 + idx*4096}")
        for c in range(2): a(f"buffer_load_dword v{VRAW+4*c+i}, v{T}, s[20:23], s32 offen offset:{256*c}")
    a("s_branch att_vd\natt_vs:")
    srd(a, 20, 24, 0, 2048)
    a(f"v_add_lshl_u32 v{T}, v1, s33, 1")
    for i in range(4):
        for c in range(2): a(f"buffer_load_ushort v{VRAW+4*c+i}, v{T}, s[20:23], 0 offen offset:{128*c}")
    a("att_vd:")
    VG = 197; LG, LGV, LGR = 135168, 157696, 159744
    srd(a, 20, 24, 0, 2048)
    a(f"""
    s_lshr_b32 s32, s55, 4
    s_lshl_b32 s32, s32, 6
    s_lshl_b32 s33, s26, 4
    s_add_u32 s32, s32, s33
    v_add_lshl_u32 v{T}, v1, s32, 1
    buffer_load_ushort v{VG+1}, v{T}, s[20:23], 0 offen
    s_mul_i32 s101, s32, 12288
    s_and_b32 s32, s55, 15
    s_lshl_b32 s32, s32, 7
    s_add_u32 s101, s101, s32
    s_add_u32 s101, s101, {80*128}""")
    srd(a, 20, 34, 0, 1024 * 12288)
    g2.panel_src(a, T, 1)
    a(f"v_mul_u32_u24 v{T}, 12288, v{T}\nv_lshl_add_u32 v{VG}, v{T+1}, 4, v{T}")
    go.tile(); go.b_addr(T); go.b_srd(60)
    a(row_src(VX, T))
    a(f"""
    s_lshl_b32 s24, s{go.rb0}, 16
    s_lshl_b32 s32, s{go.tn}, 7
    s_add_u32 s24, s24, s32
    s_lshl_b32 s25, s26, 11
    s_add_u32 s25, s25, {LG}""")
    g2.frag_off(a, 3, 50, 1, T)
    a("s_add_u32 s33, s50, 1")
    g2.frag_off(a, 4, 33, 1, T)
    code_srd(k, 68, "attn_epi", None, 256); cpf_addr(a, T + 4)
    a(f"""
    s_lshl_b32 s32, s2, 2
    s_add_u32 s32, s32, s26
    s_mul_i32 s3, s32, {14*128}
    s_lshl_b32 s58, s32, 9
    v_lshlrev_b32 v{T+6}, 7, v1
    v_mov_b32 v{T+8}, 0x80000000
    v_cmp_gt_u32 vcc, 4, v1
    v_cndmask_b32 v{T+7}, v{T+8}, v{T+6}, vcc
    v_cmp_gt_u32 vcc, 14, v1
    v_cndmask_b32 v{T+6}, v{T+8}, v{T+6}, vcc
    v_bfe_u32 v{T}, v1, 2, 1
    v_cmp_eq_u32 vcc, 0, v{T}
    v_mov_b32 v{T+1}, 0x3f803f80
    v_cndmask_b32 v{ONES}, 0, v{T+1}, vcc
    v_mov_b32 v{ONES+1}, v{ONES}
    v_xor_b32 v{ONES+2}, v{T+1}, v{ONES}
    v_mov_b32 v{ONES+3}, v{ONES+2}
    v_and_b32 v{T}, 1, v1
    v_mul_u32_u24 v{T}, 0xaaaa, v{T}
    v_add_u32 v{IDX}, 0x4444, v{T}""")
    for i in range(32): a(f"v_mov_b32 v{O+i}, 0")
    for i in range(8): a(f"v_mov_b32 v{L+i}, 0\nv_mov_b32 v{P+8+i}, 0\nv_mov_b32 v{V0+8+i}, 0")
    for i in list(range(16)) + [80, 81, 82, 83]: a(f"v_accvgpr_write_b32 a{i}, 0")
    A_, B_ = 224, 232
    g2.tr_lane(a, A_, 1, "contig", False); g2.panel_rd(a, A_, B_, B_ + 1)
    a(f"""
    v_add_u32 v{B_+7}, s25, v{B_}
    v_add_u32 v{B_+8}, s25, v{B_+1}
    v_add_u32 v{B_}, s56, v{B_}
    v_add_u32 v{B_+1}, s56, v{B_+1}
    s_lshl_b32 s33, s26, 9
    s_add_u32 s33, s33, {LV}
    v_lshl_add_u32 v{B_+2}, v1, 1, s33
    v_and_b32 v{B_+3}, 31, v1
    v_lshrrev_b32 v{B_+4}, 5, v1
    v_lshlrev_b32 v{B_+4}, 4, v{B_+4}
    v_lshl_add_u32 v{B_+4}, v{B_+3}, 7, v{B_+4}
    v_add_u32 v{B_+4}, s33, v{B_+4}
    s_lshl_b32 s32, s2, 8
    v_add_u32 v{A_}, s32, v0""")
    r = Rec()
    g2.strip_copy_issue(r, A_, 98, 3584, 2048, 1, 0, VS, 12, col=256, dsh=9)
    g2.strip_copy_issue(r, A_, 98, 3584, 2048, 1, 0, VS + 8, 12, col=384, dsh=9, doff=256)
    for x in r.l:
        if x.startswith("v_"): a(x)
    strip_loads = [x for x in r.l if x.startswith("buffer_")]
    if pub: pub()
    else: a("s_waitcnt vmcnt(0)")
    a("s_cmp_ge_u32 s54, 112\ns_cbranch_scc1 att_ps")
    for c in range(2):
        x = VRAW + 4 * c
        a(f"v_add_f32 v{x}, v{x}, v{x+1}\nv_add_f32 v{x+2}, v{x+2}, v{x+3}")
        rbf(a, x)
        a(f"v_add_f32 v{x}, 1.0, v{x}")
    a(f"""
    s_mul_i32 s100, s53, {2*7168*4}
    s_lshl_b32 s32, s54, 8
    s_add_u32 s100, s100, s32
    s_mul_i32 s32, s26, {7168*4}
    s_add_u32 s100, s100, s32
    s_add_u32 s100, s100, {WS_UV}
    s_mov_b32 s37, 2
    s_branch att_pd
att_ps:""")
    for c in range(2):
        x = VRAW + 4 * c
        a(f"""
        v_lshlrev_b32 v{x}, 16, v{x}
        v_mul_f32 v{x+1}, {fx(-LOG2E)}, v{x}
        v_exp_f32 v{x+1}, v{x+1}
        v_add_f32 v{x+1}, 1.0, v{x+1}
        v_rcp_f32 v{x+1}, v{x+1}
        v_mul_f32 v{x}, v{x}, v{x+1}""")
    a(f"""
    s_mul_i32 s100, s53, {6144*4}
    s_sub_u32 s32, s54, 80
    s_lshl_b32 s32, s32, 8
    s_add_u32 s100, s100, s32
    s_mov_b32 s37, 1
att_pd:""")
    for c in range(2):
        x = VRAW + 4 * c
        a(f"v_cvt_pk_bf16_f32 v{x}, v{x}, v{x}\nv_cvt_pk_bf16_f32 v{x+2}, v{x+2}, v{x+2}")
        a(f"ds_write_b16 v{B_+2}, v{x} offset:{256*c}\nds_write_b16 v{B_+2}, v{x+2} offset:{256*c+128}")
    x = VG + 1
    a(f"""
    v_lshlrev_b32 v{x}, 16, v{x}
    v_mul_f32 v{x+1}, {fx(-LOG2E)}, v{x}
    v_exp_f32 v{x+1}, v{x+1}
    v_add_f32 v{x+1}, 1.0, v{x+1}
    v_rcp_f32 v{x+1}, v{x+1}
    v_mul_f32 v{x}, v{x}, v{x+1}
    v_cvt_pk_bf16_f32 v{x}, v{x}, v{x}
    v_subrev_u32 v{B_+2}, {LV-LGV}, v{B_+2}
    ds_write_b16 v{B_+2}, v{x}
    v_subrev_u32 v{B_+9}, {LV-LGV}, v{B_+4}
    s_sub_u32 s33, s33, {LV-LR}
    v_lshl_add_u32 v{B_+2}, v1, 2, s33
    v_add_u32 v{B_+10}, {LGR-LR}, v{B_+2}
    s_lshl_b32 s33, s26, 8
    s_add_u32 s33, s33, {LR}
    s_lshl_b32 s32, s55, 8
    s_add_u32 s32, s32, {WS_GBP}
    s_cmp_eq_u32 s26, 2
    s_cselect_b32 s33, {LGR}, s33
    s_cselect_b32 s100, s32, s100
    s_cselect_b32 s37, 3, s37
    v_lshl_add_u32 v{B_+6}, v1, 2, s33
    v_lshlrev_b32 v{B_+5}, 2, v1""")
    upair = [f"buffer_load_dwordx4 v{VU}, s[4:7], s27 offen lds", f"buffer_load_dwordx4 v{VU+1}, s[4:7], s27 offen offset:1024 lds"]
    if gate:
        gate(); first_loads()
    srd(a, 12, 98, 0, 3584 * 2048); srd(a, 16, 60, 1 << 20, 1 << 20)
    lsum = lambda w, p: f"v_smfmac_f32_16x16x64_bf16 {v(L+4*w,4)}, {v(ONES,4)}, {v(p,8)}, v{IDX}"
    for x in dma(1): a(x)
    a(f"s_waitcnt vmcnt(8)")
    for w in range(2):
        a(f"v_mfma_f32_32x32x16_bf16 {v(S+16*w,16)}, {v(K0,4)}, {v(Q+8*w,4)}, 0")
        a(f"v_mfma_f32_32x32x16_bf16 {v(S+16*w,16)}, {v(K1,4)}, {v(Q+8*w+4,4)}, {v(S+16*w,16)}")
    def rowmax(Sx, m):
        for i in range(0, 16, 2): a(f"v_max3_f32 v{m}, v{Sx+i}, v{Sx+i+1}, v{m}")
    def negbcast(m, w):
        a(f"v_mov_b32 v{m+1}, v{m}\nv_permlane32_swap_b32 v{m}, v{m+1}\nv_max_f32 v{m}, v{m}, v{m+1}")
        for i in range(16): a(f"v_sub_f32 v{NEG+16*w+i}, 0, v{m}")
    for w in range(2):
        a(f"v_mov_b32 v{T}, v{S+16*w}")
        rowmax(S + 16 * w, T); negbcast(T, w)
        if w == 0:
            for i in range(16): a(f"v_sub_f32 v{S+i}, v{S+i}, v{T}")
            for x in dma(2): a(x)
    a(f"""
    s_mov_b32 m0, s56
    s_sub_u32 s52, s52, {ST}
    {upair[0]}
    {upair[1]}
    s_add_u32 s56, s56, 2048
    s_add_u32 s27, s27, s57
    s_mov_b32 m0, s56
    s_nop 0
    {upair[0]}
    {upair[1]}
    s_waitcnt vmcnt({4*(R-2)+4})
    s_barrier
    ds_read_b128 {v(V0,4)}, v2 offset:2048
    ds_read_b128 {v(V1,4)}, v2 offset:3072""")
    cnt = Cnt()
    def ph(n, E, site):
        def W(c, nm, tags):
            cnt.wait(c, (site, nm), tags)
            if E: E(cnt.text(c, (site, nm)))
        def X(x):
            if E: E(x)
        def RD(reg, blk, piece):
            X(f"ds_read_b128 {v(reg,4)}, v2 offset:{(blk % (4*R))*4096 + piece*1024}")
            cnt.issue("lg", (piece, blk))
        def VM(x, tag=("C",)):
            X(x); cnt.issue("vm", tag)
        j = n >> 1; w = n & 1; o = 1 - w; m = n % 8; half = n // 64
        Sc, Sn, Pc, Pp = S + 16 * w, S + 16 * o, P + 8 * w, P + 8 * o
        vb = (n - 1) >> 1
        Vr = V0 + 8 * (vb % 2); Vw = V0 + 8 * ((j + 1) % 2)
        e = lambda *l: [X(f"v_exp_f32 v{Sc+i}, v{Sc+i}") for i in l]
        c = lambda *l: [X(f"v_cvt_pk_bf16_f32 v{Pc+i}, v{Sc+2*i}, v{Sc+2*i+1}") for i in l]
        d = dma((n // 8 - 1) % R); tg = ("B", n // 8 - 1 + R)
        b0, b1 = go.dma_op(0), go.dma_op(1)
        xs = n % 32 < 24
        st4 = (n % 32) // 8
        slot = {}
        def at(mm, sl, f):
            if mm == m: slot.setdefault(sl, []).append(f)
        at(0, "C", lambda: X(d[0]))
        at(1, "B", lambda: X(d[5]))
        at(1, "C", lambda: W("vm", "bar", {("B", n // 8 + 1)}))
        at(1, "D", lambda: X("s_barrier"))
        for i, (mm, sl) in enumerate(((2, "C"), (3, "B"), (3, "D"), (4, "C"))): at(mm, sl, lambda i=i: VM(d[1 + i], tg))
        if xs:
            at(3, "C", lambda: X("s_add_u32 s56, s56, 2048" if half == 0 else b1[3]))
            at(2, "D", lambda: X("s_add_u32 s27, s27, s57" if half == 0 else b1[2]))
            at(4, "D", lambda: X("s_mov_b32 m0, s56" if half == 0 else b0[0]))
            at(5, "B", lambda: VM(upair[0], ("U",)) if half == 0 else VM(b0[1]))
            at(5, "D", lambda: VM(upair[1], ("U",)) if half == 0 else VM(b1[1].replace(f"v{go.VB+1},", f"v{VU},").replace(" lds", " offset:1024 lds")))
        if half == 1 and st4 % 2 == 0:
            at(6, "C", lambda: X("s_mov_b32 m0, s25"))
            at(7, "B", lambda: VM(f"buffer_load_dwordx4 v{VX}, s[20:23], s24 offen lds"))
            at(7, "C", lambda: X("s_add_u32 s24, s24, 0x4000"))
            at(7, "D", lambda: X("s_add_u32 s25, s25, 1024"))
        if half == 0 and st4 == 0:
            at(6, "C", lambda: X("s_mov_b32 m0, s25"))
            at(7, "B", lambda: VM(f"buffer_load_dwordx4 v{VG}, s[20:23], s101 offen nt lds"))
            at(7, "C", lambda: X(f"s_add_u32 s101, s101, {8*12288}"))
            at(7, "D", lambda: X("s_add_u32 s25, s25, 1024"))
        if st4 == 1:
            at(7, "B", lambda: VM(f"buffer_load_dword v{T+5}, v{T+6}, s[12:15], s3 offen"))
            at(7, "C", lambda: X(f"s_add_u32 s3, s3, {1024*14*128}"))
            at(7, "D", lambda: VM(f"buffer_load_dword v{T+5}, v{T+4}, s[68:71], 0 offen"))
        if st4 == 3 and half == 0:
            at(5, "B", lambda: VM(f"buffer_load_dword v{T+5}, v{T+7}, s[16:19], s58 offen"))
            at(5, "C", lambda: X(f"s_add_u32 s58, s58, {1024*512}"))
        def run_slot(sl):
            for f in slot.get(sl, []): f()
        X(f"v_mfma_f32_32x32x16_bf16 {v(Sn,16)}, {v(K0,4)}, {v(Q+8*o,4)}, {v(NEG+16*o,16)}")
        if w == 0: RD(K0, j + 1, 0)
        else: W("lg", "k1", {(1, j + 1)})
        e(0, 1, 2, 3); c(0)
        X(f"v_mfma_f32_32x32x16_bf16 {v(Sn,16)}, {v(K1,4)}, {v(Q+8*o+4,4)}, {v(Sn,16)}")
        if w == 0: RD(K1, j + 1, 1)
        run_slot("B")
        e(4, 5, 6); c(1, 2)
        X(f"v_mfma_f32_32x32x16_bf16 {v(O+16*o,16)}, {v(Vr,4)}, {v(Pp,4)}, {v(O+16*o,16)}")
        run_slot("C")
        e(7, 8, 9); c(3, 4)
        X(f"v_mfma_f32_32x32x16_bf16 {v(O+16*o,16)}, {v(Vr+4,4)}, {v(Pp+4,4)}, {v(O+16*o,16)}")
        if w == 0: W("lg", "k0", {(0, j + 1), (2, j), (3, j)})
        run_slot("D")
        e(10, 11, 12); c(5)
        X(lsum(o, Pp))
        RD(Vw + 4 * w, j + 1, 2 + w)
        e(13, 14, 15); c(6, 7)
    def side(E):
        cnt.wait("vm", ("side", "U"), {("U",)}); cnt.drain("lg")
        for _ in range(7): cnt.issue("vm", ("C",))
        if not E: return
        srd(a, 16, 38, 0, 0); srd(a, 20, 62, 0, 4 << 20)
        a(f"""
        s_cmp_lt_u32 s26, s37
        s_cselect_b32 s18, {WS_FLAG}, 0
        s_lshl_b32 s25, s26, 12
        s_add_u32 s25, s25, {XLo}""")
        a(f"v_cmp_gt_u32 vcc, 2, v{B_+3}")
        a(cnt.text("vm", ("side", "U")))
        for c in range(2):
            a("s_and_saveexec_b64 s[34:35], vcc")
            if c == 0: a(f"ds_read_b128 a[80:83], v{B_+9}")
            for sub in range(4): a(f"ds_read_b128 {a_(4*sub,4)}, v{B_+4} offset:{32*sub+256*c}")
            a("s_mov_b64 exec, s[34:35]")
            if c == 0:
                for jj in range(2):
                    for r_ in range(2): a(f"ds_read_b64_tr_b16 {a_(116+4*jj+2*r_,2)}, v{B_+7+jj} offset:{512*r_}")
            for sub in range(4):
                for jj in range(2):
                    for r_ in range(2): a(f"ds_read_b64_tr_b16 {a_(16+8*sub+4*jj+2*r_,2)}, v{B_+jj} offset:{128*(16*sub+4*r_)+8192*c}")
            if c == 0:
                for x in strip_loads: a(x)
            for sub in range(4):
                a(f"s_waitcnt lgkmcnt({12-4*sub})")
                if c == 0 and sub == 0:
                    for jj in range(2): a(f"v_mfma_f32_32x32x16_bf16 {a_(84+16*jj,16)}, a[80:83], {a_(116+4*jj,4)}, 0")
                for jj in range(2):
                    d_ = a_(48 + 16 * jj, 16)
                    a(f"v_mfma_f32_32x32x16_bf16 {d_}, {a_(4*sub,4)}, {a_(16+8*sub+4*jj,4)}, {d_ if (sub or c) else 0}")
        a("s_mov_b32 exec_hi, 0")
        for jj in range(2): a(f"ds_write_b32 v{B_+10}, a{84+16*jj} offset:{128*jj}")
        for jj in range(2):
            for q in range(2): a(f"ds_write_b32 v{B_+2}, a{48+16*jj+q} offset:{256*q+128*jj}")
        a("s_mov_b32 exec_hi, -1\ns_waitcnt lgkmcnt(0)\ns_barrier")
        for w in range(4): a(f"ds_read_b32 v{A_+w}, v{B_+6} offset:{512*w}")
        for x in go.dma_op(0) + go.dma_op(1)[:4] + go.dma_op(0) + go.dma_op(1)[:2]: a(x)
        a(f"""
        v_subrev_u32 v{VU}, 1024, v{go.VB+1}
        s_waitcnt lgkmcnt(0)
        v_add_f32 v{A_}, v{A_}, v{A_+1}
        v_add_f32 v{A_+2}, v{A_+2}, v{A_+3}
        v_add_f32 v{A_}, v{A_}, v{A_+2}
        buffer_store_dword v{A_}, v{B_+5}, s[16:19], s100 offen sc1""")
    def whole(E):
        cnt.reset()
        for st in range(R - 1):
            for i in range(4): cnt.issue("vm", ("B", st))
        for i in range(4): cnt.issue("vm", ("U",))
        cnt.issue("lg", (2, 0)); cnt.issue("lg", (3, 0))
        for half in range(2):
            if E: E(f"s_mov_b32 s36, 2\n.p2align 6\nattn_loop{half}:")
            for n in range(64 * half, 64 * half + 64): ph(n, E if n % 64 < 32 else None, (half, n % 32))
            if E: E(f"s_sub_u32 s36, s36, 1\ns_cmp_lg_u32 s36, 0\ns_cbranch_scc1 attn_loop{half}")
            if half == 0:
                if E and EXP.get("ast"): stamp(k)
                side(E)
                if E and EXP.get("ast"): stamp(k)
    whole(None)
    stamp(k)
    whole(a)
    go.pre = 8
    a("attn_epi:")
    a(f"s_add_u32 s{go.sB}, s{go.sB}, s{go.sBI}\ns_mov_b32 s{go.sW}, s{go.sW0}")
    stamp(k)
    a(f"""
    v_mfma_f32_32x32x16_bf16 {v(O+16,16)}, {v(V0+8,4)}, {v(P+8,4)}, {v(O+16,16)}
    v_mfma_f32_32x32x16_bf16 {v(O+16,16)}, {v(V1+8,4)}, {v(P+12,4)}, {v(O+16,16)}""")
    a(lsum(1, P + 8))
    g2.strip_copy_store(a, 38, WS_WD4, 3584 * 1024, VS, 4); g2.strip_copy_store(a, 38, WS_WD4, 3584 * 1024, VS + 8, 4)
    srd(a, 16, 38, WS_O, 64 * SLAB)
    a(f"v_mov_b32 v{T}, 0\nv_mov_b32 v{T+1}, 0")
    for i in range(32): a(f"v_fmac_f32 v{T+i%2}, 0, v{O+i}")
    ltot = f"v_add_f32 v{L}, v{L}, v{L+1}\nv_add_f32 v{L+4}, v{L+4}, v{L+5}"
    a(ltot)
    a(f"""
    v_add_f32 v{T}, v{T}, v{T+1}
    v_add_f32 v{T}, v{T}, v{L}
    v_add_f32 v{T}, v{T}, v{L+4}
    v_cmp_ngt_f32 vcc, {fx(2.0**40)}, v{T}
    s_cbranch_vccnz attn_slow
attn_fin:
    v_rcp_f32 v{T}, v{L}
    v_rcp_f32 v{T+1}, v{L+4}
    s_mul_i32 s32, s48, {2*SLAB}
    s_add_u32 s33, s32, {SLAB}""")
    for w in range(2):
        Ow = O + 16 * w
        for i in range(16): a(f"v_mul_f32 v{Ow+i}, v{Ow+i}, v{T+w}")
        for i in range(8): a(f"v_cvt_pk_bf16_f32 v{Ow+i}, v{Ow+2*i}, v{Ow+2*i+1}")
        a(f"buffer_store_dwordx4 {v(Ow,4)}, v{3+w}, s[16:19], s32 offen sc1\nbuffer_store_dwordx4 {v(Ow+4,4)}, v{3+w}, s[16:19], s33 offen sc1")
    def slow():
        a(f"""
attn_slow:
        v_mov_b32 v{T}, 0xff800000
        v_mov_b32 v{T+2}, 0xff800000
        s_mov_b32 s52, 0
        s_waitcnt lgkmcnt(0)
attn_slow1:
        buffer_load_dwordx4 {v(K0,4)}, v2, s[28:31], s52 offen{sc}
        buffer_load_dwordx4 {v(K1,4)}, v2, s[28:31], s52 offen offset:1024{sc}
        s_waitcnt vmcnt(0)""")
        for w in range(2):
            a(f"v_mfma_f32_32x32x16_bf16 {v(S+16*w,16)}, {v(K0,4)}, {v(Q+8*w,4)}, 0")
            a(f"v_mfma_f32_32x32x16_bf16 {v(S+16*w,16)}, {v(K1,4)}, {v(Q+8*w+4,4)}, {v(S+16*w,16)}")
        for w in range(2): rowmax(S + 16 * w, T + 2 * w)
        a("s_add_u32 s52, s52, 4096\ns_cmp_lt_u32 s52, 0x40000\ns_cbranch_scc1 attn_slow1")
        for w in range(2): negbcast(T + 2 * w, w)
        for i in range(32): a(f"v_mov_b32 v{O+i}, 0")
        for i in range(8): a(f"v_mov_b32 v{L+i}, 0")
        a("s_mov_b32 s52, 0\nattn_slow2:")
        for n, r_ in enumerate((K0, K1, V0, V1)): a(f"buffer_load_dwordx4 {v(r_,4)}, v2, s[28:31], s52 offen offset:{1024*n}{sc}")
        a("s_waitcnt vmcnt(0)")
        for w in range(2):
            a(f"v_mfma_f32_32x32x16_bf16 {v(S+16*w,16)}, {v(K0,4)}, {v(Q+8*w,4)}, {v(NEG+16*w,16)}")
            a(f"v_mfma_f32_32x32x16_bf16 {v(S+16*w,16)}, {v(K1,4)}, {v(Q+8*w+4,4)}, {v(S+16*w,16)}")
        for i in range(32): a(f"v_exp_f32 v{S+i}, v{S+i}")
        for i in range(16): a(f"v_cvt_pk_bf16_f32 v{P+i}, v{S+2*i}, v{S+2*i+1}")
        for w in range(2):
            a(f"v_mfma_f32_32x32x16_bf16 {v(O+16*w,16)}, {v(V0,4)}, {v(P+8*w,4)}, {v(O+16*w,16)}")
            a(f"v_mfma_f32_32x32x16_bf16 {v(O+16*w,16)}, {v(V1,4)}, {v(P+8*w+4,4)}, {v(O+16*w,16)}")
            a(lsum(w, P + 8 * w))
        a("s_add_u32 s52, s52, 4096\ns_cmp_lt_u32 s52, 0x40000\ns_cbranch_scc1 attn_slow2")
        a(ltot)
        a("s_branch attn_fin")
    return slow

def k_mlp():
    k = Kernel("mlp_kernel", 256, 256, 163840, 256, 1); a = k.a
    oR = EXP.get("oR", 6); OL = 163840 - (8192 * oR + 18432); dR = 14
    go = out_gemm(k, OL, ("a", 0), 0)
    gg = gu_gemm(k, 0, 1, sc1=True)
    SPL = EXP.get("splitk", 1)
    gd = down_gemm2(k, ("a", 0), 0, 26) if SPL else down_gemm(k, 0, ("a", 0), dR, 0, vlow=28, sc1=True, acc0=64)
    gg.PEEL = 13
    KEEP = gg.fend + 38; k.na = KEEP + 20
    assert gd.fend <= KEEP
    MG = EXP.get("merge", 3)
    ptrs = [(60, P_WO), (62, P_X), (64, P_WG), (66, P_WU)]
    def pre_gu():
        gg.tile(); gg.b_addr(12); gg.b_srd(64, 66)
        return gg.preload(EXP.get("gpl", 2))
    slow = None
    if MG == 1:
        head(k, ptrs)
        go.tile(); go.b_addr(16); go.a_addr(16)
        a("s_waitcnt lgkmcnt(0)")
        go.a_srd(); go.b_srd(60)
        rest = out_phase(k, go, OL + 8192 * oR, 62, pre_gu, KEEP, 7)
    else:
        go.lds0 = 0; go.R = 17; go.slot0 = 9; go.VB = 192; go.sc1 = True; XLo = 17 * 8192
        assert SPL
        gg.lds0 = 24576; gg.slot0 = 2; gd.lds0 = 8192; gd.R = 8; gd.slot0 = 5
        gate = pub = None
        if MG == 3:
            head(k, [(60, P_WQKV), (62, P_X)])
            gq = qkv_phase(k, EXP.get("lnm", 2))
            load_ptrs(a, ptrs)
            a(f"""
            s_lshl_b32 s100, s{gq.tn}, 4
            s_add_u32 s100, s100, s{gq.tm}
            s_add_u32 s100, s100, {F_QKV}
            s_and_b32 s59, s2, 3
            s_lshl_b32 s59, s59, 2
            s_bfe_u32 s32, s2, 0x20004
            s_add_u32 s59, s59, s32
            s_lshl_b32 s59, s59, 4
            s_add_u32 s59, s59, {F_QKV}""")
            pub = lambda: publish(k, "hq", 100, 59)
            gate = lambda: await_flags(k, "hq", 16)
        else:
            head(k, ptrs)
            a("s_waitcnt lgkmcnt(0)")
        slow = attn_phase(k, go, XLo, gate, pub)
        a(f"""
        s_add_u32 s56, s55, {F_ATT}
        s_lshr_b32 s57, s{go.tm}, 1
        s_lshl_b32 s57, s57, 5
        s_add_u32 s57, s57, {F_ATT}
        s_lshl_b32 s58, s{go.tn}, 1
        s_add_u32 s58, s58, {F_ATT + 224}
        s_waitcnt lgkmcnt(0)""")
        go.a_addr(16); go.a_srd()
        publish(k, "h0", 56, 57)
        for grp in go.preload(16)[16:]:
            for x in grp: a(x)
        rest = out_phase(k, go, XLo, None, pre_gu, KEEP, 7, lambda: await_flags(k, "h0", 32, 58))
    if rest is None: gg.tile()
    a(f"""
    s_lshl_b32 s56, s{go.tm}, 4
    s_add_u32 s56, s56, s{go.tn}
    s_lshl_b32 s57, s{gg.tm}, 5""")
    load_ptrs(a, [(60, P_WD), (62, P_OUT)])
    if rest is None:
        gg.b_addr(12); gg.b_srd(64, 66); rest = gg.preload(EXP.get("gpl", 2))
    publish(k, "h1", 56, 57, F_ATT if MG > 1 else None)
    for grp in rest:
        for x in grp: a(x)
    gg.a_addr(16); gg.a_srd()
    a("s_waitcnt lgkmcnt(0)")
    gd.tile(); gd.b_addr(16); gd.b_srd(60)
    if MG > 1 and EXP.get("two", 1): a(f"s_lshr_b32 s3, s{gd.sBI}, 6\ns_mul_i32 s{gd.sBI}, s3, 112")
    for n in range(gd.ND): a(f"v_accvgpr_write_b32 a{KEEP+16+n}, v{gd.VB+n}")
    gd.VB = 3
    npre = EXP.get("dpl", gd.R - 1); pl = gd.preload(npre)
    S = gg.S
    NIN = EXP.get("dnin", 20)
    lim = ((2, 4, 8, 12) if MG == 1 else (2, 4, 10, 16)) if SPL else (2, 6, 10, 14)
    post = [(S - 5 + sum(n >= x for x in lim), grp) for n, grp in enumerate(pl[:NIN])]
    TWO = MG > 1 and EXP.get("two", 1)
    def flag_ids():
        a(f"""
        s_lshl_b32 s56, s{gg.tm}, 5
        s_add_u32 s56, s56, s{gg.tn}
        s_add_u32 s56, s56, {F_GU}
        s_lshr_b32 s57, s{gd.tm}, 1
        s_lshl_b32 s57, s57, 5
        s_add_u32 s57, s57, {F_GU}""")
        if SPL: a(f"s_and_b32 s32, s{gd.tn}, 1\ns_lshl_b32 s32, s32, 4\ns_add_u32 s57, s57, s32")
    def late_pre():
        for grp in gd.preload(npre)[NIN:]:
            for x in grp: a(x)
    def mid():
        flag_ids(); publish(k, "h2", 56, 57, None, 8)
        if EXP.get("dlate", 0) == 0: late_pre()
    gu_phase(k, gg, 114688 if MG == 1 else 0, lambda: await_flags(k, "h1"), 3, post, (KEEP + 16, 3, gd.ND, S - 6), mid=mid if TWO else None)
    gd.VR0 = 3 + gd.ND; gd.VR = gd.VR0 + 1; gd.VA = gd.VR + 4
    if not TWO:
        flag_ids(); publish(k, "h2", 56, 57); late_pre()
        gd.a_addr(16); gd.a_srd()
        gate2 = lambda: await_flags(k, "h2", 16 if SPL else 32)
    else:
        a(f"""
        v_and_b32 v30, 15, v1
        v_lshlrev_b32 v30, 7, v30
        v_add_u32 v30, s59, v30
        buffer_load_dword v31, v30, s[12:15], 0 offen sc1""")
        if EXP.get("dlate", 0) == 1: late_pre()
        stamp(k)
        gd.a_addr(16); gd.a_srd()
        VT = 200
        a(f"""
        v_mov_b32 v201, v9
        v_subrev_u32 v16, 16, v1
        v_lshl_add_u32 v16, v16, 2, s26
        v_mul_u32_u24 v17, 21846, v16
        v_lshrrev_b32 v17, 16, v17
        v_lshlrev_b32 v16, 4, v16
        v_lshl_add_u32 v16, v17, 6, v16
        s_lshl_b32 s32, s26, 4
        s_sub_u32 s32, 64, s32
        v_add_u32 v16, s32, v16
        v_mul_u32_u24 v17, 112, v1
        v_cmp_gt_u32 vcc, 16, v1
        v_cndmask_b32 v16, v16, v17, vcc
        v_mul_lo_u32 v16, v16, s3
        v_mov_b32 v17, 0x40000000
        v_cmp_gt_u32 vcc, 28, v1
        v_cndmask_b32 v{VT}, v17, v16, vcc
        s_mov_b32 s{gd.sBI}, {npre}
        v_add_u32 v14, {(F_GU2-F_GU)*128}, v30""")
        gd.VT = VT
        def gate2():
            a("""
            s_waitcnt vmcnt(0)
            v_cmp_eq_u32 vcc, 1, v31
            s_cmp_eq_u64 vcc, -1
            s_cbranch_scc1 h2_go""")
            poll(a, "h2_poll", "0")
            a("h2_go:")
            stamp(k)
        def after2():
            a(f"""
            s_barrier
            s_cmp_lg_u32 s26, 0
            s_cbranch_scc1 h2b_nf
            v_mov_b32 v30, 1
            s_mov_b32 s32, {(F_GU2-F_GU)*128}
            s_mov_b64 exec, 1
            buffer_store_dword v30, v201, s[12:15], s32 offen sc1
            s_mov_b64 exec, -1
h2b_nf:""")
    down_phase(k, gd, 116736 if MG == 1 else 139264, 62, KEEP, gate2, MG > 1, after2 if TWO else None)
    if not SPL: stamp(k)
    prof_out(k, KID["out_kernel"])
    if slow:
        a("s_endpgm"); slow()
    finish(k)
    return k
KID["mlp_kernel"] = KID["out_kernel"]

def all_kernels():
    g2.QPRE = 1024
    EXP["xsplit"] = 1
    MG = EXP.get("merge", 3)
    if MG:
        EXP["zflag"] = WS_FLAG
        if EXP.get("splitk", 1): EXP["wd4"] = WS_WD4; EXP["exclr"] = WS_EX if EXP.get("extag") else 0
        g2.ORDER[:] = ["pre_kernel", "qkv_kernel", "attn_kernel", "mlp_kernel"]
        for kk, vv in (("gINIT", 12), ("gCAP", 10)): EXP.setdefault(kk, vv)
        if MG > 1:
            EXP["gpre"] = 3
            if MG == 3 and EXP.get("lnm", 2) == 1: EXP["noln"] = 1
            g2.ORDER[:] = ["pre_kernel", "qkv_kernel", "mlp_kernel"] if MG == 2 else ["pre_kernel", "mlp_kernel"]
            return [g2.k_pre()] + ([k_qkv()] if MG == 2 else []) + [k_mlp()]
        return [g2.k_pre(), k_qkv(), g2.k_attn4(), k_mlp()]
    g2.ORDER[:] = ["pre_kernel", "qkv_kernel", "attn_kernel", "out_kernel", "gu_kernel", "down_kernel"]
    return [g2.k_pre(), k_qkv(), g2.k_attn4(), k_out(), k_gu(), k_down()]

if __name__ == "__main__":
    vb = False
    for x in sys.argv[2:]:
        if x == "prof": g2.PROF = True
        elif x == "verbose": vb = True
        else:
            kk, _, vv = x.partition("="); EXP[kk] = int(vv) if vv else 1
    g2.build(all_kernels(), sys.argv[1] if len(sys.argv) > 1 else "adaLN_cond__mha_block__geglu_ffn__prompt.s", verbose=vb)
```
